```python
import torch

def _softmax(x, axis=-1):
    return torch.softmax(x, dim=axis)
def _gelu(x):
    return torch.nn.functional.gelu(x, approximate="tanh")
def _silu(x):
    return torch.nn.functional.silu(x)
def _sigmoid(x):
    return torch.sigmoid(x)
def _layernorm(x, axis=-1, eps=1e-5):
    m = x.mean(dim=axis, keepdim=True)
    v = x.var(dim=axis, keepdim=True, unbiased=False)
    return (x - m) / torch.sqrt(v + eps)
def _scatter_add(tgt, idx, src, axis=0):
    return tgt.clone().index_add_(axis, idx, src)
def _segment_sum(src, seg, n):
    out = torch.zeros((n,) + src.shape[1:], dtype=src.dtype)
    return out.index_add_(0, seg, src)
def _pad(x, pw):
    flat = tuple(v for pair in reversed(pw) for v in pair)
    return torch.nn.functional.pad(x, flat)

kernel_name = 'recurrent_scan__ssm_conv_s4d__dense_activation_squared_relu__prompt'

def setup_inputs():

    _w = (lambda a: (lambda t: t.to(torch.bfloat16) if t.is_floating_point() else t)(torch.as_tensor(a)))
    def _A_setup():
        Bsz, L, D, N = 1, 2048, 640, 192
        return {
            "u": _w((lambda *s: torch.randn(*s, dtype=torch.bfloat16) * 0.05)(Bsz, L, D)),
            "log_A_real": _w((lambda *s: torch.randn(*s, dtype=torch.bfloat16) * 3.2)(D, N) * 0.5),
            "A_imag": _w((lambda *s: torch.randn(*s, dtype=torch.bfloat16) * 0.05)(D, N) * 3.14),
            "C_real": _w((lambda *s: torch.randn(*s, dtype=torch.bfloat16) * 0.2)(D, N) / N ** 0.5),
            "C_imag": _w((lambda *s: torch.randn(*s, dtype=torch.bfloat16) * 0.2)(D, N) / N ** 0.5),
            "log_dt": _w((lambda *s: torch.randn(*s, dtype=torch.bfloat16) * 0.05)(D) * 0.5 - 4.0),
            "D_skip": _w((lambda *s: torch.randn(*s, dtype=torch.bfloat16) * 0.05)(D)),
        }
    _A_in = _A_setup()

    def _B_setup():
        B, S, D, F = 1, 2048, 640, 1536
        return {
            "x": _w((lambda *s: torch.randn(*s, dtype=torch.bfloat16) * 0.05)(B, S, D)),
            "w1": _w((lambda *s: torch.randn(*s, dtype=torch.bfloat16) * 0.05)(D, F)),
            "b1": _w((lambda *s: torch.randn(*s, dtype=torch.bfloat16) * 0.4)(F)),
            "w2": _w((lambda *s: torch.randn(*s, dtype=torch.bfloat16) * 0.05)(F, D)),
            "b2": _w((lambda *s: torch.randn(*s, dtype=torch.bfloat16) * 1.6)(D)),
        }
    _B_in = _B_setup()

    return {
        "A_u": _A_in["u"],
        "A_log_A_real": _A_in["log_A_real"],
        "A_A_imag": _A_in["A_imag"],
        "A_C_real": _A_in["C_real"],
        "A_C_imag": _A_in["C_imag"],
        "A_log_dt": _A_in["log_dt"],
        "A_D_skip": _A_in["D_skip"],
        "B_x": _B_in["x"],
        "B_w1": _B_in["w1"],
        "B_b1": _B_in["b1"],
        "B_w2": _B_in["w2"],
        "B_b2": _B_in["b2"],
    }

def reference(A_u, A_log_A_real, A_A_imag, A_C_real, A_C_imag, A_log_dt, A_D_skip, B_x, B_w1, B_b1, B_w2, B_b2):
    def _A_ref(u, log_A_real, A_imag, C_real, C_imag, log_dt, D_skip):
        L = u.shape[1]
        dt = torch.exp(log_dt)
        A = -torch.exp(log_A_real) + 1j * A_imag
        C = (C_real + 1j * C_imag) * dt[:, None]
        pos = (lambda x, dt: x.to(dt))(torch.arange(L), log_dt.dtype)
        P = torch.exp((A * dt[:, None])[:, :, None] * pos[None, None, :])
        K = 2.0 * torch.einsum("dn,dnl->dl", C, P).real
        L2 = 2 * L
        u_t = (lambda x, *d: x.permute(*d))(u, 0, 2, 1)
        Kf = (lambda x, *a, **k: torch.fft.rfft(x.float(), *a, **k))(K, L2)
        Uf = (lambda x, *a, **k: torch.fft.rfft(x.float(), *a, **k))(u_t, L2)
        y = (lambda x, *a, **k: torch.fft.irfft(x, *a, **k).to(torch.bfloat16))(Uf * Kf[None, :, :], L2)[:, :, :L]
        y = (lambda x, *d: x.permute(*d))(y, 0, 2, 1)
        return y + u * D_skip[None, None, :]

    def _B_ref(x, w1, b1, w2, b2):
        h = torch.einsum("bsd,df->bsf", x, w1) + b1
        zero = torch.zeros_like(h)
        r = torch.where(h > zero, h, zero)
        h = r * r
        out = torch.einsum("bsf,fd->bsd", h, w2) + b2
        return out

    x = A_u
    xn = _layernorm(x, axis=-1)
    s = _A_ref(xn, A_log_A_real, A_A_imag, A_C_real, A_C_imag, A_log_dt, A_D_skip)
    g = _silu(_B_ref(xn, B_w1, B_b1, B_w2, B_b2))
    return x + s * g
```

```python
import re

TRANS = ("v_exp_f32", "v_log_f32", "v_rcp_f32", "v_rsq_f32", "v_sqrt_f32", "v_sin_f32", "v_cos_f32")

def _regs(tok):
    tok = tok.strip()
    neg = tok.lstrip("-")
    if neg.startswith("abs(") or neg.startswith("|"):
        neg = neg.replace("abs(", "").replace(")", "").replace("|", "")
    m = re.fullmatch(r"([vsa])(\d+)", neg)
    if m:
        return {m.group(1) + m.group(2)}
    m = re.fullmatch(r"([vsa])\[(\d+):(\d+)\]", neg)
    if m:
        return {m.group(1) + str(i) for i in range(int(m.group(2)), int(m.group(3)) + 1)}
    if neg in ("vcc", "exec", "m0", "vcc_lo", "vcc_hi", "exec_lo", "exec_hi"):
        return {neg.split("_")[0]}
    return set()

class Ins:
    def __init__(self, text):
        self.text = text
        t = text.split(";")[0].strip()
        parts = t.split(None, 1)
        self.op = parts[0]
        ops = []
        if len(parts) > 1:
            depth = 0; cur = ""
            for ch in parts[1]:
                if ch == "[": depth += 1
                if ch == "]": depth -= 1
                if ch == "," and depth == 0:
                    ops.append(cur); cur = ""
                else:
                    cur += ch
            ops.append(cur)
        self.mods = ""
        if ops:
            last = ops[-1].strip().split()
            if last:
                ops[-1] = last[0]
                self.mods = " ".join(last[1:])
        self.ops = [o.strip() for o in ops]
        op = self.op
        self.is_mfma = op.startswith("v_mfma")
        self.is_valu = op.startswith("v_") and not self.is_mfma
        self.is_trans = any(op.startswith(x) for x in TRANS)
        self.is_dpp = ("_dpp" in op) or ("quad_perm" in self.mods) or ("row_" in self.mods)
        self.is_sdwa = "_sdwa" in op
        self.is_vmem = op.startswith(("buffer_", "global_", "flat_"))
        self.is_ds = op.startswith("ds_")
        self.is_salu = op.startswith("s_")
        self.is_lds_dma = self.is_vmem and (" lds" in (" " + self.mods) or "load_lds" in op)
        self.w = set(); self.r = set()
        o = self.ops
        if self.is_mfma:
            self.w = _regs(o[0]); self.r = _regs(o[1]) | _regs(o[2]) | _regs(o[3])
            self.srcc = _regs(o[3]); self.srcab = _regs(o[1]) | _regs(o[2])
            self.passes = 4 if "16x16x32" in op else 8
        elif self.is_valu:
            if op.startswith("v_cmp"):
                self.w = _regs(o[0]); rest = o[1:]
                if op.startswith("v_cmpx"): self.w |= {"exec"}
            elif op.startswith(("v_add_co", "v_sub_co", "v_addc_co", "v_subb_co", "v_subrev_co")):
                self.w = _regs(o[0]) | _regs(o[1]); rest = o[2:]
            elif op.startswith("v_permlane") and "swap" in op:
                self.w = _regs(o[0]) | _regs(o[1]); rest = o
            elif op == "v_nop":
                rest = []
            else:
                self.w = _regs(o[0]); rest = o[1:]
            for x in rest: self.r |= _regs(x)
            if op.startswith(("v_fmac", "v_dot2c", "v_writelane")) or self.is_dpp or self.is_sdwa:
                self.r |= _regs(o[0])
        elif self.is_vmem:
            if "store" in op or ("atomic" in op):
                for x in o: self.r |= _regs(x)
                self.store_data = set()
                if op.endswith(("x4", "x3")):
                    self.store_data = _regs(o[0]) if op.startswith("buffer") else _regs(o[1])
            elif self.is_lds_dma:
                for x in o: self.r |= _regs(x)
                self.r |= {"m0"}
            elif op.startswith(("buffer_wbl2", "buffer_inv")):
                pass
            else:
                self.w = _regs(o[0])
                for x in o[1:]: self.r |= _regs(x)
                if "d16" in op: self.r |= self.w
        elif self.is_ds:
            if op.startswith(("ds_read", "ds_bpermute", "ds_permute", "ds_swizzle")) or "_rtn" in op:
                self.w = _regs(o[0])
                for x in o[1:]: self.r |= _regs(x)
            else:
                for x in o: self.r |= _regs(x)
        elif self.is_salu:
            if op.startswith(("s_cmp", "s_cbranch", "s_branch", "s_waitcnt", "s_barrier", "s_nop", "s_sleep", "s_endpgm", "s_setprio", "s_bitcmp")):
                for x in o: self.r |= _regs(x)
            else:
                if o:
                    self.w = _regs(o[0])
                    for x in o[1:]: self.r |= _regs(x)
                if "saveexec" in op: self.w |= {"exec"}; self.r |= {"exec"}
        if op == "s_nop":
            self.states = int(o[0], 0) + 1
        else:
            self.states = 1

def need(prev, cur):
    n = 0
    pv = {x for x in prev.w if x[0] in "va" and x not in ("vcc",)}
    ps = {x for x in prev.w if x[0] == "s" or x == "vcc"}
    if prev.is_valu:
        if cur.is_mfma and (pv & cur.r): n = max(n, 2)
        if cur.is_valu and cur.is_dpp and (pv & cur.r): n = max(n, 2)
        if cur.op.startswith(("v_readlane", "v_readfirstlane")) and (pv & cur.r): n = max(n, 1)
        if cur.op.startswith("v_permlane") and (pv & cur.r): n = max(n, 2)
        if prev.is_trans and cur.is_valu and (pv & cur.r): n = max(n, 1)
        if prev.is_trans and cur.is_mfma and (pv & cur.r): n = max(n, 2)
        if prev.is_sdwa and cur.is_valu and (pv & (cur.r | cur.w)): n = max(n, 1)
        if ps:
            if cur.is_valu and (ps & cur.r): n = max(n, 2)
            if cur.op.startswith(("v_readlane", "v_writelane")) and (ps & cur.r): n = max(n, 4)
            if cur.is_vmem and (ps & cur.r): n = max(n, 5)
            if cur.is_salu and (ps & cur.r): n = max(n, 2)
        if "exec" in prev.w:
            if cur.is_mfma: n = max(n, 4)
            if cur.is_dpp: n = max(n, 5)
            if cur.op.startswith(("v_readlane", "v_readfirstlane", "v_writelane", "v_permlane")): n = max(n, 4)
    if prev.is_mfma:
        p = prev.passes
        d = prev.w
        if cur.is_mfma:
            if d & cur.srcab: n = max(n, 8 if p == 4 else 12)
            if (d & cur.srcc) and not (d == cur.srcc and cur.passes == p): n = max(n, 6 if p == 4 else 10)
            if (d & cur.w) and not (d == cur.srcc) : n = max(n, 8 if p == 4 else 12)
        elif cur.is_valu or cur.is_vmem or cur.is_ds:
            if d & (cur.r | cur.w): n = max(n, 8 if p == 4 else 12)
            if cur.is_valu and (prev.srcc & cur.w): n = max(n, 3 if p == 4 else 7)
    if prev.is_salu and "m0" in prev.w and (cur.is_lds_dma or "addtid" in cur.op): n = max(n, 1)
    if prev.is_vmem and getattr(prev, "store_data", None):
        if (cur.is_valu or cur.is_mfma) and (prev.store_data & cur.w): n = max(n, 2)
        elif (prev.store_data & cur.w): n = max(n, 1)
    if prev.is_ds and prev.op.startswith(("ds_write_b128", "ds_write_b96", "ds_write2_b64")):
        pass
    return n

class Asm:
    def __init__(self):
        self.lines = []
        self.hist = []
        self.uid = 0
    def raw(self, s):
        self.lines.append(s)
    def comment(self, s):
        self.lines.append("    ; " + s)
    def label(self, name):
        self.lines.append(name + ":")
    def newlabel(self, p="L"):
        self.uid += 1
        return f"{p}_{self.uid}"
    def __call__(self, text):
        for t in text.strip().split("\n"):
            t = t.strip()
            if not t or t.startswith(";"):
                if t: self.lines.append("    " + t)
                continue
            if t.endswith(":"):
                self.label(t[:-1]); continue
            if t.startswith("."):
                self.lines.append(t); continue
            ins = Ins(t)
            dist = 0; req = 0
            for p in reversed(self.hist):
                k = need(p, ins) - dist
                req = max(req, k)
                dist += p.states
                if dist >= 20: break
            if req > 0:
                nop = Ins(f"s_nop {req-1}")
                self.lines.append(f"    s_nop {req-1}")
                self.hist.append(nop)
            self.lines.append("    " + t)
            self.hist.append(ins)
            self.hist = self.hist[-24:]
    def fence(self, n=12):
        self(f"s_nop {min(n,16)-1}")
    def clear_hist(self):
        self.hist = []
    def text(self):
        return "\n".join(self.lines) + "\n"

def vr(a, n=1):
    return f"v{a}" if n == 1 else f"v[{a}:{a+n-1}]"
def sr(a, n=1):
    return f"s{a}" if n == 1 else f"s[{a}:{a+n-1}]"
```

```python
import sys
from asmlib import Asm, vr, sr

NAME = "recurrent_scan__ssm_conv_s4d__dense_activation_squared_relu__prompt"
XF = 0x0; XT = 0x280000; HF = 0x500000; W2F = 0xB00000; ST = 0xD00000
FLG = 0xF80000; STAMP = 0x1000000; WS_SIZE = 0x1100000
FSTR = 16
FLN = FLG; FH = FLG + 0x2000; FW = FLG + 0x4000; FS = FLG + 0x6000
AUX = 122880; RSZ = 12896; K1O = 4160; UO = 8320; UPAD = 480
MISC = AUX + 3 * RSZ
LDS_TOTAL = 163840
M_LNCNT = MISC; M_W1 = MISC + 16; M_G1D = MISC + 32; M_U = MISC + 48; M_NONCE = MISC + 56
M_FW = MISC + 64; M_HCNT = MISC + 68; M_FH = MISC + 80; M_CD = MISC + 96
LNRS = 1296
P_X, P_LA, P_AI, P_CR, P_CI, P_DT, P_DS = 4, 6, 8, 10, 12, 14, 16
P_W1, P_B1, P_W2, P_B2, P_OUT, P_DBG, P_WS = 20, 22, 24, 26, 28, 30, 32
S_WAVE, S_XCD, S_IDX, S_RB, S_CB, S_RB2, S_CB2, S_NCH, S_CH0 = 34, 35, 36, 37, 38, 39, 40, 41, 42
R_WS, R_X, R_W, R_OUT = 44, 48, 52, 56
S_NONCE = 96
LOG2E = 0x3fb8aa3b
INV2PI = 0x3e22f983

class Gen:
    def __init__(self, mode, stamps=False):
        self.a = Asm()
        self.mode = mode
        self.fused = mode == "fused"
        self.stamps = stamps
        self.pfx = mode

    def L(self, n):
        return f"{self.pfx}_{n}"

    def stamp(self, slot):
        if not self.stamps: return
        a = self.a
        a(f"""
        s_memrealtime s[98:99]
        s_lshl_b32 s100, s2, 3
        s_add_u32 s100, s100, s{S_WAVE}
        s_lshl_b32 s100, s100, 6
        s_add_u32 s100, s100, {STAMP + slot*4}
        s_waitcnt lgkmcnt(0)
        v_mov_b32 v254, s98
        v_mov_b32 v255, 0
        s_mov_b64 s[98:99], exec
        s_mov_b64 exec, 1
        buffer_store_dword v254, v255, s[{R_WS}:{R_WS+3}], s100 offen
        s_mov_b64 exec, s[98:99]
        """)

    def srd(self, r, p, size):
        self.a(f"""
        s_mov_b32 s{r}, s{p}
        s_and_b32 s{r+1}, s{p+1}, 0xffff
        s_mov_b32 s{r+2}, {size}
        s_mov_b32 s{r+3}, 0x00020000
        """)

    def prologue(self):
        a = self.a
        a(f"""
        s_cmp_ge_u32 s2, 256
        s_cbranch_scc1 {self.L('end')}
        s_load_dwordx16 s[4:19], s[0:1], 0
        s_load_dwordx8 s[20:27], s[0:1], 64
        s_load_dwordx4 s[28:31], s[0:1], 96
        s_load_dwordx2 s[32:33], s[0:1], 112
        v_lshrrev_b32 v1, 6, v0
        v_and_b32 v0, 63, v0
        s_and_b32 s{S_XCD}, s2, 7
        v_readfirstlane_b32 s{S_WAVE}, v1
        s_lshr_b32 s{S_IDX}, s2, 3
        s_and_b32 s60, s{S_XCD}, 3
        s_lshl_b32 s60, s60, 2
        s_and_b32 s61, s{S_IDX}, 3
        s_add_u32 s{S_RB}, s60, s61
        s_lshr_b32 s60, s{S_XCD}, 2
        s_lshl_b32 s60, s60, 3
        s_lshr_b32 s{S_CB2}, s{S_IDX}, 2
        s_add_u32 s{S_CB}, s60, s{S_CB2}
        s_lshl_b32 s60, s{S_XCD}, 2
        s_add_u32 s{S_RB2}, s60, s61
        ; conv channels: g = idx/3, pos = idx%3
        s_mul_i32 s60, s{S_IDX}, 43
        s_lshr_b32 s60, s60, 7
        s_mul_i32 s61, s60, 3
        s_sub_u32 s61, s{S_IDX}, s61
        s_mul_i32 s62, s{S_XCD}, 80
        s_lshl_b32 s63, s60, 3
        s_add_u32 s62, s62, s63
        s_mul_i32 s63, s61, 3
        s_add_u32 s{S_CH0}, s62, s63
        s_cmp_eq_u32 s61, 2
        s_cselect_b32 s{S_NCH}, 2, 3
        s_cmp_ge_u32 s{S_IDX}, 30
        s_cselect_b32 s{S_NCH}, 0, s{S_NCH}
        s_sub_u32 s61, s{S_IDX}, 20
        s_cselect_b32 s60, s61, s60
        """)
        a.lines.pop(); a.lines.pop()
        a(f"""
        s_sub_u32 s61, s{S_IDX}, 20
        s_cmp_ge_u32 s{S_IDX}, 30
        s_cselect_b32 s60, s61, s60
        s_mul_i32 s61, s{S_XCD}, 12
        s_add_u32 s43, s61, s60
        s_waitcnt lgkmcnt(0)
        """)
        self.srd(R_WS, P_WS, WS_SIZE)
        self.srd(R_X, P_X, 2621440)

    def ln_loads(self):
        a = self.a
        a(f"""
        s_lshl_b32 s60, s2, 3
        s_add_u32 s60, s60, s{S_WAVE}
        s_mul_i32 s60, s60, 1280
        v_lshlrev_b32 v1, 2, v0
        """)
        for i in range(5):
            a(f"buffer_load_dword v{10+i}, v1, s[{R_X}:{R_X+3}], s60 offen offset:{256*i}")

    def reduce64(self, v, sdst):
        a = self.a
        a(f"""
        v_add_f32_dpp v{v}, v{v}, v{v} quad_perm:[1,0,3,2] row_mask:0xf bank_mask:0xf
        v_add_f32_dpp v{v}, v{v}, v{v} quad_perm:[2,3,0,1] row_mask:0xf bank_mask:0xf
        v_add_f32_dpp v{v}, v{v}, v{v} row_half_mirror row_mask:0xf bank_mask:0xf
        v_add_f32_dpp v{v}, v{v}, v{v} row_mirror row_mask:0xf bank_mask:0xf
        v_add_f32_dpp v{v}, v{v}, v{v} row_bcast:15 row_mask:0xa bank_mask:0xf
        v_add_f32_dpp v{v}, v{v}, v{v} row_bcast:31 row_mask:0xc bank_mask:0xf
        v_readlane_b32 s{sdst}, v{v}, 63
        """)

    def ln_math(self):
        a = self.a
        for i in range(5):
            a(f"v_lshlrev_b32 v{16+2*i}, 16, v{10+i}")
            a(f"v_and_b32 v{17+2*i}, 0xffff0000, v{10+i}")
        a(f"""
        v_pk_add_f32 v[26:27], v[16:17], v[18:19]
        v_pk_add_f32 v[28:29], v[20:21], v[22:23]
        v_pk_add_f32 v[26:27], v[26:27], v[24:25]
        v_pk_add_f32 v[26:27], v[26:27], v[28:29]
        v_add_f32 v26, v26, v27
        """)
        self.reduce64(26, 60)
        a(f"""
        v_mov_b32 v30, 0x3acccccd
        v_mul_f32 v30, s60, v30
        """)
        for i in range(5):
            a(f"v_pk_add_f32 v[{32+2*i}:{33+2*i}], v[{16+2*i}:{17+2*i}], v[30:31] op_sel_hi:[1,0] neg_lo:[0,1] neg_hi:[0,1]")
        a("v_pk_mul_f32 v[26:27], v[32:33], v[32:33]")
        for i in range(1, 5):
            a(f"v_pk_fma_f32 v[26:27], v[{32+2*i}:{33+2*i}], v[{32+2*i}:{33+2*i}], v[26:27]")
        a("v_add_f32 v26, v26, v27")
        self.reduce64(26, 61)
        a(f"""
        v_mov_b32 v31, 0x3acccccd
        v_mul_f32 v31, s61, v31
        v_cvt_pk_bf16_f32 v26, v30, v31
        v_lshlrev_b32 v30, 16, v26
        v_and_b32 v31, 0xffff0000, v26
        v_add_f32 v31, 0x3727c5ac, v31
        v_cvt_pk_bf16_f32 v31, v31, v31
        v_and_b32 v31, 0xffff0000, v31
        v_sqrt_f32 v31, v31
        """)
        for i in range(5):
            a(f"v_pk_add_f32 v[{32+2*i}:{33+2*i}], v[{16+2*i}:{17+2*i}], v[30:31] op_sel_hi:[1,0] neg_lo:[0,1] neg_hi:[0,1]")
        a(f"""
        v_cvt_pk_bf16_f32 v31, v31, v31
        v_and_b32 v31, 0xffff0000, v31
        v_rcp_f32 v28, v31
        """)
        for i in range(5):
            a(f"v_cvt_pk_bf16_f32 v{10+i}, v{32+2*i}, v{33+2*i}")
        for i in range(5):
            a(f"v_lshlrev_b32 v{16+2*i}, 16, v{10+i}")
            a(f"v_and_b32 v{17+2*i}, 0xffff0000, v{10+i}")
        for i in range(5):
            a(f"v_pk_mul_f32 v[{16+2*i}:{17+2*i}], v[{16+2*i}:{17+2*i}], v[28:29] op_sel_hi:[1,0]")
        a(f"""
        s_mul_i32 s60, s{S_WAVE}, {LNRS}
        s_add_u32 s60, s60, {AUX}
        v_lshlrev_b32 v1, 2, v0
        v_add_u32 v1, s60, v1
        """)
        for i in range(5):
            a(f"v_cvt_pk_bf16_f32 v{10+i}, v{16+2*i}, v{17+2*i}")
        for i in range(5):
            a(f"ds_write_b32 v1, v{10+i} offset:{256*i}")

    def ln_publish(self):
        a = self.a
        sc = "sc1" if self.fused else ""
        a(f"""
        s_sub_u32 s64, s{S_WAVE}, 4
        v_and_b32 v1, 7, v0
        v_lshrrev_b32 v2, 3, v0
        v_mul_u32_u24 v3, {LNRS}, v1
        v_lshl_add_u32 v3, v2, 4, v3
        s_lshl_b32 s60, s64, 7
        s_add_u32 s60, s60, {AUX}
        v_add_u32 v3, s60, v3
        v_lshrrev_b32 v4, 2, v2
        v_and_b32 v5, 3, v2
        v_lshlrev_b32 v4, 10, v4
        v_lshl_add_u32 v4, v5, 8, v4
        v_lshl_add_u32 v4, v1, 4, v4
        v_and_b32 v1, 15, v0
        v_lshrrev_b32 v2, 2, v1
        v_sub_u32 v2, 3, v2
        v_mul_u32_u24 v5, {LNRS}, v2
        v_and_b32 v1, 3, v0
        v_lshl_add_u32 v5, v1, 3, v5
        v_lshrrev_b32 v1, 4, v0
        v_lshl_add_u32 v5, v1, 5, v5
        v_add_u32 v5, s60, v5
        v_lshlrev_b32 v6, 4, v0
        ds_read_b128 v[12:15], v3
        ds_read_b128 v[16:19], v3 offset:512
        ds_read_b64_tr_b16 v[24:25], v5 offset:{4*LNRS}
        ds_read_b64_tr_b16 v[26:27], v5
        ds_read_b64_tr_b16 v[28:29], v5 offset:{4*LNRS+512}
        ds_read_b64_tr_b16 v[30:31], v5 offset:512
        ds_read_b128 v[20:23], v3 offset:1024
        ds_read_b64_tr_b16 v[32:33], v5 offset:{4*LNRS+768}
        ds_read_b64_tr_b16 v[34:35], v5 offset:768
        s_lshr_b32 s61, s2, 1
        s_mul_i32 s61, s61, 20480
        s_and_b32 s62, s2, 1
        s_lshl_b32 s62, s62, 7
        s_add_u32 s61, s61, s62
        s_lshl_b32 s62, s64, 11
        s_add_u32 s61, s61, s62
        s_add_u32 s62, s61, 8192
        s_add_u32 s63, s61, 16384
        s_mul_i32 s65, s2, 10240
        s_lshl_b32 s66, s64, 10
        s_add_u32 s65, s65, s66
        s_add_u32 s65, s65, {XT}
        s_add_u32 s66, s65, 4096
        s_add_u32 s67, s65, 6144
        s_waitcnt lgkmcnt(0)
        """)
        return sc

    def ln_publish_stores(self, sc):
        a = self.a
        W = f"s[{R_WS}:{R_WS+3}]"
        l2 = self.L("lnp_xt3"); l3 = self.L("lnp_done")
        a(f"""
        buffer_store_dwordx4 v[12:15], v4, {W}, s61 offen {sc}
        buffer_store_dwordx4 v[16:19], v4, {W}, s62 offen {sc}
        s_cmp_ge_u32 s64, 2
        s_cbranch_scc1 {l2}
        buffer_store_dwordx4 v[20:23], v4, {W}, s63 offen {sc}
        s_branch {l3}
        {l2}:
        buffer_store_dwordx4 v[32:35], v6, {W}, s67 offen {sc}
        {l3}:
        buffer_store_dwordx4 v[24:27], v6, {W}, s65 offen {sc}
        buffer_store_dwordx4 v[28:31], v6, {W}, s66 offen {sc}
        """)

    def w2_retile(self):
        a = self.a
        sc = "sc1" if self.fused else ""
        self.srd(R_W, P_W2, 1966080)
        base = AUX + 2 * RSZ
        a(f"""
        s_lshr_b32 s60, s43, 1
        s_and_b32 s61, s43, 1
        s_mul_i32 s62, s60, {32*1280}
        s_mul_i32 s63, s61, 640
        s_add_u32 s62, s62, s63
        s_add_u32 s63, s62, 320
        """)
        for i in range(10):
            a(f"""
            v_add_u32 v1, {64*i}, v0
            v_mul_u32_u24 v2, 52429, v1
            v_lshrrev_b32 v2, 20, v2
            v_mul_u32_u24 v3, 20, v2
            v_sub_u32 v3, v1, v3
            v_mul_u32_u24 v2, 1280, v2
            v_lshl_add_u32 v2, v3, 4, v2
            buffer_load_dwordx4 v[{40+4*i}:{43+4*i}], v2, s[{R_W}:{R_W+3}], s62 offen
            buffer_load_dwordx4 v[{80+4*i}:{83+4*i}], v2, s[{R_W}:{R_W+3}], s63 offen
            """)
        a(f"""
        v_lshlrev_b32 v6, 4, v0
        v_add_u32 v1, {base}, v6
        v_lshrrev_b32 v2, 4, v0
        v_and_b32 v3, 15, v0
        v_lshrrev_b32 v3, 2, v3
        v_lshl_add_u32 v2, v2, 2, v3
        v_mul_u32_u24 v2, 320, v2
        v_and_b32 v3, 3, v0
        v_lshl_add_u32 v2, v3, 3, v2
        v_add_u32 v2, {base}, v2
        s_mul_i32 s62, s61, {4*245760}
        s_mul_i32 s63, s60, 5120
        s_add_u32 s62, s62, s63
        s_add_u32 s62, s62, {W2F}
        v_add_u32 v7, 4096, v6
        """)
        for half in range(2):
            src = 40 + 40 * half
            a("s_waitcnt vmcnt(0)" if half == 0 else "s_nop 0")
            for i in range(10):
                a(f"ds_write_b128 v1, v[{src+4*i}:{src+3+4*i}] offset:{1024*i}")
            for nt in range(10):
                d = 120 + 4 * nt
                a(f"ds_read_b64_tr_b16 v[{d}:{d+1}], v2 offset:{32*nt}")
                a(f"ds_read_b64_tr_b16 v[{d+2}:{d+3}], v2 offset:{32*nt+16*320}")
                if nt == 6: a("s_waitcnt lgkmcnt(4)")
            a("s_waitcnt lgkmcnt(0)")
            for nt in range(10):
                d = 120 + 4 * nt
                cbl = half * 2 + nt // 5
                n5 = nt % 5
                if n5 == 0:
                    a(f"s_add_u32 s63, s62, {cbl*245760}")
                if n5 < 4:
                    a(f"buffer_store_dwordx4 v[{d}:{d+3}], v6, s[{R_WS}:{R_WS+3}], s63 offen offset:{1024*n5} {sc}")
                else:
                    a(f"buffer_store_dwordx4 v[{d}:{d+3}], v7, s[{R_WS}:{R_WS+3}], s63 offen {sc}")

    def lds_set(self, addr_imm, sidx=None, val=1, tmp=(2, 3)):
        a = self.a
        if sidx is None:
            a(f"v_mov_b32 v{tmp[0]}, {addr_imm}")
        else:
            a(f"s_lshl_b32 s60, s{sidx}, 2\ns_add_u32 s60, s60, {addr_imm}\nv_mov_b32 v{tmp[0]}, s60")
        a(f"v_mov_b32 v{tmp[1]}, {val}\nds_write_b32 v{tmp[0]}, v{tmp[1]}")

    def lds_wait_all(self, addr_imm, n, name, tmp=2):
        a = self.a
        lab = self.L(name); done = self.L(name + "_d")
        t = tmp
        a(f"""
        v_mov_b32 v{t}, {addr_imm}
        s_mov_b32 s61, 0
        {lab}:
        ds_read_b128 v[{t+2}:{t+5}], v{t}
        s_add_u32 s61, s61, 1
        s_waitcnt lgkmcnt(0)
        """)
        for k in range(1, n):
            a(f"v_min_u32 v{t+2}, v{t+2}, v{t+2+k}")
        a(f"""
        v_readfirstlane_b32 s60, v{t+2}
        s_cmp_gt_u32 s61, 0x100000
        s_cbranch_scc1 {done}
        s_cmp_eq_u32 s60, 0
        s_cbranch_scc1 {lab}
        {done}:
        """)

    def g1_dma(self):
        a = self.a
        self.srd(R_W, P_W1, 1966080)
        for ph in range(3):
            a(f"""
            v_add_u32 v5, {64*ph}, v0
            v_mul_u32_u24 v6, 43691, v5
            v_lshrrev_b32 v6, 19, v6
            v_mul_u32_u24 v7, 12, v6
            v_sub_u32 v7, v5, v7
            v_lshrrev_b32 v8, 2, v6
            v_and_b32 v8, 2, v8
            v_xor_b32 v7, v7, v8
            v_mul_u32_u24 v6, 3072, v6
            v_lshl_add_u32 v{2+ph}, v7, 4, v6
            """)
        a(f"""
        s_mul_i32 s60, s{S_RB}, 10
        s_lshr_b32 s60, s60, 4
        s_mul_i32 s61, s{S_CB}, 192
        """)
        for j in range(10):
            a(f"""
            s_lshl_b32 s62, s60, 2
            s_add_u32 s62, s62, s{S_WAVE}
            s_mul_i32 s63, s62, {16*3072}
            s_add_u32 s63, s63, s61
            s_mul_i32 s62, s62, 3072
            s_mov_b32 m0, s62
            s_add_u32 s60, s60, 1
            buffer_load_dwordx4 v2, s[{R_W}:{R_W+3}], s63 offen lds
            s_add_u32 m0, s62, 1024
            s_cmp_eq_u32 s60, 10
            buffer_load_dwordx4 v3, s[{R_W}:{R_W+3}], s63 offen lds
            s_cselect_b32 s60, 0, s60
            s_add_u32 m0, s62, 2048
            buffer_load_dwordx4 v4, s[{R_W}:{R_W+3}], s63 offen lds
            """)
    G1_ACC = 16; G1_B = 64; G1_A = 88
    def g1_b1_loads(self):
        a = self.a
        a(f"""
        v_lshrrev_b32 v5, 4, v0
        v_lshlrev_b32 v5, 3, v5
        s_mul_i32 s60, s{S_CB}, 192
        v_add_u32 v5, s60, v5
        """)
        for t in range(6):
            a(f"global_load_dwordx2 v[{self.G1_B+2*t}:{self.G1_B+2*t+1}], v5, s[{P_B1}:{P_B1+1}] offset:{32*t}")

    def g1_prep(self):
        a = self.a
        for t in range(6):
            for lt in range(2):
                d = self.G1_ACC + 8 * t + 4 * lt
                s = self.G1_B + 2 * t
                a(f"""
                v_lshlrev_b32 v{d}, 16, v{s}
                v_and_b32 v{d+1}, 0xffff0000, v{s}
                v_lshlrev_b32 v{d+2}, 16, v{s+1}
                v_and_b32 v{d+3}, 0xffff0000, v{s+1}
                """)
        a(f"""
        v_lshrrev_b32 v5, 4, v0
        v_and_b32 v6, 15, v0
        v_lshrrev_b32 v6, 2, v6
        v_lshl_add_u32 v6, v5, 3, v6
        v_mul_u32_u24 v6, 192, v6
        v_and_b32 v7, 3, v0
        v_lshl_add_u32 v6, v7, 3, v6
        v_and_b32 v5, 1, v5
        v_lshlrev_b32 v5, 5, v5
        v_add_u32 v10, v6, v5
        v_sub_u32 v11, v6, v5
        v_add_u32 v12, 61440, v10
        v_add_u32 v13, 61440, v11
        v_lshlrev_b32 v9, 4, v0
        """)

    def g1_aloads(self):
        a = self.a
        sc = "sc1" if self.fused else ""
        a(f"""
        s_lshl_b32 s60, s{S_RB}, 3
        s_lshl_b32 s61, s{S_WAVE}, 1
        s_add_u32 s60, s60, s61
        s_mul_i32 s60, s60, 20480
        s_add_u32 s61, s60, 20480
        """)
        for ks in range(20):
            for lt in range(2):
                d = self.G1_A + 8 * ks + 4 * lt
                a(f"buffer_load_dwordx4 v[{d}:{d+3}], v9, s[{R_WS}:{R_WS+3}], s{60+lt} offen offset:{1024*(ks%4)} {sc}")
            if ks % 4 == 3 and ks != 19:
                a("s_add_u32 s60, s60, 4096\ns_add_u32 s61, s61, 4096")

    def g1_loop(self, extra_vm=0):
        a = self.a
        def bread(ks, t):
            base = (10 if t % 2 == 0 else 11) + (2 if ks >= 10 else 0)
            off = (ks % 10) * 6144 + 32 * t
            d = self.G1_B + 4 * t
            a(f"ds_read_b64_tr_b16 v[{d}:{d+1}], v{base} offset:{off}")
            a(f"ds_read_b64_tr_b16 v[{d+2}:{d+3}], v{base} offset:{off+768}")
        for t in range(6): bread(0, t)
        for ks in range(20):
            a(f"s_waitcnt vmcnt({min(63, 2*(19-ks)+extra_vm)})")
            for t in range(6):
                if ks < 19: a("s_waitcnt lgkmcnt(10)")
                else: a(f"s_waitcnt lgkmcnt({2*(5-t)})")
                for lt in range(2):
                    acc = self.G1_ACC + 8 * t + 4 * lt
                    A = self.G1_A + 8 * ks + 4 * lt
                    B = self.G1_B + 4 * t
                    a(f"v_mfma_f32_16x16x32_bf16 v[{acc}:{acc+3}], v[{B}:{B+3}], v[{A}:{A+3}], v[{acc}:{acc+3}]")
                if ks < 19: bread(ks + 1, t)

    def g1_epilogue(self):
        a = self.a
        sc = "sc1" if self.fused else ""
        a(f"""
        s_lshl_b32 s60, s{S_RB}, 3
        s_lshl_b32 s61, s{S_WAVE}, 1
        s_add_u32 s60, s60, s61
        s_mul_i32 s60, s60, 49152
        s_mul_i32 s61, s{S_CB}, 3072
        s_add_u32 s60, s60, s61
        s_add_u32 s60, s60, {HF}
        s_add_u32 s61, s60, 49152
        """)
        T = self.G1_B
        for tp in range(3):
            for lt in range(2):
                o = self.G1_A + 4 * (2 * tp + lt)
                for k in range(2):
                    acc = self.G1_ACC + 8 * (2 * tp + k) + 4 * lt
                    t0 = T + 8 * ((2*tp+lt) % 2) + 4 * k
                    for i in range(4):
                        a(f"v_max_f32 v{t0+i}, 0, v{acc+i}")
                    a(f"v_pk_mul_f32 v[{t0}:{t0+1}], v[{t0}:{t0+1}], v[{t0}:{t0+1}]")
                    a(f"v_pk_mul_f32 v[{t0+2}:{t0+3}], v[{t0+2}:{t0+3}], v[{t0+2}:{t0+3}]")
                    a(f"v_cvt_pk_bf16_f32 v{o+2*k}, v{t0}, v{t0+1}")
                    a(f"v_cvt_pk_bf16_f32 v{o+2*k+1}, v{t0+2}, v{t0+3}")
                a(f"buffer_store_dwordx4 v[{o}:{o+3}], v9, s[{R_WS}:{R_WS+3}], s{60+lt} offen offset:{1024*tp} {sc}")

    KP = 44
    def kg_loads(self):
        a = self.a
        a(f"""
        s_sub_u32 s70, s{S_WAVE}, 4
        s_add_u32 s71, s{S_CH0}, s70
        s_mul_i32 s60, s71, 384
        v_lshlrev_b32 v2, 1, v0
        v_add_u32 v2, s60, v2
        s_lshl_b32 s60, s71, 1
        v_mov_b32 v3, s60
        """)
        for p in range(3):
            for k, P in enumerate((P_LA, P_AI, P_CR, P_CI)):
                a(f"global_load_ushort v{self.KP+4*p+k}, v2, s[{P}:{P+1}] offset:{128*p}")
        a(f"global_load_ushort v56, v3, s[{P_DT}:{P_DT+1}]")
        a(f"global_load_ushort v57, v3, s[{P_DS}:{P_DS+1}]")

    def cmul(self, d, x, y):
        return [f"v_pk_mul_f32 v[{d}:{d+1}], v[{x}:{x+1}], v[{y}:{y+1}] op_sel:[0,0] op_sel_hi:[0,1]",
                f"v_pk_fma_f32 v[{d}:{d+1}], v[{x}:{x+1}], v[{y}:{y+1}], v[{d}:{d+1}] op_sel:[1,1,0] op_sel_hi:[1,0,1] neg_lo:[0,1,0]"]

    def kgen(self):
        a = self.a
        KP = self.KP
        Z, Z8, W = 60, 62, 64
        F = 66
        F2 = 82
        G = 98
        CV = 102
        SV = 110
        GF, TA, TB = 120, 136, 152
        ACC = 168
        VW, VR = 10, 11
        TOFF = 4352
        a(f"""
        s_mul_i32 s72, s70, {RSZ}
        s_add_u32 s72, s72, {AUX}
        v_lshrrev_b32 v2, 2, v0
        v_mul_u32_u24 v2, 272, v2
        v_and_b32 v3, 3, v0
        v_lshl_add_u32 v2, v3, 2, v2
        v_add_u32 v{VW}, s72, v2
        v_lshrrev_b32 v2, 4, v0
        v_mul_u32_u24 v2, 272, v2
        v_and_b32 v3, 15, v0
        v_lshl_add_u32 v2, v3, 4, v2
        v_add_u32 v{VR}, s72, v2
        v_lshlrev_b32 v56, 16, v56
        v_mul_f32 v56, {LOG2E}, v56
        v_exp_f32 v56, v56
        v_lshlrev_b32 v57, 16, v57
        v_cvt_pk_bf16_f32 v56, v56, v56
        v_and_b32 v56, 0xffff0000, v56
        v_add_f32 v58, v56, v56
        v_mov_b32 v59, 0x3f80
        s_mov_b32 s73, 3
        """)
        for i in range(12): a(f"v_mov_b32 v{ACC+i}, 0")
        loop = self.L("kg_loop")
        a(f"{loop}:")
        a(f"""
        v_lshlrev_b32 v2, 16, v{KP}
        v_mul_f32 v2, {LOG2E}, v2
        v_exp_f32 v2, v2
        v_lshlrev_b32 v3, 16, v{KP+1}
        v_lshlrev_b32 v{F}, 16, v{KP+2}
        v_cvt_pk_bf16_f32 v2, v2, v2
        v_lshlrev_b32 v{F+1}, 16, v{KP+3}
        v_and_b32 v2, 0xffff0000, v2
        v_mul_f32 v3, v3, v56
        v_mul_f32 v2, v2, v56
        v_pk_mul_f32 v[{F}:{F+1}], v[{F}:{F+1}], v[58:59] op_sel_hi:[1,0]
        v_mul_f32 v3, {INV2PI}, v3
        v_mul_f32 v2, 0xbfb8aa3b, v2
        """)
        for k in range(8): a(f"v_mov_b32 v{KP+k}, v{KP+4+k}")
        a(f"""
        v_mul_f32 v4, 0x41000000, v2
        v_mul_f32 v5, 0x41000000, v3
        v_mul_f32 v6, 0x43000000, v2
        v_mul_f32 v7, 0x43000000, v3
        v_fract_f32 v3, v3
        v_fract_f32 v5, v5
        v_fract_f32 v7, v7
        v_exp_f32 v2, v2
        v_exp_f32 v4, v4
        v_exp_f32 v6, v6
        v_cos_f32 v{Z}, v3
        v_sin_f32 v{Z+1}, v3
        v_cos_f32 v{Z8}, v5
        v_sin_f32 v{Z8+1}, v5
        v_cos_f32 v{W}, v7
        v_sin_f32 v{W+1}, v7
        v_pk_mul_f32 v[{Z}:{Z+1}], v[{Z}:{Z+1}], v[2:3] op_sel_hi:[1,0]
        v_pk_mul_f32 v[{Z8}:{Z8+1}], v[{Z8}:{Z8+1}], v[4:5] op_sel_hi:[1,0]
        v_pk_mul_f32 v[{W}:{W+1}], v[{W}:{W+1}], v[6:7] op_sel_hi:[1,0]
        """)
        cvn = [0]
        def outA(src, off):
            c = CV + cvn[0] % 8; cvn[0] += 1
            return [f"v_cvt_pk_bf16_f32 v{c}, v{src}, -v{src+1}", f"ds_write_b32 v{VW}, v{c} offset:{off}"]
        def outB(src, off):
            c = CV + cvn[0] % 8; cvn[0] += 1
            return [f"v_cvt_pk_bf16_f32 v{c}, v{src}, v{src+1}", f"ds_write_b32 v{VW}, v{c} offset:{off}"]
        def merge(*streams):
            streams = [list(s) for s in streams]
            out = []
            while any(streams):
                for s in streams:
                    if s: out.append(s.pop(0))
            return out
        gs = [f"ds_write_b32 v{VW}, v59"] + outB(Z8, 16)
        prev = Z8
        for j in range(2, 16):
            d = G + 2 * (j % 2)
            gs += self.cmul(d, prev, Z8) + outB(d, 16 * j)
            prev = d
        fs = outA(F, TOFF)
        for r in range(1, 8):
            fs += self.cmul(F + 2 * r, F + 2 * (r - 1), Z) + outA(F + 2 * r, TOFF + 16 * r)
        for r in range(8):
            fs += self.cmul(F2 + 2 * r, F + 2 * r, W) + outA(F2 + 2 * r, TOFF + 16 * (8 + r))
        for ins in merge(gs, fs): a(ins)
        for ks in range(4):
            a(f"ds_read_b128 v[{GF+4*ks}:{GF+4*ks+3}], v{VR} offset:{1088*ks}")
            a(f"ds_read_b128 v[{TA+4*ks}:{TA+4*ks+3}], v{VR} offset:{TOFF+1088*ks}")
        s1 = []
        for i in range(4):
            s1.append(self.cmul(F + 2 * i, F2 + 4 * i, W) + [f"v_cvt_pk_bf16_f32 v{SV+i}, v{F+2*i}, -v{F+2*i+1}"]
                      + self.cmul(F + 8 + 2 * i, F + 2 * i, W) + [f"v_cvt_pk_bf16_f32 v{SV+4+i}, v{F+8+2*i}, -v{F+8+2*i+1}"])
        for ins in merge(*s1): a(ins)
        a("s_waitcnt lgkmcnt(0)")
        mf0 = [f"v_mfma_f32_16x16x32_bf16 v[{ACC}:{ACC+3}], v[{TA+4*ks}:{TA+4*ks+3}], v[{GF+4*ks}:{GF+4*ks+3}], v[{ACC}:{ACC+3}]" for ks in range(4)]
        c0 = []; prev = F + 8
        for i in range(12):
            d = F2 + 2 * (i % 2)
            row = i if i < 4 else i + 4
            c0 += self.cmul(d, prev, W) + outA(d, TOFF + 16 * row)
            prev = d
        last = prev
        c1 = []; prev = F + 12
        for i in range(4):
            d = F2 + 4 + 2 * (i % 2)
            c1 += self.cmul(d, prev, W) + outA(d, TOFF + 16 * (4 + i))
            prev = d
        for ins in merge(c0, c1, mf0): a(ins)
        for ks in range(4):
            a(f"ds_read_b128 v[{TB+4*ks}:{TB+4*ks+3}], v{VR} offset:{TOFF+1088*ks}")
        for ins in self.cmul(F2 + 8, last, W): a(ins)
        for i in range(8):
            a(f"ds_write_b32 v{VW}, v{SV+i} offset:{TOFF+16*i}")
        for ins in outA(F2 + 8, TOFF + 16 * 8): a(ins)
        for ks in range(4):
            a(f"ds_read_b128 v[{TA+4*ks}:{TA+4*ks+3}], v{VR} offset:{TOFF+1088*ks}")
        a("s_waitcnt lgkmcnt(13)")
        for ks in range(4):
            a(f"v_mfma_f32_16x16x32_bf16 v[{ACC+4}:{ACC+7}], v[{TB+4*ks}:{TB+4*ks+3}], v[{GF+4*ks}:{GF+4*ks+3}], v[{ACC+4}:{ACC+7}]")
        a("s_sub_u32 s73, s73, 1\ns_cmp_lg_u32 s73, 0\ns_waitcnt lgkmcnt(0)")
        for ks in range(4):
            a(f"v_mfma_f32_16x16x32_bf16 v[{ACC+8}:{ACC+11}], v[{TA+4*ks}:{TA+4*ks+3}], v[{GF+4*ks}:{GF+4*ks+3}], v[{ACC+8}:{ACC+11}]")
        a(f"s_cbranch_scc1 {loop}")
        self.KACC = ACC

    def expand(self):
        a = self.a
        ACC = self.KACC
        T0, T1, T2 = ACC, ACC + 4, ACC + 8
        a(f"""
        v_and_b32 v2, 15, v0
        v_lshrrev_b32 v3, 4, v0
        v_lshlrev_b32 v4, 3, v2
        v_lshlrev_b32 v5, 2, v3
        v_add_u32 v5, 512, v5
        v_lshlrev_b32 v6, 9, v3
        v_cmp_gt_u32 vcc, 2, v3
        v_cndmask_b32 v5, v6, v5, vcc
        v_add_u32 v5, v5, v4
        v_cndmask_b32 v6, 4, 2, vcc
        v_and_b32 v7, 1, v2
        v_cndmask_b32 v7, v7, v3, vcc
        v_cndmask_b32 v8, 8, 0, vcc
        s_add_u32 s60, s72, 32
        v_sub_u32 v9, v5, v6
        v_lshl_add_u32 v12, v9, 1, s60
        v_add_u32 v13, v12, v8
        v_add_u32 v9, v5, v6
        v_sub_u32 v9, v9, v7
        v_lshl_add_u32 v14, v9, 1, s60
        v_sub_u32 v9, v5, v6
        v_add_u32 v9, v9, v7
        v_lshl_add_u32 v15, v9, 1, s60
        v_add_u32 v15, {K1O-2}, v15
        v_cmp_eq_u32 vcc, 32, v0
        v_add_u32 v9, 4, v15
        v_cndmask_b32 v16, v15, v9, vcc
        v_add_u32 v17, {K1O}, v12
        v_add_u32 v18, {K1O}, v13
        """)
        for i in range(4):
            a(f"v_cvt_pk_bf16_f32 v{20+i}, v{T1+i}, v{T1+i}")
        for i in range(4):
            a(f"ds_write2_b32 v12, v{20+i}, v{20+i} offset0:{64*i} offset1:{64*i+1}")
            a(f"ds_write2_b32 v13, v{20+i}, v{20+i} offset0:{64*i} offset1:{64*i+1}")
            a(f"ds_write2_b32 v17, v{20+i}, v{20+i} offset0:{64*i} offset1:{64*i+1}")
            a(f"ds_write2_b32 v18, v{20+i}, v{20+i} offset0:{64*i} offset1:{64*i+1}")
        for i in range(4):
            a(f"ds_write_b16 v14, v{20+i} offset:{256*i}")
            a(f"ds_write_b16 v{16 if i == 0 else 15}, v{20+i} offset:{256*i}")
        a(f"""
        v_lshlrev_b32 v5, 7, v3
        v_add3_u32 v5, v5, v4, v4
        v_lshlrev_b32 v6, 7, v3
        v_add_u32 v5, v5, v6
        v_add_u32 v5, s60, v5
        v_add_u32 v5, 512, v5
        v_cvt_pk_bf16_f32 v24, v{T2}, v{T2}
        v_cvt_pk_bf16_f32 v25, v{T2}, v{T2+1}
        v_cvt_pk_bf16_f32 v26, v{T2+2}, v{T2+2}
        v_cvt_pk_bf16_f32 v27, v{T2+2}, v{T2+3}
        v_cvt_pk_bf16_f32 v28, v{T2+1}, v{T2+2}
        v_add_u32 v6, {K1O-4}, v5
        v_add_u32 v7, -2, v5
        s_mov_b32 exec_hi, 0
        ds_write2_b32 v5, v24, v28 offset0:0 offset1:1
        ds_write_b32 v5, v26 offset:8
        ds_write_b16_d16_hi v5, v27 offset:12
        ds_write_b16 v7, v24
        ds_write2_b32 v6, v24, v25 offset0:0 offset1:1
        ds_write2_b32 v6, v26, v27 offset0:2 offset1:3
        s_mov_b64 exec, -1
        s_add_u32 s61, s60, {2*2044}
        v_mov_b32 v6, s61
        v_add_u32 v7, {K1O-2}, v6
        v_add_u32 v8, {K1O}, v6
        s_mov_b32 exec_lo, 0
        s_mov_b32 exec_hi, 1
        ds_write2_b32 v6, v24, v24 offset0:0 offset1:1
        ds_write2_b32 v8, v24, v24 offset0:0 offset1:1
        ds_write_b16 v7, v24
        s_mov_b64 exec, -1
        """)
        a(f"""
        v_and_b32 v5, 1, v3
        v_lshlrev_b32 v5, 3, v5
        v_lshrrev_b32 v6, 1, v3
        v_lshl_add_u32 v5, v6, 8, v5
        v_add3_u32 v5, v5, v4, v4
        v_add_u32 v5, s60, v5
        v_cvt_pk_bf16_f32 v24, v{T0}, v{T0+1}
        v_cvt_pk_bf16_f32 v25, v{T0+2}, v{T0+3}
        v_cvt_pk_bf16_f32 v26, v{T0+1}, v{T0+2}
        v_add_u32 v6, {K1O-2}, v5
        v_mov_b32 v28, 0
        v_mov_b32 v29, 0
        v_lshlrev_b32 v7, 3, v0
        v_add_u32 v7, s72, v7
        s_mov_b64 exec, 15
        ds_write_b64 v7, v[28:29]
        ds_write_b64 v7, v[28:29] offset:{K1O}
        s_lshr_b64 exec, -1, 4
        ds_write_b64 v7, v[28:29] offset:{UO}
        s_mov_b64 exec, -1
        ds_write_b64 v5, v[24:25]
        ds_write_b16 v6, v24
        ds_write_b32 v5, v26 offset:{K1O}
        ds_write_b16_d16_hi v6, v25 offset:6
        """)

    def u_gather(self):
        a = self.a
        sc = "sc1" if self.fused else ""
        a(f"""
        v_lshrrev_b32 v2, 2, v0
        v_and_b32 v3, 3, v0
        v_mul_u32_u24 v4, 10240, v2
        v_lshl_add_u32 v4, v3, 4, v4
        s_lshl_b32 s60, s{S_CH0}, 4
        s_add_u32 s60, s60, {XT}
        v_mul_u32_u24 v5, {RSZ}, v3
        v_lshl_add_u32 v5, v2, 4, v5
        v_add_u32 v5, {AUX+UO+UPAD}, v5
        v_cmp_gt_u32 vcc, s{S_NCH}, v3
        s_mov_b64 s[62:63], exec
        s_and_b64 exec, exec, vcc
        """)
        for i in range(16):
            a(f"buffer_load_dwordx4 v[{40+4*i}:{43+4*i}], v4, s[{R_WS}:{R_WS+3}], s60 offen {sc}")
            if i < 15: a(f"s_add_u32 s60, s60, {16*10240}")
        for i in range(16):
            a(f"s_waitcnt vmcnt({15-i})")
            a(f"ds_write_b128 v5, v[{40+4*i}:{43+4*i}] offset:{256*i}")
        a("s_mov_b64 exec, s[62:63]\ns_waitcnt lgkmcnt(0)")

    def conv(self):
        a = self.a
        sc = "sc1" if self.fused else ""
        ACC = 60; OP = [92, 156]
        AB = 12
        a(f"""
        v_and_b32 v2, 15, v0
        v_lshrrev_b32 v3, 4, v0
        v_lshlrev_b32 v4, 3, v3
        v_sub_u32 v4, v2, v4
        v_add_u32 v4, {233+16-224}, v4
        v_and_b32 v5, 1, v2
        v_and_b32 v4, -2, v4
        v_lshlrev_b32 v4, 1, v4
        v_cmp_eq_u32 vcc, 0, v5
        v_mov_b32 v6, {K1O}
        v_cndmask_b32 v5, 0, v6, vcc
        v_add3_u32 v{AB}, v4, v5, s72
        v_add_u32 v{AB+1}, 1024, v{AB}
        v_add_u32 v{AB+2}, 2048, v{AB}
        v_add_u32 v{AB+3}, 3072, v{AB}
        v_lshlrev_b32 v4, 5, v2
        v_lshl_add_u32 v4, v3, 4, v4
        s_add_u32 s60, s72, {UO}
        v_add_u32 v16, s60, v4
        """)
        for i in range(32): a(f"v_mov_b32 v{ACC+i}, 0")
        def reads(tau):
            s = OP[tau % 2]
            r = []
            for d in range(8):
                r.append(f"ds_read_b128 v[{s+32+4*d}:{s+35+4*d}], v16 offset:{512*d+64*tau}")
                o = 512 * d - 64 * tau + 448
                b = AB + o // 1024; q = (o % 1024) // 4
                r.append(f"ds_read2_b32 v[{s+4*d}:{s+4*d+1}], v{b} offset0:{q} offset1:{q+1}")
                r.append(f"ds_read2_b32 v[{s+4*d+2}:{s+4*d+3}], v{b} offset0:{q+2} offset1:{q+3}")
            return r
        r0 = reads(0)
        for k, ins in enumerate(r0):
            a(ins)
            if k == 12: a("s_waitcnt lgkmcnt(6)")
        for tau in range(8):
            s = OP[tau % 2]
            nxt = reads(tau + 1) if tau < 7 else []
            pairs = sorted([(d, n) for d in range(8) for n in range(8 - d)], key=lambda p: (max(p), p))
            a("s_waitcnt lgkmcnt(0)")
            for k, (d, n) in enumerate(pairs):
                acc = ACC + 4 * (d + n)
                a(f"v_mfma_f32_16x16x32_bf16 v[{acc}:{acc+3}], v[{s+4*d}:{s+4*d+3}], v[{s+32+4*n}:{s+35+4*n}], v[{acc}:{acc+3}]")
                if nxt and k < 30 and k % 5 != 4:
                    a(nxt.pop(0))
            assert not nxt
        a(f"""
        v_lshrrev_b32 v4, 1, v3
        v_lshl_add_u32 v4, v2, 1, v4
        v_lshlrev_b32 v4, 4, v4
        v_and_b32 v5, 1, v3
        v_lshlrev_b32 v5, 3, v5
        v_sub_u32 v4, v4, v5
        s_add_u32 s60, s72, {UO+UPAD+8}
        v_add_u32 v4, s60, v4
        """)
        for n in range(8):
            a(f"ds_read_b64 v[{92+2*n}:{93+2*n}], v4 offset:{512*n}")
        a(f"""
        v_lshlrev_b32 v5, 5, v2
        v_lshl_add_u32 v5, v3, 3, v5
        s_lshl_b32 s61, s71, 12
        s_add_u32 s61, s61, {ST}
        """)
        for n in range(8):
            u = 92 + 2 * n; acc = ACC + 4 * n; t = 120 + 4 * (n % 2); o = 128 + 2 * n
            a(f"s_waitcnt lgkmcnt({7-n})")
            a(f"""
            v_and_b32 v{t}, 0xffff0000, v{u+1}
            v_lshlrev_b32 v{t+1}, 16, v{u+1}
            v_and_b32 v{t+2}, 0xffff0000, v{u}
            v_lshlrev_b32 v{t+3}, 16, v{u}
            v_pk_fma_f32 v[{t}:{t+1}], v[{t}:{t+1}], v[56:57], v[{acc}:{acc+1}] op_sel:[0,1,0]
            v_pk_fma_f32 v[{t+2}:{t+3}], v[{t+2}:{t+3}], v[56:57], v[{acc+2}:{acc+3}] op_sel:[0,1,0]
            v_cvt_pk_bf16_f32 v{o}, v{t}, v{t+1}
            v_cvt_pk_bf16_f32 v{o+1}, v{t+2}, v{t+3}
            buffer_store_dwordx2 v[{o}:{o+1}], v5, s[{R_WS}:{R_WS+3}], s61 offen offset:{512*n} {sc}
            """)

    G2_ACC = 16; G2_RB = 96; G2_BT = 156; G2_A = 176
    def g2_prefetch(self):
        a = self.a
        sc = "sc1" if self.fused else ""
        W = f"s[{R_WS}:{R_WS+3}]"
        a(f"""
        v_lshlrev_b32 v9, 4, v0
        v_add_u32 v8, 4096, v9
        s_mul_i32 s74, s{S_CB2}, 245760
        s_mul_i32 s60, s{S_WAVE}, {12*5120}
        s_add_u32 s74, s74, s60
        s_add_u32 s74, s74, {W2F}
        s_mul_i32 s75, s{S_WAVE}, 30720
        """)
        for j in range(3):
            self.g2_bload(j)
        for j in range(3, 9):
            a(f"s_add_u32 s60, s74, {5120*j}\ns_add_u32 m0, s75, {5120*(j-3)}")
            for nt in range(4):
                a(f"buffer_load_dwordx4 v9, {W}, s60 offen offset:{1024*nt} lds {sc}")
            a(f"s_add_u32 m0, s75, {5120*(j-3)+4096}")
            a(f"buffer_load_dwordx4 v8, {W}, s60 offen lds {sc}")

    def g2_bload(self, j):
        a = self.a
        sc = "sc1" if self.fused else ""
        W = f"s[{R_WS}:{R_WS+3}]"
        a(f"s_add_u32 s60, s74, {5120*j}")
        for nt in range(5):
            d = self.G2_RB + 20 * (j % 3) + 4 * nt
            if nt < 4: a(f"buffer_load_dwordx4 v[{d}:{d+3}], v9, {W}, s60 offen offset:{1024*nt} {sc}")
            else: a(f"buffer_load_dwordx4 v[{d}:{d+3}], v8, {W}, s60 offen {sc}")

    def g2_aload(self, j):
        a = self.a
        sc = "sc1" if self.fused else ""
        W = f"s[{R_WS}:{R_WS+3}]"
        for i in range(4):
            d = self.G2_A + 16 * (j % 5) + 4 * i
            a(f"buffer_load_dwordx4 v[{d}:{d+3}], v9, {W}, s{76+i} offen offset:{1024*(j%4)} {sc}")
        if j % 4 == 3:
            for i in range(4): a(f"s_add_u32 s{76+i}, s{76+i}, 4096")

    def g2_setup(self):
        a = self.a
        for i in range(4):
            a(f"""
            s_add_u32 s60, s{S_WAVE}, {i}
            s_and_b32 s60, s60, 3
            s_lshl_b32 s61, s{S_RB2}, 2
            s_add_u32 s60, s60, s61
            s_mul_i32 s60, s60, 49152
            s_mul_i32 s61, s{S_WAVE}, {12*1024}
            s_add_u32 s60, s60, s61
            s_add_u32 s{76+i}, s60, {HF}
            """)
        for i in range(80): a(f"v_mov_b32 v{self.G2_ACC+i}, 0")
        a(f"v_add_u32 v10, s75, v9")

    def g2_loop(self):
        a = self.a
        q = ["pre"]
        def issue(tag, n):
            q.extend([tag] * n)
        def wait_for(tags):
            last = max(i for i, t in enumerate(q) if t in tags)
            n = len(q) - 1 - last
            a(f"s_waitcnt vmcnt({min(n,63)})")
        for j in range(5):
            self.g2_aload(j); issue(f"A{j}", 4)
        def bt_read(j, nt):
            d = self.G2_BT + 4 * nt
            a(f"ds_read_b128 v[{d}:{d+3}], v10 offset:{5120*(j-3)+1024*nt}")
        for j in range(12):
            inreg = j < 3 or j >= 9
            wait_for([f"A{j}", f"B{j}", "pre"])
            if j == 0:
                for nt in range(5): bt_read(3, nt)
            for nt in range(5):
                if inreg:
                    B = self.G2_RB + 20 * (j % 3) + 4 * nt
                else:
                    B = self.G2_BT + 4 * nt
                    a(f"s_waitcnt lgkmcnt({4 if j < 8 else 4-nt})")
                for i in range(4):
                    acc = self.G2_ACC + 16 * nt + 4 * i
                    A = self.G2_A + 16 * (j % 5) + 4 * i
                    a(f"v_mfma_f32_16x16x32_bf16 v[{acc}:{acc+3}], v[{B}:{B+3}], v[{A}:{A+3}], v[{acc}:{acc+3}]")
                if 3 <= j < 8: bt_read(j + 1, nt)
            if j + 5 < 12:
                self.g2_aload(j + 5); issue(f"A{j+5}", 4)
            if j < 3:
                self.g2_bload(j + 9); issue(f"B{j+9}", 5)
            if j == 8:
                self.fin_loads(); issue("X", 10)

    FX = 156; FB = 166
    def fin_loads(self):
        a = self.a
        a(f"""
        v_and_b32 v2, 15, v0
        v_lshrrev_b32 v3, 4, v0
        v_mul_u32_u24 v11, 1280, v2
        v_lshl_add_u32 v11, v3, 3, v11
        s_lshl_b32 s80, s{S_RB2}, 2
        s_add_u32 s80, s80, s{S_WAVE}
        s_mul_i32 s80, s80, {16*1280}
        s_mul_i32 s60, s{S_CB2}, 160
        s_add_u32 s80, s80, s60
        v_lshl_add_u32 v4, v3, 3, s60
        """)
        for nt in range(5):
            a(f"buffer_load_dwordx2 v[{self.FX+2*nt}:{self.FX+2*nt+1}], v11, s[{R_X}:{R_X+3}], s80 offen offset:{32*nt}")
        for nt in range(5):
            a(f"global_load_dwordx2 v[{self.FB+2*nt}:{self.FB+2*nt+1}], v4, s[{P_B2}:{P_B2+1}] offset:{32*nt}")

    def s_tile_dma(self):
        a = self.a
        sc = "sc1" if self.fused else ""
        a(f"""
        v_lshrrev_b32 v2, 3, v0
        v_and_b32 v3, 7, v0
        v_lshlrev_b32 v2, 12, v2
        v_lshl_add_u32 v2, v3, 4, v2
        s_mul_i32 s60, s{S_CB2}, {80*4096}
        s_lshl_b32 s61, s{S_RB2}, 7
        s_add_u32 s60, s60, s61
        s_add_u32 s60, s60, {ST}
        """)
        for t in range(10):
            a(f"s_mov_b32 m0, {AUX+1024*t}")
            a(f"buffer_load_dwordx4 v2, s[{R_WS}:{R_WS+3}], s60 offen lds {sc}")
            if t < 9: a(f"s_add_u32 s60, s60, {8*4096}")
        a("s_waitcnt vmcnt(0)")

    def g2_final(self):
        a = self.a
        ACC = self.G2_ACC
        self.srd(R_OUT, P_OUT, 2621440)
        for i in range(1, 4):
            for nt in range(5):
                acc = ACC + 16 * nt + 4 * i
                a(f"ds_write_b128 v10, v[{acc}:{acc+3}] offset:{5120*(i-1)+1024*nt}")
        for i in range(1, 4):
            a(f"""
            s_sub_u32 s60, s{S_WAVE}, {i}
            s_and_b32 s60, s60, 3
            s_mul_i32 s60, s60, 30720
            s_add_u32 s60, s60, {5120*(i-1)}
            v_add_u32 v{4+i}, s60, v9
            """)
        a(f"""
        v_and_b32 v12, 15, v0
        v_lshrrev_b32 v12, 2, v12
        v_lshl_add_u32 v12, v3, 2, v12
        v_lshlrev_b32 v12, 7, v12
        v_and_b32 v13, 3, v0
        v_lshl_add_u32 v12, v13, 3, v12
        s_lshl_b32 s60, s{S_WAVE}, 5
        s_add_u32 s60, s60, {AUX}
        v_add_u32 v12, s60, v12
        s_waitcnt lgkmcnt(0)
        s_barrier
        """)
        P = 96
        for nt in range(5):
            for i in range(1, 4):
                d = P + 12 * nt + 4 * (i - 1)
                a(f"ds_read_b128 v[{d}:{d+3}], v{4+i} offset:{1024*nt}")
            if nt == 3: a("s_waitcnt lgkmcnt(6)")
        for nt in range(5):
            a(f"ds_read_b64_tr_b16 v[{176+2*nt}:{177+2*nt}], v12 offset:{2048*nt}")
        a("s_waitcnt vmcnt(0)")
        for nt in range(5):
            acc = ACC + 16 * nt; p = P + 12 * nt; t = 190 + 12 * (nt % 2)
            fb = self.FB + 2 * nt; fx = self.FX + 2 * nt; fs = 176 + 2 * nt
            if nt == 0: a("s_waitcnt lgkmcnt(5)")
            a(f"""
            v_lshlrev_b32 v{t}, 16, v{fb}
            v_and_b32 v{t+1}, 0xffff0000, v{fb}
            v_lshlrev_b32 v{t+2}, 16, v{fb+1}
            v_and_b32 v{t+3}, 0xffff0000, v{fb+1}
            v_pk_add_f32 v[{acc}:{acc+1}], v[{acc}:{acc+1}], v[{p}:{p+1}]
            v_pk_add_f32 v[{acc+2}:{acc+3}], v[{acc+2}:{acc+3}], v[{p+2}:{p+3}]
            v_pk_add_f32 v[{p+4}:{p+5}], v[{p+4}:{p+5}], v[{p+8}:{p+9}]
            v_pk_add_f32 v[{p+6}:{p+7}], v[{p+6}:{p+7}], v[{p+10}:{p+11}]
            v_pk_add_f32 v[{acc}:{acc+1}], v[{acc}:{acc+1}], v[{t}:{t+1}]
            v_pk_add_f32 v[{acc+2}:{acc+3}], v[{acc+2}:{acc+3}], v[{t+2}:{t+3}]
            v_pk_add_f32 v[{acc}:{acc+1}], v[{acc}:{acc+1}], v[{p+4}:{p+5}]
            v_pk_add_f32 v[{acc+2}:{acc+3}], v[{acc+2}:{acc+3}], v[{p+6}:{p+7}]
            """)
            for i in range(4): a(f"v_mul_f32 v{t+i}, 0xbfb8aa3b, v{acc+i}")
            for i in range(4): a(f"v_exp_f32 v{t+i}, v{t+i}")
            if nt == 0: a("s_waitcnt lgkmcnt(0)")
            a(f"""
            v_lshlrev_b32 v{t+4}, 16, v{fs}
            v_and_b32 v{t+5}, 0xffff0000, v{fs}
            v_lshlrev_b32 v{t+6}, 16, v{fs+1}
            v_and_b32 v{t+7}, 0xffff0000, v{fs+1}
            """)
            for i in range(4): a(f"v_add_f32 v{t+i}, 1.0, v{t+i}")
            for i in range(4): a(f"v_rcp_f32 v{t+i}, v{t+i}")
            a(f"""
            v_pk_mul_f32 v[{t+4}:{t+5}], v[{t+4}:{t+5}], v[{acc}:{acc+1}]
            v_pk_mul_f32 v[{t+6}:{t+7}], v[{t+6}:{t+7}], v[{acc+2}:{acc+3}]
            v_lshlrev_b32 v{t+8}, 16, v{fx}
            v_and_b32 v{t+9}, 0xffff0000, v{fx}
            v_lshlrev_b32 v{t+10}, 16, v{fx+1}
            v_and_b32 v{t+11}, 0xffff0000, v{fx+1}
            v_pk_fma_f32 v[{t+8}:{t+9}], v[{t+4}:{t+5}], v[{t}:{t+1}], v[{t+8}:{t+9}]
            v_pk_fma_f32 v[{t+10}:{t+11}], v[{t+6}:{t+7}], v[{t+2}:{t+3}], v[{t+10}:{t+11}]
            v_cvt_pk_bf16_f32 v{fx}, v{t+8}, v{t+9}
            v_cvt_pk_bf16_f32 v{fx+1}, v{t+10}, v{t+11}
            buffer_store_dwordx2 v[{fx}:{fx+1}], v11, s[{R_OUT}:{R_OUT+3}], s80 offen offset:{32*nt}
            """)

    def misc_init(self):
        self.a(f"""
        v_lshlrev_b32 v2, 2, v0
        v_add_u32 v2, {MISC}, v2
        v_mov_b32 v3, 0
        ds_write_b32 v2, v3
        """)

    def build_k1(self):
        a = self.a
        self.prologue()
        self.ln_loads()
        a("s_waitcnt vmcnt(0)")
        self.ln_math()
        a(f"s_waitcnt lgkmcnt(0)\ns_barrier\ns_cmp_lt_u32 s{S_WAVE}, 4\ns_cbranch_scc1 {self.L('end')}")
        sc = self.ln_publish()
        self.ln_publish_stores(sc)
        a(f"s_cmp_lg_u32 s{S_WAVE}, 6\ns_cbranch_scc1 {self.L('end')}\ns_cmp_eq_u32 s{S_NCH}, 3\ns_cbranch_scc1 {self.L('end')}")
        self.w2_retile()
        a(f"{self.L('end')}:\ns_endpgm")

    def build_k2(self):
        a = self.a
        self.prologue()
        self.misc_init()
        a(f"s_waitcnt lgkmcnt(0)\ns_barrier\ns_cmp_ge_u32 s{S_WAVE}, 4\ns_cbranch_scc1 {self.L('aux')}")
        self.g1_b1_loads()
        self.g1_dma()
        a("s_waitcnt vmcnt(30)")
        self.g1_prep()
        self.g1_aloads()
        a("s_waitcnt vmcnt(40)")
        self.lds_set(M_W1, S_WAVE, tmp=(2, 3))
        self.lds_wait_all(M_W1, 4, "w1w", tmp=2)
        self.g1_loop()
        self.g1_epilogue()
        a(f"s_endpgm\n{self.L('aux')}:")
        a.clear_hist()
        a(f"s_cmp_eq_u32 s{S_WAVE}, 7\ns_cbranch_scc1 {self.L('svc')}")
        a(f"s_sub_u32 s60, s{S_WAVE}, 4\ns_cmp_ge_u32 s60, s{S_NCH}\ns_cbranch_scc1 {self.L('end')}")
        self.kg_loads()
        a("s_waitcnt vmcnt(0)")
        self.kgen()
        self.expand()
        self.lds_wait_all(M_U, 1, "uw", tmp=2)
        self.conv()
        a(f"s_endpgm\n{self.L('svc')}:")
        a.clear_hist()
        a(f"s_cmp_eq_u32 s{S_NCH}, 0\ns_cbranch_scc1 {self.L('end')}")
        self.u_gather()
        self.lds_set(M_U, None, tmp=(2, 3))
        a(f"{self.L('end')}:\ns_endpgm")

    def build_k3(self):
        a = self.a
        self.prologue()
        a(f"s_cmp_eq_u32 s{S_WAVE}, 7\ns_cbranch_scc1 {self.L('svc')}")
        a(f"s_cmp_ge_u32 s{S_WAVE}, 4\ns_cbranch_scc1 {self.L('end')}")
        self.g2_prefetch()
        self.g2_setup()
        self.g2_loop()
        self.g2_final()
        a(f"s_endpgm\n{self.L('svc')}:")
        a.clear_hist()
        self.s_tile_dma()
        a("s_barrier")
        a(f"{self.L('end')}:\ns_endpgm")

HEADER = open("cdna_kernels/" + NAME + ".s.ref").read().split("; Override launch")[0]

def kernel_text(label, body):
    return f""".text
.globl {label}
.p2align 8
.type {label},@function
{label}:
{body}
"""
def desc(label, vgpr=256):
    return f""".section .rodata,"a"
.p2align 6
.amdhsa_kernel {label}
  .amdhsa_next_free_vgpr {vgpr}
  .amdhsa_next_free_sgpr 102
  .amdhsa_accum_offset {vgpr}
  .amdhsa_group_segment_fixed_size 0
  .amdhsa_kernarg_size 120
  .amdhsa_user_sgpr_count 2
  .amdhsa_user_sgpr_kernarg_segment_ptr 1
  .amdhsa_system_sgpr_workgroup_id_x 1
.end_amdhsa_kernel
"""

def build_multi(stamps=False):
    out = HEADER
    ks = ["k1", "k2", "k3"]
    for k in ks:
        out += f"; @launch kernel={k}_kernel grid=(256,1,1) block=(512,1,1) lds={LDS_TOTAL}\n"
    out += '.amdgcn_target "amdgcn-amd-amdhsa--gfx950"\n'
    for k in ks:
        g = Gen(k, stamps)
        getattr(g, "build_" + k)()
        out += kernel_text(k + "_kernel", g.a.text())
    for k in ks:
        out += desc(k + "_kernel")
    return out

if __name__ == "__main__":
    mode = sys.argv[1]; path = sys.argv[2]
    stamps = len(sys.argv) > 3 and sys.argv[3] == "stamps"
    if mode == "multi":
        txt = build_multi(stamps)
    open(path, "w").write(txt)
```

```python
import sys
from asmlib import Asm, vr, sr

NAME = "recurrent_scan__ssm_conv_s4d__dense_activation_squared_relu__prompt"
XF = 0x0; XT = 0x280000; HF = 0x500000; W2F = 0xB00000; ST = 0xD00000
FLG = 0xF80000; STAMP = 0x1000000; WS_SIZE = 0x1100000
import os
FSTR = int(os.environ.get('FSTR','16'))
PSLEEP = int(os.environ.get('PSLEEP','0'))
LSLEEP = int(os.environ.get('LSLEEP','0'))
FHS = int(os.environ.get('FHS','64'))
FLN = FLG; FH = FLG + 0x2000; FW = FLG + 0xC000; FS = FLG + 0x10000
AUX = 122880; RSZ = 12896; K1O = 4160; UO = 8320; UPAD = 480
MISC = AUX + 3 * RSZ
LDS_TOTAL = 163840
M_LNCNT = MISC; M_W1 = MISC + 16; M_G1D = MISC + 32; M_U = MISC + 48; M_NONCE = MISC + 112
M_LNR = MISC + 80; M_LN = MISC + 192; M_J6 = MISC + 208; M_HP = MISC + 224; M_FW = MISC + 64; M_HCNT = MISC + 68; M_FH = MISC + 128; M_CD = MISC + 96
LNRS = 1296
P_X, P_LA, P_AI, P_CR, P_CI, P_DT, P_DS = 4, 6, 8, 10, 12, 14, 16
P_W1, P_B1, P_W2, P_B2, P_OUT, P_DBG, P_WS = 20, 22, 24, 26, 28, 30, 32
S_WAVE, S_XCD, S_IDX, S_RB, S_CB, S_RB2, S_CB2, S_NCH, S_CH0 = 34, 35, 36, 37, 38, 39, 40, 41, 42
R_WS, R_X, R_W, R_OUT = 44, 48, 52, 56
S_NONCE = 96
LOG2E = 0x3fb8aa3b
INV2PI = 0x3e22f983

class Gen:
    def __init__(self, mode, stamps=False):
        self.a = Asm()
        self.mode = mode
        self.fused = mode == "fused"
        self.stamps = stamps
        self.pfx = mode

    def L(self, n):
        return f"{self.pfx}_{n}"

    def stamp(self, slot):
        if not self.stamps: return
        a = self.a
        a(f"""
        s_memrealtime s[98:99]
        s_memtime s[94:95]
        s_lshl_b32 s100, s2, 3
        s_add_u32 s100, s100, s{S_WAVE}
        s_lshl_b32 s100, s100, 7
        s_add_u32 s100, s100, {STAMP + slot*8}
        s_waitcnt lgkmcnt(0)
        v_mov_b32 v1, s98
        s_mov_b64 s[98:99], exec
        s_mov_b64 exec, 1
        buffer_store_dword v1, off, s[{R_WS}:{R_WS+3}], s100
        v_mov_b32 v1, s94
        buffer_store_dword v1, off, s[{R_WS}:{R_WS+3}], s100 offset:4
        s_mov_b64 exec, s[98:99]
        """)

    def srd(self, r, p, size):
        self.a(f"""
        s_mov_b32 s{r}, s{p}
        s_and_b32 s{r+1}, s{p+1}, 0xffff
        s_mov_b32 s{r+2}, {size}
        s_mov_b32 s{r+3}, 0x00020000
        """)

    def prologue(self):
        a = self.a
        a(f"""
        s_cmp_ge_u32 s2, 256
        s_cbranch_scc1 {self.L('end')}
        s_load_dwordx16 s[4:19], s[0:1], 0
        s_load_dwordx8 s[20:27], s[0:1], 64
        s_load_dwordx4 s[28:31], s[0:1], 96
        s_load_dwordx2 s[32:33], s[0:1], 112
        v_lshrrev_b32 v1, 6, v0
        v_and_b32 v0, 63, v0
        s_and_b32 s{S_XCD}, s2, 7
        v_readfirstlane_b32 s{S_WAVE}, v1
        s_lshr_b32 s{S_IDX}, s2, 3
        s_and_b32 s60, s{S_XCD}, 3
        s_lshl_b32 s60, s60, 2
        s_and_b32 s61, s{S_IDX}, 3
        s_add_u32 s{S_RB}, s60, s61
        s_lshr_b32 s60, s{S_XCD}, 2
        s_lshl_b32 s60, s60, 3
        s_lshr_b32 s{S_CB2}, s{S_IDX}, 2
        s_add_u32 s{S_CB}, s60, s{S_CB2}
        s_lshl_b32 s60, s{S_XCD}, 2
        s_add_u32 s{S_RB2}, s60, s61
        ; conv channels: g = idx/3, pos = idx%3
        s_mul_i32 s60, s{S_IDX}, 43
        s_lshr_b32 s60, s60, 7
        s_mul_i32 s61, s60, 3
        s_sub_u32 s61, s{S_IDX}, s61
        s_mul_i32 s62, s{S_XCD}, 80
        s_lshl_b32 s63, s60, 3
        s_add_u32 s62, s62, s63
        s_mul_i32 s63, s61, 3
        s_add_u32 s{S_CH0}, s62, s63
        s_cmp_eq_u32 s61, 2
        s_cselect_b32 s{S_NCH}, 2, 3
        s_cmp_ge_u32 s{S_IDX}, 30
        s_cselect_b32 s{S_NCH}, 0, s{S_NCH}
        s_sub_u32 s61, s{S_IDX}, 20
        s_cselect_b32 s60, s61, s60
        """)
        a.lines.pop(); a.lines.pop()
        a(f"""
        s_sub_u32 s61, s{S_IDX}, 20
        s_cmp_ge_u32 s{S_IDX}, 30
        s_cselect_b32 s60, s61, s60
        s_mul_i32 s61, s{S_XCD}, 12
        s_add_u32 s43, s61, s60
        s_waitcnt lgkmcnt(0)
        """)
        self.srd(R_WS, P_WS, WS_SIZE)
        self.srd(R_X, P_X, 2621440)

    def ln_loads(self):
        a = self.a
        a(f"""
        s_lshl_b32 s60, s2, 3
        s_add_u32 s60, s60, s{S_WAVE}
        s_mul_i32 s60, s60, 1280
        v_lshlrev_b32 v1, 2, v0
        """)
        for i in range(5):
            a(f"buffer_load_dword v{10+i}, v1, s[{R_X}:{R_X+3}], s60 offen offset:{256*i}")

    def reduce64(self, v, sdst):
        a = self.a
        a(f"""
        v_add_f32_dpp v{v}, v{v}, v{v} quad_perm:[1,0,3,2] row_mask:0xf bank_mask:0xf
        v_add_f32_dpp v{v}, v{v}, v{v} quad_perm:[2,3,0,1] row_mask:0xf bank_mask:0xf
        v_add_f32_dpp v{v}, v{v}, v{v} row_half_mirror row_mask:0xf bank_mask:0xf
        v_add_f32_dpp v{v}, v{v}, v{v} row_mirror row_mask:0xf bank_mask:0xf
        v_add_f32_dpp v{v}, v{v}, v{v} row_bcast:15 row_mask:0xa bank_mask:0xf
        v_add_f32_dpp v{v}, v{v}, v{v} row_bcast:31 row_mask:0xc bank_mask:0xf
        v_readlane_b32 s{sdst}, v{v}, 63
        """)

    def ln_math(self):
        a = self.a
        for i in range(5):
            a(f"v_lshlrev_b32 v{16+2*i}, 16, v{10+i}")
            a(f"v_and_b32 v{17+2*i}, 0xffff0000, v{10+i}")
        a(f"""
        v_pk_add_f32 v[26:27], v[16:17], v[18:19]
        v_pk_add_f32 v[28:29], v[20:21], v[22:23]
        v_pk_add_f32 v[26:27], v[26:27], v[24:25]
        v_pk_add_f32 v[26:27], v[26:27], v[28:29]
        v_add_f32 v26, v26, v27
        """)
        self.reduce64(26, 60)
        a(f"""
        v_mov_b32 v30, 0x3acccccd
        v_mul_f32 v30, s60, v30
        """)
        for i in range(5):
            a(f"v_pk_add_f32 v[{32+2*i}:{33+2*i}], v[{16+2*i}:{17+2*i}], v[30:31] op_sel_hi:[1,0] neg_lo:[0,1] neg_hi:[0,1]")
        a("v_pk_mul_f32 v[26:27], v[32:33], v[32:33]")
        for i in range(1, 5):
            a(f"v_pk_fma_f32 v[26:27], v[{32+2*i}:{33+2*i}], v[{32+2*i}:{33+2*i}], v[26:27]")
        a("v_add_f32 v26, v26, v27")
        self.reduce64(26, 61)
        a(f"""
        v_mov_b32 v31, 0x3acccccd
        v_mul_f32 v31, s61, v31
        v_cvt_pk_bf16_f32 v26, v30, v31
        v_lshlrev_b32 v30, 16, v26
        v_and_b32 v31, 0xffff0000, v26
        v_add_f32 v31, 0x3727c5ac, v31
        v_cvt_pk_bf16_f32 v31, v31, v31
        v_and_b32 v31, 0xffff0000, v31
        v_sqrt_f32 v31, v31
        """)
        for i in range(5):
            a(f"v_pk_add_f32 v[{32+2*i}:{33+2*i}], v[{16+2*i}:{17+2*i}], v[30:31] op_sel_hi:[1,0] neg_lo:[0,1] neg_hi:[0,1]")
        a(f"""
        v_cvt_pk_bf16_f32 v31, v31, v31
        v_and_b32 v31, 0xffff0000, v31
        v_rcp_f32 v28, v31
        """)
        for i in range(5):
            a(f"v_cvt_pk_bf16_f32 v{10+i}, v{32+2*i}, v{33+2*i}")
        for i in range(5):
            a(f"v_lshlrev_b32 v{16+2*i}, 16, v{10+i}")
            a(f"v_and_b32 v{17+2*i}, 0xffff0000, v{10+i}")
        for i in range(5):
            a(f"v_pk_mul_f32 v[{16+2*i}:{17+2*i}], v[{16+2*i}:{17+2*i}], v[28:29] op_sel_hi:[1,0]")
        a(f"""
        s_mul_i32 s60, s{S_WAVE}, {LNRS}
        s_add_u32 s60, s60, {AUX}
        v_lshlrev_b32 v1, 2, v0
        v_add_u32 v1, s60, v1
        """)
        for i in range(5):
            a(f"v_cvt_pk_bf16_f32 v{10+i}, v{16+2*i}, v{17+2*i}")
        for i in range(5):
            a(f"ds_write_b32 v1, v{10+i} offset:{256*i}")

    def ln_pub_addr(self):
        a = self.a
        a(f"""
        s_sub_u32 s84, s{S_WAVE}, 4
        v_and_b32 v1, 7, v0
        v_lshrrev_b32 v2, 3, v0
        v_mul_u32_u24 v58, {LNRS}, v1
        v_lshl_add_u32 v58, v2, 4, v58
        s_lshl_b32 s60, s84, 7
        s_add_u32 s60, s60, {AUX}
        v_add_u32 v58, s60, v58
        v_lshrrev_b32 v59, 2, v2
        v_and_b32 v5, 3, v2
        v_lshlrev_b32 v59, 10, v59
        v_lshl_add_u32 v59, v5, 8, v59
        v_lshl_add_u32 v59, v1, 4, v59
        v_and_b32 v1, 15, v0
        v_lshrrev_b32 v2, 2, v1
        v_sub_u32 v2, 3, v2
        v_mul_u32_u24 v60, {LNRS}, v2
        v_and_b32 v1, 3, v0
        v_lshl_add_u32 v60, v1, 3, v60
        v_lshrrev_b32 v1, 4, v0
        v_lshl_add_u32 v60, v1, 5, v60
        v_add_u32 v60, s60, v60
        v_lshlrev_b32 v61, 4, v0
        s_lshr_b32 s85, s2, 1
        s_mul_i32 s85, s85, 20480
        s_and_b32 s62, s2, 1
        s_lshl_b32 s62, s62, 7
        s_add_u32 s85, s85, s62
        s_lshl_b32 s62, s84, 11
        s_add_u32 s85, s85, s62
        s_add_u32 s86, s85, 8192
        s_add_u32 s87, s85, 16384
        s_mul_i32 s88, s2, 10240
        s_lshl_b32 s62, s84, 10
        s_add_u32 s88, s88, s62
        s_add_u32 s88, s88, {XT}
        s_add_u32 s89, s88, 4096
        s_add_u32 s90, s88, 6144
        """)

    def ln_publish(self):
        a = self.a
        sc = "" if os.environ.get('V2') else "sc1"
        W = f"s[{R_WS}:{R_WS+3}]"
        l2 = self.L("lnp_xt3"); l3 = self.L("lnp_done")
        a(f"""
        ds_read_b128 v[12:15], v58
        ds_read_b128 v[16:19], v58 offset:512
        ds_read_b128 v[20:23], v58 offset:1024
        ds_read_b64_tr_b16 v[24:25], v60 offset:{4*LNRS}
        ds_read_b64_tr_b16 v[26:27], v60
        ds_read_b64_tr_b16 v[28:29], v60 offset:{4*LNRS+512}
        ds_read_b64_tr_b16 v[30:31], v60 offset:512
        ds_read_b64_tr_b16 v[32:33], v60 offset:{4*LNRS+768}
        ds_read_b64_tr_b16 v[34:35], v60 offset:768
        s_cmp_ge_u32 s84, 2
        s_waitcnt lgkmcnt(7)
        buffer_store_dwordx4 v[12:15], v59, {W}, s85 offen {sc}
        s_waitcnt lgkmcnt(6)
        buffer_store_dwordx4 v[16:19], v59, {W}, s86 offen {sc}
        s_waitcnt lgkmcnt(0)
        buffer_store_dwordx4 v[24:27], v61, {W}, s88 offen {sc}
        buffer_store_dwordx4 v[28:31], v61, {W}, s89 offen {sc}
        s_cbranch_scc1 {l2}
        buffer_store_dwordx4 v[20:23], v59, {W}, s87 offen {sc}
        s_branch {l3}
        {l2}:
        buffer_store_dwordx4 v[32:35], v61, {W}, s90 offen {sc}
        {l3}:
        """)

    def w2_loads(self):
        a = self.a
        self.srd(R_W, P_W2, 1966080)
        a(f"""
        s_lshr_b32 s91, s43, 1
        s_and_b32 s92, s43, 1
        s_mul_i32 s62, s91, {32*1280}
        s_mul_i32 s63, s92, 640
        s_add_u32 s62, s62, s63
        s_add_u32 s63, s62, 320
        """)
        for i in range(10):
            a(f"""
            v_add_u32 v1, {64*i}, v0
            v_mul_u32_u24 v2, 52429, v1
            v_lshrrev_b32 v2, 20, v2
            v_mul_u32_u24 v3, 20, v2
            v_sub_u32 v3, v1, v3
            v_mul_u32_u24 v2, 1280, v2
            v_lshl_add_u32 v2, v3, 4, v2
            buffer_load_dwordx4 v[{64+4*i}:{67+4*i}], v2, s[{R_W}:{R_W+3}], s62 offen
            buffer_load_dwordx4 v[{104+4*i}:{107+4*i}], v2, s[{R_W}:{R_W+3}], s63 offen
            """)

    def w2_retile(self):
        a = self.a
        sc = "sc1"
        base = AUX + 2 * RSZ
        a(f"""
        v_lshlrev_b32 v6, 4, v0
        v_add_u32 v1, {base}, v6
        v_lshrrev_b32 v2, 4, v0
        v_and_b32 v3, 15, v0
        v_lshrrev_b32 v3, 2, v3
        v_lshl_add_u32 v2, v2, 2, v3
        v_mul_u32_u24 v2, 320, v2
        v_and_b32 v3, 3, v0
        v_lshl_add_u32 v2, v3, 3, v2
        v_add_u32 v2, {base}, v2
        s_mul_i32 s62, s92, {4*245760}
        s_mul_i32 s63, s91, 5120
        s_add_u32 s62, s62, s63
        s_add_u32 s62, s62, {W2F}
        v_add_u32 v7, 4096, v6
        """)
        for half in range(2):
            src = 64 + 40 * half
            fr = 144 + 40 * half
            for i in range(10):
                a(f"ds_write_b128 v1, v[{src+4*i}:{src+3+4*i}] offset:{1024*i}")
            a("s_waitcnt lgkmcnt(4)")
            for nt in range(10):
                d = fr + 4 * nt
                a(f"ds_read_b64_tr_b16 v[{d}:{d+1}], v2 offset:{32*nt}")
                a(f"ds_read_b64_tr_b16 v[{d+2}:{d+3}], v2 offset:{32*nt+16*320}")
                if nt == 4: a("s_waitcnt lgkmcnt(4)")
            a("s_waitcnt lgkmcnt(0)")
            for nt in range(10):
                d = fr + 4 * nt
                cbl = half * 2 + nt // 5
                n5 = nt % 5
                if n5 == 0:
                    a(f"s_add_u32 s63, s62, {cbl*245760}")
                if n5 < 4:
                    a(f"buffer_store_dwordx4 v[{d}:{d+3}], v6, s[{R_WS}:{R_WS+3}], s63 offen offset:{1024*n5} {sc}")
                else:
                    a(f"buffer_store_dwordx4 v[{d}:{d+3}], v7, s[{R_WS}:{R_WS+3}], s63 offen {sc}")

    def lds_set(self, addr_imm, sidx=None, val=1, tmp=(2, 3)):
        a = self.a
        if sidx is None:
            a(f"v_mov_b32 v{tmp[0]}, {addr_imm}")
        else:
            a(f"s_lshl_b32 s60, s{sidx}, 2\ns_add_u32 s60, s60, {addr_imm}\nv_mov_b32 v{tmp[0]}, s60")
        a(f"v_mov_b32 v{tmp[1]}, {val}\nds_write_b32 v{tmp[0]}, v{tmp[1]}")

    def lds_wait_all(self, addr_imm, n, name, tmp=2):
        a = self.a
        lab = self.L(name); done = self.L(name + "_d")
        t = tmp
        a(f"""
        v_mov_b32 v{t}, {addr_imm}
        s_mov_b32 s61, 0
        {lab}:
        ds_read_b128 v[{t+2}:{t+5}], v{t}
        s_add_u32 s61, s61, 1
        s_waitcnt lgkmcnt(0)
        """)
        for k in range(1, n):
            a(f"v_min_u32 v{t+2}, v{t+2}, v{t+2+k}")
        a(f"""
        v_readfirstlane_b32 s60, v{t+2}
        s_cmp_gt_u32 s61, 0x100000
        s_cbranch_scc1 {done}
        s_cmp_lg_u32 s60, 0
        s_cbranch_scc1 {done}
        {'s_sleep %d' % LSLEEP if LSLEEP else ''}
        s_branch {lab}
        {done}:
        """)

    def get_nonce(self, name, tmp=2):
        self.lds_wait_all(M_NONCE, 1, name, tmp)
        self.a(f"s_mov_b32 s{S_NONCE}, s60")

    def poll_flags(self, name, soff, nlanes, nloads=1, lstride=FSTR, istride=64*FSTR, tmp=2, pre=None):
        a = self.a
        lab = self.L(name); done = self.L(name + "_d")
        t = tmp
        a(f"v_mul_u32_u24 v{t}, {lstride}, v0")
        a(f"s_mov_b64 s[62:63], exec")
        if nlanes < 64:
            a(f"s_lshr_b64 exec, -1, {64-nlanes}")
        a(f"s_mov_b32 s64, 0\n{lab}:")
        for i in range(nloads):
            if i * istride < 4096:
                a(f"buffer_load_dword v{t+1+i}, v{t}, s[{R_WS}:{R_WS+3}], s{soff} offen offset:{i*istride} sc1")
            else:
                raise ValueError
        a("s_add_u32 s64, s64, 1\ns_waitcnt vmcnt(0)")
        for i in range(nloads):
            a(f"v_xor_b32 v{t+1+i}, s{S_NONCE}, v{t+1+i}")
        for i in range(1, nloads):
            a(f"v_or_b32 v{t+1}, v{t+1}, v{t+1+i}")
        a(f"""
        v_cmp_ne_u32 vcc, 0, v{t+1}
        s_cmp_gt_u32 s64, 0x8000
        s_cbranch_scc1 {done}
        s_cbranch_vccz {done}
        {'s_sleep %d' % PSLEEP if PSLEEP else ''}
        s_branch {lab}
        {done}:
        s_mov_b64 exec, s[62:63]
        """)

    def store_flag(self, soff, tmp=2):
        self.a(f"""
        v_mov_b32 v{tmp}, s{S_NONCE}
        s_mov_b64 s[62:63], exec
        s_mov_b64 exec, 1
        buffer_store_dword v{tmp}, off, s[{R_WS}:{R_WS+3}], s{soff} sc1
        s_mov_b64 exec, s[62:63]
        """)

    def g1_dma(self):
        a = self.a
        self.srd(R_W, P_W1, 1966080)
        for ph in range(3):
            a(f"""
            v_add_u32 v5, {64*ph}, v0
            v_mul_u32_u24 v6, 43691, v5
            v_lshrrev_b32 v6, 19, v6
            v_mul_u32_u24 v7, 12, v6
            v_sub_u32 v7, v5, v7
            v_lshrrev_b32 v8, 2, v6
            v_and_b32 v8, 2, v8
            v_xor_b32 v7, v7, v8
            v_mul_u32_u24 v6, 3072, v6
            v_lshl_add_u32 v{2+ph}, v7, 4, v6
            """)
        a(f"""
        s_mul_i32 s60, s{S_RB}, 10
        s_lshr_b32 s60, s60, 4
        s_mul_i32 s61, s{S_CB}, 192
        """)
        a("s_mov_b32 s68, s60\ns_mov_b32 s69, s61")

    def g1_dma_issue(self, j0, j1):
        a = self.a
        for j in range(j0, j1):
            a(f"""
            s_lshl_b32 s62, s68, 2
            s_add_u32 s62, s62, s{S_WAVE}
            s_mul_i32 s63, s62, {16*3072}
            s_add_u32 s63, s63, s69
            s_mul_i32 s62, s62, 3072
            s_mov_b32 m0, s62
            s_add_u32 s68, s68, 1
            buffer_load_dwordx4 v2, s[{R_W}:{R_W+3}], s63 offen lds
            s_add_u32 m0, s62, 1024
            s_cmp_eq_u32 s68, 10
            buffer_load_dwordx4 v3, s[{R_W}:{R_W+3}], s63 offen lds
            s_cselect_b32 s68, 0, s68
            s_add_u32 m0, s62, 2048
            buffer_load_dwordx4 v4, s[{R_W}:{R_W+3}], s63 offen lds
            """)
    G1_OUT = 88
    G1_ACC = 16; G1_B = 64; G1_A = 88
    def g1_b1_loads(self):
        a = self.a
        a(f"""
        v_lshrrev_b32 v5, 4, v0
        v_lshlrev_b32 v5, 3, v5
        s_mul_i32 s60, s{S_CB}, 192
        v_add_u32 v5, s60, v5
        """)
        for t in range(6):
            a(f"global_load_dwordx2 v[{self.G1_B+2*t}:{self.G1_B+2*t+1}], v5, s[{P_B1}:{P_B1+1}] offset:{32*t}")

    def g1_prep(self):
        a = self.a
        for t in range(6):
            for lt in range(2):
                d = self.G1_ACC + 8 * t + 4 * lt
                s = self.G1_B + 2 * t
                a(f"""
                v_lshlrev_b32 v{d}, 16, v{s}
                v_and_b32 v{d+1}, 0xffff0000, v{s}
                v_lshlrev_b32 v{d+2}, 16, v{s+1}
                v_and_b32 v{d+3}, 0xffff0000, v{s+1}
                """)
        a(f"""
        v_lshrrev_b32 v5, 4, v0
        v_and_b32 v6, 15, v0
        v_lshrrev_b32 v6, 2, v6
        v_lshl_add_u32 v6, v5, 3, v6
        v_mul_u32_u24 v6, 192, v6
        v_and_b32 v7, 3, v0
        v_lshl_add_u32 v6, v7, 3, v6
        v_and_b32 v5, 1, v5
        v_lshlrev_b32 v5, 5, v5
        v_add_u32 v10, v6, v5
        v_sub_u32 v11, v6, v5
        v_add_u32 v12, 61440, v10
        v_add_u32 v13, 61440, v11
        v_lshlrev_b32 v9, 4, v0
        """)

    def g1_aloads(self):
        a = self.a
        sc = "sc1" if self.fused else ""
        a(f"""
        s_lshl_b32 s60, s{S_RB}, 3
        s_lshl_b32 s61, s{S_WAVE}, 1
        s_add_u32 s60, s60, s61
        s_mul_i32 s60, s60, 20480
        s_add_u32 s61, s60, 20480
        """)
        for ks in range(20):
            for lt in range(2):
                d = self.G1_A + 8 * ks + 4 * lt
                a(f"buffer_load_dwordx4 v[{d}:{d+3}], v9, s[{R_WS}:{R_WS+3}], s{60+lt} offen offset:{1024*(ks%4)} {sc}")
            if ks % 4 == 3 and ks != 19:
                a("s_add_u32 s60, s60, 4096\ns_add_u32 s61, s61, 4096")

    def g1_loop(self, extra_vm=0, hook=None, hook_at=10, hook_n=0):
        a = self.a
        def bread(ks, t):
            base = (10 if t % 2 == 0 else 11) + (2 if ks >= 10 else 0)
            off = (ks % 10) * 6144 + 32 * t
            d = self.G1_B + 4 * t
            a(f"ds_read_b64_tr_b16 v[{d}:{d+1}], v{base} offset:{off}")
            a(f"ds_read_b64_tr_b16 v[{d+2}:{d+3}], v{base} offset:{off+768}")
        for t in range(6): bread(0, t)
        for ks in range(20):
            if hook and ks == hook_at:
                hook()
                extra_vm += hook_n
            a(f"s_waitcnt vmcnt({min(63, 2*(19-ks)+extra_vm)})")
            for t in range(6):
                if ks < 19: a("s_waitcnt lgkmcnt(10)")
                else: a(f"s_waitcnt lgkmcnt({2*(5-t)})")
                for lt in range(2):
                    acc = self.G1_ACC + 8 * t + 4 * lt
                    A = self.G1_A + 8 * ks + 4 * lt
                    B = self.G1_B + 4 * t
                    a(f"v_mfma_f32_16x16x32_bf16 v[{acc}:{acc+3}], v[{B}:{B+3}], v[{A}:{A+3}], v[{acc}:{acc+3}]")
                if ks < 19: bread(ks + 1, t)

    def g1_epilogue(self):
        a = self.a
        sc = "sc1" if self.fused else ""
        a(f"""
        s_lshl_b32 s60, s{S_RB}, 3
        s_lshl_b32 s61, s{S_WAVE}, 1
        s_add_u32 s60, s60, s61
        s_mul_i32 s60, s60, 49152
        s_mul_i32 s61, s{S_CB}, 3072
        s_add_u32 s60, s60, s61
        s_add_u32 s60, s60, {HF}
        s_add_u32 s61, s60, 49152
        """)
        T = self.G1_B
        for tp in range(3):
            for lt in range(2):
                o = self.G1_OUT + 4 * (2 * tp + lt)
                for k in range(2):
                    acc = self.G1_ACC + 8 * (2 * tp + k) + 4 * lt
                    t0 = T + 8 * ((2*tp+lt) % 2) + 4 * k
                    for i in range(4):
                        a(f"v_max_f32 v{t0+i}, 0, v{acc+i}")
                    a(f"v_pk_mul_f32 v[{t0}:{t0+1}], v[{t0}:{t0+1}], v[{t0}:{t0+1}]")
                    a(f"v_pk_mul_f32 v[{t0+2}:{t0+3}], v[{t0+2}:{t0+3}], v[{t0+2}:{t0+3}]")
                    a(f"v_cvt_pk_bf16_f32 v{o+2*k}, v{t0}, v{t0+1}")
                    a(f"v_cvt_pk_bf16_f32 v{o+2*k+1}, v{t0+2}, v{t0+3}")
                a(f"buffer_store_dwordx4 v[{o}:{o+3}], v9, s[{R_WS}:{R_WS+3}], s{60+lt} offen offset:{1024*tp} {sc}")

    KP = 44
    def kg_loads(self):
        a = self.a
        a(f"""
        s_sub_u32 s70, s{S_WAVE}, 4
        s_add_u32 s71, s{S_CH0}, s70
        s_mul_i32 s60, s71, 384
        v_lshlrev_b32 v2, 1, v0
        v_add_u32 v2, s60, v2
        s_lshl_b32 s60, s71, 1
        v_mov_b32 v3, s60
        """)
        for p in range(3):
            for k, P in enumerate((P_LA, P_AI, P_CR, P_CI)):
                a(f"global_load_ushort v{self.KP+4*p+k}, v2, s[{P}:{P+1}] offset:{128*p}")
        a(f"global_load_ushort v56, v3, s[{P_DT}:{P_DT+1}]")
        a(f"global_load_ushort v57, v3, s[{P_DS}:{P_DS+1}]")

    def cmul(self, d, x, y):
        return [f"v_pk_mul_f32 v[{d}:{d+1}], v[{x}:{x+1}], v[{y}:{y+1}] op_sel:[0,0] op_sel_hi:[0,1]",
                f"v_pk_fma_f32 v[{d}:{d+1}], v[{x}:{x+1}], v[{y}:{y+1}], v[{d}:{d+1}] op_sel:[1,1,0] op_sel_hi:[1,0,1] neg_lo:[0,1,0]"]

    def kgen(self):
        a = self.a
        KP = self.KP
        Z, Z8, W = 60, 62, 64
        F = 66
        F2 = 82
        G = 98
        CV = 102
        SV = 110
        GF, TA, TB = 120, 136, 152
        ACC = 168
        VW, VR = 10, 11
        TOFF = 4352
        a(f"""
        s_mul_i32 s72, s70, {RSZ}
        s_add_u32 s72, s72, {AUX}
        v_lshrrev_b32 v2, 2, v0
        v_mul_u32_u24 v2, 272, v2
        v_and_b32 v3, 3, v0
        v_lshl_add_u32 v2, v3, 2, v2
        v_add_u32 v{VW}, s72, v2
        v_lshrrev_b32 v2, 4, v0
        v_mul_u32_u24 v2, 272, v2
        v_and_b32 v3, 15, v0
        v_lshl_add_u32 v2, v3, 4, v2
        v_add_u32 v{VR}, s72, v2
        v_lshlrev_b32 v56, 16, v56
        v_mul_f32 v56, {LOG2E}, v56
        v_exp_f32 v56, v56
        v_lshlrev_b32 v57, 16, v57
        v_cvt_pk_bf16_f32 v56, v56, v56
        v_and_b32 v56, 0xffff0000, v56
        v_add_f32 v58, v56, v56
        v_mov_b32 v59, 0x3f80
        s_mov_b32 s73, 3
        """)
        for i in range(12): a(f"v_mov_b32 v{ACC+i}, 0")
        loop = self.L("kg_loop")
        a(f"{loop}:")
        a(f"""
        v_lshlrev_b32 v2, 16, v{KP}
        v_mul_f32 v2, {LOG2E}, v2
        v_exp_f32 v2, v2
        v_lshlrev_b32 v3, 16, v{KP+1}
        v_lshlrev_b32 v{F}, 16, v{KP+2}
        v_cvt_pk_bf16_f32 v2, v2, v2
        v_lshlrev_b32 v{F+1}, 16, v{KP+3}
        v_and_b32 v2, 0xffff0000, v2
        v_mul_f32 v3, v3, v56
        v_mul_f32 v2, v2, v56
        v_pk_mul_f32 v[{F}:{F+1}], v[{F}:{F+1}], v[58:59] op_sel_hi:[1,0]
        v_mul_f32 v3, {INV2PI}, v3
        v_mul_f32 v2, 0xbfb8aa3b, v2
        """)
        for k in range(8): a(f"v_mov_b32 v{KP+k}, v{KP+4+k}")
        a(f"""
        v_mul_f32 v4, 0x41000000, v2
        v_mul_f32 v5, 0x41000000, v3
        v_mul_f32 v6, 0x43000000, v2
        v_mul_f32 v7, 0x43000000, v3
        v_fract_f32 v3, v3
        v_fract_f32 v5, v5
        v_fract_f32 v7, v7
        v_exp_f32 v2, v2
        v_exp_f32 v4, v4
        v_exp_f32 v6, v6
        v_cos_f32 v{Z}, v3
        v_sin_f32 v{Z+1}, v3
        v_cos_f32 v{Z8}, v5
        v_sin_f32 v{Z8+1}, v5
        v_cos_f32 v{W}, v7
        v_sin_f32 v{W+1}, v7
        v_pk_mul_f32 v[{Z}:{Z+1}], v[{Z}:{Z+1}], v[2:3] op_sel_hi:[1,0]
        v_pk_mul_f32 v[{Z8}:{Z8+1}], v[{Z8}:{Z8+1}], v[4:5] op_sel_hi:[1,0]
        v_pk_mul_f32 v[{W}:{W+1}], v[{W}:{W+1}], v[6:7] op_sel_hi:[1,0]
        """)
        cvn = [0]
        def outA(src, off):
            c = CV + cvn[0] % 8; cvn[0] += 1
            return [f"v_cvt_pk_bf16_f32 v{c}, v{src}, -v{src+1}", f"ds_write_b32 v{VW}, v{c} offset:{off}"]
        def outB(src, off):
            c = CV + cvn[0] % 8; cvn[0] += 1
            return [f"v_cvt_pk_bf16_f32 v{c}, v{src}, v{src+1}", f"ds_write_b32 v{VW}, v{c} offset:{off}"]
        def merge(*streams):
            streams = [list(s) for s in streams]
            out = []
            while any(streams):
                for s in streams:
                    if s: out.append(s.pop(0))
            return out
        gs = [f"ds_write_b32 v{VW}, v59"] + outB(Z8, 16)
        prev = Z8
        for j in range(2, 16):
            d = G + 2 * (j % 2)
            gs += self.cmul(d, prev, Z8) + outB(d, 16 * j)
            prev = d
        fs = outA(F, TOFF)
        for r in range(1, 8):
            fs += self.cmul(F + 2 * r, F + 2 * (r - 1), Z) + outA(F + 2 * r, TOFF + 16 * r)
        for r in range(8):
            fs += self.cmul(F2 + 2 * r, F + 2 * r, W) + outA(F2 + 2 * r, TOFF + 16 * (8 + r))
        for ins in merge(gs, fs): a(ins)
        for ks in range(4):
            a(f"ds_read_b128 v[{GF+4*ks}:{GF+4*ks+3}], v{VR} offset:{1088*ks}")
            a(f"ds_read_b128 v[{TA+4*ks}:{TA+4*ks+3}], v{VR} offset:{TOFF+1088*ks}")
        s1 = []
        for i in range(4):
            s1.append(self.cmul(F + 2 * i, F2 + 4 * i, W) + [f"v_cvt_pk_bf16_f32 v{SV+i}, v{F+2*i}, -v{F+2*i+1}"]
                      + self.cmul(F + 8 + 2 * i, F + 2 * i, W) + [f"v_cvt_pk_bf16_f32 v{SV+4+i}, v{F+8+2*i}, -v{F+8+2*i+1}"])
        for ins in merge(*s1): a(ins)
        a("s_waitcnt lgkmcnt(0)")
        mf0 = [f"v_mfma_f32_16x16x32_bf16 v[{ACC}:{ACC+3}], v[{TA+4*ks}:{TA+4*ks+3}], v[{GF+4*ks}:{GF+4*ks+3}], v[{ACC}:{ACC+3}]" for ks in range(4)]
        c0 = []; prev = F + 8
        for i in range(12):
            d = F2 + 2 * (i % 2)
            row = i if i < 4 else i + 4
            c0 += self.cmul(d, prev, W) + outA(d, TOFF + 16 * row)
            prev = d
        last = prev
        c1 = []; prev = F + 12
        for i in range(4):
            d = F2 + 4 + 2 * (i % 2)
            c1 += self.cmul(d, prev, W) + outA(d, TOFF + 16 * (4 + i))
            prev = d
        for ins in merge(c0, c1, mf0): a(ins)
        for ks in range(4):
            a(f"ds_read_b128 v[{TB+4*ks}:{TB+4*ks+3}], v{VR} offset:{TOFF+1088*ks}")
        for ins in self.cmul(F2 + 8, last, W): a(ins)
        for i in range(8):
            a(f"ds_write_b32 v{VW}, v{SV+i} offset:{TOFF+16*i}")
        for ins in outA(F2 + 8, TOFF + 16 * 8): a(ins)
        for ks in range(4):
            a(f"ds_read_b128 v[{TA+4*ks}:{TA+4*ks+3}], v{VR} offset:{TOFF+1088*ks}")
        a("s_waitcnt lgkmcnt(13)")
        for ks in range(4):
            a(f"v_mfma_f32_16x16x32_bf16 v[{ACC+4}:{ACC+7}], v[{TB+4*ks}:{TB+4*ks+3}], v[{GF+4*ks}:{GF+4*ks+3}], v[{ACC+4}:{ACC+7}]")
        a("s_sub_u32 s73, s73, 1\ns_cmp_lg_u32 s73, 0\ns_waitcnt lgkmcnt(0)")
        for ks in range(4):
            a(f"v_mfma_f32_16x16x32_bf16 v[{ACC+8}:{ACC+11}], v[{TA+4*ks}:{TA+4*ks+3}], v[{GF+4*ks}:{GF+4*ks+3}], v[{ACC+8}:{ACC+11}]")
        a(f"s_cbranch_scc1 {loop}")
        self.KACC = ACC

    def expand(self):
        a = self.a
        ACC = self.KACC
        T0, T1, T2 = ACC, ACC + 4, ACC + 8
        a(f"""
        v_and_b32 v2, 15, v0
        v_lshrrev_b32 v3, 4, v0
        v_lshlrev_b32 v4, 3, v2
        v_lshlrev_b32 v5, 2, v3
        v_add_u32 v5, 512, v5
        v_lshlrev_b32 v6, 9, v3
        v_cmp_gt_u32 vcc, 2, v3
        v_cndmask_b32 v5, v6, v5, vcc
        v_add_u32 v5, v5, v4
        v_cndmask_b32 v6, 4, 2, vcc
        v_and_b32 v7, 1, v2
        v_cndmask_b32 v7, v7, v3, vcc
        v_cndmask_b32 v8, 8, 0, vcc
        s_add_u32 s60, s72, 32
        v_sub_u32 v9, v5, v6
        v_lshl_add_u32 v12, v9, 1, s60
        v_add_u32 v13, v12, v8
        v_add_u32 v9, v5, v6
        v_sub_u32 v9, v9, v7
        v_lshl_add_u32 v14, v9, 1, s60
        v_sub_u32 v9, v5, v6
        v_add_u32 v9, v9, v7
        v_lshl_add_u32 v15, v9, 1, s60
        v_add_u32 v15, {K1O-2}, v15
        v_cmp_eq_u32 vcc, 32, v0
        v_add_u32 v9, 4, v15
        v_cndmask_b32 v16, v15, v9, vcc
        v_add_u32 v17, {K1O}, v12
        v_add_u32 v18, {K1O}, v13
        """)
        for i in range(4):
            a(f"v_cvt_pk_bf16_f32 v{20+i}, v{T1+i}, v{T1+i}")
        for i in range(4):
            a(f"ds_write2_b32 v12, v{20+i}, v{20+i} offset0:{64*i} offset1:{64*i+1}")
            a(f"ds_write2_b32 v13, v{20+i}, v{20+i} offset0:{64*i} offset1:{64*i+1}")
            a(f"ds_write2_b32 v17, v{20+i}, v{20+i} offset0:{64*i} offset1:{64*i+1}")
            a(f"ds_write2_b32 v18, v{20+i}, v{20+i} offset0:{64*i} offset1:{64*i+1}")
        for i in range(4):
            a(f"ds_write_b16 v14, v{20+i} offset:{256*i}")
            a(f"ds_write_b16 v{16 if i == 0 else 15}, v{20+i} offset:{256*i}")
        a(f"""
        v_lshlrev_b32 v5, 7, v3
        v_add3_u32 v5, v5, v4, v4
        v_lshlrev_b32 v6, 7, v3
        v_add_u32 v5, v5, v6
        v_add_u32 v5, s60, v5
        v_add_u32 v5, 512, v5
        v_cvt_pk_bf16_f32 v24, v{T2}, v{T2}
        v_cvt_pk_bf16_f32 v25, v{T2}, v{T2+1}
        v_cvt_pk_bf16_f32 v26, v{T2+2}, v{T2+2}
        v_cvt_pk_bf16_f32 v27, v{T2+2}, v{T2+3}
        v_cvt_pk_bf16_f32 v28, v{T2+1}, v{T2+2}
        v_add_u32 v6, {K1O-4}, v5
        v_add_u32 v7, -2, v5
        s_mov_b32 exec_hi, 0
        ds_write2_b32 v5, v24, v28 offset0:0 offset1:1
        ds_write_b32 v5, v26 offset:8
        ds_write_b16_d16_hi v5, v27 offset:12
        ds_write_b16 v7, v24
        ds_write2_b32 v6, v24, v25 offset0:0 offset1:1
        ds_write2_b32 v6, v26, v27 offset0:2 offset1:3
        s_mov_b64 exec, -1
        s_add_u32 s61, s60, {2*2044}
        v_mov_b32 v6, s61
        v_add_u32 v7, {K1O-2}, v6
        v_add_u32 v8, {K1O}, v6
        s_mov_b32 exec_lo, 0
        s_mov_b32 exec_hi, 1
        ds_write2_b32 v6, v24, v24 offset0:0 offset1:1
        ds_write2_b32 v8, v24, v24 offset0:0 offset1:1
        ds_write_b16 v7, v24
        s_mov_b64 exec, -1
        """)
        a(f"""
        v_and_b32 v5, 1, v3
        v_lshlrev_b32 v5, 3, v5
        v_lshrrev_b32 v6, 1, v3
        v_lshl_add_u32 v5, v6, 8, v5
        v_add3_u32 v5, v5, v4, v4
        v_add_u32 v5, s60, v5
        s_mov_b64 exec, 1
        v_add_f32 v{T0}, v{T0}, v57
        s_mov_b64 exec, -1
        v_cvt_pk_bf16_f32 v24, v{T0}, v{T0+1}
        v_cvt_pk_bf16_f32 v25, v{T0+2}, v{T0+3}
        v_cvt_pk_bf16_f32 v26, v{T0+1}, v{T0+2}
        v_add_u32 v6, {K1O-2}, v5
        v_mov_b32 v28, 0
        v_mov_b32 v29, 0
        v_lshlrev_b32 v7, 3, v0
        v_add_u32 v7, s72, v7
        s_mov_b64 exec, 15
        ds_write_b64 v7, v[28:29]
        ds_write_b64 v7, v[28:29] offset:{K1O}
        s_lshr_b64 exec, -1, 4
        ds_write_b64 v7, v[28:29] offset:{UO}
        s_mov_b64 exec, -1
        ds_write_b64 v5, v[24:25]
        ds_write_b16 v6, v24
        ds_write_b32 v5, v26 offset:{K1O}
        ds_write_b16_d16_hi v6, v25 offset:6
        """)

    def u_gather(self):
        a = self.a
        sc = "sc1" if self.fused else ""
        a(f"""
        v_lshrrev_b32 v2, 2, v0
        v_and_b32 v3, 3, v0
        v_mul_u32_u24 v4, 10240, v2
        v_lshl_add_u32 v4, v3, 4, v4
        s_lshl_b32 s60, s{S_CH0}, 4
        s_add_u32 s60, s60, {XT}
        v_mul_u32_u24 v5, {RSZ}, v3
        v_lshl_add_u32 v5, v2, 4, v5
        v_add_u32 v5, {AUX+UO+UPAD}, v5
        v_cmp_gt_u32 vcc, s{S_NCH}, v3
        s_mov_b64 s[62:63], exec
        s_and_b64 exec, exec, vcc
        """)
        for i in range(16):
            a(f"buffer_load_dwordx4 v[{40+4*i}:{43+4*i}], v4, s[{R_WS}:{R_WS+3}], s60 offen {sc}")
            if i < 15: a(f"s_add_u32 s60, s60, {16*10240}")
        for i in range(16):
            a(f"s_waitcnt vmcnt({14-i})" if i < 15 else "s_nop 7")
            a(f"ds_write_b128 v5, v[{40+4*i}:{43+4*i}] offset:{256*i}")
        a("s_mov_b64 exec, s[62:63]\ns_waitcnt lgkmcnt(0)")

    def conv(self):
        a = self.a
        sc = "sc1" if self.fused else ""
        ACC = 60; OP = [92, 156]
        AB = 12
        a(f"""
        v_and_b32 v2, 15, v0
        v_lshrrev_b32 v3, 4, v0
        v_lshlrev_b32 v4, 3, v3
        v_sub_u32 v4, v2, v4
        v_add_u32 v4, {233+16-224}, v4
        v_and_b32 v5, 1, v2
        v_and_b32 v4, -2, v4
        v_lshlrev_b32 v4, 1, v4
        v_cmp_eq_u32 vcc, 0, v5
        v_mov_b32 v6, {K1O}
        v_cndmask_b32 v5, 0, v6, vcc
        v_add3_u32 v{AB}, v4, v5, s72
        v_add_u32 v{AB+1}, 1024, v{AB}
        v_add_u32 v{AB+2}, 2048, v{AB}
        v_add_u32 v{AB+3}, 3072, v{AB}
        v_lshlrev_b32 v4, 5, v2
        v_lshl_add_u32 v4, v3, 4, v4
        s_add_u32 s60, s72, {UO}
        v_add_u32 v16, s60, v4
        """)
        for i in range(32): a(f"v_mov_b32 v{ACC+i}, 0")
        def reads(tau):
            s = OP[tau % 2]
            r = []
            for d in range(8):
                r.append(f"ds_read_b128 v[{s+32+4*d}:{s+35+4*d}], v16 offset:{512*d+64*tau}")
                o = 512 * d - 64 * tau + 448
                b = AB + o // 1024; q = (o % 1024) // 4
                r.append(f"ds_read2_b32 v[{s+4*d}:{s+4*d+1}], v{b} offset0:{q} offset1:{q+1}")
                r.append(f"ds_read2_b32 v[{s+4*d+2}:{s+4*d+3}], v{b} offset0:{q+2} offset1:{q+3}")
            return r
        r0 = reads(0)
        for k, ins in enumerate(r0):
            a(ins)
            if k == 12: a("s_waitcnt lgkmcnt(3)")
        for tau in range(8):
            s = OP[tau % 2]
            nxt = reads(tau + 1) if tau < 7 else []
            pairs = sorted([(d, n) for d in range(8) for n in range(8 - d)], key=lambda p: (max(p), p))
            a("s_waitcnt lgkmcnt(0)")
            for k, (d, n) in enumerate(pairs):
                acc = ACC + 4 * (d + n)
                a(f"v_mfma_f32_16x16x32_bf16 v[{acc}:{acc+3}], v[{s+4*d}:{s+4*d+3}], v[{s+32+4*n}:{s+35+4*n}], v[{acc}:{acc+3}]")
                if nxt and k < 30 and k % 5 != 4:
                    a(nxt.pop(0))
            assert not nxt
        a(f"""
        v_lshlrev_b32 v5, 5, v2
        v_lshl_add_u32 v5, v3, 3, v5
        s_lshl_b32 s61, s71, 12
        s_add_u32 s61, s61, {ST}
        """)
        for n in range(8):
            acc = ACC + 4 * n; o = 128 + 2 * n
            a(f"""
            v_cvt_pk_bf16_f32 v{o}, v{acc}, v{acc+1}
            v_cvt_pk_bf16_f32 v{o+1}, v{acc+2}, v{acc+3}
            buffer_store_dwordx2 v[{o}:{o+1}], v5, s[{R_WS}:{R_WS+3}], s61 offen offset:{512*n} {sc}
            """)

    G2_ACC = 16; G2_RB = 96; G2_BT = 156; G2_A = 176
    def g2_addr(self):
        self.a(f"""
        v_lshlrev_b32 v9, 4, v0
        v_add_u32 v8, 4096, v9
        s_mul_i32 s74, s{S_CB2}, 245760
        s_mul_i32 s60, s{S_WAVE}, {12*5120}
        s_add_u32 s74, s74, s60
        s_add_u32 s74, s74, {W2F}
        s_mul_i32 s75, s{S_WAVE}, 30720
        """)

    def g2_dma(self, j):
        a = self.a
        sc = "sc1" if self.fused else ""
        W = f"s[{R_WS}:{R_WS+3}]"
        a(f"s_add_u32 s60, s74, {5120*j}\ns_add_u32 m0, s75, {5120*(j-3)}")
        for nt in range(4):
            a(f"buffer_load_dwordx4 v9, {W}, s60 offen offset:{1024*nt} {sc} lds")
        a(f"s_add_u32 m0, s75, {5120*(j-3)+4096}")
        a(f"buffer_load_dwordx4 v8, {W}, s60 offen {sc} lds")

    def g2_prefetch(self):
        self.g2_addr()
        for j in range(3): self.g2_bload(j)
        for j in range(3, 9): self.g2_dma(j)

    def g2_bload(self, j):
        a = self.a
        sc = "sc1" if self.fused else ""
        W = f"s[{R_WS}:{R_WS+3}]"
        a(f"s_add_u32 s60, s74, {5120*j}")
        for nt in range(5):
            d = self.G2_RB + 20 * (j % 3) + 4 * nt
            if nt < 4: a(f"buffer_load_dwordx4 v[{d}:{d+3}], v9, {W}, s60 offen offset:{1024*nt} {sc}")
            else: a(f"buffer_load_dwordx4 v[{d}:{d+3}], v8, {W}, s60 offen {sc}")

    def g2_aload(self, j):
        a = self.a
        sc = "sc1" if self.fused else ""
        W = f"s[{R_WS}:{R_WS+3}]"
        for i in range(4):
            d = self.G2_A + 16 * (j % 5) + 4 * i
            a(f"buffer_load_dwordx4 v[{d}:{d+3}], v9, {W}, s{76+i} offen offset:{1024*(j%4)} {sc}")
        if j % 4 == 3:
            for i in range(4): a(f"s_add_u32 s{76+i}, s{76+i}, 4096")

    def g2_setup(self):
        a = self.a
        for i in range(4):
            a(f"""
            s_add_u32 s60, s{S_WAVE}, {i}
            s_and_b32 s60, s60, 3
            s_lshl_b32 s61, s{S_RB2}, 2
            s_add_u32 s60, s60, s61
            s_mul_i32 s60, s60, 49152
            s_mul_i32 s61, s{S_WAVE}, {12*1024}
            s_add_u32 s60, s60, s61
            s_add_u32 s{76+i}, s60, {HF}
            """)
        for i in range(80): a(f"v_mov_b32 v{self.G2_ACC+i}, 0")
        a(f"v_add_u32 v10, s75, v9")

    def g2_loop(self, hook=None, hook_at=6):
        a = self.a
        q = ["pre"]
        def issue(tag, n):
            q.extend([tag] * n)
        def wait_for(tags):
            last = max(i for i, t in enumerate(q) if t in tags)
            n = len(q) - 1 - last
            a(f"s_waitcnt vmcnt({min(n,63)})")
        for j in range(5):
            self.g2_aload(j); issue(f"A{j}", 4)
        def bt_read(j, nt):
            d = self.G2_BT + 4 * nt
            a(f"ds_read_b128 v[{d}:{d+3}], v10 offset:{5120*(j-3)+1024*nt}")
        for j in range(12):
            inreg = j < 3 or j >= 9
            if hook and j == hook_at: hook()
            wait_for([f"A{j}", f"B{j}", "pre"])
            if j == 0:
                for nt in range(5): bt_read(3, nt)
            for nt in range(5):
                if inreg:
                    B = self.G2_RB + 20 * (j % 3) + 4 * nt
                else:
                    B = self.G2_BT + 4 * nt
                    a(f"s_waitcnt lgkmcnt({4 if j < 8 else 4-nt})")
                for i in range(4):
                    acc = self.G2_ACC + 16 * nt + 4 * i
                    A = self.G2_A + 16 * (j % 5) + 4 * i
                    a(f"v_mfma_f32_16x16x32_bf16 v[{acc}:{acc+3}], v[{B}:{B+3}], v[{A}:{A+3}], v[{acc}:{acc+3}]")
                if 3 <= j < 8: bt_read(j + 1, nt)
            if j + 5 < 12:
                self.g2_aload(j + 5); issue(f"A{j+5}", 4)
            if j < 3:
                self.g2_bload(j + 9); issue(f"B{j+9}", 5)
            if j == 8:
                self.fin_loads(); issue("X", 10)

    FX = 156; FB = 166
    def fin_loads(self):
        a = self.a
        a(f"""
        v_and_b32 v2, 15, v0
        v_lshrrev_b32 v3, 4, v0
        v_mul_u32_u24 v11, 1280, v2
        v_lshl_add_u32 v11, v3, 3, v11
        s_lshl_b32 s80, s{S_RB2}, 2
        s_add_u32 s80, s80, s{S_WAVE}
        s_mul_i32 s80, s80, {16*1280}
        s_mul_i32 s60, s{S_CB2}, 160
        s_add_u32 s80, s80, s60
        v_lshl_add_u32 v4, v3, 3, s60
        """)
        for nt in range(5):
            a(f"buffer_load_dwordx2 v[{self.FX+2*nt}:{self.FX+2*nt+1}], v11, s[{R_X}:{R_X+3}], s80 offen offset:{32*nt}")
        for nt in range(5):
            a(f"global_load_dwordx2 v[{self.FB+2*nt}:{self.FB+2*nt+1}], v4, s[{P_B2}:{P_B2+1}] offset:{32*nt}")

    def s_tile_dma(self):
        a = self.a
        sc = "sc1" if self.fused else ""
        a(f"""
        v_lshrrev_b32 v2, 3, v0
        v_and_b32 v3, 7, v0
        v_lshlrev_b32 v2, 12, v2
        v_lshl_add_u32 v2, v3, 4, v2
        s_mul_i32 s60, s{S_CB2}, {80*4096}
        s_lshl_b32 s61, s{S_RB2}, 7
        s_add_u32 s60, s60, s61
        s_add_u32 s60, s60, {ST}
        """)
        for t in range(10):
            a(f"s_mov_b32 m0, {AUX+1024*t}")
            a(f"buffer_load_dwordx4 v2, s[{R_WS}:{R_WS+3}], s60 offen {sc} lds")
            if t < 9: a(f"s_add_u32 s60, s60, {8*4096}")
        a("s_waitcnt vmcnt(0)")

    def g2_final(self):
        a = self.a
        ACC = self.G2_ACC
        self.srd(R_OUT, P_OUT, 2621440)
        for i in range(1, 4):
            for nt in range(5):
                acc = ACC + 16 * nt + 4 * i
                a(f"ds_write_b128 v10, v[{acc}:{acc+3}] offset:{5120*(i-1)+1024*nt}")
        for i in range(1, 4):
            a(f"""
            s_sub_u32 s60, s{S_WAVE}, {i}
            s_and_b32 s60, s60, 3
            s_mul_i32 s60, s60, 30720
            s_add_u32 s60, s60, {5120*(i-1)}
            v_add_u32 v{4+i}, s60, v9
            """)
        a(f"""
        v_and_b32 v12, 15, v0
        v_lshrrev_b32 v12, 2, v12
        v_lshl_add_u32 v12, v3, 2, v12
        v_lshlrev_b32 v12, 7, v12
        v_and_b32 v13, 3, v0
        v_lshl_add_u32 v12, v13, 3, v12
        s_lshl_b32 s60, s{S_WAVE}, 5
        s_add_u32 s60, s60, {AUX}
        v_add_u32 v12, s60, v12
        s_waitcnt lgkmcnt(0)
        s_barrier
        """)
        P = 96
        for nt in range(5):
            for i in range(1, 4):
                d = P + 12 * nt + 4 * (i - 1)
                a(f"ds_read_b128 v[{d}:{d+3}], v{4+i} offset:{1024*nt}")
            if nt == 3: a("s_waitcnt lgkmcnt(6)")
        for nt in range(5):
            a(f"ds_read_b64_tr_b16 v[{176+2*nt}:{177+2*nt}], v12 offset:{2048*nt}")
        a("s_waitcnt vmcnt(0)")
        for nt in range(5):
            acc = ACC + 16 * nt; p = P + 12 * nt; t = 190 + 12 * (nt % 2)
            fb = self.FB + 2 * nt; fx = self.FX + 2 * nt; fs = 176 + 2 * nt
            if nt == 0: a("s_waitcnt lgkmcnt(5)")
            a(f"""
            v_lshlrev_b32 v{t}, 16, v{fb}
            v_and_b32 v{t+1}, 0xffff0000, v{fb}
            v_lshlrev_b32 v{t+2}, 16, v{fb+1}
            v_and_b32 v{t+3}, 0xffff0000, v{fb+1}
            v_pk_add_f32 v[{acc}:{acc+1}], v[{acc}:{acc+1}], v[{p}:{p+1}]
            v_pk_add_f32 v[{acc+2}:{acc+3}], v[{acc+2}:{acc+3}], v[{p+2}:{p+3}]
            v_pk_add_f32 v[{p+4}:{p+5}], v[{p+4}:{p+5}], v[{p+8}:{p+9}]
            v_pk_add_f32 v[{p+6}:{p+7}], v[{p+6}:{p+7}], v[{p+10}:{p+11}]
            v_pk_add_f32 v[{acc}:{acc+1}], v[{acc}:{acc+1}], v[{t}:{t+1}]
            v_pk_add_f32 v[{acc+2}:{acc+3}], v[{acc+2}:{acc+3}], v[{t+2}:{t+3}]
            v_pk_add_f32 v[{acc}:{acc+1}], v[{acc}:{acc+1}], v[{p+4}:{p+5}]
            v_pk_add_f32 v[{acc+2}:{acc+3}], v[{acc+2}:{acc+3}], v[{p+6}:{p+7}]
            """)
            for i in range(4): a(f"v_mul_f32 v{t+i}, 0xbfb8aa3b, v{acc+i}")
            for i in range(4): a(f"v_exp_f32 v{t+i}, v{t+i}")
            if nt == 0: a("s_waitcnt lgkmcnt(0)")
            a(f"""
            v_lshlrev_b32 v{t+4}, 16, v{fs}
            v_and_b32 v{t+5}, 0xffff0000, v{fs}
            v_lshlrev_b32 v{t+6}, 16, v{fs+1}
            v_and_b32 v{t+7}, 0xffff0000, v{fs+1}
            """)
            for i in range(4): a(f"v_add_f32 v{t+i}, 1.0, v{t+i}")
            for i in range(4): a(f"v_rcp_f32 v{t+i}, v{t+i}")
            a(f"""
            v_pk_mul_f32 v[{t+4}:{t+5}], v[{t+4}:{t+5}], v[{acc}:{acc+1}]
            v_pk_mul_f32 v[{t+6}:{t+7}], v[{t+6}:{t+7}], v[{acc+2}:{acc+3}]
            v_lshlrev_b32 v{t+8}, 16, v{fx}
            v_and_b32 v{t+9}, 0xffff0000, v{fx}
            v_lshlrev_b32 v{t+10}, 16, v{fx+1}
            v_and_b32 v{t+11}, 0xffff0000, v{fx+1}
            v_pk_fma_f32 v[{t+8}:{t+9}], v[{t+4}:{t+5}], v[{t}:{t+1}], v[{t+8}:{t+9}]
            v_pk_fma_f32 v[{t+10}:{t+11}], v[{t+6}:{t+7}], v[{t+2}:{t+3}], v[{t+10}:{t+11}]
            v_cvt_pk_bf16_f32 v{fx}, v{t+8}, v{t+9}
            v_cvt_pk_bf16_f32 v{fx+1}, v{t+10}, v{t+11}
            buffer_store_dwordx2 v[{fx}:{fx+1}], v11, s[{R_OUT}:{R_OUT+3}], s80 offen offset:{32*nt}
            """)

    def misc_init(self):
        self.a(f"""
        v_lshlrev_b32 v2, 2, v0
        v_add_u32 v2, {MISC}, v2
        v_mov_b32 v3, 0
        ds_write_b32 v2, v3
        """)


HEADER = open("cdna_kernels/" + NAME + ".s.ref").read().split("; Override launch")[0]

def kernel_text(label, body):
    return f""".text
.globl {label}
.p2align 8
.type {label},@function
{label}:
{body}
"""
def desc(label, vgpr=256):
    return f""".section .rodata,"a"
.p2align 6
.amdhsa_kernel {label}
  .amdhsa_next_free_vgpr {vgpr}
  .amdhsa_next_free_sgpr 102
  .amdhsa_accum_offset {vgpr}
  .amdhsa_group_segment_fixed_size 0
  .amdhsa_kernarg_size 120
  .amdhsa_user_sgpr_count 2
  .amdhsa_user_sgpr_kernarg_segment_ptr 1
  .amdhsa_system_sgpr_workgroup_id_x 1
.end_amdhsa_kernel
"""
```

```python
import sys, os
from parts import *
E = lambda k, d=0: int(os.environ.get(k, d))

class Fused(Gen):
    def build_fused(self):
        a = self.a
        L = self.L
        st = 2 if self.stamps else 0
        NE = E('NE', 2)
        slp = ('s_sleep %d' % PSLEEP) if PSLEEP else ''
        self.prologue()
        self.stamp(0)
        self.ln_loads()
        a(f"s_cmp_ge_u32 s{S_WAVE}, 4\ns_cbranch_scc1 {L('aux0')}")
        if E('GP'): a(f"s_setprio {E('GP')}")
        self.g1_b1_loads()
        self.misc_init()
        self.g1_dma()
        self.g1_dma_issue(0, NE)
        a(f"s_waitcnt vmcnt({6+3*NE})")
        self.stamp(1)
        self.ln_math()
        a("s_waitcnt lgkmcnt(0)\ns_barrier")
        self.g1_dma_issue(NE, 10)
        a(f"s_waitcnt vmcnt(30)")
        self.g1_prep()
        self.g2_addr()
        a(f"s_waitcnt vmcnt(0)")
        self.lds_set(M_W1, S_WAVE, tmp=(2, 3))
        self.stamp(2)
        self.get_nonce("gn", tmp=2)
        a(f"s_cmp_lg_u32 s{S_WAVE}, 0\ns_cbranch_scc1 {L('nopl')}")
        a(f"s_mul_i32 s66, s{S_RB}, {16*FSTR}\ns_add_u32 s66, s66, {FLN}")
        self.poll_flags("pln", 66, 16)
        self.lds_set(M_LN, None, tmp=(2, 3))
        a(f"{L('nopl')}:")
        self.lds_wait_all(M_LN, 1, "lnw", tmp=2)
        self.stamp(3)
        self.g1_aloads()
        self.lds_set(M_LN + 4, None, tmp=(2, 3))
        self.lds_wait_all(M_W1, 4, "w1w", tmp=2)
        self.stamp(4)
        def hook():
            self.lds_wait_all(M_FW, 1, "fww", tmp=2)
            for j in range(3): self.g2_bload(j)
        self.g1_loop(extra_vm=st, hook=hook, hook_at=E('HOOK', 12), hook_n=15)
        self.stamp(5)
        self.G1_OUT = 216
        self.g1_epilogue()
        self.lds_set(M_G1D, S_WAVE, tmp=(2, 3))
        a(f"""
        s_waitcnt vmcnt(0)
        v_mov_b32 v2, {M_HCNT}
        v_mov_b32 v3, 1
        s_mov_b64 exec, 1
        ds_add_rtn_u32 v4, v2, v3
        s_mov_b64 exec, -1
        s_lshl_b32 s66, s{S_RB}, 4
        s_add_u32 s66, s66, s{S_CB}
        s_mul_i32 s66, s66, {FHS}
        s_add_u32 s66, s66, {FH}
        s_waitcnt lgkmcnt(0)
        s_nop 1
        v_readfirstlane_b32 s60, v4
        s_cmp_lg_u32 s60, 3
        s_cbranch_scc1 {L('nofh')}
        """)
        self.store_flag(66)
        self.lds_set(M_HP, None, tmp=(2, 3))
        a(f"{L('nofh')}:")
        self.stamp(6)
        if E('HP'): self.lds_wait_all(M_HP, 1, "g1d", tmp=2)
        else: self.lds_wait_all(M_G1D, 4, "g1d", tmp=2)
        for j in range(3, 9): self.g2_dma(j)
        self.g2_setup()
        a(f"s_lshl_b32 s66, s{S_WAVE}, 4\ns_add_u32 s66, s66, {M_FH}")
        self.lds_wait_all("s66", 1, "fhw", tmp=2)
        self.stamp(7)
        self.g2_loop(hook=lambda: self.lds_set(M_J6, None, tmp=(2, 3)), hook_at=E('J6', 6))
        self.stamp(8)
        self.g2_final()
        if self.stamps: a("s_waitcnt vmcnt(0)")
        self.stamp(9)
        a(f"s_endpgm\n{L('aux0')}:")
        a.clear_hist()
        a("s_setprio 3")
        a(f"s_sub_u32 s60, s{S_WAVE}, 4\ns_cmp_ge_u32 s60, s{S_NCH}\ns_cbranch_scc1 {L('aux0n')}")
        self.kg_loads()
        self.ln_pub_addr()
        a(f"s_waitcnt vmcnt(14)\ns_branch {L('ln')}\n{L('aux0n')}:")
        a(f"s_cmp_lg_u32 s{S_WAVE}, 6\ns_cbranch_scc1 {L('aux0r')}")
        self.w2_loads()
        self.ln_pub_addr()
        a(f"s_waitcnt vmcnt(20)\ns_branch {L('ln')}\n{L('aux0r')}:")
        a(f"""
        s_cmp_lg_u32 s2, 0
        s_cbranch_scc1 {L('aux0w')}
        s_cmp_lg_u32 s{S_WAVE}, 7
        s_cbranch_scc1 {L('aux0w')}
        s_memrealtime s[62:63]
        v_mov_b32 v3, 0
        s_waitcnt lgkmcnt(0)
        s_or_b32 s61, s62, 1
        v_mov_b32 v2, s61
        s_mov_b64 exec, 1
        global_store_dword v3, v2, s[{P_DBG}:{P_DBG+1}] sc1
        s_mov_b64 exec, -1
        {L('aux0w')}:
        """)
        self.ln_pub_addr()
        a(f"""
        s_waitcnt vmcnt(0)
        {L('ln')}:
        """)
        self.stamp(1)
        self.ln_math()
        a("s_waitcnt lgkmcnt(0)\ns_barrier")
        self.ln_publish()
        self.lds_set(M_LNR, 84, tmp=(2, 3))
        a(f"s_cmp_eq_u32 s{S_WAVE}, 7\ns_cbranch_scc1 {L('svc')}")
        a(f"""
        s_waitcnt vmcnt(0)
        v_mov_b32 v2, {M_LNCNT}
        v_mov_b32 v3, 1
        s_mov_b64 exec, 1
        ds_add_u32 v2, v3
        s_mov_b64 exec, -1
        """)
        self.stamp(2)
        a(f"s_sub_u32 s60, s{S_WAVE}, 4\ns_cmp_ge_u32 s60, s{S_NCH}\ns_cbranch_scc1 {L('noch')}")
        a("s_setprio 0")
        self.lds_wait_all(M_LNR, 4, "lnr", tmp=2)
        self.kgen()
        self.stamp(3)
        self.expand()
        self.get_nonce("cn", tmp=2)
        self.lds_wait_all(M_U, 1, "uw", tmp=2)
        self.stamp(4)
        self.conv()
        self.lds_set(M_CD, 70, tmp=(2, 3))
        self.stamp(5)
        a(f"s_mul_i32 s66, s71, {FSTR}\ns_add_u32 s66, s66, {FS}\ns_waitcnt vmcnt(0)")
        self.store_flag(66)
        self.stamp(6)
        a(f"s_endpgm\n{L('noch')}:")
        a.clear_hist()
        a(f"s_cmp_lg_u32 s{S_WAVE}, 6\ns_cbranch_scc1 {L('end')}")
        self.w2_retile()
        self.get_nonce("wn", tmp=2)
        a(f"s_mul_i32 s66, s43, {FSTR}\ns_add_u32 s66, s66, {FW}\ns_waitcnt vmcnt(0)")
        self.store_flag(66)
        self.stamp(7)
        a(f"s_endpgm\n{L('svc')}:")
        a.clear_hist()
        a(f"""
        v_mov_b32 v3, 0
        s_mov_b32 s64, 0
        {L('np')}:
        global_load_dword v2, v3, s[{P_DBG}:{P_DBG+1}] sc1
        s_add_u32 s64, s64, 1
        s_waitcnt vmcnt(0)
        s_nop 1
        v_readfirstlane_b32 s{S_NONCE}, v2
        s_cmp_gt_u32 s64, 0x8000
        s_cbranch_scc1 {L('npd')}
        s_cmp_lg_u32 s{S_NONCE}, 0
        s_cbranch_scc1 {L('npd')}
        {slp}
        s_branch {L('np')}
        {L('npd')}:
        v_mov_b32 v2, s{S_NONCE}
        v_mov_b32 v3, {M_NONCE}
        ds_write_b32 v3, v2
        v_mov_b32 v3, {M_LNCNT}
        s_mov_b32 s64, 0
        {L('lc')}:
        ds_read_b32 v2, v3
        s_add_u32 s64, s64, 1
        s_waitcnt lgkmcnt(0)
        v_readfirstlane_b32 s60, v2
        s_cmp_gt_u32 s64, 0x100000
        s_cbranch_scc1 {L('lcd')}
        s_cmp_lt_u32 s60, 3
        s_cbranch_scc1 {L('lc')}
        {L('lcd')}:
        s_mul_i32 s66, s2, {FSTR}
        s_add_u32 s66, s66, {FLN}
        """)
        self.store_flag(66)
        self.stamp(2)
        self.lds_wait_all(M_LN, 2, "slw", tmp=2)
        a(f"s_cmp_eq_u32 s{S_NCH}, 0\ns_cbranch_scc1 {L('nou')}\ns_mov_b32 s66, {FLN}")
        self.poll_flags("pla", 66, 64, nloads=4)
        self.stamp(3)
        self.u_gather()
        self.lds_set(M_U, None, tmp=(2, 3))
        a(f"{L('nou')}:")
        self.stamp(4)
        a(f"s_lshr_b32 s66, s{S_CB2}, 2\ns_mul_i32 s66, s66, {FSTR}\ns_add_u32 s66, s66, {FW}")
        self.poll_flags("pfw", 66, 48, lstride=2*FSTR)
        self.lds_set(M_FW, None, tmp=(2, 3))
        self.stamp(5)
        self.lds_wait_all(M_HP, 1, "hpw", tmp=2)
        a(f"""
        s_lshr_b32 s66, s{S_RB2}, 1
        s_mul_i32 s66, s66, {16*FHS}
        s_add_u32 s66, s66, {FH}
        v_mul_u32_u24 v2, {FHS}, v0
        v_lshlrev_b32 v4, 2, v0
        v_add_u32 v4, {M_FH}, v4
        s_mov_b64 exec, 0xffff
        s_mov_b32 s64, 0
        {L('pfh')}:
        buffer_load_dword v3, v2, s[{R_WS}:{R_WS+3}], s66 offen sc1
        s_add_u32 s64, s64, 1
        s_waitcnt vmcnt(0)
        v_cmp_eq_u32 vcc, s{S_NONCE}, v3
        v_cndmask_b32 v3, 0, 1, vcc
        v_and_b32_dpp v3, v3, v3 quad_perm:[1,0,3,2] row_mask:0xf bank_mask:0xf
        v_and_b32_dpp v3, v3, v3 quad_perm:[2,3,0,1] row_mask:0xf bank_mask:0xf
        ds_write_b32 v4, v3
        s_cmp_gt_u32 s64, 0x8000
        s_cbranch_scc1 {L('pfhx')}
        s_cmp_eq_u32 vcc_lo, 0xffff
        s_cbranch_scc1 {L('pfhd')}
        s_sleep {E('HSLEEP', 4)}
        s_branch {L('pfh')}
        {L('pfhx')}:
        v_mov_b32 v3, 1
        ds_write_b32 v4, v3
        {L('pfhd')}:
        s_mov_b64 exec, -1
        """)
        self.stamp(6)
        self.lds_wait_all(M_J6, 1, "j6w", tmp=2)
        a(f"s_mul_i32 s66, s{S_CB2}, {80*FSTR}\ns_add_u32 s66, s66, {FS}")
        self.poll_flags("pfs", 66, 40, nloads=2, istride=40*FSTR)
        a(f"s_cmp_eq_u32 s{S_NCH}, 0\ns_cbranch_scc1 {L('nocd')}")
        self.lds_wait_all(M_CD, 1, "cdw", tmp=2)
        a(f"{L('nocd')}:")
        self.stamp(7)
        self.s_tile_dma()
        self.stamp(8)
        a("s_barrier")
        a(f"{L('end')}:\ns_endpgm")

if __name__ == "__main__":
    path = sys.argv[1]
    opts = sys.argv[2:]
    g = Fused("fused", "stamps" in opts)
    g.build_fused()
    lab = NAME + "_kernel"
    txt = HEADER + f"; @launch grid=(256,1,1) block=(512,1,1) lds={LDS_TOTAL}\n" + '.amdgcn_target "amdgcn-amd-amdhsa--gfx950"\n' + kernel_text(lab, g.a.text()) + desc(lab)
    open(path, "w").write(txt)
```

```python
import re

TRANS = ("v_exp_f32", "v_log_f32", "v_rcp_f32", "v_rsq_f32", "v_sqrt_f32", "v_sin_f32", "v_cos_f32")

def _regs(tok):
    tok = tok.strip()
    neg = tok.lstrip("-")
    if neg.startswith("abs(") or neg.startswith("|"):
        neg = neg.replace("abs(", "").replace(")", "").replace("|", "")
    m = re.fullmatch(r"([vsa])(\d+)", neg)
    if m:
        return {m.group(1) + m.group(2)}
    m = re.fullmatch(r"([vsa])\[(\d+):(\d+)\]", neg)
    if m:
        return {m.group(1) + str(i) for i in range(int(m.group(2)), int(m.group(3)) + 1)}
    if neg in ("vcc", "exec", "m0", "vcc_lo", "vcc_hi", "exec_lo", "exec_hi"):
        return {neg.split("_")[0]}
    return set()

class Ins:
    def __init__(self, text):
        self.text = text
        t = text.split(";")[0].strip()
        parts = t.split(None, 1)
        self.op = parts[0]
        ops = []
        if len(parts) > 1:
            depth = 0; cur = ""
            for ch in parts[1]:
                if ch == "[": depth += 1
                if ch == "]": depth -= 1
                if ch == "," and depth == 0:
                    ops.append(cur); cur = ""
                else:
                    cur += ch
            ops.append(cur)
        self.mods = ""
        if ops:
            last = ops[-1].strip().split()
            if last:
                ops[-1] = last[0]
                self.mods = " ".join(last[1:])
        self.ops = [o.strip() for o in ops]
        op = self.op
        self.is_mfma = op.startswith("v_mfma")
        self.is_valu = op.startswith("v_") and not self.is_mfma
        self.is_trans = any(op.startswith(x) for x in TRANS)
        self.is_dpp = ("_dpp" in op) or ("quad_perm" in self.mods) or ("row_" in self.mods)
        self.is_sdwa = "_sdwa" in op
        self.is_vmem = op.startswith(("buffer_", "global_", "flat_"))
        self.is_ds = op.startswith("ds_")
        self.is_salu = op.startswith("s_")
        self.is_lds_dma = self.is_vmem and (" lds" in (" " + self.mods) or "load_lds" in op)
        self.w = set(); self.r = set()
        o = self.ops
        if self.is_mfma:
            self.w = _regs(o[0]); self.r = _regs(o[1]) | _regs(o[2]) | _regs(o[3])
            self.srcc = _regs(o[3]); self.srcab = _regs(o[1]) | _regs(o[2])
            self.passes = 4 if "16x16x32" in op else 8
        elif self.is_valu:
            if op.startswith("v_cmp"):
                self.w = _regs(o[0]); rest = o[1:]
                if op.startswith("v_cmpx"): self.w |= {"exec"}
            elif op.startswith(("v_add_co", "v_sub_co", "v_addc_co", "v_subb_co", "v_subrev_co")):
                self.w = _regs(o[0]) | _regs(o[1]); rest = o[2:]
            elif op.startswith("v_permlane") and "swap" in op:
                self.w = _regs(o[0]) | _regs(o[1]); rest = o
            elif op == "v_nop":
                rest = []
            else:
                self.w = _regs(o[0]); rest = o[1:]
            for x in rest: self.r |= _regs(x)
            if op.startswith(("v_fmac", "v_dot2c", "v_writelane")) or self.is_dpp or self.is_sdwa:
                self.r |= _regs(o[0])
        elif self.is_vmem:
            if "store" in op or ("atomic" in op):
                for x in o: self.r |= _regs(x)
                self.store_data = set()
                if op.endswith(("x4", "x3")):
                    self.store_data = _regs(o[0]) if op.startswith("buffer") else _regs(o[1])
            elif self.is_lds_dma:
                for x in o: self.r |= _regs(x)
                self.r |= {"m0"}
            elif op.startswith(("buffer_wbl2", "buffer_inv")):
                pass
            else:
                self.w = _regs(o[0])
                for x in o[1:]: self.r |= _regs(x)
                if "d16" in op: self.r |= self.w
        elif self.is_ds:
            if op.startswith(("ds_read", "ds_bpermute", "ds_permute", "ds_swizzle")) or "_rtn" in op:
                self.w = _regs(o[0])
                for x in o[1:]: self.r |= _regs(x)
            else:
                for x in o: self.r |= _regs(x)
        elif self.is_salu:
            if op.startswith(("s_cmp", "s_cbranch", "s_branch", "s_waitcnt", "s_barrier", "s_nop", "s_sleep", "s_endpgm", "s_setprio", "s_bitcmp")):
                for x in o: self.r |= _regs(x)
            else:
                if o:
                    self.w = _regs(o[0])
                    for x in o[1:]: self.r |= _regs(x)
                if "saveexec" in op: self.w |= {"exec"}; self.r |= {"exec"}
        if op == "s_nop":
            self.states = int(o[0], 0) + 1
        else:
            self.states = 1

def need(prev, cur):
    n = 0
    pv = {x for x in prev.w if x[0] in "va" and x not in ("vcc",)}
    ps = {x for x in prev.w if x[0] == "s" or x == "vcc"}
    if prev.is_valu:
        if cur.is_mfma and (pv & cur.r): n = max(n, 2)
        if cur.is_valu and cur.is_dpp and (pv & cur.r): n = max(n, 2)
        if cur.op.startswith(("v_readlane", "v_readfirstlane")) and (pv & cur.r): n = max(n, 1)
        if cur.op.startswith("v_permlane") and (pv & cur.r): n = max(n, 2)
        if prev.is_trans and cur.is_valu and (pv & cur.r): n = max(n, 1)
        if prev.is_trans and cur.is_mfma and (pv & cur.r): n = max(n, 2)
        if prev.is_sdwa and cur.is_valu and (pv & (cur.r | cur.w)): n = max(n, 1)
        if ps:
            if cur.is_valu and (ps & cur.r): n = max(n, 2)
            if cur.op.startswith(("v_readlane", "v_writelane")) and (ps & cur.r): n = max(n, 4)
            if cur.is_vmem and (ps & cur.r): n = max(n, 5)
            if cur.is_salu and (ps & cur.r): n = max(n, 2)
        if "exec" in prev.w:
            if cur.is_mfma: n = max(n, 4)
            if cur.is_dpp: n = max(n, 5)
            if cur.op.startswith(("v_readlane", "v_readfirstlane", "v_writelane", "v_permlane")): n = max(n, 4)
    if prev.is_mfma:
        p = prev.passes
        d = prev.w
        if cur.is_mfma:
            if d & cur.srcab: n = max(n, 8 if p == 4 else 12)
            if (d & cur.srcc) and not (d == cur.srcc and cur.passes == p): n = max(n, 6 if p == 4 else 10)
            if (d & cur.w) and not (d == cur.srcc) : n = max(n, 8 if p == 4 else 12)
        elif cur.is_valu or cur.is_vmem or cur.is_ds:
            if d & (cur.r | cur.w): n = max(n, 8 if p == 4 else 12)
            if cur.is_valu and (prev.srcc & cur.w): n = max(n, 3 if p == 4 else 7)
    if prev.op.startswith("v_dot"):
        d = prev.w
        if cur.op == prev.op:
            srcab = set()
            for x in cur.ops[1:3]: srcab |= _regs(x)
            if d & srcab: n = max(n, 3)
        elif d & (cur.r | cur.w): n = max(n, 3)
    if prev.is_salu and "m0" in prev.w and (cur.is_lds_dma or "addtid" in cur.op): n = max(n, 1)
    if prev.is_vmem and getattr(prev, "store_data", None):
        if (cur.is_valu or cur.is_mfma) and (prev.store_data & cur.w): n = max(n, 2)
        elif (prev.store_data & cur.w): n = max(n, 1)
    if prev.is_ds and prev.op.startswith(("ds_write_b128", "ds_write_b96", "ds_write2_b64")):
        pass
    return n

class Asm:
    def __init__(self):
        self.lines = []
        self.hist = []
        self.uid = 0
    def raw(self, s):
        self.lines.append(s)
    def comment(self, s):
        self.lines.append("    ; " + s)
    def label(self, name):
        self.lines.append(name + ":")
    def newlabel(self, p="L"):
        self.uid += 1
        return f"{p}_{self.uid}"
    def __call__(self, text):
        for t in text.strip().split("\n"):
            t = t.strip()
            if not t or t.startswith(";"):
                if t: self.lines.append("    " + t)
                continue
            if t.endswith(":"):
                self.label(t[:-1]); continue
            if t.startswith("."):
                self.lines.append(t); continue
            ins = Ins(t)
            dist = 0; req = 0
            for p in reversed(self.hist):
                k = need(p, ins) - dist
                req = max(req, k)
                dist += p.states
                if dist >= 20: break
            if req > 0:
                nop = Ins(f"s_nop {req-1}")
                self.lines.append(f"    s_nop {req-1}")
                self.hist.append(nop)
            self.lines.append("    " + t)
            self.hist.append(ins)
            self.hist = self.hist[-24:]
    def fence(self, n=12):
        self(f"s_nop {min(n,16)-1}")
    def clear_hist(self):
        self.hist = []
    def text(self):
        return "\n".join(self.lines) + "\n"

def vr(a, n=1):
    return f"v{a}" if n == 1 else f"v[{a}:{a+n-1}]"
def sr(a, n=1):
    return f"s{a}" if n == 1 else f"s[{a}:{a+n-1}]"
```

```python
import sys
from asmlib import Asm, vr, sr

NAME = "recurrent_scan__ssm_conv_s4d__dense_activation_squared_relu__prompt"
XF = 0x0; XT = 0x280000; HF = 0x500000; W2F = 0xB00000; ST = 0xD00000
FLG = 0xF80000; STAMP = 0x1000000; WS_SIZE = 0x1100000
import os
FSTR = int(os.environ.get('FSTR','16'))
PSLEEP = int(os.environ.get('PSLEEP','0'))
LSLEEP = int(os.environ.get('LSLEEP','0'))
FHS = int(os.environ.get('FHS','64'))
FLN = FLG; FH = FLG + 0x2000; FW = FLG + 0x10000; FS = FLG + 0x12000
AUX = 122880; RSZ = 12896; K1O = 4160; UO = 8320; UPAD = 480
MISC = AUX + 3 * RSZ
LDS_TOTAL = 163840
M_LNCNT = MISC; M_W1 = MISC + 16; M_G1D = MISC + 32; M_U = MISC + 48; M_NONCE = MISC + 112
M_LNR = MISC + 80; M_LN = MISC + 192; M_LNW = MISC + 240; M_J6 = MISC + 208; M_HP = MISC + 224; M_FW = MISC + 64; M_HCNT = MISC + 68; M_FH = MISC + 256; M_PD = MISC + 128; M_HC = MISC + 144; M_CD = MISC + 96
LNRS = 1296
LNIMG = 122880 - 10752
IMG = [0, 40960, 81920]
P_X, P_LA, P_AI, P_CR, P_CI, P_DT, P_DS = 4, 6, 8, 10, 12, 14, 16
P_W1, P_B1, P_W2, P_B2, P_OUT, P_DBG, P_WS = 20, 22, 24, 26, 28, 30, 32
S_WAVE, S_XCD, S_IDX, S_RB, S_CB, S_RB2, S_CB2, S_NCH, S_CH0 = 34, 35, 36, 37, 38, 39, 40, 41, 42
R_WS, R_X, R_W, R_OUT = 44, 48, 52, 56
S_NONCE = 96
S_LID = 93
LOG2E = 0x3fb8aa3b
INV2PI = 0x3e22f983

class Gen:
    def __init__(self, mode, stamps=False):
        self.a = Asm()
        self.mode = mode
        self.fused = mode == "fused"
        self.stamps = stamps
        self.sel = set()
        self.pfx = mode

    def L(self, n):
        return f"{self.pfx}_{n}"

    def stamp(self, slot, q=False):
        if slot not in self.sel: return
        if q: self.vq += ['st'] * 2
        a = self.a
        a(f"""
        s_memrealtime s[98:99]
        s_memtime s[94:95]
        s_lshl_b32 s100, s2, 3
        s_add_u32 s100, s100, s{S_WAVE}
        s_lshl_b32 s100, s100, 7
        s_add_u32 s100, s100, {STAMP + slot*8}
        s_waitcnt lgkmcnt(0)
        v_mov_b32 v1, s98
        s_mov_b64 s[98:99], exec
        s_mov_b64 exec, 1
        buffer_store_dword v1, off, s[{R_WS}:{R_WS+3}], s100
        v_mov_b32 v1, s94
        buffer_store_dword v1, off, s[{R_WS}:{R_WS+3}], s100 offset:4
        s_mov_b64 exec, s[98:99]
        """)

    def srd(self, r, p, size):
        self.a(f"""
        s_mov_b32 s{r}, s{p}
        s_and_b32 s{r+1}, s{p+1}, 0xffff
        s_mov_b32 s{r+2}, {size}
        s_mov_b32 s{r+3}, 0x00020000
        """)

    def prologue(self):
        a = self.a
        a(f"""
        s_cmp_ge_u32 s2, 256
        s_cbranch_scc1 {self.L('end')}
        s_load_dwordx16 s[4:19], s[0:1], 0
        s_load_dwordx8 s[20:27], s[0:1], 64
        s_load_dwordx4 s[28:31], s[0:1], 96
        s_load_dwordx2 s[32:33], s[0:1], 112
        v_lshrrev_b32 v1, 6, v0
        v_and_b32 v0, 63, v0
        s_and_b32 s{S_XCD}, s2, 7
        v_readfirstlane_b32 s{S_WAVE}, v1
        s_lshr_b32 s{S_IDX}, s2, 3
        s_and_b32 s60, s{S_XCD}, 3
        s_lshl_b32 s60, s60, 2
        s_and_b32 s61, s{S_IDX}, 3
        s_add_u32 s{S_RB}, s60, s61
        s_lshr_b32 s60, s{S_XCD}, 2
        s_lshl_b32 s60, s60, 3
        s_lshr_b32 s{S_CB2}, s{S_IDX}, 2
        s_add_u32 s{S_CB}, s60, s{S_CB2}
        s_lshl_b32 s60, s{S_XCD}, 2
        s_add_u32 s{S_RB2}, s60, s61
        ; conv channels: g = idx/3, pos = idx%3
        s_mul_i32 s60, s{S_IDX}, 43
        s_lshr_b32 s60, s60, 7
        s_mul_i32 s61, s60, 3
        s_sub_u32 s61, s{S_IDX}, s61
        s_mul_i32 s62, s{S_XCD}, 80
        s_lshl_b32 s63, s60, 3
        s_add_u32 s62, s62, s63
        s_mul_i32 s63, s61, 3
        s_add_u32 s{S_CH0}, s62, s63
        s_cmp_eq_u32 s61, 2
        s_cselect_b32 s{S_NCH}, 2, 3
        s_cmp_ge_u32 s{S_IDX}, 30
        s_cselect_b32 s{S_NCH}, 0, s{S_NCH}
        s_sub_u32 s61, s{S_IDX}, 20
        s_cselect_b32 s60, s61, s60
        """)
        a.lines.pop(); a.lines.pop()
        a(f"""
        s_sub_u32 s61, s{S_IDX}, 20
        s_cmp_ge_u32 s{S_IDX}, 30
        s_cselect_b32 s60, s61, s60
        s_mul_i32 s61, s{S_XCD}, 12
        s_add_u32 s43, s61, s60
        s_lshl_b32 s{S_LID}, s{S_RB}, 4
        s_add_u32 s{S_LID}, s{S_LID}, s{S_CB}
        v_lshlrev_b32 v2, 3, v0
        v_add_u32 v2, {MISC}, v2
        v_mov_b32 v4, 0
        v_mov_b32 v5, 0
        ds_write_b64 v2, v[4:5]
        s_waitcnt lgkmcnt(0)
        s_barrier
        """)
        self.srd(R_WS, P_WS, WS_SIZE)
        self.srd(R_X, P_X, 2621440)

    def rowaddr(self, dst, row, t):
        self.a(f"""
        v_mul_u32_u24 v{t}, 11, v{row}
        v_lshrrev_b32 v{t}, 5, v{t}
        v_mul_u32_u24 v{dst}, {LNRS}, v{row}
        v_mad_u32_u24 v{dst}, v{t}, s97, v{dst}
        v_lshrrev_b32 v{t}, 1, v{t}
        v_mul_u32_u24 v{t}, 1440, v{t}
        v_add3_u32 v{dst}, v{dst}, v{t}, s61
        """)

    def ln_loads(self):
        a = self.a
        a(f"""
        s_lshl_b32 s60, s{S_LID}, 3
        s_lshl_b32 s61, s{S_WAVE}, 1
        s_add_u32 s60, s60, s61
        s_mul_i32 s60, s60, 1280
        v_lshrrev_b32 v2, 5, v0
        v_and_b32 v3, 31, v0
        v_mul_u32_u24 v1, 1280, v2
        v_lshl_add_u32 v1, v3, 3, v1
        """)
        for i in range(5):
            a(f"buffer_load_dwordx2 v[{100+2*i}:{101+2*i}], v1, s[{R_X}:{R_X+3}], s60 offen offset:{256*i}")

    def reduce32(self, v, t):
        a = self.a
        a(f"""
        v_add_f32_dpp v{v}, v{v}, v{v} quad_perm:[1,0,3,2] row_mask:0xf bank_mask:0xf
        v_add_f32_dpp v{v}, v{v}, v{v} quad_perm:[2,3,0,1] row_mask:0xf bank_mask:0xf
        v_add_f32_dpp v{v}, v{v}, v{v} row_half_mirror row_mask:0xf bank_mask:0xf
        v_add_f32_dpp v{v}, v{v}, v{v} row_mirror row_mask:0xf bank_mask:0xf
        v_mov_b32 v{t}, v{v}
        v_permlane16_swap_b32 v{v}, v{t}
        v_add_f32 v{v}, v{v}, v{t}
        """)

    def ln_math(self):
        a = self.a
        X = 110; Dd = 130; S = 150
        for i in range(10):
            a(f"v_lshlrev_b32 v{X+2*i}, 16, v{100+i}")
            a(f"v_and_b32 v{X+1+2*i}, 0xffff0000, v{100+i}")
        P = lambda r: f"v[{r}:{r+1}]"
        a(f"v_pk_add_f32 {P(S)}, {P(X)}, {P(X+2)}\nv_pk_add_f32 {P(S+2)}, {P(X+4)}, {P(X+6)}")
        for i in range(4, 10):
            a(f"v_pk_add_f32 {P(S+2*(i%2))}, {P(S+2*(i%2))}, {P(X+2*i)}")
        a(f"v_pk_add_f32 {P(S)}, {P(S)}, {P(S+2)}\nv_add_f32 v{S}, v{S}, v{S+1}")
        self.reduce32(S, S + 1)
        a(f"v_mul_f32 v{S+4}, 0x3acccccd, v{S}")
        for i in range(10):
            a(f"v_pk_add_f32 {P(Dd+2*i)}, {P(X+2*i)}, {P(S+4)} op_sel_hi:[1,0] neg_lo:[0,1] neg_hi:[0,1]")
        a(f"v_pk_mul_f32 {P(S)}, {P(Dd)}, {P(Dd)}\nv_pk_mul_f32 {P(S+2)}, {P(Dd+2)}, {P(Dd+2)}")
        for i in range(2, 10):
            a(f"v_pk_fma_f32 {P(S+2*(i%2))}, {P(Dd+2*i)}, {P(Dd+2*i)}, {P(S+2*(i%2))}")
        a(f"v_pk_add_f32 {P(S)}, {P(S)}, {P(S+2)}\nv_add_f32 v{S}, v{S}, v{S+1}")
        self.reduce32(S, S + 1)
        a(f"""
        v_mul_f32 v{S+5}, 0x3acccccd, v{S}
        v_cvt_pk_bf16_f32 v{S}, v{S+4}, v{S+5}
        v_lshlrev_b32 v{S+4}, 16, v{S}
        v_and_b32 v{S+2}, 0xffff0000, v{S}
        v_add_f32 v{S+2}, 0x3727c5ac, v{S+2}
        v_cvt_pk_bf16_f32 v{S+2}, v{S+2}, v{S+2}
        v_and_b32 v{S+2}, 0xffff0000, v{S+2}
        v_sqrt_f32 v{S+2}, v{S+2}
        """)
        for i in range(10):
            a(f"v_pk_add_f32 {P(Dd+2*i)}, {P(X+2*i)}, {P(S+4)} op_sel_hi:[1,0] neg_lo:[0,1] neg_hi:[0,1]")
            if i == 1:
                a(f"v_cvt_pk_bf16_f32 v{S+2}, v{S+2}, v{S+2}\nv_and_b32 v{S+2}, 0xffff0000, v{S+2}\nv_rcp_f32 v{S+2}, v{S+2}")
        for i in range(10):
            a(f"v_cvt_pk_bf16_f32 v{100+i}, v{Dd+2*i}, v{Dd+1+2*i}")
        for i in range(10):
            a(f"v_lshlrev_b32 v{X+2*i}, 16, v{100+i}")
            a(f"v_and_b32 v{X+1+2*i}, 0xffff0000, v{100+i}")
        for i in range(10):
            a(f"v_pk_mul_f32 {P(X+2*i)}, {P(X+2*i)}, {P(S+2)} op_sel_hi:[1,0]")
        for i in range(5):
            a(f"v_cvt_pk_bf16_f32 v{100+2*i}, v{X+4*i}, v{X+4*i+1}")
            a(f"v_cvt_pk_bf16_f32 v{101+2*i}, v{X+4*i+2}, v{X+4*i+3}")
            a(f"ds_write_b64 v98, v[{100+2*i}:{101+2*i}] offset:{256*i}")

    def ln_pub_addr(self):
        a = self.a
        a(f"""
        s_mov_b32 s84, s{S_WAVE}
        s_mov_b32 s97, {RSZ - 3*LNRS}
        s_mov_b32 s61, {AUX + UO + UPAD}
        s_lshl_b32 s60, s{S_WAVE}, 1
        v_lshrrev_b32 v2, 5, v0
        v_add_u32 v2, s60, v2
        """)
        self.rowaddr(98, 2, 5)
        a(f"""
        v_and_b32 v3, 31, v0
        v_lshl_add_u32 v98, v3, 3, v98
        s_lshl_b32 s60, s84, 7
        s_add_u32 s61, s61, s60
        v_and_b32 v1, 7, v0
        """)
        self.rowaddr(156, 1, 5)
        a(f"""
        v_lshrrev_b32 v2, 3, v0
        v_lshl_add_u32 v156, v2, 4, v156
        v_lshrrev_b32 v157, 2, v2
        v_and_b32 v5, 3, v2
        v_lshlrev_b32 v157, 10, v157
        v_lshl_add_u32 v157, v5, 8, v157
        v_lshl_add_u32 v157, v1, 4, v157
        v_and_b32 v1, 15, v0
        v_lshrrev_b32 v2, 2, v1
        v_sub_u32 v3, 7, v2
        v_sub_u32 v2, 3, v2
        """)
        self.rowaddr(158, 2, 5)
        self.rowaddr(99, 3, 5)
        a(f"""
        v_and_b32 v1, 3, v0
        v_lshrrev_b32 v2, 4, v0
        v_lshlrev_b32 v1, 3, v1
        v_lshl_add_u32 v1, v2, 5, v1
        v_add_u32 v158, v158, v1
        v_add_u32 v99, v99, v1
        v_lshlrev_b32 v159, 4, v0
        s_lshr_b32 s85, s{S_LID}, 1
        s_mul_i32 s85, s85, 20480
        s_and_b32 s62, s{S_LID}, 1
        s_lshl_b32 s62, s62, 7
        s_add_u32 s85, s85, s62
        s_lshl_b32 s62, s84, 11
        s_add_u32 s85, s85, s62
        s_add_u32 s86, s85, 8192
        s_add_u32 s87, s85, 16384
        s_mul_i32 s88, s{S_LID}, 10240
        s_lshl_b32 s62, s84, 10
        s_add_u32 s88, s88, s62
        s_add_u32 s88, s88, {XT}
        s_add_u32 s89, s88, 4096
        s_add_u32 s90, s88, 6144
        """)

    def ln_publish(self):
        a = self.a
        sc = "" if os.environ.get('V2') else "sc1"
        W = f"s[{R_WS}:{R_WS+3}]"
        l2 = self.L("lnp_xt3"); l3 = self.L("lnp_done")
        a(f"""
        ds_read_b128 v[160:163], v156
        ds_read_b128 v[164:167], v156 offset:512
        ds_read_b128 v[168:171], v156 offset:1024
        ds_read_b64_tr_b16 v[172:173], v99
        ds_read_b64_tr_b16 v[174:175], v158
        ds_read_b64_tr_b16 v[176:177], v99 offset:512
        ds_read_b64_tr_b16 v[178:179], v158 offset:512
        ds_read_b64_tr_b16 v[180:181], v99 offset:768
        ds_read_b64_tr_b16 v[182:183], v158 offset:768
        s_cmp_ge_u32 s84, 2
        s_waitcnt lgkmcnt(7)
        buffer_store_dwordx4 v[160:163], v157, {W}, s85 offen {sc}
        s_waitcnt lgkmcnt(6)
        buffer_store_dwordx4 v[164:167], v157, {W}, s86 offen {sc}
        s_waitcnt lgkmcnt(0)
        buffer_store_dwordx4 v[172:175], v159, {W}, s88 offen {sc}
        buffer_store_dwordx4 v[176:179], v159, {W}, s89 offen {sc}
        s_cbranch_scc1 {l2}
        buffer_store_dwordx4 v[168:171], v157, {W}, s87 offen {sc}
        s_branch {l3}
        {l2}:
        buffer_store_dwordx4 v[180:183], v159, {W}, s90 offen {sc}
        {l3}:
        """)

    def w2_loads(self):
        a = self.a
        self.srd(R_W, P_W2, 1966080)
        a(f"""
        s_lshr_b32 s91, s43, 1
        s_and_b32 s92, s43, 1
        s_mul_i32 s62, s91, {32*1280}
        s_mul_i32 s63, s92, 640
        s_add_u32 s62, s62, s63
        s_add_u32 s63, s62, 320
        """)
        for i in range(10):
            a(f"""
            v_add_u32 v1, {64*i}, v0
            v_mul_u32_u24 v2, 52429, v1
            v_lshrrev_b32 v2, 20, v2
            v_mul_u32_u24 v3, 20, v2
            v_sub_u32 v3, v1, v3
            v_mul_u32_u24 v2, 1280, v2
            v_lshl_add_u32 v2, v3, 4, v2
            buffer_load_dwordx4 v[{64+4*i}:{67+4*i}], v2, s[{R_W}:{R_W+3}], s62 offen
            buffer_load_dwordx4 v[{104+4*i}:{107+4*i}], v2, s[{R_W}:{R_W+3}], s63 offen
            """)

    def w2_retile(self):
        a = self.a
        sc = "sc1"
        base = AUX + 2 * RSZ
        a(f"""
        v_lshlrev_b32 v6, 4, v0
        v_add_u32 v1, {base}, v6
        v_lshrrev_b32 v2, 4, v0
        v_and_b32 v3, 15, v0
        v_lshrrev_b32 v3, 2, v3
        v_lshl_add_u32 v2, v2, 2, v3
        v_mul_u32_u24 v2, 320, v2
        v_and_b32 v3, 3, v0
        v_lshl_add_u32 v2, v3, 3, v2
        v_add_u32 v2, {base}, v2
        s_mul_i32 s62, s92, {4*245760}
        s_mul_i32 s63, s91, 5120
        s_add_u32 s62, s62, s63
        s_add_u32 s62, s62, {W2F}
        v_add_u32 v7, 4096, v6
        """)
        for half in range(2):
            src = 64 + 40 * half
            fr = 144 + 40 * half
            for i in range(10):
                a(f"ds_write_b128 v1, v[{src+4*i}:{src+3+4*i}] offset:{1024*i}")
            a("s_waitcnt lgkmcnt(4)")
            for nt in range(10):
                d = fr + 4 * nt
                a(f"ds_read_b64_tr_b16 v[{d}:{d+1}], v2 offset:{32*nt}")
                a(f"ds_read_b64_tr_b16 v[{d+2}:{d+3}], v2 offset:{32*nt+16*320}")
                if nt == 4: a("s_waitcnt lgkmcnt(4)")
            a("s_waitcnt lgkmcnt(0)")
            for nt in range(10):
                d = fr + 4 * nt
                cbl = half * 2 + nt // 5
                n5 = nt % 5
                if n5 == 0:
                    a(f"s_add_u32 s63, s62, {cbl*245760}")
                if n5 < 4:
                    a(f"buffer_store_dwordx4 v[{d}:{d+3}], v6, s[{R_WS}:{R_WS+3}], s63 offen offset:{1024*n5} {sc}")
                else:
                    a(f"buffer_store_dwordx4 v[{d}:{d+3}], v7, s[{R_WS}:{R_WS+3}], s63 offen {sc}")

    def lds_set(self, addr_imm, sidx=None, val=1, tmp=(2, 3)):
        a = self.a
        if sidx is None:
            a(f"v_mov_b32 v{tmp[0]}, {addr_imm}")
        else:
            a(f"s_lshl_b32 s60, s{sidx}, 2\ns_add_u32 s60, s60, {addr_imm}\nv_mov_b32 v{tmp[0]}, s60")
        a(f"v_mov_b32 v{tmp[1]}, {val}\nds_write_b32 v{tmp[0]}, v{tmp[1]}")

    def lds_wait_all(self, addr_imm, n, name, tmp=2, sleep=None):
        if sleep is None: sleep = LSLEEP
        a = self.a
        lab = self.L(name); done = self.L(name + "_d")
        t = tmp
        a(f"""
        v_mov_b32 v{t}, {addr_imm}
        s_mov_b32 s61, 0
        {lab}:
        ds_read_b128 v[{t+2}:{t+5}], v{t}
        s_add_u32 s61, s61, 1
        s_waitcnt lgkmcnt(0)
        """)
        for k in range(1, n):
            a(f"v_min_u32 v{t+2}, v{t+2}, v{t+2+k}")
        a(f"""
        v_readfirstlane_b32 s60, v{t+2}
        s_cmp_gt_u32 s61, 0x100000
        s_cbranch_scc1 {done}
        s_cmp_lg_u32 s60, 0
        s_cbranch_scc1 {done}
        {'s_sleep %d' % sleep if sleep else ''}
        s_branch {lab}
        {done}:
        """)

    def get_nonce(self, name, tmp=2):
        self.lds_wait_all(M_NONCE, 1, name, tmp)
        self.a(f"s_mov_b32 s{S_NONCE}, s60")

    def poll_flags(self, name, soff, nlanes, nloads=1, lstride=FSTR, istride=64*FSTR, tmp=2, pre=None):
        a = self.a
        lab = self.L(name); done = self.L(name + "_d")
        t = tmp
        a(f"v_mul_u32_u24 v{t}, {lstride}, v0")
        a(f"s_mov_b64 s[62:63], exec")
        if nlanes < 64:
            a(f"s_lshr_b64 exec, -1, {64-nlanes}")
        a(f"s_mov_b32 s64, 0\n{lab}:")
        for i in range(nloads):
            if i * istride < 4096:
                a(f"buffer_load_dword v{t+1+i}, v{t}, s[{R_WS}:{R_WS+3}], s{soff} offen offset:{i*istride} sc1")
            else:
                raise ValueError
        a("s_add_u32 s64, s64, 1\ns_waitcnt vmcnt(0)")
        for i in range(nloads):
            a(f"v_xor_b32 v{t+1+i}, s{S_NONCE}, v{t+1+i}")
        for i in range(1, nloads):
            a(f"v_or_b32 v{t+1}, v{t+1}, v{t+1+i}")
        a(f"""
        v_cmp_ne_u32 vcc, 0, v{t+1}
        s_cmp_gt_u32 s64, 0x8000
        s_cbranch_scc1 {done}
        s_cbranch_vccz {done}
        {'s_sleep %d' % PSLEEP if PSLEEP else ''}
        s_branch {lab}
        {done}:
        s_mov_b64 exec, s[62:63]
        """)

    def store_flag(self, soff, tmp=2):
        self.a(f"""
        v_mov_b32 v{tmp}, s{S_NONCE}
        s_mov_b64 s[62:63], exec
        s_mov_b64 exec, 1
        buffer_store_dword v{tmp}, off, s[{R_WS}:{R_WS+3}], s{soff} sc1
        s_mov_b64 exec, s[62:63]
        """)

    def w1_addr(self, vr_):
        self.srd(R_W, P_W1, 1966080)
        self.a(f"""
        v_lshrrev_b32 v5, 2, v0
        v_and_b32 v6, 3, v0
        v_lshrrev_b32 v7, 2, v5
        v_and_b32 v7, 2, v7
        v_xor_b32 v6, v6, v7
        v_mul_u32_u24 v5, 3072, v5
        v_lshl_add_u32 v{vr_}, v6, 4, v5
        s_mul_i32 s69, s{S_CB}, 192
        """)

    def w1_group(self, vr_):
        a = self.a
        a(f"""
        s_mul_i32 s63, s68, {16*3072}
        s_add_u32 s63, s63, s69
        s_lshl_b32 s62, s68, 10
        s_mov_b32 m0, s62
        s_nop 0
        buffer_load_dwordx4 v{vr_}, s[{R_W}:{R_W+3}], s63 offen lds
        s_add_u32 m0, s62, {IMG[1] - 64}
        s_nop 0
        buffer_load_dwordx4 v{vr_}, s[{R_W}:{R_W+3}], s63 offen offset:64 lds
        s_add_u32 m0, s62, {IMG[2] - 128}
        s_nop 0
        buffer_load_dwordx4 v{vr_}, s[{R_W}:{R_W+3}], s63 offen offset:128 lds
        """)

    G1_ACC = 16; G1_B = 48; G1_B1 = 80; G1_A = 96
    def g1_b1_loads(self):
        a = self.a
        a(f"""
        v_lshrrev_b32 v5, 4, v0
        v_lshlrev_b32 v5, 3, v5
        s_mul_i32 s60, s{S_CB}, 192
        v_add_u32 v5, s60, v5
        """)
        for t in range(6):
            a(f"global_load_dwordx2 v[{self.G1_B1+2*t}:{self.G1_B1+2*t+1}], v5, s[{P_B1}:{P_B1+1}] offset:{32*t}")

    def acc_init(self, p):
        r = []
        for k in range(2):
            for lt in range(2):
                d = self.G1_ACC + 16 * (p % 2) + 8 * k + 4 * lt
                s_ = self.G1_B1 + 2 * (2 * p + k)
                r += [f"v_lshlrev_b32 v{d}, 16, v{s_}", f"v_and_b32 v{d+1}, 0xffff0000, v{s_}",
                      f"v_lshlrev_b32 v{d+2}, 16, v{s_+1}", f"v_and_b32 v{d+3}, 0xffff0000, v{s_+1}"]
        return r

    def g1_prep(self):
        a = self.a
        for x in self.acc_init(0) + self.acc_init(1): a(x)
        a(f"""
        v_lshrrev_b32 v5, 4, v0
        v_and_b32 v6, 15, v0
        v_lshrrev_b32 v6, 2, v6
        v_lshl_add_u32 v6, v5, 3, v6
        v_lshlrev_b32 v6, 6, v6
        v_and_b32 v7, 3, v0
        v_lshl_add_u32 v6, v7, 3, v6
        v_and_b32 v5, 1, v5
        v_lshlrev_b32 v5, 5, v5
        v_add_u32 v10, v6, v5
        v_xor_b32 v11, 32, v10
        s_lshl_b32 s86, s{S_RB}, 3
        s_lshl_b32 s87, s{S_WAVE}, 1
        s_add_u32 s86, s86, s87
        s_mul_i32 s82, s86, 20480
        s_add_u32 s83, s82, 20480
        s_mul_i32 s86, s86, 49152
        s_mul_i32 s87, s{S_CB}, 3072
        s_add_u32 s86, s86, s87
        s_add_u32 s86, s86, {HF}
        s_add_u32 s87, s86, 49152
        """)

    def g1_aload(self, ks):
        r = []
        for lt in range(2):
            d = self.G1_A + 8 * ks + 4 * lt
            ins = [f"buffer_load_dwordx4 v[{d}:{d+3}], v9, s[{R_WS}:{R_WS+3}], s{82+lt} offen offset:{1024*(ks%4)} sc1"]
            if ks % 4 == 3 and ks != 19: ins.append(f"s_add_u32 s{82+lt}, s{82+lt}, 4096")
            r.append((ins, f"A{ks}"))
        return r

    def epi_ops(self, p):
        r = []
        for lt in range(2):
            a0 = self.G1_ACC + 16 * (p % 2) + 4 * lt; b0 = a0 + 8
            for x in (a0, b0):
                for i in range(4): r.append(([f"v_max_f32 v{x+i}, 0, v{x+i}"], None))
                for i in range(4): r.append(([f"v_mul_f32 v{x+i}, v{x+i}, v{x+i}"], None))
            r.append(([f"v_cvt_pk_bf16_f32 v{a0}, v{a0}, v{a0+1}"], None))
            r.append(([f"v_cvt_pk_bf16_f32 v{a0+1}, v{a0+2}, v{a0+3}"], None))
            r.append(([f"v_cvt_pk_bf16_f32 v{a0+2}, v{b0}, v{b0+1}"], None))
            r.append(([f"v_cvt_pk_bf16_f32 v{a0+3}, v{b0+2}, v{b0+3}"], None))
            r.append(([f"buffer_store_dwordx4 v[{a0}:{a0+3}], v9, s[{R_WS}:{R_WS+3}], s{86+lt} offen offset:{1024*p} sc1"], f"S{p}"))
        return r

    def vwait(self, tag):
        vq = self.vq
        idx = [i for i, t in enumerate(vq) if t == tag]
        if not idx: return
        n = len(vq) - 1 - idx[-1]
        self.a(f"s_waitcnt vmcnt({min(n, 63)})"); del vq[:idx[-1] + 1]

    def emit(self, item):
        ins, tag = item
        for x in ins: self.a(x)
        if tag: self.vq.append(tag)

    def g1_loop(self, N0, events):
        a = self.a
        NB = 4
        def bread(g):
            p, ks = divmod(g, 20)
            if ks == 0 and p > 0:
                a(f"v_add_u32 v10, {IMG[p]-IMG[p-1]}, v10\nv_add_u32 v11, {IMG[p]-IMG[p-1]}, v11")
            d = self.G1_B + 8 * (g % NB)
            for k in range(2):
                a(f"ds_read_b64_tr_b16 v[{d+4*k}:{d+4*k+1}], v{10+k} offset:{2048*ks}")
                a(f"ds_read_b64_tr_b16 v[{d+4*k+2}:{d+4*k+3}], v{10+k} offset:{2048*ks+256}")
        for g in range(NB - 1): bread(g)
        fa = []; fv = []
        for g in range(60):
            p, ks = divmod(g, 20)
            if (p, ks) in events:
                extra = events[(p, ks)]()
                if extra: fv += extra
            if p == 0 and ks + N0 < 20: fv = self.g1_aload(ks + N0) + fv
            if p > 0 and ks == 1: fa += self.epi_ops(p - 1)
            if p == 1 and ks == 14: fa += [([x], None) for x in self.acc_init(2)]
            if p == 0: self.vwait(f"A{ks}")
            a(f"s_waitcnt lgkmcnt({4*min(NB-2, 59-g)})")
            B = self.G1_B + 8 * (g % NB)
            n = 0; nv = 0
            left = (40 if p == 1 else 60) - g
            vmax = 2 if (p == 0 or len(fv) > left) else 1
            for k in range(2):
                for lt in range(2):
                    acc = self.G1_ACC + 16 * (p % 2) + 8 * k + 4 * lt
                    A = self.G1_A + 8 * ks + 4 * lt
                    a(f"v_mfma_f32_16x16x32_bf16 v[{acc}:{acc+3}], v[{B+4*k}:{B+4*k+3}], v[{A}:{A+3}], v[{acc}:{acc+3}]")
                    if n == 0:
                        if g + NB - 1 < 60: bread(g + NB - 1)
                    elif fa and fa[0][1] is not None:
                        self.emit(fa.pop(0)); nv += 1
                    elif fv and nv < vmax and n in (1, 3):
                        self.emit(fv.pop(0)); nv += 1
                    else:
                        for _ in range(2):
                            if fa and fa[0][1] is None: self.emit(fa.pop(0))
                    n += 1
            if ks == 19: assert not fa, fa
        for it in fv: self.emit(it)

    KP = 44
    def kg_loads(self):
        a = self.a
        a(f"""
        s_sub_u32 s70, s{S_WAVE}, 4
        s_add_u32 s71, s{S_CH0}, s70
        s_mul_i32 s60, s71, 384
        v_lshlrev_b32 v2, 1, v0
        v_add_u32 v2, s60, v2
        s_lshl_b32 s60, s71, 1
        v_mov_b32 v3, s60
        """)
        for p in range(3):
            for k, P in enumerate((P_LA, P_AI, P_CR, P_CI)):
                a(f"global_load_ushort v{self.KP+4*p+k}, v2, s[{P}:{P+1}] offset:{128*p}")
        a(f"global_load_ushort v56, v3, s[{P_DT}:{P_DT+1}]")
        a(f"global_load_ushort v57, v3, s[{P_DS}:{P_DS+1}]")

    def cmul(self, d, x, y):
        return [f"v_pk_mul_f32 v[{d}:{d+1}], v[{x}:{x+1}], v[{y}:{y+1}] op_sel:[0,0] op_sel_hi:[0,1]",
                f"v_pk_fma_f32 v[{d}:{d+1}], v[{x}:{x+1}], v[{y}:{y+1}], v[{d}:{d+1}] op_sel:[1,1,0] op_sel_hi:[1,0,1] neg_lo:[0,1,0]"]

    def kgen(self):
        a = self.a
        KP = self.KP
        Z, Z8, W = 60, 62, 64
        F = 66
        F2 = 82
        G = 98
        CV = 102
        SV = 110
        GF, TA, TB = 120, 136, 152
        ACC = 168
        VW, VR, VW2 = 10, 11, 9
        TOFF = 4352
        a(f"""
        s_mul_i32 s72, s70, {RSZ}
        s_add_u32 s72, s72, {AUX}
        v_lshrrev_b32 v2, 2, v0
        v_mul_u32_u24 v2, 272, v2
        v_and_b32 v3, 3, v0
        v_lshl_add_u32 v2, v3, 2, v2
        v_add_u32 v{VW}, s72, v2
        v_add_u32 v{VW2}, {TOFF}, v{VW}
        v_lshrrev_b32 v2, 4, v0
        v_mul_u32_u24 v2, 272, v2
        v_and_b32 v3, 15, v0
        v_lshl_add_u32 v2, v3, 4, v2
        v_add_u32 v{VR}, s72, v2
        v_lshlrev_b32 v56, 16, v56
        v_mul_f32 v56, {LOG2E}, v56
        v_exp_f32 v56, v56
        v_lshlrev_b32 v57, 16, v57
        v_cvt_pk_bf16_f32 v56, v56, v56
        v_and_b32 v56, 0xffff0000, v56
        v_add_f32 v58, v56, v56
        v_mov_b32 v59, 0x3f80
        s_mov_b32 s73, 3
        """)
        for i in range(12): a(f"v_mov_b32 v{ACC+i}, 0")
        loop = self.L("kg_loop")
        a(f"{loop}:")
        a(f"""
        v_lshlrev_b32 v2, 16, v{KP}
        v_mul_f32 v2, {LOG2E}, v2
        v_exp_f32 v2, v2
        v_lshlrev_b32 v3, 16, v{KP+1}
        v_lshlrev_b32 v{F}, 16, v{KP+2}
        v_cvt_pk_bf16_f32 v2, v2, v2
        v_lshlrev_b32 v{F+1}, 16, v{KP+3}
        v_and_b32 v2, 0xffff0000, v2
        v_mul_f32 v3, v3, v56
        v_mul_f32 v2, v2, v56
        v_pk_mul_f32 v[{F}:{F+1}], v[{F}:{F+1}], v[58:59] op_sel_hi:[1,0]
        v_mul_f32 v3, {INV2PI}, v3
        v_mul_f32 v2, 0xbfb8aa3b, v2
        """)
        for k in range(8): a(f"v_mov_b32 v{KP+k}, v{KP+4+k}")
        a(f"""
        v_mul_f32 v4, 0x41000000, v2
        v_mul_f32 v5, 0x41000000, v3
        v_mul_f32 v6, 0x43000000, v2
        v_mul_f32 v7, 0x43000000, v3
        v_fract_f32 v3, v3
        v_fract_f32 v5, v5
        v_fract_f32 v7, v7
        v_exp_f32 v2, v2
        v_exp_f32 v4, v4
        v_exp_f32 v6, v6
        v_cos_f32 v{Z}, v3
        v_sin_f32 v{Z+1}, v3
        v_cos_f32 v{Z8}, v5
        v_sin_f32 v{Z8+1}, v5
        v_cos_f32 v{W}, v7
        v_sin_f32 v{W+1}, v7
        v_pk_mul_f32 v[{Z}:{Z+1}], v[{Z}:{Z+1}], v[2:3] op_sel_hi:[1,0]
        v_pk_mul_f32 v[{Z8}:{Z8+1}], v[{Z8}:{Z8+1}], v[4:5] op_sel_hi:[1,0]
        v_pk_mul_f32 v[{W}:{W+1}], v[{W}:{W+1}], v[6:7] op_sel_hi:[1,0]
        """)
        cvn = [0]
        class Out:
            def __init__(o, base, neg, pool): o.base = base; o.neg = neg; o.pend = None; o.pool = pool; o.n = 0
            def put(o, src, row, reg=None):
                r = []
                if reg is None:
                    reg = CV + 4 * o.pool + o.n % 4; o.n += 1
                    r.append(f"v_cvt_pk_bf16_f32 v{reg}, v{src}, {'-' if o.neg else ''}v{src+1}")
                if o.pend is None: o.pend = (reg, row)
                else:
                    r.append(f"ds_write2_b32 v{o.base}, v{o.pend[0]}, v{reg} offset0:{4*o.pend[1]} offset1:{4*row}")
                    o.pend = None
                return r
        def merge(*streams):
            streams = [list(s) for s in streams]
            out = []
            while any(streams):
                for s in streams:
                    if s: out.append(s.pop(0))
            return out
        og = Out(VW, False, 0); of = Out(VW2, True, 1); oc0 = Out(VW2, True, 0); oc1 = Out(VW2, True, 1); ot = Out(VW2, True, 0)
        gs = og.put(None, 0, 59) + og.put(Z8, 1)
        prev = Z8
        for j in range(2, 16):
            d = G + 2 * (j % 2)
            gs += self.cmul(d, prev, Z8) + og.put(d, j)
            prev = d
        fs = of.put(F, 0)
        for r in range(1, 8):
            fs += self.cmul(F + 2 * r, F + 2 * (r - 1), Z) + of.put(F + 2 * r, r)
        for r in range(8):
            fs += self.cmul(F2 + 2 * r, F + 2 * r, W) + of.put(F2 + 2 * r, 8 + r)
        for ins in merge(gs, fs): a(ins)
        for ks in range(4):
            a(f"ds_read_b128 v[{GF+4*ks}:{GF+4*ks+3}], v{VR} offset:{1088*ks}")
            a(f"ds_read_b128 v[{TA+4*ks}:{TA+4*ks+3}], v{VR} offset:{TOFF+1088*ks}")
        s1 = []
        for i in range(4):
            s1.append(self.cmul(F + 2 * i, F2 + 4 * i, W) + [f"v_cvt_pk_bf16_f32 v{SV+i}, v{F+2*i}, -v{F+2*i+1}"]
                      + self.cmul(F + 8 + 2 * i, F + 2 * i, W) + [f"v_cvt_pk_bf16_f32 v{SV+4+i}, v{F+8+2*i}, -v{F+8+2*i+1}"])
        for ins in merge(*s1): a(ins)
        a("s_waitcnt lgkmcnt(0)")
        mf0 = [f"v_mfma_f32_16x16x32_bf16 v[{ACC}:{ACC+3}], v[{TA+4*ks}:{TA+4*ks+3}], v[{GF+4*ks}:{GF+4*ks+3}], v[{ACC}:{ACC+3}]" for ks in range(4)]
        c0 = []; prev = F + 8
        for i in range(12):
            d = F2 + 2 * (i % 2)
            row = i if i < 4 else i + 4
            c0 += self.cmul(d, prev, W) + oc0.put(d, row)
            prev = d
        last = prev
        c1 = []; prev = F + 12
        for i in range(4):
            d = F2 + 4 + 2 * (i % 2)
            c1 += self.cmul(d, prev, W) + oc1.put(d, 4 + i)
            prev = d
        for ins in merge(c0, c1, mf0): a(ins)
        for ks in range(4):
            a(f"ds_read_b128 v[{TB+4*ks}:{TB+4*ks+3}], v{VR} offset:{TOFF+1088*ks}")
        for ins in self.cmul(F2 + 8, last, W): a(ins)
        for i in range(8):
            for ins in ot.put(None, i, SV + i): a(ins)
        a(f"v_cvt_pk_bf16_f32 v{CV}, v{F2+8}, -v{F2+9}\nds_write_b32 v{VW2}, v{CV} offset:128")
        for ks in range(4):
            a(f"ds_read_b128 v[{TA+4*ks}:{TA+4*ks+3}], v{VR} offset:{TOFF+1088*ks}")
        a("s_waitcnt lgkmcnt(9)")
        for ks in range(4):
            a(f"v_mfma_f32_16x16x32_bf16 v[{ACC+4}:{ACC+7}], v[{TB+4*ks}:{TB+4*ks+3}], v[{GF+4*ks}:{GF+4*ks+3}], v[{ACC+4}:{ACC+7}]")
        a("s_sub_u32 s73, s73, 1\ns_cmp_lg_u32 s73, 0\ns_waitcnt lgkmcnt(0)")
        for ks in range(4):
            a(f"v_mfma_f32_16x16x32_bf16 v[{ACC+8}:{ACC+11}], v[{TA+4*ks}:{TA+4*ks+3}], v[{GF+4*ks}:{GF+4*ks+3}], v[{ACC+8}:{ACC+11}]")
        a(f"s_cbranch_scc1 {loop}")
        self.KACC = ACC

    def expand(self):
        a = self.a
        ACC = self.KACC
        T0, T1, T2 = ACC, ACC + 4, ACC + 8
        a(f"""
        v_and_b32 v2, 15, v0
        v_lshrrev_b32 v3, 4, v0
        v_lshlrev_b32 v4, 3, v2
        v_lshlrev_b32 v5, 2, v3
        v_add_u32 v5, 512, v5
        v_lshlrev_b32 v6, 9, v3
        v_cmp_gt_u32 vcc, 2, v3
        v_cndmask_b32 v5, v6, v5, vcc
        v_add_u32 v5, v5, v4
        v_cndmask_b32 v6, 4, 2, vcc
        v_and_b32 v7, 1, v2
        v_cndmask_b32 v7, v7, v3, vcc
        v_cndmask_b32 v8, 8, 0, vcc
        s_add_u32 s60, s72, 32
        v_sub_u32 v9, v5, v6
        v_lshl_add_u32 v12, v9, 1, s60
        v_add_u32 v13, v12, v8
        v_add_u32 v9, v5, v6
        v_sub_u32 v9, v9, v7
        v_lshl_add_u32 v14, v9, 1, s60
        v_sub_u32 v9, v5, v6
        v_add_u32 v9, v9, v7
        v_lshl_add_u32 v15, v9, 1, s60
        v_add_u32 v15, {K1O-2}, v15
        v_cmp_eq_u32 vcc, 32, v0
        v_add_u32 v9, 4, v15
        v_cndmask_b32 v16, v15, v9, vcc
        v_add_u32 v17, {K1O}, v12
        v_add_u32 v18, {K1O}, v13
        """)
        for i in range(4):
            a(f"v_cvt_pk_bf16_f32 v{20+i}, v{T1+i}, v{T1+i}")
        for i in range(4):
            a(f"ds_write2_b32 v12, v{20+i}, v{20+i} offset0:{64*i} offset1:{64*i+1}")
            a(f"ds_write2_b32 v13, v{20+i}, v{20+i} offset0:{64*i} offset1:{64*i+1}")
            a(f"ds_write2_b32 v17, v{20+i}, v{20+i} offset0:{64*i} offset1:{64*i+1}")
            a(f"ds_write2_b32 v18, v{20+i}, v{20+i} offset0:{64*i} offset1:{64*i+1}")
        for i in range(4):
            a(f"ds_write_b16 v14, v{20+i} offset:{256*i}")
            a(f"ds_write_b16 v{16 if i == 0 else 15}, v{20+i} offset:{256*i}")
        a(f"""
        v_lshlrev_b32 v5, 7, v3
        v_add3_u32 v5, v5, v4, v4
        v_lshlrev_b32 v6, 7, v3
        v_add_u32 v5, v5, v6
        v_add_u32 v5, s60, v5
        v_add_u32 v5, 512, v5
        v_cvt_pk_bf16_f32 v24, v{T2}, v{T2}
        v_cvt_pk_bf16_f32 v25, v{T2}, v{T2+1}
        v_cvt_pk_bf16_f32 v26, v{T2+2}, v{T2+2}
        v_cvt_pk_bf16_f32 v27, v{T2+2}, v{T2+3}
        v_cvt_pk_bf16_f32 v28, v{T2+1}, v{T2+2}
        v_add_u32 v6, {K1O-4}, v5
        v_add_u32 v7, -2, v5
        s_mov_b32 exec_hi, 0
        ds_write2_b32 v5, v24, v28 offset0:0 offset1:1
        ds_write_b32 v5, v26 offset:8
        ds_write_b16_d16_hi v5, v27 offset:12
        ds_write_b16 v7, v24
        ds_write2_b32 v6, v24, v25 offset0:0 offset1:1
        ds_write2_b32 v6, v26, v27 offset0:2 offset1:3
        s_mov_b64 exec, -1
        s_add_u32 s61, s60, {2*2044}
        v_mov_b32 v6, s61
        v_add_u32 v7, {K1O-2}, v6
        v_add_u32 v8, {K1O}, v6
        s_mov_b32 exec_lo, 0
        s_mov_b32 exec_hi, 1
        ds_write2_b32 v6, v24, v24 offset0:0 offset1:1
        ds_write2_b32 v8, v24, v24 offset0:0 offset1:1
        ds_write_b16 v7, v24
        s_mov_b64 exec, -1
        """)
        a(f"""
        v_and_b32 v5, 1, v3
        v_lshlrev_b32 v5, 3, v5
        v_lshrrev_b32 v6, 1, v3
        v_lshl_add_u32 v5, v6, 8, v5
        v_add3_u32 v5, v5, v4, v4
        v_add_u32 v5, s60, v5
        s_mov_b64 exec, 1
        v_add_f32 v{T0}, v{T0}, v57
        s_mov_b64 exec, -1
        v_cvt_pk_bf16_f32 v24, v{T0}, v{T0+1}
        v_cvt_pk_bf16_f32 v25, v{T0+2}, v{T0+3}
        v_cvt_pk_bf16_f32 v26, v{T0+1}, v{T0+2}
        v_add_u32 v6, {K1O-2}, v5
        v_mov_b32 v28, 0
        v_mov_b32 v29, 0
        v_lshlrev_b32 v7, 3, v0
        v_add_u32 v7, s72, v7
        s_mov_b64 exec, 15
        ds_write_b64 v7, v[28:29]
        ds_write_b64 v7, v[28:29] offset:{K1O}
        s_lshr_b64 exec, -1, 4
        ds_write_b64 v7, v[28:29] offset:{UO}
        s_mov_b64 exec, -1
        ds_write_b64 v5, v[24:25]
        ds_write_b16 v6, v24
        ds_write_b32 v5, v26 offset:{K1O}
        ds_write_b16_d16_hi v6, v25 offset:6
        """)

    def u_gather(self):
        a = self.a
        sc = "sc1" if self.fused else ""
        a(f"""
        v_lshrrev_b32 v2, 2, v0
        v_and_b32 v3, 3, v0
        v_mul_u32_u24 v4, 10240, v2
        v_lshl_add_u32 v4, v3, 4, v4
        s_lshl_b32 s60, s{S_CH0}, 4
        s_add_u32 s60, s60, {XT}
        v_mul_u32_u24 v5, {RSZ}, v3
        v_lshl_add_u32 v5, v2, 4, v5
        v_add_u32 v5, {AUX+UO+UPAD}, v5
        v_cmp_gt_u32 vcc, s{S_NCH}, v3
        s_mov_b64 s[62:63], exec
        s_and_b64 exec, exec, vcc
        """)
        for i in range(16):
            a(f"buffer_load_dwordx4 v[{40+4*i}:{43+4*i}], v4, s[{R_WS}:{R_WS+3}], s60 offen {sc}")
            if i < 15: a(f"s_add_u32 s60, s60, {16*10240}")
        for i in range(16):
            a(f"s_waitcnt vmcnt({14-i})" if i < 15 else "s_nop 7")
            a(f"ds_write_b128 v5, v[{40+4*i}:{43+4*i}] offset:{256*i}")
        a("s_mov_b64 exec, s[62:63]\ns_waitcnt lgkmcnt(0)")

    def conv(self):
        a = self.a
        sc = "sc1" if self.fused else ""
        ACC = 60; OP = [92, 156]
        AB = 12
        a(f"""
        v_and_b32 v2, 15, v0
        v_lshrrev_b32 v3, 4, v0
        v_lshlrev_b32 v4, 3, v3
        v_sub_u32 v4, v2, v4
        v_add_u32 v4, {233+16-224}, v4
        v_and_b32 v5, 1, v2
        v_and_b32 v4, -2, v4
        v_lshlrev_b32 v4, 1, v4
        v_cmp_eq_u32 vcc, 0, v5
        v_mov_b32 v6, {K1O}
        v_cndmask_b32 v5, 0, v6, vcc
        v_add3_u32 v{AB}, v4, v5, s72
        v_add_u32 v{AB+1}, 1024, v{AB}
        v_add_u32 v{AB+2}, 2048, v{AB}
        v_add_u32 v{AB+3}, 3072, v{AB}
        v_lshlrev_b32 v4, 5, v2
        v_lshl_add_u32 v4, v3, 4, v4
        s_add_u32 s60, s72, {UO}
        v_add_u32 v16, s60, v4
        """)
        for i in range(32): a(f"v_mov_b32 v{ACC+i}, 0")
        def reads(tau):
            s = OP[tau % 2]
            r = []
            for d in range(8):
                r.append(f"ds_read_b128 v[{s+32+4*d}:{s+35+4*d}], v16 offset:{512*d+64*tau}")
                o = 512 * d - 64 * tau + 448
                b = AB + o // 1024; q = (o % 1024) // 4
                r.append(f"ds_read2_b32 v[{s+4*d}:{s+4*d+1}], v{b} offset0:{q} offset1:{q+1}")
                r.append(f"ds_read2_b32 v[{s+4*d+2}:{s+4*d+3}], v{b} offset0:{q+2} offset1:{q+3}")
            return r
        r0 = reads(0)
        for k, ins in enumerate(r0):
            a(ins)
            if k == 12: a("s_waitcnt lgkmcnt(3)")
        for tau in range(8):
            s = OP[tau % 2]
            nxt = reads(tau + 1) if tau < 7 else []
            pairs = sorted([(d, n) for d in range(8) for n in range(8 - d)], key=lambda p: (max(p), p))
            a("s_waitcnt lgkmcnt(0)")
            for k, (d, n) in enumerate(pairs):
                acc = ACC + 4 * (d + n)
                a(f"v_mfma_f32_16x16x32_bf16 v[{acc}:{acc+3}], v[{s+4*d}:{s+4*d+3}], v[{s+32+4*n}:{s+35+4*n}], v[{acc}:{acc+3}]")
                if nxt and k < 30 and k % 5 != 4:
                    a(nxt.pop(0))
            assert not nxt
        a(f"""
        v_lshlrev_b32 v5, 5, v2
        v_lshl_add_u32 v5, v3, 3, v5
        s_lshl_b32 s61, s71, 12
        s_add_u32 s61, s61, {ST}
        """)
        for n in range(8):
            acc = ACC + 4 * n; o = 128 + 2 * n
            a(f"""
            v_cvt_pk_bf16_f32 v{o}, v{acc}, v{acc+1}
            v_cvt_pk_bf16_f32 v{o+1}, v{acc+2}, v{acc+3}
            buffer_store_dwordx2 v[{o}:{o+1}], v5, s[{R_WS}:{R_WS+3}], s61 offen offset:{512*n} {sc}
            """)

    G2_ACC = 16; G2_RB = 96; G2_BT = 156; G2_A = 176
    def g2_addr(self):
        self.a(f"""
        v_lshlrev_b32 v9, 4, v0
        v_add_u32 v8, 4096, v9
        v_add_u32 v13, 8192, v9
        s_mul_i32 s74, s{S_CB2}, 245760
        s_mul_i32 s60, s{S_WAVE}, {12*5120}
        s_add_u32 s74, s74, s60
        s_add_u32 s74, s74, {W2F}
        s_mul_i32 s75, s{S_WAVE}, 10240
        """)
    @staticmethod
    def kloc(j):
        tp, cbl = divmod(j, 4)
        return 3 * cbl + tp

    def g2_dma_items(self, j):
        W = f"s[{R_WS}:{R_WS+3}]"
        l0 = IMG[(j - 3) // 2] + ((j - 3) % 2) * 5120
        r = []
        for nt in range(5):
            pre = [f"s_add_u32 s81, s74, {5120*self.kloc(j)}"] if nt == 0 else []
            if nt < 4: r.append((pre + [f"s_add_u32 m0, s75, {l0}", f"buffer_load_dwordx4 v9, {W}, s81 offen offset:{1024*nt} sc1 lds"], f"D{3+2*((j-3)//2)}"))
            else: r.append(([f"s_add_u32 m0, s75, {l0+4096}", f"buffer_load_dwordx4 v8, {W}, s81 offen sc1 lds"], f"D{3+2*((j-3)//2)}"))
        return r

    def g2_bload_items(self, j):
        W = f"s[{R_WS}:{R_WS+3}]"
        r = []
        for nt in range(5):
            d = self.G2_RB + 20 * (j % 3) + 4 * nt
            pre = [f"s_add_u32 s81, s74, {5120*self.kloc(j)}"] if nt == 0 else []
            if nt < 4: r.append((pre + [f"buffer_load_dwordx4 v[{d}:{d+3}], v9, {W}, s81 offen offset:{1024*nt} sc1"], f"B{j}"))
            else: r.append(([f"buffer_load_dwordx4 v[{d}:{d+3}], v8, {W}, s81 offen sc1"], f"B{j}"))
        return r

    def g2_aload_items(self, j):
        W = f"s[{R_WS}:{R_WS+3}]"
        k = self.kloc(j)
        vo = (9, 8, 13)[k // 4]
        r = []
        for i in range(4):
            d = self.G2_A + 16 * (j % 5) + 4 * i
            r.append(([f"buffer_load_dwordx4 v[{d}:{d+3}], v{vo}, {W}, s{76+i} offen offset:{1024*(k%4)} sc1"], f"A{j}"))
        return r

    def g2_setup_s(self):
        a = self.a
        for i in range(4):
            a(f"""
            s_add_u32 s60, s{S_WAVE}, {i}
            s_and_b32 s60, s60, 3
            s_lshl_b32 s61, s{S_RB2}, 2
            s_add_u32 s60, s60, s61
            s_mul_i32 s60, s60, 49152
            s_mul_i32 s61, s{S_WAVE}, {12*1024}
            s_add_u32 s60, s60, s61
            s_add_u32 s{76+i}, s60, {HF}
            """)
    def g2_setup_v(self):
        a = self.a
        for i in range(80): a(f"v_mov_b32 v{self.G2_ACC+i}, 0")
        a(f"v_add_u32 v10, s75, v9\nv_add_u32 v14, {IMG[2]}, v10")

    def fh_wait(self, tp):
        self.a(f"s_lshl_b32 s66, s{S_WAVE}, 4\ns_add_u32 s66, s66, {M_FH + 64*tp}")
        self.lds_wait_all("s66", 1, f"fhw{tp}", tmp=2)

    def g2_loop(self, hook=None, hook_at=6, events=None):
        a = self.a
        def bt_read(j, nt):
            d = self.G2_BT + 4 * nt
            im = (j - 3) // 2
            off = ((j - 3) % 2) * 5120 + 1024 * nt
            if im < 2: a(f"ds_read_b128 v[{d}:{d+3}], v10 offset:{IMG[im]+off}")
            else: a(f"ds_read_b128 v[{d}:{d+3}], v14 offset:{off}")
        sched = {0: [4, 5], 1: [6], 2: [7], 3: [8], 4: [9], 5: [10], 6: [11]}
        fill = []
        for j in range(12):
            inreg = j < 3 or j >= 9
            if hook and j == hook_at: hook()
            if events and j in events: events[j]()
            self.vwait(f"A{j}")
            if inreg: self.vwait(f"B{j}")
            if j == 2:
                self.vwait("D3")
                for nt in range(5): bt_read(3, nt)
            if j in (4, 6): self.vwait(f"D{j+1}")
            for nt in range(5):
                if inreg:
                    B = self.G2_RB + 20 * (j % 3) + 4 * nt
                else:
                    B = self.G2_BT + 4 * nt
                    a(f"s_waitcnt lgkmcnt({4 if j < 8 else 4-nt})")
                for i in range(4):
                    acc = self.G2_ACC + 16 * nt + 4 * i
                    A = self.G2_A + 16 * (j % 5) + 4 * i
                    a(f"v_mfma_f32_16x16x32_bf16 v[{acc}:{acc+3}], v[{B}:{B+3}], v[{A}:{A+3}], v[{acc}:{acc+3}]")
                    if fill and i in (0, 2): self.emit(fill.pop(0))
                if 3 <= j < 8: bt_read(j + 1, nt)
            while fill: self.emit(fill.pop(0))
            for jj in sched.get(j, []):
                if jj in (4, 8): self.fh_wait(jj // 4)
                fill += self.g2_aload_items(jj)
            if j < 3: fill += self.g2_bload_items(j + 9)
            if j == 8:
                self.fin_loads(); self.vq += ["X"] * 10

    FX = 156; FB = 166
    def fin_loads(self):
        a = self.a
        a(f"""
        v_and_b32 v2, 15, v0
        v_lshrrev_b32 v3, 4, v0
        v_mul_u32_u24 v11, 1280, v2
        v_lshl_add_u32 v11, v3, 3, v11
        s_lshl_b32 s80, s{S_RB2}, 2
        s_add_u32 s80, s80, s{S_WAVE}
        s_mul_i32 s80, s80, {16*1280}
        s_mul_i32 s60, s{S_CB2}, 160
        s_add_u32 s80, s80, s60
        v_lshl_add_u32 v4, v3, 3, s60
        """)
        for nt in range(5):
            a(f"buffer_load_dwordx2 v[{self.FX+2*nt}:{self.FX+2*nt+1}], v11, s[{R_X}:{R_X+3}], s80 offen offset:{32*nt}")
        for nt in range(5):
            a(f"global_load_dwordx2 v[{self.FB+2*nt}:{self.FB+2*nt+1}], v4, s[{P_B2}:{P_B2+1}] offset:{32*nt}")

    def s_tile_dma(self):
        a = self.a
        sc = "sc1" if self.fused else ""
        a(f"""
        v_lshrrev_b32 v2, 3, v0
        v_and_b32 v3, 7, v0
        v_lshlrev_b32 v2, 12, v2
        v_lshl_add_u32 v2, v3, 4, v2
        s_mul_i32 s60, s{S_CB2}, {80*4096}
        s_lshl_b32 s61, s{S_RB2}, 7
        s_add_u32 s60, s60, s61
        s_add_u32 s60, s60, {ST}
        """)
        for t in range(10):
            a(f"s_mov_b32 m0, {AUX+1024*t}")
            a(f"buffer_load_dwordx4 v2, s[{R_WS}:{R_WS+3}], s60 offen {sc} lds")
            if t < 9: a(f"s_add_u32 s60, s60, {8*4096}")
        a("s_waitcnt vmcnt(0)")

    def g2_final(self):
        a = self.a
        ACC = self.G2_ACC
        self.srd(R_OUT, P_OUT, 2621440)
        for i in range(1, 4):
            for nt in range(5):
                acc = ACC + 16 * nt + 4 * i
                if i < 3: a(f"ds_write_b128 v10, v[{acc}:{acc+3}] offset:{IMG[i-1]+1024*nt}")
                else: a(f"ds_write_b128 v14, v[{acc}:{acc+3}] offset:{1024*nt}")
        for i in range(1, 4):
            a(f"""
            s_sub_u32 s60, s{S_WAVE}, {i}
            s_and_b32 s60, s60, 3
            s_mul_i32 s60, s60, 10240
            s_add_u32 s60, s60, {IMG[i-1]}
            v_add_u32 v{4+i}, s60, v9
            """)
        a(f"""
        v_and_b32 v12, 15, v0
        v_lshrrev_b32 v12, 2, v12
        v_lshl_add_u32 v12, v3, 2, v12
        v_lshlrev_b32 v12, 7, v12
        v_and_b32 v15, 3, v0
        v_lshl_add_u32 v12, v15, 3, v12
        s_lshl_b32 s60, s{S_WAVE}, 5
        s_add_u32 s60, s60, {AUX}
        v_add_u32 v12, s60, v12
        s_waitcnt lgkmcnt(0)
        s_barrier
        """)
        P = 96
        for nt in range(5):
            for i in range(1, 4):
                d = P + 12 * nt + 4 * (i - 1)
                a(f"ds_read_b128 v[{d}:{d+3}], v{4+i} offset:{1024*nt}")
            if nt == 3: a("s_waitcnt lgkmcnt(6)")
        for nt in range(5):
            a(f"ds_read_b64_tr_b16 v[{176+2*nt}:{177+2*nt}], v12 offset:{2048*nt}")
        a("s_waitcnt vmcnt(0)")
        for nt in range(5):
            acc = ACC + 16 * nt; p = P + 12 * nt; t = 190 + 12 * (nt % 2)
            fb = self.FB + 2 * nt; fx = self.FX + 2 * nt; fs = 176 + 2 * nt
            if nt == 0: a("s_waitcnt lgkmcnt(5)")
            a(f"""
            v_lshlrev_b32 v{t}, 16, v{fb}
            v_and_b32 v{t+1}, 0xffff0000, v{fb}
            v_lshlrev_b32 v{t+2}, 16, v{fb+1}
            v_and_b32 v{t+3}, 0xffff0000, v{fb+1}
            v_pk_add_f32 v[{acc}:{acc+1}], v[{acc}:{acc+1}], v[{p}:{p+1}]
            v_pk_add_f32 v[{acc+2}:{acc+3}], v[{acc+2}:{acc+3}], v[{p+2}:{p+3}]
            v_pk_add_f32 v[{p+4}:{p+5}], v[{p+4}:{p+5}], v[{p+8}:{p+9}]
            v_pk_add_f32 v[{p+6}:{p+7}], v[{p+6}:{p+7}], v[{p+10}:{p+11}]
            v_pk_add_f32 v[{acc}:{acc+1}], v[{acc}:{acc+1}], v[{t}:{t+1}]
            v_pk_add_f32 v[{acc+2}:{acc+3}], v[{acc+2}:{acc+3}], v[{t+2}:{t+3}]
            v_pk_add_f32 v[{acc}:{acc+1}], v[{acc}:{acc+1}], v[{p+4}:{p+5}]
            v_pk_add_f32 v[{acc+2}:{acc+3}], v[{acc+2}:{acc+3}], v[{p+6}:{p+7}]
            """)
            for i in range(4): a(f"v_mul_f32 v{t+i}, 0xbfb8aa3b, v{acc+i}")
            for i in range(4): a(f"v_exp_f32 v{t+i}, v{t+i}")
            if nt == 0: a("s_waitcnt lgkmcnt(0)")
            a(f"""
            v_lshlrev_b32 v{t+4}, 16, v{fs}
            v_and_b32 v{t+5}, 0xffff0000, v{fs}
            v_lshlrev_b32 v{t+6}, 16, v{fs+1}
            v_and_b32 v{t+7}, 0xffff0000, v{fs+1}
            """)
            for i in range(4): a(f"v_add_f32 v{t+i}, 1.0, v{t+i}")
            for i in range(4): a(f"v_rcp_f32 v{t+i}, v{t+i}")
            a(f"""
            v_pk_mul_f32 v[{t+4}:{t+5}], v[{t+4}:{t+5}], v[{acc}:{acc+1}]
            v_pk_mul_f32 v[{t+6}:{t+7}], v[{t+6}:{t+7}], v[{acc+2}:{acc+3}]
            v_lshlrev_b32 v{t+8}, 16, v{fx}
            v_and_b32 v{t+9}, 0xffff0000, v{fx}
            v_lshlrev_b32 v{t+10}, 16, v{fx+1}
            v_and_b32 v{t+11}, 0xffff0000, v{fx+1}
            v_pk_fma_f32 v[{t+8}:{t+9}], v[{t+4}:{t+5}], v[{t}:{t+1}], v[{t+8}:{t+9}]
            v_pk_fma_f32 v[{t+10}:{t+11}], v[{t+6}:{t+7}], v[{t+2}:{t+3}], v[{t+10}:{t+11}]
            v_cvt_pk_bf16_f32 v{fx}, v{t+8}, v{t+9}
            v_cvt_pk_bf16_f32 v{fx+1}, v{t+10}, v{t+11}
            buffer_store_dwordx2 v[{fx}:{fx+1}], v11, s[{R_OUT}:{R_OUT+3}], s80 offen offset:{32*nt} {os.environ.get('OSC','')}
            """)

    def misc_init(self):
        self.a(f"""
        v_lshlrev_b32 v2, 2, v0
        v_add_u32 v2, {MISC}, v2
        v_mov_b32 v3, 0
        ds_write_b32 v2, v3
        """)


HEADER = open("cdna_kernels/" + NAME + ".s.ref").read().split("; Override launch")[0]

def kernel_text(label, body):
    return f""".text
.globl {label}
.p2align 8
.type {label},@function
{label}:
{body}
"""
def desc(label, vgpr=256):
    return f""".section .rodata,"a"
.p2align 6
.amdhsa_kernel {label}
  .amdhsa_next_free_vgpr {vgpr}
  .amdhsa_next_free_sgpr 102
  .amdhsa_accum_offset {vgpr}
  .amdhsa_group_segment_fixed_size 0
  .amdhsa_kernarg_size 120
  .amdhsa_user_sgpr_count 2
  .amdhsa_user_sgpr_kernarg_segment_ptr 1
  .amdhsa_system_sgpr_workgroup_id_x 1
.end_amdhsa_kernel
"""
```

```python
import sys, os
from parts import *
E = lambda k, d=0: int(os.environ.get(k, d))

class Fused(Gen):
    def cnt_add(self, addr, rtn=False):
        self.a(f"""
        v_mov_b32 v2, {addr}
        v_mov_b32 v3, 1
        s_mov_b64 exec, 1
        {'ds_add_rtn_u32 v4, v2, v3' if rtn else 'ds_add_u32 v2, v3'}
        s_mov_b64 exec, -1
        """)

    def build_fused(self):
        a = self.a
        L = self.L
        st = 2 if self.stamps else 0
        N0 = E('N0', 8)
        GS = E('GS', 24)
        slp = ('s_sleep %d' % PSLEEP) if PSLEEP else ''
        a(f"{L('start')}:")
        self.prologue()
        self.stamp(0)
        a(f"s_cmp_ge_u32 s{S_WAVE}, 4\ns_cbranch_scc1 {L('aux0')}")
        a(f"s_setprio {E('GP', 2)}")
        self.ln_loads()
        self.g1_b1_loads()
        self.w1_addr(12)
        a(f"s_add_u32 s68, s{S_WAVE}, {GS}")
        for i in range((40 - GS) // 4):
            self.w1_group(12)
            a("s_add_u32 s68, s68, 4")
        self.ln_pub_addr()
        a(f"s_waitcnt vmcnt({6 + 3 * ((40 - GS) // 4)})")
        self.stamp(1)
        self.ln_math()
        self.stamp(12)
        a("s_waitcnt lgkmcnt(0)")
        self.lds_set(M_LNW, S_WAVE, tmp=(2, 3))
        self.lds_wait_all(M_LNW, 4, "lnw4", tmp=2, sleep=0)
        self.ln_publish()
        self.stamp(13)
        a(f"s_waitcnt vmcnt({5 + (2 if 13 in self.sel else 0)})")
        self.lds_set(M_W1, S_WAVE, tmp=(2, 3))
        a(f"v_mov_b32 v15, 0\nv_mov_b32 v14, 0\ns_cmp_lg_u32 s{S_WAVE}, 0\ns_cbranch_scc1 {L('g_n0')}")
        a(f"global_load_dword v14, v15, s[{P_DBG}:{P_DBG+1}] sc1\n{L('g_n0')}:")
        self.g1_prep()
        self.g2_addr()
        a(f"s_waitcnt vmcnt(0)")
        self.stamp(2)
        a(f"s_cmp_eq_u32 s{S_WAVE}, 0\ns_cbranch_scc1 {L('g_w0')}")
        self.cnt_add(M_LNCNT)
        a(f"s_branch {L('g_j')}\n{L('g_w0')}:")
        a(f"""
        s_mov_b32 s64, 0
        {L('np')}:
        v_readfirstlane_b32 s{S_NONCE}, v14
        s_cmp_gt_u32 s64, 0x8000
        s_cbranch_scc1 {L('npd')}
        s_cmp_lg_u32 s{S_NONCE}, 0
        s_cbranch_scc1 {L('npd')}
        global_load_dword v14, v15, s[{P_DBG}:{P_DBG+1}] sc1
        s_add_u32 s64, s64, 1
        s_waitcnt vmcnt(0)
        s_nop 1
        s_branch {L('np')}
        {L('npd')}:
        v_mov_b32 v2, s{S_NONCE}
        v_mov_b32 v3, {M_NONCE}
        ds_write_b32 v3, v2
        v_mov_b32 v3, {M_LNCNT}
        s_mov_b32 s64, 0
        {L('lc')}:
        ds_read_b32 v2, v3
        s_add_u32 s64, s64, 1
        s_waitcnt lgkmcnt(0)
        v_readfirstlane_b32 s60, v2
        s_cmp_gt_u32 s64, 0x100000
        s_cbranch_scc1 {L('lcd')}
        s_cmp_lt_u32 s60, 3
        s_cbranch_scc1 {L('lc')}
        {L('lcd')}:
        s_mul_i32 s66, s{S_LID}, {FSTR}
        s_add_u32 s66, s66, {FLN}
        """)
        self.store_flag(66)
        self.stamp(10)
        a(f"s_mul_i32 s66, s{S_RB}, {16*FSTR}\ns_add_u32 s66, s66, {FLN}")
        self.poll_flags("pln", 66, 16)
        self.lds_set(M_LN, None, tmp=(2, 3))
        a(f"{L('g_j')}:")
        self.lds_wait_all(M_LN, 1, "lnw", tmp=2)
        self.stamp(3)
        self.vq = []
        for ks in range(N0):
            for it in self.g1_aload(ks): self.emit(it)
        self.lds_set(M_LN + 4, None, tmp=(2, 3))
        self.get_nonce("gn", tmp=2)
        self.lds_wait_all(M_W1, 4, "w1w", tmp=2)
        self.lds_wait_all(M_LNR, 1, "w1s", tmp=2)
        self.stamp(4, q=True)
        def publish(p):
            self.vwait(f"S{p}")
            self.cnt_add(M_HC + 4 * p, rtn=True)
            a(f"""
            s_mul_i32 s66, s{S_LID}, {FHS}
            s_add_u32 s66, s66, {FH + 16384 * p}
            s_waitcnt lgkmcnt(0)
            s_nop 1
            v_readfirstlane_b32 s60, v4
            s_cmp_lg_u32 s60, 3
            s_cbranch_scc1 {L('nofh%d' % p)}
            """)
            self.store_flag(66)
            if p == 0: self.lds_set(M_HP, None, tmp=(2, 3))
            a(f"{L('nofh%d' % p)}:")
            self.vq.append("f")
            self.vq.pop()
        def cnt_wait(addr, n, name):
            lab = L(name)
            a(f"""
            v_mov_b32 v2, {addr}
            s_mov_b32 s61, 0
            {lab}:
            ds_read_b32 v3, v2
            s_add_u32 s61, s61, 1
            s_waitcnt lgkmcnt(0)
            v_readfirstlane_b32 s60, v3
            s_cmp_gt_u32 s61, 0x100000
            s_cbranch_scc1 {lab}_d
            s_cmp_lt_u32 s60, {n}
            s_cbranch_scc1 {lab}
            {lab}_d:
            """)
        def ev_pd(p):
            def f(): self.cnt_add(M_PD + 4 * p)
            return f
        def ev_dma(p):
            def f():
                if p == 0: self.lds_wait_all(M_FW, 1, "fww", tmp=2)
                cnt_wait(M_PD + 4 * p, 4, f"pdw{p}")
                return self.g2_dma_items(3 + 2 * p) + self.g2_dma_items(4 + 2 * p)
            return f
        def ev_pub0():
            publish(0)
            self.stamp(11, q=True)
        def ev_rb():
            return sum((self.g2_bload_items(j) for j in range(3)), [])
        D0 = E('D0', 3)
        ev = {(1, 0): ev_pd(0), (1, D0): ev_dma(0), (2, 2): ev_dma(1), (2, 9): ev_rb}
        ev[(2, 0)] = lambda: (ev_pd(1)(), ev_pub0())[0]
        ev = {k: v for k, v in ev.items() if v}
        self.g2_setup_s()
        self.g1_loop(N0, ev)
        self.cnt_add(M_PD + 8)
        self.stamp(5, q=True)
        for it in self.epi_ops(2): self.emit(it)
        publish(1)
        if E('PF'): a("s_setprio 0")
        self.fh_wait(0)
        self.stamp(6, q=True)
        for j in range(4):
            for it in self.g2_aload_items(j): self.emit(it)
        for it in ev_dma(2)(): self.emit(it)
        self.g2_setup_v()
        publish(2)
        self.stamp(7, q=True)
        self.g2_loop(hook=lambda: self.lds_set(M_J6, None, tmp=(2, 3)), hook_at=E('J6', 6))
        self.stamp(8)
        if E('PF'): a("s_setprio 2")
        self.g2_final()
        if 9 in self.sel: a("s_waitcnt vmcnt(0)")
        self.stamp(9)
        a(f"s_endpgm\n{L('aux0')}:")
        a.clear_hist()
        a(f"s_cmp_eq_u32 s{S_WAVE}, 7\ns_cbranch_scc1 {L('svc')}")
        a(f"s_sub_u32 s60, s{S_WAVE}, 4\ns_cmp_ge_u32 s60, s{S_NCH}\ns_cbranch_scc1 {L('noch')}")
        self.kg_loads()
        a("s_waitcnt vmcnt(0)")
        self.stamp(1)
        self.kgen()
        self.stamp(3)
        self.expand()
        self.stamp(2)
        self.get_nonce("cn", tmp=2)
        self.lds_wait_all(M_U, 1, "uw", tmp=2)
        self.stamp(4)
        if E('PF'): a("s_setprio 1")
        self.conv()
        self.lds_set(M_CD, 70, tmp=(2, 3))
        self.stamp(5)
        a(f"s_mul_i32 s66, s71, {FSTR}\ns_add_u32 s66, s66, {FS}\ns_waitcnt vmcnt(0)")
        self.store_flag(66)
        self.stamp(6)
        a(f"s_endpgm\n{L('noch')}:")
        a.clear_hist()
        a(f"s_cmp_lg_u32 s{S_WAVE}, 6\ns_cbranch_scc1 {L('end')}")
        if E('X2'): self.lds_wait_all(M_NONCE, 1, "x2w", tmp=2)
        self.w2_loads()
        a("s_waitcnt vmcnt(0)")
        self.w2_retile()
        a(f"""
        v_mov_b32 v3, 0
        s_mov_b32 s64, 0
        {L('wn')}:
        global_load_dword v2, v3, s[{P_DBG}:{P_DBG+1}] sc1
        s_add_u32 s64, s64, 1
        s_waitcnt vmcnt(0)
        s_nop 1
        v_readfirstlane_b32 s{S_NONCE}, v2
        s_cmp_gt_u32 s64, 0x8000
        s_cbranch_scc1 {L('wnd')}
        s_cmp_eq_u32 s{S_NONCE}, 0
        s_cbranch_scc1 {L('wn')}
        {L('wnd')}:
        """)
        a(f"s_mul_i32 s66, s43, {FSTR}\ns_add_u32 s66, s66, {FW}\ns_waitcnt vmcnt(0)")
        self.store_flag(66)
        self.stamp(7)
        a(f"s_endpgm\n{L('svc')}:")
        a.clear_hist()
        a(f"""
        s_setprio {E('SP', 1)}
        s_cmp_lg_u32 s2, 0
        s_cbranch_scc1 {L('svc1')}
        s_memrealtime s[62:63]
        v_mov_b32 v3, 0
        s_waitcnt lgkmcnt(0)
        s_or_b32 s61, s62, 1
        v_mov_b32 v2, s61
        s_mov_b64 exec, 1
        global_store_dword v3, v2, s[{P_DBG}:{P_DBG+1}] sc1
        s_mov_b64 exec, -1
        {L('svc1')}:
        """)
        if E('WARM', 1):
            self.srd(R_OUT, P_OUT, 2621440)
            a(f"""
            s_getpc_b64 s[62:63]
            {L('pc')}:
            s_sub_u32 s62, s62, {L('pc')}-{L('start')}
            s_subb_u32 s63, s63, 0
            s_and_b32 s60, s{S_IDX}, 7
            s_lshl_b32 s60, s60, 12
            v_lshlrev_b32 v2, 7, v0
            v_add_u32 v2, s60, v2
            v_min_u32 v2, {L('end')}-{L('start')}, v2
            v_lshlrev_b32 v3, 20, v0
            s_mov_b32 exec_hi, 0
            global_load_dword v130, v2, s[62:63]
            buffer_load_dword v131, v3, s[{R_WS}:{R_WS+3}], 0 offen
            buffer_load_dword v132, v3, s[{R_OUT}:{R_OUT+3}], 0 offen
            s_mov_b64 exec, -1
            """)
        if E('X1'): self.lds_wait_all(M_NONCE, 1, "x1w", tmp=2)
        self.w1_addr(12)
        a(f"""
        s_mul_i32 s68, s{S_RB}, {GS}
        s_lshr_b32 s68, s68, 4
        s_mov_b32 s67, {GS}
        {L('sdl')}:
        """)
        self.w1_group(12)
        a(f"""
        s_add_u32 s68, s68, 1
        s_cmp_eq_u32 s68, {GS}
        s_cselect_b32 s68, 0, s68
        s_sub_u32 s67, s67, 1
        s_cmp_lg_u32 s67, 0
        s_waitcnt vmcnt({E('DEPTH', 45)})
        s_cbranch_scc1 {L('sdl')}
        """)
        a("s_waitcnt vmcnt(0)")
        self.lds_set(M_LNR, None, tmp=(2, 3))
        a("s_setprio 3")
        self.stamp(2)
        self.get_nonce("sn", tmp=2)
        def fwp():
            a(f"s_lshr_b32 s66, s{S_CB2}, 2\ns_mul_i32 s66, s66, {FSTR}\ns_add_u32 s66, s66, {FW}")
            self.poll_flags("pfw", 66, 48, lstride=2*FSTR)
            self.lds_set(M_FW, None, tmp=(2, 3))
            self.stamp(5)
        if E('SW', 1) == 1: self.lds_wait_all(M_LN, 1, "slw", tmp=2)
        if E('FWF'): fwp()
        a(f"s_cmp_eq_u32 s{S_NCH}, 0\ns_cbranch_scc1 {L('nou')}\ns_mov_b32 s66, {FLN}")
        self.poll_flags("pla", 66, 64, nloads=4)
        self.stamp(3)
        self.u_gather()
        self.lds_set(M_U, None, tmp=(2, 3))
        a(f"{L('nou')}:")
        self.stamp(4)
        if not E('FWF'): fwp()
        self.lds_wait_all(M_HP, 1, "hpw", tmp=2)
        a(f"""
        s_lshr_b32 s66, s{S_RB2}, 1
        s_mul_i32 s66, s66, {16*FHS}
        s_add_u32 s66, s66, {FH}
        v_and_b32 v2, 15, v0
        v_mul_u32_u24 v2, {FHS}, v2
        v_lshrrev_b32 v3, 4, v0
        v_lshl_add_u32 v2, v3, 14, v2
        v_lshlrev_b32 v4, 2, v0
        v_add_u32 v4, {M_FH}, v4
        s_mov_b32 exec_hi, 0xffff
        s_mov_b32 s64, 0
        {L('pfh')}:
        buffer_load_dword v3, v2, s[{R_WS}:{R_WS+3}], s66 offen sc1
        s_add_u32 s64, s64, 1
        s_waitcnt vmcnt(0)
        v_cmp_eq_u32 vcc, s{S_NONCE}, v3
        v_cndmask_b32 v3, 0, 1, vcc
        v_and_b32_dpp v3, v3, v3 quad_perm:[1,0,3,2] row_mask:0xf bank_mask:0xf
        v_and_b32_dpp v3, v3, v3 quad_perm:[2,3,0,1] row_mask:0xf bank_mask:0xf
        ds_write_b32 v4, v3
        s_cmp_gt_u32 s64, 0x8000
        s_cbranch_scc1 {L('pfhx')}
        s_cmp_eq_u64 vcc, exec
        s_cbranch_scc1 {L('pfhd')}
        s_sleep {E('HSLEEP', 4)}
        s_branch {L('pfh')}
        {L('pfhx')}:
        v_mov_b32 v3, 1
        ds_write_b32 v4, v3
        {L('pfhd')}:
        s_mov_b64 exec, -1
        """)
        self.stamp(6)
        self.lds_wait_all(M_J6, 1, "j6w", tmp=2)
        a(f"s_mul_i32 s66, s{S_CB2}, {80*FSTR}\ns_add_u32 s66, s66, {FS}")
        self.poll_flags("pfs", 66, 40, nloads=2, istride=40*FSTR)
        a(f"s_cmp_eq_u32 s{S_NCH}, 0\ns_cbranch_scc1 {L('nocd')}")
        self.lds_wait_all(M_CD, 1, "cdw", tmp=2)
        a(f"{L('nocd')}:")
        self.stamp(7)
        self.s_tile_dma()
        self.stamp(8)
        a("s_barrier")
        a(f"{L('end')}:\ns_endpgm")

if __name__ == "__main__":
    path = sys.argv[1]
    opts = sys.argv[2:]
    g = Fused("fused", "stamps" in opts)
    g.sel = set(range(16)) if "stamps" in opts else ({0, 9} | {int(x) for x in os.environ.get("SEL", "").split(",") if x} if "mins" in opts else set())
    g.build_fused()
    lab = NAME + "_kernel"
    txt = HEADER + f"; @launch grid=(256,1,1) block=(512,1,1) lds={LDS_TOTAL}\n" + '.amdgcn_target "amdgcn-amd-amdhsa--gfx950"\n' + kernel_text(lab, g.a.text()) + desc(lab)
    open(path, "w").write(txt)
```

```python
import sys, os
from parts import *
E = lambda k, d=0: int(os.environ.get(k, d))

class Fused(Gen):
    def cnt_add(self, addr, rtn=False):
        self.a(f"""
        v_mov_b32 v2, {addr}
        v_mov_b32 v3, 1
        s_mov_b64 exec, 1
        {'ds_add_rtn_u32 v4, v2, v3' if rtn else 'ds_add_u32 v2, v3'}
        s_mov_b64 exec, -1
        """)

    def build_fused(self):
        a = self.a
        L = self.L
        st = 2 if self.stamps else 0
        N0 = E('N0', 8)
        GS = E('GS', 24)
        slp = ('s_sleep %d' % PSLEEP) if PSLEEP else ''
        a(f"{L('start')}:")
        self.prologue()
        self.stamp(0)
        a(f"s_cmp_ge_u32 s{S_WAVE}, 4\ns_cbranch_scc1 {L('aux0')}")
        a(f"s_setprio {E('GP', 2)}")
        self.ln_loads()
        self.g1_b1_loads()
        self.w1_addr(12)
        a(f"s_add_u32 s68, s{S_WAVE}, {GS}")
        for i in range((40 - GS) // 4):
            self.w1_group(12)
            a("s_add_u32 s68, s68, 4")
        self.ln_pub_addr()
        a(f"s_waitcnt vmcnt({6 + 3 * ((40 - GS) // 4)})")
        self.stamp(1)
        self.ln_math()
        self.stamp(12)
        a("s_waitcnt lgkmcnt(0)")
        self.lds_set(M_LNW, S_WAVE, tmp=(2, 3))
        self.lds_wait_all(M_LNW, 4, "lnw4", tmp=2, sleep=0)
        self.ln_publish()
        self.stamp(13)
        a(f"s_waitcnt vmcnt({5 + (2 if 13 in self.sel else 0)})")
        self.lds_set(M_W1, S_WAVE, tmp=(2, 3))
        a(f"v_mov_b32 v15, 0\nv_mov_b32 v14, 0\ns_cmp_lg_u32 s{S_WAVE}, 0\ns_cbranch_scc1 {L('g_n0')}")
        a(f"global_load_dword v14, v15, s[{P_DBG}:{P_DBG+1}] sc1\n{L('g_n0')}:")
        self.g1_prep()
        self.g2_addr()
        a(f"s_waitcnt vmcnt(0)")
        self.stamp(2)
        a(f"s_cmp_eq_u32 s{S_WAVE}, 0\ns_cbranch_scc1 {L('g_w0')}")
        self.cnt_add(M_LNCNT)
        a(f"s_branch {L('g_j')}\n{L('g_w0')}:")
        a(f"""
        s_mov_b32 s64, 0
        {L('np')}:
        v_readfirstlane_b32 s{S_NONCE}, v14
        s_cmp_gt_u32 s64, 0x8000
        s_cbranch_scc1 {L('npd')}
        s_cmp_lg_u32 s{S_NONCE}, 0
        s_cbranch_scc1 {L('npd')}
        global_load_dword v14, v15, s[{P_DBG}:{P_DBG+1}] sc1
        s_add_u32 s64, s64, 1
        s_waitcnt vmcnt(0)
        s_nop 1
        s_branch {L('np')}
        {L('npd')}:
        v_mov_b32 v2, s{S_NONCE}
        v_mov_b32 v3, {M_NONCE}
        ds_write_b32 v3, v2
        v_mov_b32 v3, {M_LNCNT}
        s_mov_b32 s64, 0
        {L('lc')}:
        ds_read_b32 v2, v3
        s_add_u32 s64, s64, 1
        s_waitcnt lgkmcnt(0)
        v_readfirstlane_b32 s60, v2
        s_cmp_gt_u32 s64, 0x100000
        s_cbranch_scc1 {L('lcd')}
        s_cmp_lt_u32 s60, 3
        s_cbranch_scc1 {L('lc')}
        {L('lcd')}:
        s_mul_i32 s66, s{S_LID}, {FSTR}
        s_add_u32 s66, s66, {FLN}
        """)
        self.store_flag(66)
        self.stamp(10)
        a(f"s_mul_i32 s66, s{S_RB}, {16*FSTR}\ns_add_u32 s66, s66, {FLN}")
        self.poll_flags("pln", 66, 16)
        self.lds_set(M_LN, None, tmp=(2, 3))
        a(f"{L('g_j')}:")
        self.lds_wait_all(M_LN, 1, "lnw", tmp=2)
        self.stamp(3)
        self.vq = []
        for ks in range(N0):
            for it in self.g1_aload(ks): self.emit(it)
        self.lds_set(M_LN + 4, None, tmp=(2, 3))
        self.get_nonce("gn", tmp=2)
        self.lds_wait_all(M_W1, 4, "w1w", tmp=2)
        self.lds_wait_all(M_LNR, 1, "w1s", tmp=2)
        self.stamp(4, q=True)
        def publish(p):
            self.vwait(f"S{p}")
            self.cnt_add(M_HC + 4 * p, rtn=True)
            a(f"""
            s_mul_i32 s66, s{S_LID}, {FHS}
            s_add_u32 s66, s66, {FH + 16384 * p}
            s_waitcnt lgkmcnt(0)
            s_nop 1
            v_readfirstlane_b32 s60, v4
            s_cmp_lg_u32 s60, 3
            s_cbranch_scc1 {L('nofh%d' % p)}
            """)
            self.store_flag(66)
            if p == 0: self.lds_set(M_HP, None, tmp=(2, 3))
            a(f"{L('nofh%d' % p)}:")
            self.vq.append("f")
            self.vq.pop()
        def cnt_wait(addr, n, name):
            lab = L(name)
            a(f"""
            v_mov_b32 v2, {addr}
            s_mov_b32 s61, 0
            {lab}:
            ds_read_b32 v3, v2
            s_add_u32 s61, s61, 1
            s_waitcnt lgkmcnt(0)
            v_readfirstlane_b32 s60, v3
            s_cmp_gt_u32 s61, 0x100000
            s_cbranch_scc1 {lab}_d
            s_cmp_lt_u32 s60, {n}
            s_cbranch_scc1 {lab}
            {lab}_d:
            """)
        def ev_pd(p):
            def f(): self.cnt_add(M_PD + 4 * p)
            return f
        def ev_dma(p):
            def f():
                if p == 0: self.lds_wait_all(M_FW, 1, "fww", tmp=2)
                cnt_wait(M_PD + 4 * p, 4, f"pdw{p}")
                return self.g2_dma_items(3 + 2 * p) + self.g2_dma_items(4 + 2 * p)
            return f
        def ev_pub0():
            publish(0)
            self.stamp(11, q=True)
        def ev_rb():
            return sum((self.g2_bload_items(j) for j in range(3)), [])
        D0 = E('D0', 3)
        ev = {(1, 0): ev_pd(0), (1, D0): ev_dma(0), (2, 2): ev_dma(1), (2, 9): ev_rb}
        ev[(2, 0)] = lambda: (ev_pd(1)(), ev_pub0())[0]
        ev = {k: v for k, v in ev.items() if v}
        self.g2_setup_s()
        self.g1_loop(N0, ev)
        self.cnt_add(M_PD + 8)
        self.stamp(5, q=True)
        for it in self.epi_ops(2): self.emit(it)
        publish(1)
        if E('PF'): a("s_setprio 0")
        self.fh_wait(0)
        self.stamp(6, q=True)
        for j in range(4):
            for it in self.g2_aload_items(j): self.emit(it)
        for it in ev_dma(2)(): self.emit(it)
        self.g2_setup_v()
        publish(2)
        self.stamp(7, q=True)
        self.g2_loop(hook=lambda: self.lds_set(M_J6, None, tmp=(2, 3)), hook_at=E('J6', 6))
        self.stamp(8)
        if E('PF'): a("s_setprio 2")
        self.g2_final()
        if 9 in self.sel: a("s_waitcnt vmcnt(0)")
        self.stamp(9)
        if E('KX'):
            a(f"""
            s_waitcnt vmcnt(0)
            s_memrealtime s[62:63]
            s_waitcnt lgkmcnt(0)
            s_sub_u32 s60, s62, s{S_NONCE}
            s_min_u32 s60, s60, 10000
            s_mul_i32 s60, s60, {E('KX')}
            {L('kx')}:
            s_memrealtime s[62:63]
            s_waitcnt lgkmcnt(0)
            s_sub_u32 s61, s62, s{S_NONCE}
            s_cmp_lt_u32 s61, s60
            s_cbranch_scc1 {L('kx')}
            """)
        a(f"s_endpgm\n{L('aux0')}:")
        a.clear_hist()
        a(f"s_cmp_eq_u32 s{S_WAVE}, 7\ns_cbranch_scc1 {L('svc')}")
        a(f"s_sub_u32 s60, s{S_WAVE}, 4\ns_cmp_ge_u32 s60, s{S_NCH}\ns_cbranch_scc1 {L('noch')}")
        self.kg_loads()
        a("s_waitcnt vmcnt(0)")
        self.stamp(1)
        self.kgen()
        self.stamp(3)
        self.expand()
        self.stamp(2)
        self.get_nonce("cn", tmp=2)
        self.lds_wait_all(M_U, 1, "uw", tmp=2)
        self.stamp(4)
        if E('PF'): a("s_setprio 1")
        self.conv()
        self.lds_set(M_CD, 70, tmp=(2, 3))
        self.stamp(5)
        a(f"s_mul_i32 s66, s71, {FSTR}\ns_add_u32 s66, s66, {FS}\ns_waitcnt vmcnt(0)")
        self.store_flag(66)
        self.stamp(6)
        a(f"s_endpgm\n{L('noch')}:")
        a.clear_hist()
        a(f"s_cmp_lg_u32 s{S_WAVE}, 6\ns_cbranch_scc1 {L('end')}")
        if E('X2'): self.lds_wait_all(M_NONCE, 1, "x2w", tmp=2)
        self.w2_loads()
        a("s_waitcnt vmcnt(0)")
        self.w2_retile()
        a(f"""
        v_mov_b32 v3, 0
        s_mov_b32 s64, 0
        {L('wn')}:
        global_load_dword v2, v3, s[{P_DBG}:{P_DBG+1}] sc1
        s_add_u32 s64, s64, 1
        s_waitcnt vmcnt(0)
        s_nop 1
        v_readfirstlane_b32 s{S_NONCE}, v2
        s_cmp_gt_u32 s64, 0x8000
        s_cbranch_scc1 {L('wnd')}
        s_cmp_eq_u32 s{S_NONCE}, 0
        s_cbranch_scc1 {L('wn')}
        {L('wnd')}:
        """)
        a(f"s_mul_i32 s66, s43, {FSTR}\ns_add_u32 s66, s66, {FW}\ns_waitcnt vmcnt(0)")
        self.store_flag(66)
        self.stamp(7)
        a(f"s_endpgm\n{L('svc')}:")
        a.clear_hist()
        a(f"""
        s_setprio {E('SP', 1)}
        s_cmp_lg_u32 s2, 0
        s_cbranch_scc1 {L('svc1')}
        s_memrealtime s[62:63]
        v_mov_b32 v3, 0
        s_waitcnt lgkmcnt(0)
        s_or_b32 s61, s62, 1
        v_mov_b32 v2, s61
        s_mov_b64 exec, 1
        global_store_dword v3, v2, s[{P_DBG}:{P_DBG+1}] sc1
        s_mov_b64 exec, -1
        {L('svc1')}:
        """)
        if E('WARM', 1):
            self.srd(R_OUT, P_OUT, 2621440)
            a(f"""
            s_getpc_b64 s[62:63]
            {L('pc')}:
            s_sub_u32 s62, s62, {L('pc')}-{L('start')}
            s_subb_u32 s63, s63, 0
            s_and_b32 s60, s{S_IDX}, 7
            s_lshl_b32 s60, s60, 12
            v_lshlrev_b32 v2, 7, v0
            v_add_u32 v2, s60, v2
            v_min_u32 v2, {L('end')}-{L('start')}, v2
            v_lshlrev_b32 v3, 20, v0
            s_mov_b32 exec_hi, 0
            global_load_dword v130, v2, s[62:63]
            buffer_load_dword v131, v3, s[{R_WS}:{R_WS+3}], 0 offen
            buffer_load_dword v132, v3, s[{R_OUT}:{R_OUT+3}], 0 offen
            s_mov_b64 exec, -1
            """)
        if E('X1'): self.lds_wait_all(M_NONCE, 1, "x1w", tmp=2)
        self.w1_addr(12)
        a(f"""
        s_mul_i32 s68, s{S_RB}, {GS}
        s_lshr_b32 s68, s68, 4
        s_mov_b32 s67, {GS}
        {L('sdl')}:
        """)
        self.w1_group(12)
        a(f"""
        s_add_u32 s68, s68, 1
        s_cmp_eq_u32 s68, {GS}
        s_cselect_b32 s68, 0, s68
        s_sub_u32 s67, s67, 1
        s_cmp_lg_u32 s67, 0
        s_waitcnt vmcnt({E('DEPTH', 45)})
        s_cbranch_scc1 {L('sdl')}
        """)
        a("s_waitcnt vmcnt(0)")
        self.lds_set(M_LNR, None, tmp=(2, 3))
        a("s_setprio 3")
        self.stamp(2)
        self.get_nonce("sn", tmp=2)
        def fwp():
            a(f"s_lshr_b32 s66, s{S_CB2}, 2\ns_mul_i32 s66, s66, {FSTR}\ns_add_u32 s66, s66, {FW}")
            self.poll_flags("pfw", 66, 48, lstride=2*FSTR)
            self.lds_set(M_FW, None, tmp=(2, 3))
            self.stamp(5)
        if E('SW', 1) == 1: self.lds_wait_all(M_LN, 1, "slw", tmp=2)
        if E('FWF'): fwp()
        a(f"s_cmp_eq_u32 s{S_NCH}, 0\ns_cbranch_scc1 {L('nou')}\ns_mov_b32 s66, {FLN}")
        self.poll_flags("pla", 66, 64, nloads=4)
        self.stamp(3)
        self.u_gather()
        self.lds_set(M_U, None, tmp=(2, 3))
        a(f"{L('nou')}:")
        self.stamp(4)
        if not E('FWF'): fwp()
        self.lds_wait_all(M_HP, 1, "hpw", tmp=2)
        a(f"""
        s_lshr_b32 s66, s{S_RB2}, 1
        s_mul_i32 s66, s66, {16*FHS}
        s_add_u32 s66, s66, {FH}
        v_and_b32 v2, 15, v0
        v_mul_u32_u24 v2, {FHS}, v2
        v_lshrrev_b32 v3, 4, v0
        v_lshl_add_u32 v2, v3, 14, v2
        v_lshlrev_b32 v4, 2, v0
        v_add_u32 v4, {M_FH}, v4
        s_mov_b32 exec_hi, 0xffff
        s_mov_b32 s64, 0
        {L('pfh')}:
        buffer_load_dword v3, v2, s[{R_WS}:{R_WS+3}], s66 offen sc1
        s_add_u32 s64, s64, 1
        s_waitcnt vmcnt(0)
        v_cmp_eq_u32 vcc, s{S_NONCE}, v3
        v_cndmask_b32 v3, 0, 1, vcc
        v_and_b32_dpp v3, v3, v3 quad_perm:[1,0,3,2] row_mask:0xf bank_mask:0xf
        v_and_b32_dpp v3, v3, v3 quad_perm:[2,3,0,1] row_mask:0xf bank_mask:0xf
        ds_write_b32 v4, v3
        s_cmp_gt_u32 s64, 0x8000
        s_cbranch_scc1 {L('pfhx')}
        s_cmp_eq_u64 vcc, exec
        s_cbranch_scc1 {L('pfhd')}
        s_sleep {E('HSLEEP', 4)}
        s_branch {L('pfh')}
        {L('pfhx')}:
        v_mov_b32 v3, 1
        ds_write_b32 v4, v3
        {L('pfhd')}:
        s_mov_b64 exec, -1
        """)
        self.stamp(6)
        self.lds_wait_all(M_J6, 1, "j6w", tmp=2)
        a(f"s_mul_i32 s66, s{S_CB2}, {80*FSTR}\ns_add_u32 s66, s66, {FS}")
        self.poll_flags("pfs", 66, 40, nloads=2, istride=40*FSTR)
        a(f"s_cmp_eq_u32 s{S_NCH}, 0\ns_cbranch_scc1 {L('nocd')}")
        self.lds_wait_all(M_CD, 1, "cdw", tmp=2)
        a(f"{L('nocd')}:")
        self.stamp(7)
        self.s_tile_dma()
        self.stamp(8)
        a("s_barrier")
        a(f"{L('end')}:\ns_endpgm")

if __name__ == "__main__":
    path = sys.argv[1]
    opts = sys.argv[2:]
    g = Fused("fused", "stamps" in opts)
    g.sel = set(range(16)) if "stamps" in opts else ({0, 9} | {int(x) for x in os.environ.get("SEL", "").split(",") if x} if "mins" in opts else set())
    g.build_fused()
    lab = NAME + "_kernel"
    txt = HEADER + f"; @launch grid=(256,1,1) block=(512,1,1) lds={LDS_TOTAL}\n" + '.amdgcn_target "amdgcn-amd-amdhsa--gfx950"\n' + kernel_text(lab, g.a.text()) + desc(lab)
    open(path, "w").write(txt)
```

```python
import sys
from asmlib import Asm, vr, sr

NAME = "recurrent_scan__ssm_conv_s4d__dense_activation_squared_relu__prompt"
XF = 0x0; XT = 0x280000; HF = 0x500000; W2F = 0xB00000; ST = 0xD00000
FLG = 0xF80000; STAMP = 0x1000000; WS_SIZE = 0x1100000
import os
FSTR = int(os.environ.get('FSTR','128'))
PSLEEP = int(os.environ.get('PSLEEP','0'))
LSLEEP = int(os.environ.get('LSLEEP','0'))
FHS = int(os.environ.get('FHS','128'))
FLN = FLG; FH = FLG + 0x8000; FW = FLG + 0x20000; FS = FLG + 0x24000; FL2 = FLG + 0x40000
AUX = 122880; RSZ = 12896; K1O = 4160; UO = 8320; UPAD = 480
MISC = AUX + 3 * RSZ
LDS_TOTAL = 163840
M_LNCNT = MISC; M_W1 = MISC + 16; M_G1D = MISC + 32; M_U = MISC + 48; M_NONCE = MISC + 112
M_LNR = MISC + 80; M_LN = MISC + 192; M_LNW = MISC + 240; M_J6 = MISC + 208; M_HP = MISC + 224; M_FW = MISC + 64; M_HCNT = MISC + 68; M_FH = MISC + 256; M_PD = MISC + 128; M_HC = MISC + 144; M_CD = MISC + 96
LNRS = 1296
LNIMG = 122880 - 10752
IMG = [0, 40960, 81920]
XRS = 176; XI = AUX + RSZ; M_B2 = MISC + 512
P_X, P_LA, P_AI, P_CR, P_CI, P_DT, P_DS = 4, 6, 8, 10, 12, 14, 16
P_W1, P_B1, P_W2, P_B2, P_OUT, P_DBG, P_WS = 20, 22, 24, 26, 28, 30, 32
S_WAVE, S_XCD, S_IDX, S_RB, S_CB, S_RB2, S_CB2, S_NCH, S_CH0 = 34, 35, 36, 37, 38, 39, 40, 41, 42
R_WS, R_X, R_W, R_OUT = 44, 48, 52, 56
S_NONCE = 96
S_LID = 93
LOG2E = 0x3fb8aa3b
INV2PI = 0x3e22f983

class Gen:
    def __init__(self, mode, stamps=False):
        self.a = Asm()
        self.mode = mode
        self.fused = mode == "fused"
        self.stamps = stamps
        self.sel = set()
        self.seen = set()
        self.pfx = mode

    def L(self, n):
        return f"{self.pfx}_{n}"

    def stamp(self, slot, q=False):
        if slot not in self.sel: return
        if q: self.vq += ['st']
        a = self.a
        a(f"""
        s_memrealtime s[98:99]
        s_lshl_b32 s100, s2, 3
        s_add_u32 s100, s100, s{S_WAVE}
        s_lshl_b32 s100, s100, 7
        s_add_u32 s100, s100, {STAMP + slot*4}
        s_waitcnt lgkmcnt(0)
        v_mov_b32 v1, s98
        s_mov_b64 s[98:99], exec
        s_mov_b64 exec, 1
        buffer_store_dword v1, off, s[{R_WS}:{R_WS+3}], s100
        s_mov_b64 exec, s[98:99]
        """)

    def srd(self, r, p, size):
        self.a(f"""
        s_mov_b32 s{r}, s{p}
        s_and_b32 s{r+1}, s{p+1}, 0xffff
        s_mov_b32 s{r+2}, {size}
        s_mov_b32 s{r+3}, 0x00020000
        """)

    def prologue(self):
        a = self.a
        a(f"""
        s_cmp_ge_u32 s2, 256
        s_cbranch_scc1 {self.L('end')}
        s_load_dwordx16 s[4:19], s[0:1], 0
        s_load_dwordx8 s[20:27], s[0:1], 64
        s_load_dwordx4 s[28:31], s[0:1], 96
        s_load_dwordx2 s[32:33], s[0:1], 112
        v_lshrrev_b32 v1, 6, v0
        v_and_b32 v0, 63, v0
        s_and_b32 s{S_XCD}, s2, 7
        v_readfirstlane_b32 s{S_WAVE}, v1
        s_lshr_b32 s{S_IDX}, s2, 3
        s_and_b32 s60, s{S_XCD}, 3
        s_lshl_b32 s60, s60, 2
        s_and_b32 s61, s{S_IDX}, 3
        s_add_u32 s{S_RB}, s60, s61
        s_lshr_b32 s60, s{S_XCD}, 2
        s_lshl_b32 s60, s60, 3
        s_lshr_b32 s{S_CB2}, s{S_IDX}, 2
        s_add_u32 s{S_CB}, s60, s{S_CB2}
        s_lshl_b32 s60, s{S_XCD}, 2
        s_add_u32 s{S_RB2}, s60, s61
        ; conv channels: g = idx/3, pos = idx%3
        s_mul_i32 s60, s{S_IDX}, 43
        s_lshr_b32 s60, s60, 7
        s_mul_i32 s61, s60, 3
        s_sub_u32 s61, s{S_IDX}, s61
        s_mul_i32 s62, s{S_XCD}, 80
        s_lshl_b32 s63, s60, 3
        s_add_u32 s62, s62, s63
        s_mul_i32 s63, s61, 3
        s_add_u32 s{S_CH0}, s62, s63
        s_cmp_eq_u32 s61, 2
        s_cselect_b32 s{S_NCH}, 2, 3
        s_cmp_ge_u32 s{S_IDX}, 30
        s_cselect_b32 s{S_NCH}, 0, s{S_NCH}
        s_sub_u32 s61, s{S_IDX}, 20
        s_cselect_b32 s60, s61, s60
        """)
        a.lines.pop(); a.lines.pop()
        a(f"""
        s_sub_u32 s61, s{S_IDX}, 20
        s_cmp_ge_u32 s{S_IDX}, 30
        s_cselect_b32 s60, s61, s60
        s_mul_i32 s61, s{S_XCD}, 12
        s_add_u32 s43, s61, s60
        s_lshl_b32 s{S_LID}, s{S_RB}, 4
        s_add_u32 s{S_LID}, s{S_LID}, s{S_CB}
        v_lshlrev_b32 v2, 3, v0
        v_add_u32 v2, {MISC}, v2
        v_mov_b32 v4, 0
        v_mov_b32 v5, 0
        ds_write_b64 v2, v[4:5]
        s_waitcnt lgkmcnt(0)
        s_barrier
        """)
        self.srd(R_WS, P_WS, WS_SIZE)
        self.srd(R_X, P_X, 2621440)

    def rowaddr(self, dst, row, t):
        self.a(f"""
        v_mul_u32_u24 v{t}, 11, v{row}
        v_lshrrev_b32 v{t}, 5, v{t}
        v_mul_u32_u24 v{dst}, {LNRS}, v{row}
        v_mad_u32_u24 v{dst}, v{t}, s97, v{dst}
        v_lshrrev_b32 v{t}, 1, v{t}
        v_mul_u32_u24 v{t}, 1440, v{t}
        v_add3_u32 v{dst}, v{dst}, v{t}, s61
        """)

    def ln_loads(self):
        a = self.a
        a(f"""
        s_lshl_b32 s60, s{S_LID}, 3
        s_lshl_b32 s61, s{S_WAVE}, 1
        s_add_u32 s60, s60, s61
        s_mul_i32 s60, s60, 1280
        v_lshrrev_b32 v2, 5, v0
        v_and_b32 v3, 31, v0
        v_mul_u32_u24 v1, 1280, v2
        v_lshl_add_u32 v1, v3, 3, v1
        """)
        for i in range(5):
            a(f"buffer_load_dwordx2 v[{100+2*i}:{101+2*i}], v1, s[{R_X}:{R_X+3}], s60 offen offset:{256*i}")

    def reduce32(self, v, t):
        a = self.a
        a(f"""
        v_add_f32_dpp v{v}, v{v}, v{v} quad_perm:[1,0,3,2] row_mask:0xf bank_mask:0xf
        v_add_f32_dpp v{v}, v{v}, v{v} quad_perm:[2,3,0,1] row_mask:0xf bank_mask:0xf
        v_add_f32_dpp v{v}, v{v}, v{v} row_half_mirror row_mask:0xf bank_mask:0xf
        v_add_f32_dpp v{v}, v{v}, v{v} row_mirror row_mask:0xf bank_mask:0xf
        v_mov_b32 v{t}, v{v}
        v_permlane16_swap_b32 v{v}, v{t}
        v_add_f32 v{v}, v{v}, v{t}
        """)

    def ln_math(self):
        a = self.a
        X = 110; Dd = 130; S = 150
        for i in range(10):
            a(f"v_lshlrev_b32 v{X+2*i}, 16, v{100+i}")
            a(f"v_and_b32 v{X+1+2*i}, 0xffff0000, v{100+i}")
        P = lambda r: f"v[{r}:{r+1}]"
        a(f"v_pk_add_f32 {P(S)}, {P(X)}, {P(X+2)}\nv_pk_add_f32 {P(S+2)}, {P(X+4)}, {P(X+6)}")
        for i in range(4, 10):
            a(f"v_pk_add_f32 {P(S+2*(i%2))}, {P(S+2*(i%2))}, {P(X+2*i)}")
        a(f"v_pk_add_f32 {P(S)}, {P(S)}, {P(S+2)}\nv_add_f32 v{S}, v{S}, v{S+1}")
        self.reduce32(S, S + 1)
        a(f"v_mul_f32 v{S+4}, 0x3acccccd, v{S}")
        for i in range(10):
            a(f"v_pk_add_f32 {P(Dd+2*i)}, {P(X+2*i)}, {P(S+4)} op_sel_hi:[1,0] neg_lo:[0,1] neg_hi:[0,1]")
        a(f"v_pk_mul_f32 {P(S)}, {P(Dd)}, {P(Dd)}\nv_pk_mul_f32 {P(S+2)}, {P(Dd+2)}, {P(Dd+2)}")
        for i in range(2, 10):
            a(f"v_pk_fma_f32 {P(S+2*(i%2))}, {P(Dd+2*i)}, {P(Dd+2*i)}, {P(S+2*(i%2))}")
        a(f"v_pk_add_f32 {P(S)}, {P(S)}, {P(S+2)}\nv_add_f32 v{S}, v{S}, v{S+1}")
        self.reduce32(S, S + 1)
        a(f"""
        v_mul_f32 v{S+5}, 0x3acccccd, v{S}
        v_cvt_pk_bf16_f32 v{S}, v{S+4}, v{S+5}
        v_lshlrev_b32 v{S+4}, 16, v{S}
        v_and_b32 v{S+2}, 0xffff0000, v{S}
        v_add_f32 v{S+2}, 0x3727c5ac, v{S+2}
        v_cvt_pk_bf16_f32 v{S+2}, v{S+2}, v{S+2}
        v_and_b32 v{S+2}, 0xffff0000, v{S+2}
        v_sqrt_f32 v{S+2}, v{S+2}
        """)
        for i in range(10):
            a(f"v_pk_add_f32 {P(Dd+2*i)}, {P(X+2*i)}, {P(S+4)} op_sel_hi:[1,0] neg_lo:[0,1] neg_hi:[0,1]")
            if i == 1:
                a(f"v_cvt_pk_bf16_f32 v{S+2}, v{S+2}, v{S+2}\nv_and_b32 v{S+2}, 0xffff0000, v{S+2}\nv_rcp_f32 v{S+2}, v{S+2}")
        for i in range(10):
            a(f"v_cvt_pk_bf16_f32 v{100+i}, v{Dd+2*i}, v{Dd+1+2*i}")
        for i in range(10):
            a(f"v_lshlrev_b32 v{X+2*i}, 16, v{100+i}")
            a(f"v_and_b32 v{X+1+2*i}, 0xffff0000, v{100+i}")
        for i in range(10):
            a(f"v_pk_mul_f32 {P(X+2*i)}, {P(X+2*i)}, {P(S+2)} op_sel_hi:[1,0]")
        for i in range(5):
            a(f"v_cvt_pk_bf16_f32 v{100+2*i}, v{X+4*i}, v{X+4*i+1}")
            a(f"v_cvt_pk_bf16_f32 v{101+2*i}, v{X+4*i+2}, v{X+4*i+3}")
            a(f"ds_write_b64 v98, v[{100+2*i}:{101+2*i}] offset:{256*i}")

    def ln_pub_addr(self):
        a = self.a
        a(f"""
        s_mov_b32 s84, s{S_WAVE}
        s_mov_b32 s97, {RSZ - 3*LNRS}
        s_mov_b32 s61, {AUX + UO + UPAD}
        s_lshl_b32 s60, s{S_WAVE}, 1
        v_lshrrev_b32 v2, 5, v0
        v_add_u32 v2, s60, v2
        """)
        self.rowaddr(98, 2, 5)
        a(f"""
        v_and_b32 v3, 31, v0
        v_lshl_add_u32 v98, v3, 3, v98
        s_lshl_b32 s60, s84, 7
        s_add_u32 s61, s61, s60
        v_and_b32 v1, 7, v0
        """)
        self.rowaddr(156, 1, 5)
        a(f"""
        v_lshrrev_b32 v2, 3, v0
        v_lshl_add_u32 v156, v2, 4, v156
        v_lshrrev_b32 v157, 2, v2
        v_and_b32 v5, 3, v2
        v_lshlrev_b32 v157, 10, v157
        v_lshl_add_u32 v157, v5, 8, v157
        v_lshl_add_u32 v157, v1, 4, v157
        v_and_b32 v1, 15, v0
        v_lshrrev_b32 v2, 2, v1
        v_sub_u32 v3, 7, v2
        v_sub_u32 v2, 3, v2
        """)
        self.rowaddr(158, 2, 5)
        self.rowaddr(99, 3, 5)
        a(f"""
        v_and_b32 v1, 3, v0
        v_lshrrev_b32 v2, 4, v0
        v_lshlrev_b32 v1, 3, v1
        v_lshl_add_u32 v1, v2, 5, v1
        v_add_u32 v158, v158, v1
        v_add_u32 v99, v99, v1
        v_lshlrev_b32 v159, 4, v0
        s_lshr_b32 s85, s{S_LID}, 1
        s_mul_i32 s85, s85, 20480
        s_and_b32 s62, s{S_LID}, 1
        s_lshl_b32 s62, s62, 7
        s_add_u32 s85, s85, s62
        s_lshl_b32 s62, s84, 11
        s_add_u32 s85, s85, s62
        s_add_u32 s86, s85, 8192
        s_add_u32 s87, s85, 16384
        s_mul_i32 s88, s{S_LID}, 10240
        s_lshl_b32 s62, s84, 10
        s_add_u32 s88, s88, s62
        s_add_u32 s88, s88, {XT}
        s_add_u32 s89, s88, 4096
        s_add_u32 s90, s88, 6144
        """)

    def ln_publish(self):
        a = self.a
        sc = "" if os.environ.get('V2') else "sc1"
        W = f"s[{R_WS}:{R_WS+3}]"
        l2 = self.L("lnp_xt3"); l3 = self.L("lnp_done")
        a(f"""
        ds_read_b128 v[160:163], v156
        ds_read_b128 v[164:167], v156 offset:512
        ds_read_b128 v[168:171], v156 offset:1024
        ds_read_b64_tr_b16 v[172:173], v99
        ds_read_b64_tr_b16 v[174:175], v158
        ds_read_b64_tr_b16 v[176:177], v99 offset:512
        ds_read_b64_tr_b16 v[178:179], v158 offset:512
        ds_read_b64_tr_b16 v[180:181], v99 offset:768
        ds_read_b64_tr_b16 v[182:183], v158 offset:768
        s_cmp_ge_u32 s84, 2
        s_waitcnt lgkmcnt(7)
        buffer_store_dwordx4 v[160:163], v157, {W}, s85 offen {sc}
        s_waitcnt lgkmcnt(6)
        buffer_store_dwordx4 v[164:167], v157, {W}, s86 offen {sc}
        s_waitcnt lgkmcnt(5)
        s_cbranch_scc1 {l2}
        buffer_store_dwordx4 v[168:171], v157, {W}, s87 offen {sc}
        {l2}:
        """)

    def ln_publish_xt(self):
        a = self.a
        W = f"s[{R_WS}:{R_WS+3}]"
        l3 = self.L("lnp_done")
        a(f"""
        s_cmp_lt_u32 s84, 2
        s_waitcnt lgkmcnt(0)
        buffer_store_dwordx4 v[172:175], v159, {W}, s88 offen sc1
        buffer_store_dwordx4 v[176:179], v159, {W}, s89 offen sc1
        s_cbranch_scc1 {l3}
        buffer_store_dwordx4 v[180:183], v159, {W}, s90 offen sc1
        {l3}:
        """)

    def w2_loads(self):
        a = self.a
        self.srd(R_W, P_W2, 1966080)
        a(f"""
        s_lshr_b32 s91, s43, 1
        s_and_b32 s92, s43, 1
        s_mul_i32 s62, s91, {32*1280}
        s_mul_i32 s63, s92, 640
        s_add_u32 s62, s62, s63
        s_add_u32 s63, s62, 320
        """)
        for i in range(10):
            a(f"""
            v_add_u32 v1, {64*i}, v0
            v_mul_u32_u24 v2, 52429, v1
            v_lshrrev_b32 v2, 20, v2
            v_mul_u32_u24 v3, 20, v2
            v_sub_u32 v3, v1, v3
            v_mul_u32_u24 v2, 1280, v2
            v_lshl_add_u32 v2, v3, 4, v2
            buffer_load_dwordx4 v[{64+4*i}:{67+4*i}], v2, s[{R_W}:{R_W+3}], s62 offen
            buffer_load_dwordx4 v[{104+4*i}:{107+4*i}], v2, s[{R_W}:{R_W+3}], s63 offen
            """)

    def w2_retile(self):
        a = self.a
        sc = "sc1"
        base = AUX + 2 * RSZ
        a(f"""
        v_lshlrev_b32 v6, 4, v0
        v_add_u32 v1, {base}, v6
        v_lshrrev_b32 v2, 4, v0
        v_and_b32 v3, 15, v0
        v_lshrrev_b32 v3, 2, v3
        v_lshl_add_u32 v2, v2, 2, v3
        v_mul_u32_u24 v2, 320, v2
        v_and_b32 v3, 3, v0
        v_lshl_add_u32 v2, v3, 3, v2
        v_add_u32 v2, {base}, v2
        s_mul_i32 s62, s92, {4*245760}
        s_mul_i32 s63, s91, 5120
        s_add_u32 s62, s62, s63
        s_add_u32 s62, s62, {W2F}
        v_add_u32 v7, 4096, v6
        """)
        for half in range(2):
            src = 64 + 40 * half
            fr = 144 + 40 * half
            for i in range(10):
                a(f"ds_write_b128 v1, v[{src+4*i}:{src+3+4*i}] offset:{1024*i}")
            a("s_waitcnt lgkmcnt(4)")
            for nt in range(10):
                d = fr + 4 * nt
                a(f"ds_read_b64_tr_b16 v[{d}:{d+1}], v2 offset:{32*nt}")
                a(f"ds_read_b64_tr_b16 v[{d+2}:{d+3}], v2 offset:{32*nt+16*320}")
                if nt == 4: a("s_waitcnt lgkmcnt(4)")
            a("s_waitcnt lgkmcnt(0)")
            for nt in range(10):
                d = fr + 4 * nt
                cbl = half * 2 + nt // 5
                n5 = nt % 5
                if n5 == 0:
                    a(f"s_add_u32 s63, s62, {cbl*245760}")
                if n5 < 4:
                    a(f"buffer_store_dwordx4 v[{d}:{d+3}], v6, s[{R_WS}:{R_WS+3}], s63 offen offset:{1024*n5} {sc}")
                else:
                    a(f"buffer_store_dwordx4 v[{d}:{d+3}], v7, s[{R_WS}:{R_WS+3}], s63 offen {sc}")

    def lds_set(self, addr_imm, sidx=None, val=1, tmp=(2, 3)):
        a = self.a
        if sidx is None:
            a(f"v_mov_b32 v{tmp[0]}, {addr_imm}")
        else:
            a(f"s_lshl_b32 s60, s{sidx}, 2\ns_add_u32 s60, s60, {addr_imm}\nv_mov_b32 v{tmp[0]}, s60")
        a(f"v_mov_b32 v{tmp[1]}, {val}\nds_write_b32 v{tmp[0]}, v{tmp[1]}")

    def lds_wait_all(self, addr_imm, n, name, tmp=2, sleep=None):
        if sleep is None: sleep = LSLEEP
        a = self.a
        lab = self.L(name); done = self.L(name + "_d")
        t = tmp
        a(f"""
        v_mov_b32 v{t}, {addr_imm}
        s_mov_b32 s61, 0
        {lab}:
        ds_read_b128 v[{t+2}:{t+5}], v{t}
        s_add_u32 s61, s61, 1
        s_waitcnt lgkmcnt(0)
        """)
        for k in range(1, n):
            a(f"v_min_u32 v{t+2}, v{t+2}, v{t+2+k}")
        a(f"""
        v_readfirstlane_b32 s60, v{t+2}
        s_cmp_gt_u32 s61, 0x100000
        s_cbranch_scc1 {done}
        s_cmp_lg_u32 s60, 0
        s_cbranch_scc1 {done}
        {'s_sleep %d' % sleep if sleep else ''}
        s_branch {lab}
        {done}:
        """)

    def get_nonce(self, name, tmp=2):
        self.lds_wait_all(M_NONCE, 1, name, tmp)
        self.a(f"s_mov_b32 s{S_NONCE}, s60")

    def poll_flags(self, name, soff, nlanes, nloads=1, lstride=FSTR, istride=64*FSTR, tmp=2, pre=None):
        a = self.a
        lab = self.L(name); done = self.L(name + "_d")
        t = tmp
        a(f"v_mul_u32_u24 v{t}, {lstride}, v0")
        a(f"s_mov_b64 s[62:63], exec")
        if nlanes < 64:
            a(f"s_lshr_b64 exec, -1, {64-nlanes}")
        a(f"s_mov_b32 s64, 0\n{lab}:")
        for i in range(nloads):
            if i * istride < 4096:
                a(f"buffer_load_dword v{t+1+i}, v{t}, s[{R_WS}:{R_WS+3}], s{soff} offen offset:{i*istride} sc1")
            else:
                a(f"s_add_u32 s65, s{soff}, {i*istride}\nbuffer_load_dword v{t+1+i}, v{t}, s[{R_WS}:{R_WS+3}], s65 offen sc1")
        a("s_add_u32 s64, s64, 1\ns_waitcnt vmcnt(0)")
        for i in range(nloads):
            a(f"v_xor_b32 v{t+1+i}, s{S_NONCE}, v{t+1+i}")
        for i in range(1, nloads):
            a(f"v_or_b32 v{t+1}, v{t+1}, v{t+1+i}")
        a(f"""
        v_cmp_ne_u32 vcc, 0, v{t+1}
        s_cmp_gt_u32 s64, 0x8000
        s_cbranch_scc1 {done}
        s_cbranch_vccz {done}
        {'s_sleep %d' % PSLEEP if PSLEEP else ''}
        s_branch {lab}
        {done}:
        s_mov_b64 exec, s[62:63]
        """)

    def store_flag(self, soff, tmp=2):
        self.a(f"""
        v_mov_b32 v{tmp}, s{S_NONCE}
        s_mov_b64 s[62:63], exec
        s_mov_b64 exec, 1
        buffer_store_dword v{tmp}, off, s[{R_WS}:{R_WS+3}], s{soff} sc1
        s_mov_b64 exec, s[62:63]
        """)

    def w1_addr(self, vr_):
        self.srd(R_W, P_W1, 1966080)
        self.a(f"""
        v_lshrrev_b32 v5, 2, v0
        v_and_b32 v6, 3, v0
        v_lshrrev_b32 v7, 2, v5
        v_and_b32 v7, 2, v7
        v_xor_b32 v6, v6, v7
        v_mul_u32_u24 v5, 3072, v5
        v_lshl_add_u32 v{vr_}, v6, 4, v5
        v_lshrrev_b32 v5, 3, v0
        v_and_b32 v6, 7, v0
        v_and_b32 v7, 2, v5
        v_xor_b32 v6, v6, v7
        v_mul_u32_u24 v5, 3072, v5
        v_lshl_add_u32 v{vr_+1}, v6, 4, v5
        v_xor_b32 v{vr_+2}, 64, v{vr_+1}
        v_add_u32 v{vr_+2}, {8*3072}, v{vr_+2}
        s_mul_i32 s69, s{S_CB}, 192
        s_and_b32 s60, s{S_CB}, 1
        s_lshl_b32 s61, s60, 7
        s_sub_u32 s65, s69, s61
        s_add_u32 s65, s65, 128
        s_lshl_b32 s61, s60, 6
        s_add_u32 s69, s69, s61
        """)

    def w1_group(self, vr_):
        a = self.a
        a(f"""
        s_mul_i32 s63, s68, {16*3072}
        s_add_u32 s64, s63, s65
        s_add_u32 s63, s63, s69
        s_lshl_b32 m0, s68, 11
        s_lshl_b32 s62, s68, 10
        buffer_load_dwordx4 v{vr_+1}, s[{R_W}:{R_W+3}], s63 offen lds
        s_add_u32 m0, m0, 1024
        s_nop 0
        buffer_load_dwordx4 v{vr_+2}, s[{R_W}:{R_W+3}], s63 offen lds
        s_add_u32 m0, s62, {IMG[2]}
        s_nop 0
        buffer_load_dwordx4 v{vr_}, s[{R_W}:{R_W+3}], s64 offen lds
        """)

    G1_ACC = 16; G1_B = 64; G1_B1 = 64; G1_A = 96
    def g1_b1_loads(self):
        a = self.a
        a(f"""
        v_lshrrev_b32 v5, 4, v0
        v_lshlrev_b32 v5, 3, v5
        v_add_u32 v6, s65, v5
        v_add_u32 v5, s69, v5
        """)
        for t in range(6):
            a(f"global_load_dwordx2 v[{self.G1_B1+2*t}:{self.G1_B1+2*t+1}], v{5 if t < 4 else 6}, s[{P_B1}:{P_B1+1}] offset:{32*(t%4)}")

    def acc_init(self, p):
        r = []
        for k in range(2):
            for lt in range(2):
                d = self.G1_ACC + 16 * p + 8 * k + 4 * lt
                s_ = self.G1_B1 + 2 * (2 * p + k)
                r += [f"v_lshlrev_b32 v{d}, 16, v{s_}", f"v_and_b32 v{d+1}, 0xffff0000, v{s_}",
                      f"v_lshlrev_b32 v{d+2}, 16, v{s_+1}", f"v_and_b32 v{d+3}, 0xffff0000, v{s_+1}"]
        return r

    def g1_prep(self):
        a = self.a
        for x in self.acc_init(0) + self.acc_init(1) + self.acc_init(2): a(x)
        a(f"""
        s_mov_b32 s97, {IMG[2]}
        v_lshrrev_b32 v5, 4, v0
        v_and_b32 v6, 15, v0
        v_lshrrev_b32 v6, 2, v6
        v_lshl_add_u32 v6, v5, 3, v6
        v_lshlrev_b32 v6, 6, v6
        v_and_b32 v7, 3, v0
        v_lshl_add_u32 v6, v7, 3, v6
        v_and_b32 v5, 1, v5
        v_lshlrev_b32 v5, 5, v5
        v_add3_u32 v12, v6, v5, s97
        v_xor_b32 v13, 32, v12
        v_lshrrev_b32 v5, 4, v0
        v_and_b32 v6, 15, v0
        v_lshrrev_b32 v6, 2, v6
        v_lshl_add_u32 v4, v5, 3, v6
        v_lshlrev_b32 v4, 7, v4
        v_lshl_add_u32 v4, v7, 3, v4
        v_lshrrev_b32 v6, 1, v6
        v_and_b32 v5, 1, v5
        v_lshl_add_u32 v6, v5, 1, v6
        v_lshl_add_u32 v10, v6, 5, v4
        v_xor_b32 v11, 32, v10
        v_xor_b32 v14, 64, v10
        v_xor_b32 v15, 96, v10
        s_lshl_b32 s86, s{S_RB}, 3
        s_lshl_b32 s87, s{S_WAVE}, 1
        s_add_u32 s86, s86, s87
        s_mul_i32 s82, s86, 20480
        s_add_u32 s83, s82, 20480
        s_mul_i32 s86, s86, 49152
        s_mul_i32 s87, s{S_CB}, 3072
        s_add_u32 s86, s86, s87
        s_add_u32 s86, s86, {HF}
        s_and_b32 s60, s{S_CB}, 1
        s_lshl_b32 s61, s60, 11
        s_sub_u32 s91, s86, s61
        s_add_u32 s91, s91, 2048
        s_add_u32 s92, s91, 49152
        s_lshl_b32 s61, s60, 10
        s_add_u32 s86, s86, s61
        s_add_u32 s87, s86, 49152
        """)

    def g1_aload(self, ks):
        r = []
        for lt in range(2):
            d = self.G1_A + 8 * ks + 4 * lt
            ins = [f"buffer_load_dwordx4 v[{d}:{d+3}], v9, s[{R_WS}:{R_WS+3}], s{82+lt} offen offset:{1024*(ks%4)} sc1"]
            if ks % 4 == 3 and ks != 19: ins.append(f"s_add_u32 s{82+lt}, s{82+lt}, 4096")
            r.append((ins, f"A{ks}"))
        return r

    def epi_ops(self, p):
        r = []
        for lt in range(2):
            a0 = self.G1_ACC + 16 * p + 4 * lt; b0 = a0 + 8
            for x in (a0, b0):
                for i in range(4): r.append(([f"v_max_f32 v{x+i}, 0, v{x+i}"], None))
                for i in range(4): r.append(([f"v_mul_f32 v{x+i}, v{x+i}, v{x+i}"], None))
            r.append(([f"v_cvt_pk_bf16_f32 v{a0}, v{a0}, v{a0+1}"], None))
            r.append(([f"v_cvt_pk_bf16_f32 v{a0+1}, v{a0+2}, v{a0+3}"], None))
            r.append(([f"v_cvt_pk_bf16_f32 v{a0+2}, v{b0}, v{b0+1}"], None))
            r.append(([f"v_cvt_pk_bf16_f32 v{a0+3}, v{b0+2}, v{b0+3}"], None))
            r.append(([f"buffer_store_dwordx4 v[{a0}:{a0+3}], v9, s[{R_WS}:{R_WS+3}], s{(86 if p < 2 else 91)+lt} offen offset:{1024*(p%2)} sc1"], f"S{p}"))
        return r

    def vwait(self, tag):
        vq = self.vq
        assert tag in self.seen, tag
        idx = [i for i, t in enumerate(vq) if t == tag]
        if not idx: return
        n = len(vq) - 1 - idx[-1]
        self.a(f"s_waitcnt vmcnt({min(n, 63)})"); del vq[:idx[-1] + 1]

    def emit(self, item):
        ins, tag = item
        for x in ins: self.a(x)
        if tag: self.vq.append(tag); self.seen.add(tag)

    def g1_loop(self, N0, events):
        a = self.a
        def rd0(ks):
            r = []
            for t in range(4):
                d = self.G1_B + 16 * (ks % 2) + 4 * t
                off = 4096 * (ks % 10)
                b = (10, 11, 14, 15)[t]
                r.append(f"ds_read_b64_tr_b16 v[{d}:{d+1}], v{b} offset:{off}")
                r.append(f"ds_read_b64_tr_b16 v[{d+2}:{d+3}], v{b} offset:{off+512}")
            return r
        def rd1(ks):
            r = []
            for k in range(2):
                d = self.G1_B + 8 * (ks % 4) + 4 * k
                r.append(f"ds_read_b64_tr_b16 v[{d}:{d+1}], v{12+k} offset:{2048*ks}")
                r.append(f"ds_read_b64_tr_b16 v[{d+2}:{d+3}], v{12+k} offset:{2048*ks+256}")
            return r
        for x in rd0(0): a(x)
        fv = []
        for ks in range(20):
            if (0, ks) in events:
                extra = events[(0, ks)]()
                if extra: fv += extra
            if ks + N0 < 20: fv += self.g1_aload(ks + N0)
            nxt = rd0(ks + 1) if ks < 19 else rd1(0) + rd1(1)
            if ks == 9:
                for b in (10, 11, 14, 15): a(f"v_add_u32 v{b}, 40960, v{b}")
            self.vwait(f"A{ks}")
            n = 0
            for t in range(4):
                if t % 2 == 0: a(f"s_waitcnt lgkmcnt({4 if t == 0 else 4})")
                for lt in range(2):
                    acc = self.G1_ACC + 8 * t + 4 * lt
                    A = self.G1_A + 8 * ks + 4 * lt
                    B = self.G1_B + 16 * (ks % 2) + 4 * t
                    a(f"v_mfma_f32_16x16x32_bf16 v[{acc}:{acc+3}], v[{B}:{B+3}], v[{A}:{A+3}], v[{acc}:{acc+3}]")
                    a(nxt.pop(0))
                    if fv and n in (1, 5): self.emit(fv.pop(0))
                    n += 1
        assert not fv
        fa = []
        for ks in range(20):
            if (1, ks) in events:
                extra = events[(1, ks)]()
                if extra: fv += extra
            if ks == 0: fa += self.epi_ops(0) + self.epi_ops(1)
            nxt = (rd1(2) + rd1(3)[:0] if ks == 0 else []) if False else []
            if ks == 0: nxt = rd1(2)
            elif ks + 2 < 20: nxt = rd1(ks + 2)
            a(f"s_waitcnt lgkmcnt({4 if ks < 19 else 0})")
            n = 0; nv = 0
            vmax = 2 if len(fv) > 20 - ks else 1
            for k in range(2):
                for lt in range(2):
                    acc = self.G1_ACC + 32 + 8 * k + 4 * lt
                    A = self.G1_A + 8 * ks + 4 * lt
                    B = self.G1_B + 8 * (ks % 4) + 4 * k
                    a(f"v_mfma_f32_16x16x32_bf16 v[{acc}:{acc+3}], v[{B}:{B+3}], v[{A}:{A+3}], v[{acc}:{acc+3}]")
                    if nxt: a(nxt.pop(0))
                    if fa and fa[0][1] is not None:
                        self.emit(fa.pop(0)); nv += 1
                    elif fa and not (fv and n == 1 and nv == 0 and os.environ.get('MIX')):
                        for _ in range(int(os.environ.get('ED', '3'))):
                            if fa and fa[0][1] is None: self.emit(fa.pop(0))
                    elif fv and nv < vmax and n in (1, 3):
                        self.emit(fv.pop(0)); nv += 1
                    n += 1
        for it in fa + fv: self.emit(it)

    KP = 44
    def kg_loads(self):
        a = self.a
        a(f"""
        s_sub_u32 s70, s{S_WAVE}, 4
        s_add_u32 s71, s{S_CH0}, s70
        s_mul_i32 s60, s71, 384
        v_lshlrev_b32 v2, 1, v0
        v_add_u32 v2, s60, v2
        s_lshl_b32 s60, s71, 1
        v_mov_b32 v3, s60
        """)
        for p in range(3):
            for k, P in enumerate((P_LA, P_AI, P_CR, P_CI)):
                a(f"global_load_ushort v{self.KP+4*p+k}, v2, s[{P}:{P+1}] offset:{128*p}")
        a(f"global_load_ushort v56, v3, s[{P_DT}:{P_DT+1}]")
        a(f"global_load_ushort v57, v3, s[{P_DS}:{P_DS+1}]")

    def cmul(self, d, x, y):
        return [f"v_pk_mul_f32 v[{d}:{d+1}], v[{x}:{x+1}], v[{y}:{y+1}] op_sel:[0,0] op_sel_hi:[0,1]",
                f"v_pk_fma_f32 v[{d}:{d+1}], v[{x}:{x+1}], v[{y}:{y+1}], v[{d}:{d+1}] op_sel:[1,1,0] op_sel_hi:[1,0,1] neg_lo:[0,1,0]"]

    def kgen(self, hook=None):
        a = self.a
        KP = self.KP
        Z, Z8, W = 60, 62, 64
        F = 66
        F2 = 82
        G = 98
        CV = 102
        SV = 110
        GF, TA, TB = 120, 136, 152
        ACC = 168
        VW, VR, VW2 = 10, 11, 9
        TOFF = 4352
        a(f"""
        s_mul_i32 s72, s70, {RSZ}
        s_add_u32 s72, s72, {AUX}
        v_lshrrev_b32 v2, 2, v0
        v_mul_u32_u24 v2, 272, v2
        v_and_b32 v3, 3, v0
        v_lshl_add_u32 v2, v3, 2, v2
        v_add_u32 v{VW}, s72, v2
        v_add_u32 v{VW2}, {TOFF}, v{VW}
        v_lshrrev_b32 v2, 4, v0
        v_mul_u32_u24 v2, 272, v2
        v_and_b32 v3, 15, v0
        v_lshl_add_u32 v2, v3, 4, v2
        v_add_u32 v{VR}, s72, v2
        v_lshlrev_b32 v56, 16, v56
        v_mul_f32 v56, {LOG2E}, v56
        v_exp_f32 v56, v56
        v_lshlrev_b32 v57, 16, v57
        v_cvt_pk_bf16_f32 v56, v56, v56
        v_and_b32 v56, 0xffff0000, v56
        v_add_f32 v58, v56, v56
        v_mov_b32 v59, 0x3f80
        s_mov_b32 s73, 3
        """)
        for i in range(12): a(f"v_mov_b32 v{ACC+i}, 0")
        loop = self.L("kg_loop")
        a(f"{loop}:")
        if hook: hook()
        a(f"""
        v_lshlrev_b32 v2, 16, v{KP}
        v_mul_f32 v2, {LOG2E}, v2
        v_exp_f32 v2, v2
        v_lshlrev_b32 v3, 16, v{KP+1}
        v_lshlrev_b32 v{F}, 16, v{KP+2}
        v_cvt_pk_bf16_f32 v2, v2, v2
        v_lshlrev_b32 v{F+1}, 16, v{KP+3}
        v_and_b32 v2, 0xffff0000, v2
        v_mul_f32 v3, v3, v56
        v_mul_f32 v2, v2, v56
        v_pk_mul_f32 v[{F}:{F+1}], v[{F}:{F+1}], v[58:59] op_sel_hi:[1,0]
        v_mul_f32 v3, {INV2PI}, v3
        v_mul_f32 v2, 0xbfb8aa3b, v2
        """)
        for k in range(8): a(f"v_mov_b32 v{KP+k}, v{KP+4+k}")
        a(f"""
        v_mul_f32 v4, 0x41000000, v2
        v_mul_f32 v5, 0x41000000, v3
        v_mul_f32 v6, 0x43000000, v2
        v_mul_f32 v7, 0x43000000, v3
        v_fract_f32 v3, v3
        v_fract_f32 v5, v5
        v_fract_f32 v7, v7
        v_exp_f32 v2, v2
        v_exp_f32 v4, v4
        v_exp_f32 v6, v6
        v_cos_f32 v{Z}, v3
        v_sin_f32 v{Z+1}, v3
        v_cos_f32 v{Z8}, v5
        v_sin_f32 v{Z8+1}, v5
        v_cos_f32 v{W}, v7
        v_sin_f32 v{W+1}, v7
        v_pk_mul_f32 v[{Z}:{Z+1}], v[{Z}:{Z+1}], v[2:3] op_sel_hi:[1,0]
        v_pk_mul_f32 v[{Z8}:{Z8+1}], v[{Z8}:{Z8+1}], v[4:5] op_sel_hi:[1,0]
        v_pk_mul_f32 v[{W}:{W+1}], v[{W}:{W+1}], v[6:7] op_sel_hi:[1,0]
        """)
        cvn = [0]
        class Out:
            def __init__(o, base, neg, pool): o.base = base; o.neg = neg; o.pend = None; o.pool = pool; o.n = 0
            def put(o, src, row, reg=None):
                r = []
                if reg is None:
                    reg = CV + 4 * o.pool + o.n % 4; o.n += 1
                    r.append(f"v_cvt_pk_bf16_f32 v{reg}, v{src}, {'-' if o.neg else ''}v{src+1}")
                if o.pend is None: o.pend = (reg, row)
                else:
                    r.append(f"ds_write2_b32 v{o.base}, v{o.pend[0]}, v{reg} offset0:{4*o.pend[1]} offset1:{4*row}")
                    o.pend = None
                return r
        def merge(*streams):
            streams = [list(s) for s in streams]
            out = []
            while any(streams):
                for s in streams:
                    if s: out.append(s.pop(0))
            return out
        og = Out(VW, False, 0); of = Out(VW2, True, 1); oc0 = Out(VW2, True, 0); oc1 = Out(VW2, True, 1); ot = Out(VW2, True, 0)
        gs = og.put(None, 0, 59) + og.put(Z8, 1)
        prev = Z8
        for j in range(2, 16):
            d = G + 2 * (j % 2)
            gs += self.cmul(d, prev, Z8) + og.put(d, j)
            prev = d
        fs = of.put(F, 0)
        for r in range(1, 8):
            fs += self.cmul(F + 2 * r, F + 2 * (r - 1), Z) + of.put(F + 2 * r, r)
        for r in range(8):
            fs += self.cmul(F2 + 2 * r, F + 2 * r, W) + of.put(F2 + 2 * r, 8 + r)
        for ins in merge(gs, fs): a(ins)
        for ks in range(4):
            a(f"ds_read_b128 v[{GF+4*ks}:{GF+4*ks+3}], v{VR} offset:{1088*ks}")
            a(f"ds_read_b128 v[{TA+4*ks}:{TA+4*ks+3}], v{VR} offset:{TOFF+1088*ks}")
        s1 = []
        for i in range(4):
            s1.append(self.cmul(F + 2 * i, F2 + 4 * i, W) + [f"v_cvt_pk_bf16_f32 v{SV+i}, v{F+2*i}, -v{F+2*i+1}"]
                      + self.cmul(F + 8 + 2 * i, F + 2 * i, W) + [f"v_cvt_pk_bf16_f32 v{SV+4+i}, v{F+8+2*i}, -v{F+8+2*i+1}"])
        for ins in merge(*s1): a(ins)
        a("s_waitcnt lgkmcnt(0)")
        mf0 = [f"v_mfma_f32_16x16x32_bf16 v[{ACC}:{ACC+3}], v[{TA+4*ks}:{TA+4*ks+3}], v[{GF+4*ks}:{GF+4*ks+3}], v[{ACC}:{ACC+3}]" for ks in range(4)]
        c0 = []; prev = F + 8
        for i in range(12):
            d = F2 + 2 * (i % 2)
            row = i if i < 4 else i + 4
            c0 += self.cmul(d, prev, W) + oc0.put(d, row)
            prev = d
        last = prev
        c1 = []; prev = F + 12
        for i in range(4):
            d = F2 + 4 + 2 * (i % 2)
            c1 += self.cmul(d, prev, W) + oc1.put(d, 4 + i)
            prev = d
        for ins in merge(c0, c1, mf0): a(ins)
        for ks in range(4):
            a(f"ds_read_b128 v[{TB+4*ks}:{TB+4*ks+3}], v{VR} offset:{TOFF+1088*ks}")
        for ins in self.cmul(F2 + 8, last, W): a(ins)
        for i in range(8):
            for ins in ot.put(None, i, SV + i): a(ins)
        a(f"v_cvt_pk_bf16_f32 v{CV}, v{F2+8}, -v{F2+9}\nds_write_b32 v{VW2}, v{CV} offset:128")
        for ks in range(4):
            a(f"ds_read_b128 v[{TA+4*ks}:{TA+4*ks+3}], v{VR} offset:{TOFF+1088*ks}")
        a("s_waitcnt lgkmcnt(9)")
        for ks in range(4):
            a(f"v_mfma_f32_16x16x32_bf16 v[{ACC+4}:{ACC+7}], v[{TB+4*ks}:{TB+4*ks+3}], v[{GF+4*ks}:{GF+4*ks+3}], v[{ACC+4}:{ACC+7}]")
        a("s_sub_u32 s73, s73, 1\ns_cmp_lg_u32 s73, 0\ns_waitcnt lgkmcnt(0)")
        for ks in range(4):
            a(f"v_mfma_f32_16x16x32_bf16 v[{ACC+8}:{ACC+11}], v[{TA+4*ks}:{TA+4*ks+3}], v[{GF+4*ks}:{GF+4*ks+3}], v[{ACC+8}:{ACC+11}]")
        a(f"s_cbranch_scc1 {loop}")
        self.KACC = ACC

    def expand(self):
        a = self.a
        ACC = self.KACC
        T0, T1, T2 = ACC, ACC + 4, ACC + 8
        a(f"""
        v_and_b32 v2, 15, v0
        v_lshrrev_b32 v3, 4, v0
        v_lshlrev_b32 v4, 3, v2
        v_lshlrev_b32 v5, 2, v3
        v_add_u32 v5, 512, v5
        v_lshlrev_b32 v6, 9, v3
        v_cmp_gt_u32 vcc, 2, v3
        v_cndmask_b32 v5, v6, v5, vcc
        v_add_u32 v5, v5, v4
        v_cndmask_b32 v6, 4, 2, vcc
        v_and_b32 v7, 1, v2
        v_cndmask_b32 v7, v7, v3, vcc
        v_cndmask_b32 v8, 8, 0, vcc
        s_add_u32 s60, s72, 32
        v_sub_u32 v9, v5, v6
        v_lshl_add_u32 v12, v9, 1, s60
        v_add_u32 v13, v12, v8
        v_add_u32 v9, v5, v6
        v_sub_u32 v9, v9, v7
        v_lshl_add_u32 v14, v9, 1, s60
        v_sub_u32 v9, v5, v6
        v_add_u32 v9, v9, v7
        v_lshl_add_u32 v15, v9, 1, s60
        v_add_u32 v15, {K1O-2}, v15
        v_cmp_eq_u32 vcc, 32, v0
        v_add_u32 v9, 4, v15
        v_cndmask_b32 v16, v15, v9, vcc
        v_add_u32 v17, {K1O}, v12
        v_add_u32 v18, {K1O}, v13
        """)
        for i in range(4):
            a(f"v_cvt_pk_bf16_f32 v{20+i}, v{T1+i}, v{T1+i}")
        for i in range(4):
            a(f"ds_write2_b32 v12, v{20+i}, v{20+i} offset0:{64*i} offset1:{64*i+1}")
            a(f"ds_write2_b32 v13, v{20+i}, v{20+i} offset0:{64*i} offset1:{64*i+1}")
            a(f"ds_write2_b32 v17, v{20+i}, v{20+i} offset0:{64*i} offset1:{64*i+1}")
            a(f"ds_write2_b32 v18, v{20+i}, v{20+i} offset0:{64*i} offset1:{64*i+1}")
        for i in range(4):
            a(f"ds_write_b16 v14, v{20+i} offset:{256*i}")
            a(f"ds_write_b16 v{16 if i == 0 else 15}, v{20+i} offset:{256*i}")
        a(f"""
        v_lshlrev_b32 v5, 7, v3
        v_add3_u32 v5, v5, v4, v4
        v_lshlrev_b32 v6, 7, v3
        v_add_u32 v5, v5, v6
        v_add_u32 v5, s60, v5
        v_add_u32 v5, 512, v5
        v_cvt_pk_bf16_f32 v24, v{T2}, v{T2}
        v_cvt_pk_bf16_f32 v25, v{T2}, v{T2+1}
        v_cvt_pk_bf16_f32 v26, v{T2+2}, v{T2+2}
        v_cvt_pk_bf16_f32 v27, v{T2+2}, v{T2+3}
        v_cvt_pk_bf16_f32 v28, v{T2+1}, v{T2+2}
        v_add_u32 v6, {K1O-4}, v5
        v_add_u32 v7, -2, v5
        s_mov_b32 exec_hi, 0
        ds_write2_b32 v5, v24, v28 offset0:0 offset1:1
        ds_write_b32 v5, v26 offset:8
        ds_write_b16_d16_hi v5, v27 offset:12
        ds_write_b16 v7, v24
        ds_write2_b32 v6, v24, v25 offset0:0 offset1:1
        ds_write2_b32 v6, v26, v27 offset0:2 offset1:3
        s_mov_b64 exec, -1
        s_add_u32 s61, s60, {2*2044}
        v_mov_b32 v6, s61
        v_add_u32 v7, {K1O-2}, v6
        v_add_u32 v8, {K1O}, v6
        s_mov_b32 exec_lo, 0
        s_mov_b32 exec_hi, 1
        ds_write2_b32 v6, v24, v24 offset0:0 offset1:1
        ds_write2_b32 v8, v24, v24 offset0:0 offset1:1
        ds_write_b16 v7, v24
        s_mov_b64 exec, -1
        """)
        a(f"""
        v_and_b32 v5, 1, v3
        v_lshlrev_b32 v5, 3, v5
        v_lshrrev_b32 v6, 1, v3
        v_lshl_add_u32 v5, v6, 8, v5
        v_add3_u32 v5, v5, v4, v4
        v_add_u32 v5, s60, v5
        s_mov_b64 exec, 1
        v_add_f32 v{T0}, v{T0}, v57
        s_mov_b64 exec, -1
        v_cvt_pk_bf16_f32 v24, v{T0}, v{T0+1}
        v_cvt_pk_bf16_f32 v25, v{T0+2}, v{T0+3}
        v_cvt_pk_bf16_f32 v26, v{T0+1}, v{T0+2}
        v_add_u32 v6, {K1O-2}, v5
        v_mov_b32 v28, 0
        v_mov_b32 v29, 0
        v_lshlrev_b32 v7, 3, v0
        v_add_u32 v7, s72, v7
        s_mov_b64 exec, 15
        ds_write_b64 v7, v[28:29]
        ds_write_b64 v7, v[28:29] offset:{K1O}
        s_lshr_b64 exec, -1, 4
        ds_write_b64 v7, v[28:29] offset:{UO}
        s_mov_b64 exec, -1
        ds_write_b64 v5, v[24:25]
        ds_write_b16 v6, v24
        ds_write_b32 v5, v26 offset:{K1O}
        ds_write_b16_d16_hi v6, v25 offset:6
        """)

    def u_gather(self):
        a = self.a
        sc = "sc1" if self.fused else ""
        a(f"""
        v_lshrrev_b32 v2, 2, v0
        v_and_b32 v3, 3, v0
        v_mul_u32_u24 v4, 10240, v2
        v_lshl_add_u32 v4, v3, 4, v4
        s_lshl_b32 s60, s{S_CH0}, 4
        s_add_u32 s60, s60, {XT}
        v_mul_u32_u24 v5, {RSZ}, v3
        v_lshl_add_u32 v5, v2, 4, v5
        v_add_u32 v5, {AUX+UO+UPAD}, v5
        v_cmp_gt_u32 vcc, s{S_NCH}, v3
        s_mov_b64 s[62:63], exec
        s_and_b64 exec, exec, vcc
        """)
        for i in range(16):
            a(f"buffer_load_dwordx4 v[{40+4*i}:{43+4*i}], v4, s[{R_WS}:{R_WS+3}], s60 offen {sc}")
            if i < 15: a(f"s_add_u32 s60, s60, {16*10240}")
        for i in range(16):
            a(f"s_waitcnt vmcnt({14-i})" if i < 15 else "s_nop 7")
            a(f"ds_write_b128 v5, v[{40+4*i}:{43+4*i}] offset:{256*i}")
        a("s_mov_b64 exec, s[62:63]\ns_waitcnt lgkmcnt(0)")

    def conv(self):
        a = self.a
        sc = "sc1" if self.fused else ""
        ACC = 60; OP = [92, 156]
        AB = 12
        a(f"""
        v_and_b32 v2, 15, v0
        v_lshrrev_b32 v3, 4, v0
        v_lshlrev_b32 v4, 3, v3
        v_sub_u32 v4, v2, v4
        v_add_u32 v4, {233+16-224}, v4
        v_and_b32 v5, 1, v2
        v_and_b32 v4, -2, v4
        v_lshlrev_b32 v4, 1, v4
        v_cmp_eq_u32 vcc, 0, v5
        v_mov_b32 v6, {K1O}
        v_cndmask_b32 v5, 0, v6, vcc
        v_add3_u32 v{AB}, v4, v5, s72
        v_add_u32 v{AB+1}, 1024, v{AB}
        v_add_u32 v{AB+2}, 2048, v{AB}
        v_add_u32 v{AB+3}, 3072, v{AB}
        v_lshlrev_b32 v4, 5, v2
        v_lshl_add_u32 v4, v3, 4, v4
        s_add_u32 s60, s72, {UO}
        v_add_u32 v16, s60, v4
        """)
        for i in range(32): a(f"v_mov_b32 v{ACC+i}, 0")
        def reads(tau):
            s = OP[tau % 2]
            r = []
            for d in range(8):
                r.append(f"ds_read_b128 v[{s+32+4*d}:{s+35+4*d}], v16 offset:{512*d+64*tau}")
                o = 512 * d - 64 * tau + 448
                b = AB + o // 1024; q = (o % 1024) // 4
                r.append(f"ds_read2_b32 v[{s+4*d}:{s+4*d+1}], v{b} offset0:{q} offset1:{q+1}")
                r.append(f"ds_read2_b32 v[{s+4*d+2}:{s+4*d+3}], v{b} offset0:{q+2} offset1:{q+3}")
            return r
        r0 = reads(0)
        for k, ins in enumerate(r0):
            a(ins)
            if k == 12: a("s_waitcnt lgkmcnt(3)")
        for tau in range(8):
            s = OP[tau % 2]
            nxt = reads(tau + 1) if tau < 7 else []
            pairs = sorted([(d, n) for d in range(8) for n in range(8 - d)], key=lambda p: (max(p), p))
            a("s_waitcnt lgkmcnt(0)")
            for k, (d, n) in enumerate(pairs):
                acc = ACC + 4 * (d + n)
                a(f"v_mfma_f32_16x16x32_bf16 v[{acc}:{acc+3}], v[{s+4*d}:{s+4*d+3}], v[{s+32+4*n}:{s+35+4*n}], v[{acc}:{acc+3}]")
                if nxt and k < 30 and k % 5 != 4:
                    a(nxt.pop(0))
            assert not nxt
        a(f"""
        v_lshlrev_b32 v5, 5, v2
        v_lshl_add_u32 v5, v3, 3, v5
        s_lshl_b32 s61, s71, 12
        s_add_u32 s61, s61, {ST}
        """)
        for n in range(8):
            acc = ACC + 4 * n; o = 128 + 2 * n
            a(f"""
            v_cvt_pk_bf16_f32 v{o}, v{acc}, v{acc+1}
            v_cvt_pk_bf16_f32 v{o+1}, v{acc+2}, v{acc+3}
            buffer_store_dwordx2 v[{o}:{o+1}], v5, s[{R_WS}:{R_WS+3}], s61 offen offset:{512*n} {sc}
            """)

    G2_ACC = 16; G2_RB = 96; G2_BT = 156; G2_A = 176
    def g2_addr(self):
        self.a(f"""
        v_lshlrev_b32 v9, 4, v0
        v_add_u32 v8, 4096, v9
        s_mul_i32 s74, s{S_CB2}, 245760
        s_mul_i32 s60, s{S_WAVE}, {12*5120}
        s_add_u32 s74, s74, s60
        s_add_u32 s74, s74, {W2F}
        s_mul_i32 s75, s{S_WAVE}, 10240
        """)
    @staticmethod
    def kloc(j):
        tp, cbl = divmod(j, 4)
        return 3 * cbl + (tp + (cbl & 1)) % 3

    @staticmethod
    def lslot(j):
        q = j if j < 6 else j - 9
        return IMG[q // 2] + (q % 2) * 5120

    def g2_dma_items(self, j):
        W = f"s[{R_WS}:{R_WS+3}]"
        l0 = self.lslot(j)
        r = []
        for nt in range(5):
            pre = [f"s_add_u32 s81, s74, {5120*self.kloc(j)}"] if nt == 0 else []
            if nt < 4: r.append((pre + [f"s_add_u32 m0, s75, {l0}", f"buffer_load_dwordx4 v9, {W}, s81 offen offset:{1024*nt} sc1 lds"], f"D{j}"))
            else: r.append(([f"s_add_u32 m0, s75, {l0+4096}", f"buffer_load_dwordx4 v8, {W}, s81 offen sc1 lds"], f"D{j}"))
        return r

    def g2_bload_items(self, j):
        W = f"s[{R_WS}:{R_WS+3}]"
        r = []
        for nt in range(5):
            d = self.G2_RB + 20 * (j % 3) + 4 * nt
            pre = [f"s_add_u32 s81, s74, {5120*self.kloc(j)}"] if nt == 0 else []
            if nt < 4: r.append((pre + [f"buffer_load_dwordx4 v[{d}:{d+3}], v9, {W}, s81 offen offset:{1024*nt} sc1"], f"B{j}"))
            else: r.append(([f"buffer_load_dwordx4 v[{d}:{d+3}], v8, {W}, s81 offen sc1"], f"B{j}"))
        return r

    def g2_aload_items(self, j):
        W = f"s[{R_WS}:{R_WS+3}]"
        k = self.kloc(j)
        vo = (9, 8, 13)[k // 4]
        r = []
        for i in range(4):
            d = self.G2_A + 16 * (j % 5) + 4 * i
            r.append(([f"buffer_load_dwordx4 v[{d}:{d+3}], v{vo}, {W}, s{76+i} offen offset:{1024*(k%4)} sc1"], f"A{j}"))
        return r

    def g2_setup_s(self):
        a = self.a
        for i in range(4):
            a(f"""
            s_add_u32 s60, s{S_WAVE}, {i}
            s_and_b32 s60, s60, 3
            s_lshl_b32 s61, s{S_RB2}, 2
            s_add_u32 s60, s60, s61
            s_mul_i32 s60, s60, 49152
            s_mul_i32 s61, s{S_WAVE}, {12*1024}
            s_add_u32 s60, s60, s61
            s_add_u32 s{76+i}, s60, {HF}
            """)
    def g2_setup_v(self):
        a = self.a
        self.seen = {t for t in self.seen if not t.startswith("A")}
        a(f"v_add_u32 v10, s75, v9\nv_add_u32 v14, {IMG[2]}, v10\nv_add_u32 v13, 8192, v9")

    def fh_wait(self, tp):
        self.a(f"s_lshl_b32 s66, s{S_WAVE}, 4\ns_add_u32 s66, s66, {M_FH + 64*tp}")
        self.lds_wait_all("s66", 1, f"fhw{tp}", tmp=2)

    def g2_loop(self, hook=None, hook_at=6, fill0=None):
        a = self.a
        def bt_read(j, nt):
            d = self.G2_BT + 4 * nt
            off = self.lslot(j) + 1024 * nt
            if off < IMG[2]: a(f"ds_read_b128 v[{d}:{d+3}], v10 offset:{off}")
            else: a(f"ds_read_b128 v[{d}:{d+3}], v14 offset:{off-IMG[2]}")
        F1 = int(os.environ.get('F1', '0')); F2 = int(os.environ.get('F2', '3'))
        sched = {}
        for jj in range(4, 12):
            sched.setdefault(max(jj - 5, F1 if jj < 8 else F2), []).append(jj)
        fill = list(fill0 or [])
        self.vwait("D0")
        for nt in range(5): bt_read(0, nt)
        for j in range(12):
            inreg = 6 <= j < 9
            nxt_l = j + 1 < 12 and not (6 <= j + 1 < 9)
            if hook and j == hook_at: hook()
            self.stamp(16 + j, q=True)
            self.vwait(f"A{j}")
            if inreg: self.vwait(f"B{j}")
            if nxt_l: self.vwait(f"D{j+1}")
            for nt in range(5):
                if inreg:
                    B = self.G2_RB + 20 * (j % 3) + 4 * nt
                else:
                    B = self.G2_BT + 4 * nt
                    a(f"s_waitcnt lgkmcnt({4 if nxt_l else 4-nt})")
                for i in range(4):
                    acc = self.G2_ACC + 16 * nt + 4 * i
                    A = self.G2_A + 16 * (j % 5) + 4 * i
                    a(f"v_mfma_f32_16x16x32_bf16 v[{acc}:{acc+3}], v[{B}:{B+3}], v[{A}:{A+3}], {'0' if j == 0 else f'v[{acc}:{acc+3}]'}")
                    if fill and i in (0, 2): self.emit(fill.pop(0))
                if nxt_l: bt_read(j + 1, nt)
            pri = []
            for jj in sched.get(j, []):
                if jj in (4, 8): self.fh_wait(jj // 4)
                pri += self.g2_aload_items(jj)
            if pri and pri[0][1] == f"A{j+1}":
                for it in pri[:4]: self.emit(it)
                pri = pri[4:]
            fill = pri + fill
            if j < 3: fill += self.g2_dma_items(j + 9)
        assert not fill

    FX = 96; FB = 106
    def svc_x_loads(self):
        a = self.a
        a(f"""
        s_mul_i32 s60, s{S_RB2}, {64*1280}
        s_mul_i32 s61, s{S_CB2}, 160
        s_add_u32 s60, s60, s61
        """)
        for i in range(10):
            a(f"""
            v_add_u32 v2, {64*i}, v0
            v_mul_u32_u24 v3, 52429, v2
            v_lshrrev_b32 v3, 19, v3
            v_mul_u32_u24 v4, 10, v3
            v_sub_u32 v4, v2, v4
            v_lshlrev_b32 v4, 4, v4
            v_mad_u32_u24 v{184+i}, v3, s97, v4
            v_mul_u32_u24 v3, 1280, v3
            v_add_u32 v3, v3, v4
            buffer_load_dwordx4 v[{140+4*i}:{143+4*i}], v3, s[{R_X}:{R_X+3}], s60 offen
            """.replace("s97", "s67") if False else f"""
            v_add_u32 v2, {64*i}, v0
            v_mul_u32_u24 v3, 52429, v2
            v_lshrrev_b32 v3, 19, v3
            v_mul_u32_u24 v4, 10, v3
            v_sub_u32 v4, v2, v4
            v_lshlrev_b32 v4, 4, v4
            v_mul_u32_u24 v5, {XRS}, v3
            v_add_u32 v{184+i}, v5, v4
            v_mul_u32_u24 v3, 1280, v3
            v_add_u32 v3, v3, v4
            buffer_load_dwordx4 v[{140+4*i}:{143+4*i}], v3, s[{R_X}:{R_X+3}], s60 offen
            """)
        a(f"""
        v_min_u32 v2, 39, v0
        v_lshlrev_b32 v2, 2, v2
        v_add_u32 v2, s61, v2
        global_load_dword v180, v2, s[{P_B2}:{P_B2+1}]
        """)

    def svc_x_write(self):
        a = self.a
        for i in range(10):
            a(f"v_add_u32 v{184+i}, {XI}, v{184+i}")
        for i in range(10):
            a(f"ds_write_b128 v{184+i}, v[{140+4*i}:{143+4*i}]")
        a(f"""
        v_lshlrev_b32 v182, 16, v180
        v_and_b32 v183, 0xffff0000, v180
        v_min_u32 v2, 39, v0
        v_lshlrev_b32 v2, 3, v2
        v_add_u32 v2, {M_B2}, v2
        ds_write_b64 v2, v[182:183]
        """)

    def s_tile_dma(self):
        a = self.a
        sc = "sc1" if self.fused else ""
        a(f"""
        v_lshrrev_b32 v2, 3, v0
        v_and_b32 v3, 7, v0
        v_lshlrev_b32 v2, 12, v2
        v_lshl_add_u32 v2, v3, 4, v2
        s_mul_i32 s60, s{S_CB2}, {80*4096}
        s_lshl_b32 s61, s{S_RB2}, 7
        s_add_u32 s60, s60, s61
        s_add_u32 s60, s60, {ST}
        """)
        for t in range(10):
            a(f"s_mov_b32 m0, {AUX+1024*t}")
            a(f"buffer_load_dwordx4 v2, s[{R_WS}:{R_WS+3}], s60 offen {sc} lds")
            if t < 9: a(f"s_add_u32 s60, s60, {8*4096}")
        self.svc_x_write()
        a("s_waitcnt vmcnt(0) lgkmcnt(0)")

    def g2_final(self):
        a = self.a
        ACC = self.G2_ACC
        self.srd(R_OUT, P_OUT, 2621440)
        for i in range(1, 4):
            for nt in range(5):
                acc = ACC + 16 * nt + 4 * i
                if i < 3: a(f"ds_write_b128 v10, v[{acc}:{acc+3}] offset:{IMG[i-1]+1024*nt}")
                else: a(f"ds_write_b128 v14, v[{acc}:{acc+3}] offset:{1024*nt}")
        for i in range(1, 4):
            a(f"""
            s_sub_u32 s60, s{S_WAVE}, {i}
            s_and_b32 s60, s60, 3
            s_mul_i32 s60, s60, 10240
            s_add_u32 s60, s60, {IMG[i-1]}
            v_add_u32 v{4+i}, s60, v9
            """)
        a(f"""
        v_and_b32 v2, 15, v0
        v_lshrrev_b32 v3, 4, v0
        v_lshrrev_b32 v12, 2, v2
        v_lshl_add_u32 v12, v3, 2, v12
        v_lshlrev_b32 v12, 7, v12
        v_and_b32 v15, 3, v0
        v_lshl_add_u32 v12, v15, 3, v12
        s_lshl_b32 s60, s{S_WAVE}, 5
        s_add_u32 s60, s60, {AUX}
        v_add_u32 v12, s60, v12
        s_mul_i32 s60, s{S_WAVE}, {16*XRS}
        s_add_u32 s60, s60, {XI}
        v_mul_u32_u24 v11, {XRS}, v2
        v_lshl_add_u32 v11, v3, 3, v11
        v_add_u32 v11, s60, v11
        v_lshlrev_b32 v13, 4, v3
        v_add_u32 v13, {M_B2}, v13
        v_mov_b32 v250, 1.0
        v_mov_b32 v251, 1.0
        v_mov_b32 v252, 0xbfb8aa3b
        s_lshl_b32 s80, s{S_RB2}, 2
        s_add_u32 s80, s80, s{S_WAVE}
        s_mul_i32 s80, s80, {16*1280}
        s_mul_i32 s61, s{S_CB2}, 160
        s_add_u32 s80, s80, s61
        """)
        for i in range(3):
            a(f"""
            v_add_u32 v2, {64*i}, v0
            v_mul_u32_u24 v3, 52429, v2
            v_lshrrev_b32 v3, 19, v3
            v_mul_u32_u24 v4, 10, v3
            v_sub_u32 v4, v2, v4
            v_lshlrev_b32 v4, 4, v4
            v_mul_u32_u24 v2, {XRS}, v3
            v_add3_u32 v{240+i}, v2, v4, s60
            v_mul_u32_u24 v3, 1280, v3
            v_add_u32 v{243+i}, v3, v4
            """)
        a("s_waitcnt lgkmcnt(0)\ns_barrier")
        P = 96
        def reads(nt):
            p = P + 20 * nt
            for i in range(1, 4):
                a(f"ds_read_b128 v[{p+4*(i-1)}:{p+4*(i-1)+3}], v{4+i} offset:{1024*nt}")
            a(f"ds_read_b128 v[{p+12}:{p+15}], v13 offset:{64*nt}")
            a(f"ds_read_b64_tr_b16 v[{p+16}:{p+17}], v12 offset:{2048*nt}")
            a(f"ds_read_b64 v[{p+18}:{p+19}], v11 offset:{32*nt}")
        reads(0); reads(1)
        Pp = lambda r: f"v[{r}:{r+1}]"
        for nt in range(5):
            acc = ACC + 16 * nt; p = P + 20 * nt; t = 200 + 12 * (nt % 2)
            a(f"s_waitcnt lgkmcnt({6 if nt < 4 else 1})" if nt != 0 else "s_waitcnt lgkmcnt(6)")
            a(f"""
            v_pk_add_f32 {Pp(acc)}, {Pp(acc)}, {Pp(p)}
            v_pk_add_f32 {Pp(acc+2)}, {Pp(acc+2)}, {Pp(p+2)}
            v_pk_add_f32 {Pp(p+4)}, {Pp(p+4)}, {Pp(p+8)}
            v_pk_add_f32 {Pp(p+6)}, {Pp(p+6)}, {Pp(p+10)}
            v_pk_add_f32 {Pp(acc)}, {Pp(acc)}, {Pp(p+12)}
            v_pk_add_f32 {Pp(acc+2)}, {Pp(acc+2)}, {Pp(p+14)}
            v_pk_add_f32 {Pp(acc)}, {Pp(acc)}, {Pp(p+4)}
            v_pk_add_f32 {Pp(acc+2)}, {Pp(acc+2)}, {Pp(p+6)}
            v_pk_mul_f32 {Pp(t)}, {Pp(acc)}, v[252:253] op_sel_hi:[1,0]
            v_pk_mul_f32 {Pp(t+2)}, {Pp(acc+2)}, v[252:253] op_sel_hi:[1,0]
            """)
            for i in range(4): a(f"v_exp_f32 v{t+i}, v{t+i}")
            if nt + 2 < 5: reads(nt + 2)
            a(f"""
            v_lshlrev_b32 v{t+4}, 16, v{p+16}
            v_and_b32 v{t+5}, 0xffff0000, v{p+16}
            v_lshlrev_b32 v{t+6}, 16, v{p+17}
            v_and_b32 v{t+7}, 0xffff0000, v{p+17}
            v_pk_add_f32 {Pp(t)}, {Pp(t)}, v[250:251]
            v_pk_add_f32 {Pp(t+2)}, {Pp(t+2)}, v[250:251]
            """)
            for i in range(4): a(f"v_rcp_f32 v{t+i}, v{t+i}")
            a(f"""
            v_pk_mul_f32 {Pp(t+4)}, {Pp(t+4)}, {Pp(acc)}
            v_pk_mul_f32 {Pp(t+6)}, {Pp(t+6)}, {Pp(acc+2)}
            v_lshlrev_b32 v{t+8}, 16, v{p+18}
            v_and_b32 v{t+9}, 0xffff0000, v{p+18}
            v_lshlrev_b32 v{t+10}, 16, v{p+19}
            v_and_b32 v{t+11}, 0xffff0000, v{p+19}
            v_pk_fma_f32 {Pp(t+8)}, {Pp(t+4)}, {Pp(t)}, {Pp(t+8)}
            v_pk_fma_f32 {Pp(t+10)}, {Pp(t+6)}, {Pp(t+2)}, {Pp(t+10)}
            v_cvt_pk_bf16_f32 v{p+18}, v{t+8}, v{t+9}
            v_cvt_pk_bf16_f32 v{p+19}, v{t+10}, v{t+11}
            ds_write_b64 v11, v[{p+18}:{p+19}] offset:{32*nt}
            """)
        osc = os.environ.get('OSC', '')
        a(f"""
        ds_read_b128 v[224:227], v240
        ds_read_b128 v[228:231], v241
        s_mov_b32 exec_hi, 0
        ds_read_b128 v[232:235], v242
        s_mov_b64 exec, -1
        s_waitcnt lgkmcnt(1)
        buffer_store_dwordx4 v[224:227], v243, s[{R_OUT}:{R_OUT+3}], s80 offen {osc}
        s_waitcnt lgkmcnt(0)
        buffer_store_dwordx4 v[228:231], v244, s[{R_OUT}:{R_OUT+3}], s80 offen {osc}
        s_mov_b32 exec_hi, 0
        buffer_store_dwordx4 v[232:235], v245, s[{R_OUT}:{R_OUT+3}], s80 offen {osc}
        s_mov_b64 exec, -1
        """)

    def misc_init(self):
        self.a(f"""
        v_lshlrev_b32 v2, 2, v0
        v_add_u32 v2, {MISC}, v2
        v_mov_b32 v3, 0
        ds_write_b32 v2, v3
        """)


HEADER = open("cdna_kernels/" + NAME + ".s.ref").read().split("; Override launch")[0]

def kernel_text(label, body):
    return f""".text
.globl {label}
.p2align 8
.type {label},@function
{label}:
{body}
"""
def desc(label, vgpr=256):
    return f""".section .rodata,"a"
.p2align 6
.amdhsa_kernel {label}
  .amdhsa_next_free_vgpr {vgpr}
  .amdhsa_next_free_sgpr 102
  .amdhsa_accum_offset {vgpr}
  .amdhsa_group_segment_fixed_size 0
  .amdhsa_kernarg_size 120
  .amdhsa_user_sgpr_count 2
  .amdhsa_user_sgpr_kernarg_segment_ptr 1
  .amdhsa_system_sgpr_workgroup_id_x 1
.end_amdhsa_kernel
"""
```

```python
import sys, os
from parts import *
E = lambda k, d=0: int(os.environ.get(k, d))

class Fused(Gen):
    def cnt_add(self, addr, rtn=False):
        self.a(f"""
        v_mov_b32 v2, {addr}
        v_mov_b32 v3, 1
        s_mov_b64 exec, 1
        {'ds_add_rtn_u32 v4, v2, v3' if rtn else 'ds_add_u32 v2, v3'}
        s_mov_b64 exec, -1
        """)

    def cnt_wait(self, addr, n, name, sleep=0):
        lab = self.L(name)
        self.a(f"""
        v_mov_b32 v2, {addr}
        s_mov_b32 s61, 0
        {lab}:
        ds_read_b32 v3, v2
        s_add_u32 s61, s61, 1
        s_waitcnt lgkmcnt(0)
        v_readfirstlane_b32 s60, v3
        s_cmp_gt_u32 s61, 0x100000
        s_cbranch_scc1 {lab}_d
        s_cmp_ge_u32 s60, {n}
        s_cbranch_scc1 {lab}_d
        {'s_sleep %d' % sleep if sleep else ''}
        s_branch {lab}
        {lab}_d:
        """)

    def build_fused(self):
        a = self.a
        L = self.L
        st = 2 if self.stamps else 0
        N0 = E('N0', 8)
        GS = E('GS', 16)
        slp = ('s_sleep %d' % PSLEEP) if PSLEEP else ''
        def xt_flag(p):
            a("s_waitcnt vmcnt(0)")
            self.cnt_add(M_LNCNT + 8, rtn=True)
            a(f"""
            s_mul_i32 s66, s{S_LID}, {FSTR}
            s_add_u32 s66, s66, {FLT}
            s_waitcnt lgkmcnt(0)
            s_nop 1
            v_readfirstlane_b32 s60, v4
            s_cmp_lg_u32 s60, 3
            s_cbranch_scc1 {L('xtf' + p)}
            """)
            self.store_flag(66)
            a(f"{L('xtf' + p)}:")
        NA = (40 - GS) // 3
        assert GS + 3 * NA == 40
        def aux_dma(p):
            self.w1_addr(12)
            a(f"s_add_u32 s68, s70, {GS}\n{L('adl' + p)}:")
            self.w1_group(12)
            a(f"s_add_u32 s68, s68, 3\ns_cmp_lt_u32 s68, 40\ns_cbranch_scc1 {L('adl' + p)}")
        a(f"{L('start')}:")
        a("s_memrealtime s[94:95]")
        self.prologue()
        self.stamp(0)
        a(f"s_cmp_ge_u32 s{S_WAVE}, 4\ns_cbranch_scc1 {L('aux0')}")
        a(f"s_setprio {E('GP', 2)}")
        self.ln_loads()
        self.w1_addr(92)
        self.g1_b1_loads()
        self.ln_pub_addr()
        a(f"s_waitcnt vmcnt(6)")
        self.stamp(1)
        self.ln_math()
        a("s_waitcnt lgkmcnt(0)")
        self.lds_set(M_LNW, S_WAVE, tmp=(2, 3))
        self.lds_wait_all(M_LNW, 4, "lnw4", tmp=2, sleep=0)
        a(f"v_mov_b32 v97, 0\nv_mov_b32 v96, 0\ns_cmp_lg_u32 s{S_WAVE}, 0\ns_cbranch_scc1 {L('g_n0')}")
        a(f"global_load_dword v96, v97, s[{P_DBG}:{P_DBG+1}] sc1\n{L('g_n0')}:")
        self.ln_publish()
        self.ln_publish_xt()
        self.stamp(13)
        self.cnt_add(M_LNCNT + 8)
        a("s_waitcnt vmcnt(5)" if 13 not in self.sel else "s_waitcnt vmcnt(6)")
        self.g1_prep()
        self.g2_addr()
        a("s_waitcnt vmcnt(0)")
        self.stamp(2)
        a(f"s_cmp_eq_u32 s{S_WAVE}, 0\ns_cbranch_scc1 {L('g_w0')}")
        self.cnt_add(M_LNCNT)
        a(f"s_branch {L('g_j')}\n{L('g_w0')}:")
        a(f"""
        s_mov_b32 s64, 0
        {L('np')}:
        v_readfirstlane_b32 s{S_NONCE}, v96
        s_cmp_gt_u32 s64, 0x8000
        s_cbranch_scc1 {L('npd')}
        s_cmp_lg_u32 s{S_NONCE}, 0
        s_cbranch_scc1 {L('npd')}
        global_load_dword v96, v97, s[{P_DBG}:{P_DBG+1}] sc1
        s_add_u32 s64, s64, 1
        s_waitcnt vmcnt(0)
        s_nop 1
        s_branch {L('np')}
        {L('npd')}:
        v_mov_b32 v2, s{S_NONCE}
        v_mov_b32 v3, {M_NONCE}
        ds_write_b32 v3, v2
        v_mov_b32 v3, {M_LNCNT}
        s_mov_b32 s64, 0
        {L('lc')}:
        ds_read_b32 v2, v3
        s_add_u32 s64, s64, 1
        s_waitcnt lgkmcnt(0)
        v_readfirstlane_b32 s60, v2
        s_cmp_gt_u32 s64, 0x100000
        s_cbranch_scc1 {L('lcd')}
        s_cmp_lt_u32 s60, 3
        s_cbranch_scc1 {L('lc')}
        {L('lcd')}:
        s_mul_i32 s66, s{S_LID}, {FSTR}
        s_add_u32 s66, s66, {FLN}
        """)
        self.store_flag(66)
        self.stamp(10)
        a(f"s_mul_i32 s66, s{S_RB}, {16*FSTR}\ns_add_u32 s66, s66, {FLN}")
        self.poll_flags("pln", 66, 16)
        self.lds_set(M_LN, None, tmp=(2, 3))
        a(f"s_cmp_lg_u32 s{S_RB}, s{S_CB}\ns_cbranch_scc1 {L('g_j')}\ns_mul_i32 s66, s{S_RB}, {FSTR}\ns_add_u32 s66, s66, {FL2}")
        self.store_flag(66)
        a(f"{L('g_j')}:")
        self.lds_wait_all(M_LN, 1, "lnw", tmp=2)
        self.stamp(3)
        self.vq = []
        for ks in range(N0):
            for it in self.g1_aload(ks): self.emit(it)
        self.lds_set(M_LN + 4, None, tmp=(2, 3))
        self.get_nonce("gn", tmp=2)
        self.lds_wait_all(M_W1, 4, "w1w", tmp=2)
        self.stamp(4, q=True)
        self.pubn = ''
        def publish(p):
            self.vwait(f"S{p}")
            self.cnt_add(M_HC + 4 * p, rtn=True)
            a(f"""
            s_mul_i32 s66, s{S_LID}, {FHS}
            s_add_u32 s66, s66, {FH + 256 * FHS * p}
            s_waitcnt lgkmcnt(0)
            s_nop 1
            v_readfirstlane_b32 s60, v4
            s_cmp_lg_u32 s60, 3
            s_cbranch_scc1 {L('nofh%d%s' % (p, self.pubn))}
            """)
            self.store_flag(66)
            if p == 0: self.lds_set(M_HP, None, tmp=(2, 3))
            a(f"{L('nofh%d%s' % (p, self.pubn))}:")
            self.stamp(28 + p, q=True)
            self.vq.append("f")
            self.vq.pop()
        def cnt_wait(addr, n, name):
            lab = L(name)
            a(f"""
            v_mov_b32 v2, {addr}
            s_mov_b32 s61, 0
            {lab}:
            ds_read_b32 v3, v2
            s_add_u32 s61, s61, 1
            s_waitcnt lgkmcnt(0)
            v_readfirstlane_b32 s60, v3
            s_cmp_gt_u32 s61, 0x100000
            s_cbranch_scc1 {lab}_d
            s_cmp_lt_u32 s60, {n}
            s_cbranch_scc1 {lab}
            {lab}_d:
            """)
        def ev_pd(p):
            def f(): self.cnt_add(M_PD + 4 * p)
            return f
        def ev_dma(p):
            def f():
                if p == 0: self.lds_wait_all(M_FW, 1, "fww", tmp=2)
                cnt_wait(M_PD + 4 * p, 4, f"pdw{p}")
                return self.g2_dma_items(2 * p) + self.g2_dma_items(1 + 2 * p)
            return f
        def ev_pub0():
            publish(0)
        def ev_rb():
            return sum((self.g2_bload_items(j) for j in range(6, 9)), [])
        D0 = E('D0', 6)
        def ev_d01():
            return ev_dma(0)() + self.g2_dma_items(2) + self.g2_dma_items(3)
        ev = {(0, 10): lambda: self.stamp(14, q=True), (1, 0): lambda: (ev_pd(0)(), self.stamp(15, q=True))[0], (1, D0): ev_d01,
              (1, E('P0', 14)): ev_pub0, (1, E('P1', 19)): lambda: publish(1)}
        if E('RB1'): ev[(1, E('RB1'))] = ev_rb
        self.g2_setup_s()
        self.g1_loop(N0, ev)
        self.cnt_add(M_PD + 8)
        self.stamp(5, q=True)
        for it in self.epi_ops(2): self.emit(it)
        self.g2_setup_v()
        if E('PF'): a("s_setprio 0")
        a(f"""
        s_lshl_b32 s66, s{S_WAVE}, 4
        s_add_u32 s66, s66, {M_FH}
        v_mov_b32 v2, s66
        ds_read_b32 v3, v2
        s_waitcnt lgkmcnt(0)
        v_readfirstlane_b32 s60, v3
        s_cmp_eq_u32 s60, 0
        s_cbranch_scc1 {L('slowp')}
        """)
        self.stamp(6, q=True)
        save = list(self.vq)
        for j in range(4):
            for it in self.g2_aload_items(j): self.emit(it)
        self.pubn = "x"
        publish(2)
        a(f"s_branch {L('g2go')}\n{L('slowp')}:")
        self.vq = save
        self.pubn = "y"
        publish(2)
        self.fh_wait(0)
        for j in range(4):
            for it in self.g2_aload_items(j): self.emit(it)
        a(f"{L('g2go')}:")
        self.stamp(7, q=True)
        self.g2_loop(hook=lambda: self.lds_set(M_J6, None, tmp=(2, 3)), hook_at=E('J6', 6), fill0=ev_dma(2)() + ([] if E('RB1') else ev_rb()))
        self.stamp(8)
        if E('PF'): a("s_setprio 2")
        self.g2_final()
        if 9 in self.sel: a("s_waitcnt vmcnt(0)")
        self.stamp(9)
        if E('KX'):
            a(f"""
            s_waitcnt vmcnt(0)
            s_memrealtime s[62:63]
            s_waitcnt lgkmcnt(0)
            s_sub_u32 s60, s62, s{S_NONCE}
            s_min_u32 s60, s60, 10000
            s_mul_i32 s60, s60, {E('KX')}
            {L('kx')}:
            s_memrealtime s[62:63]
            s_waitcnt lgkmcnt(0)
            s_sub_u32 s61, s62, s{S_NONCE}
            s_cmp_lt_u32 s61, s60
            s_cbranch_scc1 {L('kx')}
            """)
        a(f"s_endpgm\n{L('aux0')}:")
        a.clear_hist()
        a(f"s_cmp_eq_u32 s{S_WAVE}, 7\ns_cbranch_scc1 {L('svc')}")
        a(f"s_sub_u32 s60, s{S_WAVE}, 4\ns_cmp_ge_u32 s60, s{S_NCH}\ns_cbranch_scc1 {L('noch')}")
        self.kg_loads()
        aux_dma("a")
        a(f"s_waitcnt vmcnt({3 * NA})")
        self.stamp(1)
        if E('X1'):
            self.get_nonce("x1n", tmp=2)
            self.lds_set(M_CD, 70, tmp=(2, 3))
            a(f"s_mul_i32 s66, s71, {FSTR}\ns_add_u32 s66, s66, {FS}")
            self.store_flag(66)
            a("s_endpgm")
        def khook():
            a(f"s_cmp_lg_u32 s73, 2\ns_cbranch_scc1 {L('kh')}\ns_waitcnt vmcnt(0)")
            self.lds_set(M_W1, 70, tmp=(2, 3))
            a(f"{L('kh')}:")
        self.kgen(hook=khook)
        self.stamp(3)
        self.expand()
        self.stamp(2)
        self.get_nonce("cn", tmp=2)
        self.lds_wait_all(M_U, 1, "uw", tmp=2)
        self.stamp(4)
        if E('CW'):
            lab = L("cw")
            a(f"""
            v_mov_b32 v2, {M_PD + 4 * (E('CW') - 1)}
            s_mov_b32 s61, 0
            {lab}:
            ds_read_b32 v3, v2
            s_add_u32 s61, s61, 1
            s_waitcnt lgkmcnt(0)
            v_readfirstlane_b32 s60, v3
            s_cmp_gt_u32 s61, 0x100000
            s_cbranch_scc1 {lab}_d
            s_cmp_ge_u32 s60, 4
            s_cbranch_scc1 {lab}_d
            s_sleep 2
            s_branch {lab}
            {lab}_d:
            """)
        if E('PF'): a("s_setprio 1")
        self.conv()
        self.lds_set(M_CD, 70, tmp=(2, 3))
        self.stamp(5)
        a(f"s_mul_i32 s66, s71, {FSTR}\ns_add_u32 s66, s66, {FS}\ns_waitcnt vmcnt(0)")
        self.store_flag(66)
        self.stamp(6)
        a(f"s_endpgm\n{L('noch')}:")
        a.clear_hist()
        a(f"s_sub_u32 s70, s{S_WAVE}, 4")
        aux_dma("b")
        a(f"s_cmp_eq_u32 s{S_WAVE}, 6\ns_cbranch_scc1 {L('rt')}\ns_waitcnt vmcnt(0)")
        self.lds_set(M_W1, 70, tmp=(2, 3))
        a(f"s_endpgm\n{L('rt')}:")
        self.w2_loads()
        a("s_waitcnt vmcnt(0)")
        self.lds_set(M_W1, 70, tmp=(2, 3))
        self.cnt_wait(M_LNCNT + 8, 4, "rtw", sleep=2)
        a("s_setprio 3")
        self.w2_retile()
        a(f"""
        v_mov_b32 v3, 0
        s_mov_b32 s64, 0
        {L('wn')}:
        global_load_dword v2, v3, s[{P_DBG}:{P_DBG+1}] sc1
        s_add_u32 s64, s64, 1
        s_waitcnt vmcnt(0)
        s_nop 1
        v_readfirstlane_b32 s{S_NONCE}, v2
        s_cmp_gt_u32 s64, 0x8000
        s_cbranch_scc1 {L('wnd')}
        s_cmp_eq_u32 s{S_NONCE}, 0
        s_cbranch_scc1 {L('wn')}
        {L('wnd')}:
        """)
        a(f"s_mul_i32 s66, s43, {FSTR}\ns_add_u32 s66, s66, {FW}\ns_waitcnt vmcnt(0)")
        self.store_flag(66)
        self.stamp(7)
        a(f"s_endpgm\n{L('svc')}:")
        a.clear_hist()
        a(f"""
        s_setprio {E('SP', 1)}
        s_cmp_lg_u32 s2, 0
        s_cbranch_scc1 {L('svc1')}
        v_mov_b32 v3, 0
        s_or_b32 s61, s94, 1
        v_mov_b32 v2, s61
        s_mov_b64 exec, 1
        global_store_dword v3, v2, s[{P_DBG}:{P_DBG+1}] sc1
        s_mov_b64 exec, -1
        {L('svc1')}:
        """)
        if E('WARM', 1):
            self.srd(R_OUT, P_OUT, 2621440)
            a(f"""
            s_getpc_b64 s[62:63]
            {L('pc')}:
            s_sub_u32 s62, s62, {L('pc')}-{L('start')}
            s_subb_u32 s63, s63, 0
            s_and_b32 s60, s{S_IDX}, 7
            s_lshl_b32 s60, s60, 12
            v_lshlrev_b32 v2, 7, v0
            v_add_u32 v2, s60, v2
            v_min_u32 v2, {L('end')}-{L('start')}, v2
            v_lshlrev_b32 v3, 20, v0
            s_mov_b32 exec_hi, 0
            global_load_dword v130, v2, s[62:63]
            buffer_load_dword v131, v3, s[{R_WS}:{R_WS+3}], 0 offen
            buffer_load_dword v132, v3, s[{R_OUT}:{R_OUT+3}], 0 offen
            s_mov_b64 exec, -1
            """)
        if E('X1'): self.lds_wait_all(M_NONCE, 1, "x1w", tmp=2)
        self.w1_addr(12)
        a(f"""
        s_mul_i32 s68, s{S_RB}, {GS}
        s_lshr_b32 s68, s68, 4
        s_mov_b32 s67, {GS}
        {L('sdl')}:
        """)
        self.w1_group(12)
        a(f"""
        s_add_u32 s68, s68, 1
        s_cmp_eq_u32 s68, {GS}
        s_cselect_b32 s68, 0, s68
        s_sub_u32 s67, s67, 1
        s_cmp_lg_u32 s67, 0
        s_waitcnt vmcnt({E('DEPTH', 45)})
        s_cbranch_scc1 {L('sdl')}
        """)
        a("s_waitcnt vmcnt(0)")
        self.lds_set(M_W1 + 12, None, tmp=(2, 3))
        a("s_setprio 3")
        self.stamp(2)
        self.get_nonce("sn", tmp=2)
        def fwp():
            a(f"s_lshr_b32 s66, s{S_CB2}, 2\ns_mul_i32 s66, s66, {FSTR}\ns_add_u32 s66, s66, {FW}")
            if E('L2P', 0):
                a(f"s_mov_b32 s66, {FW}")
                self.poll_flags("pfw", 66, 48, nloads=2, istride=48*FSTR)
            else:
                self.poll_flags("pfw", 66, 48, lstride=2*FSTR)
            self.lds_set(M_FW, None, tmp=(2, 3))
            if E('L2P', 0):
                a(f"s_mul_i32 s60, s{S_IDX}, {480*128}\ns_add_u32 s60, s60, {W2F}\nv_lshlrev_b32 v2, 7, v0")
                for i in range(8):
                    if i == 7: a("s_mov_b32 exec_hi, 0")
                    a(f"buffer_load_dword v{200+i}, v2, s[{R_WS}:{R_WS+3}], s60 offen sc1\ns_add_u32 s60, s60, 8192")
                a("s_mov_b64 exec, -1")
            self.stamp(5)
        if E('SW', 1) == 1: self.lds_wait_all(M_LN, 1, "slw", tmp=2)
        fwp()
        a(f"s_cmp_eq_u32 s{S_NCH}, 0\ns_cbranch_scc1 {L('nou')}\ns_mov_b32 s66, {FL2}")
        self.poll_flags("pla", 66, 16)
        self.stamp(3)
        self.u_gather()
        self.lds_set(M_U, None, tmp=(2, 3))
        a(f"{L('nou')}:")
        self.stamp(4)
        self.svc_x_loads()
        self.lds_wait_all(M_HP, 1, "hpw", tmp=2)
        a(f"""
        s_lshr_b32 s66, s{S_RB2}, 1
        s_mul_i32 s66, s66, {16*FHS}
        s_add_u32 s66, s66, {FH}
        v_and_b32 v2, 15, v0
        v_mul_u32_u24 v2, {FHS}, v2
        v_lshrrev_b32 v3, 4, v0
        v_lshl_add_u32 v2, v3, {(256 * FHS).bit_length() - 1}, v2
        v_lshlrev_b32 v4, 2, v0
        v_add_u32 v4, {M_FH}, v4
        s_mov_b32 exec_hi, 0xffff
        s_mov_b32 s64, 0
        {L('pfh')}:
        buffer_load_dword v3, v2, s[{R_WS}:{R_WS+3}], s66 offen sc1
        s_add_u32 s64, s64, 1
        s_waitcnt vmcnt(0)
        v_cmp_eq_u32 vcc, s{S_NONCE}, v3
        v_cndmask_b32 v3, 0, 1, vcc
        v_and_b32_dpp v3, v3, v3 quad_perm:[1,0,3,2] row_mask:0xf bank_mask:0xf
        v_and_b32_dpp v3, v3, v3 quad_perm:[2,3,0,1] row_mask:0xf bank_mask:0xf
        ds_write_b32 v4, v3
        s_cmp_gt_u32 s64, 0x8000
        s_cbranch_scc1 {L('pfhx')}
        s_cmp_eq_u64 vcc, exec
        s_cbranch_scc1 {L('pfhd')}
        s_sleep {E('HSLEEP', 4)}
        s_branch {L('pfh')}
        {L('pfhx')}:
        v_mov_b32 v3, 1
        ds_write_b32 v4, v3
        {L('pfhd')}:
        s_mov_b64 exec, -1
        """)
        self.stamp(6)
        self.lds_wait_all(M_J6, 1, "j6w", tmp=2)
        a(f"s_mul_i32 s66, s{S_CB2}, {80*FSTR}\ns_add_u32 s66, s66, {FS}")
        self.poll_flags("pfs", 66, 40, nloads=2, istride=40*FSTR)
        a(f"s_cmp_eq_u32 s{S_NCH}, 0\ns_cbranch_scc1 {L('nocd')}")
        self.lds_wait_all(M_CD, 2, "cdw", tmp=2)
        a(f"{L('nocd')}:")
        self.stamp(7)
        self.s_tile_dma()
        self.stamp(8)
        a("s_barrier")
        a(f"{L('end')}:\ns_endpgm")

if __name__ == "__main__":
    path = sys.argv[1]
    opts = sys.argv[2:]
    g = Fused("fused", "stamps" in opts)
    g.sel = set(range(32)) if "stamps" in opts else ({0, 9} | {int(x) for x in os.environ.get("SEL", "").split(",") if x} if "mins" in opts else set())
    g.build_fused()
    lab = NAME + "_kernel"
    txt = HEADER + f"; @launch grid=(256,1,1) block=(512,1,1) lds={LDS_TOTAL}\n" + '.amdgcn_target "amdgcn-amd-amdhsa--gfx950"\n' + kernel_text(lab, g.a.text()) + desc(lab)
    if E('X4'):
        import re
        txt = re.sub(r"(buffer_load_dwordx4 .*?) sc1", r"\1", txt)
    if E('X2'):
        txt = "\n".join(("    s_nop 0" if ("s81 offen" in l) else l) for l in txt.split("\n"))
    open(path, "w").write(txt)
```

```python
import sys
from asmlib import Asm, vr, sr

NAME = "recurrent_scan__ssm_conv_s4d__dense_activation_squared_relu__prompt"
XF = 0x0; XT = 0x280000; HF = 0x500000; W2F = 0xB00000; ST = 0xD00000
FLG = 0xF80000; STAMP = 0x1000000; WS_SIZE = 0x1100000
import os
FSTR = int(os.environ.get('FSTR','128'))
PSLEEP = int(os.environ.get('PSLEEP','0'))
LSLEEP = int(os.environ.get('LSLEEP','0'))
FHS = int(os.environ.get('FHS','128'))
FLN = FLG; FH = FLG + 0x8000; FW = FLG + 0x20000; FS = FLG + 0x24000; FL2 = FLG + 0x40000
AUX = 122880; RSZ = 12896; K1O = 4160; UO = 8320; UPAD = 480
MISC = AUX + 3 * RSZ
LDS_TOTAL = 163840
M_LNCNT = MISC; M_W1 = MISC + 16; M_G1D = MISC + 32; M_U = MISC + 48; M_NONCE = MISC + 112
M_LNR = MISC + 80; M_LN = MISC + 192; M_LNW = MISC + 240; M_J6 = MISC + 208; M_HP = MISC + 224; M_FW = MISC + 64; M_HCNT = MISC + 68; M_FH = MISC + 256; M_PD = MISC + 128; M_HC = MISC + 144; M_CD = MISC + 96
LNRS = 1296
LNIMG = 122880 - 10752
IMG = [0, 40960, 81920]
XRS = 176; XI = AUX + RSZ; M_B2 = MISC + 512
P_X, P_LA, P_AI, P_CR, P_CI, P_DT, P_DS = 4, 6, 8, 10, 12, 14, 16
P_W1, P_B1, P_W2, P_B2, P_OUT, P_DBG, P_WS = 20, 22, 24, 26, 28, 30, 32
S_WAVE, S_XCD, S_IDX, S_RB, S_CB, S_RB2, S_CB2, S_NCH, S_CH0 = 34, 35, 36, 37, 38, 39, 40, 41, 42
R_WS, R_X, R_W, R_OUT = 44, 48, 52, 56
S_NONCE = 96
S_LID = 93
LOG2E = 0x3fb8aa3b
INV2PI = 0x3e22f983

class Gen:
    def __init__(self, mode, stamps=False):
        self.a = Asm()
        self.mode = mode
        self.fused = mode == "fused"
        self.stamps = stamps
        self.sel = set()
        self.seen = set()
        self.pfx = mode

    def L(self, n):
        return f"{self.pfx}_{n}"

    def stamp(self, slot, q=False):
        if slot not in self.sel: return
        if q: self.vq += ['st']
        a = self.a
        a(f"""
        s_memrealtime s[98:99]
        s_lshl_b32 s100, s2, 3
        s_add_u32 s100, s100, s{S_WAVE}
        s_lshl_b32 s100, s100, 7
        s_add_u32 s100, s100, {STAMP + slot*4}
        s_waitcnt lgkmcnt(0)
        v_mov_b32 v1, s98
        s_mov_b64 s[98:99], exec
        s_mov_b64 exec, 1
        buffer_store_dword v1, off, s[{R_WS}:{R_WS+3}], s100
        s_mov_b64 exec, s[98:99]
        """)

    def srd(self, r, p, size):
        self.a(f"""
        s_mov_b32 s{r}, s{p}
        s_and_b32 s{r+1}, s{p+1}, 0xffff
        s_mov_b32 s{r+2}, {size}
        s_mov_b32 s{r+3}, 0x00020000
        """)

    def prologue(self):
        a = self.a
        a(f"""
        s_cmp_ge_u32 s2, 256
        s_cbranch_scc1 {self.L('end')}
        s_load_dwordx16 s[4:19], s[0:1], 0
        s_load_dwordx8 s[20:27], s[0:1], 64
        s_load_dwordx4 s[28:31], s[0:1], 96
        s_load_dwordx2 s[32:33], s[0:1], 112
        v_lshrrev_b32 v1, 6, v0
        v_and_b32 v0, 63, v0
        s_and_b32 s{S_XCD}, s2, 7
        v_readfirstlane_b32 s{S_WAVE}, v1
        s_lshr_b32 s{S_IDX}, s2, 3
        s_and_b32 s60, s{S_XCD}, 3
        s_lshl_b32 s60, s60, 2
        s_and_b32 s61, s{S_IDX}, 3
        s_add_u32 s{S_RB}, s60, s61
        s_lshr_b32 s60, s{S_XCD}, 2
        s_lshl_b32 s60, s60, 3
        s_lshr_b32 s{S_CB2}, s{S_IDX}, 2
        s_add_u32 s{S_CB}, s60, s{S_CB2}
        s_lshl_b32 s60, s{S_XCD}, 2
        s_add_u32 s{S_RB2}, s60, s61
        ; conv channels: g = idx/3, pos = idx%3
        s_mul_i32 s60, s{S_IDX}, 43
        s_lshr_b32 s60, s60, 7
        s_mul_i32 s61, s60, 3
        s_sub_u32 s61, s{S_IDX}, s61
        s_mul_i32 s62, s{S_XCD}, 80
        s_lshl_b32 s63, s60, 3
        s_add_u32 s62, s62, s63
        s_mul_i32 s63, s61, 3
        s_add_u32 s{S_CH0}, s62, s63
        s_cmp_eq_u32 s61, 2
        s_cselect_b32 s{S_NCH}, 2, 3
        s_cmp_ge_u32 s{S_IDX}, 30
        s_cselect_b32 s{S_NCH}, 0, s{S_NCH}
        s_sub_u32 s61, s{S_IDX}, 20
        s_cselect_b32 s60, s61, s60
        """)
        a.lines.pop(); a.lines.pop()
        a(f"""
        s_sub_u32 s61, s{S_IDX}, 20
        s_cmp_ge_u32 s{S_IDX}, 30
        s_cselect_b32 s60, s61, s60
        s_mul_i32 s61, s{S_XCD}, 12
        s_add_u32 s43, s61, s60
        s_lshl_b32 s{S_LID}, s{S_RB}, 4
        s_add_u32 s{S_LID}, s{S_LID}, s{S_CB}
        v_lshlrev_b32 v2, 3, v0
        v_add_u32 v2, {MISC}, v2
        v_mov_b32 v4, 0
        v_mov_b32 v5, 0
        ds_write_b64 v2, v[4:5]
        {'s_memrealtime s[90:91]' if os.environ.get('DG') == '0' else ''}
        s_waitcnt lgkmcnt(0)
        {'s_memrealtime s[90:91]' if os.environ.get('DG') == '1' else ''}
        s_barrier
        {'s_memrealtime s[90:91]' if os.environ.get('DG') == '2' else ''}
        """)
        self.srd(R_WS, P_WS, WS_SIZE)
        self.srd(R_X, P_X, 2621440)

    def rowaddr(self, dst, row, t):
        self.a(f"""
        v_mul_u32_u24 v{t}, 11, v{row}
        v_lshrrev_b32 v{t}, 5, v{t}
        v_mul_u32_u24 v{dst}, {LNRS}, v{row}
        v_mad_u32_u24 v{dst}, v{t}, s97, v{dst}
        v_lshrrev_b32 v{t}, 1, v{t}
        v_mul_u32_u24 v{t}, 1440, v{t}
        v_add3_u32 v{dst}, v{dst}, v{t}, s61
        """)

    def ln_loads(self):
        a = self.a
        a(f"""
        s_lshl_b32 s60, s{S_LID}, 3
        s_lshl_b32 s61, s{S_WAVE}, 1
        s_add_u32 s60, s60, s61
        s_mul_i32 s60, s60, 1280
        v_lshrrev_b32 v2, 5, v0
        v_and_b32 v3, 31, v0
        v_mul_u32_u24 v1, 1280, v2
        v_lshl_add_u32 v1, v3, 3, v1
        """)
        for i in range(5):
            a(f"buffer_load_dwordx2 v[{100+2*i}:{101+2*i}], v1, s[{R_X}:{R_X+3}], s60 offen offset:{256*i}")

    def reduce32(self, v, t):
        a = self.a
        a(f"""
        v_add_f32_dpp v{v}, v{v}, v{v} quad_perm:[1,0,3,2] row_mask:0xf bank_mask:0xf
        v_add_f32_dpp v{v}, v{v}, v{v} quad_perm:[2,3,0,1] row_mask:0xf bank_mask:0xf
        v_add_f32_dpp v{v}, v{v}, v{v} row_half_mirror row_mask:0xf bank_mask:0xf
        v_add_f32_dpp v{v}, v{v}, v{v} row_mirror row_mask:0xf bank_mask:0xf
        v_mov_b32 v{t}, v{v}
        v_permlane16_swap_b32 v{v}, v{t}
        v_add_f32 v{v}, v{v}, v{t}
        """)

    def ln_math(self):
        a = self.a
        X = 110; Dd = 130; S = 150
        for i in range(10):
            a(f"v_lshlrev_b32 v{X+2*i}, 16, v{100+i}")
            a(f"v_and_b32 v{X+1+2*i}, 0xffff0000, v{100+i}")
        P = lambda r: f"v[{r}:{r+1}]"
        a(f"v_pk_add_f32 {P(S)}, {P(X)}, {P(X+2)}\nv_pk_add_f32 {P(S+2)}, {P(X+4)}, {P(X+6)}")
        for i in range(4, 10):
            a(f"v_pk_add_f32 {P(S+2*(i%2))}, {P(S+2*(i%2))}, {P(X+2*i)}")
        a(f"v_pk_add_f32 {P(S)}, {P(S)}, {P(S+2)}\nv_add_f32 v{S}, v{S}, v{S+1}")
        self.reduce32(S, S + 1)
        a(f"v_mul_f32 v{S+4}, 0x3acccccd, v{S}")
        for i in range(10):
            a(f"v_pk_add_f32 {P(Dd+2*i)}, {P(X+2*i)}, {P(S+4)} op_sel_hi:[1,0] neg_lo:[0,1] neg_hi:[0,1]")
        a(f"v_pk_mul_f32 {P(S)}, {P(Dd)}, {P(Dd)}\nv_pk_mul_f32 {P(S+2)}, {P(Dd+2)}, {P(Dd+2)}")
        for i in range(2, 10):
            a(f"v_pk_fma_f32 {P(S+2*(i%2))}, {P(Dd+2*i)}, {P(Dd+2*i)}, {P(S+2*(i%2))}")
        a(f"v_pk_add_f32 {P(S)}, {P(S)}, {P(S+2)}\nv_add_f32 v{S}, v{S}, v{S+1}")
        self.reduce32(S, S + 1)
        a(f"""
        v_mul_f32 v{S+5}, 0x3acccccd, v{S}
        v_cvt_pk_bf16_f32 v{S}, v{S+4}, v{S+5}
        v_lshlrev_b32 v{S+4}, 16, v{S}
        v_and_b32 v{S+2}, 0xffff0000, v{S}
        v_add_f32 v{S+2}, 0x3727c5ac, v{S+2}
        v_cvt_pk_bf16_f32 v{S+2}, v{S+2}, v{S+2}
        v_and_b32 v{S+2}, 0xffff0000, v{S+2}
        v_sqrt_f32 v{S+2}, v{S+2}
        """)
        for i in range(10):
            a(f"v_pk_add_f32 {P(Dd+2*i)}, {P(X+2*i)}, {P(S+4)} op_sel_hi:[1,0] neg_lo:[0,1] neg_hi:[0,1]")
            if i == 1:
                a(f"v_cvt_pk_bf16_f32 v{S+2}, v{S+2}, v{S+2}\nv_and_b32 v{S+2}, 0xffff0000, v{S+2}\nv_rcp_f32 v{S+2}, v{S+2}")
        for i in range(10):
            a(f"v_cvt_pk_bf16_f32 v{100+i}, v{Dd+2*i}, v{Dd+1+2*i}")
        for i in range(10):
            a(f"v_lshlrev_b32 v{X+2*i}, 16, v{100+i}")
            a(f"v_and_b32 v{X+1+2*i}, 0xffff0000, v{100+i}")
        for i in range(10):
            a(f"v_pk_mul_f32 {P(X+2*i)}, {P(X+2*i)}, {P(S+2)} op_sel_hi:[1,0]")
        for i in range(5):
            a(f"v_cvt_pk_bf16_f32 v{100+2*i}, v{X+4*i}, v{X+4*i+1}")
            a(f"v_cvt_pk_bf16_f32 v{101+2*i}, v{X+4*i+2}, v{X+4*i+3}")
            a(f"ds_write_b64 v98, v[{100+2*i}:{101+2*i}] offset:{256*i}")

    def ln_pub_addr(self):
        a = self.a
        a(f"""
        s_mov_b32 s84, s{S_WAVE}
        s_mov_b32 s97, {RSZ - 3*LNRS}
        s_mov_b32 s61, {AUX + UO + UPAD}
        s_lshl_b32 s60, s{S_WAVE}, 1
        v_lshrrev_b32 v2, 5, v0
        v_add_u32 v2, s60, v2
        """)
        self.rowaddr(98, 2, 5)
        a(f"""
        v_and_b32 v3, 31, v0
        v_lshl_add_u32 v98, v3, 3, v98
        s_lshl_b32 s60, s84, 7
        s_add_u32 s61, s61, s60
        v_and_b32 v1, 7, v0
        """)
        self.rowaddr(156, 1, 5)
        a(f"""
        v_lshrrev_b32 v2, 3, v0
        v_lshl_add_u32 v156, v2, 4, v156
        v_lshrrev_b32 v157, 2, v2
        v_and_b32 v5, 3, v2
        v_lshlrev_b32 v157, 10, v157
        v_lshl_add_u32 v157, v5, 8, v157
        v_lshl_add_u32 v157, v1, 4, v157
        v_and_b32 v1, 15, v0
        v_lshrrev_b32 v2, 2, v1
        v_sub_u32 v3, 7, v2
        v_sub_u32 v2, 3, v2
        """)
        self.rowaddr(158, 2, 5)
        self.rowaddr(99, 3, 5)
        a(f"""
        v_and_b32 v1, 3, v0
        v_lshrrev_b32 v2, 4, v0
        v_lshlrev_b32 v1, 3, v1
        v_lshl_add_u32 v1, v2, 5, v1
        v_add_u32 v158, v158, v1
        v_add_u32 v99, v99, v1
        v_lshlrev_b32 v159, 4, v0
        s_lshr_b32 s85, s{S_LID}, 1
        s_mul_i32 s85, s85, 20480
        s_and_b32 s62, s{S_LID}, 1
        s_lshl_b32 s62, s62, 7
        s_add_u32 s85, s85, s62
        s_lshl_b32 s62, s84, 11
        s_add_u32 s85, s85, s62
        s_add_u32 s86, s85, 8192
        s_add_u32 s87, s85, 16384
        s_mul_i32 s88, s{S_LID}, 10240
        s_lshl_b32 s62, s84, 10
        s_add_u32 s88, s88, s62
        s_add_u32 s88, s88, {XT}
        s_add_u32 s89, s88, 4096
        s_add_u32 s90, s88, 6144
        """)

    def ln_publish(self):
        a = self.a
        sc = "" if os.environ.get('V2') else "sc1"
        W = f"s[{R_WS}:{R_WS+3}]"
        l2 = self.L("lnp_xt3"); l3 = self.L("lnp_done")
        a(f"""
        ds_read_b128 v[160:163], v156
        ds_read_b128 v[164:167], v156 offset:512
        ds_read_b128 v[168:171], v156 offset:1024
        ds_read_b64_tr_b16 v[172:173], v99
        ds_read_b64_tr_b16 v[174:175], v158
        ds_read_b64_tr_b16 v[176:177], v99 offset:512
        ds_read_b64_tr_b16 v[178:179], v158 offset:512
        ds_read_b64_tr_b16 v[180:181], v99 offset:768
        ds_read_b64_tr_b16 v[182:183], v158 offset:768
        s_cmp_ge_u32 s84, 2
        s_waitcnt lgkmcnt(7)
        buffer_store_dwordx4 v[160:163], v157, {W}, s85 offen {sc}
        s_waitcnt lgkmcnt(6)
        buffer_store_dwordx4 v[164:167], v157, {W}, s86 offen {sc}
        s_waitcnt lgkmcnt(5)
        s_cbranch_scc1 {l2}
        buffer_store_dwordx4 v[168:171], v157, {W}, s87 offen {sc}
        {l2}:
        """)

    def ln_publish_xt(self):
        a = self.a
        W = f"s[{R_WS}:{R_WS+3}]"
        l3 = self.L("lnp_done")
        a(f"""
        s_cmp_lt_u32 s84, 2
        s_waitcnt lgkmcnt(0)
        buffer_store_dwordx4 v[172:175], v159, {W}, s88 offen sc1
        buffer_store_dwordx4 v[176:179], v159, {W}, s89 offen sc1
        s_cbranch_scc1 {l3}
        buffer_store_dwordx4 v[180:183], v159, {W}, s90 offen sc1
        {l3}:
        """)

    def w2_loads(self):
        a = self.a
        self.srd(R_W, P_W2, 1966080)
        a(f"""
        s_lshr_b32 s91, s43, 1
        s_and_b32 s92, s43, 1
        s_mul_i32 s62, s91, {32*1280}
        s_mul_i32 s63, s92, 640
        s_add_u32 s62, s62, s63
        s_add_u32 s63, s62, 320
        """)
        for i in range(10):
            a(f"""
            v_add_u32 v1, {64*i}, v0
            v_mul_u32_u24 v2, 52429, v1
            v_lshrrev_b32 v2, 20, v2
            v_mul_u32_u24 v3, 20, v2
            v_sub_u32 v3, v1, v3
            v_mul_u32_u24 v2, 1280, v2
            v_lshl_add_u32 v2, v3, 4, v2
            buffer_load_dwordx4 v[{64+4*i}:{67+4*i}], v2, s[{R_W}:{R_W+3}], s62 offen
            buffer_load_dwordx4 v[{104+4*i}:{107+4*i}], v2, s[{R_W}:{R_W+3}], s63 offen
            """)

    def w2_retile(self):
        a = self.a
        sc = "sc1"
        base = AUX + 2 * RSZ
        a(f"""
        v_lshlrev_b32 v6, 4, v0
        v_add_u32 v1, {base}, v6
        v_lshrrev_b32 v2, 4, v0
        v_and_b32 v3, 15, v0
        v_lshrrev_b32 v3, 2, v3
        v_lshl_add_u32 v2, v2, 2, v3
        v_mul_u32_u24 v2, 320, v2
        v_and_b32 v3, 3, v0
        v_lshl_add_u32 v2, v3, 3, v2
        v_add_u32 v2, {base}, v2
        s_mul_i32 s62, s92, {4*245760}
        s_mul_i32 s63, s91, 5120
        s_add_u32 s62, s62, s63
        s_add_u32 s62, s62, {W2F}
        v_add_u32 v7, 4096, v6
        """)
        for half in range(2):
            src = 64 + 40 * half
            fr = 144 + 40 * half
            for i in range(10):
                a(f"ds_write_b128 v1, v[{src+4*i}:{src+3+4*i}] offset:{1024*i}")
            a("s_waitcnt lgkmcnt(4)")
            for nt in range(10):
                d = fr + 4 * nt
                a(f"ds_read_b64_tr_b16 v[{d}:{d+1}], v2 offset:{32*nt}")
                a(f"ds_read_b64_tr_b16 v[{d+2}:{d+3}], v2 offset:{32*nt+16*320}")
                if nt == 4: a("s_waitcnt lgkmcnt(4)")
            a("s_waitcnt lgkmcnt(0)")
            for nt in range(10):
                d = fr + 4 * nt
                cbl = half * 2 + nt // 5
                n5 = nt % 5
                if n5 == 0:
                    a(f"s_add_u32 s63, s62, {cbl*245760}")
                if n5 < 4:
                    a(f"buffer_store_dwordx4 v[{d}:{d+3}], v6, s[{R_WS}:{R_WS+3}], s63 offen offset:{1024*n5} {sc}")
                else:
                    a(f"buffer_store_dwordx4 v[{d}:{d+3}], v7, s[{R_WS}:{R_WS+3}], s63 offen {sc}")

    def lds_set(self, addr_imm, sidx=None, val=1, tmp=(2, 3)):
        a = self.a
        if sidx is None:
            a(f"v_mov_b32 v{tmp[0]}, {addr_imm}")
        else:
            a(f"s_lshl_b32 s60, s{sidx}, 2\ns_add_u32 s60, s60, {addr_imm}\nv_mov_b32 v{tmp[0]}, s60")
        a(f"v_mov_b32 v{tmp[1]}, {val}\nds_write_b32 v{tmp[0]}, v{tmp[1]}")

    def lds_wait_all(self, addr_imm, n, name, tmp=2, sleep=None):
        if sleep is None: sleep = LSLEEP
        a = self.a
        lab = self.L(name); done = self.L(name + "_d")
        t = tmp
        a(f"""
        v_mov_b32 v{t}, {addr_imm}
        s_mov_b32 s61, 0
        {lab}:
        ds_read_b128 v[{t+2}:{t+5}], v{t}
        s_add_u32 s61, s61, 1
        s_waitcnt lgkmcnt(0)
        """)
        for k in range(1, n):
            a(f"v_min_u32 v{t+2}, v{t+2}, v{t+2+k}")
        a(f"""
        v_readfirstlane_b32 s60, v{t+2}
        s_cmp_gt_u32 s61, 0x100000
        s_cbranch_scc1 {done}
        s_cmp_lg_u32 s60, 0
        s_cbranch_scc1 {done}
        {'s_sleep %d' % sleep if sleep else ''}
        s_branch {lab}
        {done}:
        """)

    def get_nonce(self, name, tmp=2):
        self.lds_wait_all(M_NONCE, 1, name, tmp)
        self.a(f"s_mov_b32 s{S_NONCE}, s60")

    def poll_flags(self, name, soff, nlanes, nloads=1, lstride=FSTR, istride=64*FSTR, tmp=2, pre=None):
        a = self.a
        lab = self.L(name); done = self.L(name + "_d")
        t = tmp
        a(f"v_mul_u32_u24 v{t}, {lstride}, v0")
        a(f"s_mov_b64 s[62:63], exec")
        if nlanes < 64:
            a(f"s_lshr_b64 exec, -1, {64-nlanes}")
        a(f"s_mov_b32 s64, 0\n{lab}:")
        for i in range(nloads):
            if i * istride < 4096:
                a(f"buffer_load_dword v{t+1+i}, v{t}, s[{R_WS}:{R_WS+3}], s{soff} offen offset:{i*istride} sc1")
            else:
                a(f"s_add_u32 s65, s{soff}, {i*istride}\nbuffer_load_dword v{t+1+i}, v{t}, s[{R_WS}:{R_WS+3}], s65 offen sc1")
        a("s_add_u32 s64, s64, 1\ns_waitcnt vmcnt(0)")
        for i in range(nloads):
            a(f"v_xor_b32 v{t+1+i}, s{S_NONCE}, v{t+1+i}")
        for i in range(1, nloads):
            a(f"v_or_b32 v{t+1}, v{t+1}, v{t+1+i}")
        a(f"""
        v_cmp_ne_u32 vcc, 0, v{t+1}
        s_cmp_gt_u32 s64, 0x8000
        s_cbranch_scc1 {done}
        s_cbranch_vccz {done}
        {'s_sleep %d' % PSLEEP if PSLEEP else ''}
        s_branch {lab}
        {done}:
        s_mov_b64 exec, s[62:63]
        """)

    def store_flag(self, soff, tmp=2):
        self.a(f"""
        v_mov_b32 v{tmp}, s{S_NONCE}
        s_mov_b64 s[62:63], exec
        s_mov_b64 exec, 1
        buffer_store_dword v{tmp}, off, s[{R_WS}:{R_WS+3}], s{soff} sc1
        s_mov_b64 exec, s[62:63]
        """)

    def w1_addr(self, vr_):
        self.srd(R_W, P_W1, 1966080)
        self.a(f"""
        v_lshrrev_b32 v5, 2, v0
        v_and_b32 v6, 3, v0
        v_lshrrev_b32 v7, 2, v5
        v_and_b32 v7, 2, v7
        v_xor_b32 v6, v6, v7
        v_mul_u32_u24 v5, 3072, v5
        v_lshl_add_u32 v{vr_}, v6, 4, v5
        v_lshrrev_b32 v5, 3, v0
        v_and_b32 v6, 7, v0
        v_and_b32 v7, 2, v5
        v_xor_b32 v6, v6, v7
        v_mul_u32_u24 v5, 3072, v5
        v_lshl_add_u32 v{vr_+1}, v6, 4, v5
        v_xor_b32 v{vr_+2}, 64, v{vr_+1}
        v_add_u32 v{vr_+2}, {8*3072}, v{vr_+2}
        s_mul_i32 s69, s{S_CB}, 192
        s_and_b32 s60, s{S_CB}, 1
        s_lshl_b32 s61, s60, 7
        s_sub_u32 s65, s69, s61
        s_add_u32 s65, s65, 128
        s_lshl_b32 s61, s60, 6
        s_add_u32 s69, s69, s61
        """)

    def w1_group(self, vr_):
        a = self.a
        a(f"""
        s_mul_i32 s63, s68, {16*3072}
        s_add_u32 s64, s63, s65
        s_add_u32 s63, s63, s69
        s_lshl_b32 m0, s68, 11
        s_lshl_b32 s62, s68, 10
        buffer_load_dwordx4 v{vr_+1}, s[{R_W}:{R_W+3}], s63 offen lds
        s_add_u32 m0, m0, 1024
        s_nop 0
        buffer_load_dwordx4 v{vr_+2}, s[{R_W}:{R_W+3}], s63 offen lds
        s_add_u32 m0, s62, {IMG[2]}
        s_nop 0
        buffer_load_dwordx4 v{vr_}, s[{R_W}:{R_W+3}], s64 offen lds
        """)

    G1_ACC = 16; G1_B = 64; G1_B1 = 64; G1_A = 96
    def g1_b1_loads(self):
        a = self.a
        a(f"""
        v_lshrrev_b32 v5, 4, v0
        v_lshlrev_b32 v5, 3, v5
        v_add_u32 v6, s65, v5
        v_add_u32 v5, s69, v5
        """)
        for t in range(6):
            a(f"global_load_dwordx2 v[{self.G1_B1+2*t}:{self.G1_B1+2*t+1}], v{5 if t < 4 else 6}, s[{P_B1}:{P_B1+1}] offset:{32*(t%4)}")

    def acc_init(self, p):
        r = []
        for k in range(2):
            for lt in range(2):
                d = self.G1_ACC + 16 * p + 8 * k + 4 * lt
                s_ = self.G1_B1 + 2 * (2 * p + k)
                r += [f"v_lshlrev_b32 v{d}, 16, v{s_}", f"v_and_b32 v{d+1}, 0xffff0000, v{s_}",
                      f"v_lshlrev_b32 v{d+2}, 16, v{s_+1}", f"v_and_b32 v{d+3}, 0xffff0000, v{s_+1}"]
        return r

    def g1_prep(self):
        a = self.a
        for x in self.acc_init(0) + self.acc_init(1) + self.acc_init(2): a(x)
        a(f"""
        s_mov_b32 s97, {IMG[2]}
        v_lshrrev_b32 v5, 4, v0
        v_and_b32 v6, 15, v0
        v_lshrrev_b32 v6, 2, v6
        v_lshl_add_u32 v6, v5, 3, v6
        v_lshlrev_b32 v6, 6, v6
        v_and_b32 v7, 3, v0
        v_lshl_add_u32 v6, v7, 3, v6
        v_and_b32 v5, 1, v5
        v_lshlrev_b32 v5, 5, v5
        v_add3_u32 v12, v6, v5, s97
        v_xor_b32 v13, 32, v12
        v_lshrrev_b32 v5, 4, v0
        v_and_b32 v6, 15, v0
        v_lshrrev_b32 v6, 2, v6
        v_lshl_add_u32 v4, v5, 3, v6
        v_lshlrev_b32 v4, 7, v4
        v_lshl_add_u32 v4, v7, 3, v4
        v_lshrrev_b32 v6, 1, v6
        v_and_b32 v5, 1, v5
        v_lshl_add_u32 v6, v5, 1, v6
        v_lshl_add_u32 v10, v6, 5, v4
        v_xor_b32 v11, 32, v10
        v_xor_b32 v14, 64, v10
        v_xor_b32 v15, 96, v10
        s_lshl_b32 s86, s{S_RB}, 3
        s_lshl_b32 s87, s{S_WAVE}, 1
        s_add_u32 s86, s86, s87
        s_mul_i32 s82, s86, 20480
        s_add_u32 s83, s82, 20480
        s_mul_i32 s86, s86, 49152
        s_mul_i32 s87, s{S_CB}, 3072
        s_add_u32 s86, s86, s87
        s_add_u32 s86, s86, {HF}
        s_and_b32 s60, s{S_CB}, 1
        s_lshl_b32 s61, s60, 11
        s_sub_u32 s91, s86, s61
        s_add_u32 s91, s91, 2048
        s_add_u32 s92, s91, 49152
        s_lshl_b32 s61, s60, 10
        s_add_u32 s86, s86, s61
        s_add_u32 s87, s86, 49152
        """)

    def g1_aload(self, ks):
        r = []
        for lt in range(2):
            d = self.G1_A + 8 * ks + 4 * lt
            ins = [f"buffer_load_dwordx4 v[{d}:{d+3}], v9, s[{R_WS}:{R_WS+3}], s{82+lt} offen offset:{1024*(ks%4)} sc1"]
            if ks % 4 == 3 and ks != 19: ins.append(f"s_add_u32 s{82+lt}, s{82+lt}, 4096")
            r.append((ins, f"A{ks}"))
        return r

    def epi_ops(self, p):
        r = []
        for lt in range(2):
            a0 = self.G1_ACC + 16 * p + 4 * lt; b0 = a0 + 8
            for x in (a0, b0):
                for i in range(4): r.append(([f"v_max_f32 v{x+i}, 0, v{x+i}"], None))
                for i in range(4): r.append(([f"v_mul_f32 v{x+i}, v{x+i}, v{x+i}"], None))
            r.append(([f"v_cvt_pk_bf16_f32 v{a0}, v{a0}, v{a0+1}"], None))
            r.append(([f"v_cvt_pk_bf16_f32 v{a0+1}, v{a0+2}, v{a0+3}"], None))
            r.append(([f"v_cvt_pk_bf16_f32 v{a0+2}, v{b0}, v{b0+1}"], None))
            r.append(([f"v_cvt_pk_bf16_f32 v{a0+3}, v{b0+2}, v{b0+3}"], None))
            r.append(([f"buffer_store_dwordx4 v[{a0}:{a0+3}], v9, s[{R_WS}:{R_WS+3}], s{(86 if p < 2 else 91)+lt} offen offset:{1024*(p%2)} sc1"], f"S{p}"))
        return r

    def vwait(self, tag):
        vq = self.vq
        assert tag in self.seen, tag
        idx = [i for i, t in enumerate(vq) if t == tag]
        if not idx: return
        n = len(vq) - 1 - idx[-1]
        self.a(f"s_waitcnt vmcnt({min(n, 63)})"); del vq[:idx[-1] + 1]

    def emit(self, item):
        ins, tag = item
        for x in ins: self.a(x)
        if tag: self.vq.append(tag); self.seen.add(tag)

    def g1_loop(self, N0, events):
        a = self.a
        def rd0(ks):
            r = []
            for t in range(4):
                d = self.G1_B + 16 * (ks % 2) + 4 * t
                off = 4096 * (ks % 10)
                b = (10, 11, 14, 15)[t]
                r.append(f"ds_read_b64_tr_b16 v[{d}:{d+1}], v{b} offset:{off}")
                r.append(f"ds_read_b64_tr_b16 v[{d+2}:{d+3}], v{b} offset:{off+512}")
            return r
        def rd1(ks):
            r = []
            for k in range(2):
                d = self.G1_B + 8 * (ks % 4) + 4 * k
                r.append(f"ds_read_b64_tr_b16 v[{d}:{d+1}], v{12+k} offset:{2048*ks}")
                r.append(f"ds_read_b64_tr_b16 v[{d+2}:{d+3}], v{12+k} offset:{2048*ks+256}")
            return r
        for x in rd0(0): a(x)
        fv = []
        for ks in range(20):
            if (0, ks) in events:
                extra = events[(0, ks)]()
                if extra: fv += extra
            if ks + N0 < 20: fv += self.g1_aload(ks + N0)
            nxt = rd0(ks + 1) if ks < 19 else rd1(0) + rd1(1)
            if ks == 9:
                for b in (10, 11, 14, 15): a(f"v_add_u32 v{b}, 40960, v{b}")
            self.vwait(f"A{ks}")
            n = 0
            for t in range(4):
                if t % 2 == 0: a(f"s_waitcnt lgkmcnt({4 if t == 0 else 4})")
                for lt in range(2):
                    acc = self.G1_ACC + 8 * t + 4 * lt
                    A = self.G1_A + 8 * ks + 4 * lt
                    B = self.G1_B + 16 * (ks % 2) + 4 * t
                    a(f"v_mfma_f32_16x16x32_bf16 v[{acc}:{acc+3}], v[{B}:{B+3}], v[{A}:{A+3}], v[{acc}:{acc+3}]")
                    a(nxt.pop(0))
                    if fv and n in (1, 5): self.emit(fv.pop(0))
                    n += 1
        assert not fv
        fa = []
        for ks in range(20):
            if (1, ks) in events:
                extra = events[(1, ks)]()
                if extra: fv += extra
            if ks == 0: fa += self.epi_ops(0) + self.epi_ops(1)
            nxt = (rd1(2) + rd1(3)[:0] if ks == 0 else []) if False else []
            if ks == 0: nxt = rd1(2)
            elif ks + 2 < 20: nxt = rd1(ks + 2)
            a(f"s_waitcnt lgkmcnt({4 if ks < 19 else 0})")
            n = 0; nv = 0
            vmax = 2 if len(fv) > 20 - ks else 1
            for k in range(2):
                for lt in range(2):
                    acc = self.G1_ACC + 32 + 8 * k + 4 * lt
                    A = self.G1_A + 8 * ks + 4 * lt
                    B = self.G1_B + 8 * (ks % 4) + 4 * k
                    a(f"v_mfma_f32_16x16x32_bf16 v[{acc}:{acc+3}], v[{B}:{B+3}], v[{A}:{A+3}], v[{acc}:{acc+3}]")
                    if nxt: a(nxt.pop(0))
                    if fa and fa[0][1] is not None:
                        self.emit(fa.pop(0)); nv += 1
                    elif fa and not (fv and n == 1 and nv == 0 and os.environ.get('MIX')):
                        for _ in range(int(os.environ.get('ED', '3'))):
                            if fa and fa[0][1] is None: self.emit(fa.pop(0))
                    elif fv and nv < vmax and n in (1, 3):
                        self.emit(fv.pop(0)); nv += 1
                    n += 1
        for it in fa + fv: self.emit(it)

    KP = 44
    def kg_loads(self):
        a = self.a
        a(f"""
        s_sub_u32 s70, s{S_WAVE}, 4
        s_add_u32 s71, s{S_CH0}, s70
        s_mul_i32 s60, s71, 384
        v_lshlrev_b32 v2, 1, v0
        v_add_u32 v2, s60, v2
        s_lshl_b32 s60, s71, 1
        v_mov_b32 v3, s60
        """)
        for p in range(3):
            for k, P in enumerate((P_LA, P_AI, P_CR, P_CI)):
                a(f"global_load_ushort v{self.KP+4*p+k}, v2, s[{P}:{P+1}] offset:{128*p}")
        a(f"global_load_ushort v56, v3, s[{P_DT}:{P_DT+1}]")
        a(f"global_load_ushort v57, v3, s[{P_DS}:{P_DS+1}]")

    def cmul(self, d, x, y):
        return [f"v_pk_mul_f32 v[{d}:{d+1}], v[{x}:{x+1}], v[{y}:{y+1}] op_sel:[0,0] op_sel_hi:[0,1]",
                f"v_pk_fma_f32 v[{d}:{d+1}], v[{x}:{x+1}], v[{y}:{y+1}], v[{d}:{d+1}] op_sel:[1,1,0] op_sel_hi:[1,0,1] neg_lo:[0,1,0]"]

    def kgen(self, hook=None):
        a = self.a
        KP = self.KP
        Z, Z8, W = 60, 62, 64
        F = 66
        F2 = 82
        G = 98
        CV = 102
        SV = 110
        GF, TA, TB = 120, 136, 152
        ACC = 168
        VW, VR, VW2 = 10, 11, 9
        TOFF = 4352
        a(f"""
        s_mul_i32 s72, s70, {RSZ}
        s_add_u32 s72, s72, {AUX}
        v_lshrrev_b32 v2, 2, v0
        v_mul_u32_u24 v2, 272, v2
        v_and_b32 v3, 3, v0
        v_lshl_add_u32 v2, v3, 2, v2
        v_add_u32 v{VW}, s72, v2
        v_add_u32 v{VW2}, {TOFF}, v{VW}
        v_lshrrev_b32 v2, 4, v0
        v_mul_u32_u24 v2, 272, v2
        v_and_b32 v3, 15, v0
        v_lshl_add_u32 v2, v3, 4, v2
        v_add_u32 v{VR}, s72, v2
        v_lshlrev_b32 v56, 16, v56
        v_mul_f32 v56, {LOG2E}, v56
        v_exp_f32 v56, v56
        v_lshlrev_b32 v57, 16, v57
        v_cvt_pk_bf16_f32 v56, v56, v56
        v_and_b32 v56, 0xffff0000, v56
        v_add_f32 v58, v56, v56
        v_mov_b32 v59, 0x3f80
        s_mov_b32 s73, 3
        """)
        for i in range(12): a(f"v_mov_b32 v{ACC+i}, 0")
        loop = self.L("kg_loop")
        a(f"{loop}:")
        if hook: hook()
        a(f"""
        v_lshlrev_b32 v2, 16, v{KP}
        v_mul_f32 v2, {LOG2E}, v2
        v_exp_f32 v2, v2
        v_lshlrev_b32 v3, 16, v{KP+1}
        v_lshlrev_b32 v{F}, 16, v{KP+2}
        v_cvt_pk_bf16_f32 v2, v2, v2
        v_lshlrev_b32 v{F+1}, 16, v{KP+3}
        v_and_b32 v2, 0xffff0000, v2
        v_mul_f32 v3, v3, v56
        v_mul_f32 v2, v2, v56
        v_pk_mul_f32 v[{F}:{F+1}], v[{F}:{F+1}], v[58:59] op_sel_hi:[1,0]
        v_mul_f32 v3, {INV2PI}, v3
        v_mul_f32 v2, 0xbfb8aa3b, v2
        """)
        for k in range(8): a(f"v_mov_b32 v{KP+k}, v{KP+4+k}")
        a(f"""
        v_mul_f32 v4, 0x41000000, v2
        v_mul_f32 v5, 0x41000000, v3
        v_mul_f32 v6, 0x43000000, v2
        v_mul_f32 v7, 0x43000000, v3
        v_fract_f32 v3, v3
        v_fract_f32 v5, v5
        v_fract_f32 v7, v7
        v_exp_f32 v2, v2
        v_exp_f32 v4, v4
        v_exp_f32 v6, v6
        v_cos_f32 v{Z}, v3
        v_sin_f32 v{Z+1}, v3
        v_cos_f32 v{Z8}, v5
        v_sin_f32 v{Z8+1}, v5
        v_cos_f32 v{W}, v7
        v_sin_f32 v{W+1}, v7
        v_pk_mul_f32 v[{Z}:{Z+1}], v[{Z}:{Z+1}], v[2:3] op_sel_hi:[1,0]
        v_pk_mul_f32 v[{Z8}:{Z8+1}], v[{Z8}:{Z8+1}], v[4:5] op_sel_hi:[1,0]
        v_pk_mul_f32 v[{W}:{W+1}], v[{W}:{W+1}], v[6:7] op_sel_hi:[1,0]
        """)
        cvn = [0]
        class Out:
            def __init__(o, base, neg, pool): o.base = base; o.neg = neg; o.pend = None; o.pool = pool; o.n = 0
            def put(o, src, row, reg=None):
                r = []
                if reg is None:
                    reg = CV + 4 * o.pool + o.n % 4; o.n += 1
                    r.append(f"v_cvt_pk_bf16_f32 v{reg}, v{src}, {'-' if o.neg else ''}v{src+1}")
                if o.pend is None: o.pend = (reg, row)
                else:
                    r.append(f"ds_write2_b32 v{o.base}, v{o.pend[0]}, v{reg} offset0:{4*o.pend[1]} offset1:{4*row}")
                    o.pend = None
                return r
        def merge(*streams):
            streams = [list(s) for s in streams]
            out = []
            while any(streams):
                for s in streams:
                    if s: out.append(s.pop(0))
            return out
        og = Out(VW, False, 0); of = Out(VW2, True, 1); oc0 = Out(VW2, True, 0); oc1 = Out(VW2, True, 1); ot = Out(VW2, True, 0)
        gs = og.put(None, 0, 59) + og.put(Z8, 1)
        prev = Z8
        for j in range(2, 16):
            d = G + 2 * (j % 2)
            gs += self.cmul(d, prev, Z8) + og.put(d, j)
            prev = d
        fs = of.put(F, 0)
        for r in range(1, 8):
            fs += self.cmul(F + 2 * r, F + 2 * (r - 1), Z) + of.put(F + 2 * r, r)
        for r in range(8):
            fs += self.cmul(F2 + 2 * r, F + 2 * r, W) + of.put(F2 + 2 * r, 8 + r)
        for ins in merge(gs, fs): a(ins)
        for ks in range(4):
            a(f"ds_read_b128 v[{GF+4*ks}:{GF+4*ks+3}], v{VR} offset:{1088*ks}")
            a(f"ds_read_b128 v[{TA+4*ks}:{TA+4*ks+3}], v{VR} offset:{TOFF+1088*ks}")
        s1 = []
        for i in range(4):
            s1.append(self.cmul(F + 2 * i, F2 + 4 * i, W) + [f"v_cvt_pk_bf16_f32 v{SV+i}, v{F+2*i}, -v{F+2*i+1}"]
                      + self.cmul(F + 8 + 2 * i, F + 2 * i, W) + [f"v_cvt_pk_bf16_f32 v{SV+4+i}, v{F+8+2*i}, -v{F+8+2*i+1}"])
        for ins in merge(*s1): a(ins)
        a("s_waitcnt lgkmcnt(0)")
        mf0 = [f"v_mfma_f32_16x16x32_bf16 v[{ACC}:{ACC+3}], v[{TA+4*ks}:{TA+4*ks+3}], v[{GF+4*ks}:{GF+4*ks+3}], v[{ACC}:{ACC+3}]" for ks in range(4)]
        c0 = []; prev = F + 8
        for i in range(12):
            d = F2 + 2 * (i % 2)
            row = i if i < 4 else i + 4
            c0 += self.cmul(d, prev, W) + oc0.put(d, row)
            prev = d
        last = prev
        c1 = []; prev = F + 12
        for i in range(4):
            d = F2 + 4 + 2 * (i % 2)
            c1 += self.cmul(d, prev, W) + oc1.put(d, 4 + i)
            prev = d
        for ins in merge(c0, c1, mf0): a(ins)
        for ks in range(4):
            a(f"ds_read_b128 v[{TB+4*ks}:{TB+4*ks+3}], v{VR} offset:{TOFF+1088*ks}")
        for ins in self.cmul(F2 + 8, last, W): a(ins)
        for i in range(8):
            for ins in ot.put(None, i, SV + i): a(ins)
        a(f"v_cvt_pk_bf16_f32 v{CV}, v{F2+8}, -v{F2+9}\nds_write_b32 v{VW2}, v{CV} offset:128")
        for ks in range(4):
            a(f"ds_read_b128 v[{TA+4*ks}:{TA+4*ks+3}], v{VR} offset:{TOFF+1088*ks}")
        a("s_waitcnt lgkmcnt(9)")
        for ks in range(4):
            a(f"v_mfma_f32_16x16x32_bf16 v[{ACC+4}:{ACC+7}], v[{TB+4*ks}:{TB+4*ks+3}], v[{GF+4*ks}:{GF+4*ks+3}], v[{ACC+4}:{ACC+7}]")
        a("s_sub_u32 s73, s73, 1\ns_cmp_lg_u32 s73, 0\ns_waitcnt lgkmcnt(0)")
        for ks in range(4):
            a(f"v_mfma_f32_16x16x32_bf16 v[{ACC+8}:{ACC+11}], v[{TA+4*ks}:{TA+4*ks+3}], v[{GF+4*ks}:{GF+4*ks+3}], v[{ACC+8}:{ACC+11}]")
        a(f"s_cbranch_scc1 {loop}")
        self.KACC = ACC

    def expand(self):
        a = self.a
        ACC = self.KACC
        T0, T1, T2 = ACC, ACC + 4, ACC + 8
        a(f"""
        v_and_b32 v2, 15, v0
        v_lshrrev_b32 v3, 4, v0
        v_lshlrev_b32 v4, 3, v2
        v_lshlrev_b32 v5, 2, v3
        v_add_u32 v5, 512, v5
        v_lshlrev_b32 v6, 9, v3
        v_cmp_gt_u32 vcc, 2, v3
        v_cndmask_b32 v5, v6, v5, vcc
        v_add_u32 v5, v5, v4
        v_cndmask_b32 v6, 4, 2, vcc
        v_and_b32 v7, 1, v2
        v_cndmask_b32 v7, v7, v3, vcc
        v_cndmask_b32 v8, 8, 0, vcc
        s_add_u32 s60, s72, 32
        v_sub_u32 v9, v5, v6
        v_lshl_add_u32 v12, v9, 1, s60
        v_add_u32 v13, v12, v8
        v_add_u32 v9, v5, v6
        v_sub_u32 v9, v9, v7
        v_lshl_add_u32 v14, v9, 1, s60
        v_sub_u32 v9, v5, v6
        v_add_u32 v9, v9, v7
        v_lshl_add_u32 v15, v9, 1, s60
        v_add_u32 v15, {K1O-2}, v15
        v_cmp_eq_u32 vcc, 32, v0
        v_add_u32 v9, 4, v15
        v_cndmask_b32 v16, v15, v9, vcc
        v_add_u32 v17, {K1O}, v12
        v_add_u32 v18, {K1O}, v13
        """)
        for i in range(4):
            a(f"v_cvt_pk_bf16_f32 v{20+i}, v{T1+i}, v{T1+i}")
        for i in range(4):
            a(f"ds_write2_b32 v12, v{20+i}, v{20+i} offset0:{64*i} offset1:{64*i+1}")
            a(f"ds_write2_b32 v13, v{20+i}, v{20+i} offset0:{64*i} offset1:{64*i+1}")
            a(f"ds_write2_b32 v17, v{20+i}, v{20+i} offset0:{64*i} offset1:{64*i+1}")
            a(f"ds_write2_b32 v18, v{20+i}, v{20+i} offset0:{64*i} offset1:{64*i+1}")
        for i in range(4):
            a(f"ds_write_b16 v14, v{20+i} offset:{256*i}")
            a(f"ds_write_b16 v{16 if i == 0 else 15}, v{20+i} offset:{256*i}")
        a(f"""
        v_lshlrev_b32 v5, 7, v3
        v_add3_u32 v5, v5, v4, v4
        v_lshlrev_b32 v6, 7, v3
        v_add_u32 v5, v5, v6
        v_add_u32 v5, s60, v5
        v_add_u32 v5, 512, v5
        v_cvt_pk_bf16_f32 v24, v{T2}, v{T2}
        v_cvt_pk_bf16_f32 v25, v{T2}, v{T2+1}
        v_cvt_pk_bf16_f32 v26, v{T2+2}, v{T2+2}
        v_cvt_pk_bf16_f32 v27, v{T2+2}, v{T2+3}
        v_cvt_pk_bf16_f32 v28, v{T2+1}, v{T2+2}
        v_add_u32 v6, {K1O-4}, v5
        v_add_u32 v7, -2, v5
        s_mov_b32 exec_hi, 0
        ds_write2_b32 v5, v24, v28 offset0:0 offset1:1
        ds_write_b32 v5, v26 offset:8
        ds_write_b16_d16_hi v5, v27 offset:12
        ds_write_b16 v7, v24
        ds_write2_b32 v6, v24, v25 offset0:0 offset1:1
        ds_write2_b32 v6, v26, v27 offset0:2 offset1:3
        s_mov_b64 exec, -1
        s_add_u32 s61, s60, {2*2044}
        v_mov_b32 v6, s61
        v_add_u32 v7, {K1O-2}, v6
        v_add_u32 v8, {K1O}, v6
        s_mov_b32 exec_lo, 0
        s_mov_b32 exec_hi, 1
        ds_write2_b32 v6, v24, v24 offset0:0 offset1:1
        ds_write2_b32 v8, v24, v24 offset0:0 offset1:1
        ds_write_b16 v7, v24
        s_mov_b64 exec, -1
        """)
        a(f"""
        v_and_b32 v5, 1, v3
        v_lshlrev_b32 v5, 3, v5
        v_lshrrev_b32 v6, 1, v3
        v_lshl_add_u32 v5, v6, 8, v5
        v_add3_u32 v5, v5, v4, v4
        v_add_u32 v5, s60, v5
        s_mov_b64 exec, 1
        v_add_f32 v{T0}, v{T0}, v57
        s_mov_b64 exec, -1
        v_cvt_pk_bf16_f32 v24, v{T0}, v{T0+1}
        v_cvt_pk_bf16_f32 v25, v{T0+2}, v{T0+3}
        v_cvt_pk_bf16_f32 v26, v{T0+1}, v{T0+2}
        v_add_u32 v6, {K1O-2}, v5
        v_mov_b32 v28, 0
        v_mov_b32 v29, 0
        v_lshlrev_b32 v7, 3, v0
        v_add_u32 v7, s72, v7
        s_mov_b64 exec, 15
        ds_write_b64 v7, v[28:29]
        ds_write_b64 v7, v[28:29] offset:{K1O}
        s_lshr_b64 exec, -1, 4
        ds_write_b64 v7, v[28:29] offset:{UO}
        s_mov_b64 exec, -1
        ds_write_b64 v5, v[24:25]
        ds_write_b16 v6, v24
        ds_write_b32 v5, v26 offset:{K1O}
        ds_write_b16_d16_hi v6, v25 offset:6
        """)

    def u_gather(self):
        a = self.a
        sc = "sc1" if self.fused else ""
        a(f"""
        v_lshrrev_b32 v2, 2, v0
        v_and_b32 v3, 3, v0
        v_mul_u32_u24 v4, 10240, v2
        v_lshl_add_u32 v4, v3, 4, v4
        s_lshl_b32 s60, s{S_CH0}, 4
        s_add_u32 s60, s60, {XT}
        v_mul_u32_u24 v5, {RSZ}, v3
        v_lshl_add_u32 v5, v2, 4, v5
        v_add_u32 v5, {AUX+UO+UPAD}, v5
        v_cmp_gt_u32 vcc, s{S_NCH}, v3
        s_mov_b64 s[62:63], exec
        s_and_b64 exec, exec, vcc
        """)
        for i in range(16):
            a(f"buffer_load_dwordx4 v[{40+4*i}:{43+4*i}], v4, s[{R_WS}:{R_WS+3}], s60 offen {sc}")
            if i < 15: a(f"s_add_u32 s60, s60, {16*10240}")
        for i in range(16):
            a(f"s_waitcnt vmcnt({14-i})" if i < 15 else "s_nop 7")
            a(f"ds_write_b128 v5, v[{40+4*i}:{43+4*i}] offset:{256*i}")
        a("s_mov_b64 exec, s[62:63]\ns_waitcnt lgkmcnt(0)")

    def conv(self):
        a = self.a
        sc = "sc1" if self.fused else ""
        ACC = 60; OP = [92, 156]
        AB = 12
        a(f"""
        v_and_b32 v2, 15, v0
        v_lshrrev_b32 v3, 4, v0
        v_lshlrev_b32 v4, 3, v3
        v_sub_u32 v4, v2, v4
        v_add_u32 v4, {233+16-224}, v4
        v_and_b32 v5, 1, v2
        v_and_b32 v4, -2, v4
        v_lshlrev_b32 v4, 1, v4
        v_cmp_eq_u32 vcc, 0, v5
        v_mov_b32 v6, {K1O}
        v_cndmask_b32 v5, 0, v6, vcc
        v_add3_u32 v{AB}, v4, v5, s72
        v_add_u32 v{AB+1}, 1024, v{AB}
        v_add_u32 v{AB+2}, 2048, v{AB}
        v_add_u32 v{AB+3}, 3072, v{AB}
        v_lshlrev_b32 v4, 5, v2
        v_lshl_add_u32 v4, v3, 4, v4
        s_add_u32 s60, s72, {UO}
        v_add_u32 v16, s60, v4
        """)
        for i in range(32): a(f"v_mov_b32 v{ACC+i}, 0")
        def reads(tau):
            s = OP[tau % 2]
            r = []
            for d in range(8):
                r.append(f"ds_read_b128 v[{s+32+4*d}:{s+35+4*d}], v16 offset:{512*d+64*tau}")
                o = 512 * d - 64 * tau + 448
                b = AB + o // 1024; q = (o % 1024) // 4
                r.append(f"ds_read2_b32 v[{s+4*d}:{s+4*d+1}], v{b} offset0:{q} offset1:{q+1}")
                r.append(f"ds_read2_b32 v[{s+4*d+2}:{s+4*d+3}], v{b} offset0:{q+2} offset1:{q+3}")
            return r
        r0 = reads(0)
        for k, ins in enumerate(r0):
            a(ins)
            if k == 12: a("s_waitcnt lgkmcnt(3)")
        for tau in range(8):
            s = OP[tau % 2]
            nxt = reads(tau + 1) if tau < 7 else []
            pairs = sorted([(d, n) for d in range(8) for n in range(8 - d)], key=lambda p: (max(p), p))
            a("s_waitcnt lgkmcnt(0)")
            for k, (d, n) in enumerate(pairs):
                acc = ACC + 4 * (d + n)
                a(f"v_mfma_f32_16x16x32_bf16 v[{acc}:{acc+3}], v[{s+4*d}:{s+4*d+3}], v[{s+32+4*n}:{s+35+4*n}], v[{acc}:{acc+3}]")
                if nxt and k < 30 and k % 5 != 4:
                    a(nxt.pop(0))
            assert not nxt
        a(f"""
        v_lshlrev_b32 v5, 5, v2
        v_lshl_add_u32 v5, v3, 3, v5
        s_lshl_b32 s61, s71, 12
        s_add_u32 s61, s61, {ST}
        """)
        for n in range(8):
            acc = ACC + 4 * n; o = 128 + 2 * n
            a(f"""
            v_cvt_pk_bf16_f32 v{o}, v{acc}, v{acc+1}
            v_cvt_pk_bf16_f32 v{o+1}, v{acc+2}, v{acc+3}
            buffer_store_dwordx2 v[{o}:{o+1}], v5, s[{R_WS}:{R_WS+3}], s61 offen offset:{512*n} {sc}
            """)

    G2_ACC = 16; G2_RB = 96; G2_BT = 156; G2_A = 176
    def g2_addr(self):
        self.a(f"""
        v_lshlrev_b32 v9, 4, v0
        v_add_u32 v8, 4096, v9
        s_mul_i32 s74, s{S_CB2}, 245760
        s_mul_i32 s60, s{S_WAVE}, {12*5120}
        s_add_u32 s74, s74, s60
        s_add_u32 s74, s74, {W2F}
        s_mul_i32 s75, s{S_WAVE}, 10240
        """)
    @staticmethod
    def kloc(j):
        tp, cbl = divmod(j, 4)
        return 3 * cbl + (tp + (cbl & 1)) % 3

    @staticmethod
    def lslot(j):
        q = j if j < 6 else j - 9
        return IMG[q // 2] + (q % 2) * 5120

    def g2_dma_items(self, j):
        W = f"s[{R_WS}:{R_WS+3}]"
        l0 = self.lslot(j)
        r = []
        for nt in range(5):
            pre = [f"s_add_u32 s81, s74, {5120*self.kloc(j)}"] if nt == 0 else []
            if nt < 4: r.append((pre + [f"s_add_u32 m0, s75, {l0}", f"buffer_load_dwordx4 v9, {W}, s81 offen offset:{1024*nt} sc1 lds"], f"D{j}"))
            else: r.append(([f"s_add_u32 m0, s75, {l0+4096}", f"buffer_load_dwordx4 v8, {W}, s81 offen sc1 lds"], f"D{j}"))
        return r

    def g2_bload_items(self, j):
        W = f"s[{R_WS}:{R_WS+3}]"
        r = []
        for nt in range(5):
            d = self.G2_RB + 20 * (j % 3) + 4 * nt
            pre = [f"s_add_u32 s81, s74, {5120*self.kloc(j)}"] if nt == 0 else []
            if nt < 4: r.append((pre + [f"buffer_load_dwordx4 v[{d}:{d+3}], v9, {W}, s81 offen offset:{1024*nt} sc1"], f"B{j}"))
            else: r.append(([f"buffer_load_dwordx4 v[{d}:{d+3}], v8, {W}, s81 offen sc1"], f"B{j}"))
        return r

    def g2_aload_items(self, j):
        W = f"s[{R_WS}:{R_WS+3}]"
        k = self.kloc(j)
        vo = (9, 8, 13)[k // 4]
        r = []
        for i in range(4):
            d = self.G2_A + 16 * (j % 5) + 4 * i
            r.append(([f"buffer_load_dwordx4 v[{d}:{d+3}], v{vo}, {W}, s{76+i} offen offset:{1024*(k%4)} sc1"], f"A{j}"))
        return r

    def g2_setup_s(self):
        a = self.a
        for i in range(4):
            a(f"""
            s_add_u32 s60, s{S_WAVE}, {i}
            s_and_b32 s60, s60, 3
            s_lshl_b32 s61, s{S_RB2}, 2
            s_add_u32 s60, s60, s61
            s_mul_i32 s60, s60, 49152
            s_mul_i32 s61, s{S_WAVE}, {12*1024}
            s_add_u32 s60, s60, s61
            s_add_u32 s{76+i}, s60, {HF}
            """)
    def g2_setup_v(self):
        a = self.a
        self.seen = {t for t in self.seen if not t.startswith("A")}
        a(f"v_add_u32 v10, s75, v9\nv_add_u32 v14, {IMG[2]}, v10\nv_add_u32 v13, 8192, v9")

    def fh_wait(self, tp):
        self.a(f"s_lshl_b32 s66, s{S_WAVE}, 4\ns_add_u32 s66, s66, {M_FH + 64*tp}")
        self.lds_wait_all("s66", 1, f"fhw{tp}", tmp=2)

    def g2_loop(self, hook=None, hook_at=6, fill0=None):
        a = self.a
        def bt_read(j, nt):
            d = self.G2_BT + 4 * nt
            off = self.lslot(j) + 1024 * nt
            if off < IMG[2]: a(f"ds_read_b128 v[{d}:{d+3}], v10 offset:{off}")
            else: a(f"ds_read_b128 v[{d}:{d+3}], v14 offset:{off-IMG[2]}")
        F1 = int(os.environ.get('F1', '0')); F2 = int(os.environ.get('F2', '3'))
        sched = {}
        for jj in range(4, 12):
            sched.setdefault(max(jj - 5, F1 if jj < 8 else F2), []).append(jj)
        fill = list(fill0 or [])
        self.vwait("D0")
        for nt in range(5): bt_read(0, nt)
        for j in range(12):
            inreg = 6 <= j < 9
            nxt_l = j + 1 < 12 and not (6 <= j + 1 < 9)
            if hook and j == hook_at: hook()
            self.stamp(16 + j, q=True)
            self.vwait(f"A{j}")
            if inreg: self.vwait(f"B{j}")
            if nxt_l: self.vwait(f"D{j+1}")
            for nt in range(5):
                if inreg:
                    B = self.G2_RB + 20 * (j % 3) + 4 * nt
                else:
                    B = self.G2_BT + 4 * nt
                    a(f"s_waitcnt lgkmcnt({4 if nxt_l else 4-nt})")
                for i in range(4):
                    acc = self.G2_ACC + 16 * nt + 4 * i
                    A = self.G2_A + 16 * (j % 5) + 4 * i
                    a(f"v_mfma_f32_16x16x32_bf16 v[{acc}:{acc+3}], v[{B}:{B+3}], v[{A}:{A+3}], {'0' if j == 0 else f'v[{acc}:{acc+3}]'}")
                    if fill and i in (0, 2): self.emit(fill.pop(0))
                if nxt_l: bt_read(j + 1, nt)
            pri = []
            for jj in sched.get(j, []):
                if jj in (4, 8): self.fh_wait(jj // 4)
                pri += self.g2_aload_items(jj)
            if pri and pri[0][1] == f"A{j+1}":
                for it in pri[:4]: self.emit(it)
                pri = pri[4:]
            fill = pri + fill
            if j < 3: fill += self.g2_dma_items(j + 9)
        assert not fill

    FX = 96; FB = 106
    def svc_x_loads(self):
        a = self.a
        a(f"""
        s_mul_i32 s60, s{S_RB2}, {64*1280}
        s_mul_i32 s61, s{S_CB2}, 160
        s_add_u32 s60, s60, s61
        """)
        for i in range(10):
            a(f"""
            v_add_u32 v2, {64*i}, v0
            v_mul_u32_u24 v3, 52429, v2
            v_lshrrev_b32 v3, 19, v3
            v_mul_u32_u24 v4, 10, v3
            v_sub_u32 v4, v2, v4
            v_lshlrev_b32 v4, 4, v4
            v_mad_u32_u24 v{184+i}, v3, s97, v4
            v_mul_u32_u24 v3, 1280, v3
            v_add_u32 v3, v3, v4
            buffer_load_dwordx4 v[{140+4*i}:{143+4*i}], v3, s[{R_X}:{R_X+3}], s60 offen
            """.replace("s97", "s67") if False else f"""
            v_add_u32 v2, {64*i}, v0
            v_mul_u32_u24 v3, 52429, v2
            v_lshrrev_b32 v3, 19, v3
            v_mul_u32_u24 v4, 10, v3
            v_sub_u32 v4, v2, v4
            v_lshlrev_b32 v4, 4, v4
            v_mul_u32_u24 v5, {XRS}, v3
            v_add_u32 v{184+i}, v5, v4
            v_mul_u32_u24 v3, 1280, v3
            v_add_u32 v3, v3, v4
            buffer_load_dwordx4 v[{140+4*i}:{143+4*i}], v3, s[{R_X}:{R_X+3}], s60 offen
            """)
        a(f"""
        v_min_u32 v2, 39, v0
        v_lshlrev_b32 v2, 2, v2
        v_add_u32 v2, s61, v2
        global_load_dword v180, v2, s[{P_B2}:{P_B2+1}]
        """)

    def svc_x_write(self):
        a = self.a
        for i in range(10):
            a(f"v_add_u32 v{184+i}, {XI}, v{184+i}")
        for i in range(10):
            a(f"ds_write_b128 v{184+i}, v[{140+4*i}:{143+4*i}]")
        a(f"""
        v_lshlrev_b32 v182, 16, v180
        v_and_b32 v183, 0xffff0000, v180
        v_min_u32 v2, 39, v0
        v_lshlrev_b32 v2, 3, v2
        v_add_u32 v2, {M_B2}, v2
        ds_write_b64 v2, v[182:183]
        """)

    def s_tile_dma(self):
        a = self.a
        sc = "sc1" if self.fused else ""
        a(f"""
        v_lshrrev_b32 v2, 3, v0
        v_and_b32 v3, 7, v0
        v_lshlrev_b32 v2, 12, v2
        v_lshl_add_u32 v2, v3, 4, v2
        s_mul_i32 s60, s{S_CB2}, {80*4096}
        s_lshl_b32 s61, s{S_RB2}, 7
        s_add_u32 s60, s60, s61
        s_add_u32 s60, s60, {ST}
        """)
        for t in range(10):
            a(f"s_mov_b32 m0, {AUX+1024*t}")
            a(f"buffer_load_dwordx4 v2, s[{R_WS}:{R_WS+3}], s60 offen {sc} lds")
            if t < 9: a(f"s_add_u32 s60, s60, {8*4096}")
        self.svc_x_write()
        a("s_waitcnt vmcnt(0) lgkmcnt(0)")

    def g2_final(self):
        a = self.a
        ACC = self.G2_ACC
        self.srd(R_OUT, P_OUT, 2621440)
        for i in range(1, 4):
            for nt in range(5):
                acc = ACC + 16 * nt + 4 * i
                if i < 3: a(f"ds_write_b128 v10, v[{acc}:{acc+3}] offset:{IMG[i-1]+1024*nt}")
                else: a(f"ds_write_b128 v14, v[{acc}:{acc+3}] offset:{1024*nt}")
        for i in range(1, 4):
            a(f"""
            s_sub_u32 s60, s{S_WAVE}, {i}
            s_and_b32 s60, s60, 3
            s_mul_i32 s60, s60, 10240
            s_add_u32 s60, s60, {IMG[i-1]}
            v_add_u32 v{4+i}, s60, v9
            """)
        a(f"""
        v_and_b32 v2, 15, v0
        v_lshrrev_b32 v3, 4, v0
        v_lshrrev_b32 v12, 2, v2
        v_lshl_add_u32 v12, v3, 2, v12
        v_lshlrev_b32 v12, 7, v12
        v_and_b32 v15, 3, v0
        v_lshl_add_u32 v12, v15, 3, v12
        s_lshl_b32 s60, s{S_WAVE}, 5
        s_add_u32 s60, s60, {AUX}
        v_add_u32 v12, s60, v12
        s_mul_i32 s60, s{S_WAVE}, {16*XRS}
        s_add_u32 s60, s60, {XI}
        v_mul_u32_u24 v11, {XRS}, v2
        v_lshl_add_u32 v11, v3, 3, v11
        v_add_u32 v11, s60, v11
        v_lshlrev_b32 v13, 4, v3
        v_add_u32 v13, {M_B2}, v13
        v_mov_b32 v250, 1.0
        v_mov_b32 v251, 1.0
        v_mov_b32 v252, 0xbfb8aa3b
        s_lshl_b32 s80, s{S_RB2}, 2
        s_add_u32 s80, s80, s{S_WAVE}
        s_mul_i32 s80, s80, {16*1280}
        s_mul_i32 s61, s{S_CB2}, 160
        s_add_u32 s80, s80, s61
        """)
        for i in range(3):
            a(f"""
            v_add_u32 v2, {64*i}, v0
            v_mul_u32_u24 v3, 52429, v2
            v_lshrrev_b32 v3, 19, v3
            v_mul_u32_u24 v4, 10, v3
            v_sub_u32 v4, v2, v4
            v_lshlrev_b32 v4, 4, v4
            v_mul_u32_u24 v2, {XRS}, v3
            v_add3_u32 v{240+i}, v2, v4, s60
            v_mul_u32_u24 v3, 1280, v3
            v_add_u32 v{243+i}, v3, v4
            """)
        a("s_waitcnt lgkmcnt(0)\ns_barrier")
        P = 96
        def reads(nt):
            p = P + 20 * nt
            for i in range(1, 4):
                a(f"ds_read_b128 v[{p+4*(i-1)}:{p+4*(i-1)+3}], v{4+i} offset:{1024*nt}")
            a(f"ds_read_b128 v[{p+12}:{p+15}], v13 offset:{64*nt}")
            a(f"ds_read_b64_tr_b16 v[{p+16}:{p+17}], v12 offset:{2048*nt}")
            a(f"ds_read_b64 v[{p+18}:{p+19}], v11 offset:{32*nt}")
        reads(0); reads(1)
        Pp = lambda r: f"v[{r}:{r+1}]"
        for nt in range(5):
            acc = ACC + 16 * nt; p = P + 20 * nt; t = 200 + 12 * (nt % 2)
            a(f"s_waitcnt lgkmcnt({6 if nt < 4 else 1})" if nt != 0 else "s_waitcnt lgkmcnt(6)")
            a(f"""
            v_pk_add_f32 {Pp(acc)}, {Pp(acc)}, {Pp(p)}
            v_pk_add_f32 {Pp(acc+2)}, {Pp(acc+2)}, {Pp(p+2)}
            v_pk_add_f32 {Pp(p+4)}, {Pp(p+4)}, {Pp(p+8)}
            v_pk_add_f32 {Pp(p+6)}, {Pp(p+6)}, {Pp(p+10)}
            v_pk_add_f32 {Pp(acc)}, {Pp(acc)}, {Pp(p+12)}
            v_pk_add_f32 {Pp(acc+2)}, {Pp(acc+2)}, {Pp(p+14)}
            v_pk_add_f32 {Pp(acc)}, {Pp(acc)}, {Pp(p+4)}
            v_pk_add_f32 {Pp(acc+2)}, {Pp(acc+2)}, {Pp(p+6)}
            v_pk_mul_f32 {Pp(t)}, {Pp(acc)}, v[252:253] op_sel_hi:[1,0]
            v_pk_mul_f32 {Pp(t+2)}, {Pp(acc+2)}, v[252:253] op_sel_hi:[1,0]
            """)
            for i in range(4): a(f"v_exp_f32 v{t+i}, v{t+i}")
            if nt + 2 < 5: reads(nt + 2)
            a(f"""
            v_lshlrev_b32 v{t+4}, 16, v{p+16}
            v_and_b32 v{t+5}, 0xffff0000, v{p+16}
            v_lshlrev_b32 v{t+6}, 16, v{p+17}
            v_and_b32 v{t+7}, 0xffff0000, v{p+17}
            v_pk_add_f32 {Pp(t)}, {Pp(t)}, v[250:251]
            v_pk_add_f32 {Pp(t+2)}, {Pp(t+2)}, v[250:251]
            """)
            for i in range(4): a(f"v_rcp_f32 v{t+i}, v{t+i}")
            a(f"""
            v_pk_mul_f32 {Pp(t+4)}, {Pp(t+4)}, {Pp(acc)}
            v_pk_mul_f32 {Pp(t+6)}, {Pp(t+6)}, {Pp(acc+2)}
            v_lshlrev_b32 v{t+8}, 16, v{p+18}
            v_and_b32 v{t+9}, 0xffff0000, v{p+18}
            v_lshlrev_b32 v{t+10}, 16, v{p+19}
            v_and_b32 v{t+11}, 0xffff0000, v{p+19}
            v_pk_fma_f32 {Pp(t+8)}, {Pp(t+4)}, {Pp(t)}, {Pp(t+8)}
            v_pk_fma_f32 {Pp(t+10)}, {Pp(t+6)}, {Pp(t+2)}, {Pp(t+10)}
            v_cvt_pk_bf16_f32 v{p+18}, v{t+8}, v{t+9}
            v_cvt_pk_bf16_f32 v{p+19}, v{t+10}, v{t+11}
            ds_write_b64 v11, v[{p+18}:{p+19}] offset:{32*nt}
            """)
        osc = os.environ.get('OSC', '')
        a(f"""
        ds_read_b128 v[224:227], v240
        ds_read_b128 v[228:231], v241
        s_mov_b32 exec_hi, 0
        ds_read_b128 v[232:235], v242
        s_mov_b64 exec, -1
        s_waitcnt lgkmcnt(1)
        buffer_store_dwordx4 v[224:227], v243, s[{R_OUT}:{R_OUT+3}], s80 offen {osc}
        s_waitcnt lgkmcnt(0)
        buffer_store_dwordx4 v[228:231], v244, s[{R_OUT}:{R_OUT+3}], s80 offen {osc}
        s_mov_b32 exec_hi, 0
        buffer_store_dwordx4 v[232:235], v245, s[{R_OUT}:{R_OUT+3}], s80 offen {osc}
        s_mov_b64 exec, -1
        """)

    def misc_init(self):
        self.a(f"""
        v_lshlrev_b32 v2, 2, v0
        v_add_u32 v2, {MISC}, v2
        v_mov_b32 v3, 0
        ds_write_b32 v2, v3
        """)


HEADER = open("cdna_kernels/" + NAME + ".s.ref").read().split("; Override launch")[0]

def kernel_text(label, body):
    return f""".text
.globl {label}
.p2align 8
.type {label},@function
{label}:
{body}
"""
def desc(label, vgpr=256):
    return f""".section .rodata,"a"
.p2align 6
.amdhsa_kernel {label}
  .amdhsa_next_free_vgpr {vgpr}
  .amdhsa_next_free_sgpr 102
  .amdhsa_accum_offset {vgpr}
  .amdhsa_group_segment_fixed_size 0
  .amdhsa_kernarg_size 120
  .amdhsa_user_sgpr_count 2
  .amdhsa_user_sgpr_kernarg_segment_ptr 1
  .amdhsa_system_sgpr_workgroup_id_x 1
.end_amdhsa_kernel
"""
```

```python
import sys, os
from parts import *
E = lambda k, d=0: int(os.environ.get(k, d))

class Fused(Gen):
    def cnt_add(self, addr, rtn=False):
        self.a(f"""
        v_mov_b32 v2, {addr}
        v_mov_b32 v3, 1
        s_mov_b64 exec, 1
        {'ds_add_rtn_u32 v4, v2, v3' if rtn else 'ds_add_u32 v2, v3'}
        s_mov_b64 exec, -1
        """)

    def cnt_wait(self, addr, n, name, sleep=0):
        lab = self.L(name)
        self.a(f"""
        v_mov_b32 v2, {addr}
        s_mov_b32 s61, 0
        {lab}:
        ds_read_b32 v3, v2
        s_add_u32 s61, s61, 1
        s_waitcnt lgkmcnt(0)
        v_readfirstlane_b32 s60, v3
        s_cmp_gt_u32 s61, 0x100000
        s_cbranch_scc1 {lab}_d
        s_cmp_ge_u32 s60, {n}
        s_cbranch_scc1 {lab}_d
        {'s_sleep %d' % sleep if sleep else ''}
        s_branch {lab}
        {lab}_d:
        """)

    def build_fused(self):
        a = self.a
        L = self.L
        st = 2 if self.stamps else 0
        N0 = E('N0', 8)
        GS = E('GS', 16)
        slp = ('s_sleep %d' % PSLEEP) if PSLEEP else ''
        def xt_flag(p):
            a("s_waitcnt vmcnt(0)")
            self.cnt_add(M_LNCNT + 8, rtn=True)
            a(f"""
            s_mul_i32 s66, s{S_LID}, {FSTR}
            s_add_u32 s66, s66, {FLT}
            s_waitcnt lgkmcnt(0)
            s_nop 1
            v_readfirstlane_b32 s60, v4
            s_cmp_lg_u32 s60, 3
            s_cbranch_scc1 {L('xtf' + p)}
            """)
            self.store_flag(66)
            a(f"{L('xtf' + p)}:")
        NA = (40 - GS) // 3
        assert GS + 3 * NA == 40
        def aux_dma(p):
            self.w1_addr(12)
            a(f"s_add_u32 s68, s70, {GS}\n{L('adl' + p)}:")
            self.w1_group(12)
            a(f"s_add_u32 s68, s68, 3\ns_cmp_lt_u32 s68, 40\ns_cbranch_scc1 {L('adl' + p)}")
        a(f"{L('start')}:")
        a("s_memrealtime s[94:95]")
        self.prologue()
        self.stamp(0)
        if 0 in self.sel:
            a(f"v_mov_b32 v1, s94\ns_mov_b64 exec, 1\nbuffer_store_dword v1, off, s[{R_WS}:{R_WS+3}], s100 offset:124\ns_mov_b64 exec, -1")
        a(f"s_cmp_ge_u32 s{S_WAVE}, 4\ns_cbranch_scc1 {L('aux0')}")
        a(f"s_setprio {E('GP', 2)}")
        self.ln_loads()
        self.w1_addr(92)
        self.g1_b1_loads()
        self.ln_pub_addr()
        a(f"s_waitcnt vmcnt(6)")
        self.stamp(1)
        self.ln_math()
        a("s_waitcnt lgkmcnt(0)")
        self.lds_set(M_LNW, S_WAVE, tmp=(2, 3))
        self.lds_wait_all(M_LNW, 4, "lnw4", tmp=2, sleep=0)
        a(f"v_mov_b32 v97, 0\nv_mov_b32 v96, 0\ns_cmp_lg_u32 s{S_WAVE}, 0\ns_cbranch_scc1 {L('g_n0')}")
        a(f"global_load_dword v96, v97, s[{P_DBG}:{P_DBG+1}] sc1\n{L('g_n0')}:")
        self.ln_publish()
        self.ln_publish_xt()
        self.stamp(13)
        self.cnt_add(M_LNCNT + 8)
        a("s_waitcnt vmcnt(5)" if 13 not in self.sel else "s_waitcnt vmcnt(6)")
        self.g1_prep()
        self.g2_addr()
        a("s_waitcnt vmcnt(0)")
        self.stamp(2)
        a(f"s_cmp_eq_u32 s{S_WAVE}, 0\ns_cbranch_scc1 {L('g_w0')}")
        self.cnt_add(M_LNCNT)
        a(f"s_branch {L('g_j')}\n{L('g_w0')}:")
        a(f"""
        s_mov_b32 s64, 0
        {L('np')}:
        v_readfirstlane_b32 s{S_NONCE}, v96
        s_cmp_gt_u32 s64, 0x8000
        s_cbranch_scc1 {L('npd')}
        s_cmp_lg_u32 s{S_NONCE}, 0
        s_cbranch_scc1 {L('npd')}
        global_load_dword v96, v97, s[{P_DBG}:{P_DBG+1}] sc1
        s_add_u32 s64, s64, 1
        s_waitcnt vmcnt(0)
        s_nop 1
        s_branch {L('np')}
        {L('npd')}:
        v_mov_b32 v2, s{S_NONCE}
        v_mov_b32 v3, {M_NONCE}
        ds_write_b32 v3, v2
        v_mov_b32 v3, {M_LNCNT}
        s_mov_b32 s64, 0
        {L('lc')}:
        ds_read_b32 v2, v3
        s_add_u32 s64, s64, 1
        s_waitcnt lgkmcnt(0)
        v_readfirstlane_b32 s60, v2
        s_cmp_gt_u32 s64, 0x100000
        s_cbranch_scc1 {L('lcd')}
        s_cmp_lt_u32 s60, 3
        s_cbranch_scc1 {L('lc')}
        {L('lcd')}:
        s_mul_i32 s66, s{S_LID}, {FSTR}
        s_add_u32 s66, s66, {FLN}
        """)
        self.store_flag(66)
        self.stamp(10)
        a(f"s_mul_i32 s66, s{S_RB}, {16*FSTR}\ns_add_u32 s66, s66, {FLN}")
        self.poll_flags("pln", 66, 16)
        self.lds_set(M_LN, None, tmp=(2, 3))
        a(f"s_cmp_lg_u32 s{S_RB}, s{S_CB}\ns_cbranch_scc1 {L('g_j')}\ns_mul_i32 s66, s{S_RB}, {FSTR}\ns_add_u32 s66, s66, {FL2}")
        self.store_flag(66)
        a(f"{L('g_j')}:")
        self.lds_wait_all(M_LN, 1, "lnw", tmp=2)
        self.stamp(3)
        self.vq = []
        for ks in range(N0):
            for it in self.g1_aload(ks): self.emit(it)
        self.lds_set(M_LN + 4, None, tmp=(2, 3))
        self.get_nonce("gn", tmp=2)
        self.lds_wait_all(M_W1, 4, "w1w", tmp=2)
        self.stamp(4, q=True)
        self.pubn = ''
        def publish(p):
            self.vwait(f"S{p}")
            self.cnt_add(M_HC + 4 * p, rtn=True)
            a(f"""
            s_mul_i32 s66, s{S_LID}, {FHS}
            s_add_u32 s66, s66, {FH + 256 * FHS * p}
            s_waitcnt lgkmcnt(0)
            s_nop 1
            v_readfirstlane_b32 s60, v4
            s_cmp_lg_u32 s60, 3
            s_cbranch_scc1 {L('nofh%d%s' % (p, self.pubn))}
            """)
            self.store_flag(66)
            if p == 0: self.lds_set(M_HP, None, tmp=(2, 3))
            a(f"{L('nofh%d%s' % (p, self.pubn))}:")
            self.stamp(28 + p, q=True)
            self.vq.append("f")
            self.vq.pop()
        def cnt_wait(addr, n, name):
            lab = L(name)
            a(f"""
            v_mov_b32 v2, {addr}
            s_mov_b32 s61, 0
            {lab}:
            ds_read_b32 v3, v2
            s_add_u32 s61, s61, 1
            s_waitcnt lgkmcnt(0)
            v_readfirstlane_b32 s60, v3
            s_cmp_gt_u32 s61, 0x100000
            s_cbranch_scc1 {lab}_d
            s_cmp_lt_u32 s60, {n}
            s_cbranch_scc1 {lab}
            {lab}_d:
            """)
        def ev_pd(p):
            def f(): self.cnt_add(M_PD + 4 * p)
            return f
        def ev_dma(p):
            def f():
                if p == 0: self.lds_wait_all(M_FW, 1, "fww", tmp=2)
                cnt_wait(M_PD + 4 * p, 4, f"pdw{p}")
                return self.g2_dma_items(2 * p) + self.g2_dma_items(1 + 2 * p)
            return f
        def ev_pub0():
            publish(0)
        def ev_rb():
            return sum((self.g2_bload_items(j) for j in range(6, 9)), [])
        D0 = E('D0', 6)
        def ev_d01():
            return ev_dma(0)() + self.g2_dma_items(2) + self.g2_dma_items(3)
        ev = {(0, 10): lambda: self.stamp(14, q=True), (1, 0): lambda: (ev_pd(0)(), self.stamp(15, q=True))[0], (1, D0): ev_d01,
              (1, E('P0', 14)): ev_pub0, (1, E('P1', 19)): lambda: publish(1)}
        if E('RB1'): ev[(1, E('RB1'))] = ev_rb
        self.g2_setup_s()
        self.g1_loop(N0, ev)
        self.cnt_add(M_PD + 8)
        self.stamp(5, q=True)
        for it in self.epi_ops(2): self.emit(it)
        self.g2_setup_v()
        if E('PF'): a("s_setprio 0")
        a(f"""
        s_lshl_b32 s66, s{S_WAVE}, 4
        s_add_u32 s66, s66, {M_FH}
        v_mov_b32 v2, s66
        ds_read_b32 v3, v2
        s_waitcnt lgkmcnt(0)
        v_readfirstlane_b32 s60, v3
        s_cmp_eq_u32 s60, 0
        s_cbranch_scc1 {L('slowp')}
        """)
        self.stamp(6, q=True)
        save = list(self.vq)
        for j in range(4):
            for it in self.g2_aload_items(j): self.emit(it)
        self.pubn = "x"
        publish(2)
        a(f"s_branch {L('g2go')}\n{L('slowp')}:")
        self.vq = save
        self.pubn = "y"
        publish(2)
        self.fh_wait(0)
        for j in range(4):
            for it in self.g2_aload_items(j): self.emit(it)
        a(f"{L('g2go')}:")
        self.stamp(7, q=True)
        self.g2_loop(hook=lambda: self.lds_set(M_J6, None, tmp=(2, 3)), hook_at=E('J6', 6), fill0=ev_dma(2)() + ([] if E('RB1') else ev_rb()))
        self.stamp(8)
        if E('PF'): a("s_setprio 2")
        self.g2_final()
        if 9 in self.sel: a("s_waitcnt vmcnt(0)")
        self.stamp(9)
        if E('KX'):
            a(f"""
            s_waitcnt vmcnt(0)
            s_memrealtime s[62:63]
            s_waitcnt lgkmcnt(0)
            s_sub_u32 s60, s62, s{S_NONCE}
            s_min_u32 s60, s60, 10000
            s_mul_i32 s60, s60, {E('KX')}
            {L('kx')}:
            s_memrealtime s[62:63]
            s_waitcnt lgkmcnt(0)
            s_sub_u32 s61, s62, s{S_NONCE}
            s_cmp_lt_u32 s61, s60
            s_cbranch_scc1 {L('kx')}
            """)
        a(f"s_endpgm\n{L('aux0')}:")
        a.clear_hist()
        a(f"s_cmp_eq_u32 s{S_WAVE}, 7\ns_cbranch_scc1 {L('svc')}")
        a(f"s_sub_u32 s60, s{S_WAVE}, 4\ns_cmp_ge_u32 s60, s{S_NCH}\ns_cbranch_scc1 {L('noch')}")
        self.kg_loads()
        aux_dma("a")
        a(f"s_waitcnt vmcnt({3 * NA})")
        self.stamp(1)
        if E('X1'):
            self.get_nonce("x1n", tmp=2)
            self.lds_set(M_CD, 70, tmp=(2, 3))
            a(f"s_mul_i32 s66, s71, {FSTR}\ns_add_u32 s66, s66, {FS}")
            self.store_flag(66)
            a("s_endpgm")
        def khook():
            a(f"s_cmp_lg_u32 s73, 2\ns_cbranch_scc1 {L('kh')}\ns_waitcnt vmcnt(0)")
            self.lds_set(M_W1, 70, tmp=(2, 3))
            a(f"{L('kh')}:")
        self.kgen(hook=khook)
        self.stamp(3)
        self.expand()
        self.stamp(2)
        self.get_nonce("cn", tmp=2)
        self.lds_wait_all(M_U, 1, "uw", tmp=2)
        self.stamp(4)
        if E('CW'):
            lab = L("cw")
            a(f"""
            v_mov_b32 v2, {M_PD + 4 * (E('CW') - 1)}
            s_mov_b32 s61, 0
            {lab}:
            ds_read_b32 v3, v2
            s_add_u32 s61, s61, 1
            s_waitcnt lgkmcnt(0)
            v_readfirstlane_b32 s60, v3
            s_cmp_gt_u32 s61, 0x100000
            s_cbranch_scc1 {lab}_d
            s_cmp_ge_u32 s60, 4
            s_cbranch_scc1 {lab}_d
            s_sleep 2
            s_branch {lab}
            {lab}_d:
            """)
        if E('PF'): a("s_setprio 1")
        self.conv()
        self.lds_set(M_CD, 70, tmp=(2, 3))
        self.stamp(5)
        a(f"s_mul_i32 s66, s71, {FSTR}\ns_add_u32 s66, s66, {FS}\ns_waitcnt vmcnt(0)")
        self.store_flag(66)
        self.stamp(6)
        a(f"s_endpgm\n{L('noch')}:")
        a.clear_hist()
        a(f"s_sub_u32 s70, s{S_WAVE}, 4")
        aux_dma("b")
        a(f"s_cmp_eq_u32 s{S_WAVE}, 6\ns_cbranch_scc1 {L('rt')}\ns_waitcnt vmcnt(0)")
        self.lds_set(M_W1, 70, tmp=(2, 3))
        a(f"s_endpgm\n{L('rt')}:")
        self.w2_loads()
        a("s_waitcnt vmcnt(0)")
        self.lds_set(M_W1, 70, tmp=(2, 3))
        self.cnt_wait(M_LNCNT + 8, 4, "rtw", sleep=2)
        a("s_setprio 3")
        self.w2_retile()
        a(f"""
        v_mov_b32 v3, 0
        s_mov_b32 s64, 0
        {L('wn')}:
        global_load_dword v2, v3, s[{P_DBG}:{P_DBG+1}] sc1
        s_add_u32 s64, s64, 1
        s_waitcnt vmcnt(0)
        s_nop 1
        v_readfirstlane_b32 s{S_NONCE}, v2
        s_cmp_gt_u32 s64, 0x8000
        s_cbranch_scc1 {L('wnd')}
        s_cmp_eq_u32 s{S_NONCE}, 0
        s_cbranch_scc1 {L('wn')}
        {L('wnd')}:
        """)
        a(f"s_mul_i32 s66, s43, {FSTR}\ns_add_u32 s66, s66, {FW}\ns_waitcnt vmcnt(0)")
        self.store_flag(66)
        self.stamp(7)
        a(f"s_endpgm\n{L('svc')}:")
        a.clear_hist()
        a(f"""
        {'s_memrealtime s[90:91]' if os.environ.get('DG') == '3' else ''}
        s_setprio {E('SP', 1)}
        s_cmp_lg_u32 s2, 0
        s_cbranch_scc1 {L('svc1')}
        v_mov_b32 v3, 0
        s_or_b32 s61, s94, 1
        v_mov_b32 v2, s61
        s_mov_b64 exec, 1
        global_store_dword v3, v2, s[{P_DBG}:{P_DBG+1}] sc1
        s_mov_b64 exec, -1
        {L('svc1')}:
        """)
        if E('WARM', 1):
            self.srd(R_OUT, P_OUT, 2621440)
            a(f"""
            s_getpc_b64 s[62:63]
            {L('pc')}:
            s_sub_u32 s62, s62, {L('pc')}-{L('start')}
            s_subb_u32 s63, s63, 0
            s_and_b32 s60, s{S_IDX}, 7
            s_lshl_b32 s60, s60, 12
            v_lshlrev_b32 v2, 7, v0
            v_add_u32 v2, s60, v2
            v_min_u32 v2, {L('end')}-{L('start')}, v2
            v_lshlrev_b32 v3, 20, v0
            s_mov_b32 exec_hi, 0
            global_load_dword v130, v2, s[62:63]
            buffer_load_dword v131, v3, s[{R_WS}:{R_WS+3}], 0 offen
            buffer_load_dword v132, v3, s[{R_OUT}:{R_OUT+3}], 0 offen
            s_mov_b64 exec, -1
            """)
        if E('X1'): self.lds_wait_all(M_NONCE, 1, "x1w", tmp=2)
        self.w1_addr(12)
        a(f"""
        s_mul_i32 s68, s{S_RB}, {GS}
        s_lshr_b32 s68, s68, 4
        s_mov_b32 s67, {GS}
        {L('sdl')}:
        """)
        self.w1_group(12)
        a(f"""
        s_add_u32 s68, s68, 1
        s_cmp_eq_u32 s68, {GS}
        s_cselect_b32 s68, 0, s68
        s_sub_u32 s67, s67, 1
        s_cmp_lg_u32 s67, 0
        s_waitcnt vmcnt({E('DEPTH', 45)})
        s_cbranch_scc1 {L('sdl')}
        """)
        a("s_waitcnt vmcnt(0)")
        self.lds_set(M_W1 + 12, None, tmp=(2, 3))
        a("s_setprio 3")
        self.stamp(2)
        self.get_nonce("sn", tmp=2)
        def fwp():
            a(f"s_lshr_b32 s66, s{S_CB2}, 2\ns_mul_i32 s66, s66, {FSTR}\ns_add_u32 s66, s66, {FW}")
            if E('L2P', 0):
                a(f"s_mov_b32 s66, {FW}")
                self.poll_flags("pfw", 66, 48, nloads=2, istride=48*FSTR)
            else:
                self.poll_flags("pfw", 66, 48, lstride=2*FSTR)
            self.lds_set(M_FW, None, tmp=(2, 3))
            if E('L2P', 0):
                a(f"s_mul_i32 s60, s{S_IDX}, {480*128}\ns_add_u32 s60, s60, {W2F}\nv_lshlrev_b32 v2, 7, v0")
                for i in range(8):
                    if i == 7: a("s_mov_b32 exec_hi, 0")
                    a(f"buffer_load_dword v{200+i}, v2, s[{R_WS}:{R_WS+3}], s60 offen sc1\ns_add_u32 s60, s60, 8192")
                a("s_mov_b64 exec, -1")
            self.stamp(5)
        if E('SW', 1) == 1: self.lds_wait_all(M_LN, 1, "slw", tmp=2)
        fwp()
        a(f"s_cmp_eq_u32 s{S_NCH}, 0\ns_cbranch_scc1 {L('nou')}\ns_mov_b32 s66, {FL2}")
        self.poll_flags("pla", 66, 16)
        self.stamp(3)
        self.u_gather()
        self.lds_set(M_U, None, tmp=(2, 3))
        a(f"{L('nou')}:")
        self.stamp(4)
        self.svc_x_loads()
        self.lds_wait_all(M_HP, 1, "hpw", tmp=2)
        a(f"""
        s_lshr_b32 s66, s{S_RB2}, 1
        s_mul_i32 s66, s66, {16*FHS}
        s_add_u32 s66, s66, {FH}
        v_and_b32 v2, 15, v0
        v_mul_u32_u24 v2, {FHS}, v2
        v_lshrrev_b32 v3, 4, v0
        v_lshl_add_u32 v2, v3, {(256 * FHS).bit_length() - 1}, v2
        v_lshlrev_b32 v4, 2, v0
        v_add_u32 v4, {M_FH}, v4
        s_mov_b32 exec_hi, 0xffff
        s_mov_b32 s64, 0
        {L('pfh')}:
        buffer_load_dword v3, v2, s[{R_WS}:{R_WS+3}], s66 offen sc1
        s_add_u32 s64, s64, 1
        s_waitcnt vmcnt(0)
        v_cmp_eq_u32 vcc, s{S_NONCE}, v3
        v_cndmask_b32 v3, 0, 1, vcc
        v_and_b32_dpp v3, v3, v3 quad_perm:[1,0,3,2] row_mask:0xf bank_mask:0xf
        v_and_b32_dpp v3, v3, v3 quad_perm:[2,3,0,1] row_mask:0xf bank_mask:0xf
        ds_write_b32 v4, v3
        s_cmp_gt_u32 s64, 0x8000
        s_cbranch_scc1 {L('pfhx')}
        s_cmp_eq_u64 vcc, exec
        s_cbranch_scc1 {L('pfhd')}
        s_sleep {E('HSLEEP', 4)}
        s_branch {L('pfh')}
        {L('pfhx')}:
        v_mov_b32 v3, 1
        ds_write_b32 v4, v3
        {L('pfhd')}:
        s_mov_b64 exec, -1
        """)
        self.stamp(6)
        self.lds_wait_all(M_J6, 1, "j6w", tmp=2)
        a(f"s_mul_i32 s66, s{S_CB2}, {80*FSTR}\ns_add_u32 s66, s66, {FS}")
        self.poll_flags("pfs", 66, 40, nloads=2, istride=40*FSTR)
        a(f"s_cmp_eq_u32 s{S_NCH}, 0\ns_cbranch_scc1 {L('nocd')}")
        self.lds_wait_all(M_CD, 2, "cdw", tmp=2)
        a(f"{L('nocd')}:")
        self.stamp(7)
        self.s_tile_dma()
        self.stamp(8)
        a("s_barrier")
        if os.environ.get('DG'):
            a(f"""
            s_cmp_lg_u32 s2, 0
            s_cbranch_scc1 {L('end')}
            s_sub_u32 s60, s90, s94
            s_min_u32 s60, s60, 1000
            s_mul_i32 s60, s60, 20
            s_memrealtime s[62:63]
            s_waitcnt lgkmcnt(0)
            s_mov_b32 s64, s62
            {L('dg')}:
            s_memrealtime s[62:63]
            s_waitcnt lgkmcnt(0)
            s_sub_u32 s61, s62, s64
            s_cmp_lt_u32 s61, s60
            s_cbranch_scc1 {L('dg')}
            """)
        a(f"{L('end')}:\ns_endpgm")

if __name__ == "__main__":
    path = sys.argv[1]
    opts = sys.argv[2:]
    g = Fused("fused", "stamps" in opts)
    g.sel = set(range(32)) if "stamps" in opts else ({0, 9} | {int(x) for x in os.environ.get("SEL", "").split(",") if x} if "mins" in opts else set())
    g.build_fused()
    lab = NAME + "_kernel"
    txt = HEADER + f"; @launch grid=(256,1,1) block=(512,1,1) lds={LDS_TOTAL}\n" + '.amdgcn_target "amdgcn-amd-amdhsa--gfx950"\n' + kernel_text(lab, g.a.text()) + desc(lab)
    if E('X4'):
        import re
        txt = re.sub(r"(buffer_load_dwordx4 .*?) sc1", r"\1", txt)
    if E('X2'):
        txt = "\n".join(("    s_nop 0" if ("s81 offen" in l) else l) for l in txt.split("\n"))
    open(path, "w").write(txt)
```

```python
import sys
from asmlib import Asm, vr, sr

NAME = "recurrent_scan__ssm_conv_s4d__dense_activation_squared_relu__prompt"
XF = 0x0; XT = 0x280000; HF = 0x500000; W2F = 0xB00000; ST = 0xD00000
FLG = 0xF80000; STAMP = 0x1000000; WS_SIZE = 0x1100000
import os
FSTR = int(os.environ.get('FSTR','128'))
PSLEEP = int(os.environ.get('PSLEEP','0'))
LSLEEP = int(os.environ.get('LSLEEP','0'))
FHS = int(os.environ.get('FHS','128'))
FLN = FLG; FH = FLG + 0x8000; FW = FLG + 0x20000; FS = FLG + 0x24000; FL2 = FLG + 0x40000
AUX = 122880; RSZ = 12896; K1O = 4160; UO = 8320; UPAD = 480
MISC = AUX + 3 * RSZ
LDS_TOTAL = 163840
M_LNCNT = MISC; M_W1 = MISC + 16; M_G1D = MISC + 32; M_U = MISC + 48; M_NONCE = MISC + 112
M_LNR = MISC + 80; M_LN = MISC + 192; M_LNW = MISC + 240; M_J6 = MISC + 208; M_HP = MISC + 224; M_FW = MISC + 64; M_HCNT = MISC + 68; M_FH = MISC + 256; M_PD = MISC + 128; M_HC = MISC + 144; M_CD = MISC + 96
LNRS = 1296
LNIMG = 122880 - 10752
IMG = [0, 40960, 81920]
XRS = 176; XI = AUX + RSZ; M_B2 = MISC + 512
P_X, P_LA, P_AI, P_CR, P_CI, P_DT, P_DS = 4, 6, 8, 10, 12, 14, 16
P_W1, P_B1, P_W2, P_B2, P_OUT, P_DBG, P_WS = 20, 22, 24, 26, 28, 30, 32
S_WAVE, S_XCD, S_IDX, S_RB, S_CB, S_RB2, S_CB2, S_NCH, S_CH0 = 34, 35, 36, 37, 38, 39, 40, 41, 42
R_WS, R_X, R_W, R_OUT = 44, 48, 52, 56
S_NONCE = 96
S_LID = 93
LOG2E = 0x3fb8aa3b
INV2PI = 0x3e22f983

class Gen:
    def __init__(self, mode, stamps=False):
        self.a = Asm()
        self.mode = mode
        self.fused = mode == "fused"
        self.stamps = stamps
        self.sel = set()
        self.seen = set()
        self.pfx = mode

    def L(self, n):
        return f"{self.pfx}_{n}"

    def stamp(self, slot, q=False):
        if slot not in self.sel: return
        if q: self.vq += ['st']
        a = self.a
        a(f"""
        s_memrealtime s[98:99]
        s_lshl_b32 s100, s2, 3
        s_add_u32 s100, s100, s{S_WAVE}
        s_lshl_b32 s100, s100, 7
        s_add_u32 s100, s100, {STAMP + slot*4}
        s_waitcnt lgkmcnt(0)
        v_mov_b32 v1, s98
        s_mov_b64 s[98:99], exec
        s_mov_b64 exec, 1
        buffer_store_dword v1, off, s[{R_WS}:{R_WS+3}], s100
        s_mov_b64 exec, s[98:99]
        """)

    def srd(self, r, p, size):
        self.a(f"""
        s_mov_b32 s{r}, s{p}
        s_and_b32 s{r+1}, s{p+1}, 0xffff
        s_mov_b32 s{r+2}, {size}
        s_mov_b32 s{r+3}, 0x00020000
        """)

    def prologue(self):
        a = self.a
        a(f"""
        s_load_dwordx16 s[4:19], s[0:1], 0
        s_load_dwordx8 s[20:27], s[0:1], 64
        s_load_dwordx4 s[28:31], s[0:1], 96
        s_load_dwordx2 s[32:33], s[0:1], 112
        s_memrealtime s[94:95]
        s_cmp_ge_u32 s2, 256
        s_cbranch_scc1 {self.L('end')}
        v_lshrrev_b32 v1, 6, v0
        v_and_b32 v0, 63, v0
        s_and_b32 s{S_XCD}, s2, 7
        v_readfirstlane_b32 s{S_WAVE}, v1
        s_lshr_b32 s{S_IDX}, s2, 3
        s_getpc_b64 s[62:63]
        {self.L('pc')}:
        s_cmp_lg_u32 s{S_WAVE}, 7
        s_cbranch_scc1 {self.L('nopf')}
        s_and_b32 s60, s{S_IDX}, 7
        s_lshl_b32 s60, s60, 12
        v_lshlrev_b32 v2, 7, v0
        v_add_u32 v2, s60, v2
        v_min_u32 v2, {self.L('end')}-{self.L('pc')}, v2
        s_mov_b32 exec_hi, 0
        global_load_dword v130, v2, s[62:63]
        s_mov_b32 exec_hi, -1
        {self.L('nopf')}:
        s_and_b32 s60, s{S_XCD}, 3
        s_lshl_b32 s60, s60, 2
        s_and_b32 s61, s{S_IDX}, 3
        s_add_u32 s{S_RB}, s60, s61
        s_lshr_b32 s60, s{S_XCD}, 2
        s_lshl_b32 s60, s60, 3
        s_lshr_b32 s{S_CB2}, s{S_IDX}, 2
        s_add_u32 s{S_CB}, s60, s{S_CB2}
        s_lshl_b32 s60, s{S_XCD}, 2
        s_add_u32 s{S_RB2}, s60, s61
        ; conv channels: g = idx/3, pos = idx%3
        s_mul_i32 s60, s{S_IDX}, 43
        s_lshr_b32 s60, s60, 7
        s_mul_i32 s61, s60, 3
        s_sub_u32 s61, s{S_IDX}, s61
        s_mul_i32 s62, s{S_XCD}, 80
        s_lshl_b32 s63, s60, 3
        s_add_u32 s62, s62, s63
        s_mul_i32 s63, s61, 3
        s_add_u32 s{S_CH0}, s62, s63
        s_cmp_eq_u32 s61, 2
        s_cselect_b32 s{S_NCH}, 2, 3
        s_cmp_ge_u32 s{S_IDX}, 30
        s_cselect_b32 s{S_NCH}, 0, s{S_NCH}
        s_sub_u32 s61, s{S_IDX}, 20
        s_cselect_b32 s60, s61, s60
        """)
        a.lines.pop(); a.lines.pop()
        a(f"""
        s_sub_u32 s61, s{S_IDX}, 20
        s_cmp_ge_u32 s{S_IDX}, 30
        s_cselect_b32 s60, s61, s60
        s_mul_i32 s61, s{S_XCD}, 12
        s_add_u32 s43, s61, s60
        s_lshl_b32 s{S_LID}, s{S_RB}, 4
        s_add_u32 s{S_LID}, s{S_LID}, s{S_CB}
        v_lshlrev_b32 v2, 3, v0
        v_add_u32 v2, {MISC}, v2
        v_mov_b32 v4, 0
        v_mov_b32 v5, 0
        ds_write_b64 v2, v[4:5]
        s_cmp_eq_u32 s{S_WAVE}, 7
        s_cselect_b32 s60, s2, 1
        s_cmp_lg_u32 s60, 0
        s_waitcnt lgkmcnt(0)
        s_cbranch_scc1 {self.L('nonce0')}
        s_or_b32 s61, s94, 1
        v_mov_b32 v2, s61
        s_mov_b64 exec, 1
        global_store_dword v4, v2, s[{P_DBG}:{P_DBG+1}] sc1
        s_mov_b64 exec, -1
        {self.L('nonce0')}:
        s_barrier
        """)
        if os.environ.get('WSOFF'):
            a(f"s_add_u32 s{P_WS}, s{P_WS}, {int(os.environ['WSOFF'],0)}\ns_addc_u32 s{P_WS+1}, s{P_WS+1}, 0")
        self.srd(R_WS, P_WS, WS_SIZE)
        self.srd(R_X, P_X, 2621440)

    def rowaddr(self, dst, row, t):
        self.a(f"""
        v_mul_u32_u24 v{t}, 11, v{row}
        v_lshrrev_b32 v{t}, 5, v{t}
        v_mul_u32_u24 v{dst}, {LNRS}, v{row}
        v_mad_u32_u24 v{dst}, v{t}, s97, v{dst}
        v_lshrrev_b32 v{t}, 1, v{t}
        v_mul_u32_u24 v{t}, 1440, v{t}
        v_add3_u32 v{dst}, v{dst}, v{t}, s61
        """)

    def ln_loads(self):
        a = self.a
        a(f"""
        s_lshl_b32 s60, s{S_LID}, 3
        s_lshl_b32 s61, s{S_WAVE}, 1
        s_add_u32 s60, s60, s61
        s_mul_i32 s60, s60, 1280
        v_lshrrev_b32 v2, 5, v0
        v_and_b32 v3, 31, v0
        v_mul_u32_u24 v1, 1280, v2
        v_lshl_add_u32 v1, v3, 3, v1
        """)
        for i in range(5):
            a(f"buffer_load_dwordx2 v[{100+2*i}:{101+2*i}], v1, s[{R_X}:{R_X+3}], s60 offen offset:{256*i}")

    def reduce32(self, v, t):
        a = self.a
        a(f"""
        v_add_f32_dpp v{v}, v{v}, v{v} quad_perm:[1,0,3,2] row_mask:0xf bank_mask:0xf
        v_add_f32_dpp v{v}, v{v}, v{v} quad_perm:[2,3,0,1] row_mask:0xf bank_mask:0xf
        v_add_f32_dpp v{v}, v{v}, v{v} row_half_mirror row_mask:0xf bank_mask:0xf
        v_add_f32_dpp v{v}, v{v}, v{v} row_mirror row_mask:0xf bank_mask:0xf
        v_mov_b32 v{t}, v{v}
        v_permlane16_swap_b32 v{v}, v{t}
        v_add_f32 v{v}, v{v}, v{t}
        """)

    def ln_math(self):
        a = self.a
        X = 110; Dd = 130; S = 150
        for i in range(10):
            a(f"v_lshlrev_b32 v{X+2*i}, 16, v{100+i}")
            a(f"v_and_b32 v{X+1+2*i}, 0xffff0000, v{100+i}")
        P = lambda r: f"v[{r}:{r+1}]"
        a(f"v_pk_add_f32 {P(S)}, {P(X)}, {P(X+2)}\nv_pk_add_f32 {P(S+2)}, {P(X+4)}, {P(X+6)}")
        for i in range(4, 10):
            a(f"v_pk_add_f32 {P(S+2*(i%2))}, {P(S+2*(i%2))}, {P(X+2*i)}")
        a(f"v_pk_add_f32 {P(S)}, {P(S)}, {P(S+2)}\nv_add_f32 v{S}, v{S}, v{S+1}")
        self.reduce32(S, S + 1)
        a(f"v_mul_f32 v{S+4}, 0x3acccccd, v{S}")
        for i in range(10):
            a(f"v_pk_add_f32 {P(Dd+2*i)}, {P(X+2*i)}, {P(S+4)} op_sel_hi:[1,0] neg_lo:[0,1] neg_hi:[0,1]")
        a(f"v_pk_mul_f32 {P(S)}, {P(Dd)}, {P(Dd)}\nv_pk_mul_f32 {P(S+2)}, {P(Dd+2)}, {P(Dd+2)}")
        for i in range(2, 10):
            a(f"v_pk_fma_f32 {P(S+2*(i%2))}, {P(Dd+2*i)}, {P(Dd+2*i)}, {P(S+2*(i%2))}")
        a(f"v_pk_add_f32 {P(S)}, {P(S)}, {P(S+2)}\nv_add_f32 v{S}, v{S}, v{S+1}")
        self.reduce32(S, S + 1)
        a(f"""
        v_mul_f32 v{S+5}, 0x3acccccd, v{S}
        v_cvt_pk_bf16_f32 v{S}, v{S+4}, v{S+5}
        v_lshlrev_b32 v{S+4}, 16, v{S}
        v_and_b32 v{S+2}, 0xffff0000, v{S}
        v_add_f32 v{S+2}, 0x3727c5ac, v{S+2}
        v_cvt_pk_bf16_f32 v{S+2}, v{S+2}, v{S+2}
        v_and_b32 v{S+2}, 0xffff0000, v{S+2}
        v_sqrt_f32 v{S+2}, v{S+2}
        """)
        for i in range(10):
            a(f"v_pk_add_f32 {P(Dd+2*i)}, {P(X+2*i)}, {P(S+4)} op_sel_hi:[1,0] neg_lo:[0,1] neg_hi:[0,1]")
            if i == 1:
                a(f"v_cvt_pk_bf16_f32 v{S+2}, v{S+2}, v{S+2}\nv_and_b32 v{S+2}, 0xffff0000, v{S+2}\nv_rcp_f32 v{S+2}, v{S+2}")
        for i in range(10):
            a(f"v_cvt_pk_bf16_f32 v{100+i}, v{Dd+2*i}, v{Dd+1+2*i}")
        for i in range(10):
            a(f"v_lshlrev_b32 v{X+2*i}, 16, v{100+i}")
            a(f"v_and_b32 v{X+1+2*i}, 0xffff0000, v{100+i}")
        for i in range(10):
            a(f"v_pk_mul_f32 {P(X+2*i)}, {P(X+2*i)}, {P(S+2)} op_sel_hi:[1,0]")
        for i in range(5):
            a(f"v_cvt_pk_bf16_f32 v{100+2*i}, v{X+4*i}, v{X+4*i+1}")
            a(f"v_cvt_pk_bf16_f32 v{101+2*i}, v{X+4*i+2}, v{X+4*i+3}")
            a(f"ds_write_b64 v98, v[{100+2*i}:{101+2*i}] offset:{256*i}")

    def ln_pub_addr(self):
        a = self.a
        a(f"""
        s_mov_b32 s84, s{S_WAVE}
        s_mov_b32 s97, {RSZ - 3*LNRS}
        s_mov_b32 s61, {AUX + UO + UPAD}
        s_lshl_b32 s60, s{S_WAVE}, 1
        v_lshrrev_b32 v2, 5, v0
        v_add_u32 v2, s60, v2
        """)
        self.rowaddr(98, 2, 5)
        a(f"""
        v_and_b32 v3, 31, v0
        v_lshl_add_u32 v98, v3, 3, v98
        s_lshl_b32 s60, s84, 7
        s_add_u32 s61, s61, s60
        v_and_b32 v1, 7, v0
        """)
        self.rowaddr(156, 1, 5)
        a(f"""
        v_lshrrev_b32 v2, 3, v0
        v_lshl_add_u32 v156, v2, 4, v156
        v_lshrrev_b32 v157, 2, v2
        v_and_b32 v5, 3, v2
        v_lshlrev_b32 v157, 10, v157
        v_lshl_add_u32 v157, v5, 8, v157
        v_lshl_add_u32 v157, v1, 4, v157
        v_and_b32 v1, 15, v0
        v_lshrrev_b32 v2, 2, v1
        v_sub_u32 v3, 7, v2
        v_sub_u32 v2, 3, v2
        """)
        self.rowaddr(158, 2, 5)
        self.rowaddr(99, 3, 5)
        a(f"""
        v_and_b32 v1, 3, v0
        v_lshrrev_b32 v2, 4, v0
        v_lshlrev_b32 v1, 3, v1
        v_lshl_add_u32 v1, v2, 5, v1
        v_add_u32 v158, v158, v1
        v_add_u32 v99, v99, v1
        v_lshlrev_b32 v159, 4, v0
        s_lshr_b32 s85, s{S_LID}, 1
        s_mul_i32 s85, s85, 20480
        s_and_b32 s62, s{S_LID}, 1
        s_lshl_b32 s62, s62, 7
        s_add_u32 s85, s85, s62
        s_lshl_b32 s62, s84, 11
        s_add_u32 s85, s85, s62
        s_add_u32 s86, s85, 8192
        s_add_u32 s87, s85, 16384
        s_mul_i32 s88, s{S_LID}, 10240
        s_lshl_b32 s62, s84, 10
        s_add_u32 s88, s88, s62
        s_add_u32 s88, s88, {XT}
        s_add_u32 s89, s88, 4096
        s_add_u32 s90, s88, 6144
        """)

    def ln_publish(self):
        a = self.a
        sc = "" if os.environ.get('V2') else "sc1"
        W = f"s[{R_WS}:{R_WS+3}]"
        l2 = self.L("lnp_xt3"); l3 = self.L("lnp_done")
        a(f"""
        ds_read_b128 v[160:163], v156
        ds_read_b128 v[164:167], v156 offset:512
        ds_read_b128 v[168:171], v156 offset:1024
        ds_read_b64_tr_b16 v[172:173], v99
        ds_read_b64_tr_b16 v[174:175], v158
        ds_read_b64_tr_b16 v[176:177], v99 offset:512
        ds_read_b64_tr_b16 v[178:179], v158 offset:512
        ds_read_b64_tr_b16 v[180:181], v99 offset:768
        ds_read_b64_tr_b16 v[182:183], v158 offset:768
        s_cmp_ge_u32 s84, 2
        s_waitcnt lgkmcnt(7)
        buffer_store_dwordx4 v[160:163], v157, {W}, s85 offen {sc}
        s_waitcnt lgkmcnt(6)
        buffer_store_dwordx4 v[164:167], v157, {W}, s86 offen {sc}
        s_waitcnt lgkmcnt(5)
        s_cbranch_scc1 {l2}
        buffer_store_dwordx4 v[168:171], v157, {W}, s87 offen {sc}
        {l2}:
        """)

    def ln_publish_xt(self):
        a = self.a
        W = f"s[{R_WS}:{R_WS+3}]"
        l3 = self.L("lnp_done")
        a(f"""
        s_cmp_lt_u32 s84, 2
        s_waitcnt lgkmcnt(0)
        buffer_store_dwordx4 v[172:175], v159, {W}, s88 offen sc1
        buffer_store_dwordx4 v[176:179], v159, {W}, s89 offen sc1
        s_cbranch_scc1 {l3}
        buffer_store_dwordx4 v[180:183], v159, {W}, s90 offen sc1
        {l3}:
        """)

    def w2_loads(self):
        a = self.a
        self.srd(R_W, P_W2, 1966080)
        a(f"""
        s_lshr_b32 s91, s43, 1
        s_and_b32 s92, s43, 1
        s_mul_i32 s62, s91, {32*1280}
        s_mul_i32 s63, s92, 640
        s_add_u32 s62, s62, s63
        s_add_u32 s63, s62, 320
        """)
        for i in range(10):
            a(f"""
            v_add_u32 v1, {64*i}, v0
            v_mul_u32_u24 v2, 52429, v1
            v_lshrrev_b32 v2, 20, v2
            v_mul_u32_u24 v3, 20, v2
            v_sub_u32 v3, v1, v3
            v_mul_u32_u24 v2, 1280, v2
            v_lshl_add_u32 v2, v3, 4, v2
            buffer_load_dwordx4 v[{64+4*i}:{67+4*i}], v2, s[{R_W}:{R_W+3}], s62 offen
            buffer_load_dwordx4 v[{104+4*i}:{107+4*i}], v2, s[{R_W}:{R_W+3}], s63 offen
            """)

    def w2_retile(self):
        a = self.a
        sc = "sc1"
        base = AUX + 2 * RSZ
        a(f"""
        v_lshlrev_b32 v6, 4, v0
        v_add_u32 v1, {base}, v6
        v_lshrrev_b32 v2, 4, v0
        v_and_b32 v3, 15, v0
        v_lshrrev_b32 v3, 2, v3
        v_lshl_add_u32 v2, v2, 2, v3
        v_mul_u32_u24 v2, 320, v2
        v_and_b32 v3, 3, v0
        v_lshl_add_u32 v2, v3, 3, v2
        v_add_u32 v2, {base}, v2
        s_mul_i32 s62, s92, {4*245760}
        s_mul_i32 s63, s91, 5120
        s_add_u32 s62, s62, s63
        s_add_u32 s62, s62, {W2F}
        v_add_u32 v7, 4096, v6
        """)
        for half in range(2):
            src = 64 + 40 * half
            fr = 144 + 40 * half
            for i in range(10):
                a(f"ds_write_b128 v1, v[{src+4*i}:{src+3+4*i}] offset:{1024*i}")
            a("s_waitcnt lgkmcnt(4)")
            for nt in range(10):
                d = fr + 4 * nt
                a(f"ds_read_b64_tr_b16 v[{d}:{d+1}], v2 offset:{32*nt}")
                a(f"ds_read_b64_tr_b16 v[{d+2}:{d+3}], v2 offset:{32*nt+16*320}")
                if nt == 4: a("s_waitcnt lgkmcnt(4)")
            a("s_waitcnt lgkmcnt(0)")
            for nt in range(10):
                d = fr + 4 * nt
                cbl = half * 2 + nt // 5
                n5 = nt % 5
                if n5 == 0:
                    a(f"s_add_u32 s63, s62, {cbl*245760}")
                if n5 < 4:
                    a(f"buffer_store_dwordx4 v[{d}:{d+3}], v6, s[{R_WS}:{R_WS+3}], s63 offen offset:{1024*n5} {sc}")
                else:
                    a(f"buffer_store_dwordx4 v[{d}:{d+3}], v7, s[{R_WS}:{R_WS+3}], s63 offen {sc}")

    def lds_set(self, addr_imm, sidx=None, val=1, tmp=(2, 3)):
        a = self.a
        if sidx is None:
            a(f"v_mov_b32 v{tmp[0]}, {addr_imm}")
        else:
            a(f"s_lshl_b32 s60, s{sidx}, 2\ns_add_u32 s60, s60, {addr_imm}\nv_mov_b32 v{tmp[0]}, s60")
        a(f"v_mov_b32 v{tmp[1]}, {val}\nds_write_b32 v{tmp[0]}, v{tmp[1]}")

    def lds_wait_all(self, addr_imm, n, name, tmp=2, sleep=None):
        if sleep is None: sleep = LSLEEP
        a = self.a
        lab = self.L(name); done = self.L(name + "_d")
        t = tmp
        a(f"""
        v_mov_b32 v{t}, {addr_imm}
        s_mov_b32 s61, 0
        {lab}:
        ds_read_b128 v[{t+2}:{t+5}], v{t}
        s_add_u32 s61, s61, 1
        s_waitcnt lgkmcnt(0)
        """)
        for k in range(1, n):
            a(f"v_min_u32 v{t+2}, v{t+2}, v{t+2+k}")
        a(f"""
        v_readfirstlane_b32 s60, v{t+2}
        s_cmp_gt_u32 s61, 0x100000
        s_cbranch_scc1 {done}
        s_cmp_lg_u32 s60, 0
        s_cbranch_scc1 {done}
        {'s_sleep %d' % sleep if sleep else ''}
        s_branch {lab}
        {done}:
        """)

    def get_nonce(self, name, tmp=2):
        self.lds_wait_all(M_NONCE, 1, name, tmp)
        self.a(f"s_mov_b32 s{S_NONCE}, s60")

    def poll_flags(self, name, soff, nlanes, nloads=1, lstride=FSTR, istride=64*FSTR, tmp=2, pre=None):
        a = self.a
        lab = self.L(name); done = self.L(name + "_d")
        t = tmp
        a(f"v_mul_u32_u24 v{t}, {lstride}, v0")
        a(f"s_mov_b64 s[62:63], exec")
        if nlanes < 64:
            a(f"s_lshr_b64 exec, -1, {64-nlanes}")
        a(f"s_mov_b32 s64, 0\n{lab}:")
        for i in range(nloads):
            if i * istride < 4096:
                a(f"buffer_load_dword v{t+1+i}, v{t}, s[{R_WS}:{R_WS+3}], s{soff} offen offset:{i*istride} sc1")
            else:
                a(f"s_add_u32 s65, s{soff}, {i*istride}\nbuffer_load_dword v{t+1+i}, v{t}, s[{R_WS}:{R_WS+3}], s65 offen sc1")
        a("s_add_u32 s64, s64, 1\ns_waitcnt vmcnt(0)")
        for i in range(nloads):
            a(f"v_xor_b32 v{t+1+i}, s{S_NONCE}, v{t+1+i}")
        for i in range(1, nloads):
            a(f"v_or_b32 v{t+1}, v{t+1}, v{t+1+i}")
        a(f"""
        v_cmp_ne_u32 vcc, 0, v{t+1}
        s_cmp_gt_u32 s64, 0x8000
        s_cbranch_scc1 {done}
        s_cbranch_vccz {done}
        {'s_sleep %d' % PSLEEP if PSLEEP else ''}
        s_branch {lab}
        {done}:
        s_mov_b64 exec, s[62:63]
        """)

    def store_flag(self, soff, tmp=2):
        self.a(f"""
        v_mov_b32 v{tmp}, s{S_NONCE}
        s_mov_b64 s[62:63], exec
        s_mov_b64 exec, 1
        buffer_store_dword v{tmp}, off, s[{R_WS}:{R_WS+3}], s{soff} sc1
        s_mov_b64 exec, s[62:63]
        """)

    def w1_addr(self, vr_):
        self.srd(R_W, P_W1, 1966080)
        for ph in range(3):
            self.a(f"""
            v_add_u32 v5, {64*ph}, v0
            v_mul_u32_u24 v6, 43691, v5
            v_lshrrev_b32 v6, 19, v6
            v_mul_u32_u24 v7, 12, v6
            v_sub_u32 v7, v5, v7
            v_lshrrev_b32 v8, 2, v6
            v_and_b32 v8, 2, v8
            v_xor_b32 v7, v7, v8
            v_mul_u32_u24 v6, 3072, v6
            v_lshl_add_u32 v{vr_+ph}, v7, 4, v6
            """)
        self.a(f"s_mul_i32 s69, s{S_CB}, 192")

    def w1_group(self, vr_):
        a = self.a
        a(f"""
        s_mul_i32 s63, s68, {16*3072}
        s_add_u32 s63, s63, s69
        s_mul_i32 m0, s68, 3072
        s_nop 0
        buffer_load_dwordx4 v{vr_}, s[{R_W}:{R_W+3}], s63 offen lds
        s_add_u32 m0, m0, 1024
        s_nop 0
        buffer_load_dwordx4 v{vr_+1}, s[{R_W}:{R_W+3}], s63 offen lds
        s_add_u32 m0, m0, 1024
        s_nop 0
        buffer_load_dwordx4 v{vr_+2}, s[{R_W}:{R_W+3}], s63 offen lds
        """)

    G1_ACC = 16; G1_B = 64; G1_B1 = 64; G1_A = 96
    def g1_b1_loads(self):
        a = self.a
        a(f"""
        v_lshrrev_b32 v5, 4, v0
        v_lshlrev_b32 v5, 3, v5
        s_mul_i32 s60, s{S_CB}, 192
        v_add_u32 v5, s60, v5
        """)
        for t in range(6):
            a(f"global_load_dwordx2 v[{self.G1_B1+2*t}:{self.G1_B1+2*t+1}], v5, s[{P_B1}:{P_B1+1}] offset:{32*t}")

    def acc_init(self, p):
        r = []
        for k in range(2):
            for lt in range(2):
                d = self.G1_ACC + 16 * p + 8 * k + 4 * lt
                s_ = self.G1_B1 + 2 * (2 * p + k)
                r += [f"v_lshlrev_b32 v{d}, 16, v{s_}", f"v_and_b32 v{d+1}, 0xffff0000, v{s_}",
                      f"v_lshlrev_b32 v{d+2}, 16, v{s_+1}", f"v_and_b32 v{d+3}, 0xffff0000, v{s_+1}"]
        return r

    def g1_prep(self):
        a = self.a
        for x in self.acc_init(0) + self.acc_init(1) + self.acc_init(2): a(x)
        a(f"""
        v_lshrrev_b32 v5, 4, v0
        v_and_b32 v6, 15, v0
        v_lshrrev_b32 v6, 2, v6
        v_lshl_add_u32 v6, v5, 3, v6
        v_mul_u32_u24 v6, 192, v6
        v_and_b32 v7, 3, v0
        v_lshl_add_u32 v6, v7, 3, v6
        v_and_b32 v5, 1, v5
        v_lshlrev_b32 v5, 5, v5
        v_add_u32 v10, v6, v5
        v_sub_u32 v11, v6, v5
        s_mul_i32 s60, s{S_CB}, 52
        s_lshr_b32 s60, s60, 8
        s_mul_i32 s60, s60, 5
        s_sub_u32 s85, s{S_CB}, s60
        {'s_mov_b32 s85, 0' if os.environ.get('NOROT') else ''}
        s_mul_i32 s60, s85, {4*6144}
        v_add_u32 v10, s60, v10
        v_add_u32 v11, s60, v11
        s_mov_b32 s84, s85
        s_lshl_b32 s86, s{S_RB}, 3
        s_lshl_b32 s87, s{S_WAVE}, 1
        s_add_u32 s86, s86, s87
        s_mul_i32 s82, s86, 20480
        s_lshl_b32 s60, s85, 12
        s_add_u32 s82, s82, s60
        s_add_u32 s83, s82, 20480
        s_mul_i32 s86, s86, 49152
        s_mul_i32 s87, s{S_CB}, 3072
        s_add_u32 s86, s86, s87
        s_add_u32 s86, s86, {HF}
        s_add_u32 s87, s86, 49152
        """)

    def g1_aload(self, ks):
        r = []
        for lt in range(2):
            d = self.G1_A + 8 * ks + 4 * lt
            ins = [f"buffer_load_dwordx4 v[{d}:{d+3}], v9, s[{R_WS}:{R_WS+3}], s{82+lt} offen offset:{1024*(ks%4)} sc1"]
            if ks % 4 == 3 and ks != 19 and lt == 1:
                ins += ["s_add_u32 s85, s85, 1", "s_cmp_eq_u32 s85, 5", "s_cselect_b32 s60, -16384, 4096" if False else "s_mov_b32 s60, 4096",
                        "s_cselect_b32 s60, -16384, s60", "s_cselect_b32 s85, 0, s85", "s_add_u32 s82, s82, s60", "s_add_u32 s83, s83, s60"]
            r.append((ins, f"A{ks}"))
        return r

    def epi_ops(self, p):
        r = []
        for lt in range(2):
            a0 = self.G1_ACC + 16 * p + 4 * lt; b0 = a0 + 8
            for x in (a0, b0):
                for i in range(4): r.append(([f"v_max_f32 v{x+i}, 0, v{x+i}"], None))
                for i in range(4): r.append(([f"v_mul_f32 v{x+i}, v{x+i}, v{x+i}"], None))
            r.append(([f"v_cvt_pk_bf16_f32 v{a0}, v{a0}, v{a0+1}"], None))
            r.append(([f"v_cvt_pk_bf16_f32 v{a0+1}, v{a0+2}, v{a0+3}"], None))
            r.append(([f"v_cvt_pk_bf16_f32 v{a0+2}, v{b0}, v{b0+1}"], None))
            r.append(([f"v_cvt_pk_bf16_f32 v{a0+3}, v{b0+2}, v{b0+3}"], None))
            r.append(([f"buffer_store_dwordx4 v[{a0}:{a0+3}], v9, s[{R_WS}:{R_WS+3}], s{86+lt} offen offset:{1024*p} sc1"], "S"))
        return r

    def vwait(self, tag):
        vq = self.vq
        assert tag in self.seen or os.environ.get('NOAL'), tag
        idx = [i for i, t in enumerate(vq) if t == tag]
        if not idx: return
        n = len(vq) - 1 - idx[-1]
        self.a(f"s_waitcnt vmcnt({min(n, 63)})"); del vq[:idx[-1] + 1]

    def emit(self, item):
        ins, tag = item
        for x in ins: self.a(x)
        if tag: self.vq.append(tag); self.seen.add(tag)

    def g1_loop(self, N0, events):
        a = self.a
        NF = 8
        def rd(f):
            ks, t = divmod(f, 6)
            base = 10 if t % 2 == 0 else 11
            off = (ks % 4) * 6144 + 32 * t
            d = self.G1_B + 4 * (f % NF)
            pre = ""
            if t == 0 and ks % 4 == 0 and ks > 0:
                pre = f"s_add_u32 s84, s84, 1\ns_cmp_eq_u32 s84, 5\ns_mov_b32 s61, {4*6144}\ns_cselect_b32 s61, {-16*6144}, s61\ns_cselect_b32 s84, 0, s84\nv_add_u32 v10, s61, v10\nv_add_u32 v11, s61, v11\n"
            return [pre + f"ds_read_b64_tr_b16 v[{d}:{d+1}], v{base} offset:{off}", f"ds_read_b64_tr_b16 v[{d+2}:{d+3}], v{base} offset:{off+768}"]
        AH = NF - 1
        for f in range(AH):
            for x in rd(f): a(x)
        fv = []
        for ks in range(20):
            if ks in events:
                extra = events[ks]()
                if extra: fv += extra
            if ks + N0 < 20: fv = self.g1_aload(ks + N0) + fv
            if not os.environ.get('NOAW'): self.vwait(f"A{ks}")
            if os.environ.get('NOAL'): fv = []
            for t in range(6):
                f = 6 * ks + t
                nxt = rd(f + AH) if f + AH < 120 else []
                if t % 2 == 0:
                    a(f"s_waitcnt lgkmcnt({max(0, 2 * (min(f + AH, 120) - f - 2))})")
                for lt in range(2):
                    acc = self.G1_ACC + 8 * t + 4 * lt
                    A = self.G1_A + 8 * ks + 4 * lt
                    B = self.G1_B + 4 * (f % NF)
                    a(f"v_mfma_f32_16x16x32_bf16 v[{acc}:{acc+3}], v[{B}:{B+3}], v[{A}:{A+3}], v[{acc}:{acc+3}]")
                    if nxt and not os.environ.get('NODS'): a(nxt.pop(0))
                    if fv and lt == 1 and t in (0, 2, 4): self.emit(fv.pop(0))
        for it in fv: self.emit(it)

    KP = 44
    def kg_loads(self):
        a = self.a
        a(f"""
        s_sub_u32 s70, s{S_WAVE}, 4
        s_add_u32 s71, s{S_CH0}, s70
        s_mul_i32 s60, s71, 384
        v_lshlrev_b32 v2, 1, v0
        v_add_u32 v2, s60, v2
        s_lshl_b32 s60, s71, 1
        v_mov_b32 v3, s60
        """)
        for p in range(3):
            for k, P in enumerate((P_LA, P_AI, P_CR, P_CI)):
                a(f"global_load_ushort v{self.KP+4*p+k}, v2, s[{P}:{P+1}] offset:{128*p}")
        a(f"global_load_ushort v56, v3, s[{P_DT}:{P_DT+1}]")
        a(f"global_load_ushort v57, v3, s[{P_DS}:{P_DS+1}]")

    def cmul(self, d, x, y):
        return [f"v_pk_mul_f32 v[{d}:{d+1}], v[{x}:{x+1}], v[{y}:{y+1}] op_sel:[0,0] op_sel_hi:[0,1]",
                f"v_pk_fma_f32 v[{d}:{d+1}], v[{x}:{x+1}], v[{y}:{y+1}], v[{d}:{d+1}] op_sel:[1,1,0] op_sel_hi:[1,0,1] neg_lo:[0,1,0]"]

    def kgen(self, hook=None):
        a = self.a
        KP = self.KP
        Z, Z8, W = 60, 62, 64
        F = 66
        F2 = 82
        G = 98
        CV = 102
        SV = 110
        GF, TA, TB = 120, 136, 152
        ACC = 168
        VW, VR, VW2 = 10, 11, 9
        TOFF = 4352
        a(f"""
        s_mul_i32 s72, s70, {RSZ}
        s_add_u32 s72, s72, {AUX}
        v_lshrrev_b32 v2, 2, v0
        v_mul_u32_u24 v2, 272, v2
        v_and_b32 v3, 3, v0
        v_lshl_add_u32 v2, v3, 2, v2
        v_add_u32 v{VW}, s72, v2
        v_add_u32 v{VW2}, {TOFF}, v{VW}
        v_lshrrev_b32 v2, 4, v0
        v_mul_u32_u24 v2, 272, v2
        v_and_b32 v3, 15, v0
        v_lshl_add_u32 v2, v3, 4, v2
        v_add_u32 v{VR}, s72, v2
        v_lshlrev_b32 v56, 16, v56
        v_mul_f32 v56, {LOG2E}, v56
        v_exp_f32 v56, v56
        v_lshlrev_b32 v57, 16, v57
        v_cvt_pk_bf16_f32 v56, v56, v56
        v_and_b32 v56, 0xffff0000, v56
        v_add_f32 v58, v56, v56
        v_mov_b32 v59, 0x3f80
        s_mov_b32 s73, 3
        """)
        for i in range(12): a(f"v_mov_b32 v{ACC+i}, 0")
        loop = self.L("kg_loop")
        a(f"{loop}:")
        if hook: hook()
        a(f"""
        v_lshlrev_b32 v2, 16, v{KP}
        v_mul_f32 v2, {LOG2E}, v2
        v_exp_f32 v2, v2
        v_lshlrev_b32 v3, 16, v{KP+1}
        v_lshlrev_b32 v{F}, 16, v{KP+2}
        v_cvt_pk_bf16_f32 v2, v2, v2
        v_lshlrev_b32 v{F+1}, 16, v{KP+3}
        v_and_b32 v2, 0xffff0000, v2
        v_mul_f32 v3, v3, v56
        v_mul_f32 v2, v2, v56
        v_pk_mul_f32 v[{F}:{F+1}], v[{F}:{F+1}], v[58:59] op_sel_hi:[1,0]
        v_mul_f32 v3, {INV2PI}, v3
        v_mul_f32 v2, 0xbfb8aa3b, v2
        """)
        for k in range(8): a(f"v_mov_b32 v{KP+k}, v{KP+4+k}")
        a(f"""
        v_mul_f32 v4, 0x41000000, v2
        v_mul_f32 v5, 0x41000000, v3
        v_mul_f32 v6, 0x43000000, v2
        v_mul_f32 v7, 0x43000000, v3
        v_fract_f32 v3, v3
        v_fract_f32 v5, v5
        v_fract_f32 v7, v7
        v_exp_f32 v2, v2
        v_exp_f32 v4, v4
        v_exp_f32 v6, v6
        v_cos_f32 v{Z}, v3
        v_sin_f32 v{Z+1}, v3
        v_cos_f32 v{Z8}, v5
        v_sin_f32 v{Z8+1}, v5
        v_cos_f32 v{W}, v7
        v_sin_f32 v{W+1}, v7
        v_pk_mul_f32 v[{Z}:{Z+1}], v[{Z}:{Z+1}], v[2:3] op_sel_hi:[1,0]
        v_pk_mul_f32 v[{Z8}:{Z8+1}], v[{Z8}:{Z8+1}], v[4:5] op_sel_hi:[1,0]
        v_pk_mul_f32 v[{W}:{W+1}], v[{W}:{W+1}], v[6:7] op_sel_hi:[1,0]
        """)
        cvn = [0]
        class Out:
            def __init__(o, base, neg, pool): o.base = base; o.neg = neg; o.pend = None; o.pool = pool; o.n = 0
            def put(o, src, row, reg=None):
                r = []
                if reg is None:
                    reg = CV + 4 * o.pool + o.n % 4; o.n += 1
                    r.append(f"v_cvt_pk_bf16_f32 v{reg}, v{src}, {'-' if o.neg else ''}v{src+1}")
                if o.pend is None: o.pend = (reg, row)
                else:
                    r.append(f"ds_write2_b32 v{o.base}, v{o.pend[0]}, v{reg} offset0:{4*o.pend[1]} offset1:{4*row}")
                    o.pend = None
                return r
        def merge(*streams):
            streams = [list(s) for s in streams]
            out = []
            while any(streams):
                for s in streams:
                    if s: out.append(s.pop(0))
            return out
        og = Out(VW, False, 0); of = Out(VW2, True, 1); oc0 = Out(VW2, True, 0); oc1 = Out(VW2, True, 1); ot = Out(VW2, True, 0)
        gs = og.put(None, 0, 59) + og.put(Z8, 1)
        prev = Z8
        for j in range(2, 16):
            d = G + 2 * (j % 2)
            gs += self.cmul(d, prev, Z8) + og.put(d, j)
            prev = d
        fs = of.put(F, 0)
        for r in range(1, 8):
            fs += self.cmul(F + 2 * r, F + 2 * (r - 1), Z) + of.put(F + 2 * r, r)
        for r in range(8):
            fs += self.cmul(F2 + 2 * r, F + 2 * r, W) + of.put(F2 + 2 * r, 8 + r)
        for ins in merge(gs, fs): a(ins)
        for ks in range(4):
            a(f"ds_read_b128 v[{GF+4*ks}:{GF+4*ks+3}], v{VR} offset:{1088*ks}")
            a(f"ds_read_b128 v[{TA+4*ks}:{TA+4*ks+3}], v{VR} offset:{TOFF+1088*ks}")
        s1 = []
        for i in range(4):
            s1.append(self.cmul(F + 2 * i, F2 + 4 * i, W) + [f"v_cvt_pk_bf16_f32 v{SV+i}, v{F+2*i}, -v{F+2*i+1}"]
                      + self.cmul(F + 8 + 2 * i, F + 2 * i, W) + [f"v_cvt_pk_bf16_f32 v{SV+4+i}, v{F+8+2*i}, -v{F+8+2*i+1}"])
        for ins in merge(*s1): a(ins)
        a("s_waitcnt lgkmcnt(0)")
        mf0 = [f"v_mfma_f32_16x16x32_bf16 v[{ACC}:{ACC+3}], v[{TA+4*ks}:{TA+4*ks+3}], v[{GF+4*ks}:{GF+4*ks+3}], v[{ACC}:{ACC+3}]" for ks in range(4)]
        c0 = []; prev = F + 8
        for i in range(12):
            d = F2 + 2 * (i % 2)
            row = i if i < 4 else i + 4
            c0 += self.cmul(d, prev, W) + oc0.put(d, row)
            prev = d
        last = prev
        c1 = []; prev = F + 12
        for i in range(4):
            d = F2 + 4 + 2 * (i % 2)
            c1 += self.cmul(d, prev, W) + oc1.put(d, 4 + i)
            prev = d
        for ins in merge(c0, c1, mf0): a(ins)
        for ks in range(4):
            a(f"ds_read_b128 v[{TB+4*ks}:{TB+4*ks+3}], v{VR} offset:{TOFF+1088*ks}")
        for ins in self.cmul(F2 + 8, last, W): a(ins)
        for i in range(8):
            for ins in ot.put(None, i, SV + i): a(ins)
        a(f"v_cvt_pk_bf16_f32 v{CV}, v{F2+8}, -v{F2+9}\nds_write_b32 v{VW2}, v{CV} offset:128")
        for ks in range(4):
            a(f"ds_read_b128 v[{TA+4*ks}:{TA+4*ks+3}], v{VR} offset:{TOFF+1088*ks}")
        a("s_waitcnt lgkmcnt(9)")
        for ks in range(4):
            a(f"v_mfma_f32_16x16x32_bf16 v[{ACC+4}:{ACC+7}], v[{TB+4*ks}:{TB+4*ks+3}], v[{GF+4*ks}:{GF+4*ks+3}], v[{ACC+4}:{ACC+7}]")
        a("s_sub_u32 s73, s73, 1\ns_cmp_lg_u32 s73, 0\ns_waitcnt lgkmcnt(0)")
        for ks in range(4):
            a(f"v_mfma_f32_16x16x32_bf16 v[{ACC+8}:{ACC+11}], v[{TA+4*ks}:{TA+4*ks+3}], v[{GF+4*ks}:{GF+4*ks+3}], v[{ACC+8}:{ACC+11}]")
        a(f"s_cbranch_scc1 {loop}")
        self.KACC = ACC

    def expand(self):
        a = self.a
        ACC = self.KACC
        T0, T1, T2 = ACC, ACC + 4, ACC + 8
        a(f"""
        v_and_b32 v2, 15, v0
        v_lshrrev_b32 v3, 4, v0
        v_lshlrev_b32 v4, 3, v2
        v_lshlrev_b32 v5, 2, v3
        v_add_u32 v5, 512, v5
        v_lshlrev_b32 v6, 9, v3
        v_cmp_gt_u32 vcc, 2, v3
        v_cndmask_b32 v5, v6, v5, vcc
        v_add_u32 v5, v5, v4
        v_cndmask_b32 v6, 4, 2, vcc
        v_and_b32 v7, 1, v2
        v_cndmask_b32 v7, v7, v3, vcc
        v_cndmask_b32 v8, 8, 0, vcc
        s_add_u32 s60, s72, 32
        v_sub_u32 v9, v5, v6
        v_lshl_add_u32 v12, v9, 1, s60
        v_add_u32 v13, v12, v8
        v_add_u32 v9, v5, v6
        v_sub_u32 v9, v9, v7
        v_lshl_add_u32 v14, v9, 1, s60
        v_sub_u32 v9, v5, v6
        v_add_u32 v9, v9, v7
        v_lshl_add_u32 v15, v9, 1, s60
        v_add_u32 v15, {K1O-2}, v15
        v_cmp_eq_u32 vcc, 32, v0
        v_add_u32 v9, 4, v15
        v_cndmask_b32 v16, v15, v9, vcc
        v_add_u32 v17, {K1O}, v12
        v_add_u32 v18, {K1O}, v13
        """)
        for i in range(4):
            a(f"v_cvt_pk_bf16_f32 v{20+i}, v{T1+i}, v{T1+i}")
        for i in range(4):
            a(f"ds_write2_b32 v12, v{20+i}, v{20+i} offset0:{64*i} offset1:{64*i+1}")
            a(f"ds_write2_b32 v13, v{20+i}, v{20+i} offset0:{64*i} offset1:{64*i+1}")
            a(f"ds_write2_b32 v17, v{20+i}, v{20+i} offset0:{64*i} offset1:{64*i+1}")
            a(f"ds_write2_b32 v18, v{20+i}, v{20+i} offset0:{64*i} offset1:{64*i+1}")
        for i in range(4):
            a(f"ds_write_b16 v14, v{20+i} offset:{256*i}")
            a(f"ds_write_b16 v{16 if i == 0 else 15}, v{20+i} offset:{256*i}")
        a(f"""
        v_lshlrev_b32 v5, 7, v3
        v_add3_u32 v5, v5, v4, v4
        v_lshlrev_b32 v6, 7, v3
        v_add_u32 v5, v5, v6
        v_add_u32 v5, s60, v5
        v_add_u32 v5, 512, v5
        v_cvt_pk_bf16_f32 v24, v{T2}, v{T2}
        v_cvt_pk_bf16_f32 v25, v{T2}, v{T2+1}
        v_cvt_pk_bf16_f32 v26, v{T2+2}, v{T2+2}
        v_cvt_pk_bf16_f32 v27, v{T2+2}, v{T2+3}
        v_cvt_pk_bf16_f32 v28, v{T2+1}, v{T2+2}
        v_add_u32 v6, {K1O-4}, v5
        v_add_u32 v7, -2, v5
        s_mov_b32 exec_hi, 0
        ds_write2_b32 v5, v24, v28 offset0:0 offset1:1
        ds_write_b32 v5, v26 offset:8
        ds_write_b16_d16_hi v5, v27 offset:12
        ds_write_b16 v7, v24
        ds_write2_b32 v6, v24, v25 offset0:0 offset1:1
        ds_write2_b32 v6, v26, v27 offset0:2 offset1:3
        s_mov_b64 exec, -1
        s_add_u32 s61, s60, {2*2044}
        v_mov_b32 v6, s61
        v_add_u32 v7, {K1O-2}, v6
        v_add_u32 v8, {K1O}, v6
        s_mov_b32 exec_lo, 0
        s_mov_b32 exec_hi, 1
        ds_write2_b32 v6, v24, v24 offset0:0 offset1:1
        ds_write2_b32 v8, v24, v24 offset0:0 offset1:1
        ds_write_b16 v7, v24
        s_mov_b64 exec, -1
        """)
        a(f"""
        v_and_b32 v5, 1, v3
        v_lshlrev_b32 v5, 3, v5
        v_lshrrev_b32 v6, 1, v3
        v_lshl_add_u32 v5, v6, 8, v5
        v_add3_u32 v5, v5, v4, v4
        v_add_u32 v5, s60, v5
        s_mov_b64 exec, 1
        v_add_f32 v{T0}, v{T0}, v57
        s_mov_b64 exec, -1
        v_cvt_pk_bf16_f32 v24, v{T0}, v{T0+1}
        v_cvt_pk_bf16_f32 v25, v{T0+2}, v{T0+3}
        v_cvt_pk_bf16_f32 v26, v{T0+1}, v{T0+2}
        v_add_u32 v6, {K1O-2}, v5
        v_mov_b32 v28, 0
        v_mov_b32 v29, 0
        v_lshlrev_b32 v7, 3, v0
        v_add_u32 v7, s72, v7
        s_mov_b64 exec, 15
        ds_write_b64 v7, v[28:29]
        ds_write_b64 v7, v[28:29] offset:{K1O}
        s_lshr_b64 exec, -1, 4
        ds_write_b64 v7, v[28:29] offset:{UO}
        s_mov_b64 exec, -1
        ds_write_b64 v5, v[24:25]
        ds_write_b16 v6, v24
        ds_write_b32 v5, v26 offset:{K1O}
        ds_write_b16_d16_hi v6, v25 offset:6
        """)

    def u_gather(self):
        a = self.a
        sc = "sc1" if self.fused else ""
        a(f"""
        v_lshrrev_b32 v2, 2, v0
        v_and_b32 v3, 3, v0
        v_mul_u32_u24 v4, 10240, v2
        v_lshl_add_u32 v4, v3, 4, v4
        s_lshl_b32 s60, s{S_CH0}, 4
        s_add_u32 s60, s60, {XT}
        v_mul_u32_u24 v5, {RSZ}, v3
        v_lshl_add_u32 v5, v2, 4, v5
        v_add_u32 v5, {AUX+UO+UPAD}, v5
        v_cmp_gt_u32 vcc, s{S_NCH}, v3
        s_mov_b64 s[62:63], exec
        s_and_b64 exec, exec, vcc
        """)
        for i in range(16):
            a(f"buffer_load_dwordx4 v[{40+4*i}:{43+4*i}], v4, s[{R_WS}:{R_WS+3}], s60 offen {sc}")
            if i < 15: a(f"s_add_u32 s60, s60, {16*10240}")
        for i in range(16):
            a(f"s_waitcnt vmcnt({14-i})" if i < 15 else "s_nop 7")
            a(f"ds_write_b128 v5, v[{40+4*i}:{43+4*i}] offset:{256*i}")
        a("s_mov_b64 exec, s[62:63]\ns_waitcnt lgkmcnt(0)")

    def conv(self):
        a = self.a
        sc = "sc1" if self.fused else ""
        ACC = 60; OP = [92, 156]
        AB = 12
        a(f"""
        v_and_b32 v2, 15, v0
        v_lshrrev_b32 v3, 4, v0
        v_lshlrev_b32 v4, 3, v3
        v_sub_u32 v4, v2, v4
        v_add_u32 v4, {233+16-224}, v4
        v_and_b32 v5, 1, v2
        v_and_b32 v4, -2, v4
        v_lshlrev_b32 v4, 1, v4
        v_cmp_eq_u32 vcc, 0, v5
        v_mov_b32 v6, {K1O}
        v_cndmask_b32 v5, 0, v6, vcc
        v_add3_u32 v{AB}, v4, v5, s72
        v_add_u32 v{AB+1}, 1024, v{AB}
        v_add_u32 v{AB+2}, 2048, v{AB}
        v_add_u32 v{AB+3}, 3072, v{AB}
        v_lshlrev_b32 v4, 5, v2
        v_lshl_add_u32 v4, v3, 4, v4
        s_add_u32 s60, s72, {UO}
        v_add_u32 v16, s60, v4
        """)
        for i in range(32): a(f"v_mov_b32 v{ACC+i}, 0")
        def reads(tau):
            s = OP[tau % 2]
            r = []
            for d in range(8):
                r.append(f"ds_read_b128 v[{s+32+4*d}:{s+35+4*d}], v16 offset:{512*d+64*tau}")
                o = 512 * d - 64 * tau + 448
                b = AB + o // 1024; q = (o % 1024) // 4
                r.append(f"ds_read2_b32 v[{s+4*d}:{s+4*d+1}], v{b} offset0:{q} offset1:{q+1}")
                r.append(f"ds_read2_b32 v[{s+4*d+2}:{s+4*d+3}], v{b} offset0:{q+2} offset1:{q+3}")
            return r
        r0 = reads(0)
        for k, ins in enumerate(r0):
            a(ins)
            if k == 12: a("s_waitcnt lgkmcnt(3)")
        for tau in range(8):
            s = OP[tau % 2]
            nxt = reads(tau + 1) if tau < 7 else []
            pairs = sorted([(d, n) for d in range(8) for n in range(8 - d)], key=lambda p: (max(p), p))
            a("s_waitcnt lgkmcnt(0)")
            for k, (d, n) in enumerate(pairs):
                acc = ACC + 4 * (d + n)
                a(f"v_mfma_f32_16x16x32_bf16 v[{acc}:{acc+3}], v[{s+4*d}:{s+4*d+3}], v[{s+32+4*n}:{s+35+4*n}], v[{acc}:{acc+3}]")
                if nxt and k < 30 and k % 5 != 4:
                    a(nxt.pop(0))
            assert not nxt
        a(f"""
        v_lshlrev_b32 v5, 5, v2
        v_lshl_add_u32 v5, v3, 3, v5
        s_lshl_b32 s61, s71, 12
        s_add_u32 s61, s61, {ST}
        """)
        for n in range(8):
            acc = ACC + 4 * n; o = 128 + 2 * n
            a(f"""
            v_cvt_pk_bf16_f32 v{o}, v{acc}, v{acc+1}
            v_cvt_pk_bf16_f32 v{o+1}, v{acc+2}, v{acc+3}
            buffer_store_dwordx2 v[{o}:{o+1}], v5, s[{R_WS}:{R_WS+3}], s61 offen offset:{512*n} {sc}
            """)

    G2_ACC = 16; G2_RB = 96; G2_BT = 156; G2_A = 176
    def g2_addr(self):
        self.a(f"""
        v_lshlrev_b32 v9, 4, v0
        v_add_u32 v8, 4096, v9
        s_mul_i32 s74, s{S_CB2}, 245760
        s_mul_i32 s60, s{S_WAVE}, {12*5120}
        s_add_u32 s74, s74, s60
        s_add_u32 s74, s74, {W2F}
        s_mul_i32 s75, s{S_WAVE}, 30720
        """)
    @staticmethod
    def kloc(j):
        return j

    @staticmethod
    def lslot(j):
        q = j if j < 6 else j - 9
        return q * 5120

    def g2_dma_items(self, j):
        W = f"s[{R_WS}:{R_WS+3}]"
        l0 = self.lslot(j)
        r = []
        for nt in range(5):
            pre = [f"s_add_u32 s81, s74, {5120*self.kloc(j)}"] if nt == 0 else []
            if nt < 4: r.append((pre + [f"s_add_u32 m0, s75, {l0}", f"buffer_load_dwordx4 v9, {W}, s81 offen offset:{1024*nt} sc1 lds"], f"D{j}"))
            else: r.append(([f"s_add_u32 m0, s75, {l0+4096}", f"buffer_load_dwordx4 v8, {W}, s81 offen sc1 lds"], f"D{j}"))
        return r

    def g2_bload_items(self, j):
        W = f"s[{R_WS}:{R_WS+3}]"
        r = []
        for nt in range(5):
            d = self.G2_RB + 20 * (j % 3) + 4 * nt
            pre = [f"s_add_u32 s81, s74, {5120*self.kloc(j)}"] if nt == 0 else []
            if nt < 4: r.append((pre + [f"buffer_load_dwordx4 v[{d}:{d+3}], v9, {W}, s81 offen offset:{1024*nt} sc1"], f"B{j}"))
            else: r.append(([f"buffer_load_dwordx4 v[{d}:{d+3}], v8, {W}, s81 offen sc1"], f"B{j}"))
        return r

    def g2_aload_items(self, j):
        W = f"s[{R_WS}:{R_WS+3}]"
        k = self.kloc(j)
        vo = (9, 8, 13)[k // 4]
        r = []
        for i in range(4):
            d = self.G2_A + 16 * (j % 5) + 4 * i
            r.append(([f"buffer_load_dwordx4 v[{d}:{d+3}], v{vo}, {W}, s{76+i} offen offset:{1024*(k%4)} sc1"], f"A{j}"))
        return r

    def g2_setup_s(self):
        a = self.a
        for i in range(4):
            a(f"""
            s_add_u32 s60, s{S_WAVE}, {i}
            s_and_b32 s60, s60, 3
            s_lshl_b32 s61, s{S_RB2}, 2
            s_add_u32 s60, s60, s61
            s_mul_i32 s60, s60, 49152
            s_mul_i32 s61, s{S_WAVE}, {12*1024}
            s_add_u32 s60, s60, s61
            s_add_u32 s{76+i}, s60, {HF}
            """)
    def g2_setup_v(self):
        a = self.a
        self.seen = {t for t in self.seen if not t.startswith("A")}
        a(f"v_add_u32 v10, s75, v9\nv_add_u32 v13, 8192, v9")

    def fh_wait(self, tp):
        self.a(f"s_lshl_b32 s66, s{S_WAVE}, 4\ns_add_u32 s66, s66, {M_FH + 64*tp}")
        self.lds_wait_all("s66", 1, f"fhw{tp}", tmp=2)

    def g2_loop(self, hook=None, hook_at=6, fill0=None):
        a = self.a
        def bt_read(j, nt):
            d = self.G2_BT + 4 * nt
            off = self.lslot(j) + 1024 * nt
            a(f"ds_read_b128 v[{d}:{d+3}], v10 offset:{off}")
        sched = {j: [j + 5] for j in range(7)}
        fill = list(fill0 or [])
        self.vwait("D0")
        for nt in range(5): bt_read(0, nt)
        for j in range(12):
            inreg = 6 <= j < 9
            nxt_l = j + 1 < 12 and not (6 <= j + 1 < 9)
            if hook and j == hook_at: hook()
            self.stamp(16 + j, q=True)
            self.vwait(f"A{j}")
            if inreg: self.vwait(f"B{j}")
            if nxt_l: self.vwait(f"D{j+1}")
            for nt in range(5):
                if inreg:
                    B = self.G2_RB + 20 * (j % 3) + 4 * nt
                else:
                    B = self.G2_BT + 4 * nt
                    a(f"s_waitcnt lgkmcnt({4 if nxt_l else 4-nt})")
                for i in range(4):
                    acc = self.G2_ACC + 16 * nt + 4 * i
                    A = self.G2_A + 16 * (j % 5) + 4 * i
                    a(f"v_mfma_f32_16x16x32_bf16 v[{acc}:{acc+3}], v[{B}:{B+3}], v[{A}:{A+3}], {'0' if j == 0 else f'v[{acc}:{acc+3}]'}")
                    if fill and i in (0, 2): self.emit(fill.pop(0))
                if nxt_l: bt_read(j + 1, nt)
            pri = []
            for jj in sched.get(j, []):
                pri += self.g2_aload_items(jj)
            if pri and pri[0][1] == f"A{j+1}":
                for it in pri[:4]: self.emit(it)
                pri = pri[4:]
            fill = pri + fill
            if j < 3: fill += self.g2_dma_items(j + 9)
        assert not fill

    FX = 96; FB = 106
    def svc_x_loads(self):
        a = self.a
        a(f"""
        s_mul_i32 s60, s{S_RB2}, {64*1280}
        s_mul_i32 s61, s{S_CB2}, 160
        s_add_u32 s60, s60, s61
        """)
        for i in range(10):
            a(f"""
            v_add_u32 v2, {64*i}, v0
            v_mul_u32_u24 v3, 52429, v2
            v_lshrrev_b32 v3, 19, v3
            v_mul_u32_u24 v4, 10, v3
            v_sub_u32 v4, v2, v4
            v_lshlrev_b32 v4, 4, v4
            v_mad_u32_u24 v{184+i}, v3, s97, v4
            v_mul_u32_u24 v3, 1280, v3
            v_add_u32 v3, v3, v4
            buffer_load_dwordx4 v[{140+4*i}:{143+4*i}], v3, s[{R_X}:{R_X+3}], s60 offen
            """.replace("s97", "s67") if False else f"""
            v_add_u32 v2, {64*i}, v0
            v_mul_u32_u24 v3, 52429, v2
            v_lshrrev_b32 v3, 19, v3
            v_mul_u32_u24 v4, 10, v3
            v_sub_u32 v4, v2, v4
            v_lshlrev_b32 v4, 4, v4
            v_mul_u32_u24 v5, {XRS}, v3
            v_add_u32 v{184+i}, v5, v4
            v_mul_u32_u24 v3, 1280, v3
            v_add_u32 v3, v3, v4
            buffer_load_dwordx4 v[{140+4*i}:{143+4*i}], v3, s[{R_X}:{R_X+3}], s60 offen
            """)
        a(f"""
        v_min_u32 v2, 39, v0
        v_lshlrev_b32 v2, 2, v2
        v_add_u32 v2, s61, v2
        global_load_dword v180, v2, s[{P_B2}:{P_B2+1}]
        """)

    def svc_x_write(self):
        a = self.a
        for i in range(10):
            a(f"v_add_u32 v{184+i}, {XI}, v{184+i}")
        for i in range(10):
            a(f"ds_write_b128 v{184+i}, v[{140+4*i}:{143+4*i}]")
        a(f"""
        v_lshlrev_b32 v182, 16, v180
        v_and_b32 v183, 0xffff0000, v180
        v_min_u32 v2, 39, v0
        v_lshlrev_b32 v2, 3, v2
        v_add_u32 v2, {M_B2}, v2
        ds_write_b64 v2, v[182:183]
        """)

    def s_tile_dma(self):
        a = self.a
        sc = "sc1" if self.fused else ""
        a(f"""
        v_lshrrev_b32 v2, 3, v0
        v_and_b32 v3, 7, v0
        v_lshlrev_b32 v2, 12, v2
        v_lshl_add_u32 v2, v3, 4, v2
        s_mul_i32 s60, s{S_CB2}, {80*4096}
        s_lshl_b32 s61, s{S_RB2}, 7
        s_add_u32 s60, s60, s61
        s_add_u32 s60, s60, {ST}
        """)
        for t in range(10):
            a(f"s_mov_b32 m0, {AUX+1024*t}")
            a(f"buffer_load_dwordx4 v2, s[{R_WS}:{R_WS+3}], s60 offen {sc} lds")
            if t < 9: a(f"s_add_u32 s60, s60, {8*4096}")
        self.svc_x_write()
        a("s_waitcnt vmcnt(0) lgkmcnt(0)")

    def g2_final(self):
        a = self.a
        ACC = self.G2_ACC
        self.srd(R_OUT, P_OUT, 2621440)
        for i in range(1, 4):
            for nt in range(5):
                acc = ACC + 16 * nt + 4 * i
                a(f"ds_write_b128 v10, v[{acc}:{acc+3}] offset:{5120*(i-1)+1024*nt}")
        for i in range(1, 4):
            a(f"""
            s_sub_u32 s60, s{S_WAVE}, {i}
            s_and_b32 s60, s60, 3
            s_mul_i32 s60, s60, 30720
            s_add_u32 s60, s60, {5120*(i-1)}
            v_add_u32 v{4+i}, s60, v9
            """)
        a(f"""
        v_and_b32 v2, 15, v0
        v_lshrrev_b32 v3, 4, v0
        v_lshrrev_b32 v12, 2, v2
        v_lshl_add_u32 v12, v3, 2, v12
        v_lshlrev_b32 v12, 7, v12
        v_and_b32 v15, 3, v0
        v_lshl_add_u32 v12, v15, 3, v12
        s_lshl_b32 s60, s{S_WAVE}, 5
        s_add_u32 s60, s60, {AUX}
        v_add_u32 v12, s60, v12
        s_mul_i32 s60, s{S_WAVE}, {16*XRS}
        s_add_u32 s60, s60, {XI}
        v_mul_u32_u24 v11, {XRS}, v2
        v_lshl_add_u32 v11, v3, 3, v11
        v_add_u32 v11, s60, v11
        v_lshlrev_b32 v13, 4, v3
        v_add_u32 v13, {M_B2}, v13
        v_mov_b32 v250, 1.0
        v_mov_b32 v251, 1.0
        v_mov_b32 v252, 0xbfb8aa3b
        s_lshl_b32 s80, s{S_RB2}, 2
        s_add_u32 s80, s80, s{S_WAVE}
        s_mul_i32 s80, s80, {16*1280}
        s_mul_i32 s61, s{S_CB2}, 160
        s_add_u32 s80, s80, s61
        """)
        for i in range(3):
            a(f"""
            v_add_u32 v2, {64*i}, v0
            v_mul_u32_u24 v3, 52429, v2
            v_lshrrev_b32 v3, 19, v3
            v_mul_u32_u24 v4, 10, v3
            v_sub_u32 v4, v2, v4
            v_lshlrev_b32 v4, 4, v4
            v_mul_u32_u24 v2, {XRS}, v3
            v_add3_u32 v{240+i}, v2, v4, s60
            v_mul_u32_u24 v3, 1280, v3
            v_add_u32 v{243+i}, v3, v4
            """)
        a("s_waitcnt lgkmcnt(0)\ns_barrier")
        P = 96
        def reads(nt):
            p = P + 20 * nt
            for i in range(1, 4):
                a(f"ds_read_b128 v[{p+4*(i-1)}:{p+4*(i-1)+3}], v{4+i} offset:{1024*nt}")
            a(f"ds_read_b128 v[{p+12}:{p+15}], v13 offset:{64*nt}")
            a(f"ds_read_b64_tr_b16 v[{p+16}:{p+17}], v12 offset:{2048*nt}")
            a(f"ds_read_b64 v[{p+18}:{p+19}], v11 offset:{32*nt}")
        reads(0); reads(1)
        Pp = lambda r: f"v[{r}:{r+1}]"
        for nt in range(5):
            acc = ACC + 16 * nt; p = P + 20 * nt; t = 200 + 12 * (nt % 2)
            a(f"s_waitcnt lgkmcnt({6 if nt < 4 else 1})" if nt != 0 else "s_waitcnt lgkmcnt(6)")
            a(f"""
            v_pk_add_f32 {Pp(acc)}, {Pp(acc)}, {Pp(p)}
            v_pk_add_f32 {Pp(acc+2)}, {Pp(acc+2)}, {Pp(p+2)}
            v_pk_add_f32 {Pp(p+4)}, {Pp(p+4)}, {Pp(p+8)}
            v_pk_add_f32 {Pp(p+6)}, {Pp(p+6)}, {Pp(p+10)}
            v_pk_add_f32 {Pp(acc)}, {Pp(acc)}, {Pp(p+12)}
            v_pk_add_f32 {Pp(acc+2)}, {Pp(acc+2)}, {Pp(p+14)}
            v_pk_add_f32 {Pp(acc)}, {Pp(acc)}, {Pp(p+4)}
            v_pk_add_f32 {Pp(acc+2)}, {Pp(acc+2)}, {Pp(p+6)}
            v_pk_mul_f32 {Pp(t)}, {Pp(acc)}, v[252:253] op_sel_hi:[1,0]
            v_pk_mul_f32 {Pp(t+2)}, {Pp(acc+2)}, v[252:253] op_sel_hi:[1,0]
            """)
            for i in range(4): a(f"v_exp_f32 v{t+i}, v{t+i}")
            if nt + 2 < 5: reads(nt + 2)
            a(f"""
            v_lshlrev_b32 v{t+4}, 16, v{p+16}
            v_and_b32 v{t+5}, 0xffff0000, v{p+16}
            v_lshlrev_b32 v{t+6}, 16, v{p+17}
            v_and_b32 v{t+7}, 0xffff0000, v{p+17}
            v_pk_add_f32 {Pp(t)}, {Pp(t)}, v[250:251]
            v_pk_add_f32 {Pp(t+2)}, {Pp(t+2)}, v[250:251]
            """)
            for i in range(4): a(f"v_rcp_f32 v{t+i}, v{t+i}")
            a(f"""
            v_pk_mul_f32 {Pp(t+4)}, {Pp(t+4)}, {Pp(acc)}
            v_pk_mul_f32 {Pp(t+6)}, {Pp(t+6)}, {Pp(acc+2)}
            v_lshlrev_b32 v{t+8}, 16, v{p+18}
            v_and_b32 v{t+9}, 0xffff0000, v{p+18}
            v_lshlrev_b32 v{t+10}, 16, v{p+19}
            v_and_b32 v{t+11}, 0xffff0000, v{p+19}
            v_pk_fma_f32 {Pp(t+8)}, {Pp(t+4)}, {Pp(t)}, {Pp(t+8)}
            v_pk_fma_f32 {Pp(t+10)}, {Pp(t+6)}, {Pp(t+2)}, {Pp(t+10)}
            v_cvt_pk_bf16_f32 v{p+18}, v{t+8}, v{t+9}
            v_cvt_pk_bf16_f32 v{p+19}, v{t+10}, v{t+11}
            ds_write_b64 v11, v[{p+18}:{p+19}] offset:{32*nt}
            """)
        osc = os.environ.get('OSC', '')
        a(f"""
        ds_read_b128 v[224:227], v240
        ds_read_b128 v[228:231], v241
        s_mov_b32 exec_hi, 0
        ds_read_b128 v[232:235], v242
        s_mov_b64 exec, -1
        s_waitcnt lgkmcnt(1)
        buffer_store_dwordx4 v[224:227], v243, s[{R_OUT}:{R_OUT+3}], s80 offen {osc}
        s_waitcnt lgkmcnt(0)
        buffer_store_dwordx4 v[228:231], v244, s[{R_OUT}:{R_OUT+3}], s80 offen {osc}
        s_mov_b32 exec_hi, 0
        buffer_store_dwordx4 v[232:235], v245, s[{R_OUT}:{R_OUT+3}], s80 offen {osc}
        s_mov_b64 exec, -1
        """)

    def misc_init(self):
        self.a(f"""
        v_lshlrev_b32 v2, 2, v0
        v_add_u32 v2, {MISC}, v2
        v_mov_b32 v3, 0
        ds_write_b32 v2, v3
        """)


HEADER = open("cdna_kernels/" + NAME + ".s.ref").read().split("; Override launch")[0]

def kernel_text(label, body):
    return f""".text
.globl {label}
.p2align 8
.type {label},@function
{label}:
{body}
"""
def desc(label, vgpr=256):
    return f""".section .rodata,"a"
.p2align 6
.amdhsa_kernel {label}
  .amdhsa_next_free_vgpr {vgpr}
  .amdhsa_next_free_sgpr 102
  .amdhsa_accum_offset {vgpr}
  .amdhsa_group_segment_fixed_size 0
  .amdhsa_kernarg_size 120
  .amdhsa_user_sgpr_count 2
  .amdhsa_user_sgpr_kernarg_segment_ptr 1
  .amdhsa_system_sgpr_workgroup_id_x 1
.end_amdhsa_kernel
"""
```

```python
import sys, os
from parts import *
E = lambda k, d=0: int(os.environ.get(k, d))

class Fused(Gen):
    def cnt_add(self, addr, rtn=False):
        self.a(f"""
        v_mov_b32 v2, {addr}
        v_mov_b32 v3, 1
        s_mov_b64 exec, 1
        {'ds_add_rtn_u32 v4, v2, v3' if rtn else 'ds_add_u32 v2, v3'}
        s_mov_b64 exec, -1
        """)

    def cnt_wait(self, addr, n, name, sleep=0):
        lab = self.L(name)
        self.a(f"""
        v_mov_b32 v2, {addr}
        s_mov_b32 s61, 0
        {lab}:
        ds_read_b32 v3, v2
        s_add_u32 s61, s61, 1
        s_waitcnt lgkmcnt(0)
        v_readfirstlane_b32 s60, v3
        s_cmp_gt_u32 s61, 0x100000
        s_cbranch_scc1 {lab}_d
        s_cmp_ge_u32 s60, {n}
        s_cbranch_scc1 {lab}_d
        {'s_sleep %d' % sleep if sleep else ''}
        s_branch {lab}
        {lab}_d:
        """)

    def build_fused(self):
        a = self.a
        L = self.L
        st = 2 if self.stamps else 0
        N0 = E('N0', 8)
        slp = ('s_sleep %d' % PSLEEP) if PSLEEP else ''
        GE = E('GE', 1); NA = E('NA', 0); GL = E('GL', 0); GS = 40 - 4 * GE - 3 * NA - 3 * GL
        def aux_dma(p):
            if NA == 0: return
            self.w1_addr(12)
            a(f"s_add_u32 s68, s70, {GS}\n{L('adl' + p)}:")
            self.w1_group(12)
            a(f"s_add_u32 s68, s68, 3\ns_cmp_lt_u32 s68, {GS + 3 * NA}\ns_cbranch_scc1 {L('adl' + p)}")
        a(f"{L('start')}:")
        self.prologue()
        self.stamp(0)
        if 0 in self.sel:
            a(f"v_mov_b32 v1, s94\ns_mov_b64 exec, 1\nbuffer_store_dword v1, off, s[{R_WS}:{R_WS+3}], s100 offset:124\ns_mov_b64 exec, -1")
        a(f"s_cmp_ge_u32 s{S_WAVE}, 4\ns_cbranch_scc1 {L('aux0')}")
        a(f"s_setprio {E('GP', 2)}")
        self.ln_loads()
        a(f"s_branch {L('gemm')}\n{L('aux0')}:")
        a.clear_hist()
        a(f"s_sub_u32 s60, s{S_WAVE}, 4\ns_cmp_ge_u32 s60, s{S_NCH}\ns_cbranch_scc1 {L('aux1')}")
        self.kg_loads()
        a(f"s_branch {L('kg')}\n{L('aux1')}:")
        a(f"s_cmp_lg_u32 s{S_WAVE}, 7\ns_cbranch_scc1 {L('noch')}")
        a(f"s_setprio {E('SP', 1)}")
        self.w1_addr(12)
        a(f"""
        s_mul_i32 s68, s{S_RB}, {GS}
        s_lshr_b32 s68, s68, 4
        s_mov_b32 s67, {GS}
        {L('sdl')}:
        """)
        self.w1_group(12)
        a(f"""
        s_add_u32 s68, s68, 1
        s_cmp_eq_u32 s68, {GS}
        s_cselect_b32 s68, 0, s68
        s_cmp_lg_u32 s67, {GS - 1}
        s_cbranch_scc1 {L('sdw')}
        """)
        self.srd(R_OUT, P_OUT, 2621440)
        a(f"""
        v_lshlrev_b32 v3, 20, v0
        s_mov_b32 exec_hi, 0
        buffer_load_dword v131, v3, s[{R_WS}:{R_WS+3}], 0 offen
        buffer_load_dword v132, v3, s[{R_OUT}:{R_OUT+3}], 0 offen
        s_mov_b64 exec, -1
        {L('sdw')}:
        s_sub_u32 s67, s67, 1
        s_cmp_lg_u32 s67, 0
        s_waitcnt vmcnt({E('DEPTH', 45)})
        s_cbranch_scc1 {L('sdl')}
        s_branch {L('svc')}
        {L('gemm')}:
        """)
        a.clear_hist()
        self.w1_addr(92)
        self.g1_b1_loads()
        a(f"s_add_u32 s68, s{S_WAVE}, {GS + 3 * NA}")
        for i in range(GE):
            self.w1_group(92)
            if i + 1 < GE: a("s_add_u32 s68, s68, 4")
        self.ln_pub_addr()
        a(f"s_waitcnt vmcnt({6 + 3 * GE})")
        self.stamp(1)
        self.ln_math()
        a("s_waitcnt lgkmcnt(0)")
        self.lds_set(M_LNW, S_WAVE, tmp=(2, 3))
        self.lds_wait_all(M_LNW, 4, "lnw4", tmp=2, sleep=0)
        a(f"v_mov_b32 v97, 0\nv_mov_b32 v96, 0\ns_cmp_lg_u32 s{S_WAVE}, 0\ns_cbranch_scc1 {L('g_n0')}")
        a(f"global_load_dword v96, v97, s[{P_DBG}:{P_DBG+1}] sc1\n{L('g_n0')}:")
        self.ln_publish()
        self.ln_publish_xt()
        self.stamp(13)
        self.cnt_add(M_LNCNT + 8)
        a("s_waitcnt vmcnt(5)" if 13 not in self.sel else "s_waitcnt vmcnt(6)")
        self.cnt_add(M_LNCNT + 12)
        self.g1_prep()
        self.g2_addr()
        a("s_waitcnt vmcnt(0)")
        self.stamp(2)
        a(f"s_cmp_eq_u32 s{S_WAVE}, 0\ns_cbranch_scc1 {L('g_w0')}")
        self.cnt_add(M_LNCNT)
        if GL:
            a(f"s_add_u32 s68, s{S_WAVE}, {40 - 3 * GL - 1}")
            for i in range(GL):
                self.w1_group(92)
                if i + 1 < GL: a("s_add_u32 s68, s68, 3")
            a("s_waitcnt vmcnt(0)")
            self.cnt_add(M_LNCNT + 12)
        a(f"s_branch {L('g_j')}\n{L('g_w0')}:")
        a(f"""
        s_mov_b32 s64, 0
        {L('np')}:
        v_readfirstlane_b32 s{S_NONCE}, v96
        s_cmp_gt_u32 s64, 0x8000
        s_cbranch_scc1 {L('npd')}
        s_cmp_lg_u32 s{S_NONCE}, 0
        s_cbranch_scc1 {L('npd')}
        global_load_dword v96, v97, s[{P_DBG}:{P_DBG+1}] sc1
        s_add_u32 s64, s64, 1
        s_waitcnt vmcnt(0)
        s_nop 1
        s_branch {L('np')}
        {L('npd')}:
        v_mov_b32 v2, s{S_NONCE}
        v_mov_b32 v3, {M_NONCE}
        ds_write_b32 v3, v2
        v_mov_b32 v3, {M_LNCNT}
        s_mov_b32 s64, 0
        {L('lc')}:
        ds_read_b32 v2, v3
        s_add_u32 s64, s64, 1
        s_waitcnt lgkmcnt(0)
        v_readfirstlane_b32 s60, v2
        s_cmp_gt_u32 s64, 0x100000
        s_cbranch_scc1 {L('lcd')}
        s_cmp_lt_u32 s60, 3
        s_cbranch_scc1 {L('lc')}
        {L('lcd')}:
        s_mul_i32 s66, s{S_LID}, {FSTR}
        s_add_u32 s66, s66, {FLN}
        """)
        self.store_flag(66)
        self.stamp(10)
        a(f"s_mul_i32 s66, s{S_RB}, {16*FSTR}\ns_add_u32 s66, s66, {FLN}")
        self.poll_flags("pln", 66, 16)
        self.lds_set(M_LN, None, tmp=(2, 3))
        a(f"s_cmp_lg_u32 s{S_RB}, s{S_CB}\ns_cbranch_scc1 {L('g_j')}\ns_mul_i32 s66, s{S_RB}, {FSTR}\ns_add_u32 s66, s66, {FL2}")
        self.store_flag(66)
        a(f"{L('g_j')}:")
        self.lds_wait_all(M_LN, 1, "lnw", tmp=2)
        self.stamp(3)
        self.vq = []
        for ks in range(N0):
            for it in self.g1_aload(ks): self.emit(it)
        self.lds_set(M_LN + 4, None, tmp=(2, 3))
        self.get_nonce("gn", tmp=2)
        self.cnt_wait(M_LNCNT + 12, 5 + (3 if NA else 0) + (3 if GL else 0), "w1w")
        self.stamp(4, q=True)
        self.pubn = ''
        def publish(p):
            self.vwait("S")
            self.cnt_add(M_HC + 4 * p, rtn=True)
            a(f"""
            s_mul_i32 s66, s{S_LID}, {FHS}
            s_add_u32 s66, s66, {FH + 256 * FHS * p}
            s_waitcnt lgkmcnt(0)
            s_nop 1
            v_readfirstlane_b32 s60, v4
            s_cmp_lg_u32 s60, 3
            s_cbranch_scc1 {L('nofh%d%s' % (p, self.pubn))}
            """)
            self.store_flag(66)
            if p == 0: self.lds_set(M_HP, None, tmp=(2, 3))
            a(f"{L('nofh%d%s' % (p, self.pubn))}:")
            self.stamp(28 + p, q=True)
            self.vq.append("f")
            self.vq.pop()
        def cnt_wait(addr, n, name):
            lab = L(name)
            a(f"""
            v_mov_b32 v2, {addr}
            s_mov_b32 s61, 0
            {lab}:
            ds_read_b32 v3, v2
            s_add_u32 s61, s61, 1
            s_waitcnt lgkmcnt(0)
            v_readfirstlane_b32 s60, v3
            s_cmp_gt_u32 s61, 0x100000
            s_cbranch_scc1 {lab}_d
            s_cmp_lt_u32 s60, {n}
            s_cbranch_scc1 {lab}
            {lab}_d:
            """)
        def ev_rb():
            self.lds_wait_all(M_FW, 1, "fww", tmp=2)
            return sum((self.g2_bload_items(j) for j in range(6, 9)), [])
        ev = {10: lambda: self.stamp(14, q=True)}
        RB1 = E('RB1', 13)
        if RB1 < 20: ev[RB1] = ev_rb
        self.g2_setup_s()
        self.g1_loop(N0, ev)
        self.cnt_add(M_PD)
        self.stamp(5, q=True)
        for p in range(3):
            for it in self.epi_ops(p): self.emit(it)
        self.stamp(15, q=True)
        rest = ev_rb() if RB1 >= 20 else []
        cnt_wait(M_PD, 4, "pdw")
        self.g2_setup_v()
        ND = E('ND', 2)
        for j in range(ND):
            for it in self.g2_dma_items(j): self.emit(it)
        publish(0)
        if E('PF'): a("s_setprio 0")
        for j in range(ND, 6):
            for it in self.g2_dma_items(j): self.emit(it)
        for it in rest: self.emit(it)
        self.stamp(6, q=True)
        self.fh_wait(0)
        for j in range(5):
            for it in self.g2_aload_items(j): self.emit(it)
        self.stamp(7, q=True)
        self.g2_loop(hook=lambda: self.lds_set(M_J6, None, tmp=(2, 3)), hook_at=E('J6', 6))
        self.stamp(8)
        if E('PF'): a("s_setprio 2")
        self.g2_final()
        if 9 in self.sel: a("s_waitcnt vmcnt(0)")
        self.stamp(9)
        if E('KX'):
            a(f"""
            s_waitcnt vmcnt(0)
            s_memrealtime s[62:63]
            s_waitcnt lgkmcnt(0)
            s_sub_u32 s60, s62, s{S_NONCE}
            s_min_u32 s60, s60, 10000
            s_mul_i32 s60, s60, {E('KX')}
            {L('kx')}:
            s_memrealtime s[62:63]
            s_waitcnt lgkmcnt(0)
            s_sub_u32 s61, s62, s{S_NONCE}
            s_cmp_lt_u32 s61, s60
            s_cbranch_scc1 {L('kx')}
            """)
        a(f"s_endpgm\n{L('kg')}:")
        a.clear_hist()
        aux_dma("a")
        a(f"s_waitcnt vmcnt({3 * NA})")
        self.stamp(1)
        if E('X1'):
            self.get_nonce("x1n", tmp=2)
            self.lds_set(M_CD, 70, tmp=(2, 3))
            a(f"s_mul_i32 s66, s71, {FSTR}\ns_add_u32 s66, s66, {FS}")
            self.store_flag(66)
            a("s_endpgm")
        def khook():
            a(f"s_cmp_lg_u32 s73, 2\ns_cbranch_scc1 {L('kh')}\ns_waitcnt vmcnt(0)")
            self.cnt_add(M_LNCNT + 12)
            a(f"{L('kh')}:")
        self.kgen(hook=khook if NA else None)
        self.stamp(3)
        self.expand()
        self.stamp(2)
        self.get_nonce("cn", tmp=2)
        self.lds_wait_all(M_U, 1, "uw", tmp=2)
        self.stamp(4)
        if E('CW'):
            lab = L("cw")
            a(f"""
            v_mov_b32 v2, {M_PD + 4 * (E('CW') - 1)}
            s_mov_b32 s61, 0
            {lab}:
            ds_read_b32 v3, v2
            s_add_u32 s61, s61, 1
            s_waitcnt lgkmcnt(0)
            v_readfirstlane_b32 s60, v3
            s_cmp_gt_u32 s61, 0x100000
            s_cbranch_scc1 {lab}_d
            s_cmp_ge_u32 s60, 4
            s_cbranch_scc1 {lab}_d
            s_sleep 2
            s_branch {lab}
            {lab}_d:
            """)
        if E('PF'): a("s_setprio 1")
        self.conv()
        self.lds_set(M_CD, 70, tmp=(2, 3))
        self.stamp(5)
        a(f"s_mul_i32 s66, s71, {FSTR}\ns_add_u32 s66, s66, {FS}\ns_waitcnt vmcnt(0)")
        self.store_flag(66)
        self.stamp(6)
        a(f"s_endpgm\n{L('noch')}:")
        a.clear_hist()
        a(f"s_sub_u32 s70, s{S_WAVE}, 4")
        aux_dma("b")
        a(f"s_cmp_eq_u32 s{S_WAVE}, 6\ns_cbranch_scc1 {L('rt')}\ns_waitcnt vmcnt(0)")
        if NA: self.cnt_add(M_LNCNT + 12)
        a(f"s_endpgm\n{L('rt')}:")
        self.w2_loads()
        a("s_waitcnt vmcnt(0)")
        if NA: self.cnt_add(M_LNCNT + 12)
        self.cnt_wait(M_LNCNT + 8, 4, "rtw", sleep=2)
        a("s_setprio 3")
        self.w2_retile()
        a(f"""
        v_mov_b32 v3, 0
        s_mov_b32 s64, 0
        {L('wn')}:
        global_load_dword v2, v3, s[{P_DBG}:{P_DBG+1}] sc1
        s_add_u32 s64, s64, 1
        s_waitcnt vmcnt(0)
        s_nop 1
        v_readfirstlane_b32 s{S_NONCE}, v2
        s_cmp_gt_u32 s64, 0x8000
        s_cbranch_scc1 {L('wnd')}
        s_cmp_eq_u32 s{S_NONCE}, 0
        s_cbranch_scc1 {L('wn')}
        {L('wnd')}:
        """)
        a(f"s_mul_i32 s66, s43, {FSTR}\ns_add_u32 s66, s66, {FW}\ns_waitcnt vmcnt(0)")
        self.store_flag(66)
        self.stamp(7)
        a(f"s_endpgm\n{L('svc')}:")
        a.clear_hist()
        a("s_waitcnt vmcnt(0)")
        self.cnt_add(M_LNCNT + 12)
        a("s_setprio 3")
        self.stamp(2)
        self.get_nonce("sn", tmp=2)
        def fwp():
            a(f"s_lshr_b32 s66, s{S_CB2}, 2\ns_mul_i32 s66, s66, {FSTR}\ns_add_u32 s66, s66, {FW}")
            if E('L2P', 0):
                a(f"s_mov_b32 s66, {FW}")
                self.poll_flags("pfw", 66, 48, nloads=2, istride=48*FSTR)
            else:
                self.poll_flags("pfw", 66, 48, lstride=2*FSTR)
            self.lds_set(M_FW, None, tmp=(2, 3))
            if E('L2P', 0):
                a(f"s_mul_i32 s60, s{S_IDX}, {480*128}\ns_add_u32 s60, s60, {W2F}\nv_lshlrev_b32 v2, 7, v0")
                for i in range(8):
                    if i == 7: a("s_mov_b32 exec_hi, 0")
                    a(f"buffer_load_dword v{200+i}, v2, s[{R_WS}:{R_WS+3}], s60 offen sc1\ns_add_u32 s60, s60, 8192")
                a("s_mov_b64 exec, -1")
            self.stamp(5)
        if E('SW', 1) == 1: self.lds_wait_all(M_LN, 1, "slw", tmp=2)
        fwp()
        a(f"s_cmp_eq_u32 s{S_NCH}, 0\ns_cbranch_scc1 {L('nou')}\ns_mov_b32 s66, {FL2}")
        self.poll_flags("pla", 66, 16)
        self.stamp(3)
        self.u_gather()
        self.lds_set(M_U, None, tmp=(2, 3))
        a(f"{L('nou')}:")
        self.stamp(4)
        self.svc_x_loads()
        self.lds_wait_all(M_HP, 1, "hpw", tmp=2)
        a(f"""
        s_lshr_b32 s66, s{S_RB2}, 1
        s_mul_i32 s66, s66, {16*FHS}
        s_add_u32 s66, s66, {FH}
        v_and_b32 v2, 15, v0
        v_mul_u32_u24 v2, {FHS}, v2
        v_lshrrev_b32 v3, 4, v0
        v_lshl_add_u32 v2, v3, {(256 * FHS).bit_length() - 1}, v2
        v_lshlrev_b32 v4, 2, v0
        v_add_u32 v4, {M_FH}, v4
        s_mov_b64 exec, 0xffff
        s_mov_b32 s64, 0
        {L('pfh')}:
        buffer_load_dword v3, v2, s[{R_WS}:{R_WS+3}], s66 offen sc1
        s_add_u32 s64, s64, 1
        s_waitcnt vmcnt(0)
        v_cmp_eq_u32 vcc, s{S_NONCE}, v3
        v_cndmask_b32 v3, 0, 1, vcc
        v_and_b32_dpp v3, v3, v3 quad_perm:[1,0,3,2] row_mask:0xf bank_mask:0xf
        v_and_b32_dpp v3, v3, v3 quad_perm:[2,3,0,1] row_mask:0xf bank_mask:0xf
        ds_write_b32 v4, v3
        s_cmp_gt_u32 s64, 0x8000
        s_cbranch_scc1 {L('pfhx')}
        s_cmp_eq_u64 vcc, exec
        s_cbranch_scc1 {L('pfhd')}
        s_sleep {E('HSLEEP', 4)}
        s_branch {L('pfh')}
        {L('pfhx')}:
        v_mov_b32 v3, 1
        ds_write_b32 v4, v3
        {L('pfhd')}:
        s_mov_b64 exec, -1
        """)
        self.stamp(6)
        self.lds_wait_all(M_J6, 1, "j6w", tmp=2)
        a(f"s_mul_i32 s66, s{S_CB2}, {80*FSTR}\ns_add_u32 s66, s66, {FS}")
        self.poll_flags("pfs", 66, 40, nloads=2, istride=40*FSTR)
        a(f"s_cmp_eq_u32 s{S_NCH}, 0\ns_cbranch_scc1 {L('nocd')}")
        self.lds_wait_all(M_CD, 2, "cdw", tmp=2)
        a(f"{L('nocd')}:")
        self.stamp(7)
        self.s_tile_dma()
        self.stamp(8)
        a("s_barrier")
        a(f"{L('end')}:\ns_endpgm")

if __name__ == "__main__":
    path = sys.argv[1]
    opts = sys.argv[2:]
    g = Fused("fused", "stamps" in opts)
    g.sel = set(range(32)) if "stamps" in opts else ({0, 9} | {int(x) for x in os.environ.get("SEL", "").split(",") if x} if "mins" in opts else set())
    g.build_fused()
    lab = NAME + "_kernel"
    txt = HEADER + f"; @launch grid=(256,1,1) block=(512,1,1) lds={LDS_TOTAL}\n" + '.amdgcn_target "amdgcn-amd-amdhsa--gfx950"\n' + kernel_text(lab, g.a.text()) + desc(lab)
    if E('X4'):
        import re
        txt = re.sub(r"(buffer_load_dwordx4 .*?) sc1", r"\1", txt)
    if E('X2'):
        txt = "\n".join(("    s_nop 0" if ("s81 offen" in l) else l) for l in txt.split("\n"))
    open(path, "w").write(txt)
```

```python
import sys
from asmlib import Asm, vr, sr

NAME = "recurrent_scan__ssm_conv_s4d__dense_activation_squared_relu__prompt"
XF = 0x0; XT = 0x280000; HF = 0x500000; W2F = 0xB00000; ST = 0xD00000
FLG = 0xF80000; STAMP = 0x1000000; WS_SIZE = 0x1100000
import os
FSTR = int(os.environ.get('FSTR','128'))
PSLEEP = int(os.environ.get('PSLEEP','0'))
LSLEEP = int(os.environ.get('LSLEEP','0'))
FHS = int(os.environ.get('FHS','128'))
FLN = FLG; FH = FLG + 0x8000; FW = FLG + 0x20000; FS = FLG + 0x24000; FL2 = FLG + 0x40000
AUX = 122880; RSZ = 12896; K1O = 4160; UO = 8320; UPAD = 480
MISC = AUX + 3 * RSZ
LDS_TOTAL = 163840
M_LNCNT = MISC; M_W1 = MISC + 16; M_G1D = MISC + 32; M_U = MISC + 48; M_NONCE = MISC + 112
M_LNR = MISC + 80; M_LN = MISC + 192; M_LNW = MISC + 240; M_J6 = MISC + 208; M_HP = MISC + 224; M_FW = MISC + 64; M_HCNT = MISC + 68; M_FH = MISC + 256; M_PD = MISC + 128; M_HC = MISC + 144; M_CD = MISC + 96
LNRS = 1296
LNIMG = 122880 - 10752
IMG = [0, 40960, 81920]
XRS = 176; XI = AUX + RSZ; M_B2 = MISC + 512
P_X, P_LA, P_AI, P_CR, P_CI, P_DT, P_DS = 4, 6, 8, 10, 12, 14, 16
P_W1, P_B1, P_W2, P_B2, P_OUT, P_DBG, P_WS = 20, 22, 24, 26, 28, 30, 32
S_WAVE, S_XCD, S_IDX, S_RB, S_CB, S_RB2, S_CB2, S_NCH, S_CH0 = 34, 35, 36, 37, 38, 39, 40, 41, 42
R_WS, R_X, R_W, R_OUT = 44, 48, 52, 56
S_NONCE = 96
S_LID = 93
LOG2E = 0x3fb8aa3b
INV2PI = 0x3e22f983

class Gen:
    def __init__(self, mode, stamps=False):
        self.a = Asm()
        self.mode = mode
        self.fused = mode == "fused"
        self.stamps = stamps
        self.sel = set()
        self.role = 'g'
        self.seen = set()
        self.pfx = mode

    def L(self, n):
        return f"{self.pfx}_{n}"

    def stamp(self, slot, q=False):
        if os.environ.get('DGP') and (self.role, slot) == (os.environ['DGP'][0], int(os.environ['DGP'][1:])):
            self.a('s_memrealtime s[72:73]\ns_waitcnt lgkmcnt(0)')
        if slot not in self.sel: return
        if q: self.vq += ['st']
        a = self.a
        a(f"""
        s_memrealtime s[98:99]
        s_lshl_b32 s100, s2, 3
        s_add_u32 s100, s100, s{S_WAVE}
        s_lshl_b32 s100, s100, 7
        s_add_u32 s100, s100, {STAMP + slot*4}
        s_waitcnt lgkmcnt(0)
        v_mov_b32 v1, s98
        s_mov_b64 s[98:99], exec
        s_mov_b64 exec, 1
        buffer_store_dword v1, off, s[{R_WS}:{R_WS+3}], s100
        s_mov_b64 exec, s[98:99]
        """)

    def dg_end(self, wave):
        if not os.environ.get('DGP') or os.environ['DGP'][0] != self.role: return
        lab = self.L('dg' + self.role)
        self.a(f"""
        s_cmp_lg_u32 s2, 0
        s_cbranch_scc1 {lab}_d
        s_cmp_lg_u32 s{S_WAVE}, {wave}
        s_cbranch_scc1 {lab}_d
        s_sub_u32 s60, s72, s94
        s_min_u32 s60, s60, 3000
        s_mul_i32 s60, s60, 5
        s_memrealtime s[62:63]
        s_waitcnt lgkmcnt(0)
        s_mov_b32 s64, s62
        {lab}:
        s_memrealtime s[62:63]
        s_waitcnt lgkmcnt(0)
        s_sub_u32 s61, s62, s64
        s_cmp_lt_u32 s61, s60
        s_cbranch_scc1 {lab}
        {lab}_d:
        """)

    def srd(self, r, p, size):
        self.a(f"""
        s_mov_b32 s{r}, s{p}
        s_and_b32 s{r+1}, s{p+1}, 0xffff
        s_mov_b32 s{r+2}, {size}
        s_mov_b32 s{r+3}, 0x00020000
        """)

    def prologue(self):
        a = self.a
        a(f"""
        s_load_dwordx16 s[4:19], s[0:1], 0
        s_load_dwordx8 s[20:27], s[0:1], 64
        s_load_dwordx4 s[28:31], s[0:1], 96
        s_load_dwordx2 s[32:33], s[0:1], 112
        s_memrealtime s[94:95]
        s_cmp_ge_u32 s2, 256
        s_cbranch_scc1 {self.L('end')}
        v_lshrrev_b32 v1, 6, v0
        v_and_b32 v0, 63, v0
        s_and_b32 s{S_XCD}, s2, 7
        v_readfirstlane_b32 s{S_WAVE}, v1
        s_lshr_b32 s{S_IDX}, s2, 3
        s_getpc_b64 s[62:63]
        {self.L('pc')}:
        s_cmp_lg_u32 s{S_WAVE}, 7
        s_cbranch_scc1 {self.L('nopf')}
        s_and_b32 s60, s{S_IDX}, 7
        s_lshl_b32 s60, s60, 12
        v_lshlrev_b32 v2, 7, v0
        v_add_u32 v2, s60, v2
        v_min_u32 v2, {self.L('end')}-{self.L('pc')}, v2
        s_mov_b32 exec_hi, 0
        global_load_dword v130, v2, s[62:63]
        s_mov_b32 exec_hi, -1
        {self.L('nopf')}:
        s_and_b32 s60, s{S_XCD}, 3
        s_lshl_b32 s60, s60, 2
        s_and_b32 s61, s{S_IDX}, 3
        s_add_u32 s{S_RB}, s60, s61
        s_lshr_b32 s60, s{S_XCD}, 2
        s_lshl_b32 s60, s60, 3
        s_lshr_b32 s{S_CB2}, s{S_IDX}, 2
        s_add_u32 s{S_CB}, s60, s{S_CB2}
        s_lshl_b32 s60, s{S_XCD}, 2
        s_add_u32 s{S_RB2}, s60, s61
        ; conv channels: g = idx/3, pos = idx%3
        s_mul_i32 s60, s{S_IDX}, 43
        s_lshr_b32 s60, s60, 7
        s_mul_i32 s61, s60, 3
        s_sub_u32 s61, s{S_IDX}, s61
        s_mul_i32 s62, s{S_XCD}, 80
        s_lshl_b32 s63, s60, 3
        s_add_u32 s62, s62, s63
        s_mul_i32 s63, s61, 3
        s_add_u32 s{S_CH0}, s62, s63
        s_cmp_eq_u32 s61, 2
        s_cselect_b32 s{S_NCH}, 2, 3
        s_cmp_ge_u32 s{S_IDX}, 30
        s_cselect_b32 s{S_NCH}, 0, s{S_NCH}
        s_sub_u32 s61, s{S_IDX}, 20
        s_cselect_b32 s60, s61, s60
        """)
        a.lines.pop(); a.lines.pop()
        a(f"""
        s_sub_u32 s61, s{S_IDX}, 20
        s_cmp_ge_u32 s{S_IDX}, 30
        s_cselect_b32 s60, s61, s60
        s_mul_i32 s61, s{S_XCD}, 12
        s_add_u32 s43, s61, s60
        s_lshl_b32 s{S_LID}, s{S_RB}, 4
        s_add_u32 s{S_LID}, s{S_LID}, s{S_CB}
        v_lshlrev_b32 v2, 3, v0
        v_add_u32 v2, {MISC}, v2
        v_mov_b32 v4, 0
        v_mov_b32 v5, 0
        ds_write_b64 v2, v[4:5]
        s_cmp_eq_u32 s{S_WAVE}, 7
        s_cselect_b32 s60, s2, 1
        s_cmp_lg_u32 s60, 0
        s_waitcnt lgkmcnt(0)
        s_cbranch_scc1 {self.L('nonce0')}
        s_or_b32 s61, s94, 1
        v_mov_b32 v2, s61
        s_mov_b64 exec, 1
        global_store_dword v4, v2, s[{P_DBG}:{P_DBG+1}] sc1
        s_mov_b64 exec, -1
        {self.L('nonce0')}:
        s_barrier
        """)
        if os.environ.get('WSOFF'):
            a(f"s_add_u32 s{P_WS}, s{P_WS}, {int(os.environ['WSOFF'],0)}\ns_addc_u32 s{P_WS+1}, s{P_WS+1}, 0")
        self.srd(R_WS, P_WS, WS_SIZE)
        self.srd(R_X, P_X, 2621440)

    def rowaddr(self, dst, row, t):
        self.a(f"""
        v_mul_u32_u24 v{t}, 11, v{row}
        v_lshrrev_b32 v{t}, 5, v{t}
        v_mul_u32_u24 v{dst}, {LNRS}, v{row}
        v_mad_u32_u24 v{dst}, v{t}, s97, v{dst}
        v_lshrrev_b32 v{t}, 1, v{t}
        v_mul_u32_u24 v{t}, 1440, v{t}
        v_add3_u32 v{dst}, v{dst}, v{t}, s61
        """)

    def ln_loads(self):
        a = self.a
        a(f"""
        s_lshl_b32 s60, s{S_LID}, 3
        s_lshl_b32 s61, s{S_WAVE}, 1
        s_add_u32 s60, s60, s61
        s_mul_i32 s60, s60, 1280
        v_lshrrev_b32 v2, 5, v0
        v_and_b32 v3, 31, v0
        v_mul_u32_u24 v1, 1280, v2
        v_lshl_add_u32 v1, v3, 3, v1
        """)
        for i in range(5):
            a(f"buffer_load_dwordx2 v[{100+2*i}:{101+2*i}], v1, s[{R_X}:{R_X+3}], s60 offen offset:{256*i}")

    def reduce32(self, v, t):
        a = self.a
        a(f"""
        v_add_f32_dpp v{v}, v{v}, v{v} quad_perm:[1,0,3,2] row_mask:0xf bank_mask:0xf
        v_add_f32_dpp v{v}, v{v}, v{v} quad_perm:[2,3,0,1] row_mask:0xf bank_mask:0xf
        v_add_f32_dpp v{v}, v{v}, v{v} row_half_mirror row_mask:0xf bank_mask:0xf
        v_add_f32_dpp v{v}, v{v}, v{v} row_mirror row_mask:0xf bank_mask:0xf
        v_mov_b32 v{t}, v{v}
        v_permlane16_swap_b32 v{v}, v{t}
        v_add_f32 v{v}, v{v}, v{t}
        """)

    def ln_math(self):
        a = self.a
        X = 110; Dd = 130; S = 150
        for i in range(10):
            a(f"v_lshlrev_b32 v{X+2*i}, 16, v{100+i}")
            a(f"v_and_b32 v{X+1+2*i}, 0xffff0000, v{100+i}")
        P = lambda r: f"v[{r}:{r+1}]"
        a(f"v_pk_add_f32 {P(S)}, {P(X)}, {P(X+2)}\nv_pk_add_f32 {P(S+2)}, {P(X+4)}, {P(X+6)}")
        for i in range(4, 10):
            a(f"v_pk_add_f32 {P(S+2*(i%2))}, {P(S+2*(i%2))}, {P(X+2*i)}")
        a(f"v_pk_add_f32 {P(S)}, {P(S)}, {P(S+2)}\nv_add_f32 v{S}, v{S}, v{S+1}")
        self.reduce32(S, S + 1)
        a(f"v_mul_f32 v{S+4}, 0x3acccccd, v{S}")
        for i in range(10):
            a(f"v_pk_add_f32 {P(Dd+2*i)}, {P(X+2*i)}, {P(S+4)} op_sel_hi:[1,0] neg_lo:[0,1] neg_hi:[0,1]")
        a(f"v_pk_mul_f32 {P(S)}, {P(Dd)}, {P(Dd)}\nv_pk_mul_f32 {P(S+2)}, {P(Dd+2)}, {P(Dd+2)}")
        for i in range(2, 10):
            a(f"v_pk_fma_f32 {P(S+2*(i%2))}, {P(Dd+2*i)}, {P(Dd+2*i)}, {P(S+2*(i%2))}")
        a(f"v_pk_add_f32 {P(S)}, {P(S)}, {P(S+2)}\nv_add_f32 v{S}, v{S}, v{S+1}")
        self.reduce32(S, S + 1)
        a(f"""
        v_mul_f32 v{S+5}, 0x3acccccd, v{S}
        v_cvt_pk_bf16_f32 v{S}, v{S+4}, v{S+5}
        v_lshlrev_b32 v{S+4}, 16, v{S}
        v_and_b32 v{S+2}, 0xffff0000, v{S}
        v_add_f32 v{S+2}, 0x3727c5ac, v{S+2}
        v_cvt_pk_bf16_f32 v{S+2}, v{S+2}, v{S+2}
        v_and_b32 v{S+2}, 0xffff0000, v{S+2}
        v_sqrt_f32 v{S+2}, v{S+2}
        """)
        for i in range(10):
            a(f"v_pk_add_f32 {P(Dd+2*i)}, {P(X+2*i)}, {P(S+4)} op_sel_hi:[1,0] neg_lo:[0,1] neg_hi:[0,1]")
            if i == 1:
                a(f"v_cvt_pk_bf16_f32 v{S+2}, v{S+2}, v{S+2}\nv_and_b32 v{S+2}, 0xffff0000, v{S+2}\nv_rcp_f32 v{S+2}, v{S+2}")
        for i in range(10):
            a(f"v_cvt_pk_bf16_f32 v{100+i}, v{Dd+2*i}, v{Dd+1+2*i}")
        for i in range(10):
            a(f"v_lshlrev_b32 v{X+2*i}, 16, v{100+i}")
            a(f"v_and_b32 v{X+1+2*i}, 0xffff0000, v{100+i}")
        for i in range(10):
            a(f"v_pk_mul_f32 {P(X+2*i)}, {P(X+2*i)}, {P(S+2)} op_sel_hi:[1,0]")
        for i in range(5):
            a(f"v_cvt_pk_bf16_f32 v{100+2*i}, v{X+4*i}, v{X+4*i+1}")
            a(f"v_cvt_pk_bf16_f32 v{101+2*i}, v{X+4*i+2}, v{X+4*i+3}")
            a(f"ds_write_b64 v98, v[{100+2*i}:{101+2*i}] offset:{256*i}")

    def ln_pub_addr(self):
        a = self.a
        a(f"""
        s_mov_b32 s84, s{S_WAVE}
        s_mov_b32 s97, {RSZ - 3*LNRS}
        s_mov_b32 s61, {AUX + UO + UPAD}
        s_lshl_b32 s60, s{S_WAVE}, 1
        v_lshrrev_b32 v2, 5, v0
        v_add_u32 v2, s60, v2
        """)
        self.rowaddr(98, 2, 5)
        a(f"""
        v_and_b32 v3, 31, v0
        v_lshl_add_u32 v98, v3, 3, v98
        s_lshl_b32 s60, s84, 7
        s_add_u32 s61, s61, s60
        v_and_b32 v1, 7, v0
        """)
        self.rowaddr(156, 1, 5)
        a(f"""
        v_lshrrev_b32 v2, 3, v0
        v_lshl_add_u32 v156, v2, 4, v156
        v_lshrrev_b32 v157, 2, v2
        v_and_b32 v5, 3, v2
        v_lshlrev_b32 v157, 10, v157
        v_lshl_add_u32 v157, v5, 8, v157
        v_lshl_add_u32 v157, v1, 4, v157
        v_and_b32 v1, 15, v0
        v_lshrrev_b32 v2, 2, v1
        v_sub_u32 v3, 7, v2
        v_sub_u32 v2, 3, v2
        """)
        self.rowaddr(158, 2, 5)
        self.rowaddr(99, 3, 5)
        a(f"""
        v_and_b32 v1, 3, v0
        v_lshrrev_b32 v2, 4, v0
        v_lshlrev_b32 v1, 3, v1
        v_lshl_add_u32 v1, v2, 5, v1
        v_add_u32 v158, v158, v1
        v_add_u32 v99, v99, v1
        v_lshlrev_b32 v159, 4, v0
        s_lshr_b32 s85, s{S_LID}, 1
        s_mul_i32 s85, s85, 20480
        s_and_b32 s62, s{S_LID}, 1
        s_lshl_b32 s62, s62, 7
        s_add_u32 s85, s85, s62
        s_lshl_b32 s62, s84, 11
        s_add_u32 s85, s85, s62
        s_add_u32 s86, s85, 8192
        s_add_u32 s87, s85, 16384
        s_mul_i32 s88, s{S_LID}, 10240
        s_lshl_b32 s62, s84, 10
        s_add_u32 s88, s88, s62
        s_add_u32 s88, s88, {XT}
        s_add_u32 s89, s88, 4096
        s_add_u32 s90, s88, 6144
        """)

    def ln_publish(self):
        a = self.a
        sc = "" if os.environ.get('V2') else "sc1"
        W = f"s[{R_WS}:{R_WS+3}]"
        l2 = self.L("lnp_xt3"); l3 = self.L("lnp_done")
        a(f"""
        ds_read_b128 v[160:163], v156
        ds_read_b128 v[164:167], v156 offset:512
        ds_read_b128 v[168:171], v156 offset:1024
        ds_read_b64_tr_b16 v[172:173], v99
        ds_read_b64_tr_b16 v[174:175], v158
        ds_read_b64_tr_b16 v[176:177], v99 offset:512
        ds_read_b64_tr_b16 v[178:179], v158 offset:512
        ds_read_b64_tr_b16 v[180:181], v99 offset:768
        ds_read_b64_tr_b16 v[182:183], v158 offset:768
        s_cmp_ge_u32 s84, 2
        s_waitcnt lgkmcnt(7)
        buffer_store_dwordx4 v[160:163], v157, {W}, s85 offen {sc}
        s_waitcnt lgkmcnt(6)
        buffer_store_dwordx4 v[164:167], v157, {W}, s86 offen {sc}
        s_waitcnt lgkmcnt(5)
        s_cbranch_scc1 {l2}
        buffer_store_dwordx4 v[168:171], v157, {W}, s87 offen {sc}
        {l2}:
        """)

    def ln_publish_xt(self):
        a = self.a
        W = f"s[{R_WS}:{R_WS+3}]"
        l3 = self.L("lnp_done")
        a(f"""
        s_cmp_lt_u32 s84, 2
        s_waitcnt lgkmcnt(0)
        buffer_store_dwordx4 v[172:175], v159, {W}, s88 offen sc1
        buffer_store_dwordx4 v[176:179], v159, {W}, s89 offen sc1
        s_cbranch_scc1 {l3}
        buffer_store_dwordx4 v[180:183], v159, {W}, s90 offen sc1
        {l3}:
        """)

    def w2_loads(self):
        a = self.a
        self.srd(R_W, P_W2, 1966080)
        a(f"""
        s_lshr_b32 s91, s43, 1
        s_and_b32 s92, s43, 1
        s_mul_i32 s62, s91, {32*1280}
        s_mul_i32 s63, s92, 640
        s_add_u32 s62, s62, s63
        s_add_u32 s63, s62, 320
        """)
        for i in range(10):
            a(f"""
            v_add_u32 v1, {64*i}, v0
            v_mul_u32_u24 v2, 52429, v1
            v_lshrrev_b32 v2, 20, v2
            v_mul_u32_u24 v3, 20, v2
            v_sub_u32 v3, v1, v3
            v_mul_u32_u24 v2, 1280, v2
            v_lshl_add_u32 v2, v3, 4, v2
            buffer_load_dwordx4 v[{64+4*i}:{67+4*i}], v2, s[{R_W}:{R_W+3}], s62 offen
            buffer_load_dwordx4 v[{104+4*i}:{107+4*i}], v2, s[{R_W}:{R_W+3}], s63 offen
            """)

    def w2_retile(self):
        a = self.a
        sc = "sc1"
        base = AUX + 2 * RSZ
        a(f"""
        v_lshlrev_b32 v6, 4, v0
        v_add_u32 v1, {base}, v6
        v_lshrrev_b32 v2, 4, v0
        v_and_b32 v3, 15, v0
        v_lshrrev_b32 v3, 2, v3
        v_lshl_add_u32 v2, v2, 2, v3
        v_mul_u32_u24 v2, 320, v2
        v_and_b32 v3, 3, v0
        v_lshl_add_u32 v2, v3, 3, v2
        v_add_u32 v2, {base}, v2
        s_mul_i32 s62, s92, {4*245760}
        s_mul_i32 s63, s91, 5120
        s_add_u32 s62, s62, s63
        s_add_u32 s62, s62, {W2F}
        v_add_u32 v7, 4096, v6
        """)
        for half in range(2):
            src = 64 + 40 * half
            fr = 144 + 40 * half
            for i in range(10):
                a(f"ds_write_b128 v1, v[{src+4*i}:{src+3+4*i}] offset:{1024*i}")
            a("s_waitcnt lgkmcnt(4)")
            for nt in range(10):
                d = fr + 4 * nt
                a(f"ds_read_b64_tr_b16 v[{d}:{d+1}], v2 offset:{32*nt}")
                a(f"ds_read_b64_tr_b16 v[{d+2}:{d+3}], v2 offset:{32*nt+16*320}")
                if nt == 4: a("s_waitcnt lgkmcnt(4)")
            a("s_waitcnt lgkmcnt(0)")
            for nt in range(10):
                d = fr + 4 * nt
                cbl = half * 2 + nt // 5
                n5 = nt % 5
                if n5 == 0:
                    a(f"s_add_u32 s63, s62, {cbl*245760}")
                if n5 < 4:
                    a(f"buffer_store_dwordx4 v[{d}:{d+3}], v6, s[{R_WS}:{R_WS+3}], s63 offen offset:{1024*n5} {sc}")
                else:
                    a(f"buffer_store_dwordx4 v[{d}:{d+3}], v7, s[{R_WS}:{R_WS+3}], s63 offen {sc}")

    def lds_set(self, addr_imm, sidx=None, val=1, tmp=(2, 3)):
        a = self.a
        if sidx is None:
            a(f"v_mov_b32 v{tmp[0]}, {addr_imm}")
        else:
            a(f"s_lshl_b32 s60, s{sidx}, 2\ns_add_u32 s60, s60, {addr_imm}\nv_mov_b32 v{tmp[0]}, s60")
        a(f"v_mov_b32 v{tmp[1]}, {val}\nds_write_b32 v{tmp[0]}, v{tmp[1]}")

    def lds_wait_all(self, addr_imm, n, name, tmp=2, sleep=None):
        if sleep is None: sleep = LSLEEP
        a = self.a
        lab = self.L(name); done = self.L(name + "_d")
        t = tmp
        a(f"""
        v_mov_b32 v{t}, {addr_imm}
        s_mov_b32 s61, 0
        {lab}:
        ds_read_b128 v[{t+2}:{t+5}], v{t}
        s_add_u32 s61, s61, 1
        s_waitcnt lgkmcnt(0)
        """)
        for k in range(1, n):
            a(f"v_min_u32 v{t+2}, v{t+2}, v{t+2+k}")
        a(f"""
        v_readfirstlane_b32 s60, v{t+2}
        s_cmp_gt_u32 s61, 0x100000
        s_cbranch_scc1 {done}
        s_cmp_lg_u32 s60, 0
        s_cbranch_scc1 {done}
        {'s_sleep %d' % sleep if sleep else ''}
        s_branch {lab}
        {done}:
        """)

    def get_nonce(self, name, tmp=2):
        self.lds_wait_all(M_NONCE, 1, name, tmp)
        self.a(f"s_mov_b32 s{S_NONCE}, s60")

    def poll_flags(self, name, soff, nlanes, nloads=1, lstride=FSTR, istride=64*FSTR, tmp=2, pre=None):
        a = self.a
        lab = self.L(name); done = self.L(name + "_d")
        t = tmp
        a(f"v_mul_u32_u24 v{t}, {lstride}, v0")
        a(f"s_mov_b64 s[62:63], exec")
        if nlanes < 64:
            a(f"s_lshr_b64 exec, -1, {64-nlanes}")
        a(f"s_mov_b32 s64, 0\n{lab}:")
        for i in range(nloads):
            if i * istride < 4096:
                a(f"buffer_load_dword v{t+1+i}, v{t}, s[{R_WS}:{R_WS+3}], s{soff} offen offset:{i*istride} sc1")
            else:
                a(f"s_add_u32 s65, s{soff}, {i*istride}\nbuffer_load_dword v{t+1+i}, v{t}, s[{R_WS}:{R_WS+3}], s65 offen sc1")
        a("s_add_u32 s64, s64, 1\ns_waitcnt vmcnt(0)")
        for i in range(nloads):
            a(f"v_xor_b32 v{t+1+i}, s{S_NONCE}, v{t+1+i}")
        for i in range(1, nloads):
            a(f"v_or_b32 v{t+1}, v{t+1}, v{t+1+i}")
        a(f"""
        v_cmp_ne_u32 vcc, 0, v{t+1}
        s_cmp_gt_u32 s64, 0x8000
        s_cbranch_scc1 {done}
        s_cbranch_vccz {done}
        {'s_sleep %d' % PSLEEP if PSLEEP else ''}
        s_branch {lab}
        {done}:
        s_mov_b64 exec, s[62:63]
        """)

    def store_flag(self, soff, tmp=2):
        self.a(f"""
        v_mov_b32 v{tmp}, s{S_NONCE}
        s_mov_b64 s[62:63], exec
        s_mov_b64 exec, 1
        buffer_store_dword v{tmp}, off, s[{R_WS}:{R_WS+3}], s{soff} sc1
        s_mov_b64 exec, s[62:63]
        """)

    def w1_addr(self, vr_):
        self.srd(R_W, P_W1, 1966080)
        for ph in range(3):
            self.a(f"""
            v_add_u32 v5, {64*ph}, v0
            v_mul_u32_u24 v6, 43691, v5
            v_lshrrev_b32 v6, 19, v6
            v_mul_u32_u24 v7, 12, v6
            v_sub_u32 v7, v5, v7
            v_lshrrev_b32 v8, 2, v6
            v_and_b32 v8, 2, v8
            v_xor_b32 v7, v7, v8
            v_mul_u32_u24 v6, 3072, v6
            v_lshl_add_u32 v{vr_+ph}, v7, 4, v6
            """)
        self.a(f"s_mul_i32 s69, s{S_CB}, 192")

    def w1_group(self, vr_):
        a = self.a
        a(f"""
        s_mul_i32 s63, s68, {16*3072}
        s_add_u32 s63, s63, s69
        s_mul_i32 m0, s68, 3072
        s_nop 0
        buffer_load_dwordx4 v{vr_}, s[{R_W}:{R_W+3}], s63 offen lds
        s_add_u32 m0, m0, 1024
        s_nop 0
        buffer_load_dwordx4 v{vr_+1}, s[{R_W}:{R_W+3}], s63 offen lds
        s_add_u32 m0, m0, 1024
        s_nop 0
        buffer_load_dwordx4 v{vr_+2}, s[{R_W}:{R_W+3}], s63 offen lds
        """)

    G1_ACC = 16; G1_B = 64; G1_B1 = 64; G1_A = 96
    def g1_b1_loads(self):
        a = self.a
        a(f"""
        v_lshrrev_b32 v5, 4, v0
        v_lshlrev_b32 v5, 3, v5
        s_mul_i32 s60, s{S_CB}, 192
        v_add_u32 v5, s60, v5
        """)
        for t in range(6):
            a(f"global_load_dwordx2 v[{self.G1_B1+2*t}:{self.G1_B1+2*t+1}], v5, s[{P_B1}:{P_B1+1}] offset:{32*t}")

    def acc_init(self, p):
        r = []
        for k in range(2):
            for lt in range(2):
                d = self.G1_ACC + 16 * p + 8 * k + 4 * lt
                s_ = self.G1_B1 + 2 * (2 * p + k)
                r += [f"v_lshlrev_b32 v{d}, 16, v{s_}", f"v_and_b32 v{d+1}, 0xffff0000, v{s_}",
                      f"v_lshlrev_b32 v{d+2}, 16, v{s_+1}", f"v_and_b32 v{d+3}, 0xffff0000, v{s_+1}"]
        return r

    def g1_prep(self):
        a = self.a
        for x in self.acc_init(0) + self.acc_init(1) + self.acc_init(2): a(x)
        a(f"""
        v_lshrrev_b32 v5, 4, v0
        v_and_b32 v6, 15, v0
        v_lshrrev_b32 v6, 2, v6
        v_lshl_add_u32 v6, v5, 3, v6
        v_mul_u32_u24 v6, 192, v6
        v_and_b32 v7, 3, v0
        v_lshl_add_u32 v6, v7, 3, v6
        v_and_b32 v5, 1, v5
        v_lshlrev_b32 v5, 5, v5
        v_add_u32 v10, v6, v5
        v_sub_u32 v11, v6, v5
        s_mul_i32 s60, s{S_CB}, 52
        s_lshr_b32 s60, s60, 8
        s_mul_i32 s60, s60, 5
        s_sub_u32 s85, s{S_CB}, s60
        {'s_mov_b32 s85, 0' if os.environ.get('NOROT') else ''}
        s_mul_i32 s60, s85, {4*6144}
        v_add_u32 v10, s60, v10
        v_add_u32 v11, s60, v11
        s_mov_b32 s84, s85
        s_lshl_b32 s86, s{S_RB}, 3
        s_lshl_b32 s87, s{S_WAVE}, 1
        s_add_u32 s86, s86, s87
        s_mul_i32 s82, s86, 20480
        s_lshl_b32 s60, s85, 12
        s_add_u32 s82, s82, s60
        s_add_u32 s83, s82, 20480
        s_mul_i32 s86, s86, 49152
        s_mul_i32 s87, s{S_CB}, 3072
        s_add_u32 s86, s86, s87
        s_add_u32 s86, s86, {HF}
        s_add_u32 s87, s86, 49152
        """)

    def g1_aload(self, ks):
        r = []
        for lt in range(2):
            d = self.G1_A + 8 * ks + 4 * lt
            ins = [f"buffer_load_dwordx4 v[{d}:{d+3}], v9, s[{R_WS}:{R_WS+3}], s{82+lt} offen offset:{1024*(ks%4)} sc1"]
            if ks % 4 == 3 and ks != 19 and lt == 1:
                ins += ["s_add_u32 s85, s85, 1", "s_cmp_eq_u32 s85, 5", "s_cselect_b32 s60, -16384, 4096" if False else "s_mov_b32 s60, 4096",
                        "s_cselect_b32 s60, -16384, s60", "s_cselect_b32 s85, 0, s85", "s_add_u32 s82, s82, s60", "s_add_u32 s83, s83, s60"]
            r.append((ins, f"A{ks}"))
        return r

    def epi_ops(self, p):
        r = []
        for lt in range(2):
            a0 = self.G1_ACC + 16 * p + 4 * lt; b0 = a0 + 8
            for x in (a0, b0):
                for i in range(4): r.append(([f"v_max_f32 v{x+i}, 0, v{x+i}"], None))
                for i in range(4): r.append(([f"v_mul_f32 v{x+i}, v{x+i}, v{x+i}"], None))
            r.append(([f"v_cvt_pk_bf16_f32 v{a0}, v{a0}, v{a0+1}"], None))
            r.append(([f"v_cvt_pk_bf16_f32 v{a0+1}, v{a0+2}, v{a0+3}"], None))
            r.append(([f"v_cvt_pk_bf16_f32 v{a0+2}, v{b0}, v{b0+1}"], None))
            r.append(([f"v_cvt_pk_bf16_f32 v{a0+3}, v{b0+2}, v{b0+3}"], None))
            r.append(([f"buffer_store_dwordx4 v[{a0}:{a0+3}], v9, s[{R_WS}:{R_WS+3}], s{86+lt} offen offset:{1024*p} sc1"], "S"))
        return r

    def vwait(self, tag):
        vq = self.vq
        assert tag in self.seen or os.environ.get('NOAL'), tag
        idx = [i for i, t in enumerate(vq) if t == tag]
        if not idx: return
        n = len(vq) - 1 - idx[-1]
        self.a(f"s_waitcnt vmcnt({min(n, 63)})"); del vq[:idx[-1] + 1]

    def emit(self, item):
        ins, tag = item
        for x in ins: self.a(x)
        if tag: self.vq.append(tag); self.seen.add(tag)

    def g1_loop(self, N0, events):
        a = self.a
        NF = 8
        def rd(f):
            ks, t = divmod(f, 6)
            base = 10 if t % 2 == 0 else 11
            off = (ks % 4) * 6144 + 32 * t
            d = self.G1_B + 4 * (f % NF)
            pre = ""
            if t == 0 and ks % 4 == 0 and ks > 0:
                pre = f"s_add_u32 s84, s84, 1\ns_cmp_eq_u32 s84, 5\ns_mov_b32 s61, {4*6144}\ns_cselect_b32 s61, {-16*6144}, s61\ns_cselect_b32 s84, 0, s84\nv_add_u32 v10, s61, v10\nv_add_u32 v11, s61, v11\n"
            return [pre + f"ds_read_b64_tr_b16 v[{d}:{d+1}], v{base} offset:{off}", f"ds_read_b64_tr_b16 v[{d+2}:{d+3}], v{base} offset:{off+768}"]
        AH = NF - 1
        for f in range(AH):
            for x in rd(f): a(x)
        fv = []
        for ks in range(20):
            if ks in events:
                extra = events[ks]()
                if extra: fv += extra
            if ks + N0 < 20: fv = self.g1_aload(ks + N0) + fv
            if not os.environ.get('NOAW'): self.vwait(f"A{ks}")
            if os.environ.get('NOAL'): fv = []
            for t in range(6):
                f = 6 * ks + t
                nxt = rd(f + AH) if f + AH < 120 else []
                if t % 2 == 0:
                    a(f"s_waitcnt lgkmcnt({max(0, 2 * (min(f + AH, 120) - f - 2))})")
                for lt in range(2):
                    acc = self.G1_ACC + 8 * t + 4 * lt
                    A = self.G1_A + 8 * ks + 4 * lt
                    B = self.G1_B + 4 * (f % NF)
                    a(f"v_mfma_f32_16x16x32_bf16 v[{acc}:{acc+3}], v[{B}:{B+3}], v[{A}:{A+3}], v[{acc}:{acc+3}]")
                    if nxt and not os.environ.get('NODS'): a(nxt.pop(0))
                    if fv and lt == 1 and t in (0, 2, 4): self.emit(fv.pop(0))
        for it in fv: self.emit(it)

    KP = 44
    def kg_loads(self):
        a = self.a
        a(f"""
        s_sub_u32 s70, s{S_WAVE}, 4
        s_add_u32 s71, s{S_CH0}, s70
        s_mul_i32 s60, s71, 384
        v_lshlrev_b32 v2, 1, v0
        v_add_u32 v2, s60, v2
        s_lshl_b32 s60, s71, 1
        v_mov_b32 v3, s60
        """)
        for p in range(3):
            for k, P in enumerate((P_LA, P_AI, P_CR, P_CI)):
                a(f"global_load_ushort v{self.KP+4*p+k}, v2, s[{P}:{P+1}] offset:{128*p}")
        a(f"global_load_ushort v56, v3, s[{P_DT}:{P_DT+1}]")
        a(f"global_load_ushort v57, v3, s[{P_DS}:{P_DS+1}]")

    def cmul(self, d, x, y):
        return [f"v_pk_mul_f32 v[{d}:{d+1}], v[{x}:{x+1}], v[{y}:{y+1}] op_sel:[0,0] op_sel_hi:[0,1]",
                f"v_pk_fma_f32 v[{d}:{d+1}], v[{x}:{x+1}], v[{y}:{y+1}], v[{d}:{d+1}] op_sel:[1,1,0] op_sel_hi:[1,0,1] neg_lo:[0,1,0]"]

    def kgen(self, hook=None):
        a = self.a
        KP = self.KP
        Z, Z8, W = 60, 62, 64
        F = 66
        F2 = 82
        G = 98
        CV = 102
        SV = 110
        GF, TA, TB = 120, 136, 152
        ACC = 168
        VW, VR, VW2 = 10, 11, 9
        TOFF = 4352
        a(f"""
        s_mul_i32 s72, s70, {RSZ}
        s_add_u32 s72, s72, {AUX}
        v_lshrrev_b32 v2, 2, v0
        v_mul_u32_u24 v2, 272, v2
        v_and_b32 v3, 3, v0
        v_lshl_add_u32 v2, v3, 2, v2
        v_add_u32 v{VW}, s72, v2
        v_add_u32 v{VW2}, {TOFF}, v{VW}
        v_lshrrev_b32 v2, 4, v0
        v_mul_u32_u24 v2, 272, v2
        v_and_b32 v3, 15, v0
        v_lshl_add_u32 v2, v3, 4, v2
        v_add_u32 v{VR}, s72, v2
        v_lshlrev_b32 v56, 16, v56
        v_mul_f32 v56, {LOG2E}, v56
        v_exp_f32 v56, v56
        v_lshlrev_b32 v57, 16, v57
        v_cvt_pk_bf16_f32 v56, v56, v56
        v_and_b32 v56, 0xffff0000, v56
        v_add_f32 v58, v56, v56
        v_mov_b32 v59, 0x3f80
        s_mov_b32 s73, 3
        """)
        for i in range(12): a(f"v_mov_b32 v{ACC+i}, 0")
        loop = self.L("kg_loop")
        a(f"{loop}:")
        if hook: hook()
        a(f"""
        v_lshlrev_b32 v2, 16, v{KP}
        v_mul_f32 v2, {LOG2E}, v2
        v_exp_f32 v2, v2
        v_lshlrev_b32 v3, 16, v{KP+1}
        v_lshlrev_b32 v{F}, 16, v{KP+2}
        v_cvt_pk_bf16_f32 v2, v2, v2
        v_lshlrev_b32 v{F+1}, 16, v{KP+3}
        v_and_b32 v2, 0xffff0000, v2
        v_mul_f32 v3, v3, v56
        v_mul_f32 v2, v2, v56
        v_pk_mul_f32 v[{F}:{F+1}], v[{F}:{F+1}], v[58:59] op_sel_hi:[1,0]
        v_mul_f32 v3, {INV2PI}, v3
        v_mul_f32 v2, 0xbfb8aa3b, v2
        """)
        for k in range(8): a(f"v_mov_b32 v{KP+k}, v{KP+4+k}")
        a(f"""
        v_mul_f32 v4, 0x41000000, v2
        v_mul_f32 v5, 0x41000000, v3
        v_mul_f32 v6, 0x43000000, v2
        v_mul_f32 v7, 0x43000000, v3
        v_fract_f32 v3, v3
        v_fract_f32 v5, v5
        v_fract_f32 v7, v7
        v_exp_f32 v2, v2
        v_exp_f32 v4, v4
        v_exp_f32 v6, v6
        v_cos_f32 v{Z}, v3
        v_sin_f32 v{Z+1}, v3
        v_cos_f32 v{Z8}, v5
        v_sin_f32 v{Z8+1}, v5
        v_cos_f32 v{W}, v7
        v_sin_f32 v{W+1}, v7
        v_pk_mul_f32 v[{Z}:{Z+1}], v[{Z}:{Z+1}], v[2:3] op_sel_hi:[1,0]
        v_pk_mul_f32 v[{Z8}:{Z8+1}], v[{Z8}:{Z8+1}], v[4:5] op_sel_hi:[1,0]
        v_pk_mul_f32 v[{W}:{W+1}], v[{W}:{W+1}], v[6:7] op_sel_hi:[1,0]
        """)
        cvn = [0]
        class Out:
            def __init__(o, base, neg, pool): o.base = base; o.neg = neg; o.pend = None; o.pool = pool; o.n = 0
            def put(o, src, row, reg=None):
                r = []
                if reg is None:
                    reg = CV + 4 * o.pool + o.n % 4; o.n += 1
                    r.append(f"v_cvt_pk_bf16_f32 v{reg}, v{src}, {'-' if o.neg else ''}v{src+1}")
                if o.pend is None: o.pend = (reg, row)
                else:
                    r.append(f"ds_write2_b32 v{o.base}, v{o.pend[0]}, v{reg} offset0:{4*o.pend[1]} offset1:{4*row}")
                    o.pend = None
                return r
        def merge(*streams):
            streams = [list(s) for s in streams]
            out = []
            while any(streams):
                for s in streams:
                    if s: out.append(s.pop(0))
            return out
        og = Out(VW, False, 0); of = Out(VW2, True, 1); oc0 = Out(VW2, True, 0); oc1 = Out(VW2, True, 1); ot = Out(VW2, True, 0)
        gs = og.put(None, 0, 59) + og.put(Z8, 1)
        prev = Z8
        for j in range(2, 16):
            d = G + 2 * (j % 2)
            gs += self.cmul(d, prev, Z8) + og.put(d, j)
            prev = d
        fs = of.put(F, 0)
        for r in range(1, 8):
            fs += self.cmul(F + 2 * r, F + 2 * (r - 1), Z) + of.put(F + 2 * r, r)
        for r in range(8):
            fs += self.cmul(F2 + 2 * r, F + 2 * r, W) + of.put(F2 + 2 * r, 8 + r)
        for ins in merge(gs, fs): a(ins)
        for ks in range(4):
            a(f"ds_read_b128 v[{GF+4*ks}:{GF+4*ks+3}], v{VR} offset:{1088*ks}")
            a(f"ds_read_b128 v[{TA+4*ks}:{TA+4*ks+3}], v{VR} offset:{TOFF+1088*ks}")
        s1 = []
        for i in range(4):
            s1.append(self.cmul(F + 2 * i, F2 + 4 * i, W) + [f"v_cvt_pk_bf16_f32 v{SV+i}, v{F+2*i}, -v{F+2*i+1}"]
                      + self.cmul(F + 8 + 2 * i, F + 2 * i, W) + [f"v_cvt_pk_bf16_f32 v{SV+4+i}, v{F+8+2*i}, -v{F+8+2*i+1}"])
        for ins in merge(*s1): a(ins)
        a("s_waitcnt lgkmcnt(0)")
        mf0 = [f"v_mfma_f32_16x16x32_bf16 v[{ACC}:{ACC+3}], v[{TA+4*ks}:{TA+4*ks+3}], v[{GF+4*ks}:{GF+4*ks+3}], v[{ACC}:{ACC+3}]" for ks in range(4)]
        c0 = []; prev = F + 8
        for i in range(12):
            d = F2 + 2 * (i % 2)
            row = i if i < 4 else i + 4
            c0 += self.cmul(d, prev, W) + oc0.put(d, row)
            prev = d
        last = prev
        c1 = []; prev = F + 12
        for i in range(4):
            d = F2 + 4 + 2 * (i % 2)
            c1 += self.cmul(d, prev, W) + oc1.put(d, 4 + i)
            prev = d
        for ins in merge(c0, c1, mf0): a(ins)
        for ks in range(4):
            a(f"ds_read_b128 v[{TB+4*ks}:{TB+4*ks+3}], v{VR} offset:{TOFF+1088*ks}")
        for ins in self.cmul(F2 + 8, last, W): a(ins)
        for i in range(8):
            for ins in ot.put(None, i, SV + i): a(ins)
        a(f"v_cvt_pk_bf16_f32 v{CV}, v{F2+8}, -v{F2+9}\nds_write_b32 v{VW2}, v{CV} offset:128")
        for ks in range(4):
            a(f"ds_read_b128 v[{TA+4*ks}:{TA+4*ks+3}], v{VR} offset:{TOFF+1088*ks}")
        a("s_waitcnt lgkmcnt(9)")
        for ks in range(4):
            a(f"v_mfma_f32_16x16x32_bf16 v[{ACC+4}:{ACC+7}], v[{TB+4*ks}:{TB+4*ks+3}], v[{GF+4*ks}:{GF+4*ks+3}], v[{ACC+4}:{ACC+7}]")
        a("s_sub_u32 s73, s73, 1\ns_cmp_lg_u32 s73, 0\ns_waitcnt lgkmcnt(0)")
        for ks in range(4):
            a(f"v_mfma_f32_16x16x32_bf16 v[{ACC+8}:{ACC+11}], v[{TA+4*ks}:{TA+4*ks+3}], v[{GF+4*ks}:{GF+4*ks+3}], v[{ACC+8}:{ACC+11}]")
        a(f"s_cbranch_scc1 {loop}")
        self.KACC = ACC

    def expand(self):
        a = self.a
        ACC = self.KACC
        T0, T1, T2 = ACC, ACC + 4, ACC + 8
        a(f"""
        v_and_b32 v2, 15, v0
        v_lshrrev_b32 v3, 4, v0
        v_lshlrev_b32 v4, 3, v2
        v_lshlrev_b32 v5, 2, v3
        v_add_u32 v5, 512, v5
        v_lshlrev_b32 v6, 9, v3
        v_cmp_gt_u32 vcc, 2, v3
        v_cndmask_b32 v5, v6, v5, vcc
        v_add_u32 v5, v5, v4
        v_cndmask_b32 v6, 4, 2, vcc
        v_and_b32 v7, 1, v2
        v_cndmask_b32 v7, v7, v3, vcc
        v_cndmask_b32 v8, 8, 0, vcc
        s_add_u32 s60, s72, 32
        v_sub_u32 v9, v5, v6
        v_lshl_add_u32 v12, v9, 1, s60
        v_add_u32 v13, v12, v8
        v_add_u32 v9, v5, v6
        v_sub_u32 v9, v9, v7
        v_lshl_add_u32 v14, v9, 1, s60
        v_sub_u32 v9, v5, v6
        v_add_u32 v9, v9, v7
        v_lshl_add_u32 v15, v9, 1, s60
        v_add_u32 v15, {K1O-2}, v15
        v_cmp_eq_u32 vcc, 32, v0
        v_add_u32 v9, 4, v15
        v_cndmask_b32 v16, v15, v9, vcc
        v_add_u32 v17, {K1O}, v12
        v_add_u32 v18, {K1O}, v13
        """)
        for i in range(4):
            a(f"v_cvt_pk_bf16_f32 v{20+i}, v{T1+i}, v{T1+i}")
        for i in range(4):
            a(f"ds_write2_b32 v12, v{20+i}, v{20+i} offset0:{64*i} offset1:{64*i+1}")
            a(f"ds_write2_b32 v13, v{20+i}, v{20+i} offset0:{64*i} offset1:{64*i+1}")
            a(f"ds_write2_b32 v17, v{20+i}, v{20+i} offset0:{64*i} offset1:{64*i+1}")
            a(f"ds_write2_b32 v18, v{20+i}, v{20+i} offset0:{64*i} offset1:{64*i+1}")
        for i in range(4):
            a(f"ds_write_b16 v14, v{20+i} offset:{256*i}")
            a(f"ds_write_b16 v{16 if i == 0 else 15}, v{20+i} offset:{256*i}")
        a(f"""
        v_lshlrev_b32 v5, 7, v3
        v_add3_u32 v5, v5, v4, v4
        v_lshlrev_b32 v6, 7, v3
        v_add_u32 v5, v5, v6
        v_add_u32 v5, s60, v5
        v_add_u32 v5, 512, v5
        v_cvt_pk_bf16_f32 v24, v{T2}, v{T2}
        v_cvt_pk_bf16_f32 v25, v{T2}, v{T2+1}
        v_cvt_pk_bf16_f32 v26, v{T2+2}, v{T2+2}
        v_cvt_pk_bf16_f32 v27, v{T2+2}, v{T2+3}
        v_cvt_pk_bf16_f32 v28, v{T2+1}, v{T2+2}
        v_add_u32 v6, {K1O-4}, v5
        v_add_u32 v7, -2, v5
        s_mov_b32 exec_hi, 0
        ds_write2_b32 v5, v24, v28 offset0:0 offset1:1
        ds_write_b32 v5, v26 offset:8
        ds_write_b16_d16_hi v5, v27 offset:12
        ds_write_b16 v7, v24
        ds_write2_b32 v6, v24, v25 offset0:0 offset1:1
        ds_write2_b32 v6, v26, v27 offset0:2 offset1:3
        s_mov_b64 exec, -1
        s_add_u32 s61, s60, {2*2044}
        v_mov_b32 v6, s61
        v_add_u32 v7, {K1O-2}, v6
        v_add_u32 v8, {K1O}, v6
        s_mov_b32 exec_lo, 0
        s_mov_b32 exec_hi, 1
        ds_write2_b32 v6, v24, v24 offset0:0 offset1:1
        ds_write2_b32 v8, v24, v24 offset0:0 offset1:1
        ds_write_b16 v7, v24
        s_mov_b64 exec, -1
        """)
        a(f"""
        v_and_b32 v5, 1, v3
        v_lshlrev_b32 v5, 3, v5
        v_lshrrev_b32 v6, 1, v3
        v_lshl_add_u32 v5, v6, 8, v5
        v_add3_u32 v5, v5, v4, v4
        v_add_u32 v5, s60, v5
        s_mov_b64 exec, 1
        v_add_f32 v{T0}, v{T0}, v57
        s_mov_b64 exec, -1
        v_cvt_pk_bf16_f32 v24, v{T0}, v{T0+1}
        v_cvt_pk_bf16_f32 v25, v{T0+2}, v{T0+3}
        v_cvt_pk_bf16_f32 v26, v{T0+1}, v{T0+2}
        v_add_u32 v6, {K1O-2}, v5
        v_mov_b32 v28, 0
        v_mov_b32 v29, 0
        v_lshlrev_b32 v7, 3, v0
        v_add_u32 v7, s72, v7
        s_mov_b64 exec, 15
        ds_write_b64 v7, v[28:29]
        ds_write_b64 v7, v[28:29] offset:{K1O}
        s_lshr_b64 exec, -1, 4
        ds_write_b64 v7, v[28:29] offset:{UO}
        s_mov_b64 exec, -1
        ds_write_b64 v5, v[24:25]
        ds_write_b16 v6, v24
        ds_write_b32 v5, v26 offset:{K1O}
        ds_write_b16_d16_hi v6, v25 offset:6
        """)

    def u_gather(self):
        a = self.a
        sc = "sc1" if self.fused else ""
        a(f"""
        v_lshrrev_b32 v2, 2, v0
        v_and_b32 v3, 3, v0
        v_mul_u32_u24 v4, 10240, v2
        v_lshl_add_u32 v4, v3, 4, v4
        s_lshl_b32 s60, s{S_CH0}, 4
        s_add_u32 s60, s60, {XT}
        v_mul_u32_u24 v5, {RSZ}, v3
        v_lshl_add_u32 v5, v2, 4, v5
        v_add_u32 v5, {AUX+UO+UPAD}, v5
        v_cmp_gt_u32 vcc, s{S_NCH}, v3
        s_mov_b64 s[62:63], exec
        s_and_b64 exec, exec, vcc
        """)
        for i in range(16):
            a(f"buffer_load_dwordx4 v[{40+4*i}:{43+4*i}], v4, s[{R_WS}:{R_WS+3}], s60 offen {sc}")
            if i < 15: a(f"s_add_u32 s60, s60, {16*10240}")
        for i in range(16):
            a(f"s_waitcnt vmcnt({14-i})" if i < 15 else "s_nop 7")
            a(f"ds_write_b128 v5, v[{40+4*i}:{43+4*i}] offset:{256*i}")
        a("s_mov_b64 exec, s[62:63]\ns_waitcnt lgkmcnt(0)")

    def conv(self):
        a = self.a
        sc = "sc1" if self.fused else ""
        ACC = 60; OP = [92, 156]
        AB = 12
        a(f"""
        v_and_b32 v2, 15, v0
        v_lshrrev_b32 v3, 4, v0
        v_lshlrev_b32 v4, 3, v3
        v_sub_u32 v4, v2, v4
        v_add_u32 v4, {233+16-224}, v4
        v_and_b32 v5, 1, v2
        v_and_b32 v4, -2, v4
        v_lshlrev_b32 v4, 1, v4
        v_cmp_eq_u32 vcc, 0, v5
        v_mov_b32 v6, {K1O}
        v_cndmask_b32 v5, 0, v6, vcc
        v_add3_u32 v{AB}, v4, v5, s72
        v_add_u32 v{AB+1}, 1024, v{AB}
        v_add_u32 v{AB+2}, 2048, v{AB}
        v_add_u32 v{AB+3}, 3072, v{AB}
        v_lshlrev_b32 v4, 5, v2
        v_lshl_add_u32 v4, v3, 4, v4
        s_add_u32 s60, s72, {UO}
        v_add_u32 v16, s60, v4
        """)
        for i in range(32): a(f"v_mov_b32 v{ACC+i}, 0")
        def reads(tau):
            s = OP[tau % 2]
            r = []
            for d in range(8):
                r.append(f"ds_read_b128 v[{s+32+4*d}:{s+35+4*d}], v16 offset:{512*d+64*tau}")
                o = 512 * d - 64 * tau + 448
                b = AB + o // 1024; q = (o % 1024) // 4
                r.append(f"ds_read2_b32 v[{s+4*d}:{s+4*d+1}], v{b} offset0:{q} offset1:{q+1}")
                r.append(f"ds_read2_b32 v[{s+4*d+2}:{s+4*d+3}], v{b} offset0:{q+2} offset1:{q+3}")
            return r
        r0 = reads(0)
        for k, ins in enumerate(r0):
            a(ins)
            if k == 12: a("s_waitcnt lgkmcnt(3)")
        for tau in range(8):
            s = OP[tau % 2]
            nxt = reads(tau + 1) if tau < 7 else []
            pairs = sorted([(d, n) for d in range(8) for n in range(8 - d)], key=lambda p: (max(p), p))
            a("s_waitcnt lgkmcnt(0)")
            for k, (d, n) in enumerate(pairs):
                acc = ACC + 4 * (d + n)
                a(f"v_mfma_f32_16x16x32_bf16 v[{acc}:{acc+3}], v[{s+4*d}:{s+4*d+3}], v[{s+32+4*n}:{s+35+4*n}], v[{acc}:{acc+3}]")
                if nxt and k < 30 and k % 5 != 4:
                    a(nxt.pop(0))
            assert not nxt
        a(f"""
        v_lshlrev_b32 v5, 5, v2
        v_lshl_add_u32 v5, v3, 3, v5
        s_lshl_b32 s61, s71, 12
        s_add_u32 s61, s61, {ST}
        """)
        for n in range(8):
            acc = ACC + 4 * n; o = 128 + 2 * n
            a(f"""
            v_cvt_pk_bf16_f32 v{o}, v{acc}, v{acc+1}
            v_cvt_pk_bf16_f32 v{o+1}, v{acc+2}, v{acc+3}
            buffer_store_dwordx2 v[{o}:{o+1}], v5, s[{R_WS}:{R_WS+3}], s61 offen offset:{512*n} {sc}
            """)

    G2_ACC = 16; G2_RB = 96; G2_BT = 156; G2_A = 176
    def g2_addr(self):
        self.a(f"""
        v_lshlrev_b32 v9, 4, v0
        v_add_u32 v8, 4096, v9
        s_mul_i32 s74, s{S_CB2}, 245760
        s_mul_i32 s60, s{S_WAVE}, {12*5120}
        s_add_u32 s74, s74, s60
        s_add_u32 s74, s74, {W2F}
        s_mul_i32 s75, s{S_WAVE}, 30720
        """)
    @staticmethod
    def kloc(j):
        return j

    @staticmethod
    def lslot(j):
        q = j if j < 6 else j - 9
        return q * 5120

    def g2_dma_items(self, j):
        W = f"s[{R_WS}:{R_WS+3}]"
        l0 = self.lslot(j)
        r = []
        for nt in range(5):
            pre = [f"s_add_u32 s81, s74, {5120*self.kloc(j)}"] if nt == 0 else []
            if nt < 4: r.append((pre + [f"s_add_u32 m0, s75, {l0}", f"buffer_load_dwordx4 v9, {W}, s81 offen offset:{1024*nt} sc1 lds"], f"D{j}"))
            else: r.append(([f"s_add_u32 m0, s75, {l0+4096}", f"buffer_load_dwordx4 v8, {W}, s81 offen sc1 lds"], f"D{j}"))
        return r

    def g2_bload_items(self, j):
        W = f"s[{R_WS}:{R_WS+3}]"
        r = []
        for nt in range(5):
            d = self.G2_RB + 20 * (j % 3) + 4 * nt
            pre = [f"s_add_u32 s81, s74, {5120*self.kloc(j)}"] if nt == 0 else []
            if nt < 4: r.append((pre + [f"buffer_load_dwordx4 v[{d}:{d+3}], v9, {W}, s81 offen offset:{1024*nt} sc1"], f"B{j}"))
            else: r.append(([f"buffer_load_dwordx4 v[{d}:{d+3}], v8, {W}, s81 offen sc1"], f"B{j}"))
        return r

    def g2_aload_items(self, j):
        W = f"s[{R_WS}:{R_WS+3}]"
        k = self.kloc(j)
        vo = (9, 8, 13)[k // 4]
        r = []
        for i in range(4):
            d = self.G2_A + 16 * (j % 5) + 4 * i
            r.append(([f"buffer_load_dwordx4 v[{d}:{d+3}], v{vo}, {W}, s{76+i} offen offset:{1024*(k%4)} sc1"], f"A{j}"))
        return r

    def g2_setup_s(self):
        a = self.a
        for i in range(4):
            a(f"""
            s_add_u32 s60, s{S_WAVE}, {i}
            s_and_b32 s60, s60, 3
            s_lshl_b32 s61, s{S_RB2}, 2
            s_add_u32 s60, s60, s61
            s_mul_i32 s60, s60, 49152
            s_mul_i32 s61, s{S_WAVE}, {12*1024}
            s_add_u32 s60, s60, s61
            s_add_u32 s{76+i}, s60, {HF}
            """)
    def g2_setup_v(self):
        a = self.a
        self.seen = {t for t in self.seen if not t.startswith("A")}
        a(f"v_add_u32 v10, s75, v9\nv_add_u32 v13, 8192, v9")

    def fh_wait(self, tp):
        self.a(f"s_lshl_b32 s66, s{S_WAVE}, 4\ns_add_u32 s66, s66, {M_FH + 64*tp}")
        self.lds_wait_all("s66", 1, f"fhw{tp}", tmp=2)

    def g2_loop(self, hook=None, hook_at=6, fill0=None):
        a = self.a
        def bt_read(j, nt):
            d = self.G2_BT + 4 * nt
            off = self.lslot(j) + 1024 * nt
            a(f"ds_read_b128 v[{d}:{d+3}], v10 offset:{off}")
        sched = {j: [j + 5] for j in range(7)}
        fill = list(fill0 or [])
        self.vwait("D0")
        for nt in range(5): bt_read(0, nt)
        for j in range(12):
            inreg = 6 <= j < 9
            nxt_l = j + 1 < 12 and not (6 <= j + 1 < 9)
            if hook and j == hook_at: hook()
            self.stamp(16 + j, q=True)
            self.vwait(f"A{j}")
            if inreg: self.vwait(f"B{j}")
            if nxt_l: self.vwait(f"D{j+1}")
            for nt in range(5):
                if inreg:
                    B = self.G2_RB + 20 * (j % 3) + 4 * nt
                else:
                    B = self.G2_BT + 4 * nt
                    a(f"s_waitcnt lgkmcnt({4 if nxt_l else 4-nt})")
                for i in range(4):
                    acc = self.G2_ACC + 16 * nt + 4 * i
                    A = self.G2_A + 16 * (j % 5) + 4 * i
                    a(f"v_mfma_f32_16x16x32_bf16 v[{acc}:{acc+3}], v[{B}:{B+3}], v[{A}:{A+3}], {'0' if j == 0 else f'v[{acc}:{acc+3}]'}")
                    if fill and i in (0, 2): self.emit(fill.pop(0))
                if nxt_l: bt_read(j + 1, nt)
            pri = []
            for jj in sched.get(j, []):
                pri += self.g2_aload_items(jj)
            if pri and pri[0][1] == f"A{j+1}":
                for it in pri[:4]: self.emit(it)
                pri = pri[4:]
            fill = pri + fill
            if j < 3: fill += self.g2_dma_items(j + 9)
        assert not fill

    FX = 96; FB = 106
    def svc_x_loads(self):
        a = self.a
        a(f"""
        s_mul_i32 s60, s{S_RB2}, {64*1280}
        s_mul_i32 s61, s{S_CB2}, 160
        s_add_u32 s60, s60, s61
        """)
        for i in range(10):
            a(f"""
            v_add_u32 v2, {64*i}, v0
            v_mul_u32_u24 v3, 52429, v2
            v_lshrrev_b32 v3, 19, v3
            v_mul_u32_u24 v4, 10, v3
            v_sub_u32 v4, v2, v4
            v_lshlrev_b32 v4, 4, v4
            v_mad_u32_u24 v{184+i}, v3, s97, v4
            v_mul_u32_u24 v3, 1280, v3
            v_add_u32 v3, v3, v4
            buffer_load_dwordx4 v[{140+4*i}:{143+4*i}], v3, s[{R_X}:{R_X+3}], s60 offen
            """.replace("s97", "s67") if False else f"""
            v_add_u32 v2, {64*i}, v0
            v_mul_u32_u24 v3, 52429, v2
            v_lshrrev_b32 v3, 19, v3
            v_mul_u32_u24 v4, 10, v3
            v_sub_u32 v4, v2, v4
            v_lshlrev_b32 v4, 4, v4
            v_mul_u32_u24 v5, {XRS}, v3
            v_add_u32 v{184+i}, v5, v4
            v_mul_u32_u24 v3, 1280, v3
            v_add_u32 v3, v3, v4
            buffer_load_dwordx4 v[{140+4*i}:{143+4*i}], v3, s[{R_X}:{R_X+3}], s60 offen
            """)
        a(f"""
        v_min_u32 v2, 39, v0
        v_lshlrev_b32 v2, 2, v2
        v_add_u32 v2, s61, v2
        global_load_dword v180, v2, s[{P_B2}:{P_B2+1}]
        """)

    def svc_x_write(self):
        a = self.a
        for i in range(10):
            a(f"v_add_u32 v{184+i}, {XI}, v{184+i}")
        for i in range(10):
            a(f"ds_write_b128 v{184+i}, v[{140+4*i}:{143+4*i}]")
        a(f"""
        v_lshlrev_b32 v182, 16, v180
        v_and_b32 v183, 0xffff0000, v180
        v_min_u32 v2, 39, v0
        v_lshlrev_b32 v2, 3, v2
        v_add_u32 v2, {M_B2}, v2
        ds_write_b64 v2, v[182:183]
        """)

    def s_tile_dma(self):
        a = self.a
        sc = "sc1" if self.fused else ""
        a(f"""
        v_lshrrev_b32 v2, 3, v0
        v_and_b32 v3, 7, v0
        v_lshlrev_b32 v2, 12, v2
        v_lshl_add_u32 v2, v3, 4, v2
        s_mul_i32 s60, s{S_CB2}, {80*4096}
        s_lshl_b32 s61, s{S_RB2}, 7
        s_add_u32 s60, s60, s61
        s_add_u32 s60, s60, {ST}
        """)
        for t in range(10):
            a(f"s_mov_b32 m0, {AUX+1024*t}")
            a(f"buffer_load_dwordx4 v2, s[{R_WS}:{R_WS+3}], s60 offen {sc} lds")
            if t < 9: a(f"s_add_u32 s60, s60, {8*4096}")
        self.svc_x_write()
        a("s_waitcnt vmcnt(0) lgkmcnt(0)")

    def g2_final(self):
        a = self.a
        ACC = self.G2_ACC
        self.srd(R_OUT, P_OUT, 2621440)
        for i in range(1, 4):
            for nt in range(5):
                acc = ACC + 16 * nt + 4 * i
                a(f"ds_write_b128 v10, v[{acc}:{acc+3}] offset:{5120*(i-1)+1024*nt}")
        for i in range(1, 4):
            a(f"""
            s_sub_u32 s60, s{S_WAVE}, {i}
            s_and_b32 s60, s60, 3
            s_mul_i32 s60, s60, 30720
            s_add_u32 s60, s60, {5120*(i-1)}
            v_add_u32 v{4+i}, s60, v9
            """)
        a(f"""
        v_and_b32 v2, 15, v0
        v_lshrrev_b32 v3, 4, v0
        v_lshrrev_b32 v12, 2, v2
        v_lshl_add_u32 v12, v3, 2, v12
        v_lshlrev_b32 v12, 7, v12
        v_and_b32 v15, 3, v0
        v_lshl_add_u32 v12, v15, 3, v12
        s_lshl_b32 s60, s{S_WAVE}, 5
        s_add_u32 s60, s60, {AUX}
        v_add_u32 v12, s60, v12
        s_mul_i32 s60, s{S_WAVE}, {16*XRS}
        s_add_u32 s60, s60, {XI}
        v_mul_u32_u24 v11, {XRS}, v2
        v_lshl_add_u32 v11, v3, 3, v11
        v_add_u32 v11, s60, v11
        v_lshlrev_b32 v13, 4, v3
        v_add_u32 v13, {M_B2}, v13
        v_mov_b32 v250, 1.0
        v_mov_b32 v251, 1.0
        v_mov_b32 v252, 0xbfb8aa3b
        s_lshl_b32 s80, s{S_RB2}, 2
        s_add_u32 s80, s80, s{S_WAVE}
        s_mul_i32 s80, s80, {16*1280}
        s_mul_i32 s61, s{S_CB2}, 160
        s_add_u32 s80, s80, s61
        """)
        for i in range(3):
            a(f"""
            v_add_u32 v2, {64*i}, v0
            v_mul_u32_u24 v3, 52429, v2
            v_lshrrev_b32 v3, 19, v3
            v_mul_u32_u24 v4, 10, v3
            v_sub_u32 v4, v2, v4
            v_lshlrev_b32 v4, 4, v4
            v_mul_u32_u24 v2, {XRS}, v3
            v_add3_u32 v{240+i}, v2, v4, s60
            v_mul_u32_u24 v3, 1280, v3
            v_add_u32 v{243+i}, v3, v4
            """)
        a("s_waitcnt lgkmcnt(0)\ns_barrier")
        P = 96
        def reads(nt):
            p = P + 20 * nt
            for i in range(1, 4):
                a(f"ds_read_b128 v[{p+4*(i-1)}:{p+4*(i-1)+3}], v{4+i} offset:{1024*nt}")
            a(f"ds_read_b128 v[{p+12}:{p+15}], v13 offset:{64*nt}")
            a(f"ds_read_b64_tr_b16 v[{p+16}:{p+17}], v12 offset:{2048*nt}")
            a(f"ds_read_b64 v[{p+18}:{p+19}], v11 offset:{32*nt}")
        reads(0); reads(1)
        Pp = lambda r: f"v[{r}:{r+1}]"
        for nt in range(5):
            acc = ACC + 16 * nt; p = P + 20 * nt; t = 200 + 12 * (nt % 2)
            a(f"s_waitcnt lgkmcnt({6 if nt < 4 else 1})" if nt != 0 else "s_waitcnt lgkmcnt(6)")
            a(f"""
            v_pk_add_f32 {Pp(acc)}, {Pp(acc)}, {Pp(p)}
            v_pk_add_f32 {Pp(acc+2)}, {Pp(acc+2)}, {Pp(p+2)}
            v_pk_add_f32 {Pp(p+4)}, {Pp(p+4)}, {Pp(p+8)}
            v_pk_add_f32 {Pp(p+6)}, {Pp(p+6)}, {Pp(p+10)}
            v_pk_add_f32 {Pp(acc)}, {Pp(acc)}, {Pp(p+12)}
            v_pk_add_f32 {Pp(acc+2)}, {Pp(acc+2)}, {Pp(p+14)}
            v_pk_add_f32 {Pp(acc)}, {Pp(acc)}, {Pp(p+4)}
            v_pk_add_f32 {Pp(acc+2)}, {Pp(acc+2)}, {Pp(p+6)}
            v_pk_mul_f32 {Pp(t)}, {Pp(acc)}, v[252:253] op_sel_hi:[1,0]
            v_pk_mul_f32 {Pp(t+2)}, {Pp(acc+2)}, v[252:253] op_sel_hi:[1,0]
            """)
            for i in range(4): a(f"v_exp_f32 v{t+i}, v{t+i}")
            if nt + 2 < 5: reads(nt + 2)
            a(f"""
            v_lshlrev_b32 v{t+4}, 16, v{p+16}
            v_and_b32 v{t+5}, 0xffff0000, v{p+16}
            v_lshlrev_b32 v{t+6}, 16, v{p+17}
            v_and_b32 v{t+7}, 0xffff0000, v{p+17}
            v_pk_add_f32 {Pp(t)}, {Pp(t)}, v[250:251]
            v_pk_add_f32 {Pp(t+2)}, {Pp(t+2)}, v[250:251]
            """)
            for i in range(4): a(f"v_rcp_f32 v{t+i}, v{t+i}")
            a(f"""
            v_pk_mul_f32 {Pp(t+4)}, {Pp(t+4)}, {Pp(acc)}
            v_pk_mul_f32 {Pp(t+6)}, {Pp(t+6)}, {Pp(acc+2)}
            v_lshlrev_b32 v{t+8}, 16, v{p+18}
            v_and_b32 v{t+9}, 0xffff0000, v{p+18}
            v_lshlrev_b32 v{t+10}, 16, v{p+19}
            v_and_b32 v{t+11}, 0xffff0000, v{p+19}
            v_pk_fma_f32 {Pp(t+8)}, {Pp(t+4)}, {Pp(t)}, {Pp(t+8)}
            v_pk_fma_f32 {Pp(t+10)}, {Pp(t+6)}, {Pp(t+2)}, {Pp(t+10)}
            v_cvt_pk_bf16_f32 v{p+18}, v{t+8}, v{t+9}
            v_cvt_pk_bf16_f32 v{p+19}, v{t+10}, v{t+11}
            ds_write_b64 v11, v[{p+18}:{p+19}] offset:{32*nt}
            """)
        osc = os.environ.get('OSC', '')
        a(f"""
        ds_read_b128 v[224:227], v240
        ds_read_b128 v[228:231], v241
        s_mov_b32 exec_hi, 0
        ds_read_b128 v[232:235], v242
        s_mov_b64 exec, -1
        s_waitcnt lgkmcnt(1)
        buffer_store_dwordx4 v[224:227], v243, s[{R_OUT}:{R_OUT+3}], s80 offen {osc}
        s_waitcnt lgkmcnt(0)
        buffer_store_dwordx4 v[228:231], v244, s[{R_OUT}:{R_OUT+3}], s80 offen {osc}
        s_mov_b32 exec_hi, 0
        buffer_store_dwordx4 v[232:235], v245, s[{R_OUT}:{R_OUT+3}], s80 offen {osc}
        s_mov_b64 exec, -1
        """)

    def misc_init(self):
        self.a(f"""
        v_lshlrev_b32 v2, 2, v0
        v_add_u32 v2, {MISC}, v2
        v_mov_b32 v3, 0
        ds_write_b32 v2, v3
        """)


HEADER = open("cdna_kernels/" + NAME + ".s.ref").read().split("; Override launch")[0]

def kernel_text(label, body):
    return f""".text
.globl {label}
.p2align 8
.type {label},@function
{label}:
{body}
"""
def desc(label, vgpr=256):
    return f""".section .rodata,"a"
.p2align 6
.amdhsa_kernel {label}
  .amdhsa_next_free_vgpr {vgpr}
  .amdhsa_next_free_sgpr 102
  .amdhsa_accum_offset {vgpr}
  .amdhsa_group_segment_fixed_size 0
  .amdhsa_kernarg_size 120
  .amdhsa_user_sgpr_count 2
  .amdhsa_user_sgpr_kernarg_segment_ptr 1
  .amdhsa_system_sgpr_workgroup_id_x 1
.end_amdhsa_kernel
"""
```

```python
import sys, os
from parts import *
E = lambda k, d=0: int(os.environ.get(k, d))

class Fused(Gen):
    def cnt_add(self, addr, rtn=False):
        self.a(f"""
        v_mov_b32 v2, {addr}
        v_mov_b32 v3, 1
        s_mov_b64 exec, 1
        {'ds_add_rtn_u32 v4, v2, v3' if rtn else 'ds_add_u32 v2, v3'}
        s_mov_b64 exec, -1
        """)

    def cnt_wait(self, addr, n, name, sleep=0):
        lab = self.L(name)
        self.a(f"""
        v_mov_b32 v2, {addr}
        s_mov_b32 s61, 0
        {lab}:
        ds_read_b32 v3, v2
        s_add_u32 s61, s61, 1
        s_waitcnt lgkmcnt(0)
        v_readfirstlane_b32 s60, v3
        s_cmp_gt_u32 s61, 0x100000
        s_cbranch_scc1 {lab}_d
        s_cmp_ge_u32 s60, {n}
        s_cbranch_scc1 {lab}_d
        {'s_sleep %d' % sleep if sleep else ''}
        s_branch {lab}
        {lab}_d:
        """)

    def build_fused(self):
        a = self.a
        L = self.L
        st = 2 if self.stamps else 0
        N0 = E('N0', 8)
        slp = ('s_sleep %d' % PSLEEP) if PSLEEP else ''
        GE = E('GE', 1); NA = E('NA', 0); GL = E('GL', 0); GS = 40 - 4 * GE - 3 * NA - 3 * GL
        def aux_dma(p):
            if NA == 0: return
            self.w1_addr(12)
            a(f"s_add_u32 s68, s70, {GS}\n{L('adl' + p)}:")
            self.w1_group(12)
            a(f"s_add_u32 s68, s68, 3\ns_cmp_lt_u32 s68, {GS + 3 * NA}\ns_cbranch_scc1 {L('adl' + p)}")
        a(f"{L('start')}:")
        self.prologue()
        self.stamp(0)
        if 0 in self.sel:
            a(f"v_mov_b32 v1, s94\ns_mov_b64 exec, 1\nbuffer_store_dword v1, off, s[{R_WS}:{R_WS+3}], s100 offset:124\ns_mov_b64 exec, -1")
        a(f"s_cmp_ge_u32 s{S_WAVE}, 4\ns_cbranch_scc1 {L('aux0')}")
        a(f"s_setprio {E('GP', 2)}")
        self.ln_loads()
        a(f"s_branch {L('gemm')}\n{L('aux0')}:")
        a.clear_hist()
        a(f"s_sub_u32 s60, s{S_WAVE}, 4\ns_cmp_ge_u32 s60, s{S_NCH}\ns_cbranch_scc1 {L('aux1')}")
        self.kg_loads()
        a(f"s_branch {L('kg')}\n{L('aux1')}:")
        a(f"s_cmp_lg_u32 s{S_WAVE}, 7\ns_cbranch_scc1 {L('noch')}")
        a(f"s_setprio {E('SP', 1)}")
        self.w1_addr(12)
        a(f"""
        s_mul_i32 s68, s{S_RB}, {GS}
        s_lshr_b32 s68, s68, 4
        s_mov_b32 s67, {GS}
        {L('sdl')}:
        """)
        self.w1_group(12)
        a(f"""
        s_add_u32 s68, s68, 1
        s_cmp_eq_u32 s68, {GS}
        s_cselect_b32 s68, 0, s68
        s_cmp_lg_u32 s67, {GS - 1}
        s_cbranch_scc1 {L('sdw')}
        """)
        self.srd(R_OUT, P_OUT, 2621440)
        a(f"""
        v_lshlrev_b32 v3, 20, v0
        s_mov_b32 exec_hi, 0
        buffer_load_dword v131, v3, s[{R_WS}:{R_WS+3}], 0 offen
        buffer_load_dword v132, v3, s[{R_OUT}:{R_OUT+3}], 0 offen
        s_mov_b64 exec, -1
        {L('sdw')}:
        s_sub_u32 s67, s67, 1
        s_cmp_lg_u32 s67, 0
        s_waitcnt vmcnt({E('DEPTH', 45)})
        s_cbranch_scc1 {L('sdl')}
        s_branch {L('svc')}
        {L('gemm')}:
        """)
        a.clear_hist()
        self.w1_addr(92)
        self.g1_b1_loads()
        a(f"s_add_u32 s68, s{S_WAVE}, {GS + 3 * NA}")
        for i in range(GE):
            self.w1_group(92)
            if i + 1 < GE: a("s_add_u32 s68, s68, 4")
        self.ln_pub_addr()
        a(f"s_waitcnt vmcnt({6 + 3 * GE})")
        self.stamp(1)
        self.ln_math()
        a("s_waitcnt lgkmcnt(0)")
        self.lds_set(M_LNW, S_WAVE, tmp=(2, 3))
        self.lds_wait_all(M_LNW, 4, "lnw4", tmp=2, sleep=0)
        a(f"v_mov_b32 v97, 0\nv_mov_b32 v96, 0\ns_cmp_lg_u32 s{S_WAVE}, 0\ns_cbranch_scc1 {L('g_n0')}")
        a(f"global_load_dword v96, v97, s[{P_DBG}:{P_DBG+1}] sc1\n{L('g_n0')}:")
        self.ln_publish()
        self.ln_publish_xt()
        self.stamp(13)
        self.cnt_add(M_LNCNT + 8)
        a("s_waitcnt vmcnt(5)" if 13 not in self.sel else "s_waitcnt vmcnt(6)")
        self.cnt_add(M_LNCNT + 12)
        self.g1_prep()
        self.g2_addr()
        a("s_waitcnt vmcnt(0)")
        self.stamp(2)
        a(f"s_cmp_eq_u32 s{S_WAVE}, 0\ns_cbranch_scc1 {L('g_w0')}")
        self.cnt_add(M_LNCNT)
        if GL:
            a(f"s_add_u32 s68, s{S_WAVE}, {40 - 3 * GL - 1}")
            for i in range(GL):
                self.w1_group(92)
                if i + 1 < GL: a("s_add_u32 s68, s68, 3")
            a("s_waitcnt vmcnt(0)")
            self.cnt_add(M_LNCNT + 12)
        a(f"s_branch {L('g_j')}\n{L('g_w0')}:")
        a(f"""
        s_mov_b32 s64, 0
        {L('np')}:
        v_readfirstlane_b32 s{S_NONCE}, v96
        s_cmp_gt_u32 s64, 0x8000
        s_cbranch_scc1 {L('npd')}
        s_cmp_lg_u32 s{S_NONCE}, 0
        s_cbranch_scc1 {L('npd')}
        global_load_dword v96, v97, s[{P_DBG}:{P_DBG+1}] sc1
        s_add_u32 s64, s64, 1
        s_waitcnt vmcnt(0)
        s_nop 1
        s_branch {L('np')}
        {L('npd')}:
        v_mov_b32 v2, s{S_NONCE}
        v_mov_b32 v3, {M_NONCE}
        ds_write_b32 v3, v2
        v_mov_b32 v3, {M_LNCNT}
        s_mov_b32 s64, 0
        {L('lc')}:
        ds_read_b32 v2, v3
        s_add_u32 s64, s64, 1
        s_waitcnt lgkmcnt(0)
        v_readfirstlane_b32 s60, v2
        s_cmp_gt_u32 s64, 0x100000
        s_cbranch_scc1 {L('lcd')}
        s_cmp_lt_u32 s60, 3
        s_cbranch_scc1 {L('lc')}
        {L('lcd')}:
        s_mul_i32 s66, s{S_LID}, {FSTR}
        s_add_u32 s66, s66, {FLN}
        """)
        self.store_flag(66)
        self.stamp(10)
        a(f"s_mul_i32 s66, s{S_RB}, {16*FSTR}\ns_add_u32 s66, s66, {FLN}")
        self.poll_flags("pln", 66, 16)
        self.lds_set(M_LN, None, tmp=(2, 3))
        a(f"s_cmp_lg_u32 s{S_RB}, s{S_CB}\ns_cbranch_scc1 {L('g_j')}\ns_mul_i32 s66, s{S_RB}, {FSTR}\ns_add_u32 s66, s66, {FL2}")
        self.store_flag(66)
        a(f"{L('g_j')}:")
        self.lds_wait_all(M_LN, 1, "lnw", tmp=2)
        self.stamp(3)
        self.vq = []
        for ks in range(N0):
            for it in self.g1_aload(ks): self.emit(it)
        self.lds_set(M_LN + 4, None, tmp=(2, 3))
        self.get_nonce("gn", tmp=2)
        self.cnt_wait(M_LNCNT + 12, 5 + (3 if NA else 0) + (3 if GL else 0), "w1w")
        self.stamp(4, q=True)
        self.pubn = ''
        def publish(p):
            self.vwait("S")
            self.cnt_add(M_HC + 4 * p, rtn=True)
            a(f"""
            s_mul_i32 s66, s{S_LID}, {FHS}
            s_add_u32 s66, s66, {FH + 256 * FHS * p}
            s_waitcnt lgkmcnt(0)
            s_nop 1
            v_readfirstlane_b32 s60, v4
            s_cmp_lg_u32 s60, 3
            s_cbranch_scc1 {L('nofh%d%s' % (p, self.pubn))}
            """)
            self.store_flag(66)
            if p == 0: self.lds_set(M_HP, None, tmp=(2, 3))
            a(f"{L('nofh%d%s' % (p, self.pubn))}:")
            self.stamp(28 + p, q=True)
            self.vq.append("f")
            self.vq.pop()
        def cnt_wait(addr, n, name):
            lab = L(name)
            a(f"""
            v_mov_b32 v2, {addr}
            s_mov_b32 s61, 0
            {lab}:
            ds_read_b32 v3, v2
            s_add_u32 s61, s61, 1
            s_waitcnt lgkmcnt(0)
            v_readfirstlane_b32 s60, v3
            s_cmp_gt_u32 s61, 0x100000
            s_cbranch_scc1 {lab}_d
            s_cmp_lt_u32 s60, {n}
            s_cbranch_scc1 {lab}
            {lab}_d:
            """)
        def ev_rb():
            self.lds_wait_all(M_FW, 1, "fww", tmp=2)
            return sum((self.g2_bload_items(j) for j in range(6, 9)), [])
        ev = {10: lambda: self.stamp(14, q=True)}
        RB1 = E('RB1', 13)
        if RB1 < 20: ev[RB1] = ev_rb
        self.g2_setup_s()
        self.g1_loop(N0, ev)
        self.cnt_add(M_PD)
        self.stamp(5, q=True)
        for p in range(3):
            for it in self.epi_ops(p): self.emit(it)
        self.stamp(15, q=True)
        rest = ev_rb() if RB1 >= 20 else []
        cnt_wait(M_PD, 4, "pdw")
        self.g2_setup_v()
        ND = E('ND', 2)
        for j in range(ND):
            for it in self.g2_dma_items(j): self.emit(it)
        publish(0)
        if E('PF'): a("s_setprio 0")
        for j in range(ND, 6):
            for it in self.g2_dma_items(j): self.emit(it)
        for it in rest: self.emit(it)
        self.stamp(6, q=True)
        self.fh_wait(0)
        for j in range(5):
            for it in self.g2_aload_items(j): self.emit(it)
        self.stamp(7, q=True)
        self.g2_loop(hook=lambda: self.lds_set(M_J6, None, tmp=(2, 3)), hook_at=E('J6', 6))
        self.stamp(8)
        if E('PF'): a("s_setprio 2")
        self.g2_final()
        if 9 in self.sel: a("s_waitcnt vmcnt(0)")
        self.stamp(9)
        if E('KX'):
            a(f"""
            s_waitcnt vmcnt(0)
            s_memrealtime s[62:63]
            s_waitcnt lgkmcnt(0)
            s_sub_u32 s60, s62, s{S_NONCE}
            s_min_u32 s60, s60, 10000
            s_mul_i32 s60, s60, {E('KX')}
            {L('kx')}:
            s_memrealtime s[62:63]
            s_waitcnt lgkmcnt(0)
            s_sub_u32 s61, s62, s{S_NONCE}
            s_cmp_lt_u32 s61, s60
            s_cbranch_scc1 {L('kx')}
            """)
        self.dg_end(0)
        self.role = 'c'
        a(f"s_endpgm\n{L('kg')}:")
        a.clear_hist()
        aux_dma("a")
        a(f"s_waitcnt vmcnt({3 * NA})")
        self.stamp(1)
        if E('X1'):
            self.get_nonce("x1n", tmp=2)
            self.lds_set(M_CD, 70, tmp=(2, 3))
            a(f"s_mul_i32 s66, s71, {FSTR}\ns_add_u32 s66, s66, {FS}")
            self.store_flag(66)
            a("s_endpgm")
        def khook():
            a(f"s_cmp_lg_u32 s73, 2\ns_cbranch_scc1 {L('kh')}\ns_waitcnt vmcnt(0)")
            self.cnt_add(M_LNCNT + 12)
            a(f"{L('kh')}:")
        self.kgen(hook=khook if NA else None)
        self.stamp(3)
        self.expand()
        self.stamp(2)
        self.get_nonce("cn", tmp=2)
        self.lds_wait_all(M_U, 1, "uw", tmp=2)
        self.stamp(4)
        if E('CW'):
            lab = L("cw")
            a(f"""
            v_mov_b32 v2, {M_PD + 4 * (E('CW') - 1)}
            s_mov_b32 s61, 0
            {lab}:
            ds_read_b32 v3, v2
            s_add_u32 s61, s61, 1
            s_waitcnt lgkmcnt(0)
            v_readfirstlane_b32 s60, v3
            s_cmp_gt_u32 s61, 0x100000
            s_cbranch_scc1 {lab}_d
            s_cmp_ge_u32 s60, 4
            s_cbranch_scc1 {lab}_d
            s_sleep 2
            s_branch {lab}
            {lab}_d:
            """)
        if E('PF'): a("s_setprio 1")
        self.conv()
        self.lds_set(M_CD, 70, tmp=(2, 3))
        self.stamp(5)
        a(f"s_mul_i32 s66, s71, {FSTR}\ns_add_u32 s66, s66, {FS}\ns_waitcnt vmcnt(0)")
        self.store_flag(66)
        self.stamp(6)
        a(f"s_endpgm\n{L('noch')}:")
        a.clear_hist()
        a(f"s_sub_u32 s70, s{S_WAVE}, 4")
        aux_dma("b")
        a(f"s_cmp_eq_u32 s{S_WAVE}, 6\ns_cbranch_scc1 {L('rt')}\ns_waitcnt vmcnt(0)")
        if NA: self.cnt_add(M_LNCNT + 12)
        a(f"s_endpgm\n{L('rt')}:")
        self.w2_loads()
        a("s_waitcnt vmcnt(0)")
        if NA: self.cnt_add(M_LNCNT + 12)
        self.cnt_wait(M_LNCNT + 8, 4, "rtw", sleep=2)
        a("s_setprio 3")
        self.w2_retile()
        a(f"""
        v_mov_b32 v3, 0
        s_mov_b32 s64, 0
        {L('wn')}:
        global_load_dword v2, v3, s[{P_DBG}:{P_DBG+1}] sc1
        s_add_u32 s64, s64, 1
        s_waitcnt vmcnt(0)
        s_nop 1
        v_readfirstlane_b32 s{S_NONCE}, v2
        s_cmp_gt_u32 s64, 0x8000
        s_cbranch_scc1 {L('wnd')}
        s_cmp_eq_u32 s{S_NONCE}, 0
        s_cbranch_scc1 {L('wn')}
        {L('wnd')}:
        """)
        a(f"s_mul_i32 s66, s43, {FSTR}\ns_add_u32 s66, s66, {FW}\ns_waitcnt vmcnt(0)")
        self.store_flag(66)
        self.stamp(7)
        a(f"s_endpgm\n{L('svc')}:")
        a.clear_hist()
        self.role = 's'
        a("s_waitcnt vmcnt(0)")
        self.cnt_add(M_LNCNT + 12)
        a("s_setprio 3")
        self.stamp(2)
        self.get_nonce("sn", tmp=2)
        def fwp():
            a(f"s_lshr_b32 s66, s{S_CB2}, 2\ns_mul_i32 s66, s66, {FSTR}\ns_add_u32 s66, s66, {FW}")
            if E('L2P', 0):
                a(f"s_mov_b32 s66, {FW}")
                self.poll_flags("pfw", 66, 48, nloads=2, istride=48*FSTR)
            else:
                self.poll_flags("pfw", 66, 48, lstride=2*FSTR)
            self.lds_set(M_FW, None, tmp=(2, 3))
            if E('L2P', 0):
                a(f"s_mul_i32 s60, s{S_IDX}, {480*128}\ns_add_u32 s60, s60, {W2F}\nv_lshlrev_b32 v2, 7, v0")
                for i in range(8):
                    if i == 7: a("s_mov_b32 exec_hi, 0")
                    a(f"buffer_load_dword v{200+i}, v2, s[{R_WS}:{R_WS+3}], s60 offen sc1\ns_add_u32 s60, s60, 8192")
                a("s_mov_b64 exec, -1")
            self.stamp(5)
        if E('SW', 1) == 1: self.lds_wait_all(M_LN, 1, "slw", tmp=2)
        fwp()
        a(f"s_cmp_eq_u32 s{S_NCH}, 0\ns_cbranch_scc1 {L('nou')}\ns_mov_b32 s66, {FL2}")
        self.poll_flags("pla", 66, 16)
        self.stamp(3)
        self.u_gather()
        self.lds_set(M_U, None, tmp=(2, 3))
        a(f"{L('nou')}:")
        self.stamp(4)
        self.svc_x_loads()
        self.lds_wait_all(M_HP, 1, "hpw", tmp=2)
        a(f"""
        s_lshr_b32 s66, s{S_RB2}, 1
        s_mul_i32 s66, s66, {16*FHS}
        s_add_u32 s66, s66, {FH}
        v_and_b32 v2, 15, v0
        v_mul_u32_u24 v2, {FHS}, v2
        v_lshrrev_b32 v3, 4, v0
        v_lshl_add_u32 v2, v3, {(256 * FHS).bit_length() - 1}, v2
        v_lshlrev_b32 v4, 2, v0
        v_add_u32 v4, {M_FH}, v4
        s_mov_b64 exec, 0xffff
        s_mov_b32 s64, 0
        {L('pfh')}:
        buffer_load_dword v3, v2, s[{R_WS}:{R_WS+3}], s66 offen sc1
        s_add_u32 s64, s64, 1
        s_waitcnt vmcnt(0)
        v_cmp_eq_u32 vcc, s{S_NONCE}, v3
        v_cndmask_b32 v3, 0, 1, vcc
        v_and_b32_dpp v3, v3, v3 quad_perm:[1,0,3,2] row_mask:0xf bank_mask:0xf
        v_and_b32_dpp v3, v3, v3 quad_perm:[2,3,0,1] row_mask:0xf bank_mask:0xf
        ds_write_b32 v4, v3
        s_cmp_gt_u32 s64, 0x8000
        s_cbranch_scc1 {L('pfhx')}
        s_cmp_eq_u64 vcc, exec
        s_cbranch_scc1 {L('pfhd')}
        s_sleep {E('HSLEEP', 4)}
        s_branch {L('pfh')}
        {L('pfhx')}:
        v_mov_b32 v3, 1
        ds_write_b32 v4, v3
        {L('pfhd')}:
        s_mov_b64 exec, -1
        """)
        self.stamp(6)
        self.lds_wait_all(M_J6, 1, "j6w", tmp=2)
        a(f"s_mul_i32 s66, s{S_CB2}, {80*FSTR}\ns_add_u32 s66, s66, {FS}")
        self.poll_flags("pfs", 66, 40, nloads=2, istride=40*FSTR)
        a(f"s_cmp_eq_u32 s{S_NCH}, 0\ns_cbranch_scc1 {L('nocd')}")
        self.lds_wait_all(M_CD, 2, "cdw", tmp=2)
        a(f"{L('nocd')}:")
        self.stamp(7)
        self.s_tile_dma()
        self.stamp(8)
        a("s_barrier")
        self.dg_end(7)
        a(f"{L('end')}:\ns_endpgm")

if __name__ == "__main__":
    path = sys.argv[1]
    opts = sys.argv[2:]
    g = Fused("fused", "stamps" in opts)
    g.sel = set(range(32)) if "stamps" in opts else ({0, 9} | {int(x) for x in os.environ.get("SEL", "").split(",") if x} if "mins" in opts else set())
    g.build_fused()
    lab = NAME + "_kernel"
    txt = HEADER + f"; @launch grid=(256,1,1) block=(512,1,1) lds={LDS_TOTAL}\n" + '.amdgcn_target "amdgcn-amd-amdhsa--gfx950"\n' + kernel_text(lab, g.a.text()) + desc(lab)
    if E('X4'):
        import re
        txt = re.sub(r"(buffer_load_dwordx4 .*?) sc1", r"\1", txt)
    if E('X2'):
        txt = "\n".join(("    s_nop 0" if ("s81 offen" in l) else l) for l in txt.split("\n"))
    open(path, "w").write(txt)
```

```python
import sys
from asmlib import Asm, vr, sr

NAME = "recurrent_scan__ssm_conv_s4d__dense_activation_squared_relu__prompt"
XF = 0x0; XT = 0x280000; HF = 0x500000; W2F = 0xB00000; ST = 0xD00000
FLG = 0xF80000; STAMP = 0x1000000; WS_SIZE = 0x1100000
import os
FSTR = int(os.environ.get('FSTR','128'))
PSLEEP = int(os.environ.get('PSLEEP','0'))
LSLEEP = int(os.environ.get('LSLEEP','0'))
FHS = int(os.environ.get('FHS','128'))
FLN = FLG; FH = FLG + 0x8000; FW = FLG + 0x20000; FS = FLG + 0x24000; FL2 = FLG + 0x40000
AUX = 122880; RSZ = 12896; K1O = 4160; UO = 8320; UPAD = 480
MISC = AUX + 3 * RSZ
LDS_TOTAL = 163840
M_LNCNT = MISC; M_W1 = MISC + 16; M_G1D = MISC + 32; M_U = MISC + 48; M_NONCE = MISC + 112
M_LNR = MISC + 80; M_LN = MISC + 192; M_LNW = MISC + 240; M_J6 = MISC + 208; M_HP = MISC + 224; M_FW = MISC + 64; M_HCNT = MISC + 68; M_FH = MISC + 256; M_PD = MISC + 128; M_HC = MISC + 144; M_CD = MISC + 96
LNRS = 1296
LNIMG = 122880 - 10752
IMG = [0, 40960, 81920]
XRS = 176; XI = AUX + RSZ; M_B2 = MISC + 512
P_X, P_LA, P_AI, P_CR, P_CI, P_DT, P_DS = 4, 6, 8, 10, 12, 14, 16
P_W1, P_B1, P_W2, P_B2, P_OUT, P_DBG, P_WS = 20, 22, 24, 26, 28, 30, 32
S_WAVE, S_XCD, S_IDX, S_RB, S_CB, S_RB2, S_CB2, S_NCH, S_CH0 = 34, 35, 36, 37, 38, 39, 40, 41, 42
R_WS, R_X, R_W, R_OUT = 44, 48, 52, 56
S_NONCE = 96
S_LID = 93
LOG2E = 0x3fb8aa3b
INV2PI = 0x3e22f983

class Gen:
    def __init__(self, mode, stamps=False):
        self.a = Asm()
        self.mode = mode
        self.fused = mode == "fused"
        self.stamps = stamps
        self.sel = set()
        self.role = 'g'
        self.seen = set()
        self.pfx = mode

    def L(self, n):
        return f"{self.pfx}_{n}"

    def stamp(self, slot, q=False):
        if os.environ.get('DGP') and (self.role, slot) == (os.environ['DGP'][0], int(os.environ['DGP'][1:])):
            self.a('s_memrealtime s[72:73]\ns_waitcnt lgkmcnt(0)')
        if slot not in self.sel: return
        if q: self.vq += ['st']
        a = self.a
        a(f"""
        s_memrealtime s[98:99]
        s_lshl_b32 s100, s2, 3
        s_add_u32 s100, s100, s{S_WAVE}
        s_lshl_b32 s100, s100, 7
        s_add_u32 s100, s100, {STAMP + slot*4}
        s_waitcnt lgkmcnt(0)
        v_mov_b32 v1, s98
        s_mov_b64 s[98:99], exec
        s_mov_b64 exec, 1
        buffer_store_dword v1, off, s[{R_WS}:{R_WS+3}], s100
        s_mov_b64 exec, s[98:99]
        """)

    def dg_end(self, wave):
        if not os.environ.get('DGP') or os.environ['DGP'][0] != self.role: return
        lab = self.L('dg' + self.role)
        self.a(f"""
        s_cmp_lg_u32 s2, 0
        s_cbranch_scc1 {lab}_d
        s_cmp_lg_u32 s{S_WAVE}, {wave}
        s_cbranch_scc1 {lab}_d
        s_sub_u32 s60, s72, s94
        s_min_u32 s60, s60, 3000
        s_mul_i32 s60, s60, 5
        s_memrealtime s[62:63]
        s_waitcnt lgkmcnt(0)
        s_mov_b32 s64, s62
        {lab}:
        s_memrealtime s[62:63]
        s_waitcnt lgkmcnt(0)
        s_sub_u32 s61, s62, s64
        s_cmp_lt_u32 s61, s60
        s_cbranch_scc1 {lab}
        {lab}_d:
        """)

    def srd(self, r, p, size):
        self.a(f"""
        s_mov_b32 s{r}, s{p}
        s_and_b32 s{r+1}, s{p+1}, 0xffff
        s_mov_b32 s{r+2}, {size}
        s_mov_b32 s{r+3}, 0x00020000
        """)

    def prologue(self):
        a = self.a
        a(f"""
        s_load_dwordx16 s[4:19], s[0:1], 0
        s_load_dwordx8 s[20:27], s[0:1], 64
        s_load_dwordx4 s[28:31], s[0:1], 96
        s_load_dwordx2 s[32:33], s[0:1], 112
        s_memrealtime s[94:95]
        s_cmp_ge_u32 s2, 256
        s_cbranch_scc1 {self.L('end')}
        v_lshrrev_b32 v1, 6, v0
        v_and_b32 v0, 63, v0
        s_and_b32 s{S_XCD}, s2, 7
        v_readfirstlane_b32 s{S_WAVE}, v1
        s_lshr_b32 s{S_IDX}, s2, 3
        s_getpc_b64 s[62:63]
        {self.L('pc')}:
        s_cmp_lg_u32 s{S_WAVE}, 7
        s_cbranch_scc1 {self.L('nopf')}
        s_and_b32 s60, s{S_IDX}, 7
        s_lshl_b32 s60, s60, 12
        v_lshlrev_b32 v2, 7, v0
        v_add_u32 v2, s60, v2
        v_min_u32 v2, {self.L('end')}-{self.L('pc')}, v2
        s_mov_b32 exec_hi, 0
        global_load_dword v130, v2, s[62:63]
        s_mov_b32 exec_hi, -1
        {self.L('nopf')}:
        s_and_b32 s60, s{S_XCD}, 3
        s_lshl_b32 s60, s60, 2
        s_and_b32 s61, s{S_IDX}, 3
        s_add_u32 s{S_RB}, s60, s61
        s_lshr_b32 s60, s{S_XCD}, 2
        s_lshl_b32 s60, s60, 3
        s_lshr_b32 s{S_CB2}, s{S_IDX}, 2
        s_add_u32 s{S_CB}, s60, s{S_CB2}
        s_lshl_b32 s60, s{S_XCD}, 2
        s_add_u32 s{S_RB2}, s60, s61
        ; conv channels: g = idx/3, pos = idx%3
        s_mul_i32 s60, s{S_IDX}, 43
        s_lshr_b32 s60, s60, 7
        s_mul_i32 s61, s60, 3
        s_sub_u32 s61, s{S_IDX}, s61
        s_mul_i32 s62, s{S_XCD}, 80
        s_lshl_b32 s63, s60, 3
        s_add_u32 s62, s62, s63
        s_mul_i32 s63, s61, 3
        s_add_u32 s{S_CH0}, s62, s63
        s_cmp_eq_u32 s61, 2
        s_cselect_b32 s{S_NCH}, 2, 3
        s_cmp_ge_u32 s{S_IDX}, 30
        s_cselect_b32 s{S_NCH}, 0, s{S_NCH}
        s_sub_u32 s61, s{S_IDX}, 20
        s_cselect_b32 s60, s61, s60
        """)
        a.lines.pop(); a.lines.pop()
        a(f"""
        s_sub_u32 s61, s{S_IDX}, 20
        s_cmp_ge_u32 s{S_IDX}, 30
        s_cselect_b32 s60, s61, s60
        s_mul_i32 s61, s{S_XCD}, 12
        s_add_u32 s43, s61, s60
        s_lshl_b32 s{S_LID}, s{S_RB}, 4
        s_add_u32 s{S_LID}, s{S_LID}, s{S_CB}
        v_lshlrev_b32 v2, 3, v0
        v_add_u32 v2, {MISC}, v2
        v_mov_b32 v4, 0
        v_mov_b32 v5, 0
        ds_write_b64 v2, v[4:5]
        s_cmp_eq_u32 s{S_WAVE}, 7
        s_cselect_b32 s60, s2, 1
        s_cmp_lg_u32 s60, 0
        s_waitcnt lgkmcnt(0)
        s_cbranch_scc1 {self.L('nonce0')}
        s_or_b32 s61, s94, 1
        v_mov_b32 v2, s61
        s_mov_b64 exec, 1
        global_store_dword v4, v2, s[{P_DBG}:{P_DBG+1}] sc1
        s_mov_b64 exec, -1
        {self.L('nonce0')}:
        s_barrier
        """)
        if os.environ.get('WSOFF'):
            a(f"s_add_u32 s{P_WS}, s{P_WS}, {int(os.environ['WSOFF'],0)}\ns_addc_u32 s{P_WS+1}, s{P_WS+1}, 0")
        self.srd(R_WS, P_WS, WS_SIZE)
        self.srd(R_X, P_X, 2621440)

    def rowaddr(self, dst, row, t):
        self.a(f"""
        v_mul_u32_u24 v{t}, 11, v{row}
        v_lshrrev_b32 v{t}, 5, v{t}
        v_mul_u32_u24 v{dst}, {LNRS}, v{row}
        v_mad_u32_u24 v{dst}, v{t}, s97, v{dst}
        v_lshrrev_b32 v{t}, 1, v{t}
        v_mul_u32_u24 v{t}, 1440, v{t}
        v_add3_u32 v{dst}, v{dst}, v{t}, s61
        """)

    def ln_loads(self):
        a = self.a
        a(f"""
        s_lshl_b32 s60, s{S_LID}, 3
        s_lshl_b32 s61, s{S_WAVE}, 1
        s_add_u32 s60, s60, s61
        s_mul_i32 s60, s60, 1280
        v_lshrrev_b32 v2, 5, v0
        v_and_b32 v3, 31, v0
        v_mul_u32_u24 v1, 1280, v2
        v_lshl_add_u32 v1, v3, 3, v1
        """)
        for i in range(5):
            a(f"buffer_load_dwordx2 v[{100+2*i}:{101+2*i}], v1, s[{R_X}:{R_X+3}], s60 offen offset:{256*i}")

    def reduce32(self, v, t):
        a = self.a
        a(f"""
        v_add_f32_dpp v{v}, v{v}, v{v} quad_perm:[1,0,3,2] row_mask:0xf bank_mask:0xf
        v_add_f32_dpp v{v}, v{v}, v{v} quad_perm:[2,3,0,1] row_mask:0xf bank_mask:0xf
        v_add_f32_dpp v{v}, v{v}, v{v} row_half_mirror row_mask:0xf bank_mask:0xf
        v_add_f32_dpp v{v}, v{v}, v{v} row_mirror row_mask:0xf bank_mask:0xf
        v_mov_b32 v{t}, v{v}
        v_permlane16_swap_b32 v{v}, v{t}
        v_add_f32 v{v}, v{v}, v{t}
        """)

    def ln_math(self):
        a = self.a
        X = 110; Dd = 130; S = 150
        for i in range(10):
            a(f"v_lshlrev_b32 v{X+2*i}, 16, v{100+i}")
            a(f"v_and_b32 v{X+1+2*i}, 0xffff0000, v{100+i}")
        P = lambda r: f"v[{r}:{r+1}]"
        a(f"v_pk_add_f32 {P(S)}, {P(X)}, {P(X+2)}\nv_pk_add_f32 {P(S+2)}, {P(X+4)}, {P(X+6)}")
        for i in range(4, 10):
            a(f"v_pk_add_f32 {P(S+2*(i%2))}, {P(S+2*(i%2))}, {P(X+2*i)}")
        a(f"v_pk_add_f32 {P(S)}, {P(S)}, {P(S+2)}\nv_add_f32 v{S}, v{S}, v{S+1}")
        self.reduce32(S, S + 1)
        a(f"v_mul_f32 v{S+4}, 0x3acccccd, v{S}")
        for i in range(10):
            a(f"v_pk_add_f32 {P(Dd+2*i)}, {P(X+2*i)}, {P(S+4)} op_sel_hi:[1,0] neg_lo:[0,1] neg_hi:[0,1]")
        a(f"v_pk_mul_f32 {P(S)}, {P(Dd)}, {P(Dd)}\nv_pk_mul_f32 {P(S+2)}, {P(Dd+2)}, {P(Dd+2)}")
        for i in range(2, 10):
            a(f"v_pk_fma_f32 {P(S+2*(i%2))}, {P(Dd+2*i)}, {P(Dd+2*i)}, {P(S+2*(i%2))}")
        a(f"v_pk_add_f32 {P(S)}, {P(S)}, {P(S+2)}\nv_add_f32 v{S}, v{S}, v{S+1}")
        self.reduce32(S, S + 1)
        a(f"""
        v_mul_f32 v{S+5}, 0x3acccccd, v{S}
        v_cvt_pk_bf16_f32 v{S}, v{S+4}, v{S+5}
        v_lshlrev_b32 v{S+4}, 16, v{S}
        v_and_b32 v{S+2}, 0xffff0000, v{S}
        v_add_f32 v{S+2}, 0x3727c5ac, v{S+2}
        v_cvt_pk_bf16_f32 v{S+2}, v{S+2}, v{S+2}
        v_and_b32 v{S+2}, 0xffff0000, v{S+2}
        v_sqrt_f32 v{S+2}, v{S+2}
        """)
        for i in range(10):
            a(f"v_pk_add_f32 {P(Dd+2*i)}, {P(X+2*i)}, {P(S+4)} op_sel_hi:[1,0] neg_lo:[0,1] neg_hi:[0,1]")
            if i == 1:
                a(f"v_cvt_pk_bf16_f32 v{S+2}, v{S+2}, v{S+2}\nv_and_b32 v{S+2}, 0xffff0000, v{S+2}\nv_rcp_f32 v{S+2}, v{S+2}")
        for i in range(10):
            a(f"v_cvt_pk_bf16_f32 v{100+i}, v{Dd+2*i}, v{Dd+1+2*i}")
        for i in range(10):
            a(f"v_lshlrev_b32 v{X+2*i}, 16, v{100+i}")
            a(f"v_and_b32 v{X+1+2*i}, 0xffff0000, v{100+i}")
        for i in range(10):
            a(f"v_pk_mul_f32 {P(X+2*i)}, {P(X+2*i)}, {P(S+2)} op_sel_hi:[1,0]")
        for i in range(5):
            a(f"v_cvt_pk_bf16_f32 v{100+2*i}, v{X+4*i}, v{X+4*i+1}")
            a(f"v_cvt_pk_bf16_f32 v{101+2*i}, v{X+4*i+2}, v{X+4*i+3}")
            a(f"ds_write_b64 v98, v[{100+2*i}:{101+2*i}] offset:{256*i}")

    def ln_pub_addr(self):
        a = self.a
        a(f"""
        s_mov_b32 s84, s{S_WAVE}
        s_mov_b32 s97, {RSZ - 3*LNRS}
        s_mov_b32 s61, {AUX + UO + UPAD}
        s_lshl_b32 s60, s{S_WAVE}, 1
        v_lshrrev_b32 v2, 5, v0
        v_add_u32 v2, s60, v2
        """)
        self.rowaddr(98, 2, 5)
        a(f"""
        v_and_b32 v3, 31, v0
        v_lshl_add_u32 v98, v3, 3, v98
        s_lshl_b32 s60, s84, 7
        s_add_u32 s61, s61, s60
        v_and_b32 v1, 7, v0
        """)
        self.rowaddr(156, 1, 5)
        a(f"""
        v_lshrrev_b32 v2, 3, v0
        v_lshl_add_u32 v156, v2, 4, v156
        v_lshrrev_b32 v157, 2, v2
        v_and_b32 v5, 3, v2
        v_lshlrev_b32 v157, 10, v157
        v_lshl_add_u32 v157, v5, 8, v157
        v_lshl_add_u32 v157, v1, 4, v157
        v_and_b32 v1, 15, v0
        v_lshrrev_b32 v2, 2, v1
        v_sub_u32 v3, 7, v2
        v_sub_u32 v2, 3, v2
        """)
        self.rowaddr(158, 2, 5)
        self.rowaddr(99, 3, 5)
        a(f"""
        v_and_b32 v1, 3, v0
        v_lshrrev_b32 v2, 4, v0
        v_lshlrev_b32 v1, 3, v1
        v_lshl_add_u32 v1, v2, 5, v1
        v_add_u32 v158, v158, v1
        v_add_u32 v99, v99, v1
        v_lshlrev_b32 v159, 4, v0
        s_lshr_b32 s85, s{S_LID}, 1
        s_mul_i32 s85, s85, 20480
        s_and_b32 s62, s{S_LID}, 1
        s_lshl_b32 s62, s62, 7
        s_add_u32 s85, s85, s62
        s_lshl_b32 s62, s84, 11
        s_add_u32 s85, s85, s62
        s_add_u32 s86, s85, 8192
        s_add_u32 s87, s85, 16384
        s_mul_i32 s88, s{S_LID}, 10240
        s_lshl_b32 s62, s84, 10
        s_add_u32 s88, s88, s62
        s_add_u32 s88, s88, {XT}
        s_add_u32 s89, s88, 4096
        s_add_u32 s90, s88, 6144
        """)

    def ln_publish(self):
        a = self.a
        sc = "" if os.environ.get('V2') else "sc1"
        W = f"s[{R_WS}:{R_WS+3}]"
        l2 = self.L("lnp_xt3"); l3 = self.L("lnp_done")
        a(f"""
        ds_read_b128 v[160:163], v156
        ds_read_b128 v[164:167], v156 offset:512
        ds_read_b128 v[168:171], v156 offset:1024
        ds_read_b64_tr_b16 v[172:173], v99
        ds_read_b64_tr_b16 v[174:175], v158
        ds_read_b64_tr_b16 v[176:177], v99 offset:512
        ds_read_b64_tr_b16 v[178:179], v158 offset:512
        ds_read_b64_tr_b16 v[180:181], v99 offset:768
        ds_read_b64_tr_b16 v[182:183], v158 offset:768
        s_cmp_ge_u32 s84, 2
        s_waitcnt lgkmcnt(7)
        buffer_store_dwordx4 v[160:163], v157, {W}, s85 offen {sc}
        s_waitcnt lgkmcnt(6)
        buffer_store_dwordx4 v[164:167], v157, {W}, s86 offen {sc}
        s_waitcnt lgkmcnt(5)
        s_cbranch_scc1 {l2}
        buffer_store_dwordx4 v[168:171], v157, {W}, s87 offen {sc}
        {l2}:
        """)

    def ln_publish_xt(self):
        a = self.a
        W = f"s[{R_WS}:{R_WS+3}]"
        l3 = self.L("lnp_done")
        a(f"""
        s_cmp_lt_u32 s84, 2
        s_waitcnt lgkmcnt(0)
        buffer_store_dwordx4 v[172:175], v159, {W}, s88 offen sc1
        buffer_store_dwordx4 v[176:179], v159, {W}, s89 offen sc1
        s_cbranch_scc1 {l3}
        buffer_store_dwordx4 v[180:183], v159, {W}, s90 offen sc1
        {l3}:
        """)

    def w2_loads(self):
        a = self.a
        self.srd(R_W, P_W2, 1966080)
        a(f"""
        s_lshr_b32 s91, s43, 1
        s_and_b32 s92, s43, 1
        s_mul_i32 s62, s91, {32*1280}
        s_mul_i32 s63, s92, 640
        s_add_u32 s62, s62, s63
        s_add_u32 s63, s62, 320
        """)
        for i in range(10):
            a(f"""
            v_add_u32 v1, {64*i}, v0
            v_mul_u32_u24 v2, 52429, v1
            v_lshrrev_b32 v2, 20, v2
            v_mul_u32_u24 v3, 20, v2
            v_sub_u32 v3, v1, v3
            v_mul_u32_u24 v2, 1280, v2
            v_lshl_add_u32 v2, v3, 4, v2
            buffer_load_dwordx4 v[{64+4*i}:{67+4*i}], v2, s[{R_W}:{R_W+3}], s62 offen
            buffer_load_dwordx4 v[{104+4*i}:{107+4*i}], v2, s[{R_W}:{R_W+3}], s63 offen
            """)

    def w2_retile(self):
        a = self.a
        sc = "sc1"
        base = AUX + 2 * RSZ
        a(f"""
        v_lshlrev_b32 v6, 4, v0
        v_add_u32 v1, {base}, v6
        v_lshrrev_b32 v2, 4, v0
        v_and_b32 v3, 15, v0
        v_lshrrev_b32 v3, 2, v3
        v_lshl_add_u32 v2, v2, 2, v3
        v_mul_u32_u24 v2, 320, v2
        v_and_b32 v3, 3, v0
        v_lshl_add_u32 v2, v3, 3, v2
        v_add_u32 v2, {base}, v2
        s_mul_i32 s62, s92, {4*245760}
        s_mul_i32 s63, s91, 5120
        s_add_u32 s62, s62, s63
        s_add_u32 s62, s62, {W2F}
        v_add_u32 v7, 4096, v6
        """)
        for half in range(2):
            src = 64 + 40 * half
            fr = 144 + 40 * half
            for i in range(10):
                a(f"ds_write_b128 v1, v[{src+4*i}:{src+3+4*i}] offset:{1024*i}")
            a("s_waitcnt lgkmcnt(4)")
            for nt in range(10):
                d = fr + 4 * nt
                a(f"ds_read_b64_tr_b16 v[{d}:{d+1}], v2 offset:{32*nt}")
                a(f"ds_read_b64_tr_b16 v[{d+2}:{d+3}], v2 offset:{32*nt+16*320}")
                if nt == 4: a("s_waitcnt lgkmcnt(4)")
            a("s_waitcnt lgkmcnt(0)")
            for nt in range(10):
                d = fr + 4 * nt
                cbl = half * 2 + nt // 5
                n5 = nt % 5
                if n5 == 0:
                    a(f"s_add_u32 s63, s62, {cbl*245760}")
                if n5 < 4:
                    a(f"buffer_store_dwordx4 v[{d}:{d+3}], v6, s[{R_WS}:{R_WS+3}], s63 offen offset:{1024*n5} {sc}")
                else:
                    a(f"buffer_store_dwordx4 v[{d}:{d+3}], v7, s[{R_WS}:{R_WS+3}], s63 offen {sc}")

    def lds_set(self, addr_imm, sidx=None, val=1, tmp=(2, 3)):
        a = self.a
        if sidx is None:
            a(f"v_mov_b32 v{tmp[0]}, {addr_imm}")
        else:
            a(f"s_lshl_b32 s60, s{sidx}, 2\ns_add_u32 s60, s60, {addr_imm}\nv_mov_b32 v{tmp[0]}, s60")
        a(f"v_mov_b32 v{tmp[1]}, {val}\nds_write_b32 v{tmp[0]}, v{tmp[1]}")

    def lds_wait_all(self, addr_imm, n, name, tmp=2, sleep=None):
        if sleep is None: sleep = LSLEEP
        a = self.a
        lab = self.L(name); done = self.L(name + "_d")
        t = tmp
        a(f"""
        v_mov_b32 v{t}, {addr_imm}
        s_mov_b32 s61, 0
        {lab}:
        ds_read_b128 v[{t+2}:{t+5}], v{t}
        s_add_u32 s61, s61, 1
        s_waitcnt lgkmcnt(0)
        """)
        for k in range(1, n):
            a(f"v_min_u32 v{t+2}, v{t+2}, v{t+2+k}")
        a(f"""
        v_readfirstlane_b32 s60, v{t+2}
        s_cmp_gt_u32 s61, 0x100000
        s_cbranch_scc1 {done}
        s_cmp_lg_u32 s60, 0
        s_cbranch_scc1 {done}
        {'s_sleep %d' % sleep if sleep else ''}
        s_branch {lab}
        {done}:
        """)

    def get_nonce(self, name, tmp=2):
        self.lds_wait_all(M_NONCE, 1, name, tmp)
        self.a(f"s_mov_b32 s{S_NONCE}, s60")

    def poll_flags(self, name, soff, nlanes, nloads=1, lstride=FSTR, istride=64*FSTR, tmp=2, pre=None):
        a = self.a
        lab = self.L(name); done = self.L(name + "_d")
        t = tmp
        a(f"v_mul_u32_u24 v{t}, {lstride}, v0")
        a(f"s_mov_b64 s[62:63], exec")
        if nlanes < 64:
            a(f"s_lshr_b64 exec, -1, {64-nlanes}")
        a(f"s_mov_b32 s64, 0\n{lab}:")
        for i in range(nloads):
            if i * istride < 4096:
                a(f"buffer_load_dword v{t+1+i}, v{t}, s[{R_WS}:{R_WS+3}], s{soff} offen offset:{i*istride} sc1")
            else:
                a(f"s_add_u32 s65, s{soff}, {i*istride}\nbuffer_load_dword v{t+1+i}, v{t}, s[{R_WS}:{R_WS+3}], s65 offen sc1")
        a("s_add_u32 s64, s64, 1\ns_waitcnt vmcnt(0)")
        for i in range(nloads):
            a(f"v_xor_b32 v{t+1+i}, s{S_NONCE}, v{t+1+i}")
        for i in range(1, nloads):
            a(f"v_or_b32 v{t+1}, v{t+1}, v{t+1+i}")
        a(f"""
        v_cmp_ne_u32 vcc, 0, v{t+1}
        s_cmp_gt_u32 s64, 0x8000
        s_cbranch_scc1 {done}
        s_cbranch_vccz {done}
        {'s_sleep %d' % PSLEEP if PSLEEP else ''}
        s_branch {lab}
        {done}:
        s_mov_b64 exec, s[62:63]
        """)

    def poll_pipe(self, name, soff, nlanes, stride, depth, gap, on_result=None, vo=None):
        a = self.a
        lab = self.L(name)
        tb = self.ptmp
        if vo is None: a(f"v_mul_u32_u24 v2, {stride}, v0")
        a(f"s_mov_b64 s[62:63], exec\ns_lshr_b64 exec, -1, {64-nlanes}\ns_mov_b32 s64, 0")
        ld = lambda i: f"buffer_load_dword v{tb+i}, v2, s[{R_WS}:{R_WS+3}], s{soff} offen sc1"
        for i in range(depth - 1):
            a(ld(i))
            if gap: a(f"s_sleep {gap}")
        a(f"{lab}:")
        for i in range(depth):
            a(ld((i + depth - 1) % depth))
            a(f"s_waitcnt vmcnt({depth-1})\nv_cmp_eq_u32 vcc, s{S_NONCE}, v{tb+i}")
            if on_result: on_result()
            a(f"s_cmp_eq_u64 vcc, exec\ns_cbranch_scc1 {lab}_d")
            if gap: a(f"s_sleep {gap}")
        a(f"s_add_u32 s64, s64, 1\ns_cmp_lt_u32 s64, 0x4000\ns_cbranch_scc1 {lab}")
        if on_result:
            a("s_mov_b64 vcc, exec"); on_result()
        a(f"{lab}_d:\ns_mov_b64 exec, s[62:63]")

    def spoll(self, name, soff, stride, sleep, quarters=None, n=16):
        a = self.a
        lab = self.L(name)
        a(f"s_add_u32 s62, s{P_WS}, s{soff}\ns_addc_u32 s63, s{P_WS+1}, 0\ns_mov_b32 s64, 0\n{lab}:")
        for i in range(n): a(f"s_load_dword s{4+i}, s[62:63], {i*stride} glc")
        a("s_add_u32 s64, s64, 1\ns_waitcnt lgkmcnt(0)")
        for i in range(n): a(f"s_xor_b32 s{4+i}, s{4+i}, s{S_NONCE}")
        for q in range(n // 4):
            a(f"s_or_b32 s{4+4*q}, s{4+4*q}, s{5+4*q}\ns_or_b32 s{6+4*q}, s{6+4*q}, s{7+4*q}\ns_or_b32 s{4+4*q}, s{4+4*q}, s{6+4*q}")
        if quarters:
            for q in range(4):
                a(f"s_cmp_eq_u32 s{4+4*q}, 0\ns_cselect_b32 s60, 1, 0\nv_mov_b32 v3, s60\nds_write_b32 v4, v3 offset:{16*q}")
        for q in range(1, n // 4): a(f"s_or_b32 s4, s4, s{4+4*q}")
        a(f"s_cmp_eq_u32 s4, 0\ns_cbranch_scc1 {lab}_d")
        if sleep: a(f"s_sleep {sleep}")
        a(f"s_cmp_lt_u32 s64, 0x4000\ns_cbranch_scc1 {lab}")
        if quarters:
            a("v_mov_b32 v3, 1")
            for q in range(4): a(f"ds_write_b32 v4, v3 offset:{16*q}")
        a(f"{lab}_d:")

    def store_flag(self, soff, tmp=2):
        self.a(f"""
        v_mov_b32 v{tmp}, s{S_NONCE}
        s_mov_b64 s[62:63], exec
        s_mov_b64 exec, 1
        buffer_store_dword v{tmp}, off, s[{R_WS}:{R_WS+3}], s{soff} sc1
        s_mov_b64 exec, s[62:63]
        """)

    def w1_addr(self, vr_):
        self.srd(R_W, P_W1, 1966080)
        for ph in range(3):
            self.a(f"""
            v_add_u32 v5, {64*ph}, v0
            v_mul_u32_u24 v6, 43691, v5
            v_lshrrev_b32 v6, 19, v6
            v_mul_u32_u24 v7, 12, v6
            v_sub_u32 v7, v5, v7
            v_lshrrev_b32 v8, 2, v6
            v_and_b32 v8, 2, v8
            v_xor_b32 v7, v7, v8
            v_mul_u32_u24 v6, 3072, v6
            v_lshl_add_u32 v{vr_+ph}, v7, 4, v6
            """)
        self.a(f"s_mul_i32 s69, s{S_CB}, 192")

    def w1_group(self, vr_):
        a = self.a
        a(f"""
        s_mul_i32 s63, s68, {16*3072}
        s_add_u32 s63, s63, s69
        s_mul_i32 m0, s68, 3072
        s_nop 0
        buffer_load_dwordx4 v{vr_}, s[{R_W}:{R_W+3}], s63 offen lds
        s_add_u32 m0, m0, 1024
        s_nop 0
        buffer_load_dwordx4 v{vr_+1}, s[{R_W}:{R_W+3}], s63 offen lds
        s_add_u32 m0, m0, 1024
        s_nop 0
        buffer_load_dwordx4 v{vr_+2}, s[{R_W}:{R_W+3}], s63 offen lds
        """)

    G1_ACC = 16; G1_B = 64; G1_B1 = 64; G1_A = 96
    def g1_b1_loads(self):
        a = self.a
        a(f"""
        v_lshrrev_b32 v5, 4, v0
        v_lshlrev_b32 v5, 3, v5
        s_mul_i32 s60, s{S_CB}, 192
        v_add_u32 v5, s60, v5
        """)
        for t in range(6):
            a(f"global_load_dwordx2 v[{self.G1_B1+2*t}:{self.G1_B1+2*t+1}], v5, s[{P_B1}:{P_B1+1}] offset:{32*t}")

    def acc_init(self, p):
        r = []
        for k in range(2):
            for lt in range(2):
                d = self.G1_ACC + 16 * p + 8 * k + 4 * lt
                s_ = self.G1_B1 + 2 * (2 * p + k)
                r += [f"v_lshlrev_b32 v{d}, 16, v{s_}", f"v_and_b32 v{d+1}, 0xffff0000, v{s_}",
                      f"v_lshlrev_b32 v{d+2}, 16, v{s_+1}", f"v_and_b32 v{d+3}, 0xffff0000, v{s_+1}"]
        return r

    def g1_prep(self):
        a = self.a
        for x in self.acc_init(0) + self.acc_init(1) + self.acc_init(2): a(x)
        a(f"""
        v_lshrrev_b32 v5, 4, v0
        v_and_b32 v6, 15, v0
        v_lshrrev_b32 v6, 2, v6
        v_lshl_add_u32 v6, v5, 3, v6
        v_mul_u32_u24 v6, 192, v6
        v_and_b32 v7, 3, v0
        v_lshl_add_u32 v6, v7, 3, v6
        v_and_b32 v5, 1, v5
        v_lshlrev_b32 v5, 5, v5
        v_add_u32 v10, v6, v5
        v_sub_u32 v11, v6, v5
        v_add_u32 v12, 61440, v10
        v_add_u32 v13, 61440, v11
        s_lshl_b32 s86, s{S_RB}, 3
        s_lshl_b32 s87, s{S_WAVE}, 1
        s_add_u32 s86, s86, s87
        s_mul_i32 s82, s86, 20480
        s_add_u32 s83, s82, 20480
        s_mul_i32 s86, s86, 49152
        s_mul_i32 s87, s{S_CB}, 3072
        s_add_u32 s86, s86, s87
        s_add_u32 s86, s86, {HF}
        s_add_u32 s87, s86, 49152
        """)

    def g1_aload(self, ks):
        r = []
        for lt in range(2):
            d = self.G1_A + 8 * ks + 4 * lt
            ins = [f"buffer_load_dwordx4 v[{d}:{d+3}], v9, s[{R_WS}:{R_WS+3}], s{82+lt} offen offset:{1024*(ks%4)} sc1"]
            if ks % 4 == 3 and ks != 19: ins.append(f"s_add_u32 s{82+lt}, s{82+lt}, 4096")
            r.append((ins, f"A{ks}"))
        return r

    def epi_ops(self, p):
        r = []
        for lt in range(2):
            a0 = self.G1_ACC + 16 * p + 4 * lt; b0 = a0 + 8
            for x in (a0, b0):
                for i in range(4): r.append(([f"v_max_f32 v{x+i}, 0, v{x+i}"], None))
                for i in range(4): r.append(([f"v_mul_f32 v{x+i}, v{x+i}, v{x+i}"], None))
            r.append(([f"v_cvt_pk_bf16_f32 v{a0}, v{a0}, v{a0+1}"], None))
            r.append(([f"v_cvt_pk_bf16_f32 v{a0+1}, v{a0+2}, v{a0+3}"], None))
            r.append(([f"v_cvt_pk_bf16_f32 v{a0+2}, v{b0}, v{b0+1}"], None))
            r.append(([f"v_cvt_pk_bf16_f32 v{a0+3}, v{b0+2}, v{b0+3}"], None))
            r.append(([f"buffer_store_dwordx4 v[{a0}:{a0+3}], v9, s[{R_WS}:{R_WS+3}], s{86+lt} offen offset:{1024*p} sc1"], "S"))
        return r

    def vwait(self, tag):
        vq = self.vq
        assert tag in self.seen or os.environ.get('NOAL'), tag
        idx = [i for i, t in enumerate(vq) if t == tag]
        if not idx: return
        n = len(vq) - 1 - idx[-1]
        self.a(f"s_waitcnt vmcnt({min(n, 63)})"); del vq[:idx[-1] + 1]

    def emit(self, item):
        ins, tag = item
        for x in ins: self.a(x)
        if tag: self.vq.append(tag); self.seen.add(tag)

    def g1_loop(self, N0, events, TL=5):
        a = self.a
        NF = 8; AH = NF - 1
        seq = [(ks, t) for ks in range(20 - TL) for t in range(6)]
        for p in range(3):
            seq += [(ks, 2 * p + k) for ks in range(20 - TL, 20) for k in range(2)]
        def rd(f):
            ks, t = seq[f]
            base = (10 if t % 2 == 0 else 11) + (2 if ks >= 10 else 0)
            off = (ks % 10) * 6144 + 32 * t
            d = self.G1_B + 4 * (f % NF)
            return [f"ds_read_b64_tr_b16 v[{d}:{d+1}], v{base} offset:{off}", f"ds_read_b64_tr_b16 v[{d+2}:{d+3}], v{base} offset:{off+768}"]
        for f in range(AH):
            for x in rd(f): a(x)
        fv = []; fa = []; waited = set()
        f0 = 6 * (20 - TL)
        for f, (ks, t) in enumerate(seq):
            if f % 6 == 0:
                st = f // 6
                if st in events:
                    extra = events[st]()
                    if extra: fv += extra
                if st + N0 < 20: fv = self.g1_aload(st + N0) + fv
            if ks not in waited:
                self.vwait(f"A{ks}"); waited.add(ks)
            if f > f0 and (f - f0) % (2 * TL) == 1 and (f - f0) // (2 * TL) >= 1:
                fa += self.epi_ops((f - f0) // (2 * TL) - 1)
            nxt = rd(f + AH) if f + AH < 120 else []
            if f % 2 == 0:
                a(f"s_waitcnt lgkmcnt({max(0, 2 * (min(f + AH, 120) - f - 2))})")
            for lt in range(2):
                acc = self.G1_ACC + 8 * t + 4 * lt
                A = self.G1_A + 8 * ks + 4 * lt
                B = self.G1_B + 4 * (f % NF)
                a(f"v_mfma_f32_16x16x32_bf16 v[{acc}:{acc+3}], v[{B}:{B+3}], v[{A}:{A+3}], v[{acc}:{acc+3}]")
                if nxt: a(nxt.pop(0))
                if fa:
                    for _ in range(2 if nxt or f + AH < 120 else 3):
                        if fa: self.emit(fa.pop(0))
                elif fv and lt == 1 and f % 2 == 0: self.emit(fv.pop(0))
        return fa, fv

    KP = 44
    def kg_loads(self):
        a = self.a
        a(f"""
        s_sub_u32 s70, s{S_WAVE}, 4
        s_add_u32 s71, s{S_CH0}, s70
        s_mul_i32 s60, s71, 384
        v_lshlrev_b32 v2, 1, v0
        v_add_u32 v2, s60, v2
        s_lshl_b32 s60, s71, 1
        v_mov_b32 v3, s60
        """)
        for p in range(3):
            for k, P in enumerate((P_LA, P_AI, P_CR, P_CI)):
                a(f"global_load_ushort v{self.KP+4*p+k}, v2, s[{P}:{P+1}] offset:{128*p}")
        a(f"global_load_ushort v56, v3, s[{P_DT}:{P_DT+1}]")
        a(f"global_load_ushort v57, v3, s[{P_DS}:{P_DS+1}]")

    def cmul(self, d, x, y):
        return [f"v_pk_mul_f32 v[{d}:{d+1}], v[{x}:{x+1}], v[{y}:{y+1}] op_sel:[0,0] op_sel_hi:[0,1]",
                f"v_pk_fma_f32 v[{d}:{d+1}], v[{x}:{x+1}], v[{y}:{y+1}], v[{d}:{d+1}] op_sel:[1,1,0] op_sel_hi:[1,0,1] neg_lo:[0,1,0]"]

    def kgen(self, hook=None):
        a = self.a
        KP = self.KP
        Z, Z8, W = 60, 62, 64
        F = 66
        F2 = 82
        G = 98
        CV = 102
        SV = 110
        GF, TA, TB = 120, 136, 152
        ACC = 168
        VW, VR, VW2 = 10, 11, 9
        TOFF = 4352
        a(f"""
        s_mul_i32 s72, s70, {RSZ}
        s_add_u32 s72, s72, {AUX}
        v_lshrrev_b32 v2, 2, v0
        v_mul_u32_u24 v2, 272, v2
        v_and_b32 v3, 3, v0
        v_lshl_add_u32 v2, v3, 2, v2
        v_add_u32 v{VW}, s72, v2
        v_add_u32 v{VW2}, {TOFF}, v{VW}
        v_lshrrev_b32 v2, 4, v0
        v_mul_u32_u24 v2, 272, v2
        v_and_b32 v3, 15, v0
        v_lshl_add_u32 v2, v3, 4, v2
        v_add_u32 v{VR}, s72, v2
        v_lshlrev_b32 v56, 16, v56
        v_mul_f32 v56, {LOG2E}, v56
        v_exp_f32 v56, v56
        v_lshlrev_b32 v57, 16, v57
        v_cvt_pk_bf16_f32 v56, v56, v56
        v_and_b32 v56, 0xffff0000, v56
        v_add_f32 v58, v56, v56
        v_mov_b32 v59, 0x3f80
        s_mov_b32 s73, 3
        """)
        for i in range(12): a(f"v_mov_b32 v{ACC+i}, 0")
        loop = self.L("kg_loop")
        a(f"{loop}:")
        if hook: hook()
        a(f"""
        v_lshlrev_b32 v2, 16, v{KP}
        v_mul_f32 v2, {LOG2E}, v2
        v_exp_f32 v2, v2
        v_lshlrev_b32 v3, 16, v{KP+1}
        v_lshlrev_b32 v{F}, 16, v{KP+2}
        v_cvt_pk_bf16_f32 v2, v2, v2
        v_lshlrev_b32 v{F+1}, 16, v{KP+3}
        v_and_b32 v2, 0xffff0000, v2
        v_mul_f32 v3, v3, v56
        v_mul_f32 v2, v2, v56
        v_pk_mul_f32 v[{F}:{F+1}], v[{F}:{F+1}], v[58:59] op_sel_hi:[1,0]
        v_mul_f32 v3, {INV2PI}, v3
        v_mul_f32 v2, 0xbfb8aa3b, v2
        """)
        for k in range(8): a(f"v_mov_b32 v{KP+k}, v{KP+4+k}")
        a(f"""
        v_mul_f32 v4, 0x41000000, v2
        v_mul_f32 v5, 0x41000000, v3
        v_mul_f32 v6, 0x43000000, v2
        v_mul_f32 v7, 0x43000000, v3
        v_fract_f32 v3, v3
        v_fract_f32 v5, v5
        v_fract_f32 v7, v7
        v_exp_f32 v2, v2
        v_exp_f32 v4, v4
        v_exp_f32 v6, v6
        v_cos_f32 v{Z}, v3
        v_sin_f32 v{Z+1}, v3
        v_cos_f32 v{Z8}, v5
        v_sin_f32 v{Z8+1}, v5
        v_cos_f32 v{W}, v7
        v_sin_f32 v{W+1}, v7
        v_pk_mul_f32 v[{Z}:{Z+1}], v[{Z}:{Z+1}], v[2:3] op_sel_hi:[1,0]
        v_pk_mul_f32 v[{Z8}:{Z8+1}], v[{Z8}:{Z8+1}], v[4:5] op_sel_hi:[1,0]
        v_pk_mul_f32 v[{W}:{W+1}], v[{W}:{W+1}], v[6:7] op_sel_hi:[1,0]
        """)
        cvn = [0]
        class Out:
            def __init__(o, base, neg, pool): o.base = base; o.neg = neg; o.pend = None; o.pool = pool; o.n = 0
            def put(o, src, row, reg=None):
                r = []
                if reg is None:
                    reg = CV + 4 * o.pool + o.n % 4; o.n += 1
                    r.append(f"v_cvt_pk_bf16_f32 v{reg}, v{src}, {'-' if o.neg else ''}v{src+1}")
                if o.pend is None: o.pend = (reg, row)
                else:
                    r.append(f"ds_write2_b32 v{o.base}, v{o.pend[0]}, v{reg} offset0:{4*o.pend[1]} offset1:{4*row}")
                    o.pend = None
                return r
        def merge(*streams):
            streams = [list(s) for s in streams]
            out = []
            while any(streams):
                for s in streams:
                    if s: out.append(s.pop(0))
            return out
        og = Out(VW, False, 0); of = Out(VW2, True, 1); oc0 = Out(VW2, True, 0); oc1 = Out(VW2, True, 1); ot = Out(VW2, True, 0)
        gs = og.put(None, 0, 59) + og.put(Z8, 1)
        prev = Z8
        for j in range(2, 16):
            d = G + 2 * (j % 2)
            gs += self.cmul(d, prev, Z8) + og.put(d, j)
            prev = d
        fs = of.put(F, 0)
        for r in range(1, 8):
            fs += self.cmul(F + 2 * r, F + 2 * (r - 1), Z) + of.put(F + 2 * r, r)
        for r in range(8):
            fs += self.cmul(F2 + 2 * r, F + 2 * r, W) + of.put(F2 + 2 * r, 8 + r)
        for ins in merge(gs, fs): a(ins)
        for ks in range(4):
            a(f"ds_read_b128 v[{GF+4*ks}:{GF+4*ks+3}], v{VR} offset:{1088*ks}")
            a(f"ds_read_b128 v[{TA+4*ks}:{TA+4*ks+3}], v{VR} offset:{TOFF+1088*ks}")
        s1 = []
        for i in range(4):
            s1.append(self.cmul(F + 2 * i, F2 + 4 * i, W) + [f"v_cvt_pk_bf16_f32 v{SV+i}, v{F+2*i}, -v{F+2*i+1}"]
                      + self.cmul(F + 8 + 2 * i, F + 2 * i, W) + [f"v_cvt_pk_bf16_f32 v{SV+4+i}, v{F+8+2*i}, -v{F+8+2*i+1}"])
        for ins in merge(*s1): a(ins)
        a("s_waitcnt lgkmcnt(0)")
        mf0 = [f"v_mfma_f32_16x16x32_bf16 v[{ACC}:{ACC+3}], v[{TA+4*ks}:{TA+4*ks+3}], v[{GF+4*ks}:{GF+4*ks+3}], v[{ACC}:{ACC+3}]" for ks in range(4)]
        c0 = []; prev = F + 8
        for i in range(12):
            d = F2 + 2 * (i % 2)
            row = i if i < 4 else i + 4
            c0 += self.cmul(d, prev, W) + oc0.put(d, row)
            prev = d
        last = prev
        c1 = []; prev = F + 12
        for i in range(4):
            d = F2 + 4 + 2 * (i % 2)
            c1 += self.cmul(d, prev, W) + oc1.put(d, 4 + i)
            prev = d
        for ins in merge(c0, c1, mf0): a(ins)
        for ks in range(4):
            a(f"ds_read_b128 v[{TB+4*ks}:{TB+4*ks+3}], v{VR} offset:{TOFF+1088*ks}")
        for ins in self.cmul(F2 + 8, last, W): a(ins)
        for i in range(8):
            for ins in ot.put(None, i, SV + i): a(ins)
        a(f"v_cvt_pk_bf16_f32 v{CV}, v{F2+8}, -v{F2+9}\nds_write_b32 v{VW2}, v{CV} offset:128")
        for ks in range(4):
            a(f"ds_read_b128 v[{TA+4*ks}:{TA+4*ks+3}], v{VR} offset:{TOFF+1088*ks}")
        a("s_waitcnt lgkmcnt(9)")
        for ks in range(4):
            a(f"v_mfma_f32_16x16x32_bf16 v[{ACC+4}:{ACC+7}], v[{TB+4*ks}:{TB+4*ks+3}], v[{GF+4*ks}:{GF+4*ks+3}], v[{ACC+4}:{ACC+7}]")
        a("s_sub_u32 s73, s73, 1\ns_cmp_lg_u32 s73, 0\ns_waitcnt lgkmcnt(0)")
        for ks in range(4):
            a(f"v_mfma_f32_16x16x32_bf16 v[{ACC+8}:{ACC+11}], v[{TA+4*ks}:{TA+4*ks+3}], v[{GF+4*ks}:{GF+4*ks+3}], v[{ACC+8}:{ACC+11}]")
        a(f"s_cbranch_scc1 {loop}")
        self.KACC = ACC

    def expand(self):
        a = self.a
        ACC = self.KACC
        T0, T1, T2 = ACC, ACC + 4, ACC + 8
        a(f"""
        v_and_b32 v2, 15, v0
        v_lshrrev_b32 v3, 4, v0
        v_lshlrev_b32 v4, 3, v2
        v_lshlrev_b32 v5, 2, v3
        v_add_u32 v5, 512, v5
        v_lshlrev_b32 v6, 9, v3
        v_cmp_gt_u32 vcc, 2, v3
        v_cndmask_b32 v5, v6, v5, vcc
        v_add_u32 v5, v5, v4
        v_cndmask_b32 v6, 4, 2, vcc
        v_and_b32 v7, 1, v2
        v_cndmask_b32 v7, v7, v3, vcc
        v_cndmask_b32 v8, 8, 0, vcc
        s_add_u32 s60, s72, 32
        v_sub_u32 v9, v5, v6
        v_lshl_add_u32 v12, v9, 1, s60
        v_add_u32 v13, v12, v8
        v_add_u32 v9, v5, v6
        v_sub_u32 v9, v9, v7
        v_lshl_add_u32 v14, v9, 1, s60
        v_sub_u32 v9, v5, v6
        v_add_u32 v9, v9, v7
        v_lshl_add_u32 v15, v9, 1, s60
        v_add_u32 v15, {K1O-2}, v15
        v_cmp_eq_u32 vcc, 32, v0
        v_add_u32 v9, 4, v15
        v_cndmask_b32 v16, v15, v9, vcc
        v_add_u32 v17, {K1O}, v12
        v_add_u32 v18, {K1O}, v13
        """)
        for i in range(4):
            a(f"v_cvt_pk_bf16_f32 v{20+i}, v{T1+i}, v{T1+i}")
        for i in range(4):
            a(f"ds_write2_b32 v12, v{20+i}, v{20+i} offset0:{64*i} offset1:{64*i+1}")
            a(f"ds_write2_b32 v13, v{20+i}, v{20+i} offset0:{64*i} offset1:{64*i+1}")
            a(f"ds_write2_b32 v17, v{20+i}, v{20+i} offset0:{64*i} offset1:{64*i+1}")
            a(f"ds_write2_b32 v18, v{20+i}, v{20+i} offset0:{64*i} offset1:{64*i+1}")
        for i in range(4):
            a(f"ds_write_b16 v14, v{20+i} offset:{256*i}")
            a(f"ds_write_b16 v{16 if i == 0 else 15}, v{20+i} offset:{256*i}")
        a(f"""
        v_lshlrev_b32 v5, 7, v3
        v_add3_u32 v5, v5, v4, v4
        v_lshlrev_b32 v6, 7, v3
        v_add_u32 v5, v5, v6
        v_add_u32 v5, s60, v5
        v_add_u32 v5, 512, v5
        v_cvt_pk_bf16_f32 v24, v{T2}, v{T2}
        v_cvt_pk_bf16_f32 v25, v{T2}, v{T2+1}
        v_cvt_pk_bf16_f32 v26, v{T2+2}, v{T2+2}
        v_cvt_pk_bf16_f32 v27, v{T2+2}, v{T2+3}
        v_cvt_pk_bf16_f32 v28, v{T2+1}, v{T2+2}
        v_add_u32 v6, {K1O-4}, v5
        v_add_u32 v7, -2, v5
        s_mov_b32 exec_hi, 0
        ds_write2_b32 v5, v24, v28 offset0:0 offset1:1
        ds_write_b32 v5, v26 offset:8
        ds_write_b16_d16_hi v5, v27 offset:12
        ds_write_b16 v7, v24
        ds_write2_b32 v6, v24, v25 offset0:0 offset1:1
        ds_write2_b32 v6, v26, v27 offset0:2 offset1:3
        s_mov_b64 exec, -1
        s_add_u32 s61, s60, {2*2044}
        v_mov_b32 v6, s61
        v_add_u32 v7, {K1O-2}, v6
        v_add_u32 v8, {K1O}, v6
        s_mov_b32 exec_lo, 0
        s_mov_b32 exec_hi, 1
        ds_write2_b32 v6, v24, v24 offset0:0 offset1:1
        ds_write2_b32 v8, v24, v24 offset0:0 offset1:1
        ds_write_b16 v7, v24
        s_mov_b64 exec, -1
        """)
        a(f"""
        v_and_b32 v5, 1, v3
        v_lshlrev_b32 v5, 3, v5
        v_lshrrev_b32 v6, 1, v3
        v_lshl_add_u32 v5, v6, 8, v5
        v_add3_u32 v5, v5, v4, v4
        v_add_u32 v5, s60, v5
        s_mov_b64 exec, 1
        v_add_f32 v{T0}, v{T0}, v57
        s_mov_b64 exec, -1
        v_cvt_pk_bf16_f32 v24, v{T0}, v{T0+1}
        v_cvt_pk_bf16_f32 v25, v{T0+2}, v{T0+3}
        v_cvt_pk_bf16_f32 v26, v{T0+1}, v{T0+2}
        v_add_u32 v6, {K1O-2}, v5
        v_mov_b32 v28, 0
        v_mov_b32 v29, 0
        v_lshlrev_b32 v7, 3, v0
        v_add_u32 v7, s72, v7
        s_mov_b64 exec, 15
        ds_write_b64 v7, v[28:29]
        ds_write_b64 v7, v[28:29] offset:{K1O}
        s_lshr_b64 exec, -1, 4
        ds_write_b64 v7, v[28:29] offset:{UO}
        s_mov_b64 exec, -1
        ds_write_b64 v5, v[24:25]
        ds_write_b16 v6, v24
        ds_write_b32 v5, v26 offset:{K1O}
        ds_write_b16_d16_hi v6, v25 offset:6
        """)

    def u_gather(self):
        a = self.a
        sc = "sc1" if self.fused else ""
        a(f"""
        v_lshrrev_b32 v2, 2, v0
        v_and_b32 v3, 3, v0
        v_mul_u32_u24 v4, 10240, v2
        v_lshl_add_u32 v4, v3, 4, v4
        s_lshl_b32 s60, s{S_CH0}, 4
        s_add_u32 s60, s60, {XT}
        v_mul_u32_u24 v5, {RSZ}, v3
        v_lshl_add_u32 v5, v2, 4, v5
        v_add_u32 v5, {AUX+UO+UPAD}, v5
        v_cmp_gt_u32 vcc, s{S_NCH}, v3
        s_mov_b64 s[62:63], exec
        s_and_b64 exec, exec, vcc
        """)
        for i in range(16):
            a(f"buffer_load_dwordx4 v[{40+4*i}:{43+4*i}], v4, s[{R_WS}:{R_WS+3}], s60 offen {sc}")
            if i < 15: a(f"s_add_u32 s60, s60, {16*10240}")
        for i in range(16):
            a(f"s_waitcnt vmcnt({14-i})" if i < 15 else "s_nop 7")
            a(f"ds_write_b128 v5, v[{40+4*i}:{43+4*i}] offset:{256*i}")
        a("s_mov_b64 exec, s[62:63]\ns_waitcnt lgkmcnt(0)")

    def conv(self):
        a = self.a
        sc = "sc1" if self.fused else ""
        ACC = 60; OP = [92, 156]
        AB = 12
        a(f"""
        v_and_b32 v2, 15, v0
        v_lshrrev_b32 v3, 4, v0
        v_lshlrev_b32 v4, 3, v3
        v_sub_u32 v4, v2, v4
        v_add_u32 v4, {233+16-224}, v4
        v_and_b32 v5, 1, v2
        v_and_b32 v4, -2, v4
        v_lshlrev_b32 v4, 1, v4
        v_cmp_eq_u32 vcc, 0, v5
        v_mov_b32 v6, {K1O}
        v_cndmask_b32 v5, 0, v6, vcc
        v_add3_u32 v{AB}, v4, v5, s72
        v_add_u32 v{AB+1}, 1024, v{AB}
        v_add_u32 v{AB+2}, 2048, v{AB}
        v_add_u32 v{AB+3}, 3072, v{AB}
        v_lshlrev_b32 v4, 5, v2
        v_lshl_add_u32 v4, v3, 4, v4
        s_add_u32 s60, s72, {UO}
        v_add_u32 v16, s60, v4
        """)
        for i in range(32): a(f"v_mov_b32 v{ACC+i}, 0")
        def reads(tau):
            s = OP[tau % 2]
            r = []
            for d in range(8):
                r.append(f"ds_read_b128 v[{s+32+4*d}:{s+35+4*d}], v16 offset:{512*d+64*tau}")
                o = 512 * d - 64 * tau + 448
                b = AB + o // 1024; q = (o % 1024) // 4
                r.append(f"ds_read2_b32 v[{s+4*d}:{s+4*d+1}], v{b} offset0:{q} offset1:{q+1}")
                r.append(f"ds_read2_b32 v[{s+4*d+2}:{s+4*d+3}], v{b} offset0:{q+2} offset1:{q+3}")
            return r
        r0 = reads(0)
        for k, ins in enumerate(r0):
            a(ins)
            if k == 12: a("s_waitcnt lgkmcnt(3)")
        for tau in range(8):
            s = OP[tau % 2]
            nxt = reads(tau + 1) if tau < 7 else []
            pairs = sorted([(d, n) for d in range(8) for n in range(8 - d)], key=lambda p: (max(p), p))
            a("s_waitcnt lgkmcnt(0)")
            for k, (d, n) in enumerate(pairs):
                acc = ACC + 4 * (d + n)
                a(f"v_mfma_f32_16x16x32_bf16 v[{acc}:{acc+3}], v[{s+4*d}:{s+4*d+3}], v[{s+32+4*n}:{s+35+4*n}], v[{acc}:{acc+3}]")
                if nxt and k < 30 and k % 5 != 4:
                    a(nxt.pop(0))
            assert not nxt
        a(f"""
        v_lshlrev_b32 v5, 5, v2
        v_lshl_add_u32 v5, v3, 3, v5
        s_lshl_b32 s61, s71, 12
        s_add_u32 s61, s61, {ST}
        """)
        for n in range(8):
            acc = ACC + 4 * n; o = 128 + 2 * n
            a(f"""
            v_cvt_pk_bf16_f32 v{o}, v{acc}, v{acc+1}
            v_cvt_pk_bf16_f32 v{o+1}, v{acc+2}, v{acc+3}
            buffer_store_dwordx2 v[{o}:{o+1}], v5, s[{R_WS}:{R_WS+3}], s61 offen offset:{512*n} {sc}
            """)

    G2_ACC = 16; G2_RB = 96; G2_BT = 156; G2_A = 176
    def g2_addr(self):
        self.a(f"""
        v_lshlrev_b32 v9, 4, v0
        v_add_u32 v8, 4096, v9
        s_mul_i32 s74, s{S_CB2}, 245760
        s_mul_i32 s60, s{S_WAVE}, {12*5120}
        s_add_u32 s74, s74, s60
        s_add_u32 s74, s74, {W2F}
        s_mul_i32 s75, s{S_WAVE}, 30720
        """)
    @staticmethod
    def kloc(j):
        return j

    @staticmethod
    def lslot(j):
        q = j if j < 6 else j - 9
        return q * 5120

    def g2_dma_items(self, j):
        W = f"s[{R_WS}:{R_WS+3}]"
        l0 = self.lslot(j)
        r = []
        for nt in range(5):
            pre = [f"s_add_u32 s81, s74, {5120*self.kloc(j)}"] if nt == 0 else []
            if nt < 4: r.append((pre + [f"s_add_u32 m0, s75, {l0}", f"buffer_load_dwordx4 v9, {W}, s81 offen offset:{1024*nt} sc1 lds"], f"D{j}"))
            else: r.append(([f"s_add_u32 m0, s75, {l0+4096}", f"buffer_load_dwordx4 v8, {W}, s81 offen sc1 lds"], f"D{j}"))
        return r

    def g2_bload_items(self, j):
        W = f"s[{R_WS}:{R_WS+3}]"
        r = []
        for nt in range(5):
            d = self.G2_RB + 20 * (j % 3) + 4 * nt
            pre = [f"s_add_u32 s81, s74, {5120*self.kloc(j)}"] if nt == 0 else []
            if nt < 4: r.append((pre + [f"buffer_load_dwordx4 v[{d}:{d+3}], v9, {W}, s81 offen offset:{1024*nt} sc1"], f"B{j}"))
            else: r.append(([f"buffer_load_dwordx4 v[{d}:{d+3}], v8, {W}, s81 offen sc1"], f"B{j}"))
        return r

    def g2_aload_items(self, j):
        W = f"s[{R_WS}:{R_WS+3}]"
        k = self.kloc(j)
        vo = (9, 8, 13)[k // 4]
        r = []
        for i in range(4):
            d = self.G2_A + 16 * (j % 5) + 4 * i
            r.append(([f"buffer_load_dwordx4 v[{d}:{d+3}], v{vo}, {W}, s{76+i} offen offset:{1024*(k%4)} sc1"], f"A{j}"))
        return r

    def g2_setup_s(self):
        a = self.a
        for i in range(4):
            a(f"""
            s_add_u32 s60, s{S_WAVE}, {i}
            s_and_b32 s60, s60, 3
            s_lshl_b32 s61, s{S_RB2}, 2
            s_add_u32 s60, s60, s61
            s_mul_i32 s60, s60, 49152
            s_mul_i32 s61, s{S_WAVE}, {12*1024}
            s_add_u32 s60, s60, s61
            s_add_u32 s{76+i}, s60, {HF}
            """)
    def g2_setup_v(self):
        a = self.a
        self.seen = {t for t in self.seen if not t.startswith("A")}
        a(f"v_add_u32 v10, s75, v9\nv_add_u32 v13, 8192, v9")

    def fh_wait(self, tp):
        self.a(f"s_lshl_b32 s66, s{S_WAVE}, 4\ns_add_u32 s66, s66, {M_FH + 64*tp}")
        self.lds_wait_all("s66", 1, f"fhw{tp}", tmp=2)

    def g2_loop(self, hook=None, hook_at=6, fill0=None):
        a = self.a
        seq = [(j, nt) for j in range(9) for nt in range(5)] + [(j, nt) for nt in range(5) for j in range(9, 12)]
        lds = [x for x in seq if not (6 <= x[0] < 9)]
        pos = {x: i for i, x in enumerate(lds)}
        issued = [0]; lq = []
        def bt_read():
            i = issued[0]
            if i >= len(lds): return
            j, nt = lds[i]
            if nt == 0 or j >= 9: self.vwait(f"D{j}")
            d = self.G2_BT + 4 * (i % 5)
            a(f"ds_read_b128 v[{d}:{d+3}], v10 offset:{self.lslot(j) + 1024 * nt}")
            lq.append(i); issued[0] += 1
        fill = list(fill0 or [])
        for _ in range(4): bt_read()
        wr = []; done = set()
        for (j, nt) in seq:
            if j not in done:
                done.add(j)
                if hook and j == hook_at: hook(); lq.append("x")
                self.stamp(16 + j, q=True)
                self.vwait(f"A{j}")
                if 6 <= j < 9: self.vwait(f"B{j}")
            if 6 <= j < 9:
                B = self.G2_RB + 20 * (j % 3) + 4 * nt
            else:
                i = pos[(j, nt)]
                B = self.G2_BT + 4 * (i % 5)
                k = lq.index(i)
                a(f"s_waitcnt lgkmcnt({len(lq) - 1 - k})"); del lq[:k + 1]
            for i in range(4):
                acc = self.G2_ACC + 16 * nt + 4 * i
                A = self.G2_A + 16 * (j % 5) + 4 * i
                a(f"v_mfma_f32_16x16x32_bf16 v[{acc}:{acc+3}], v[{B}:{B+3}], v[{A}:{A+3}], {'0' if j == 0 else f'v[{acc}:{acc+3}]'}")
                if fill and i in (0, 2): self.emit(fill.pop(0))
                if i == 1:
                    if not (6 <= j < 9):
                        if not (j == 5 and nt >= 1): bt_read()
                    elif j == 8 and nt >= 1: bt_read()
                if i == 3 and wr:
                    a(wr.pop(0)); lq.append("w")
            if j == 11:
                wr += [f"ds_write_b128 v10, v[{self.G2_ACC+16*nt+4*i}:{self.G2_ACC+16*nt+4*i+3}] offset:{5120*(i+2)+1024*nt}" for i in range(1, 4)]
            if nt == 4 and j < 9:
                if j + 5 < 12: fill = self.g2_aload_items(j + 5) + fill
                if j < 3: fill += self.g2_dma_items(j + 9)
        assert not fill
        for x in wr: a(x)

    FX = 96; FB = 106
    def svc_x_loads(self):
        a = self.a
        a(f"""
        s_mul_i32 s60, s{S_RB2}, {64*1280}
        s_mul_i32 s61, s{S_CB2}, 160
        s_add_u32 s60, s60, s61
        """)
        for i in range(10):
            a(f"""
            v_add_u32 v2, {64*i}, v0
            v_mul_u32_u24 v3, 52429, v2
            v_lshrrev_b32 v3, 19, v3
            v_mul_u32_u24 v4, 10, v3
            v_sub_u32 v4, v2, v4
            v_lshlrev_b32 v4, 4, v4
            v_mad_u32_u24 v{184+i}, v3, s97, v4
            v_mul_u32_u24 v3, 1280, v3
            v_add_u32 v3, v3, v4
            buffer_load_dwordx4 v[{140+4*i}:{143+4*i}], v3, s[{R_X}:{R_X+3}], s60 offen
            """.replace("s97", "s67") if False else f"""
            v_add_u32 v2, {64*i}, v0
            v_mul_u32_u24 v3, 52429, v2
            v_lshrrev_b32 v3, 19, v3
            v_mul_u32_u24 v4, 10, v3
            v_sub_u32 v4, v2, v4
            v_lshlrev_b32 v4, 4, v4
            v_mul_u32_u24 v5, {XRS}, v3
            v_add_u32 v{184+i}, v5, v4
            v_mul_u32_u24 v3, 1280, v3
            v_add_u32 v3, v3, v4
            buffer_load_dwordx4 v[{140+4*i}:{143+4*i}], v3, s[{R_X}:{R_X+3}], s60 offen
            """)
        a(f"""
        v_min_u32 v2, 39, v0
        v_lshlrev_b32 v2, 2, v2
        v_add_u32 v2, s61, v2
        global_load_dword v180, v2, s[{P_B2}:{P_B2+1}]
        """)

    def svc_x_write(self):
        a = self.a
        for i in range(10):
            a(f"v_add_u32 v{184+i}, {XI}, v{184+i}")
        for i in range(10):
            a(f"ds_write_b128 v{184+i}, v[{140+4*i}:{143+4*i}]")
        a(f"""
        v_lshlrev_b32 v182, 16, v180
        v_and_b32 v183, 0xffff0000, v180
        v_min_u32 v2, 39, v0
        v_lshlrev_b32 v2, 3, v2
        v_add_u32 v2, {M_B2}, v2
        ds_write_b64 v2, v[182:183]
        """)

    def s_tile_dma(self):
        a = self.a
        sc = "sc1" if self.fused else ""
        a(f"""
        v_lshrrev_b32 v2, 3, v0
        v_and_b32 v3, 7, v0
        v_lshlrev_b32 v2, 12, v2
        v_lshl_add_u32 v2, v3, 4, v2
        s_mul_i32 s60, s{S_CB2}, {80*4096}
        s_lshl_b32 s61, s{S_RB2}, 7
        s_add_u32 s60, s60, s61
        s_add_u32 s60, s60, {ST}
        """)
        for t in range(10):
            a(f"s_mov_b32 m0, {AUX+1024*t}")
            a(f"buffer_load_dwordx4 v2, s[{R_WS}:{R_WS+3}], s60 offen {sc} lds")
            if t < 9: a(f"s_add_u32 s60, s60, {8*4096}")
        self.svc_x_write()
        a("s_waitcnt vmcnt(0) lgkmcnt(0)")

    def g2_final(self):
        a = self.a
        ACC = self.G2_ACC
        self.srd(R_OUT, P_OUT, 2621440)
        for i in range(1, 4):
            a(f"""
            s_sub_u32 s60, s{S_WAVE}, {i}
            s_and_b32 s60, s60, 3
            s_mul_i32 s60, s60, 30720
            s_add_u32 s60, s60, {5120*(i+2)}
            v_add_u32 v{4+i}, s60, v9
            """)
        a(f"""
        v_and_b32 v2, 15, v0
        v_lshrrev_b32 v3, 4, v0
        v_lshrrev_b32 v12, 2, v2
        v_lshl_add_u32 v12, v3, 2, v12
        v_lshlrev_b32 v12, 7, v12
        v_and_b32 v15, 3, v0
        v_lshl_add_u32 v12, v15, 3, v12
        s_lshl_b32 s60, s{S_WAVE}, 5
        s_add_u32 s60, s60, {AUX}
        v_add_u32 v12, s60, v12
        s_mul_i32 s60, s{S_WAVE}, {16*XRS}
        s_add_u32 s60, s60, {XI}
        v_mul_u32_u24 v11, {XRS}, v2
        v_lshl_add_u32 v11, v3, 3, v11
        v_add_u32 v11, s60, v11
        v_lshlrev_b32 v13, 4, v3
        v_add_u32 v13, {M_B2}, v13
        v_mov_b32 v250, 1.0
        v_mov_b32 v251, 1.0
        v_mov_b32 v252, 0xbfb8aa3b
        s_lshl_b32 s80, s{S_RB2}, 2
        s_add_u32 s80, s80, s{S_WAVE}
        s_mul_i32 s80, s80, {16*1280}
        s_mul_i32 s61, s{S_CB2}, 160
        s_add_u32 s80, s80, s61
        """)
        for i in range(3):
            a(f"""
            v_add_u32 v2, {64*i}, v0
            v_mul_u32_u24 v3, 52429, v2
            v_lshrrev_b32 v3, 19, v3
            v_mul_u32_u24 v4, 10, v3
            v_sub_u32 v4, v2, v4
            v_lshlrev_b32 v4, 4, v4
            v_mul_u32_u24 v2, {XRS}, v3
            v_add3_u32 v{240+i}, v2, v4, s60
            v_mul_u32_u24 v3, 1280, v3
            v_add_u32 v{243+i}, v3, v4
            """)
        a("s_waitcnt lgkmcnt(0)\ns_barrier")
        P = 96
        def reads(nt):
            p = P + 20 * nt
            for i in range(1, 4):
                a(f"ds_read_b128 v[{p+4*(i-1)}:{p+4*(i-1)+3}], v{4+i} offset:{1024*nt}")
            a(f"ds_read_b128 v[{p+12}:{p+15}], v13 offset:{64*nt}")
            a(f"ds_read_b64_tr_b16 v[{p+16}:{p+17}], v12 offset:{2048*nt}")
            a(f"ds_read_b64 v[{p+18}:{p+19}], v11 offset:{32*nt}")
        reads(0); reads(1)
        Pp = lambda r: f"v[{r}:{r+1}]"
        for nt in range(5):
            acc = ACC + 16 * nt; p = P + 20 * nt; t = 200 + 12 * (nt % 2)
            a(f"s_waitcnt lgkmcnt({6 if nt < 4 else 1})" if nt != 0 else "s_waitcnt lgkmcnt(6)")
            a(f"""
            v_pk_add_f32 {Pp(acc)}, {Pp(acc)}, {Pp(p)}
            v_pk_add_f32 {Pp(acc+2)}, {Pp(acc+2)}, {Pp(p+2)}
            v_pk_add_f32 {Pp(p+4)}, {Pp(p+4)}, {Pp(p+8)}
            v_pk_add_f32 {Pp(p+6)}, {Pp(p+6)}, {Pp(p+10)}
            v_pk_add_f32 {Pp(acc)}, {Pp(acc)}, {Pp(p+12)}
            v_pk_add_f32 {Pp(acc+2)}, {Pp(acc+2)}, {Pp(p+14)}
            v_pk_add_f32 {Pp(acc)}, {Pp(acc)}, {Pp(p+4)}
            v_pk_add_f32 {Pp(acc+2)}, {Pp(acc+2)}, {Pp(p+6)}
            v_pk_mul_f32 {Pp(t)}, {Pp(acc)}, v[252:253] op_sel_hi:[1,0]
            v_pk_mul_f32 {Pp(t+2)}, {Pp(acc+2)}, v[252:253] op_sel_hi:[1,0]
            """)
            for i in range(4): a(f"v_exp_f32 v{t+i}, v{t+i}")
            if nt + 2 < 5: reads(nt + 2)
            a(f"""
            v_lshlrev_b32 v{t+4}, 16, v{p+16}
            v_and_b32 v{t+5}, 0xffff0000, v{p+16}
            v_lshlrev_b32 v{t+6}, 16, v{p+17}
            v_and_b32 v{t+7}, 0xffff0000, v{p+17}
            v_pk_add_f32 {Pp(t)}, {Pp(t)}, v[250:251]
            v_pk_add_f32 {Pp(t+2)}, {Pp(t+2)}, v[250:251]
            """)
            for i in range(4): a(f"v_rcp_f32 v{t+i}, v{t+i}")
            a(f"""
            v_pk_mul_f32 {Pp(t+4)}, {Pp(t+4)}, {Pp(acc)}
            v_pk_mul_f32 {Pp(t+6)}, {Pp(t+6)}, {Pp(acc+2)}
            v_lshlrev_b32 v{t+8}, 16, v{p+18}
            v_and_b32 v{t+9}, 0xffff0000, v{p+18}
            v_lshlrev_b32 v{t+10}, 16, v{p+19}
            v_and_b32 v{t+11}, 0xffff0000, v{p+19}
            v_pk_fma_f32 {Pp(t+8)}, {Pp(t+4)}, {Pp(t)}, {Pp(t+8)}
            v_pk_fma_f32 {Pp(t+10)}, {Pp(t+6)}, {Pp(t+2)}, {Pp(t+10)}
            v_cvt_pk_bf16_f32 v{p+18}, v{t+8}, v{t+9}
            v_cvt_pk_bf16_f32 v{p+19}, v{t+10}, v{t+11}
            ds_write_b64 v11, v[{p+18}:{p+19}] offset:{32*nt}
            """)
        osc = os.environ.get('OSC', '')
        a(f"""
        ds_read_b128 v[224:227], v240
        ds_read_b128 v[228:231], v241
        s_mov_b32 exec_hi, 0
        ds_read_b128 v[232:235], v242
        s_mov_b64 exec, -1
        s_waitcnt lgkmcnt(1)
        buffer_store_dwordx4 v[224:227], v243, s[{R_OUT}:{R_OUT+3}], s80 offen {osc}
        s_waitcnt lgkmcnt(0)
        buffer_store_dwordx4 v[228:231], v244, s[{R_OUT}:{R_OUT+3}], s80 offen {osc}
        s_mov_b32 exec_hi, 0
        buffer_store_dwordx4 v[232:235], v245, s[{R_OUT}:{R_OUT+3}], s80 offen {osc}
        s_mov_b64 exec, -1
        """)

    def misc_init(self):
        self.a(f"""
        v_lshlrev_b32 v2, 2, v0
        v_add_u32 v2, {MISC}, v2
        v_mov_b32 v3, 0
        ds_write_b32 v2, v3
        """)


HEADER = open("cdna_kernels/" + NAME + ".s.ref").read().split("; Override launch")[0]

def kernel_text(label, body):
    return f""".text
.globl {label}
.p2align 8
.type {label},@function
{label}:
{body}
"""
def desc(label, vgpr=256):
    return f""".section .rodata,"a"
.p2align 6
.amdhsa_kernel {label}
  .amdhsa_next_free_vgpr {vgpr}
  .amdhsa_next_free_sgpr 102
  .amdhsa_accum_offset {vgpr}
  .amdhsa_group_segment_fixed_size 0
  .amdhsa_kernarg_size 120
  .amdhsa_user_sgpr_count 2
  .amdhsa_user_sgpr_kernarg_segment_ptr 1
  .amdhsa_system_sgpr_workgroup_id_x 1
.end_amdhsa_kernel
"""
```

```python
import sys, os
from parts import *
E = lambda k, d=0: int(os.environ.get(k, d))

class Fused(Gen):
    def cnt_add(self, addr, rtn=False):
        self.a(f"""
        v_mov_b32 v2, {addr}
        v_mov_b32 v3, 1
        s_mov_b64 exec, 1
        {'ds_add_rtn_u32 v4, v2, v3' if rtn else 'ds_add_u32 v2, v3'}
        s_mov_b64 exec, -1
        """)

    def cnt_wait(self, addr, n, name, sleep=0):
        lab = self.L(name)
        self.a(f"""
        v_mov_b32 v2, {addr}
        s_mov_b32 s61, 0
        {lab}:
        ds_read_b32 v3, v2
        s_add_u32 s61, s61, 1
        s_waitcnt lgkmcnt(0)
        v_readfirstlane_b32 s60, v3
        s_cmp_gt_u32 s61, 0x100000
        s_cbranch_scc1 {lab}_d
        s_cmp_ge_u32 s60, {n}
        s_cbranch_scc1 {lab}_d
        {'s_sleep %d' % sleep if sleep else ''}
        s_branch {lab}
        {lab}_d:
        """)

    def build_fused(self):
        a = self.a
        L = self.L
        st = 2 if self.stamps else 0
        N0 = E('N0', 8)
        slp = ('s_sleep %d' % PSLEEP) if PSLEEP else ''
        GE = E('GE', 1); NA = E('NA', 0); GL = E('GL', 0); GS = 40 - 4 * GE - 3 * NA - 3 * GL
        def aux_dma(p):
            if NA == 0: return
            self.w1_addr(12)
            a(f"s_add_u32 s68, s70, {GS}\n{L('adl' + p)}:")
            self.w1_group(12)
            a(f"s_add_u32 s68, s68, 3\ns_cmp_lt_u32 s68, {GS + 3 * NA}\ns_cbranch_scc1 {L('adl' + p)}")
        a(f"{L('start')}:")
        self.prologue()
        self.stamp(0)
        if 0 in self.sel:
            a(f"v_mov_b32 v1, s94\ns_mov_b64 exec, 1\nbuffer_store_dword v1, off, s[{R_WS}:{R_WS+3}], s100 offset:124\ns_mov_b64 exec, -1")
        a(f"s_cmp_ge_u32 s{S_WAVE}, 4\ns_cbranch_scc1 {L('aux0')}")
        a(f"s_setprio {E('GP', 2)}")
        self.ln_loads()
        a(f"s_branch {L('gemm')}\n{L('aux0')}:")
        a.clear_hist()
        a(f"s_sub_u32 s60, s{S_WAVE}, 4\ns_cmp_ge_u32 s60, s{S_NCH}\ns_cbranch_scc1 {L('aux1')}")
        self.kg_loads()
        a(f"s_branch {L('kg')}\n{L('aux1')}:")
        a(f"s_cmp_lg_u32 s{S_WAVE}, 7\ns_cbranch_scc1 {L('noch')}")
        a(f"s_setprio {E('SP', 1)}")
        self.w1_addr(12)
        a(f"""
        s_mul_i32 s68, s{S_RB}, {GS}
        s_lshr_b32 s68, s68, 4
        s_mov_b32 s67, {GS}
        {L('sdl')}:
        """)
        self.w1_group(12)
        a(f"""
        s_add_u32 s68, s68, 1
        s_cmp_eq_u32 s68, {GS}
        s_cselect_b32 s68, 0, s68
        s_cmp_lg_u32 s67, {GS - 1}
        s_cbranch_scc1 {L('sdw')}
        """)
        self.srd(R_OUT, P_OUT, 2621440)
        a(f"""
        v_lshlrev_b32 v3, 20, v0
        s_mov_b32 exec_hi, 0
        buffer_load_dword v131, v3, s[{R_WS}:{R_WS+3}], 0 offen
        buffer_load_dword v132, v3, s[{R_OUT}:{R_OUT+3}], 0 offen
        s_mov_b64 exec, -1
        {L('sdw')}:
        s_sub_u32 s67, s67, 1
        s_cmp_lg_u32 s67, 0
        s_waitcnt vmcnt({E('DEPTH', 45)})
        s_cbranch_scc1 {L('sdl')}
        s_branch {L('svc')}
        {L('gemm')}:
        """)
        a.clear_hist()
        self.w1_addr(92)
        self.g1_b1_loads()
        a(f"s_add_u32 s68, s{S_WAVE}, {GS + 3 * NA}")
        for i in range(GE):
            self.w1_group(92)
            if i + 1 < GE: a("s_add_u32 s68, s68, 4")
        self.ln_pub_addr()
        a(f"s_waitcnt vmcnt({6 + 3 * GE})")
        self.stamp(1)
        self.ln_math()
        a("s_waitcnt lgkmcnt(0)")
        self.lds_set(M_LNW, S_WAVE, tmp=(2, 3))
        self.lds_wait_all(M_LNW, 4, "lnw4", tmp=2, sleep=0)
        a(f"v_mov_b32 v97, 0\nv_mov_b32 v96, 0\ns_cmp_lg_u32 s{S_WAVE}, 0\ns_cbranch_scc1 {L('g_n0')}")
        a(f"global_load_dword v96, v97, s[{P_DBG}:{P_DBG+1}] sc1\n{L('g_n0')}:")
        self.ln_publish()
        self.ln_publish_xt()
        self.stamp(13)
        self.cnt_add(M_LNCNT + 8)
        a("s_waitcnt vmcnt(5)" if 13 not in self.sel else "s_waitcnt vmcnt(6)")
        self.cnt_add(M_LNCNT + 12)
        self.g1_prep()
        self.g2_addr()
        a("s_waitcnt vmcnt(0)")
        self.stamp(2)
        a(f"s_cmp_eq_u32 s{S_WAVE}, 0\ns_cbranch_scc1 {L('g_w0')}")
        self.cnt_add(M_LNCNT)
        if GL:
            a(f"s_add_u32 s68, s{S_WAVE}, {40 - 3 * GL - 1}")
            for i in range(GL):
                self.w1_group(92)
                if i + 1 < GL: a("s_add_u32 s68, s68, 3")
            a("s_waitcnt vmcnt(0)")
            self.cnt_add(M_LNCNT + 12)
        a(f"s_branch {L('g_j')}\n{L('g_w0')}:")
        a(f"""
        s_mov_b32 s64, 0
        {L('np')}:
        v_readfirstlane_b32 s{S_NONCE}, v96
        s_cmp_gt_u32 s64, 0x8000
        s_cbranch_scc1 {L('npd')}
        s_cmp_lg_u32 s{S_NONCE}, 0
        s_cbranch_scc1 {L('npd')}
        global_load_dword v96, v97, s[{P_DBG}:{P_DBG+1}] sc1
        s_add_u32 s64, s64, 1
        s_waitcnt vmcnt(0)
        s_nop 1
        s_branch {L('np')}
        {L('npd')}:
        v_mov_b32 v2, s{S_NONCE}
        v_mov_b32 v3, {M_NONCE}
        ds_write_b32 v3, v2
        v_mov_b32 v3, {M_LNCNT}
        s_mov_b32 s64, 0
        {L('lc')}:
        ds_read_b32 v2, v3
        s_add_u32 s64, s64, 1
        s_waitcnt lgkmcnt(0)
        v_readfirstlane_b32 s60, v2
        s_cmp_gt_u32 s64, 0x100000
        s_cbranch_scc1 {L('lcd')}
        s_cmp_lt_u32 s60, 3
        s_cbranch_scc1 {L('lc')}
        {L('lcd')}:
        s_mul_i32 s66, s{S_LID}, {FSTR}
        s_add_u32 s66, s66, {FLN}
        """)
        self.store_flag(66)
        self.stamp(10)
        a(f"s_mul_i32 s66, s{S_RB}, {16*FSTR}\ns_add_u32 s66, s66, {FLN}")
        if E('W1D'): a(f"s_sleep {E('W1D')}")
        if E('SP1'): self.spoll("pln", 66, FSTR, E('SS', 1))
        elif E('PD1'):
            self.ptmp = 240
            self.poll_pipe("pln", 66, 16, FSTR, E('PD1'), E('PG1', 1))
        else: self.poll_flags("pln", 66, 16)
        self.lds_set(M_LN, None, tmp=(2, 3))
        a(f"s_cmp_lg_u32 s{S_RB}, s{S_CB}\ns_cbranch_scc1 {L('g_j')}\ns_mul_i32 s66, s{S_RB}, {FSTR}\ns_add_u32 s66, s66, {FL2}")
        self.store_flag(66)
        a(f"{L('g_j')}:")
        self.lds_wait_all(M_LN, 1, "lnw", tmp=2)
        self.stamp(3)
        self.vq = []
        if E('PD1'): N0 = min(N0, 17)
        for ks in range(N0):
            for it in self.g1_aload(ks): self.emit(it)
        self.lds_set(M_LN + 4, None, tmp=(2, 3))
        self.get_nonce("gn", tmp=2)
        self.cnt_wait(M_LNCNT + 12, 5 + (3 if NA else 0) + (3 if GL else 0), "w1w")
        self.stamp(4, q=True)
        self.pubn = ''
        def publish(p):
            self.vwait("S")
            self.cnt_add(M_HC + 4 * p, rtn=True)
            a(f"""
            s_mul_i32 s66, s{S_LID}, {FHS}
            s_add_u32 s66, s66, {FH + 256 * FHS * p}
            s_waitcnt lgkmcnt(0)
            s_nop 1
            v_readfirstlane_b32 s60, v4
            s_cmp_lg_u32 s60, 3
            s_cbranch_scc1 {L('nofh%d%s' % (p, self.pubn))}
            """)
            self.store_flag(66)
            if p == 0: self.lds_set(M_HP, None, tmp=(2, 3))
            a(f"{L('nofh%d%s' % (p, self.pubn))}:")
            self.stamp(28 + p, q=True)
            self.vq.append("f")
            self.vq.pop()
        def cnt_wait(addr, n, name):
            lab = L(name)
            a(f"""
            v_mov_b32 v2, {addr}
            s_mov_b32 s61, 0
            {lab}:
            ds_read_b32 v3, v2
            s_add_u32 s61, s61, 1
            s_waitcnt lgkmcnt(0)
            v_readfirstlane_b32 s60, v3
            s_cmp_gt_u32 s61, 0x100000
            s_cbranch_scc1 {lab}_d
            s_cmp_lt_u32 s60, {n}
            s_cbranch_scc1 {lab}
            {lab}_d:
            """)
        def ev_rb():
            self.lds_wait_all(M_FW, 1, "fww", tmp=2)
            return sum((self.g2_bload_items(j) for j in range(6, 9)), [])
        ev = {10: lambda: self.stamp(14, q=True)}
        RB1 = E('RB1', 11)
        if RB1 < 20: ev[RB1] = ev_rb
        self.g2_setup_s()
        fa, fv = self.g1_loop(N0, ev, TL=E('TL', 5))
        self.cnt_add(M_PD)
        self.stamp(5, q=True)
        for it in fa + self.epi_ops(2) + fv: self.emit(it)
        self.stamp(15, q=True)
        rest = ev_rb() if RB1 >= 20 else []
        cnt_wait(M_PD, 4, "pdw")
        self.g2_setup_v()
        ND = E('ND', 2)
        for j in range(ND):
            for it in self.g2_dma_items(j): self.emit(it)
        publish(0)
        if E('PF'): a("s_setprio 0")
        for j in range(ND, 6):
            for it in self.g2_dma_items(j): self.emit(it)
        for it in rest: self.emit(it)
        self.stamp(6, q=True)
        self.fh_wait(0)
        for j in range(5):
            for it in self.g2_aload_items(j): self.emit(it)
        self.stamp(7, q=True)
        self.g2_loop(hook=lambda: self.lds_set(M_J6, None, tmp=(2, 3)), hook_at=E('J6', 6))
        self.stamp(8)
        if E('PF'): a("s_setprio 2")
        self.g2_final()
        if 9 in self.sel: a("s_waitcnt vmcnt(0)")
        self.stamp(9)
        if E('KX'):
            a(f"""
            s_waitcnt vmcnt(0)
            s_memrealtime s[62:63]
            s_waitcnt lgkmcnt(0)
            s_sub_u32 s60, s62, s{S_NONCE}
            s_min_u32 s60, s60, 10000
            s_mul_i32 s60, s60, {E('KX')}
            {L('kx')}:
            s_memrealtime s[62:63]
            s_waitcnt lgkmcnt(0)
            s_sub_u32 s61, s62, s{S_NONCE}
            s_cmp_lt_u32 s61, s60
            s_cbranch_scc1 {L('kx')}
            """)
        self.dg_end(0)
        self.role = 'c'
        a(f"s_endpgm\n{L('kg')}:")
        a.clear_hist()
        aux_dma("a")
        a(f"s_waitcnt vmcnt({3 * NA})")
        self.stamp(1)
        if E('X1'):
            self.get_nonce("x1n", tmp=2)
            self.lds_set(M_CD, 70, tmp=(2, 3))
            a(f"s_mul_i32 s66, s71, {FSTR}\ns_add_u32 s66, s66, {FS}")
            self.store_flag(66)
            a("s_endpgm")
        def khook():
            a(f"s_cmp_lg_u32 s73, 2\ns_cbranch_scc1 {L('kh')}\ns_waitcnt vmcnt(0)")
            self.cnt_add(M_LNCNT + 12)
            a(f"{L('kh')}:")
        self.kgen(hook=khook if NA else None)
        self.stamp(3)
        self.expand()
        self.stamp(2)
        self.get_nonce("cn", tmp=2)
        self.lds_wait_all(M_U, 1, "uw", tmp=2)
        self.stamp(4)
        if E('CW'):
            lab = L("cw")
            a(f"""
            v_mov_b32 v2, {M_PD + 4 * (E('CW') - 1)}
            s_mov_b32 s61, 0
            {lab}:
            ds_read_b32 v3, v2
            s_add_u32 s61, s61, 1
            s_waitcnt lgkmcnt(0)
            v_readfirstlane_b32 s60, v3
            s_cmp_gt_u32 s61, 0x100000
            s_cbranch_scc1 {lab}_d
            s_cmp_ge_u32 s60, 4
            s_cbranch_scc1 {lab}_d
            s_sleep 2
            s_branch {lab}
            {lab}_d:
            """)
        if E('PF'): a("s_setprio 1")
        self.conv()
        self.lds_set(M_CD, 70, tmp=(2, 3))
        self.stamp(5)
        a(f"s_mul_i32 s66, s71, {FSTR}\ns_add_u32 s66, s66, {FS}\ns_waitcnt vmcnt(0)")
        self.store_flag(66)
        self.stamp(6)
        a(f"s_endpgm\n{L('noch')}:")
        a.clear_hist()
        a(f"s_sub_u32 s70, s{S_WAVE}, 4")
        aux_dma("b")
        a(f"s_cmp_eq_u32 s{S_WAVE}, 6\ns_cbranch_scc1 {L('rt')}\ns_waitcnt vmcnt(0)")
        if NA: self.cnt_add(M_LNCNT + 12)
        a(f"s_endpgm\n{L('rt')}:")
        self.w2_loads()
        a("s_waitcnt vmcnt(0)")
        if NA: self.cnt_add(M_LNCNT + 12)
        self.cnt_wait(M_LNCNT + 8, 4, "rtw", sleep=2)
        a("s_setprio 3")
        self.w2_retile()
        a(f"""
        v_mov_b32 v3, 0
        s_mov_b32 s64, 0
        {L('wn')}:
        global_load_dword v2, v3, s[{P_DBG}:{P_DBG+1}] sc1
        s_add_u32 s64, s64, 1
        s_waitcnt vmcnt(0)
        s_nop 1
        v_readfirstlane_b32 s{S_NONCE}, v2
        s_cmp_gt_u32 s64, 0x8000
        s_cbranch_scc1 {L('wnd')}
        s_cmp_eq_u32 s{S_NONCE}, 0
        s_cbranch_scc1 {L('wn')}
        {L('wnd')}:
        """)
        a(f"s_mul_i32 s66, s43, {FSTR}\ns_add_u32 s66, s66, {FW}\ns_waitcnt vmcnt(0)")
        self.store_flag(66)
        self.stamp(7)
        a(f"s_endpgm\n{L('svc')}:")
        a.clear_hist()
        self.role = 's'
        a("s_waitcnt vmcnt(0)")
        self.cnt_add(M_LNCNT + 12)
        a("s_setprio 3")
        self.stamp(2)
        self.get_nonce("sn", tmp=2)
        def fwp():
            a(f"s_lshr_b32 s66, s{S_CB2}, 2\ns_mul_i32 s66, s66, {FSTR}\ns_add_u32 s66, s66, {FW}")
            if E('L2P', 0):
                a(f"s_mov_b32 s66, {FW}")
                self.poll_flags("pfw", 66, 48, nloads=2, istride=48*FSTR)
            else:
                self.poll_flags("pfw", 66, 48, lstride=2*FSTR)
            self.lds_set(M_FW, None, tmp=(2, 3))
            if E('L2P', 0):
                a(f"s_mul_i32 s60, s{S_IDX}, {480*128}\ns_add_u32 s60, s60, {W2F}\nv_lshlrev_b32 v2, 7, v0")
                for i in range(8):
                    if i == 7: a("s_mov_b32 exec_hi, 0")
                    a(f"buffer_load_dword v{200+i}, v2, s[{R_WS}:{R_WS+3}], s60 offen sc1\ns_add_u32 s60, s60, 8192")
                a("s_mov_b64 exec, -1")
            self.stamp(5)
        if E('SW', 1) == 1: self.lds_wait_all(M_LN, 1, "slw", tmp=2)
        fwp()
        a(f"s_cmp_eq_u32 s{S_NCH}, 0\ns_cbranch_scc1 {L('nou')}\ns_mov_b32 s66, {FL2}")
        if E('W3D'): a(f"s_sleep {E('W3D')}")
        if E('SP3'): self.spoll("pla", 66, FSTR, E('SS', 1))
        else: self.poll_flags("pla", 66, 16)
        self.stamp(3)
        self.u_gather()
        self.lds_set(M_U, None, tmp=(2, 3))
        a(f"{L('nou')}:")
        self.stamp(4)
        self.svc_x_loads()
        self.lds_wait_all(M_HP, 1, "hpw", tmp=2)
        if E('W2D'): a(f"s_sleep {E('W2D')}")
        a(f"""
        s_lshr_b32 s66, s{S_RB2}, 1
        s_mul_i32 s66, s66, {16*FHS}
        s_add_u32 s66, s66, {FH}
        v_and_b32 v2, 15, v0
        v_mul_u32_u24 v2, {FHS}, v2
        v_lshrrev_b32 v3, 4, v0
        v_lshl_add_u32 v2, v3, {(256 * FHS).bit_length() - 1}, v2
        v_lshlrev_b32 v4, 2, v0
        v_add_u32 v4, {M_FH}, v4
        """)
        if E('SP2'):
            a(f"v_mov_b32 v4, {M_FH}")
            self.spoll("pfh", 66, FHS, E('SS', 1), quarters=True)
        elif E('PD2'):
            self.ptmp = 20
            def res():
                a("""
                v_cndmask_b32 v3, 0, 1, vcc
                v_and_b32_dpp v3, v3, v3 quad_perm:[1,0,3,2] row_mask:0xf bank_mask:0xf
                v_and_b32_dpp v3, v3, v3 quad_perm:[2,3,0,1] row_mask:0xf bank_mask:0xf
                ds_write_b32 v4, v3
                """)
            self.poll_pipe("pfh", 66, 16, FHS, E('PD2'), E('PG2', 1), on_result=res, vo=2)
        else:
            a(f"""
        s_mov_b64 exec, 0xffff
        s_mov_b32 s64, 0
        {L('pfh')}:
        buffer_load_dword v3, v2, s[{R_WS}:{R_WS+3}], s66 offen sc1
        s_add_u32 s64, s64, 1
        s_waitcnt vmcnt(0)
        v_cmp_eq_u32 vcc, s{S_NONCE}, v3
        v_cndmask_b32 v3, 0, 1, vcc
        v_and_b32_dpp v3, v3, v3 quad_perm:[1,0,3,2] row_mask:0xf bank_mask:0xf
        v_and_b32_dpp v3, v3, v3 quad_perm:[2,3,0,1] row_mask:0xf bank_mask:0xf
        ds_write_b32 v4, v3
        s_cmp_gt_u32 s64, 0x8000
        s_cbranch_scc1 {L('pfhx')}
        s_cmp_eq_u64 vcc, exec
        s_cbranch_scc1 {L('pfhd')}
        s_sleep {E('HSLEEP', 4)}
        s_branch {L('pfh')}
        {L('pfhx')}:
        v_mov_b32 v3, 1
        ds_write_b32 v4, v3
        {L('pfhd')}:
        s_mov_b64 exec, -1
            """)
        self.stamp(6)
        self.lds_wait_all(M_J6, 1, "j6w", tmp=2)
        a(f"s_mul_i32 s66, s{S_CB2}, {80*FSTR}\ns_add_u32 s66, s66, {FS}")
        self.poll_flags("pfs", 66, 40, nloads=2, istride=40*FSTR)
        a(f"s_cmp_eq_u32 s{S_NCH}, 0\ns_cbranch_scc1 {L('nocd')}")
        self.lds_wait_all(M_CD, 2, "cdw", tmp=2)
        a(f"{L('nocd')}:")
        self.stamp(7)
        self.s_tile_dma()
        self.stamp(8)
        a("s_barrier")
        self.dg_end(7)
        a(f"{L('end')}:\ns_endpgm")

if __name__ == "__main__":
    path = sys.argv[1]
    opts = sys.argv[2:]
    g = Fused("fused", "stamps" in opts)
    g.sel = set(range(32)) if "stamps" in opts else ({0, 9} | {int(x) for x in os.environ.get("SEL", "").split(",") if x} if "mins" in opts else set())
    g.build_fused()
    lab = NAME + "_kernel"
    txt = HEADER + f"; @launch grid=(256,1,1) block=(512,1,1) lds={LDS_TOTAL}\n" + '.amdgcn_target "amdgcn-amd-amdhsa--gfx950"\n' + kernel_text(lab, g.a.text()) + desc(lab)
    if E('X4'):
        import re
        txt = re.sub(r"(buffer_load_dwordx4 .*?) sc1", r"\1", txt)
    if E('X2'):
        txt = "\n".join(("    s_nop 0" if ("s81 offen" in l) else l) for l in txt.split("\n"))
    open(path, "w").write(txt)
```

```python
from mk import *
def EPI2(waves):
    return f"""
    s_memrealtime s[22:23]
    s_waitcnt lgkmcnt(0)
    v_lshrrev_b32 v1, 6, v0
    s_mul_i32 s3, s2, {waves}
    v_add_u32 v1, s3, v1
    v_lshlrev_b32 v1, 3, v1
    v_mov_b32 v2, s20
    v_mov_b32 v3, s22
    v_and_b32 v4, 63, v0
    v_cmp_eq_u32 vcc, 0, v4
    s_and_saveexec_b64 s[24:25], vcc
    buffer_store_dwordx2 v[2:3], v1, s[12:15], 0 offen
    s_waitcnt vmcnt(0)
"""
def g1(name, doA=True, doB=True, xcdmap=True, nA=40, nB=30, alay=0):
    b = "    s_memrealtime s[20:21]\n" + PRO
    if xcdmap:
        b += """
    s_and_b32 s30, s2, 7
    s_lshr_b32 s31, s2, 3
    s_and_b32 s32, s30, 3
    s_lshl_b32 s32, s32, 2
    s_and_b32 s33, s31, 3
    s_add_u32 s32, s32, s33      ; rowblk
    s_lshr_b32 s33, s30, 2
    s_lshl_b32 s33, s33, 3
    s_lshr_b32 s34, s31, 2
    s_add_u32 s33, s33, s34      ; colblk
"""
    else:
        b += """
    s_lshr_b32 s32, s2, 4
    s_and_b32 s33, s2, 15
"""
    b += """
    v_lshrrev_b32 v1, 6, v0      ; wave
    v_and_b32 v2, 63, v0         ; lane
    v_and_b32 v3, 15, v2         ; m
    v_lshrrev_b32 v4, 4, v2      ; h
    s_lshl_b32 s35, s32, 7       ; row0
    v_lshlrev_b32 v5, 5, v1
    v_add_u32 v5, v5, v3
    v_add_u32 v5, s35, v5        ; row
    v_mul_u32_u24 v5, 1280, v5
"""
    if alay==0:
        b += "    v_lshlrev_b32 v6, 4, v4\n"
    else:
        b += "    v_lshlrev_b32 v6, 5, v4\n"
    b += """
    v_add_u32 v5, v5, v6
    v_add_u32 v6, 20480, v5      ; rows 16..31
"""
    b += """
    s_mul_i32 s36, s33, 192
    s_add_u32 s36, s36, 0x400000
    v_readfirstlane_b32 s37, v1
    s_lshl_b32 s37, s37, 10
"""
    ins=[]
    for i in range(nB):
        t = f"""
    v_add_u32 v7, {i*256}, v0
    v_mul_u32_u24 v8, 43691, v7
    v_lshrrev_b32 v8, 19, v8      ; /12
    v_mul_u32_u24 v9, 12, v8
    v_sub_u32 v9, v7, v9
    v_mul_u32_u24 v8, 3072, v8
    v_lshl_add_u32 v8, v9, 4, v8
    s_add_u32 m0, s37, {i*4096}
    s_nop 0
    buffer_load_dwordx4 v8, s[8:11], s36 offen lds
"""
        ins.append(t)
    insA=[]
    for i in range(nA):
        ks=i//2; r=i%2
        if alay==0: off=ks*64
        else: off=(ks//2)*128+(ks%2)*16
        insA.append(f"    buffer_load_dwordx4 v[{16+4*i}:{19+4*i}], v{5+r}, s[8:11], 0 offen offset:{off}\n")
    ia=ib=0
    while ia<len(insA) or ib<len(ins):
        if doB and ib<len(ins): b+=ins[ib]
        ib+=1
        if doA and ia<len(insA): b+=insA[ia]
        ia+=1
        if doA and ia<len(insA) and ia%3==0: b+=insA[ia]; ia+=1
    b += "    s_waitcnt vmcnt(0)\n    s_barrier\n" + EPI2(4)
    build(name, b, vgpr=192)
if __name__=="__main__":
  g1("g1ab"); g1("g1a", doB=False); g1("g1b", doA=False); g1("g1nox", xcdmap=False); g1("g1a2", doB=False, alay=1); g1("g1none", doA=False, doB=False)
```

```python
from mk import *
from mem1 import EPI2
def k(name, S, glc):
    b = "    s_memrealtime s[20:21]\n" + PRO
    b += f"""
    s_mul_i32 s30, s2, {S}
    s_add_u32 s30, s30, 0x40000
    v_mov_b32 v5, 1
    s_and_b32 s31, s2, 240
    s_mul_i32 s31, s31, {S}
    s_add_u32 s31, s31, 0x40000
    s_add_u32 s34, s6, s31
    s_addc_u32 s35, s7, 0
    s_mov_b32 s33, 0
"""
    for i in range(16): b += f"    s_load_dword s{48+i}, s[34:35], {i*S} {glc}\n"
    b += """    s_waitcnt lgkmcnt(0)
    s_mov_b64 exec, 1
    buffer_store_dword v5, off, s[12:15], s30 sc1
    s_mov_b64 exec, -1
Lp:
"""
    for i in range(16): b += f"    s_load_dword s{48+i}, s[34:35], {i*S} {glc}\n"
    b += "    s_add_u32 s33, s33, 1\n    s_waitcnt lgkmcnt(0)\n"
    for i in range(1,16): b += f"    s_and_b32 s48, s48, s{48+i}\n"
    b += """    s_cmp_gt_u32 s33, 3000
    s_cbranch_scc1 Ld
    s_cmp_eq_u32 s48, 0
    s_cbranch_scc1 Lp
Ld:
""" + EPI2(1)
    build(name, b, vgpr=16)
k("sp_128g",128,"glc"); k("sp_128n",128,""); k("sp_4g",4,"glc")
```

```python
import sys
from asmlib import Asm, vr, sr

NAME = "recurrent_scan__ssm_conv_s4d__dense_activation_squared_relu__prompt"
XF = 0x0; XT = 0x280000; HF = 0x500000; W2F = 0xB00000; ST = 0xD00000
FLG = 0xF80000; STAMP = 0x1000000; WS_SIZE = 0x1100000
import os
FSTR = int(os.environ.get('FSTR','128'))
PSLEEP = int(os.environ.get('PSLEEP','0'))
LSLEEP = int(os.environ.get('LSLEEP','0'))
FHS = int(os.environ.get('FHS','128'))
FLN = FLG; FH = FLG + 0x8000; FW = FLG + 0x20000; FS = FLG + 0x24000; FL2 = FLG + 0x50000; FLT = FLG + 0x48000; FWR = FLG + 0x60000
AUX = 122880; RSZ = 12896; K1O = 4160; UO = 8320; UPAD = 480
MISC = AUX + 3 * RSZ
LDS_TOTAL = 163840
M_LNCNT = MISC; M_W1 = MISC + 16; M_G1D = MISC + 32; M_U = MISC + 48; M_NONCE = MISC + 112
M_LNR = MISC + 80; M_LN = MISC + 192; M_LNW = MISC + 240; M_J6 = MISC + 208; M_HP = MISC + 224; M_FW = MISC + 64; M_HCNT = MISC + 68; M_FH = MISC + 256; M_PD = MISC + 128; M_HC = MISC + 144; M_CD = MISC + 96
LNRS = 1296
LNIMG = 122880 - 10752
IMG = [0, 40960, 81920]
XRS = 176; XI = AUX + RSZ; M_B2 = MISC + 512
P_X, P_LA, P_AI, P_CR, P_CI, P_DT, P_DS = 4, 6, 8, 10, 12, 14, 16
P_W1, P_B1, P_W2, P_B2, P_OUT, P_DBG, P_WS = 20, 22, 24, 26, 28, 30, 32
S_WAVE, S_XCD, S_IDX, S_RB, S_CB, S_RB2, S_CB2, S_NCH, S_CH0 = 34, 35, 36, 37, 38, 39, 40, 41, 42
R_WS, R_X, R_W, R_OUT = 44, 48, 52, 56
S_NONCE = 96
S_LID = 93
LOG2E = 0x3fb8aa3b
INV2PI = 0x3e22f983

class Gen:
    def __init__(self, mode, stamps=False):
        self.a = Asm()
        self.mode = mode
        self.fused = mode == "fused"
        self.stamps = stamps
        self.sel = set()
        self.role = 'g'
        self.seen = set()
        self.pfx = mode

    def L(self, n):
        return f"{self.pfx}_{n}"

    def stamp(self, slot, q=False):
        if os.environ.get('DGP') and (self.role, slot) == (os.environ['DGP'][0], int(os.environ['DGP'][1:])):
            self.a('s_memrealtime s[72:73]\ns_waitcnt lgkmcnt(0)')
        if slot not in self.sel: return
        if q: self.vq += ['st']
        a = self.a
        a(f"""
        s_memrealtime s[98:99]
        s_lshl_b32 s100, s2, 3
        s_add_u32 s100, s100, s{S_WAVE}
        s_lshl_b32 s100, s100, 7
        s_add_u32 s100, s100, {STAMP + slot*4}
        s_waitcnt lgkmcnt(0)
        v_mov_b32 v1, s98
        s_mov_b64 s[98:99], exec
        s_mov_b64 exec, 1
        buffer_store_dword v1, off, s[{R_WS}:{R_WS+3}], s100
        s_mov_b64 exec, s[98:99]
        """)

    def dg_end(self, wave):
        if not os.environ.get('DGP') or os.environ['DGP'][0] != self.role: return
        lab = self.L('dg' + self.role)
        self.a(f"""
        s_cmp_lg_u32 s2, 0
        s_cbranch_scc1 {lab}_d
        s_cmp_lg_u32 s{S_WAVE}, {wave}
        s_cbranch_scc1 {lab}_d
        s_sub_u32 s60, s72, s94
        s_min_u32 s60, s60, 3000
        s_mul_i32 s60, s60, 5
        s_memrealtime s[62:63]
        s_waitcnt lgkmcnt(0)
        s_mov_b32 s64, s62
        {lab}:
        s_memrealtime s[62:63]
        s_waitcnt lgkmcnt(0)
        s_sub_u32 s61, s62, s64
        s_cmp_lt_u32 s61, s60
        s_cbranch_scc1 {lab}
        {lab}_d:
        """)

    def srd(self, r, p, size):
        self.a(f"""
        s_mov_b32 s{r}, s{p}
        s_and_b32 s{r+1}, s{p+1}, 0xffff
        s_mov_b32 s{r+2}, {size}
        s_mov_b32 s{r+3}, 0x00020000
        """)

    def prologue(self):
        a = self.a
        a(f"""
        s_load_dwordx16 s[4:19], s[0:1], 0
        s_load_dwordx8 s[20:27], s[0:1], 64
        s_load_dwordx4 s[28:31], s[0:1], 96
        s_load_dwordx2 s[32:33], s[0:1], 112
        s_memrealtime s[94:95]
        s_cmp_ge_u32 s2, 256
        s_cbranch_scc1 {self.L('end')}
        v_lshrrev_b32 v1, 6, v0
        v_and_b32 v0, 63, v0
        s_and_b32 s{S_XCD}, s2, 7
        v_readfirstlane_b32 s{S_WAVE}, v1
        s_lshr_b32 s{S_IDX}, s2, 3
        s_getpc_b64 s[62:63]
        {self.L('pc')}:
        s_cmp_lg_u32 s{S_WAVE}, 7
        s_cbranch_scc1 {self.L('nopf')}
        s_and_b32 s60, s{S_IDX}, 7
        s_lshl_b32 s60, s60, 12
        v_lshlrev_b32 v2, 7, v0
        v_add_u32 v2, s60, v2
        v_min_u32 v2, {self.L('end')}-{self.L('pc')}, v2
        s_mov_b32 exec_hi, 0
        global_load_dword v130, v2, s[62:63]
        s_mov_b32 exec_hi, -1
        {self.L('nopf')}:
        s_and_b32 s60, s{S_XCD}, 3
        s_lshl_b32 s60, s60, 2
        s_and_b32 s61, s{S_IDX}, 3
        s_add_u32 s{S_RB}, s60, s61
        s_lshr_b32 s60, s{S_XCD}, 2
        s_lshl_b32 s60, s60, 3
        s_lshr_b32 s{S_CB2}, s{S_IDX}, 2
        s_add_u32 s{S_CB}, s60, s{S_CB2}
        s_lshl_b32 s60, s{S_XCD}, 2
        s_add_u32 s{S_RB2}, s60, s61
        ; conv channels: g = idx/3, pos = idx%3
        s_mul_i32 s60, s{S_IDX}, 43
        s_lshr_b32 s60, s60, 7
        s_mul_i32 s61, s60, 3
        s_sub_u32 s61, s{S_IDX}, s61
        s_mul_i32 s62, s{S_XCD}, 80
        s_lshl_b32 s63, s60, 3
        s_add_u32 s62, s62, s63
        s_mul_i32 s63, s61, 3
        s_add_u32 s{S_CH0}, s62, s63
        s_cmp_eq_u32 s61, 2
        s_cselect_b32 s{S_NCH}, 2, 3
        s_cmp_ge_u32 s{S_IDX}, 30
        s_cselect_b32 s{S_NCH}, 0, s{S_NCH}
        s_sub_u32 s61, s{S_IDX}, 20
        s_cselect_b32 s60, s61, s60
        """)
        a.lines.pop(); a.lines.pop()
        a(f"""
        s_sub_u32 s61, s{S_IDX}, 20
        s_cmp_ge_u32 s{S_IDX}, 30
        s_cselect_b32 s60, s61, s60
        s_mul_i32 s61, s{S_XCD}, 12
        s_add_u32 s43, s61, s60
        s_lshl_b32 s{S_LID}, s{S_RB}, 4
        s_add_u32 s{S_LID}, s{S_LID}, s{S_CB}
        v_lshlrev_b32 v2, 3, v0
        v_add_u32 v2, {MISC}, v2
        v_mov_b32 v4, 0
        v_mov_b32 v5, 0
        ds_write_b64 v2, v[4:5]
        s_cmp_eq_u32 s{S_WAVE}, 7
        s_cselect_b32 s60, s2, 1
        s_cmp_lg_u32 s60, 0
        s_waitcnt lgkmcnt(0)
        s_cbranch_scc1 {self.L('nonce0')}
        s_or_b32 s61, s94, 1
        v_mov_b32 v2, s61
        s_mov_b64 exec, 1
        global_store_dword v4, v2, s[{P_DBG}:{P_DBG+1}] sc1
        s_mov_b64 exec, -1
        {self.L('nonce0')}:
        s_barrier
        """)
        if os.environ.get('WSOFF'):
            a(f"s_add_u32 s{P_WS}, s{P_WS}, {int(os.environ['WSOFF'],0)}\ns_addc_u32 s{P_WS+1}, s{P_WS+1}, 0")
        self.srd(R_WS, P_WS, WS_SIZE)
        self.srd(R_X, P_X, 2621440)

    def rowaddr(self, dst, row, t):
        self.a(f"""
        v_mul_u32_u24 v{t}, 11, v{row}
        v_lshrrev_b32 v{t}, 5, v{t}
        v_mul_u32_u24 v{dst}, {LNRS}, v{row}
        v_mad_u32_u24 v{dst}, v{t}, s97, v{dst}
        v_lshrrev_b32 v{t}, 1, v{t}
        v_mul_u32_u24 v{t}, 1440, v{t}
        v_add3_u32 v{dst}, v{dst}, v{t}, s61
        """)

    def ln_loads(self):
        a = self.a
        a(f"""
        s_lshl_b32 s60, s{S_LID}, 3
        s_lshl_b32 s61, s{S_WAVE}, 1
        s_add_u32 s60, s60, s61
        s_mul_i32 s60, s60, 1280
        v_lshrrev_b32 v2, 5, v0
        v_and_b32 v3, 31, v0
        v_mul_u32_u24 v1, 1280, v2
        v_lshl_add_u32 v1, v3, 3, v1
        """)
        for i in range(5):
            a(f"buffer_load_dwordx2 v[{100+2*i}:{101+2*i}], v1, s[{R_X}:{R_X+3}], s60 offen offset:{256*i}")

    def reduce32(self, v, t):
        a = self.a
        a(f"""
        v_add_f32_dpp v{v}, v{v}, v{v} quad_perm:[1,0,3,2] row_mask:0xf bank_mask:0xf
        v_add_f32_dpp v{v}, v{v}, v{v} quad_perm:[2,3,0,1] row_mask:0xf bank_mask:0xf
        v_add_f32_dpp v{v}, v{v}, v{v} row_half_mirror row_mask:0xf bank_mask:0xf
        v_add_f32_dpp v{v}, v{v}, v{v} row_mirror row_mask:0xf bank_mask:0xf
        v_mov_b32 v{t}, v{v}
        v_permlane16_swap_b32 v{v}, v{t}
        v_add_f32 v{v}, v{v}, v{t}
        """)

    def ln_math(self):
        a = self.a
        X = 110; Dd = 130; S = 150
        for i in range(10):
            a(f"v_lshlrev_b32 v{X+2*i}, 16, v{100+i}")
            a(f"v_and_b32 v{X+1+2*i}, 0xffff0000, v{100+i}")
        P = lambda r: f"v[{r}:{r+1}]"
        a(f"v_pk_add_f32 {P(S)}, {P(X)}, {P(X+2)}\nv_pk_add_f32 {P(S+2)}, {P(X+4)}, {P(X+6)}")
        for i in range(4, 10):
            a(f"v_pk_add_f32 {P(S+2*(i%2))}, {P(S+2*(i%2))}, {P(X+2*i)}")
        a(f"v_pk_add_f32 {P(S)}, {P(S)}, {P(S+2)}\nv_add_f32 v{S}, v{S}, v{S+1}")
        self.reduce32(S, S + 1)
        a(f"v_mul_f32 v{S+4}, 0x3acccccd, v{S}")
        for i in range(10):
            a(f"v_pk_add_f32 {P(Dd+2*i)}, {P(X+2*i)}, {P(S+4)} op_sel_hi:[1,0] neg_lo:[0,1] neg_hi:[0,1]")
        a(f"v_pk_mul_f32 {P(S)}, {P(Dd)}, {P(Dd)}\nv_pk_mul_f32 {P(S+2)}, {P(Dd+2)}, {P(Dd+2)}")
        for i in range(2, 10):
            a(f"v_pk_fma_f32 {P(S+2*(i%2))}, {P(Dd+2*i)}, {P(Dd+2*i)}, {P(S+2*(i%2))}")
        a(f"v_pk_add_f32 {P(S)}, {P(S)}, {P(S+2)}\nv_add_f32 v{S}, v{S}, v{S+1}")
        self.reduce32(S, S + 1)
        a(f"""
        v_mul_f32 v{S+5}, 0x3acccccd, v{S}
        v_cvt_pk_bf16_f32 v{S}, v{S+4}, v{S+5}
        v_lshlrev_b32 v{S+4}, 16, v{S}
        v_and_b32 v{S+2}, 0xffff0000, v{S}
        v_add_f32 v{S+2}, 0x3727c5ac, v{S+2}
        v_cvt_pk_bf16_f32 v{S+2}, v{S+2}, v{S+2}
        v_and_b32 v{S+2}, 0xffff0000, v{S+2}
        v_sqrt_f32 v{S+2}, v{S+2}
        """)
        for i in range(10):
            a(f"v_pk_add_f32 {P(Dd+2*i)}, {P(X+2*i)}, {P(S+4)} op_sel_hi:[1,0] neg_lo:[0,1] neg_hi:[0,1]")
            if i == 1:
                a(f"v_cvt_pk_bf16_f32 v{S+2}, v{S+2}, v{S+2}\nv_and_b32 v{S+2}, 0xffff0000, v{S+2}\nv_rcp_f32 v{S+2}, v{S+2}")
        for i in range(10):
            a(f"v_cvt_pk_bf16_f32 v{100+i}, v{Dd+2*i}, v{Dd+1+2*i}")
        for i in range(10):
            a(f"v_lshlrev_b32 v{X+2*i}, 16, v{100+i}")
            a(f"v_and_b32 v{X+1+2*i}, 0xffff0000, v{100+i}")
        for i in range(10):
            a(f"v_pk_mul_f32 {P(X+2*i)}, {P(X+2*i)}, {P(S+2)} op_sel_hi:[1,0]")
        for i in range(5):
            a(f"v_cvt_pk_bf16_f32 v{100+2*i}, v{X+4*i}, v{X+4*i+1}")
            a(f"v_cvt_pk_bf16_f32 v{101+2*i}, v{X+4*i+2}, v{X+4*i+3}")
            a(f"ds_write_b64 v98, v[{100+2*i}:{101+2*i}] offset:{256*i}")

    def ln_pub_addr(self):
        a = self.a
        a(f"""
        s_mov_b32 s84, s{S_WAVE}
        s_mov_b32 s97, {RSZ - 3*LNRS}
        s_mov_b32 s61, {AUX + UO + UPAD}
        s_lshl_b32 s60, s{S_WAVE}, 1
        v_lshrrev_b32 v2, 5, v0
        v_add_u32 v2, s60, v2
        """)
        self.rowaddr(98, 2, 5)
        a(f"""
        v_and_b32 v3, 31, v0
        v_lshl_add_u32 v98, v3, 3, v98
        s_lshl_b32 s60, s84, 7
        s_add_u32 s61, s61, s60
        v_and_b32 v1, 7, v0
        """)
        self.rowaddr(156, 1, 5)
        a(f"""
        v_lshrrev_b32 v2, 3, v0
        v_lshl_add_u32 v156, v2, 4, v156
        v_lshrrev_b32 v157, 2, v2
        v_and_b32 v5, 3, v2
        v_lshlrev_b32 v157, 10, v157
        v_lshl_add_u32 v157, v5, 8, v157
        v_lshl_add_u32 v157, v1, 4, v157
        v_and_b32 v1, 15, v0
        v_lshrrev_b32 v2, 2, v1
        v_sub_u32 v3, 7, v2
        v_sub_u32 v2, 3, v2
        """)
        self.rowaddr(158, 2, 5)
        self.rowaddr(99, 3, 5)
        a(f"""
        v_and_b32 v1, 3, v0
        v_lshrrev_b32 v2, 4, v0
        v_lshlrev_b32 v1, 3, v1
        v_lshl_add_u32 v1, v2, 5, v1
        v_add_u32 v158, v158, v1
        v_add_u32 v99, v99, v1
        v_lshlrev_b32 v159, 4, v0
        s_lshr_b32 s85, s{S_LID}, 1
        s_mul_i32 s85, s85, 20480
        s_and_b32 s62, s{S_LID}, 1
        s_lshl_b32 s62, s62, 7
        s_add_u32 s85, s85, s62
        s_lshl_b32 s62, s84, 11
        s_add_u32 s85, s85, s62
        s_add_u32 s86, s85, 8192
        s_add_u32 s87, s85, 16384
        s_mul_i32 s88, s{S_LID}, 10240
        s_lshl_b32 s62, s84, 10
        s_add_u32 s88, s88, s62
        s_add_u32 s88, s88, {XT}
        s_add_u32 s89, s88, 4096
        s_add_u32 s90, s88, 6144
        """)

    def ln_publish(self):
        a = self.a
        sc = "" if os.environ.get('V2') else "sc1"
        W = f"s[{R_WS}:{R_WS+3}]"
        l2 = self.L("lnp_xt3"); l3 = self.L("lnp_done")
        a(f"""
        ds_read_b128 v[160:163], v156
        ds_read_b128 v[164:167], v156 offset:512
        ds_read_b128 v[168:171], v156 offset:1024
        ds_read_b64_tr_b16 v[172:173], v99
        ds_read_b64_tr_b16 v[174:175], v158
        ds_read_b64_tr_b16 v[176:177], v99 offset:512
        ds_read_b64_tr_b16 v[178:179], v158 offset:512
        ds_read_b64_tr_b16 v[180:181], v99 offset:768
        ds_read_b64_tr_b16 v[182:183], v158 offset:768
        s_cmp_ge_u32 s84, 2
        s_waitcnt lgkmcnt(7)
        buffer_store_dwordx4 v[160:163], v157, {W}, s85 offen {sc}
        s_waitcnt lgkmcnt(6)
        buffer_store_dwordx4 v[164:167], v157, {W}, s86 offen {sc}
        s_cselect_b32 s87, {WS_SIZE}, s87
        s_waitcnt lgkmcnt(5)
        buffer_store_dwordx4 v[168:171], v157, {W}, s87 offen {sc}
        """)

    def ln_publish_xt(self):
        a = self.a
        W = f"s[{R_WS}:{R_WS+3}]"
        l3 = self.L("lnp_done")
        a(f"""
        s_cmp_lt_u32 s84, 2
        s_waitcnt lgkmcnt(0)
        buffer_store_dwordx4 v[172:175], v159, {W}, s88 offen sc1
        buffer_store_dwordx4 v[176:179], v159, {W}, s89 offen sc1
        s_cselect_b32 s90, {WS_SIZE}, s90
        buffer_store_dwordx4 v[180:183], v159, {W}, s90 offen sc1
        """)

    def w2_loads(self):
        a = self.a
        self.srd(R_OUT, P_W2, 1966080)
        a(f"""
        s_lshr_b32 s91, s43, 1
        s_and_b32 s92, s43, 1
        s_mul_i32 s62, s91, {32*1280}
        s_mul_i32 s63, s92, 640
        s_add_u32 s62, s62, s63
        s_add_u32 s63, s62, 320
        """)
        for i in range(10):
            a(f"""
            v_add_u32 v1, {64*i}, v0
            v_mul_u32_u24 v2, 52429, v1
            v_lshrrev_b32 v2, 20, v2
            v_mul_u32_u24 v3, 20, v2
            v_sub_u32 v3, v1, v3
            v_mul_u32_u24 v2, 1280, v2
            v_lshl_add_u32 v2, v3, 4, v2
            buffer_load_dwordx4 v[{64+4*i}:{67+4*i}], v2, s[{R_OUT}:{R_OUT+3}], s62 offen
            buffer_load_dwordx4 v[{104+4*i}:{107+4*i}], v2, s[{R_OUT}:{R_OUT+3}], s63 offen
            """)

    def w2_retile(self, mid=None):
        a = self.a
        sc = "sc1"
        base = AUX + 2 * RSZ
        a(f"""
        v_lshlrev_b32 v6, 4, v0
        v_add_u32 v1, {base}, v6
        v_lshrrev_b32 v2, 4, v0
        v_and_b32 v3, 15, v0
        v_lshrrev_b32 v3, 2, v3
        v_lshl_add_u32 v2, v2, 2, v3
        v_mul_u32_u24 v2, 320, v2
        v_and_b32 v3, 3, v0
        v_lshl_add_u32 v2, v3, 3, v2
        v_add_u32 v2, {base}, v2
        s_mul_i32 s62, s92, {4*245760}
        s_mul_i32 s63, s91, 5120
        s_add_u32 s62, s62, s63
        s_add_u32 s62, s62, {W2F}
        v_add_u32 v7, 4096, v6
        """)
        for half in range(2):
            src = 64 + 40 * half
            fr = 144 + 40 * half
            for i in range(10):
                a(f"ds_write_b128 v1, v[{src+4*i}:{src+3+4*i}] offset:{1024*i}")
            a("s_waitcnt lgkmcnt(4)")
            for nt in range(10):
                d = fr + 4 * nt
                a(f"ds_read_b64_tr_b16 v[{d}:{d+1}], v2 offset:{32*nt}")
                a(f"ds_read_b64_tr_b16 v[{d+2}:{d+3}], v2 offset:{32*nt+16*320}")
                if nt == 4: a("s_waitcnt lgkmcnt(4)")
            a("s_waitcnt lgkmcnt(0)")
            for nt in range(10):
                d = fr + 4 * nt
                cbl = half * 2 + nt // 5
                n5 = nt % 5
                if n5 == 0:
                    a(f"s_add_u32 s63, s62, {cbl*245760}")
                if n5 < 4:
                    a(f"buffer_store_dwordx4 v[{d}:{d+3}], v6, s[{R_WS}:{R_WS+3}], s63 offen offset:{1024*n5} {sc}")
                else:
                    a(f"buffer_store_dwordx4 v[{d}:{d+3}], v7, s[{R_WS}:{R_WS+3}], s63 offen {sc}")
            if half == 0 and mid:
                a("v_mov_b32 v8, v2"); mid(); a("v_mov_b32 v2, v8")

    def lds_set(self, addr_imm, sidx=None, val=1, tmp=(2, 3)):
        a = self.a
        if sidx is None:
            a(f"v_mov_b32 v{tmp[0]}, {addr_imm}")
        else:
            a(f"s_lshl_b32 s60, s{sidx}, 2\ns_add_u32 s60, s60, {addr_imm}\nv_mov_b32 v{tmp[0]}, s60")
        a(f"v_mov_b32 v{tmp[1]}, {val}\nds_write_b32 v{tmp[0]}, v{tmp[1]}")

    def lds_wait_all(self, addr_imm, n, name, tmp=2, sleep=None):
        if sleep is None: sleep = LSLEEP
        a = self.a
        lab = self.L(name); done = self.L(name + "_d")
        t = tmp
        a(f"""
        v_mov_b32 v{t}, {addr_imm}
        s_mov_b32 s61, 0
        {lab}:
        ds_read_b128 v[{t+2}:{t+5}], v{t}
        s_add_u32 s61, s61, 1
        s_waitcnt lgkmcnt(0)
        """)
        for k in range(1, n):
            a(f"v_min_u32 v{t+2}, v{t+2}, v{t+2+k}")
        a(f"""
        v_readfirstlane_b32 s60, v{t+2}
        s_cmp_gt_u32 s61, 0x100000
        s_cbranch_scc1 {done}
        s_cmp_lg_u32 s60, 0
        s_cbranch_scc1 {done}
        {'s_sleep %d' % sleep if sleep else ''}
        s_branch {lab}
        {done}:
        """)

    def get_nonce(self, name, tmp=2):
        self.lds_wait_all(M_NONCE, 1, name, tmp)
        self.a(f"s_mov_b32 s{S_NONCE}, s60")

    def poll_flags(self, name, soff, nlanes, nloads=1, lstride=FSTR, istride=64*FSTR, tmp=2, pre=None):
        a = self.a
        lab = self.L(name); done = self.L(name + "_d")
        t = tmp
        a(f"v_mul_u32_u24 v{t}, {lstride}, v0")
        a(f"s_mov_b64 s[62:63], exec")
        if nlanes < 64:
            a(f"s_lshr_b64 exec, -1, {64-nlanes}")
        a(f"s_mov_b32 s64, 0\n{lab}:")
        for i in range(nloads):
            if i * istride < 4096:
                a(f"buffer_load_dword v{t+1+i}, v{t}, s[{R_WS}:{R_WS+3}], s{soff} offen offset:{i*istride} sc1")
            else:
                a(f"s_add_u32 s65, s{soff}, {i*istride}\nbuffer_load_dword v{t+1+i}, v{t}, s[{R_WS}:{R_WS+3}], s65 offen sc1")
        a("s_add_u32 s64, s64, 1\ns_waitcnt vmcnt(0)")
        for i in range(nloads):
            a(f"v_xor_b32 v{t+1+i}, s{S_NONCE}, v{t+1+i}")
        for i in range(1, nloads):
            a(f"v_or_b32 v{t+1}, v{t+1}, v{t+1+i}")
        a(f"""
        v_cmp_ne_u32 vcc, 0, v{t+1}
        s_cmp_gt_u32 s64, 0x8000
        s_cbranch_scc1 {done}
        s_cbranch_vccz {done}
        {'s_sleep %d' % PSLEEP if PSLEEP else ''}
        s_branch {lab}
        {done}:
        s_mov_b64 exec, s[62:63]
        """)

    def poll_pipe(self, name, soff, nlanes, stride, depth, gap, on_result=None, vo=None):
        a = self.a
        lab = self.L(name)
        tb = self.ptmp
        if vo is None: a(f"v_mul_u32_u24 v2, {stride}, v0")
        a(f"s_mov_b64 s[62:63], exec\ns_lshr_b64 exec, -1, {64-nlanes}\ns_mov_b32 s64, 0")
        ld = lambda i: f"buffer_load_dword v{tb+i}, v2, s[{R_WS}:{R_WS+3}], s{soff} offen sc1"
        for i in range(depth - 1):
            a(ld(i))
            if gap: a(f"s_sleep {gap}")
        a(f"{lab}:")
        for i in range(depth):
            a(ld((i + depth - 1) % depth))
            a(f"s_waitcnt vmcnt({depth-1})\nv_cmp_eq_u32 vcc, s{S_NONCE}, v{tb+i}")
            if on_result: on_result()
            a(f"s_cmp_eq_u64 vcc, exec\ns_cbranch_scc1 {lab}_d")
            if gap: a(f"s_sleep {gap}")
        a(f"s_add_u32 s64, s64, 1\ns_cmp_lt_u32 s64, 0x4000\ns_cbranch_scc1 {lab}")
        if on_result:
            a("s_mov_b64 vcc, exec"); on_result()
        a(f"{lab}_d:\ns_mov_b64 exec, s[62:63]")

    def spoll(self, name, soff, stride, sleep, quarters=None, n=16, miss=None):
        a = self.a
        lab = self.L(name)
        a(f"s_add_u32 s62, s{P_WS}, s{soff}\ns_addc_u32 s63, s{P_WS+1}, 0\ns_mov_b32 s64, 0\n{lab}:")
        for i in range(n): a(f"s_load_dword s{4+i}, s[62:63], {i*stride} glc")
        a("s_add_u32 s64, s64, 1\ns_waitcnt lgkmcnt(0)")
        for i in range(n): a(f"s_xor_b32 s{4+i}, s{4+i}, s{S_NONCE}")
        for q in range(n // 4):
            a(f"s_or_b32 s{4+4*q}, s{4+4*q}, s{5+4*q}\ns_or_b32 s{6+4*q}, s{6+4*q}, s{7+4*q}\ns_or_b32 s{4+4*q}, s{4+4*q}, s{6+4*q}")
        if quarters:
            for q in range(4):
                a(f"s_cmp_eq_u32 s{4+4*q}, 0\ns_cselect_b32 s60, 1, 0\nv_mov_b32 v3, s60\nds_write_b32 v4, v3 offset:{16*q}")
        for q in range(1, n // 4): a(f"s_or_b32 s4, s4, s{4+4*q}")
        a(f"s_cmp_eq_u32 s4, 0\ns_cbranch_scc1 {lab}_d")
        if miss: miss()
        if sleep: a(f"s_sleep {sleep}")
        a(f"s_cmp_lt_u32 s64, 0x4000\ns_cbranch_scc1 {lab}")
        if quarters:
            a("v_mov_b32 v3, 1")
            for q in range(4): a(f"ds_write_b32 v4, v3 offset:{16*q}")
        a(f"{lab}_d:")

    def spoll48(self, name, soff, stride, sleep):
        a = self.a
        lab = self.L(name)
        regs = list(range(4, 26)) + list(range(67, 93))
        a(f"s_add_u32 s62, s{P_WS}, s{soff}\ns_addc_u32 s63, s{P_WS+1}, 0\ns_mov_b32 s64, 0\n{lab}:")
        for i, r in enumerate(regs): a(f"s_load_dword s{r}, s[62:63], {i*stride} glc")
        a(f"s_add_u32 s64, s64, 1\ns_mov_b32 s60, s{S_NONCE}\ns_mov_b32 s61, s{S_NONCE}\ns_waitcnt lgkmcnt(0)")
        for r in regs: a(f"s_and_b32 s60, s60, s{r}\ns_or_b32 s61, s61, s{r}")
        a(f"s_cmp_eq_u32 s60, s61\ns_cbranch_scc1 {lab}_d\ns_sleep {sleep}\ns_cmp_lt_u32 s64, 0x4000\ns_cbranch_scc1 {lab}\n{lab}_d:")

    def store_flag(self, soff, tmp=2):
        self.a(f"""
        v_mov_b32 v{tmp}, s{S_NONCE}
        s_mov_b64 s[62:63], exec
        s_mov_b64 exec, 1
        buffer_store_dword v{tmp}, off, s[{R_WS}:{R_WS+3}], s{soff} sc1
        s_mov_b64 exec, s[62:63]
        """)

    def w1_addr(self, vr_):
        self.srd(R_W, P_W1, 1966080)
        for ph in range(3):
            self.a(f"""
            v_add_u32 v5, {64*ph}, v0
            v_mul_u32_u24 v6, 43691, v5
            v_lshrrev_b32 v6, 19, v6
            v_mul_u32_u24 v7, 12, v6
            v_sub_u32 v7, v5, v7
            v_lshrrev_b32 v8, 2, v6
            v_and_b32 v8, 2, v8
            v_xor_b32 v7, v7, v8
            v_mul_u32_u24 v6, 3072, v6
            v_lshl_add_u32 v{vr_+ph}, v7, 4, v6
            """)
        self.a(f"s_mul_i32 s69, s{S_CB}, 192")

    def w1_group(self, vr_):
        a = self.a
        a(f"""
        s_mul_i32 s63, s68, {16*3072}
        s_add_u32 s63, s63, s69
        s_mul_i32 m0, s68, 3072
        s_nop 0
        buffer_load_dwordx4 v{vr_}, s[{R_W}:{R_W+3}], s63 offen lds
        s_add_u32 m0, m0, 1024
        s_nop 0
        buffer_load_dwordx4 v{vr_+1}, s[{R_W}:{R_W+3}], s63 offen lds
        s_add_u32 m0, m0, 1024
        s_nop 0
        buffer_load_dwordx4 v{vr_+2}, s[{R_W}:{R_W+3}], s63 offen lds
        """)

    G1_ACC = 16; G1_B = 64; G1_B1 = 64; G1_A = 96
    def g1_b1_loads(self):
        a = self.a
        a(f"""
        v_lshrrev_b32 v5, 4, v0
        v_lshlrev_b32 v5, 3, v5
        s_mul_i32 s60, s{S_CB}, 192
        v_add_u32 v5, s60, v5
        """)
        for t in range(6):
            a(f"global_load_dwordx2 v[{self.G1_B1+2*t}:{self.G1_B1+2*t+1}], v5, s[{P_B1}:{P_B1+1}] offset:{32*t}")

    def acc_init(self, p):
        r = []
        for k in range(2):
            for lt in range(2):
                d = self.G1_ACC + 16 * p + 8 * k + 4 * lt
                s_ = self.G1_B1 + 2 * (2 * p + k)
                r += [f"v_lshlrev_b32 v{d}, 16, v{s_}", f"v_and_b32 v{d+1}, 0xffff0000, v{s_}",
                      f"v_lshlrev_b32 v{d+2}, 16, v{s_+1}", f"v_and_b32 v{d+3}, 0xffff0000, v{s_+1}"]
        return r

    def g1_prep(self):
        a = self.a
        for x in self.acc_init(0) + self.acc_init(1) + self.acc_init(2): a(x)
        a(f"""
        v_lshrrev_b32 v5, 4, v0
        v_and_b32 v6, 15, v0
        v_lshrrev_b32 v6, 2, v6
        v_lshl_add_u32 v6, v5, 3, v6
        v_mul_u32_u24 v6, 192, v6
        v_and_b32 v7, 3, v0
        v_lshl_add_u32 v6, v7, 3, v6
        v_and_b32 v5, 1, v5
        v_lshlrev_b32 v5, 5, v5
        v_add_u32 v10, v6, v5
        v_sub_u32 v11, v6, v5
        v_add_u32 v12, 61440, v10
        v_add_u32 v13, 61440, v11
        s_lshl_b32 s86, s{S_RB}, 3
        s_lshl_b32 s87, s{S_WAVE}, 1
        s_add_u32 s86, s86, s87
        s_mul_i32 s82, s86, 20480
        s_add_u32 s83, s82, 20480
        s_mul_i32 s86, s86, 49152
        s_mul_i32 s87, s{S_CB}, 3072
        s_add_u32 s86, s86, s87
        s_add_u32 s86, s86, {HF}
        s_add_u32 s87, s86, 49152
        """)

    def g1_aload(self, ks):
        r = []
        for lt in range(2):
            d = self.G1_A + 8 * ks + 4 * lt
            ins = [f"buffer_load_dwordx4 v[{d}:{d+3}], v9, s[{R_WS}:{R_WS+3}], s{82+lt} offen offset:{1024*(ks%4)} sc1"]
            if ks % 4 == 3 and ks != 19: ins.append(f"s_add_u32 s{82+lt}, s{82+lt}, 4096")
            r.append((ins, f"A{ks}"))
        return r

    def epi_ops(self, p):
        r = []
        for lt in range(2):
            a0 = self.G1_ACC + 16 * p + 4 * lt; b0 = a0 + 8
            for x in (a0, b0):
                for i in range(4): r.append(([f"v_max_f32 v{x+i}, 0, v{x+i}"], None))
                for i in range(4): r.append(([f"v_mul_f32 v{x+i}, v{x+i}, v{x+i}"], None))
            r.append(([f"v_cvt_pk_bf16_f32 v{a0}, v{a0}, v{a0+1}"], None))
            r.append(([f"v_cvt_pk_bf16_f32 v{a0+1}, v{a0+2}, v{a0+3}"], None))
            r.append(([f"v_cvt_pk_bf16_f32 v{a0+2}, v{b0}, v{b0+1}"], None))
            r.append(([f"v_cvt_pk_bf16_f32 v{a0+3}, v{b0+2}, v{b0+3}"], None))
            r.append(([f"buffer_store_dwordx4 v[{a0}:{a0+3}], v9, s[{R_WS}:{R_WS+3}], s{86+lt} offen offset:{1024*p} sc1"], "S"))
        return r

    def vwait(self, tag):
        vq = self.vq
        assert tag in self.seen or os.environ.get('NOAL'), tag
        idx = [i for i, t in enumerate(vq) if t == tag]
        if not idx: return
        n = len(vq) - 1 - idx[-1]
        self.a(f"s_waitcnt vmcnt({min(n, 63)})"); del vq[:idx[-1] + 1]

    def emit(self, item):
        ins, tag = item
        for x in ins: self.a(x)
        if tag: self.vq.append(tag); self.seen.add(tag)

    def g1_loop(self, N0, events, TL=5):
        a = self.a
        NF = 8; AH = NF - 1
        seq = [(ks, t) for ks in range(20 - TL) for t in range(6)]
        for p in range(3):
            seq += [(ks, 2 * p + k) for ks in range(20 - TL, 20) for k in range(2)]
        def rd(f):
            ks, t = seq[f]
            base = (10 if t % 2 == 0 else 11) + (2 if ks >= 10 else 0)
            off = (ks % 10) * 6144 + 32 * t
            d = self.G1_B + 4 * (f % NF)
            return [f"ds_read_b64_tr_b16 v[{d}:{d+1}], v{base} offset:{off}", f"ds_read_b64_tr_b16 v[{d+2}:{d+3}], v{base} offset:{off+768}"]
        for f in range(AH):
            for x in rd(f): a(x)
        fv = []; fa = []; waited = set()
        f0 = 6 * (20 - TL)
        for f, (ks, t) in enumerate(seq):
            if f % 6 == 0:
                st = f // 6
                if st in events:
                    extra = events[st]()
                    if extra: fv += extra
                if st + N0 < 20: fv = self.g1_aload(st + N0) + fv
            if ks not in waited:
                self.vwait(f"A{ks}"); waited.add(ks)
            if f > f0 and (f - f0) % (2 * TL) == 1 and (f - f0) // (2 * TL) >= 1:
                fa += self.epi_ops((f - f0) // (2 * TL) - 1)
            nxt = rd(f + AH) if f + AH < 120 else []
            if f % 2 == 0:
                a(f"s_waitcnt lgkmcnt({max(0, 2 * (min(f + AH, 120) - f - 2))})")
            for lt in range(2):
                acc = self.G1_ACC + 8 * t + 4 * lt
                A = self.G1_A + 8 * ks + 4 * lt
                B = self.G1_B + 4 * (f % NF)
                a(f"v_mfma_f32_16x16x32_bf16 v[{acc}:{acc+3}], v[{B}:{B+3}], v[{A}:{A+3}], v[{acc}:{acc+3}]")
                if nxt: a(nxt.pop(0))
                if fa:
                    for _ in range(2 if nxt or f + AH < 120 else 3):
                        if fa: self.emit(fa.pop(0))
                elif fv and lt == 1 and f % 2 == 0: self.emit(fv.pop(0))
        return fa, fv

    KP = 44
    def kg_loads(self):
        a = self.a
        a(f"""
        s_sub_u32 s70, s{S_WAVE}, 4
        s_add_u32 s71, s{S_CH0}, s70
        s_mul_i32 s60, s71, 384
        v_lshlrev_b32 v2, 2, v0
        v_add_u32 v2, s60, v2
        v_lshlrev_b32 v3, 1, v0
        v_add_u32 v3, s60, v3
        """)
        for k, P in enumerate((P_LA, P_AI, P_CR, P_CI)):
            a(f"global_load_dword v{self.KP+k}, v2, s[{P}:{P+1}]")
        a(f"s_lshl_b32 s60, s71, 1\ns_and_b32 s60, s60, -4\ns_load_dword s74, s[{P_DT}:{P_DT+1}], s60\ns_load_dword s75, s[{P_DS}:{P_DS+1}], s60")
        for k, P in enumerate((P_LA, P_AI, P_CR, P_CI)):
            a(f"global_load_ushort v{self.KP+4+k}, v3, s[{P}:{P+1}] offset:256")

    def cmul(self, d, x, y, plain=False):
        if plain:
            return [f"v_mul_f32 v{d}, v{x}, v{y}", f"v_mul_f32 v{d+1}, v{x}, v{y+1}",
                    f"v_fma_f32 v{d}, -v{x+1}, v{y+1}, v{d}", f"v_fma_f32 v{d+1}, v{x+1}, v{y}, v{d+1}"]
        return [f"v_pk_mul_f32 v[{d}:{d+1}], v[{x}:{x+1}], v[{y}:{y+1}] op_sel:[0,0] op_sel_hi:[0,1]",
                f"v_pk_fma_f32 v[{d}:{d+1}], v[{x}:{x+1}], v[{y}:{y+1}], v[{d}:{d+1}] op_sel:[1,1,0] op_sel_hi:[1,0,1] neg_lo:[0,1,0]"]

    def kg_setup(self):
        a = self.a
        a(f"""
        s_mul_i32 s72, s70, {RSZ}
        s_add_u32 s72, s72, {AUX}
        v_lshrrev_b32 v2, 2, v0
        v_mul_u32_u24 v2, 272, v2
        v_and_b32 v3, 3, v0
        v_lshl_add_u32 v2, v3, 2, v2
        v_add_u32 v10, s72, v2
        v_add_u32 v9, 4352, v10
        v_lshrrev_b32 v2, 4, v0
        v_mul_u32_u24 v2, 272, v2
        v_and_b32 v3, 15, v0
        v_lshl_add_u32 v2, v3, 4, v2
        v_add_u32 v11, s72, v2
        s_bitcmp1_b32 s71, 0
        s_cselect_b32 s60, 0, 16
        s_waitcnt lgkmcnt(0)
        s_lshl_b32 s74, s74, s60
        s_lshl_b32 s75, s75, s60
        s_and_b32 s74, s74, 0xffff0000
        s_and_b32 s75, s75, 0xffff0000
        v_mov_b32 v56, {LOG2E}
        v_mul_f32 v56, s74, v56
        v_exp_f32 v56, v56
        v_mov_b32 v57, s75
        v_cvt_pk_bf16_f32 v56, v56, v56
        v_and_b32 v56, 0xffff0000, v56
        v_add_f32 v58, v56, v56
        v_mov_b32 v59, 0x3f80
        """)

    def kgen(self, hook=None):
        a = self.a
        KP = self.KP
        Z, Z8, W = 60, 62, 64
        F = 66; F2 = 82; G = 98; CV = 102; SV = 110
        GF, TA, TB, TC = 120, 136, 152, 184
        ACC = 168
        VW, VR, VW2 = 10, 11, 9
        TOFF = 4352
        NPL = int(os.environ.get('KPL', '1'))
        class Out:
            def __init__(o, base, neg, pool): o.base = base; o.neg = neg; o.pend = None; o.pool = pool; o.n = 0
            def put(o, src, row, reg=None):
                r = []
                if reg is None:
                    reg = CV + 4 * o.pool + o.n % 4; o.n += 1
                    r.append(f"v_cvt_pk_bf16_f32 v{reg}, v{src}, {'-' if o.neg else ''}v{src+1}")
                if o.pend is None: o.pend = (reg, row)
                else:
                    r.append(f"ds_write2_b32 v{o.base}, v{o.pend[0]}, v{reg} offset0:{4*o.pend[1]} offset1:{4*row}")
                    o.pend = None
                return r
        def merge(*streams):
            streams = [list(s) for s in streams]
            out = []
            while any(streams):
                for s in streams:
                    if s: out.append(s.pop(0))
            return out
        def mf(acc, T, first):
            return [f"v_mfma_f32_16x16x32_bf16 v[{acc}:{acc+3}], v[{T+4*ks}:{T+4*ks+3}], v[{GF+4*ks}:{GF+4*ks+3}], {'0' if first and ks == 0 else f'v[{acc}:{acc+3}]'}" for ks in range(4)]
        def up(k, p):
            r = KP + k + (4 if p == 2 else 0)
            return (lambda d: f"v_and_b32 v{d}, 0xffff0000, v{r}") if p == 1 else (lambda d: f"v_lshlrev_b32 v{d}, 16, v{r}")
        pend = []
        for p in range(3):
            pl = p >= 3 - NPL
            cm = lambda d, x, y: self.cmul(d, x, y, pl)
            if p == 2: a("s_waitcnt vmcnt(0)")
            prep = [up(0, p)(2), f"v_mul_f32 v2, {LOG2E}, v2", "v_exp_f32 v2, v2", up(1, p)(3), up(2, p)(F), "v_cvt_pk_bf16_f32 v2, v2, v2", up(3, p)(F + 1),
                    "v_and_b32 v2, 0xffff0000, v2", "v_mul_f32 v3, v3, v56", "v_mul_f32 v2, v2, v56", f"v_mul_f32 v{F}, v{F}, v58", f"v_mul_f32 v{F+1}, v{F+1}, v58",
                    f"v_mul_f32 v3, {INV2PI}, v3", "v_mul_f32 v2, 0xbfb8aa3b, v2",
                    "v_mul_f32 v4, 0x41000000, v2", "v_mul_f32 v5, 0x41000000, v3", "v_mul_f32 v6, 0x43000000, v2", "v_mul_f32 v7, 0x43000000, v3",
                    "v_fract_f32 v3, v3", "v_fract_f32 v5, v5", "v_fract_f32 v7, v7", "v_exp_f32 v2, v2", "v_exp_f32 v4, v4", "v_exp_f32 v6, v6",
                    f"v_cos_f32 v{Z}, v3", f"v_sin_f32 v{Z+1}, v3", f"v_cos_f32 v{Z8}, v5", f"v_sin_f32 v{Z8+1}, v5", f"v_cos_f32 v{W}, v7", f"v_sin_f32 v{W+1}, v7"]
            for q, e in ((Z, 2), (Z8, 4), (W, 6)):
                prep += [f"v_mul_f32 v{q}, v{q}, v{e}", f"v_mul_f32 v{q+1}, v{q+1}, v{e}"]
            k = 0
            for i, ins in enumerate(prep):
                a(ins)
                if pend and i >= 6 and i % 3 == 0: a(pend.pop(0))
            assert not pend
            og = Out(VW, False, 0); of = Out(VW2, True, 1); oc0 = Out(VW2, True, 0); oc1 = Out(VW2, True, 1); ot = Out(VW2, True, 0)
            gs = og.put(None, 0, 59) + og.put(Z8, 1)
            prev = Z8
            for j in range(2, 16):
                d = G + 2 * (j % 2)
                gs += cm(d, prev, Z8) + og.put(d, j)
                prev = d
            fs = of.put(F, 0)
            for r in range(1, 8):
                fs += cm(F + 2 * r, F + 2 * (r - 1), Z) + of.put(F + 2 * r, r)
            for r in range(8):
                fs += cm(F2 + 2 * r, F + 2 * r, W) + of.put(F2 + 2 * r, 8 + r)
            for ins in merge(gs, fs): a(ins)
            for ks in range(4):
                a(f"ds_read_b128 v[{GF+4*ks}:{GF+4*ks+3}], v{VR} offset:{1088*ks}")
                a(f"ds_read_b128 v[{TA+4*ks}:{TA+4*ks+3}], v{VR} offset:{TOFF+1088*ks}")
            s1 = []
            for i in range(4):
                s1.append(cm(F + 2 * i, F2 + 4 * i, W) + [f"v_cvt_pk_bf16_f32 v{SV+i}, v{F+2*i}, -v{F+2*i+1}"]
                          + cm(F + 8 + 2 * i, F + 2 * i, W) + [f"v_cvt_pk_bf16_f32 v{SV+4+i}, v{F+8+2*i}, -v{F+8+2*i+1}"])
            for ins in merge(*s1): a(ins)
            c0 = []; prev = F + 8
            for i in range(12):
                d = F2 + 2 * (i % 2)
                c0 += cm(d, prev, W) + oc0.put(d, i if i < 4 else i + 4)
                prev = d
            last = prev
            c1 = []; prev = F + 12
            for i in range(4):
                d = F2 + 4 + 2 * (i % 2)
                c1 += cm(d, prev, W) + oc1.put(d, 4 + i)
                prev = d
            for ins in merge(c0, c1): a(ins)
            for ks in range(4):
                a(f"ds_read_b128 v[{TB+4*ks}:{TB+4*ks+3}], v{VR} offset:{TOFF+1088*ks}")
            for ins in cm(F2 + 8, last, W): a(ins)
            a("s_waitcnt lgkmcnt(12)")
            t2 = []
            for i in range(8): t2 += ot.put(None, i, SV + i)
            t2 += [f"v_cvt_pk_bf16_f32 v{CV}, v{F2+8}, -v{F2+9}", f"ds_write_b32 v{VW2}, v{CV} offset:128"]
            t2 += [f"ds_read_b128 v[{TC+4*ks}:{TC+4*ks+3}], v{VR} offset:{TOFF+1088*ks}" for ks in range(4)]
            for ins in merge(mf(ACC, TA, p == 0), t2): a(ins)
            pend = ["s_waitcnt lgkmcnt(0)"] + mf(ACC + 4, TB, p == 0) + mf(ACC + 8, TC, p == 0)
        self.kpend = pend
        self.KACC = ACC

    def expand(self):
        a = self.a
        ACC = self.KACC
        T0, T1, T2 = ACC, ACC + 4, ACC + 8
        a(f"""
        v_and_b32 v2, 15, v0
        v_lshrrev_b32 v3, 4, v0
        v_lshlrev_b32 v4, 3, v2
        v_lshlrev_b32 v5, 2, v3
        v_add_u32 v5, 512, v5
        v_lshlrev_b32 v6, 9, v3
        v_cmp_gt_u32 vcc, 2, v3
        v_cndmask_b32 v5, v6, v5, vcc
        v_add_u32 v5, v5, v4
        v_cndmask_b32 v6, 4, 2, vcc
        v_and_b32 v7, 1, v2
        v_cndmask_b32 v7, v7, v3, vcc
        v_cndmask_b32 v8, 8, 0, vcc
        s_add_u32 s60, s72, 32
        v_sub_u32 v9, v5, v6
        v_lshl_add_u32 v12, v9, 1, s60
        v_add_u32 v13, v12, v8
        v_add_u32 v9, v5, v6
        v_sub_u32 v9, v9, v7
        v_lshl_add_u32 v14, v9, 1, s60
        v_sub_u32 v9, v5, v6
        v_add_u32 v9, v9, v7
        v_lshl_add_u32 v15, v9, 1, s60
        v_add_u32 v15, {K1O-2}, v15
        v_cmp_eq_u32 vcc, 32, v0
        v_add_u32 v9, 4, v15
        v_cndmask_b32 v16, v15, v9, vcc
        v_add_u32 v17, {K1O}, v12
        v_add_u32 v18, {K1O}, v13
        """)
        for x in self.kpend: a(x)
        for i in range(4):
            a(f"v_cvt_pk_bf16_f32 v{20+i}, v{T1+i}, v{T1+i}")
        for i in range(4):
            a(f"ds_write2_b32 v12, v{20+i}, v{20+i} offset0:{64*i} offset1:{64*i+1}")
            a(f"ds_write2_b32 v13, v{20+i}, v{20+i} offset0:{64*i} offset1:{64*i+1}")
            a(f"ds_write2_b32 v17, v{20+i}, v{20+i} offset0:{64*i} offset1:{64*i+1}")
            a(f"ds_write2_b32 v18, v{20+i}, v{20+i} offset0:{64*i} offset1:{64*i+1}")
        for i in range(4):
            a(f"ds_write_b16 v14, v{20+i} offset:{256*i}")
            a(f"ds_write_b16 v{16 if i == 0 else 15}, v{20+i} offset:{256*i}")
        a(f"""
        v_lshlrev_b32 v5, 7, v3
        v_add3_u32 v5, v5, v4, v4
        v_lshlrev_b32 v6, 7, v3
        v_add_u32 v5, v5, v6
        v_add_u32 v5, s60, v5
        v_add_u32 v5, 512, v5
        v_cvt_pk_bf16_f32 v24, v{T2}, v{T2}
        v_cvt_pk_bf16_f32 v25, v{T2}, v{T2+1}
        v_cvt_pk_bf16_f32 v26, v{T2+2}, v{T2+2}
        v_cvt_pk_bf16_f32 v27, v{T2+2}, v{T2+3}
        v_cvt_pk_bf16_f32 v28, v{T2+1}, v{T2+2}
        v_add_u32 v6, {K1O-4}, v5
        v_add_u32 v7, -2, v5
        s_mov_b32 exec_hi, 0
        ds_write2_b32 v5, v24, v28 offset0:0 offset1:1
        ds_write_b32 v5, v26 offset:8
        ds_write_b16_d16_hi v5, v27 offset:12
        ds_write_b16 v7, v24
        ds_write2_b32 v6, v24, v25 offset0:0 offset1:1
        ds_write2_b32 v6, v26, v27 offset0:2 offset1:3
        s_mov_b64 exec, -1
        s_add_u32 s61, s60, {2*2044}
        v_mov_b32 v6, s61
        v_add_u32 v7, {K1O-2}, v6
        v_add_u32 v8, {K1O}, v6
        s_mov_b32 exec_lo, 0
        s_mov_b32 exec_hi, 1
        ds_write2_b32 v6, v24, v24 offset0:0 offset1:1
        ds_write2_b32 v8, v24, v24 offset0:0 offset1:1
        ds_write_b16 v7, v24
        s_mov_b64 exec, -1
        """)
        a(f"""
        v_and_b32 v5, 1, v3
        v_lshlrev_b32 v5, 3, v5
        v_lshrrev_b32 v6, 1, v3
        v_lshl_add_u32 v5, v6, 8, v5
        v_add3_u32 v5, v5, v4, v4
        v_add_u32 v5, s60, v5
        s_mov_b64 exec, 1
        v_add_f32 v{T0}, v{T0}, v57
        s_mov_b64 exec, -1
        v_cvt_pk_bf16_f32 v24, v{T0}, v{T0+1}
        v_cvt_pk_bf16_f32 v25, v{T0+2}, v{T0+3}
        v_cvt_pk_bf16_f32 v26, v{T0+1}, v{T0+2}
        v_add_u32 v6, {K1O-2}, v5
        v_mov_b32 v28, 0
        v_mov_b32 v29, 0
        v_lshlrev_b32 v7, 3, v0
        v_add_u32 v7, s72, v7
        s_mov_b64 exec, 15
        ds_write_b64 v7, v[28:29]
        ds_write_b64 v7, v[28:29] offset:{K1O}
        s_lshr_b64 exec, -1, 4
        ds_write_b64 v7, v[28:29] offset:{UO}
        s_mov_b64 exec, -1
        ds_write_b64 v5, v[24:25]
        ds_write_b16 v6, v24
        ds_write_b32 v5, v26 offset:{K1O}
        ds_write_b16_d16_hi v6, v25 offset:6
        """)

    def u_gather(self):
        a = self.a
        sc = "sc1" if self.fused else ""
        a(f"""
        v_lshrrev_b32 v2, 2, v0
        v_and_b32 v3, 3, v0
        v_mul_u32_u24 v4, 10240, v2
        v_lshl_add_u32 v4, v3, 4, v4
        s_lshl_b32 s60, s{S_CH0}, 4
        s_add_u32 s60, s60, {XT}
        v_mul_u32_u24 v5, {RSZ}, v3
        v_lshl_add_u32 v5, v2, 4, v5
        v_add_u32 v5, {AUX+UO+UPAD}, v5
        v_cmp_gt_u32 vcc, s{S_NCH}, v3
        s_mov_b64 s[62:63], exec
        s_and_b64 exec, exec, vcc
        """)
        for i in range(16):
            a(f"buffer_load_dwordx4 v[{40+4*i}:{43+4*i}], v4, s[{R_WS}:{R_WS+3}], s60 offen {sc}")
            if i < 15: a(f"s_add_u32 s60, s60, {16*10240}")
        for i in range(16):
            a(f"s_waitcnt vmcnt({14-i})" if i < 15 else "s_nop 7")
            a(f"ds_write_b128 v5, v[{40+4*i}:{43+4*i}] offset:{256*i}")
        a("s_mov_b64 exec, s[62:63]\ns_waitcnt lgkmcnt(0)")

    def conv(self):
        a = self.a
        sc = "sc1" if self.fused else ""
        ACC = 60; OP = [92, 156]
        AB = 12
        a(f"""
        v_and_b32 v2, 15, v0
        v_lshrrev_b32 v3, 4, v0
        v_lshlrev_b32 v4, 3, v3
        v_sub_u32 v4, v2, v4
        v_add_u32 v4, {233+16-224}, v4
        v_and_b32 v5, 1, v2
        v_and_b32 v4, -2, v4
        v_lshlrev_b32 v4, 1, v4
        v_cmp_eq_u32 vcc, 0, v5
        v_mov_b32 v6, {K1O}
        v_cndmask_b32 v5, 0, v6, vcc
        v_add3_u32 v{AB}, v4, v5, s72
        v_add_u32 v{AB+1}, 1024, v{AB}
        v_add_u32 v{AB+2}, 2048, v{AB}
        v_add_u32 v{AB+3}, 3072, v{AB}
        v_lshlrev_b32 v4, 5, v2
        v_lshl_add_u32 v4, v3, 4, v4
        s_add_u32 s60, s72, {UO}
        v_add_u32 v16, s60, v4
        """)
        for i in range(32): a(f"v_mov_b32 v{ACC+i}, 0")
        def reads(tau):
            s = OP[tau % 2]
            r = []
            for d in range(8):
                r.append(f"ds_read_b128 v[{s+32+4*d}:{s+35+4*d}], v16 offset:{512*d+64*tau}")
                o = 512 * d - 64 * tau + 448
                b = AB + o // 1024; q = (o % 1024) // 4
                r.append(f"ds_read2_b32 v[{s+4*d}:{s+4*d+1}], v{b} offset0:{q} offset1:{q+1}")
                r.append(f"ds_read2_b32 v[{s+4*d+2}:{s+4*d+3}], v{b} offset0:{q+2} offset1:{q+3}")
            return r
        r0 = reads(0)
        for k, ins in enumerate(r0):
            a(ins)
            if k == 12: a("s_waitcnt lgkmcnt(3)")
        for tau in range(8):
            s = OP[tau % 2]
            nxt = reads(tau + 1) if tau < 7 else []
            pairs = sorted([(d, n) for d in range(8) for n in range(8 - d)], key=lambda p: (max(p), p))
            a("s_waitcnt lgkmcnt(0)")
            for k, (d, n) in enumerate(pairs):
                acc = ACC + 4 * (d + n)
                a(f"v_mfma_f32_16x16x32_bf16 v[{acc}:{acc+3}], v[{s+4*d}:{s+4*d+3}], v[{s+32+4*n}:{s+35+4*n}], v[{acc}:{acc+3}]")
                if nxt and k < 30 and k % 5 != 4:
                    a(nxt.pop(0))
            assert not nxt
        a(f"""
        v_lshlrev_b32 v5, 5, v2
        v_lshl_add_u32 v5, v3, 3, v5
        s_lshl_b32 s61, s71, 12
        s_add_u32 s61, s61, {ST}
        """)
        for n in range(8):
            acc = ACC + 4 * n; o = 128 + 2 * n
            a(f"""
            v_cvt_pk_bf16_f32 v{o}, v{acc}, v{acc+1}
            v_cvt_pk_bf16_f32 v{o+1}, v{acc+2}, v{acc+3}
            buffer_store_dwordx2 v[{o}:{o+1}], v5, s[{R_WS}:{R_WS+3}], s61 offen offset:{512*n} {sc}
            """)

    G2_ACC = 16; G2_RB = 96; G2_BT = 156; G2_A = 176
    def g2_addr(self):
        self.a(f"""
        v_lshlrev_b32 v9, 4, v0
        v_add_u32 v8, 4096, v9
        s_mul_i32 s74, s{S_CB2}, 245760
        s_mul_i32 s60, s{S_WAVE}, {12*5120}
        s_add_u32 s74, s74, s60
        s_add_u32 s74, s74, {W2F}
        s_mul_i32 s75, s{S_WAVE}, 30720
        """)
    @staticmethod
    def kloc(j):
        return j

    @staticmethod
    def lslot(j):
        q = j if j < 6 else j - 9
        return q * 5120

    def g2_dma_items(self, j):
        W = f"s[{R_WS}:{R_WS+3}]"
        l0 = self.lslot(j)
        r = []
        for nt in range(5):
            pre = [f"s_add_u32 s81, s74, {5120*self.kloc(j)}"] if nt == 0 else []
            if nt < 4: r.append((pre + [f"s_add_u32 m0, s75, {l0}", f"buffer_load_dwordx4 v9, {W}, s81 offen offset:{1024*nt} sc1 lds"], f"D{j}"))
            else: r.append(([f"s_add_u32 m0, s75, {l0+4096}", f"buffer_load_dwordx4 v8, {W}, s81 offen sc1 lds"], f"D{j}"))
        return r

    def g2_bload_items(self, j):
        W = f"s[{R_WS}:{R_WS+3}]"
        r = []
        for nt in range(5):
            d = self.G2_RB + 20 * (j % 3) + 4 * nt
            pre = [f"s_add_u32 s81, s74, {5120*self.kloc(j)}"] if nt == 0 else []
            if nt < 4: r.append((pre + [f"buffer_load_dwordx4 v[{d}:{d+3}], v9, {W}, s81 offen offset:{1024*nt} sc1"], f"B{j}"))
            else: r.append(([f"buffer_load_dwordx4 v[{d}:{d+3}], v8, {W}, s81 offen sc1"], f"B{j}"))
        return r

    def g2_aload_items(self, j):
        W = f"s[{R_WS}:{R_WS+3}]"
        k = self.kloc(j)
        vo = (9, 8, 13)[k // 4]
        r = []
        for i in range(4):
            d = self.G2_A + 16 * (j % 5) + 4 * i
            r.append(([f"buffer_load_dwordx4 v[{d}:{d+3}], v{vo}, {W}, s{76+i} offen offset:{1024*(k%4)} sc1"], f"A{j}"))
        return r

    def g2_setup_s(self):
        a = self.a
        for i in range(4):
            a(f"""
            s_add_u32 s60, s{S_WAVE}, {i}
            s_and_b32 s60, s60, 3
            s_lshl_b32 s61, s{S_RB2}, 2
            s_add_u32 s60, s60, s61
            s_mul_i32 s60, s60, 49152
            s_mul_i32 s61, s{S_WAVE}, {12*1024}
            s_add_u32 s60, s60, s61
            s_add_u32 s{76+i}, s60, {HF}
            """)
    def g2_setup_v(self):
        a = self.a
        self.seen = {t for t in self.seen if not t.startswith("A")}
        a(f"v_add_u32 v10, s75, v9\nv_add_u32 v13, 8192, v9")

    def fh_wait(self, tp):
        self.a(f"s_lshl_b32 s66, s{S_WAVE}, 4\ns_add_u32 s66, s66, {M_FH + 64*tp}")
        self.lds_wait_all("s66", 1, f"fhw{tp}", tmp=2)

    def g2_loop(self, hook=None, hook_at=6, fill0=None):
        a = self.a
        seq = [(j, nt) for j in range(9) for nt in range(5)] + [(j, nt) for nt in range(5) for j in range(9, 12)]
        lds = [x for x in seq if not (6 <= x[0] < 9)]
        pos = {x: i for i, x in enumerate(lds)}
        issued = [0]; lq = []
        def bt_read():
            i = issued[0]
            if i >= len(lds): return
            j, nt = lds[i]
            if nt == 0 or j >= 9: self.vwait(f"D{j}")
            d = self.G2_BT + 4 * (i % 5)
            a(f"ds_read_b128 v[{d}:{d+3}], v10 offset:{self.lslot(j) + 1024 * nt}")
            lq.append(i); issued[0] += 1
        fill = list(fill0 or [])
        for _ in range(4): bt_read()
        wr = []; done = set()
        for (j, nt) in seq:
            if j not in done:
                done.add(j)
                if hook and j == hook_at: hook(); lq.append("x")
                self.stamp(16 + j, q=True)
                self.vwait(f"A{j}")
                if 6 <= j < 9: self.vwait(f"B{j}")
            if 6 <= j < 9:
                B = self.G2_RB + 20 * (j % 3) + 4 * nt
            else:
                i = pos[(j, nt)]
                B = self.G2_BT + 4 * (i % 5)
                k = lq.index(i)
                a(f"s_waitcnt lgkmcnt({len(lq) - 1 - k})"); del lq[:k + 1]
            for i in range(4):
                acc = self.G2_ACC + 16 * nt + 4 * i
                A = self.G2_A + 16 * (j % 5) + 4 * i
                a(f"v_mfma_f32_16x16x32_bf16 v[{acc}:{acc+3}], v[{B}:{B+3}], v[{A}:{A+3}], {'0' if j == 0 else f'v[{acc}:{acc+3}]'}")
                if fill and i in (0, 2): self.emit(fill.pop(0))
                if i == 1:
                    if not (6 <= j < 9):
                        if not (j == 5 and nt >= 1): bt_read()
                    elif j == 8 and nt >= 1: bt_read()
                if i == 3 and wr:
                    a(wr.pop(0)); lq.append("w")
            if j == 11:
                wr += [f"ds_write_b128 v10, v[{self.G2_ACC+16*nt+4*i}:{self.G2_ACC+16*nt+4*i+3}] offset:{5120*(i+2)+1024*nt}" for i in range(1, 4)]
            if nt == 4 and j < 9:
                if j + 5 < 12: fill = self.g2_aload_items(j + 5) + fill
                if j < 3: fill += self.g2_dma_items(j + 9)
        assert not fill
        for x in wr: a(x)

    FX = 96; FB = 106
    def svc_x_loads(self):
        a = self.a
        a(f"""
        s_mul_i32 s60, s{S_RB2}, {64*1280}
        s_mul_i32 s61, s{S_CB2}, 160
        s_add_u32 s60, s60, s61
        """)
        for i in range(10):
            a(f"""
            v_add_u32 v2, {64*i}, v0
            v_mul_u32_u24 v3, 52429, v2
            v_lshrrev_b32 v3, 19, v3
            v_mul_u32_u24 v4, 10, v3
            v_sub_u32 v4, v2, v4
            v_lshlrev_b32 v4, 4, v4
            v_mad_u32_u24 v{184+i}, v3, s97, v4
            v_mul_u32_u24 v3, 1280, v3
            v_add_u32 v3, v3, v4
            buffer_load_dwordx4 v[{140+4*i}:{143+4*i}], v3, s[{R_X}:{R_X+3}], s60 offen
            """.replace("s97", "s67") if False else f"""
            v_add_u32 v2, {64*i}, v0
            v_mul_u32_u24 v3, 52429, v2
            v_lshrrev_b32 v3, 19, v3
            v_mul_u32_u24 v4, 10, v3
            v_sub_u32 v4, v2, v4
            v_lshlrev_b32 v4, 4, v4
            v_mul_u32_u24 v5, {XRS}, v3
            v_add_u32 v{184+i}, v5, v4
            v_mul_u32_u24 v3, 1280, v3
            v_add_u32 v3, v3, v4
            buffer_load_dwordx4 v[{140+4*i}:{143+4*i}], v3, s[{R_X}:{R_X+3}], s60 offen
            """)
        a(f"""
        v_min_u32 v2, 39, v0
        v_lshlrev_b32 v2, 2, v2
        v_add_u32 v2, s61, v2
        global_load_dword v180, v2, s[{P_B2}:{P_B2+1}]
        """)

    def svc_x_write(self):
        a = self.a
        for i in range(10):
            a(f"v_add_u32 v{184+i}, {XI}, v{184+i}")
        for i in range(10):
            a(f"ds_write_b128 v{184+i}, v[{140+4*i}:{143+4*i}]")
        a(f"""
        v_lshlrev_b32 v182, 16, v180
        v_and_b32 v183, 0xffff0000, v180
        v_min_u32 v2, 39, v0
        v_lshlrev_b32 v2, 3, v2
        v_add_u32 v2, {M_B2}, v2
        ds_write_b64 v2, v[182:183]
        """)

    def s_tile_dma(self):
        a = self.a
        sc = "sc1" if self.fused else ""
        a(f"""
        v_lshrrev_b32 v2, 3, v0
        v_and_b32 v3, 7, v0
        v_lshlrev_b32 v2, 12, v2
        v_lshl_add_u32 v2, v3, 4, v2
        s_mul_i32 s60, s{S_CB2}, {80*4096}
        s_lshl_b32 s61, s{S_RB2}, 7
        s_add_u32 s60, s60, s61
        s_add_u32 s60, s60, {ST}
        """)
        for t in range(10):
            a(f"s_mov_b32 m0, {AUX+1024*t}")
            a(f"buffer_load_dwordx4 v2, s[{R_WS}:{R_WS+3}], s60 offen {sc} lds")
            if t < 9: a(f"s_add_u32 s60, s60, {8*4096}")
        self.svc_x_write()
        a("s_waitcnt vmcnt(0) lgkmcnt(0)")

    def g2_final(self):
        a = self.a
        ACC = self.G2_ACC
        self.srd(R_OUT, P_OUT, 2621440)
        for i in range(1, 4):
            a(f"""
            s_sub_u32 s60, s{S_WAVE}, {i}
            s_and_b32 s60, s60, 3
            s_mul_i32 s60, s60, 30720
            s_add_u32 s60, s60, {5120*(i+2)}
            v_add_u32 v{4+i}, s60, v9
            """)
        a(f"""
        v_and_b32 v2, 15, v0
        v_lshrrev_b32 v3, 4, v0
        v_lshrrev_b32 v12, 2, v2
        v_lshl_add_u32 v12, v3, 2, v12
        v_lshlrev_b32 v12, 7, v12
        v_and_b32 v15, 3, v0
        v_lshl_add_u32 v12, v15, 3, v12
        s_lshl_b32 s60, s{S_WAVE}, 5
        s_add_u32 s60, s60, {AUX}
        v_add_u32 v12, s60, v12
        s_mul_i32 s60, s{S_WAVE}, {16*XRS}
        s_add_u32 s60, s60, {XI}
        v_mul_u32_u24 v11, {XRS}, v2
        v_lshl_add_u32 v11, v3, 3, v11
        v_add_u32 v11, s60, v11
        v_lshlrev_b32 v13, 4, v3
        v_add_u32 v13, {M_B2}, v13
        v_mov_b32 v250, 1.0
        v_mov_b32 v251, 1.0
        v_mov_b32 v252, 0xbfb8aa3b
        s_lshl_b32 s80, s{S_RB2}, 2
        s_add_u32 s80, s80, s{S_WAVE}
        s_mul_i32 s80, s80, {16*1280}
        s_mul_i32 s61, s{S_CB2}, 160
        s_add_u32 s80, s80, s61
        """)
        for i in range(3):
            a(f"""
            v_add_u32 v2, {64*i}, v0
            v_mul_u32_u24 v3, 52429, v2
            v_lshrrev_b32 v3, 19, v3
            v_mul_u32_u24 v4, 10, v3
            v_sub_u32 v4, v2, v4
            v_lshlrev_b32 v4, 4, v4
            v_mul_u32_u24 v2, {XRS}, v3
            v_add3_u32 v{240+i}, v2, v4, s60
            v_mul_u32_u24 v3, 1280, v3
            v_add_u32 v{243+i}, v3, v4
            """)
        a("s_waitcnt lgkmcnt(0)\ns_barrier")
        P = 96
        def reads(nt):
            p = P + 20 * nt
            for i in range(1, 4):
                a(f"ds_read_b128 v[{p+4*(i-1)}:{p+4*(i-1)+3}], v{4+i} offset:{1024*nt}")
            a(f"ds_read_b128 v[{p+12}:{p+15}], v13 offset:{64*nt}")
            a(f"ds_read_b64_tr_b16 v[{p+16}:{p+17}], v12 offset:{2048*nt}")
            a(f"ds_read_b64 v[{p+18}:{p+19}], v11 offset:{32*nt}")
        reads(0); reads(1)
        Pp = lambda r: f"v[{r}:{r+1}]"
        for nt in range(5):
            acc = ACC + 16 * nt; p = P + 20 * nt; t = 200 + 12 * (nt % 2)
            a(f"s_waitcnt lgkmcnt({6 if nt < 4 else 1})" if nt != 0 else "s_waitcnt lgkmcnt(6)")
            a(f"""
            v_pk_add_f32 {Pp(acc)}, {Pp(acc)}, {Pp(p)}
            v_pk_add_f32 {Pp(acc+2)}, {Pp(acc+2)}, {Pp(p+2)}
            v_pk_add_f32 {Pp(p+4)}, {Pp(p+4)}, {Pp(p+8)}
            v_pk_add_f32 {Pp(p+6)}, {Pp(p+6)}, {Pp(p+10)}
            v_pk_add_f32 {Pp(acc)}, {Pp(acc)}, {Pp(p+12)}
            v_pk_add_f32 {Pp(acc+2)}, {Pp(acc+2)}, {Pp(p+14)}
            v_pk_add_f32 {Pp(acc)}, {Pp(acc)}, {Pp(p+4)}
            v_pk_add_f32 {Pp(acc+2)}, {Pp(acc+2)}, {Pp(p+6)}
            v_pk_mul_f32 {Pp(t)}, {Pp(acc)}, v[252:253] op_sel_hi:[1,0]
            v_pk_mul_f32 {Pp(t+2)}, {Pp(acc+2)}, v[252:253] op_sel_hi:[1,0]
            """)
            for i in range(4): a(f"v_exp_f32 v{t+i}, v{t+i}")
            if nt + 2 < 5: reads(nt + 2)
            a(f"""
            v_lshlrev_b32 v{t+4}, 16, v{p+16}
            v_and_b32 v{t+5}, 0xffff0000, v{p+16}
            v_lshlrev_b32 v{t+6}, 16, v{p+17}
            v_and_b32 v{t+7}, 0xffff0000, v{p+17}
            v_pk_add_f32 {Pp(t)}, {Pp(t)}, v[250:251]
            v_pk_add_f32 {Pp(t+2)}, {Pp(t+2)}, v[250:251]
            """)
            for i in range(4): a(f"v_rcp_f32 v{t+i}, v{t+i}")
            a(f"""
            v_pk_mul_f32 {Pp(t+4)}, {Pp(t+4)}, {Pp(acc)}
            v_pk_mul_f32 {Pp(t+6)}, {Pp(t+6)}, {Pp(acc+2)}
            v_lshlrev_b32 v{t+8}, 16, v{p+18}
            v_and_b32 v{t+9}, 0xffff0000, v{p+18}
            v_lshlrev_b32 v{t+10}, 16, v{p+19}
            v_and_b32 v{t+11}, 0xffff0000, v{p+19}
            v_pk_fma_f32 {Pp(t+8)}, {Pp(t+4)}, {Pp(t)}, {Pp(t+8)}
            v_pk_fma_f32 {Pp(t+10)}, {Pp(t+6)}, {Pp(t+2)}, {Pp(t+10)}
            v_cvt_pk_bf16_f32 v{p+18}, v{t+8}, v{t+9}
            v_cvt_pk_bf16_f32 v{p+19}, v{t+10}, v{t+11}
            ds_write_b64 v11, v[{p+18}:{p+19}] offset:{32*nt}
            """)
        osc = os.environ.get('OSC', '')
        a(f"""
        ds_read_b128 v[224:227], v240
        ds_read_b128 v[228:231], v241
        s_mov_b32 exec_hi, 0
        ds_read_b128 v[232:235], v242
        s_mov_b64 exec, -1
        s_waitcnt lgkmcnt(1)
        buffer_store_dwordx4 v[224:227], v243, s[{R_OUT}:{R_OUT+3}], s80 offen {osc}
        s_waitcnt lgkmcnt(0)
        buffer_store_dwordx4 v[228:231], v244, s[{R_OUT}:{R_OUT+3}], s80 offen {osc}
        s_mov_b32 exec_hi, 0
        buffer_store_dwordx4 v[232:235], v245, s[{R_OUT}:{R_OUT+3}], s80 offen {osc}
        s_mov_b64 exec, -1
        """)

    def misc_init(self):
        self.a(f"""
        v_lshlrev_b32 v2, 2, v0
        v_add_u32 v2, {MISC}, v2
        v_mov_b32 v3, 0
        ds_write_b32 v2, v3
        """)


HEADER = open("cdna_kernels/" + NAME + ".s.ref").read().split("; Override launch")[0]

def kernel_text(label, body):
    return f""".text
.globl {label}
.p2align 8
.type {label},@function
{label}:
{body}
"""
def desc(label, vgpr=256):
    return f""".section .rodata,"a"
.p2align 6
.amdhsa_kernel {label}
  .amdhsa_next_free_vgpr {vgpr}
  .amdhsa_next_free_sgpr 102
  .amdhsa_accum_offset {vgpr}
  .amdhsa_group_segment_fixed_size 0
  .amdhsa_kernarg_size 120
  .amdhsa_user_sgpr_count 2
  .amdhsa_user_sgpr_kernarg_segment_ptr 1
  .amdhsa_system_sgpr_workgroup_id_x 1
.end_amdhsa_kernel
"""
```

```python
import sys, os
from parts import *
E = lambda k, d=0: int(os.environ.get(k, d))

class Fused(Gen):
    def cnt_add(self, addr, rtn=False):
        self.a(f"""
        v_mov_b32 v2, {addr}
        v_mov_b32 v3, 1
        s_mov_b64 exec, 1
        {'ds_add_rtn_u32 v4, v2, v3' if rtn else 'ds_add_u32 v2, v3'}
        s_mov_b64 exec, -1
        """)

    def cnt_wait(self, addr, n, name, sleep=0):
        lab = self.L(name)
        self.a(f"""
        v_mov_b32 v2, {addr}
        s_mov_b32 s61, 0
        {lab}:
        ds_read_b32 v3, v2
        s_add_u32 s61, s61, 1
        s_waitcnt lgkmcnt(0)
        v_readfirstlane_b32 s60, v3
        s_cmp_gt_u32 s61, 0x100000
        s_cbranch_scc1 {lab}_d
        s_cmp_ge_u32 s60, {n}
        s_cbranch_scc1 {lab}_d
        {'s_sleep %d' % sleep if sleep else ''}
        s_branch {lab}
        {lab}_d:
        """)

    def build_fused(self):
        a = self.a
        L = self.L
        st = 2 if self.stamps else 0
        N0 = E('N0', 8)
        slp = ('s_sleep %d' % PSLEEP) if PSLEEP else ''
        GE = E('GE', 1); NA = E('NA', 0); GL = E('GL', 0); GS = 40 - 4 * GE - 3 * NA - 3 * GL
        def aux_dma(p):
            if NA == 0: return
            self.w1_addr(12)
            a(f"s_add_u32 s68, s70, {GS}\n{L('adl' + p)}:")
            self.w1_group(12)
            a(f"s_add_u32 s68, s68, 3\ns_cmp_lt_u32 s68, {GS + 3 * NA}\ns_cbranch_scc1 {L('adl' + p)}")
        a(f"{L('start')}:")
        self.prologue()
        self.stamp(0)
        if 0 in self.sel:
            a(f"v_mov_b32 v1, s94\ns_mov_b64 exec, 1\nbuffer_store_dword v1, off, s[{R_WS}:{R_WS+3}], s100 offset:124\ns_mov_b64 exec, -1")
        a(f"s_cmp_ge_u32 s{S_WAVE}, 4\ns_cbranch_scc1 {L('aux0')}")
        a(f"s_setprio {E('GP', 2)}")
        self.ln_loads()
        a(f"s_branch {L('gemm')}\n{L('aux0')}:")
        a.clear_hist()
        a(f"s_sub_u32 s60, s{S_WAVE}, 4\ns_cmp_ge_u32 s60, s{S_NCH}\ns_cbranch_scc1 {L('aux1')}")
        a("s_setprio 3")
        self.kg_loads()
        a(f"s_branch {L('kg')}\n{L('aux1')}:")
        a(f"s_cmp_lg_u32 s{S_WAVE}, 7\ns_cbranch_scc1 {L('noch')}")
        a(f"s_setprio {E('SP', 1)}")
        self.w1_addr(12)
        a(f"""
        s_cmp_lt_u32 s{S_NCH}, 3
        s_cselect_b32 s66, {GS - E('H6', 0)}, {GS}
        s_mul_i32 s68, s{S_RB}, s66
        s_lshr_b32 s68, s68, 4
        s_mov_b32 s67, s66
        s_sub_u32 s65, s66, 1
        {L('sdl')}:
        """)
        self.w1_group(12)
        a(f"""
        s_add_u32 s68, s68, 1
        s_cmp_eq_u32 s68, s66
        s_cselect_b32 s68, 0, s68
        s_cmp_lg_u32 s67, s65
        s_cbranch_scc1 {L('sdw')}
        """)
        self.srd(R_OUT, P_OUT, 2621440)
        a(f"""
        v_lshlrev_b32 v3, 20, v0
        s_mov_b32 exec_hi, 0
        buffer_load_dword v131, v3, s[{R_WS}:{R_WS+3}], 0 offen
        buffer_load_dword v132, v3, s[{R_OUT}:{R_OUT+3}], 0 offen
        s_mov_b64 exec, -1
        {L('sdw')}:
        s_sub_u32 s67, s67, 1
        s_cmp_lg_u32 s67, 0
        s_waitcnt vmcnt({E('DEPTH', 45)})
        s_cbranch_scc1 {L('sdl')}
        s_branch {L('svc')}
        {L('gemm')}:
        """)
        a.clear_hist()
        self.w1_addr(92)
        self.g1_b1_loads()
        a(f"s_add_u32 s68, s{S_WAVE}, {GS + 3 * NA}")
        for i in range(GE):
            self.w1_group(92)
            if i + 1 < GE: a("s_add_u32 s68, s68, 4")
        self.ln_pub_addr()
        a(f"s_waitcnt vmcnt({6 + 3 * GE})")
        self.stamp(1)
        self.ln_math()
        a("s_waitcnt lgkmcnt(0)")
        self.lds_set(M_LNW, S_WAVE, tmp=(2, 3))
        self.lds_wait_all(M_LNW, 4, "lnw4", tmp=2, sleep=0)
        a(f"v_mov_b32 v97, 0\nv_mov_b32 v96, 0\ns_cmp_lg_u32 s{S_WAVE}, 0\ns_cbranch_scc1 {L('g_n0')}")
        a(f"global_load_dword v96, v97, s[{P_DBG}:{P_DBG+1}] sc1\n{L('g_n0')}:")
        self.ln_publish()
        XS = E('XS', 1)
        if not XS: self.ln_publish_xt()
        self.stamp(13)
        if not XS: self.cnt_add(M_LNCNT + 8)
        a(f"s_waitcnt vmcnt({(3 if XS else 6) + (1 if 13 in self.sel else 0)})")
        self.cnt_add(M_LNCNT + 12)
        self.g1_prep()
        self.g2_addr()
        a("s_waitcnt vmcnt(0)")
        self.stamp(2)
        a(f"s_cmp_eq_u32 s{S_WAVE}, 0\ns_cbranch_scc1 {L('g_w0')}")
        self.cnt_add(M_LNCNT)
        if GL:
            a(f"s_add_u32 s68, s{S_WAVE}, {40 - 3 * GL - 1}")
            for i in range(GL):
                self.w1_group(92)
                if i + 1 < GL: a("s_add_u32 s68, s68, 3")
            a("s_waitcnt vmcnt(0)")
            self.cnt_add(M_LNCNT + 12)
        a(f"s_branch {L('g_j')}\n{L('g_w0')}:")
        a(f"""
        s_mov_b32 s64, 0
        {L('np')}:
        v_readfirstlane_b32 s{S_NONCE}, v96
        s_cmp_gt_u32 s64, 0x8000
        s_cbranch_scc1 {L('npd')}
        s_cmp_lg_u32 s{S_NONCE}, 0
        s_cbranch_scc1 {L('npd')}
        global_load_dword v96, v97, s[{P_DBG}:{P_DBG+1}] sc1
        s_add_u32 s64, s64, 1
        s_waitcnt vmcnt(0)
        s_nop 1
        s_branch {L('np')}
        {L('npd')}:
        v_mov_b32 v2, s{S_NONCE}
        v_mov_b32 v3, {M_NONCE}
        ds_write_b32 v3, v2
        v_mov_b32 v3, {M_LNCNT}
        s_mov_b32 s64, 0
        {L('lc')}:
        ds_read_b32 v2, v3
        s_add_u32 s64, s64, 1
        s_waitcnt lgkmcnt(0)
        v_readfirstlane_b32 s60, v2
        s_cmp_gt_u32 s64, 0x100000
        s_cbranch_scc1 {L('lcd')}
        s_cmp_lt_u32 s60, 3
        s_cbranch_scc1 {L('lc')}
        {L('lcd')}:
        s_mul_i32 s66, s{S_LID}, {FSTR}
        s_add_u32 s66, s66, {FLN}
        """)
        self.store_flag(66)
        self.stamp(10)
        a(f"{L('g_j')}:")
        if XS:
            self.ln_publish_xt()
            self.cnt_add(M_LNCNT + 8)
        self.get_nonce("gn", tmp=2)
        a(f"s_lshl_b32 s66, s{S_RB}, 2\ns_add_u32 s66, s66, s{S_WAVE}\ns_mul_i32 s66, s66, {4*FSTR}\ns_add_u32 s66, s66, {FLN}")
        def flt(p, wait):
            a(f"s_cmp_lg_u32 s71, 0\ns_cbranch_scc1 {L('flt' + p)}\ns_mov_b32 s71, 1")
            wait()
            self.cnt_add(M_HC + 4, rtn=True)
            a(f"""
            s_mul_i32 s65, s{S_LID}, {FSTR}
            s_add_u32 s65, s65, {FLT}
            s_waitcnt lgkmcnt(0)
            s_nop 1
            v_readfirstlane_b32 s60, v4
            s_cmp_lg_u32 s60, 3
            s_cbranch_scc1 {L('flt' + p)}
            v_mov_b32 v2, s{S_NONCE}
            s_mov_b64 exec, 1
            buffer_store_dword v2, off, s[{R_WS}:{R_WS+3}], s65 sc1
            s_mov_b64 exec, -1
            {L('flt' + p)}:
            """)
        a("s_mov_b32 s71, 0")
        self.spoll("pln", 66, FSTR, E('SS', 1), n=4, miss=(lambda: flt("a", lambda: a("s_waitcnt vmcnt(0)"))) if XS else None)
        self.stamp(3)
        self.vq = ["XT"]; self.seen.add("XT")
        for ks in range(2):
            for it in self.g1_aload(ks): self.emit(it)
        if XS: flt("b", lambda: a("s_waitcnt vmcnt(4)"))
        for ks in range(2, N0):
            for it in self.g1_aload(ks): self.emit(it)
        self.cnt_add(M_LN)
        if E('H6', 0):
            a(f"s_cmp_lt_u32 s{S_NCH}, 3\ns_cselect_b32 s65, 6, 5")
            self.cnt_wait(M_LNCNT + 12, "s65", "w1w")
        else: self.cnt_wait(M_LNCNT + 12, 5 + (3 if NA else 0) + (3 if GL else 0), "w1w")
        self.stamp(4, q=True)
        self.pubn = ''
        def publish(p):
            self.vwait("S")
            self.cnt_add(M_HC + 4 * p, rtn=True)
            a(f"""
            s_mul_i32 s66, s{S_LID}, {FHS}
            s_add_u32 s66, s66, {FH + 256 * FHS * p}
            s_waitcnt lgkmcnt(0)
            s_nop 1
            v_readfirstlane_b32 s60, v4
            s_cmp_lg_u32 s60, 3
            s_cbranch_scc1 {L('nofh%d%s' % (p, self.pubn))}
            """)
            self.store_flag(66)
            if p == 0: self.lds_set(M_HP, None, tmp=(2, 3))
            a(f"{L('nofh%d%s' % (p, self.pubn))}:")
            self.stamp(28 + p, q=True)
            self.vq.append("f")
            self.vq.pop()
        def cnt_wait(addr, n, name):
            lab = L(name)
            a(f"""
            v_mov_b32 v2, {addr}
            s_mov_b32 s61, 0
            {lab}:
            ds_read_b32 v3, v2
            s_add_u32 s61, s61, 1
            s_waitcnt lgkmcnt(0)
            v_readfirstlane_b32 s60, v3
            s_cmp_gt_u32 s61, 0x100000
            s_cbranch_scc1 {lab}_d
            s_cmp_lt_u32 s60, {n}
            s_cbranch_scc1 {lab}
            {lab}_d:
            """)
        def ev_rb():
            self.lds_wait_all(M_FW, 1, "fww", tmp=2)
            return sum((self.g2_bload_items(j) for j in range(6, 9)), [])
        ev = {10: lambda: self.stamp(14, q=True)}
        RB1 = E('RB1', 11)
        if RB1 < 20: ev[RB1] = ev_rb
        self.g2_setup_s()
        fa, fv = self.g1_loop(N0, ev, TL=E('TL', 5))
        self.cnt_add(M_PD)
        self.stamp(5, q=True)
        for it in fa + self.epi_ops(2) + fv: self.emit(it)
        self.stamp(15, q=True)
        self.g2_setup_v()
        ND = 0
        publish(0)
        rest = ev_rb() if RB1 >= 20 else []
        cnt_wait(M_PD, 4, "pdw")
        if E('PF'): a("s_setprio 0")
        for j in range(ND, 6):
            for it in self.g2_dma_items(j): self.emit(it)
        for it in rest: self.emit(it)
        self.stamp(6, q=True)
        a(f"s_lshr_b32 s66, s{S_RB2}, 1\ns_lshl_b32 s66, s66, 2\ns_add_u32 s66, s66, s{S_WAVE}\ns_mul_i32 s66, s66, {4*FHS}\ns_add_u32 s66, s66, {FH}")
        self.spoll("pfh", 66, FHS, E('SS', 1), n=4)
        NF2 = E('NF2', 2)
        for j in range(NF2):
            for it in self.g2_aload_items(j): self.emit(it)
        self.stamp(7, q=True)
        self.g2_loop(hook=lambda: self.lds_set(M_J6, None, tmp=(2, 3)), hook_at=E('J6', 6), fill0=sum((self.g2_aload_items(j) for j in range(NF2, 5)), []))
        self.stamp(8)
        if E('PF'): a("s_setprio 2")
        self.g2_final()
        if 9 in self.sel: a("s_waitcnt vmcnt(0)")
        self.stamp(9)
        if E('KX'):
            a(f"""
            s_waitcnt vmcnt(0)
            s_memrealtime s[62:63]
            s_waitcnt lgkmcnt(0)
            s_sub_u32 s60, s62, s{S_NONCE}
            s_min_u32 s60, s60, 10000
            s_mul_i32 s60, s60, {E('KX')}
            {L('kx')}:
            s_memrealtime s[62:63]
            s_waitcnt lgkmcnt(0)
            s_sub_u32 s61, s62, s{S_NONCE}
            s_cmp_lt_u32 s61, s60
            s_cbranch_scc1 {L('kx')}
            """)
        self.dg_end(0)
        self.role = 'c'
        a(f"s_endpgm\n{L('kg')}:")
        a.clear_hist()
        self.kg_setup()
        a("s_waitcnt vmcnt(4)\ns_setprio 0")
        self.stamp(1)
        if E('X1'):
            self.get_nonce("x1n", tmp=2)
            self.lds_set(M_CD, 70, tmp=(2, 3))
            a(f"s_mul_i32 s66, s71, {FSTR}\ns_add_u32 s66, s66, {FS}")
            self.store_flag(66)
            a("s_endpgm")
        def khook():
            a(f"s_cmp_lg_u32 s73, 2\ns_cbranch_scc1 {L('kh')}\ns_waitcnt vmcnt(0)")
            self.cnt_add(M_LNCNT + 12)
            a(f"{L('kh')}:")
        self.kgen()
        self.stamp(3)
        self.expand()
        self.stamp(2)
        self.get_nonce("cn", tmp=2)
        self.lds_wait_all(M_U, 1, "uw", tmp=2)
        self.stamp(4)
        if E('CW'):
            lab = L("cw")
            a(f"""
            v_mov_b32 v2, {M_PD + 4 * (E('CW') - 1)}
            s_mov_b32 s61, 0
            {lab}:
            ds_read_b32 v3, v2
            s_add_u32 s61, s61, 1
            s_waitcnt lgkmcnt(0)
            v_readfirstlane_b32 s60, v3
            s_cmp_gt_u32 s61, 0x100000
            s_cbranch_scc1 {lab}_d
            s_cmp_ge_u32 s60, 4
            s_cbranch_scc1 {lab}_d
            s_sleep 2
            s_branch {lab}
            {lab}_d:
            """)
        if E('PF'): a("s_setprio 1")
        self.conv()
        self.lds_set(M_CD, 70, tmp=(2, 3))
        self.stamp(5)
        a(f"s_mul_i32 s66, s71, {FSTR}\ns_add_u32 s66, s66, {FS}\ns_waitcnt vmcnt(0)")
        self.store_flag(66)
        self.stamp(6)
        a(f"s_endpgm\n{L('noch')}:")
        a.clear_hist()
        a(f"s_sub_u32 s70, s{S_WAVE}, 4")
        aux_dma("b")
        a(f"s_cmp_eq_u32 s{S_WAVE}, 6\ns_cbranch_scc1 {L('rt')}\ns_waitcnt vmcnt(0)")
        if NA: self.cnt_add(M_LNCNT + 12)
        a(f"s_cmp_lg_u32 s{S_WAVE}, 4\ns_cbranch_scc1 {L('end')}")
        self.cnt_wait(M_LNCNT + 8, 4, "agw", sleep=2)
        self.get_nonce("an", tmp=2)
        a(f"s_lshl_b32 s67, s{S_XCD}, 1\ns_add_u32 s67, s67, s{S_IDX}\ns_sub_u32 s67, s67, 30\ns_mul_i32 s66, s67, {16*FSTR}\ns_add_u32 s66, s66, {FLT if E('XS', 1) else FLN}")
        self.spoll("plt", 66, FSTR, 2)
        a(f"""
        s_mul_i32 s66, s67, {FSTR}
        s_add_u32 s66, s66, {FL2}
        v_mul_u32_u24 v2, {16*FSTR}, v0
        v_mov_b32 v3, s{S_NONCE}
        s_mov_b64 exec, 0xffff
        buffer_store_dword v3, v2, s[{R_WS}:{R_WS+3}], s66 offen sc1
        s_mov_b64 exec, -1
        """)
        self.stamp(8)
        a(f"s_endpgm\n{L('rt')}:")
        H6 = E('H6', 0)
        self.w2_loads()
        if H6:
            self.w1_addr(12)
            a(f"s_mov_b32 s68, {GS - H6}\n{L('h6l')}:")
            self.w1_group(12)
            a(f"s_add_u32 s68, s68, 1\ns_cmp_lt_u32 s68, {GS}\ns_cbranch_scc1 {L('h6l')}")
        a(f"s_waitcnt vmcnt({3 * H6})")
        self.cnt_wait(M_LNCNT + 8, 4, "rtw", sleep=2)
        a("s_setprio 3")
        self.w2_retile(mid=(lambda: (a("s_waitcnt vmcnt(10)"), self.cnt_add(M_LNCNT + 12))) if H6 else None)
        a(f"""
        v_mov_b32 v3, 0
        s_mov_b32 s64, 0
        {L('wn')}:
        global_load_dword v2, v3, s[{P_DBG}:{P_DBG+1}] sc1
        s_add_u32 s64, s64, 1
        s_waitcnt vmcnt(0)
        s_nop 1
        v_readfirstlane_b32 s{S_NONCE}, v2
        s_cmp_gt_u32 s64, 0x8000
        s_cbranch_scc1 {L('wnd')}
        s_cmp_eq_u32 s{S_NONCE}, 0
        s_cbranch_scc1 {L('wn')}
        {L('wnd')}:
        """)
        a(f"""
        s_mul_i32 s66, s43, {FSTR}
        s_add_u32 s66, s66, {FWR}
        v_mul_u32_u24 v2, {96*FSTR}, v0
        v_mov_b32 v3, s{S_NONCE}
        s_mov_b64 exec, 0xff
        s_waitcnt vmcnt(0)
        buffer_store_dword v3, v2, s[{R_WS}:{R_WS+3}], s66 offen sc1
        s_mov_b64 exec, -1
        """)
        self.stamp(7)
        a(f"s_endpgm\n{L('svc')}:")
        a.clear_hist()
        self.role = 's'
        a("s_waitcnt vmcnt(0)")
        self.cnt_add(M_LNCNT + 12)
        a("s_setprio 3")
        self.stamp(2)
        self.get_nonce("sn", tmp=2)
        def fwp():
            a(f"s_lshr_b32 s66, s{S_CB2}, 2\ns_mul_i32 s66, s66, {FSTR}\ns_add_u32 s66, s66, {FW}")
            if E('L2P', 0):
                a(f"s_mov_b32 s66, {FW}")
                self.poll_flags("pfw", 66, 48, nloads=2, istride=48*FSTR)
            else:
                self.poll_flags("pfw", 66, 48, lstride=2*FSTR)
            self.lds_set(M_FW, None, tmp=(2, 3))
            if E('L2P', 0):
                a(f"s_mul_i32 s60, s{S_IDX}, {480*128}\ns_add_u32 s60, s60, {W2F}\nv_lshlrev_b32 v2, 7, v0")
                for i in range(8):
                    if i == 7: a("s_mov_b32 exec_hi, 0")
                    a(f"buffer_load_dword v{200+i}, v2, s[{R_WS}:{R_WS+3}], s60 offen sc1\ns_add_u32 s60, s60, 8192")
                a("s_mov_b64 exec, -1")
            self.stamp(5)
        a(f"s_mul_i32 s66, s{S_XCD}, {96*FSTR}\ns_lshr_b32 s60, s{S_CB2}, 2\ns_mul_i32 s60, s60, {FSTR}\ns_add_u32 s66, s66, s60\ns_add_u32 s66, s66, {FWR}")
        a("s_mov_b32 s67, s66")
        self.cnt_wait(M_LN, 4, "slw", sleep=1)
        if E('W4D'): a(f"s_sleep {E('W4D')}")
        self.poll_flags("pfw", 67, 48, lstride=2*FSTR)
        self.lds_set(M_FW, None, tmp=(2, 3))
        self.stamp(5)
        def cpoll(name, first):
            a(f"""
            v_mul_u32_u24 v2, {FSTR}, v0
            s_lshr_b32 s60, s{S_CB2}, 2
            s_mul_i32 s60, s60, {FSTR}
            s_add_u32 s60, s60, {FW - 32*FSTR}
            v_lshlrev_b32 v4, 1, v2
            v_add_u32 v4, s60, v4
            v_add_u32 v2, {FL2}, v2
            v_cmp_gt_u32 vcc, 16, v0
            v_cndmask_b32 v2, v4, v2, vcc
            v_mov_b32 v4, {M_FW}
            {'' if first else 's_lshl_b64 exec, -1, 16'}
            s_mov_b32 s64, 0
            {L(name)}:
            buffer_load_dword v3, v2, s[{R_WS}:{R_WS+3}], 0 offen sc1
            s_add_u32 s64, s64, 1
            s_waitcnt vmcnt(0)
            v_cmp_ne_u32 vcc, s{S_NONCE}, v3
            s_cmp_gt_u32 s64, 0x8000
            s_cselect_b64 s[60:61], 0, vcc
            s_lshr_b64 s[62:63], s[60:61], 16
            s_cmp_eq_u64 s[62:63], 0
            s_cselect_b32 s65, 1, 0
            v_mov_b32 v3, s65
            ds_write_b32 v4, v3
            {'s_and_b32 s60, s60, 0xffff' if first else 's_xor_b32 s60, s65, 1'}
            s_cmp_eq_u32 s60, 0
            s_cbranch_scc1 {L(name)}_d
            s_sleep {E('CSL', 3)}
            s_branch {L(name)}
            {L(name)}_d:
            s_mov_b64 exec, -1
            """)
        a("s_mov_b32 s65, 0")
        if E('W3D'): a(f"s_sleep {E('W3D')}")
        a(f"s_cmp_eq_u32 s{S_NCH}, 0\ns_cbranch_scc1 {L('nou')}")
        a(f"s_and_b32 s66, s2, 15\ns_mul_i32 s66, s66, {16*FSTR}\ns_add_u32 s66, s66, {FL2}")
        if E('L2V'): self.poll_flags("pla", 66, 16)
        else: self.spoll("pla", 66, FSTR, E('CSL', 3))
        self.stamp(3)
        self.u_gather()
        self.lds_set(M_U, None, tmp=(2, 3))
        a(f"{L('nou')}:")
        self.stamp(4)
        self.svc_x_loads()
        self.stamp(6)
        self.lds_wait_all(M_J6, 1, "j6w", tmp=2)
        a(f"s_mul_i32 s66, s{S_CB2}, {80*FSTR}\ns_add_u32 s66, s66, {FS}")
        self.poll_flags("pfs", 66, 40, nloads=2, istride=40*FSTR)
        a(f"s_cmp_eq_u32 s{S_NCH}, 0\ns_cbranch_scc1 {L('nocd')}")
        self.lds_wait_all(M_CD, 2, "cdw", tmp=2)
        a(f"{L('nocd')}:")
        self.stamp(7)
        self.s_tile_dma()
        self.stamp(8)
        a("s_barrier")
        self.dg_end(7)
        a(f"{L('end')}:\ns_endpgm")

if __name__ == "__main__":
    path = sys.argv[1]
    opts = sys.argv[2:]
    g = Fused("fused", "stamps" in opts)
    g.sel = set(range(32)) if "stamps" in opts else ({0, 9} | {int(x) for x in os.environ.get("SEL", "").split(",") if x} if "mins" in opts else set())
    g.build_fused()
    lab = NAME + "_kernel"
    txt = HEADER + f"; @launch grid=(256,1,1) block=(512,1,1) lds={LDS_TOTAL}\n" + '.amdgcn_target "amdgcn-amd-amdhsa--gfx950"\n' + kernel_text(lab, g.a.text()) + desc(lab)
    if E('X4'):
        import re
        txt = re.sub(r"(buffer_load_dwordx4 .*?) sc1", r"\1", txt)
    if E('X2'):
        txt = "\n".join(("    s_nop 0" if ("s81 offen" in l) else l) for l in txt.split("\n"))
    open(path, "w").write(txt)
```

```python
import sys
from asmlib import Asm, vr, sr

NAME = "recurrent_scan__ssm_conv_s4d__dense_activation_squared_relu__prompt"
XF = 0x0; XT = 0x280000; HF = 0x500000; W2F = 0xB00000; ST = 0xD00000
FLG = 0xF80000; STAMP = 0x1000000; WS_SIZE = 0x1100000
import os
FSTR = int(os.environ.get('FSTR','128'))
PSLEEP = int(os.environ.get('PSLEEP','0'))
LSLEEP = int(os.environ.get('LSLEEP','0'))
FHS = int(os.environ.get('FHS','128'))
FLN = FLG; FH = FLG + 0x8000; FW = FLG + 0x20000; FS = FLG + 0x24000; FL2 = FLG + 0x50000; FLT = FLG + 0x48000; FWR = FLG + 0x60000
AUX = 122880; RSZ = 12896; K1O = 4160; UO = 8320; UPAD = 480
MISC = AUX + 3 * RSZ
LDS_TOTAL = 163840
M_LNCNT = MISC; M_W1 = MISC + 16; M_G1D = MISC + 32; M_U = MISC + 48; M_NONCE = MISC + 112
M_LNR = MISC + 80; M_LN = MISC + 192; M_LNW = MISC + 240; M_J6 = MISC + 208; M_HP = MISC + 224; M_FW = MISC + 64; M_HCNT = MISC + 68; M_FH = MISC + 256; M_PD = MISC + 128; M_HC = MISC + 144; M_CD = MISC + 96
LNRS = 1296
LNIMG = 122880 - 10752
IMG = [0, 40960, 81920]
XRS = 176; XI = AUX + RSZ; M_B2 = MISC + 512
P_X, P_LA, P_AI, P_CR, P_CI, P_DT, P_DS = 4, 6, 8, 10, 12, 14, 16
P_W1, P_B1, P_W2, P_B2, P_OUT, P_DBG, P_WS = 20, 22, 24, 26, 28, 30, 32
S_WAVE, S_XCD, S_IDX, S_RB, S_CB, S_RB2, S_CB2, S_NCH, S_CH0 = 34, 35, 36, 37, 38, 39, 40, 41, 42
R_WS, R_X, R_W, R_OUT = 44, 48, 52, 56
S_NONCE = 96
S_LID = 93
LOG2E = 0x3fb8aa3b
INV2PI = 0x3e22f983

class Gen:
    def __init__(self, mode, stamps=False):
        self.a = Asm()
        self.mode = mode
        self.fused = mode == "fused"
        self.stamps = stamps
        self.sel = set()
        self.role = 'g'
        self.seen = set()
        self.pfx = mode

    def L(self, n):
        return f"{self.pfx}_{n}"

    def stamp(self, slot, q=False):
        if os.environ.get('DGP') and (self.role, slot) == (os.environ['DGP'][0], int(os.environ['DGP'][1:])):
            self.a('s_memrealtime s[72:73]\ns_waitcnt lgkmcnt(0)')
        if slot not in self.sel: return
        if q: self.vq += ['st']
        a = self.a
        a(f"""
        s_memrealtime s[98:99]
        s_lshl_b32 s100, s2, 3
        s_add_u32 s100, s100, s{S_WAVE}
        s_lshl_b32 s100, s100, 7
        s_add_u32 s100, s100, {STAMP + slot*4}
        s_waitcnt lgkmcnt(0)
        v_mov_b32 v1, s98
        s_mov_b64 s[98:99], exec
        s_mov_b64 exec, 1
        buffer_store_dword v1, off, s[{R_WS}:{R_WS+3}], s100
        s_mov_b64 exec, s[98:99]
        """)

    def dg_end(self, wave):
        if not os.environ.get('DGP') or os.environ['DGP'][0] != self.role: return
        lab = self.L('dg' + self.role)
        self.a(f"""
        s_cmp_lg_u32 s2, 0
        s_cbranch_scc1 {lab}_d
        s_cmp_lg_u32 s{S_WAVE}, {wave}
        s_cbranch_scc1 {lab}_d
        s_sub_u32 s60, s72, s94
        s_min_u32 s60, s60, 3000
        s_mul_i32 s60, s60, 5
        s_memrealtime s[62:63]
        s_waitcnt lgkmcnt(0)
        s_mov_b32 s64, s62
        {lab}:
        s_memrealtime s[62:63]
        s_waitcnt lgkmcnt(0)
        s_sub_u32 s61, s62, s64
        s_cmp_lt_u32 s61, s60
        s_cbranch_scc1 {lab}
        {lab}_d:
        """)

    def srd(self, r, p, size):
        self.a(f"""
        s_mov_b32 s{r}, s{p}
        s_and_b32 s{r+1}, s{p+1}, 0xffff
        s_mov_b32 s{r+2}, {size}
        s_mov_b32 s{r+3}, 0x00020000
        """)

    def mapfix(self):
        r = []
        if os.environ.get('M2') == '84':
            r += [f"s_lshr_b32 s60, s{S_XCD}, 1", "s_lshl_b32 s60, s60, 3", f"s_and_b32 s61, s{S_IDX}, 7", f"s_add_u32 s{S_RB2}, s60, s61",
                  f"s_and_b32 s60, s{S_XCD}, 1", "s_lshl_b32 s60, s60, 2", f"s_lshr_b32 s61, s{S_IDX}, 3", f"s_add_u32 s{S_CB2}, s60, s61"]
        if os.environ.get('M1') == '84':
            r += [f"s_and_b32 s60, s{S_XCD}, 1", "s_lshl_b32 s60, s60, 3", f"s_and_b32 s61, s{S_IDX}, 7", f"s_add_u32 s{S_RB}, s60, s61",
                  f"s_lshr_b32 s60, s{S_XCD}, 1", "s_lshl_b32 s60, s60, 2", f"s_lshr_b32 s61, s{S_IDX}, 3", f"s_add_u32 s{S_CB}, s60, s61"]
        if os.environ.get('M1') == '216':
            r += [f"s_lshl_b32 s60, s{S_XCD}, 1", f"s_and_b32 s61, s{S_IDX}, 1", f"s_add_u32 s{S_RB}, s60, s61", f"s_lshr_b32 s{S_CB}, s{S_IDX}, 1"]
        return "\n".join(r)

    def prologue(self):
        a = self.a
        a(f"""
        s_load_dwordx16 s[4:19], s[0:1], 0
        s_load_dwordx8 s[20:27], s[0:1], 64
        s_load_dwordx4 s[28:31], s[0:1], 96
        s_load_dwordx2 s[32:33], s[0:1], 112
        s_memrealtime s[94:95]
        s_cmp_ge_u32 s2, 256
        s_cbranch_scc1 {self.L('end')}
        v_lshrrev_b32 v1, 6, v0
        v_and_b32 v0, 63, v0
        s_and_b32 s{S_XCD}, s2, 7
        v_readfirstlane_b32 s{S_WAVE}, v1
        s_lshr_b32 s{S_IDX}, s2, 3
        s_getpc_b64 s[62:63]
        {self.L('pc')}:
        s_cmp_lg_u32 s{S_WAVE}, 7
        s_cbranch_scc1 {self.L('nopf')}
        s_and_b32 s60, s{S_IDX}, 7
        s_mul_i32 s60, s60, 4352
        v_lshlrev_b32 v2, 7, v0
        v_add_u32 v2, s60, v2
        v_min_u32 v2, {self.L('end')}-{self.L('pc')}, v2
        s_mov_b32 exec_hi, 3
        global_load_dword v130, v2, s[62:63]
        s_mov_b32 exec_hi, -1
        {self.L('nopf')}:
        s_and_b32 s60, s{S_XCD}, 3
        s_lshl_b32 s60, s60, 2
        s_and_b32 s61, s{S_IDX}, 3
        s_add_u32 s{S_RB}, s60, s61
        s_lshr_b32 s60, s{S_XCD}, 2
        s_lshl_b32 s60, s60, 3
        s_lshr_b32 s{S_CB2}, s{S_IDX}, 2
        s_add_u32 s{S_CB}, s60, s{S_CB2}
        s_lshl_b32 s60, s{S_XCD}, 2
        s_add_u32 s{S_RB2}, s60, s61
        {self.mapfix()}
        ; conv channels: g = idx/3, pos = idx%3
        s_mul_i32 s60, s{S_IDX}, 43
        s_lshr_b32 s60, s60, 7
        s_mul_i32 s61, s60, 3
        s_sub_u32 s61, s{S_IDX}, s61
        s_mul_i32 s62, s{S_XCD}, 80
        s_lshl_b32 s63, s60, 3
        s_add_u32 s62, s62, s63
        s_mul_i32 s63, s61, 3
        s_add_u32 s{S_CH0}, s62, s63
        s_cmp_eq_u32 s61, 2
        s_cselect_b32 s{S_NCH}, 2, 3
        s_cmp_ge_u32 s{S_IDX}, 30
        s_cselect_b32 s{S_NCH}, 0, s{S_NCH}
        s_sub_u32 s61, s{S_IDX}, 20
        s_cselect_b32 s60, s61, s60
        """)
        a.lines.pop(); a.lines.pop()
        a(f"""
        s_sub_u32 s61, s{S_IDX}, 20
        s_cmp_ge_u32 s{S_IDX}, 30
        s_cselect_b32 s60, s61, s60
        s_mul_i32 s61, s{S_XCD}, 12
        s_add_u32 s43, s61, s60
        s_lshl_b32 s{S_LID}, s{S_RB}, 4
        s_add_u32 s{S_LID}, s{S_LID}, s{S_CB}
        v_lshlrev_b32 v2, 3, v0
        v_add_u32 v2, {MISC}, v2
        v_mov_b32 v4, 0
        v_mov_b32 v5, 0
        ds_write_b64 v2, v[4:5]
        s_cmp_eq_u32 s{S_WAVE}, 7
        s_cselect_b32 s60, s2, 1
        s_cmp_lg_u32 s60, 0
        s_waitcnt lgkmcnt(0)
        s_cbranch_scc1 {self.L('nonce0')}
        s_or_b32 s61, s94, 1
        v_mov_b32 v2, s61
        s_mov_b64 exec, 1
        global_store_dword v4, v2, s[{P_DBG}:{P_DBG+1}] sc1
        s_mov_b64 exec, -1
        {self.L('nonce0')}:
        s_barrier
        """)
        if os.environ.get('WSOFF'):
            a(f"s_add_u32 s{P_WS}, s{P_WS}, {int(os.environ['WSOFF'],0)}\ns_addc_u32 s{P_WS+1}, s{P_WS+1}, 0")
        self.srd(R_WS, P_WS, WS_SIZE)
        self.srd(R_X, P_X, 2621440)

    def rowaddr(self, dst, row, t):
        self.a(f"""
        v_mul_u32_u24 v{t}, 11, v{row}
        v_lshrrev_b32 v{t}, 5, v{t}
        v_mul_u32_u24 v{dst}, {LNRS}, v{row}
        v_mad_u32_u24 v{dst}, v{t}, s97, v{dst}
        v_lshrrev_b32 v{t}, 1, v{t}
        v_mul_u32_u24 v{t}, 1440, v{t}
        v_add3_u32 v{dst}, v{dst}, v{t}, s61
        """)

    def ln_loads(self):
        a = self.a
        a(f"""
        s_lshl_b32 s60, s{S_LID}, 3
        s_lshl_b32 s61, s{S_WAVE}, 1
        s_add_u32 s60, s60, s61
        s_mul_i32 s60, s60, 1280
        v_lshrrev_b32 v2, 5, v0
        v_and_b32 v3, 31, v0
        v_mul_u32_u24 v1, 1280, v2
        v_lshl_add_u32 v1, v3, 3, v1
        """)
        for i in range(5):
            a(f"buffer_load_dwordx2 v[{100+2*i}:{101+2*i}], v1, s[{R_X}:{R_X+3}], s60 offen offset:{256*i}")

    def reduce32(self, v, t):
        a = self.a
        a(f"""
        v_add_f32_dpp v{v}, v{v}, v{v} quad_perm:[1,0,3,2] row_mask:0xf bank_mask:0xf
        v_add_f32_dpp v{v}, v{v}, v{v} quad_perm:[2,3,0,1] row_mask:0xf bank_mask:0xf
        v_add_f32_dpp v{v}, v{v}, v{v} row_half_mirror row_mask:0xf bank_mask:0xf
        v_add_f32_dpp v{v}, v{v}, v{v} row_mirror row_mask:0xf bank_mask:0xf
        v_mov_b32 v{t}, v{v}
        v_permlane16_swap_b32 v{v}, v{t}
        v_add_f32 v{v}, v{v}, v{t}
        """)

    def ln_math(self):
        a = self.a
        X = 110; Dd = 130; S = 150
        for i in range(10):
            a(f"v_lshlrev_b32 v{X+2*i}, 16, v{100+i}")
            a(f"v_and_b32 v{X+1+2*i}, 0xffff0000, v{100+i}")
        P = lambda r: f"v[{r}:{r+1}]"
        a(f"v_pk_add_f32 {P(S)}, {P(X)}, {P(X+2)}\nv_pk_add_f32 {P(S+2)}, {P(X+4)}, {P(X+6)}")
        for i in range(4, 10):
            a(f"v_pk_add_f32 {P(S+2*(i%2))}, {P(S+2*(i%2))}, {P(X+2*i)}")
        a(f"v_pk_add_f32 {P(S)}, {P(S)}, {P(S+2)}\nv_add_f32 v{S}, v{S}, v{S+1}")
        self.reduce32(S, S + 1)
        a(f"v_mul_f32 v{S+4}, 0x3acccccd, v{S}")
        for i in range(10):
            a(f"v_pk_add_f32 {P(Dd+2*i)}, {P(X+2*i)}, {P(S+4)} op_sel_hi:[1,0] neg_lo:[0,1] neg_hi:[0,1]")
        a(f"v_pk_mul_f32 {P(S)}, {P(Dd)}, {P(Dd)}\nv_pk_mul_f32 {P(S+2)}, {P(Dd+2)}, {P(Dd+2)}")
        for i in range(2, 10):
            a(f"v_pk_fma_f32 {P(S+2*(i%2))}, {P(Dd+2*i)}, {P(Dd+2*i)}, {P(S+2*(i%2))}")
        a(f"v_pk_add_f32 {P(S)}, {P(S)}, {P(S+2)}\nv_add_f32 v{S}, v{S}, v{S+1}")
        self.reduce32(S, S + 1)
        a(f"""
        v_mul_f32 v{S+5}, 0x3acccccd, v{S}
        v_cvt_pk_bf16_f32 v{S}, v{S+4}, v{S+5}
        v_lshlrev_b32 v{S+4}, 16, v{S}
        v_and_b32 v{S+2}, 0xffff0000, v{S}
        v_add_f32 v{S+2}, 0x3727c5ac, v{S+2}
        v_cvt_pk_bf16_f32 v{S+2}, v{S+2}, v{S+2}
        v_and_b32 v{S+2}, 0xffff0000, v{S+2}
        v_sqrt_f32 v{S+2}, v{S+2}
        """)
        for i in range(10):
            a(f"v_pk_add_f32 {P(Dd+2*i)}, {P(X+2*i)}, {P(S+4)} op_sel_hi:[1,0] neg_lo:[0,1] neg_hi:[0,1]")
            if i == 1:
                a(f"v_cvt_pk_bf16_f32 v{S+2}, v{S+2}, v{S+2}\nv_and_b32 v{S+2}, 0xffff0000, v{S+2}\nv_rcp_f32 v{S+2}, v{S+2}")
        for i in range(10):
            a(f"v_cvt_pk_bf16_f32 v{100+i}, v{Dd+2*i}, v{Dd+1+2*i}")
        for i in range(10):
            a(f"v_lshlrev_b32 v{X+2*i}, 16, v{100+i}")
            a(f"v_and_b32 v{X+1+2*i}, 0xffff0000, v{100+i}")
        for i in range(10):
            a(f"v_pk_mul_f32 {P(X+2*i)}, {P(X+2*i)}, {P(S+2)} op_sel_hi:[1,0]")
        for i in range(5):
            a(f"v_cvt_pk_bf16_f32 v{100+2*i}, v{X+4*i}, v{X+4*i+1}")
            a(f"v_cvt_pk_bf16_f32 v{101+2*i}, v{X+4*i+2}, v{X+4*i+3}")
            a(f"ds_write_b64 v98, v[{100+2*i}:{101+2*i}] offset:{256*i}")

    def ln_pub_addr(self):
        a = self.a
        a(f"""
        s_mov_b32 s84, s{S_WAVE}
        s_mov_b32 s97, {RSZ - 3*LNRS}
        s_mov_b32 s61, {AUX + UO + UPAD}
        s_lshl_b32 s60, s{S_WAVE}, 1
        v_lshrrev_b32 v2, 5, v0
        v_add_u32 v2, s60, v2
        """)
        self.rowaddr(98, 2, 5)
        a(f"""
        v_and_b32 v3, 31, v0
        v_lshl_add_u32 v98, v3, 3, v98
        s_lshl_b32 s60, s84, 7
        s_add_u32 s61, s61, s60
        v_and_b32 v1, 7, v0
        """)
        self.rowaddr(156, 1, 5)
        a(f"""
        v_lshrrev_b32 v2, 3, v0
        v_lshl_add_u32 v156, v2, 4, v156
        v_lshrrev_b32 v157, 2, v2
        v_and_b32 v5, 3, v2
        v_lshlrev_b32 v157, 10, v157
        v_lshl_add_u32 v157, v5, 8, v157
        v_lshl_add_u32 v157, v1, 4, v157
        v_and_b32 v1, 15, v0
        v_lshrrev_b32 v2, 2, v1
        v_sub_u32 v3, 7, v2
        v_sub_u32 v2, 3, v2
        """)
        self.rowaddr(158, 2, 5)
        self.rowaddr(99, 3, 5)
        a(f"""
        v_and_b32 v1, 3, v0
        v_lshrrev_b32 v2, 4, v0
        v_lshlrev_b32 v1, 3, v1
        v_lshl_add_u32 v1, v2, 5, v1
        v_add_u32 v158, v158, v1
        v_add_u32 v99, v99, v1
        v_lshlrev_b32 v159, 4, v0
        s_lshr_b32 s85, s{S_LID}, 1
        s_mul_i32 s85, s85, 20480
        s_and_b32 s62, s{S_LID}, 1
        s_lshl_b32 s62, s62, 7
        s_add_u32 s85, s85, s62
        s_lshl_b32 s62, s84, 11
        s_add_u32 s85, s85, s62
        s_add_u32 s86, s85, 8192
        s_add_u32 s87, s85, 16384
        s_mul_i32 s88, s{S_LID}, 10240
        s_lshl_b32 s62, s84, 10
        s_add_u32 s88, s88, s62
        s_add_u32 s88, s88, {XT}
        s_add_u32 s89, s88, 4096
        s_add_u32 s90, s88, 6144
        """)

    def ln_publish(self):
        a = self.a
        sc = "" if os.environ.get('V2') else "sc1"
        W = f"s[{R_WS}:{R_WS+3}]"
        l2 = self.L("lnp_xt3"); l3 = self.L("lnp_done")
        a(f"""
        ds_read_b128 v[160:163], v156
        ds_read_b128 v[164:167], v156 offset:512
        ds_read_b128 v[168:171], v156 offset:1024
        ds_read_b64_tr_b16 v[172:173], v99
        ds_read_b64_tr_b16 v[174:175], v158
        ds_read_b64_tr_b16 v[176:177], v99 offset:512
        ds_read_b64_tr_b16 v[178:179], v158 offset:512
        ds_read_b64_tr_b16 v[180:181], v99 offset:768
        ds_read_b64_tr_b16 v[182:183], v158 offset:768
        s_cmp_ge_u32 s84, 2
        s_waitcnt lgkmcnt(7)
        buffer_store_dwordx4 v[160:163], v157, {W}, s85 offen {sc}
        s_waitcnt lgkmcnt(6)
        buffer_store_dwordx4 v[164:167], v157, {W}, s86 offen {sc}
        s_cselect_b32 s87, {WS_SIZE}, s87
        s_waitcnt lgkmcnt(5)
        buffer_store_dwordx4 v[168:171], v157, {W}, s87 offen {sc}
        """)

    def ln_publish_xt(self):
        a = self.a
        W = f"s[{R_WS}:{R_WS+3}]"
        l3 = self.L("lnp_done")
        a(f"""
        s_cmp_lt_u32 s84, 2
        s_waitcnt lgkmcnt(0)
        buffer_store_dwordx4 v[172:175], v159, {W}, s88 offen sc1
        buffer_store_dwordx4 v[176:179], v159, {W}, s89 offen sc1
        s_cselect_b32 s90, {WS_SIZE}, s90
        buffer_store_dwordx4 v[180:183], v159, {W}, s90 offen sc1
        """)

    def w2_loads(self):
        a = self.a
        self.srd(R_OUT, P_W2, 1966080)
        a(f"""
        s_lshr_b32 s91, s43, 1
        s_and_b32 s92, s43, 1
        s_mul_i32 s62, s91, {32*1280}
        s_mul_i32 s63, s92, 640
        s_add_u32 s62, s62, s63
        s_add_u32 s63, s62, 320
        """)
        for i in range(10):
            a(f"""
            v_add_u32 v1, {64*i}, v0
            v_mul_u32_u24 v2, 52429, v1
            v_lshrrev_b32 v2, 20, v2
            v_mul_u32_u24 v3, 20, v2
            v_sub_u32 v3, v1, v3
            v_mul_u32_u24 v2, 1280, v2
            v_lshl_add_u32 v2, v3, 4, v2
            buffer_load_dwordx4 v[{64+4*i}:{67+4*i}], v2, s[{R_OUT}:{R_OUT+3}], s62 offen
            buffer_load_dwordx4 v[{104+4*i}:{107+4*i}], v2, s[{R_OUT}:{R_OUT+3}], s63 offen
            """)

    def w2_retile(self, mid=None):
        a = self.a
        sc = "sc1"
        base = AUX + 2 * RSZ
        a(f"""
        v_lshlrev_b32 v6, 4, v0
        v_add_u32 v1, {base}, v6
        v_lshrrev_b32 v2, 4, v0
        v_and_b32 v3, 15, v0
        v_lshrrev_b32 v3, 2, v3
        v_lshl_add_u32 v2, v2, 2, v3
        v_mul_u32_u24 v2, 320, v2
        v_and_b32 v3, 3, v0
        v_lshl_add_u32 v2, v3, 3, v2
        v_add_u32 v2, {base}, v2
        s_mul_i32 s62, s92, {4*245760}
        s_mul_i32 s63, s91, 5120
        s_add_u32 s62, s62, s63
        s_add_u32 s62, s62, {W2F}
        v_add_u32 v7, 4096, v6
        """)
        for half in range(2):
            src = 64 + 40 * half
            fr = 144 + 40 * half
            for i in range(10):
                a(f"ds_write_b128 v1, v[{src+4*i}:{src+3+4*i}] offset:{1024*i}")
            a("s_waitcnt lgkmcnt(4)")
            for nt in range(10):
                d = fr + 4 * nt
                a(f"ds_read_b64_tr_b16 v[{d}:{d+1}], v2 offset:{32*nt}")
                a(f"ds_read_b64_tr_b16 v[{d+2}:{d+3}], v2 offset:{32*nt+16*320}")
                if nt == 4: a("s_waitcnt lgkmcnt(4)")
            a("s_waitcnt lgkmcnt(0)")
            for nt in range(10):
                d = fr + 4 * nt
                cbl = half * 2 + nt // 5
                n5 = nt % 5
                if n5 == 0:
                    a(f"s_add_u32 s63, s62, {cbl*245760}")
                if n5 < 4:
                    a(f"buffer_store_dwordx4 v[{d}:{d+3}], v6, s[{R_WS}:{R_WS+3}], s63 offen offset:{1024*n5} {sc}")
                else:
                    a(f"buffer_store_dwordx4 v[{d}:{d+3}], v7, s[{R_WS}:{R_WS+3}], s63 offen {sc}")
            if half == 0 and mid:
                a("v_mov_b32 v8, v2"); mid(); a("v_mov_b32 v2, v8")

    def lds_set(self, addr_imm, sidx=None, val=1, tmp=(2, 3)):
        a = self.a
        if sidx is None:
            a(f"v_mov_b32 v{tmp[0]}, {addr_imm}")
        else:
            a(f"s_lshl_b32 s60, s{sidx}, 2\ns_add_u32 s60, s60, {addr_imm}\nv_mov_b32 v{tmp[0]}, s60")
        a(f"v_mov_b32 v{tmp[1]}, {val}\nds_write_b32 v{tmp[0]}, v{tmp[1]}")

    def lds_wait_all(self, addr_imm, n, name, tmp=2, sleep=None):
        if sleep is None: sleep = LSLEEP
        a = self.a
        lab = self.L(name); done = self.L(name + "_d")
        t = tmp
        a(f"""
        v_mov_b32 v{t}, {addr_imm}
        s_mov_b32 s61, 0
        {lab}:
        ds_read_b128 v[{t+2}:{t+5}], v{t}
        s_add_u32 s61, s61, 1
        s_waitcnt lgkmcnt(0)
        """)
        for k in range(1, n):
            a(f"v_min_u32 v{t+2}, v{t+2}, v{t+2+k}")
        a(f"""
        v_readfirstlane_b32 s60, v{t+2}
        s_cmp_gt_u32 s61, 0x100000
        s_cbranch_scc1 {done}
        s_cmp_lg_u32 s60, 0
        s_cbranch_scc1 {done}
        {'s_sleep %d' % sleep if sleep else ''}
        s_branch {lab}
        {done}:
        """)

    def get_nonce(self, name, tmp=2):
        self.lds_wait_all(M_NONCE, 1, name, tmp)
        self.a(f"s_mov_b32 s{S_NONCE}, s60")

    def poll_flags(self, name, soff, nlanes, nloads=1, lstride=FSTR, istride=64*FSTR, tmp=2, pre=None):
        a = self.a
        lab = self.L(name); done = self.L(name + "_d")
        t = tmp
        a(f"v_mul_u32_u24 v{t}, {lstride}, v0")
        a(f"s_mov_b64 s[62:63], exec")
        if nlanes < 64:
            a(f"s_lshr_b64 exec, -1, {64-nlanes}")
        a(f"s_mov_b32 s64, 0\n{lab}:")
        for i in range(nloads):
            if i * istride < 4096:
                a(f"buffer_load_dword v{t+1+i}, v{t}, s[{R_WS}:{R_WS+3}], s{soff} offen offset:{i*istride} sc1")
            else:
                a(f"s_add_u32 s65, s{soff}, {i*istride}\nbuffer_load_dword v{t+1+i}, v{t}, s[{R_WS}:{R_WS+3}], s65 offen sc1")
        a("s_add_u32 s64, s64, 1\ns_waitcnt vmcnt(0)")
        for i in range(nloads):
            a(f"v_xor_b32 v{t+1+i}, s{S_NONCE}, v{t+1+i}")
        for i in range(1, nloads):
            a(f"v_or_b32 v{t+1}, v{t+1}, v{t+1+i}")
        a(f"""
        v_cmp_ne_u32 vcc, 0, v{t+1}
        s_cmp_gt_u32 s64, 0x8000
        s_cbranch_scc1 {done}
        s_cbranch_vccz {done}
        {'s_sleep %d' % PSLEEP if PSLEEP else ''}
        s_branch {lab}
        {done}:
        s_mov_b64 exec, s[62:63]
        """)

    def poll_pipe(self, name, soff, nlanes, stride, depth, gap, on_result=None, vo=None):
        a = self.a
        lab = self.L(name)
        tb = self.ptmp
        if vo is None: a(f"v_mul_u32_u24 v2, {stride}, v0")
        a(f"s_mov_b64 s[62:63], exec\ns_lshr_b64 exec, -1, {64-nlanes}\ns_mov_b32 s64, 0")
        ld = lambda i: f"buffer_load_dword v{tb+i}, v2, s[{R_WS}:{R_WS+3}], s{soff} offen sc1"
        for i in range(depth - 1):
            a(ld(i))
            if gap: a(f"s_sleep {gap}")
        a(f"{lab}:")
        for i in range(depth):
            a(ld((i + depth - 1) % depth))
            a(f"s_waitcnt vmcnt({depth-1})\nv_cmp_eq_u32 vcc, s{S_NONCE}, v{tb+i}")
            if on_result: on_result()
            a(f"s_cmp_eq_u64 vcc, exec\ns_cbranch_scc1 {lab}_d")
            if gap: a(f"s_sleep {gap}")
        a(f"s_add_u32 s64, s64, 1\ns_cmp_lt_u32 s64, 0x4000\ns_cbranch_scc1 {lab}")
        if on_result:
            a("s_mov_b64 vcc, exec"); on_result()
        a(f"{lab}_d:\ns_mov_b64 exec, s[62:63]")

    def spoll(self, name, soff, stride, sleep, quarters=None, n=16, miss=None):
        a = self.a
        lab = self.L(name)
        a(f"s_add_u32 s62, s{P_WS}, s{soff}\ns_addc_u32 s63, s{P_WS+1}, 0\ns_mov_b32 s64, 0\n{lab}:")
        for i in range(n): a(f"s_load_dword s{4+i}, s[62:63], {i*stride} glc")
        a("s_add_u32 s64, s64, 1\ns_waitcnt lgkmcnt(0)")
        for i in range(n): a(f"s_xor_b32 s{4+i}, s{4+i}, s{S_NONCE}")
        for q in range(n // 4):
            a(f"s_or_b32 s{4+4*q}, s{4+4*q}, s{5+4*q}\ns_or_b32 s{6+4*q}, s{6+4*q}, s{7+4*q}\ns_or_b32 s{4+4*q}, s{4+4*q}, s{6+4*q}")
        if quarters:
            for q in range(4):
                a(f"s_cmp_eq_u32 s{4+4*q}, 0\ns_cselect_b32 s60, 1, 0\nv_mov_b32 v3, s60\nds_write_b32 v4, v3 offset:{16*q}")
        for q in range(1, n // 4): a(f"s_or_b32 s4, s4, s{4+4*q}")
        a(f"s_cmp_eq_u32 s4, 0\ns_cbranch_scc1 {lab}_d")
        if miss: miss()
        if sleep: a(f"s_sleep {sleep}")
        a(f"s_cmp_lt_u32 s64, 0x4000\ns_cbranch_scc1 {lab}")
        if quarters:
            a("v_mov_b32 v3, 1")
            for q in range(4): a(f"ds_write_b32 v4, v3 offset:{16*q}")
        a(f"{lab}_d:")

    def spoll48(self, name, soff, stride, sleep):
        a = self.a
        lab = self.L(name)
        regs = list(range(4, 26)) + list(range(67, 93))
        a(f"s_add_u32 s62, s{P_WS}, s{soff}\ns_addc_u32 s63, s{P_WS+1}, 0\ns_mov_b32 s64, 0\n{lab}:")
        for i, r in enumerate(regs): a(f"s_load_dword s{r}, s[62:63], {i*stride} glc")
        a(f"s_add_u32 s64, s64, 1\ns_mov_b32 s60, s{S_NONCE}\ns_mov_b32 s61, s{S_NONCE}\ns_waitcnt lgkmcnt(0)")
        for r in regs: a(f"s_and_b32 s60, s60, s{r}\ns_or_b32 s61, s61, s{r}")
        a(f"s_cmp_eq_u32 s60, s61\ns_cbranch_scc1 {lab}_d\ns_sleep {sleep}\ns_cmp_lt_u32 s64, 0x4000\ns_cbranch_scc1 {lab}\n{lab}_d:")

    def store_flag(self, soff, tmp=2):
        self.a(f"""
        v_mov_b32 v{tmp}, s{S_NONCE}
        s_mov_b64 s[62:63], exec
        s_mov_b64 exec, 1
        buffer_store_dword v{tmp}, off, s[{R_WS}:{R_WS+3}], s{soff} sc1
        s_mov_b64 exec, s[62:63]
        """)

    def w1_addr(self, vr_):
        self.srd(R_W, P_W1, 1966080)
        for ph in range(3):
            self.a(f"""
            v_add_u32 v5, {64*ph}, v0
            v_mul_u32_u24 v6, 43691, v5
            v_lshrrev_b32 v6, 19, v6
            v_mul_u32_u24 v7, 12, v6
            v_sub_u32 v7, v5, v7
            v_lshrrev_b32 v8, 2, v6
            v_and_b32 v8, 2, v8
            v_xor_b32 v7, v7, v8
            v_mul_u32_u24 v6, 3072, v6
            v_lshl_add_u32 v{vr_+ph}, v7, 4, v6
            """)
        self.a(f"s_mul_i32 s69, s{S_CB}, 192")

    def w1_group(self, vr_):
        a = self.a
        a(f"""
        s_mul_i32 s63, s68, {16*3072}
        s_add_u32 s63, s63, s69
        s_mul_i32 m0, s68, 3072
        s_nop 0
        buffer_load_dwordx4 v{vr_}, s[{R_W}:{R_W+3}], s63 offen lds
        s_add_u32 m0, m0, 1024
        s_nop 0
        buffer_load_dwordx4 v{vr_+1}, s[{R_W}:{R_W+3}], s63 offen lds
        s_add_u32 m0, m0, 1024
        s_nop 0
        buffer_load_dwordx4 v{vr_+2}, s[{R_W}:{R_W+3}], s63 offen lds
        """)

    G1_ACC = 16; G1_B = 64; G1_B1 = 64; G1_A = 96
    def g1_b1_loads(self):
        a = self.a
        a(f"""
        v_lshrrev_b32 v5, 4, v0
        v_lshlrev_b32 v5, 3, v5
        s_mul_i32 s60, s{S_CB}, 192
        v_add_u32 v5, s60, v5
        """)
        for t in range(6):
            a(f"global_load_dwordx2 v[{self.G1_B1+2*t}:{self.G1_B1+2*t+1}], v5, s[{P_B1}:{P_B1+1}] offset:{32*t}")

    def acc_init(self, p):
        r = []
        for k in range(2):
            for lt in range(2):
                d = self.G1_ACC + 16 * p + 8 * k + 4 * lt
                s_ = self.G1_B1 + 2 * (2 * p + k)
                r += [f"v_lshlrev_b32 v{d}, 16, v{s_}", f"v_and_b32 v{d+1}, 0xffff0000, v{s_}",
                      f"v_lshlrev_b32 v{d+2}, 16, v{s_+1}", f"v_and_b32 v{d+3}, 0xffff0000, v{s_+1}"]
        return r

    def g1_prep(self):
        a = self.a
        for x in self.acc_init(0) + self.acc_init(1) + self.acc_init(2): a(x)
        a(f"""
        v_lshrrev_b32 v5, 4, v0
        v_and_b32 v6, 15, v0
        v_lshrrev_b32 v6, 2, v6
        v_lshl_add_u32 v6, v5, 3, v6
        v_mul_u32_u24 v6, 192, v6
        v_and_b32 v7, 3, v0
        v_lshl_add_u32 v6, v7, 3, v6
        v_and_b32 v5, 1, v5
        v_lshlrev_b32 v5, 5, v5
        v_add_u32 v10, v6, v5
        v_sub_u32 v11, v6, v5
        v_add_u32 v12, 61440, v10
        v_add_u32 v13, 61440, v11
        s_lshl_b32 s86, s{S_RB}, 3
        s_lshl_b32 s87, s{S_WAVE}, 1
        s_add_u32 s86, s86, s87
        s_mul_i32 s82, s86, 20480
        s_add_u32 s83, s82, 20480
        s_mul_i32 s86, s86, 49152
        s_mul_i32 s87, s{S_CB}, 3072
        s_add_u32 s86, s86, s87
        s_add_u32 s86, s86, {HF}
        s_add_u32 s87, s86, 49152
        """)

    def g1_aload(self, ks):
        r = []
        for lt in range(2):
            d = self.G1_A + 8 * ks + 4 * lt
            ins = [f"buffer_load_dwordx4 v[{d}:{d+3}], v9, s[{R_WS}:{R_WS+3}], s{82+lt} offen offset:{1024*(ks%4)} sc1"]
            if ks % 4 == 3 and ks != 19: ins.append(f"s_add_u32 s{82+lt}, s{82+lt}, 4096")
            r.append((ins, f"A{ks}"))
        return r

    def epi_ops(self, p):
        r = []
        for lt in range(2):
            a0 = self.G1_ACC + 16 * p + 4 * lt; b0 = a0 + 8
            for x in (a0, b0):
                for i in range(4): r.append(([f"v_max_f32 v{x+i}, 0, v{x+i}"], None))
                for i in range(4): r.append(([f"v_mul_f32 v{x+i}, v{x+i}, v{x+i}"], None))
            r.append(([f"v_cvt_pk_bf16_f32 v{a0}, v{a0}, v{a0+1}"], None))
            r.append(([f"v_cvt_pk_bf16_f32 v{a0+1}, v{a0+2}, v{a0+3}"], None))
            r.append(([f"v_cvt_pk_bf16_f32 v{a0+2}, v{b0}, v{b0+1}"], None))
            r.append(([f"v_cvt_pk_bf16_f32 v{a0+3}, v{b0+2}, v{b0+3}"], None))
            r.append(([f"buffer_store_dwordx4 v[{a0}:{a0+3}], v9, s[{R_WS}:{R_WS+3}], s{86+lt} offen offset:{1024*p} sc1"], "S"))
        return r

    def vwait(self, tag):
        vq = self.vq
        assert tag in self.seen or os.environ.get('NOAL'), tag
        idx = [i for i, t in enumerate(vq) if t == tag]
        if not idx: return
        n = len(vq) - 1 - idx[-1]
        self.a(f"s_waitcnt vmcnt({min(n, 63)})"); del vq[:idx[-1] + 1]

    def emit(self, item):
        ins, tag = item
        for x in ins: self.a(x)
        if tag: self.vq.append(tag); self.seen.add(tag)

    def g1_loop(self, N0, events, TL=5):
        a = self.a
        NF = 8; AH = NF - 1
        seq = [(ks, t) for ks in range(20 - TL) for t in range(6)]
        for p in range(3):
            seq += [(ks, 2 * p + k) for ks in range(20 - TL, 20) for k in range(2)]
        def rd(f):
            ks, t = seq[f]
            base = (10 if t % 2 == 0 else 11) + (2 if ks >= 10 else 0)
            off = (ks % 10) * 6144 + 32 * t
            d = self.G1_B + 4 * (f % NF)
            return [f"ds_read_b64_tr_b16 v[{d}:{d+1}], v{base} offset:{off}", f"ds_read_b64_tr_b16 v[{d+2}:{d+3}], v{base} offset:{off+768}"]
        for f in range(AH):
            for x in rd(f): a(x)
        fv = []; fa = []; waited = set()
        f0 = 6 * (20 - TL)
        for f, (ks, t) in enumerate(seq):
            if f % 6 == 0:
                st = f // 6
                if st in events:
                    extra = events[st]()
                    if extra: fv += extra
                if st + N0 < 20: fv = self.g1_aload(st + N0) + fv
            if ks not in waited:
                self.vwait(f"A{ks}"); waited.add(ks)
            if f > f0 and (f - f0) % (2 * TL) == 1 and (f - f0) // (2 * TL) >= 1:
                fa += self.epi_ops((f - f0) // (2 * TL) - 1)
            nxt = rd(f + AH) if f + AH < 120 else []
            if f % 2 == 0:
                a(f"s_waitcnt lgkmcnt({max(0, 2 * (min(f + AH, 120) - f - 2))})")
            for lt in range(2):
                acc = self.G1_ACC + 8 * t + 4 * lt
                A = self.G1_A + 8 * ks + 4 * lt
                B = self.G1_B + 4 * (f % NF)
                a(f"v_mfma_f32_16x16x32_bf16 v[{acc}:{acc+3}], v[{B}:{B+3}], v[{A}:{A+3}], v[{acc}:{acc+3}]")
                if nxt: a(nxt.pop(0))
                if fa:
                    for _ in range(2 if nxt or f + AH < 120 else 3):
                        if fa: self.emit(fa.pop(0))
                elif fv and lt == 1 and f % 2 == 0: self.emit(fv.pop(0))
        return fa, fv

    KP = 44
    def kg_loads(self):
        a = self.a
        a(f"""
        s_sub_u32 s70, s{S_WAVE}, 4
        s_add_u32 s71, s{S_CH0}, s70
        s_mul_i32 s60, s71, 384
        v_lshlrev_b32 v2, 2, v0
        v_add_u32 v2, s60, v2
        v_lshlrev_b32 v3, 1, v0
        v_add_u32 v3, s60, v3
        """)
        for k, P in enumerate((P_LA, P_AI, P_CR, P_CI)):
            a(f"global_load_dword v{self.KP+k}, v2, s[{P}:{P+1}]")
        a(f"s_lshl_b32 s60, s71, 1\ns_and_b32 s60, s60, -4\ns_load_dword s74, s[{P_DT}:{P_DT+1}], s60\ns_load_dword s75, s[{P_DS}:{P_DS+1}], s60")
        for k, P in enumerate((P_LA, P_AI, P_CR, P_CI)):
            a(f"global_load_ushort v{self.KP+4+k}, v3, s[{P}:{P+1}] offset:256")

    def cmul(self, d, x, y, plain=False):
        if plain:
            return [f"v_mul_f32 v{d}, v{x}, v{y}", f"v_mul_f32 v{d+1}, v{x}, v{y+1}",
                    f"v_fma_f32 v{d}, -v{x+1}, v{y+1}, v{d}", f"v_fma_f32 v{d+1}, v{x+1}, v{y}, v{d+1}"]
        return [f"v_pk_mul_f32 v[{d}:{d+1}], v[{x}:{x+1}], v[{y}:{y+1}] op_sel:[0,0] op_sel_hi:[0,1]",
                f"v_pk_fma_f32 v[{d}:{d+1}], v[{x}:{x+1}], v[{y}:{y+1}], v[{d}:{d+1}] op_sel:[1,1,0] op_sel_hi:[1,0,1] neg_lo:[0,1,0]"]

    def kg_setup(self):
        a = self.a
        a(f"""
        s_mul_i32 s72, s70, {RSZ}
        s_add_u32 s72, s72, {AUX}
        v_lshrrev_b32 v2, 2, v0
        v_mul_u32_u24 v2, 272, v2
        v_and_b32 v3, 3, v0
        v_lshl_add_u32 v2, v3, 2, v2
        v_add_u32 v10, s72, v2
        v_add_u32 v9, 4352, v10
        v_lshrrev_b32 v2, 4, v0
        v_mul_u32_u24 v2, 272, v2
        v_and_b32 v3, 15, v0
        v_lshl_add_u32 v2, v3, 4, v2
        v_add_u32 v11, s72, v2
        s_bitcmp1_b32 s71, 0
        s_cselect_b32 s60, 0, 16
        s_waitcnt lgkmcnt(0)
        s_lshl_b32 s74, s74, s60
        s_lshl_b32 s75, s75, s60
        s_and_b32 s74, s74, 0xffff0000
        s_and_b32 s75, s75, 0xffff0000
        v_mov_b32 v56, {LOG2E}
        v_mul_f32 v56, s74, v56
        v_exp_f32 v56, v56
        v_mov_b32 v57, s75
        v_cvt_pk_bf16_f32 v56, v56, v56
        v_and_b32 v56, 0xffff0000, v56
        v_add_f32 v58, v56, v56
        v_mov_b32 v59, 0x3f80
        """)

    def kgen(self, hook=None):
        a = self.a
        KP = self.KP
        Z, Z8, W = 60, 62, 64
        F = 66; F2 = 82; G = 98; CV = 102; SV = 110
        GF, TA, TB, TC = 120, 136, 152, 184
        ACC = 168
        VW, VR, VW2 = 10, 11, 9
        TOFF = 4352
        NPL = int(os.environ.get('KPL', '1'))
        class Out:
            def __init__(o, base, neg, pool): o.base = base; o.neg = neg; o.pend = None; o.pool = pool; o.n = 0
            def put(o, src, row, reg=None):
                r = []
                if reg is None:
                    reg = CV + 4 * o.pool + o.n % 4; o.n += 1
                    r.append(f"v_cvt_pk_bf16_f32 v{reg}, v{src}, {'-' if o.neg else ''}v{src+1}")
                if o.pend is None: o.pend = (reg, row)
                else:
                    r.append(f"ds_write2_b32 v{o.base}, v{o.pend[0]}, v{reg} offset0:{4*o.pend[1]} offset1:{4*row}")
                    o.pend = None
                return r
        def merge(*streams):
            streams = [list(s) for s in streams]
            out = []
            while any(streams):
                for s in streams:
                    if s: out.append(s.pop(0))
            return out
        def mf(acc, T, first):
            return [f"v_mfma_f32_16x16x32_bf16 v[{acc}:{acc+3}], v[{T+4*ks}:{T+4*ks+3}], v[{GF+4*ks}:{GF+4*ks+3}], {'0' if first and ks == 0 else f'v[{acc}:{acc+3}]'}" for ks in range(4)]
        def up(k, p):
            r = KP + k + (4 if p == 2 else 0)
            return (lambda d: f"v_and_b32 v{d}, 0xffff0000, v{r}") if p == 1 else (lambda d: f"v_lshlrev_b32 v{d}, 16, v{r}")
        pend = []
        for p in range(3):
            pl = p >= 3 - NPL
            cm = lambda d, x, y: self.cmul(d, x, y, pl)
            if p == 2: a("s_waitcnt vmcnt(0)")
            prep = [up(0, p)(2), f"v_mul_f32 v2, {LOG2E}, v2", "v_exp_f32 v2, v2", up(1, p)(3), up(2, p)(F), "v_cvt_pk_bf16_f32 v2, v2, v2", up(3, p)(F + 1),
                    "v_and_b32 v2, 0xffff0000, v2", "v_mul_f32 v3, v3, v56", "v_mul_f32 v2, v2, v56", f"v_mul_f32 v{F}, v{F}, v58", f"v_mul_f32 v{F+1}, v{F+1}, v58",
                    f"v_mul_f32 v3, {INV2PI}, v3", "v_mul_f32 v2, 0xbfb8aa3b, v2",
                    "v_mul_f32 v4, 0x41000000, v2", "v_mul_f32 v5, 0x41000000, v3", "v_mul_f32 v6, 0x43000000, v2", "v_mul_f32 v7, 0x43000000, v3",
                    "v_fract_f32 v3, v3", "v_fract_f32 v5, v5", "v_fract_f32 v7, v7", "v_exp_f32 v2, v2", "v_exp_f32 v4, v4", "v_exp_f32 v6, v6",
                    f"v_cos_f32 v{Z}, v3", f"v_sin_f32 v{Z+1}, v3", f"v_cos_f32 v{Z8}, v5", f"v_sin_f32 v{Z8+1}, v5", f"v_cos_f32 v{W}, v7", f"v_sin_f32 v{W+1}, v7"]
            for q, e in ((Z, 2), (Z8, 4), (W, 6)):
                prep += [f"v_mul_f32 v{q}, v{q}, v{e}", f"v_mul_f32 v{q+1}, v{q+1}, v{e}"]
            k = 0
            for i, ins in enumerate(prep):
                a(ins)
                if pend and i >= 6 and i % 3 == 0: a(pend.pop(0))
            assert not pend
            og = Out(VW, False, 0); of = Out(VW2, True, 1); oc0 = Out(VW2, True, 0); oc1 = Out(VW2, True, 1); ot = Out(VW2, True, 0)
            gs = og.put(None, 0, 59) + og.put(Z8, 1)
            prev = Z8
            for j in range(2, 16):
                d = G + 2 * (j % 2)
                gs += cm(d, prev, Z8) + og.put(d, j)
                prev = d
            fs = of.put(F, 0)
            for r in range(1, 8):
                fs += cm(F + 2 * r, F + 2 * (r - 1), Z) + of.put(F + 2 * r, r)
            for r in range(8):
                fs += cm(F2 + 2 * r, F + 2 * r, W) + of.put(F2 + 2 * r, 8 + r)
            for ins in merge(gs, fs): a(ins)
            for ks in range(4):
                a(f"ds_read_b128 v[{GF+4*ks}:{GF+4*ks+3}], v{VR} offset:{1088*ks}")
                a(f"ds_read_b128 v[{TA+4*ks}:{TA+4*ks+3}], v{VR} offset:{TOFF+1088*ks}")
            s1 = []
            for i in range(4):
                s1.append(cm(F + 2 * i, F2 + 4 * i, W) + [f"v_cvt_pk_bf16_f32 v{SV+i}, v{F+2*i}, -v{F+2*i+1}"]
                          + cm(F + 8 + 2 * i, F + 2 * i, W) + [f"v_cvt_pk_bf16_f32 v{SV+4+i}, v{F+8+2*i}, -v{F+8+2*i+1}"])
            for ins in merge(*s1): a(ins)
            c0 = []; prev = F + 8
            for i in range(12):
                d = F2 + 2 * (i % 2)
                c0 += cm(d, prev, W) + oc0.put(d, i if i < 4 else i + 4)
                prev = d
            last = prev
            c1 = []; prev = F + 12
            for i in range(4):
                d = F2 + 4 + 2 * (i % 2)
                c1 += cm(d, prev, W) + oc1.put(d, 4 + i)
                prev = d
            for ins in merge(c0, c1): a(ins)
            for ks in range(4):
                a(f"ds_read_b128 v[{TB+4*ks}:{TB+4*ks+3}], v{VR} offset:{TOFF+1088*ks}")
            for ins in cm(F2 + 8, last, W): a(ins)
            a("s_waitcnt lgkmcnt(12)")
            t2 = []
            for i in range(8): t2 += ot.put(None, i, SV + i)
            t2 += [f"v_cvt_pk_bf16_f32 v{CV}, v{F2+8}, -v{F2+9}", f"ds_write_b32 v{VW2}, v{CV} offset:128"]
            t2 += [f"ds_read_b128 v[{TC+4*ks}:{TC+4*ks+3}], v{VR} offset:{TOFF+1088*ks}" for ks in range(4)]
            for ins in merge(mf(ACC, TA, p == 0), t2): a(ins)
            pend = ["s_waitcnt lgkmcnt(0)"] + mf(ACC + 4, TB, p == 0) + mf(ACC + 8, TC, p == 0)
        self.kpend = pend
        self.KACC = ACC

    def expand(self):
        a = self.a
        ACC = self.KACC
        T0, T1, T2 = ACC, ACC + 4, ACC + 8
        a(f"""
        v_and_b32 v2, 15, v0
        v_lshrrev_b32 v3, 4, v0
        v_lshlrev_b32 v4, 3, v2
        v_lshlrev_b32 v5, 2, v3
        v_add_u32 v5, 512, v5
        v_lshlrev_b32 v6, 9, v3
        v_cmp_gt_u32 vcc, 2, v3
        v_cndmask_b32 v5, v6, v5, vcc
        v_add_u32 v5, v5, v4
        v_cndmask_b32 v6, 4, 2, vcc
        v_and_b32 v7, 1, v2
        v_cndmask_b32 v7, v7, v3, vcc
        v_cndmask_b32 v8, 8, 0, vcc
        s_add_u32 s60, s72, 32
        v_sub_u32 v9, v5, v6
        v_lshl_add_u32 v12, v9, 1, s60
        v_add_u32 v13, v12, v8
        v_add_u32 v9, v5, v6
        v_sub_u32 v9, v9, v7
        v_lshl_add_u32 v14, v9, 1, s60
        v_sub_u32 v9, v5, v6
        v_add_u32 v9, v9, v7
        v_lshl_add_u32 v15, v9, 1, s60
        v_add_u32 v15, {K1O-2}, v15
        v_cmp_eq_u32 vcc, 32, v0
        v_add_u32 v9, 4, v15
        v_cndmask_b32 v16, v15, v9, vcc
        v_add_u32 v17, {K1O}, v12
        v_add_u32 v18, {K1O}, v13
        """)
        for x in self.kpend: a(x)
        for i in range(4):
            a(f"v_cvt_pk_bf16_f32 v{20+i}, v{T1+i}, v{T1+i}")
        for i in range(4):
            a(f"ds_write2_b32 v12, v{20+i}, v{20+i} offset0:{64*i} offset1:{64*i+1}")
            a(f"ds_write2_b32 v13, v{20+i}, v{20+i} offset0:{64*i} offset1:{64*i+1}")
            a(f"ds_write2_b32 v17, v{20+i}, v{20+i} offset0:{64*i} offset1:{64*i+1}")
            a(f"ds_write2_b32 v18, v{20+i}, v{20+i} offset0:{64*i} offset1:{64*i+1}")
        for i in range(4):
            a(f"ds_write_b16 v14, v{20+i} offset:{256*i}")
            a(f"ds_write_b16 v{16 if i == 0 else 15}, v{20+i} offset:{256*i}")
        a(f"""
        v_lshlrev_b32 v5, 7, v3
        v_add3_u32 v5, v5, v4, v4
        v_lshlrev_b32 v6, 7, v3
        v_add_u32 v5, v5, v6
        v_add_u32 v5, s60, v5
        v_add_u32 v5, 512, v5
        v_cvt_pk_bf16_f32 v24, v{T2}, v{T2}
        v_cvt_pk_bf16_f32 v25, v{T2}, v{T2+1}
        v_cvt_pk_bf16_f32 v26, v{T2+2}, v{T2+2}
        v_cvt_pk_bf16_f32 v27, v{T2+2}, v{T2+3}
        v_cvt_pk_bf16_f32 v28, v{T2+1}, v{T2+2}
        v_add_u32 v6, {K1O-4}, v5
        v_add_u32 v7, -2, v5
        s_mov_b32 exec_hi, 0
        ds_write2_b32 v5, v24, v28 offset0:0 offset1:1
        ds_write_b32 v5, v26 offset:8
        ds_write_b16_d16_hi v5, v27 offset:12
        ds_write_b16 v7, v24
        ds_write2_b32 v6, v24, v25 offset0:0 offset1:1
        ds_write2_b32 v6, v26, v27 offset0:2 offset1:3
        s_mov_b64 exec, -1
        s_add_u32 s61, s60, {2*2044}
        v_mov_b32 v6, s61
        v_add_u32 v7, {K1O-2}, v6
        v_add_u32 v8, {K1O}, v6
        s_mov_b32 exec_lo, 0
        s_mov_b32 exec_hi, 1
        ds_write2_b32 v6, v24, v24 offset0:0 offset1:1
        ds_write2_b32 v8, v24, v24 offset0:0 offset1:1
        ds_write_b16 v7, v24
        s_mov_b64 exec, -1
        """)
        a(f"""
        v_and_b32 v5, 1, v3
        v_lshlrev_b32 v5, 3, v5
        v_lshrrev_b32 v6, 1, v3
        v_lshl_add_u32 v5, v6, 8, v5
        v_add3_u32 v5, v5, v4, v4
        v_add_u32 v5, s60, v5
        s_mov_b64 exec, 1
        v_add_f32 v{T0}, v{T0}, v57
        s_mov_b64 exec, -1
        v_cvt_pk_bf16_f32 v24, v{T0}, v{T0+1}
        v_cvt_pk_bf16_f32 v25, v{T0+2}, v{T0+3}
        v_cvt_pk_bf16_f32 v26, v{T0+1}, v{T0+2}
        v_add_u32 v6, {K1O-2}, v5
        v_mov_b32 v28, 0
        v_mov_b32 v29, 0
        v_lshlrev_b32 v7, 3, v0
        v_add_u32 v7, s72, v7
        s_mov_b64 exec, 15
        ds_write_b64 v7, v[28:29]
        ds_write_b64 v7, v[28:29] offset:{K1O}
        s_lshr_b64 exec, -1, 4
        ds_write_b64 v7, v[28:29] offset:{UO}
        s_mov_b64 exec, -1
        ds_write_b64 v5, v[24:25]
        ds_write_b16 v6, v24
        ds_write_b32 v5, v26 offset:{K1O}
        ds_write_b16_d16_hi v6, v25 offset:6
        """)

    def u_gather(self):
        a = self.a
        sc = "sc1" if self.fused else ""
        a(f"""
        v_lshrrev_b32 v2, 2, v0
        v_and_b32 v3, 3, v0
        v_mul_u32_u24 v4, 10240, v2
        v_lshl_add_u32 v4, v3, 4, v4
        s_lshl_b32 s60, s{S_CH0}, 4
        s_add_u32 s60, s60, {XT}
        v_mul_u32_u24 v5, {RSZ}, v3
        v_lshl_add_u32 v5, v2, 4, v5
        v_add_u32 v5, {AUX+UO+UPAD}, v5
        v_cmp_gt_u32 vcc, s{S_NCH}, v3
        s_mov_b64 s[62:63], exec
        s_and_b64 exec, exec, vcc
        """)
        for i in range(16):
            a(f"buffer_load_dwordx4 v[{40+4*i}:{43+4*i}], v4, s[{R_WS}:{R_WS+3}], s60 offen {sc}")
            if i < 15: a(f"s_add_u32 s60, s60, {16*10240}")
        for i in range(16):
            a(f"s_waitcnt vmcnt({14-i})" if i < 15 else "s_nop 7")
            a(f"ds_write_b128 v5, v[{40+4*i}:{43+4*i}] offset:{256*i}")
        a("s_mov_b64 exec, s[62:63]\ns_waitcnt lgkmcnt(0)")

    def conv(self):
        a = self.a
        sc = "sc1" if self.fused else ""
        ACC = 60; OP = [92, 156]
        AB = 12
        a(f"""
        v_and_b32 v2, 15, v0
        v_lshrrev_b32 v3, 4, v0
        v_lshlrev_b32 v4, 3, v3
        v_sub_u32 v4, v2, v4
        v_add_u32 v4, {233+16-224}, v4
        v_and_b32 v5, 1, v2
        v_and_b32 v4, -2, v4
        v_lshlrev_b32 v4, 1, v4
        v_cmp_eq_u32 vcc, 0, v5
        v_mov_b32 v6, {K1O}
        v_cndmask_b32 v5, 0, v6, vcc
        v_add3_u32 v{AB}, v4, v5, s72
        v_add_u32 v{AB+1}, 1024, v{AB}
        v_add_u32 v{AB+2}, 2048, v{AB}
        v_add_u32 v{AB+3}, 3072, v{AB}
        v_lshlrev_b32 v4, 5, v2
        v_lshl_add_u32 v4, v3, 4, v4
        s_add_u32 s60, s72, {UO}
        v_add_u32 v16, s60, v4
        """)
        for i in range(32): a(f"v_mov_b32 v{ACC+i}, 0")
        def reads(tau):
            s = OP[tau % 2]
            r = []
            for d in range(8):
                r.append(f"ds_read_b128 v[{s+32+4*d}:{s+35+4*d}], v16 offset:{512*d+64*tau}")
                o = 512 * d - 64 * tau + 448
                b = AB + o // 1024; q = (o % 1024) // 4
                r.append(f"ds_read2_b32 v[{s+4*d}:{s+4*d+1}], v{b} offset0:{q} offset1:{q+1}")
                r.append(f"ds_read2_b32 v[{s+4*d+2}:{s+4*d+3}], v{b} offset0:{q+2} offset1:{q+3}")
            return r
        r0 = reads(0)
        for k, ins in enumerate(r0):
            a(ins)
            if k == 12: a("s_waitcnt lgkmcnt(3)")
        for tau in range(8):
            s = OP[tau % 2]
            nxt = reads(tau + 1) if tau < 7 else []
            pairs = sorted([(d, n) for d in range(8) for n in range(8 - d)], key=lambda p: (max(p), p))
            a("s_waitcnt lgkmcnt(0)")
            for k, (d, n) in enumerate(pairs):
                acc = ACC + 4 * (d + n)
                a(f"v_mfma_f32_16x16x32_bf16 v[{acc}:{acc+3}], v[{s+4*d}:{s+4*d+3}], v[{s+32+4*n}:{s+35+4*n}], v[{acc}:{acc+3}]")
                if nxt and k < 30 and k % 5 != 4:
                    a(nxt.pop(0))
            assert not nxt
        a(f"""
        v_lshlrev_b32 v5, 5, v2
        v_lshl_add_u32 v5, v3, 3, v5
        s_lshl_b32 s61, s71, 12
        s_add_u32 s61, s61, {ST}
        """)
        for n in range(8):
            acc = ACC + 4 * n; o = 128 + 2 * n
            a(f"""
            v_cvt_pk_bf16_f32 v{o}, v{acc}, v{acc+1}
            v_cvt_pk_bf16_f32 v{o+1}, v{acc+2}, v{acc+3}
            buffer_store_dwordx2 v[{o}:{o+1}], v5, s[{R_WS}:{R_WS+3}], s61 offen offset:{512*n} {sc}
            """)

    G2_ACC = 16; G2_RB = 96; G2_BT = 156; G2_A = 176
    def g2_addr(self):
        self.a(f"""
        v_lshlrev_b32 v9, 4, v0
        v_add_u32 v8, 4096, v9
        s_mul_i32 s74, s{S_CB2}, 245760
        s_mul_i32 s60, s{S_WAVE}, {12*5120}
        s_add_u32 s74, s74, s60
        s_add_u32 s74, s74, {W2F}
        s_mul_i32 s75, s{S_WAVE}, 30720
        """)
    @staticmethod
    def kloc(j):
        return j

    @staticmethod
    def lslot(j):
        q = j if j < 6 else j - 9
        return q * 5120

    def g2_dma_items(self, j):
        W = f"s[{R_WS}:{R_WS+3}]"
        l0 = self.lslot(j)
        r = []
        for nt in range(5):
            pre = [f"s_add_u32 s81, s74, {5120*self.kloc(j)}"] if nt == 0 else []
            if nt < 4: r.append((pre + [f"s_add_u32 m0, s75, {l0}", f"buffer_load_dwordx4 v9, {W}, s81 offen offset:{1024*nt} sc1 lds"], f"D{j}"))
            else: r.append(([f"s_add_u32 m0, s75, {l0+4096}", f"buffer_load_dwordx4 v8, {W}, s81 offen sc1 lds"], f"D{j}"))
        return r

    def g2_bload_items(self, j):
        W = f"s[{R_WS}:{R_WS+3}]"
        r = []
        for nt in range(5):
            d = self.G2_RB + 20 * (j % 3) + 4 * nt
            pre = [f"s_add_u32 s81, s74, {5120*self.kloc(j)}"] if nt == 0 else []
            if nt < 4: r.append((pre + [f"buffer_load_dwordx4 v[{d}:{d+3}], v9, {W}, s81 offen offset:{1024*nt} sc1"], f"B{j}"))
            else: r.append(([f"buffer_load_dwordx4 v[{d}:{d+3}], v8, {W}, s81 offen sc1"], f"B{j}"))
        return r

    def g2_aload_items(self, j):
        W = f"s[{R_WS}:{R_WS+3}]"
        k = self.kloc(j)
        vo = (9, 8, 13)[k // 4]
        r = []
        for i in range(4):
            d = self.G2_A + 16 * (j % 5) + 4 * i
            r.append(([f"buffer_load_dwordx4 v[{d}:{d+3}], v{vo}, {W}, s{76+i} offen offset:{1024*(k%4)} sc1"], f"A{j}"))
        return r

    def g2_setup_s(self):
        a = self.a
        for i in range(4):
            a(f"""
            s_add_u32 s60, s{S_WAVE}, {i}
            s_and_b32 s60, s60, 3
            s_lshl_b32 s61, s{S_RB2}, 2
            s_add_u32 s60, s60, s61
            s_mul_i32 s60, s60, 49152
            s_mul_i32 s61, s{S_WAVE}, {12*1024}
            s_add_u32 s60, s60, s61
            s_add_u32 s{76+i}, s60, {HF}
            """)
    def g2_setup_v(self):
        a = self.a
        self.seen = {t for t in self.seen if not t.startswith("A")}
        a(f"v_add_u32 v10, s75, v9\nv_add_u32 v13, 8192, v9")

    def fh_wait(self, tp):
        self.a(f"s_lshl_b32 s66, s{S_WAVE}, 4\ns_add_u32 s66, s66, {M_FH + 64*tp}")
        self.lds_wait_all("s66", 1, f"fhw{tp}", tmp=2)

    def g2_loop(self, hook=None, hook_at=6, fill0=None):
        a = self.a
        seq = [(j, nt) for j in range(9) for nt in range(5)] + [(j, nt) for nt in range(5) for j in range(9, 12)]
        lds = [x for x in seq if not (6 <= x[0] < 9)]
        pos = {x: i for i, x in enumerate(lds)}
        issued = [0]; lq = []
        def bt_read():
            i = issued[0]
            if i >= len(lds): return
            j, nt = lds[i]
            if nt == 0 or j >= 9: self.vwait(f"D{j}")
            d = self.G2_BT + 4 * (i % 5)
            a(f"ds_read_b128 v[{d}:{d+3}], v10 offset:{self.lslot(j) + 1024 * nt}")
            lq.append(i); issued[0] += 1
        fill = list(fill0 or [])
        for _ in range(4): bt_read()
        wr = []; done = set()
        for (j, nt) in seq:
            if j not in done:
                done.add(j)
                if hook and j == hook_at: hook(); lq.append("x")
                self.stamp(16 + j, q=True)
                self.vwait(f"A{j}")
                if 6 <= j < 9: self.vwait(f"B{j}")
            if 6 <= j < 9:
                B = self.G2_RB + 20 * (j % 3) + 4 * nt
            else:
                i = pos[(j, nt)]
                B = self.G2_BT + 4 * (i % 5)
                k = lq.index(i)
                a(f"s_waitcnt lgkmcnt({len(lq) - 1 - k})"); del lq[:k + 1]
            for i in range(4):
                acc = self.G2_ACC + 16 * nt + 4 * i
                A = self.G2_A + 16 * (j % 5) + 4 * i
                a(f"v_mfma_f32_16x16x32_bf16 v[{acc}:{acc+3}], v[{B}:{B+3}], v[{A}:{A+3}], {'0' if j == 0 else f'v[{acc}:{acc+3}]'}")
                if fill and i in (0, 2): self.emit(fill.pop(0))
                if i == 1:
                    if not (6 <= j < 9):
                        if not (j == 5 and nt >= 1): bt_read()
                    elif j == 8 and nt >= 1: bt_read()
                if i == 3 and wr:
                    a(wr.pop(0)); lq.append("w")
            if j == 11:
                wr += [f"ds_write_b128 v10, v[{self.G2_ACC+16*nt+4*i}:{self.G2_ACC+16*nt+4*i+3}] offset:{5120*(i+2)+1024*nt}" for i in range(1, 4)]
            if nt == 4 and j < 9:
                if j + 5 < 12: fill = self.g2_aload_items(j + 5) + fill
                if j < 3: fill += self.g2_dma_items(j + 9)
        assert not fill
        for x in wr: a(x)

    FX = 96; FB = 106
    def svc_x_loads(self):
        a = self.a
        a(f"""
        s_mul_i32 s60, s{S_RB2}, {64*1280}
        s_mul_i32 s61, s{S_CB2}, 160
        s_add_u32 s60, s60, s61
        """)
        for i in range(10):
            a(f"""
            v_add_u32 v2, {64*i}, v0
            v_mul_u32_u24 v3, 52429, v2
            v_lshrrev_b32 v3, 19, v3
            v_mul_u32_u24 v4, 10, v3
            v_sub_u32 v4, v2, v4
            v_lshlrev_b32 v4, 4, v4
            v_mad_u32_u24 v{184+i}, v3, s97, v4
            v_mul_u32_u24 v3, 1280, v3
            v_add_u32 v3, v3, v4
            buffer_load_dwordx4 v[{140+4*i}:{143+4*i}], v3, s[{R_X}:{R_X+3}], s60 offen
            """.replace("s97", "s67") if False else f"""
            v_add_u32 v2, {64*i}, v0
            v_mul_u32_u24 v3, 52429, v2
            v_lshrrev_b32 v3, 19, v3
            v_mul_u32_u24 v4, 10, v3
            v_sub_u32 v4, v2, v4
            v_lshlrev_b32 v4, 4, v4
            v_mul_u32_u24 v5, {XRS}, v3
            v_add_u32 v{184+i}, v5, v4
            v_mul_u32_u24 v3, 1280, v3
            v_add_u32 v3, v3, v4
            buffer_load_dwordx4 v[{140+4*i}:{143+4*i}], v3, s[{R_X}:{R_X+3}], s60 offen
            """)
        a(f"""
        v_min_u32 v2, 39, v0
        v_lshlrev_b32 v2, 2, v2
        v_add_u32 v2, s61, v2
        global_load_dword v180, v2, s[{P_B2}:{P_B2+1}]
        """)

    def svc_x_write(self):
        a = self.a
        for i in range(10):
            a(f"v_add_u32 v{184+i}, {XI}, v{184+i}")
        for i in range(10):
            a(f"ds_write_b128 v{184+i}, v[{140+4*i}:{143+4*i}]")
        a(f"""
        v_lshlrev_b32 v182, 16, v180
        v_and_b32 v183, 0xffff0000, v180
        v_min_u32 v2, 39, v0
        v_lshlrev_b32 v2, 3, v2
        v_add_u32 v2, {M_B2}, v2
        ds_write_b64 v2, v[182:183]
        """)

    def s_tile_dma(self):
        a = self.a
        sc = "sc1" if self.fused else ""
        a(f"""
        v_lshrrev_b32 v2, 3, v0
        v_and_b32 v3, 7, v0
        v_lshlrev_b32 v2, 12, v2
        v_lshl_add_u32 v2, v3, 4, v2
        s_mul_i32 s60, s{S_CB2}, {80*4096}
        s_lshl_b32 s61, s{S_RB2}, 7
        s_add_u32 s60, s60, s61
        s_add_u32 s60, s60, {ST}
        """)
        for t in range(10):
            a(f"s_mov_b32 m0, {AUX+1024*t}")
            a(f"buffer_load_dwordx4 v2, s[{R_WS}:{R_WS+3}], s60 offen {sc} lds")
            if t < 9: a(f"s_add_u32 s60, s60, {8*4096}")
        self.svc_x_write()
        a("s_waitcnt vmcnt(0) lgkmcnt(0)")

    def g2_final(self):
        a = self.a
        ACC = self.G2_ACC
        self.srd(R_OUT, P_OUT, 2621440)
        for i in range(1, 4):
            a(f"""
            s_sub_u32 s60, s{S_WAVE}, {i}
            s_and_b32 s60, s60, 3
            s_mul_i32 s60, s60, 30720
            s_add_u32 s60, s60, {5120*(i+2)}
            v_add_u32 v{4+i}, s60, v9
            """)
        a(f"""
        v_and_b32 v2, 15, v0
        v_lshrrev_b32 v3, 4, v0
        v_lshrrev_b32 v12, 2, v2
        v_lshl_add_u32 v12, v3, 2, v12
        v_lshlrev_b32 v12, 7, v12
        v_and_b32 v15, 3, v0
        v_lshl_add_u32 v12, v15, 3, v12
        s_lshl_b32 s60, s{S_WAVE}, 5
        s_add_u32 s60, s60, {AUX}
        v_add_u32 v12, s60, v12
        s_mul_i32 s60, s{S_WAVE}, {16*XRS}
        s_add_u32 s60, s60, {XI}
        v_mul_u32_u24 v11, {XRS}, v2
        v_lshl_add_u32 v11, v3, 3, v11
        v_add_u32 v11, s60, v11
        v_lshlrev_b32 v13, 4, v3
        v_add_u32 v13, {M_B2}, v13
        v_mov_b32 v250, 1.0
        v_mov_b32 v251, 1.0
        v_mov_b32 v252, 0xbfb8aa3b
        s_lshl_b32 s80, s{S_RB2}, 2
        s_add_u32 s80, s80, s{S_WAVE}
        s_mul_i32 s80, s80, {16*1280}
        s_mul_i32 s61, s{S_CB2}, 160
        s_add_u32 s80, s80, s61
        """)
        for i in range(3):
            a(f"""
            v_add_u32 v2, {64*i}, v0
            v_mul_u32_u24 v3, 52429, v2
            v_lshrrev_b32 v3, 19, v3
            v_mul_u32_u24 v4, 10, v3
            v_sub_u32 v4, v2, v4
            v_lshlrev_b32 v4, 4, v4
            v_mul_u32_u24 v2, {XRS}, v3
            v_add3_u32 v{240+i}, v2, v4, s60
            v_mul_u32_u24 v3, 1280, v3
            v_add_u32 v{243+i}, v3, v4
            """)
        a("s_waitcnt lgkmcnt(0)\ns_barrier")
        P = 96
        def reads(nt):
            p = P + 20 * nt
            for i in range(1, 4):
                a(f"ds_read_b128 v[{p+4*(i-1)}:{p+4*(i-1)+3}], v{4+i} offset:{1024*nt}")
            a(f"ds_read_b128 v[{p+12}:{p+15}], v13 offset:{64*nt}")
            a(f"ds_read_b64_tr_b16 v[{p+16}:{p+17}], v12 offset:{2048*nt}")
            a(f"ds_read_b64 v[{p+18}:{p+19}], v11 offset:{32*nt}")
        reads(0); reads(1)
        Pp = lambda r: f"v[{r}:{r+1}]"
        for nt in range(5):
            acc = ACC + 16 * nt; p = P + 20 * nt; t = 200 + 12 * (nt % 2)
            a(f"s_waitcnt lgkmcnt({6 if nt < 4 else 1})" if nt != 0 else "s_waitcnt lgkmcnt(6)")
            a(f"""
            v_pk_add_f32 {Pp(acc)}, {Pp(acc)}, {Pp(p)}
            v_pk_add_f32 {Pp(acc+2)}, {Pp(acc+2)}, {Pp(p+2)}
            v_pk_add_f32 {Pp(p+4)}, {Pp(p+4)}, {Pp(p+8)}
            v_pk_add_f32 {Pp(p+6)}, {Pp(p+6)}, {Pp(p+10)}
            v_pk_add_f32 {Pp(acc)}, {Pp(acc)}, {Pp(p+12)}
            v_pk_add_f32 {Pp(acc+2)}, {Pp(acc+2)}, {Pp(p+14)}
            v_pk_add_f32 {Pp(acc)}, {Pp(acc)}, {Pp(p+4)}
            v_pk_add_f32 {Pp(acc+2)}, {Pp(acc+2)}, {Pp(p+6)}
            v_pk_mul_f32 {Pp(t)}, {Pp(acc)}, v[252:253] op_sel_hi:[1,0]
            v_pk_mul_f32 {Pp(t+2)}, {Pp(acc+2)}, v[252:253] op_sel_hi:[1,0]
            """)
            for i in range(4): a(f"v_exp_f32 v{t+i}, v{t+i}")
            if nt + 2 < 5: reads(nt + 2)
            a(f"""
            v_lshlrev_b32 v{t+4}, 16, v{p+16}
            v_and_b32 v{t+5}, 0xffff0000, v{p+16}
            v_lshlrev_b32 v{t+6}, 16, v{p+17}
            v_and_b32 v{t+7}, 0xffff0000, v{p+17}
            v_pk_add_f32 {Pp(t)}, {Pp(t)}, v[250:251]
            v_pk_add_f32 {Pp(t+2)}, {Pp(t+2)}, v[250:251]
            """)
            for i in range(4): a(f"v_rcp_f32 v{t+i}, v{t+i}")
            a(f"""
            v_pk_mul_f32 {Pp(t+4)}, {Pp(t+4)}, {Pp(acc)}
            v_pk_mul_f32 {Pp(t+6)}, {Pp(t+6)}, {Pp(acc+2)}
            v_lshlrev_b32 v{t+8}, 16, v{p+18}
            v_and_b32 v{t+9}, 0xffff0000, v{p+18}
            v_lshlrev_b32 v{t+10}, 16, v{p+19}
            v_and_b32 v{t+11}, 0xffff0000, v{p+19}
            v_pk_fma_f32 {Pp(t+8)}, {Pp(t+4)}, {Pp(t)}, {Pp(t+8)}
            v_pk_fma_f32 {Pp(t+10)}, {Pp(t+6)}, {Pp(t+2)}, {Pp(t+10)}
            v_cvt_pk_bf16_f32 v{p+18}, v{t+8}, v{t+9}
            v_cvt_pk_bf16_f32 v{p+19}, v{t+10}, v{t+11}
            ds_write_b64 v11, v[{p+18}:{p+19}] offset:{32*nt}
            """)
        osc = os.environ.get('OSC', '')
        a(f"""
        ds_read_b128 v[224:227], v240
        ds_read_b128 v[228:231], v241
        s_mov_b32 exec_hi, 0
        ds_read_b128 v[232:235], v242
        s_mov_b64 exec, -1
        s_waitcnt lgkmcnt(1)
        buffer_store_dwordx4 v[224:227], v243, s[{R_OUT}:{R_OUT+3}], s80 offen {osc}
        s_waitcnt lgkmcnt(0)
        buffer_store_dwordx4 v[228:231], v244, s[{R_OUT}:{R_OUT+3}], s80 offen {osc}
        s_mov_b32 exec_hi, 0
        buffer_store_dwordx4 v[232:235], v245, s[{R_OUT}:{R_OUT+3}], s80 offen {osc}
        s_mov_b64 exec, -1
        """)

    def misc_init(self):
        self.a(f"""
        v_lshlrev_b32 v2, 2, v0
        v_add_u32 v2, {MISC}, v2
        v_mov_b32 v3, 0
        ds_write_b32 v2, v3
        """)


HEADER = open("cdna_kernels/" + NAME + ".s.ref").read().split("; Override launch")[0]

def kernel_text(label, body):
    return f""".text
.globl {label}
.p2align 8
.type {label},@function
{label}:
{body}
"""
def desc(label, vgpr=256):
    return f""".section .rodata,"a"
.p2align 6
.amdhsa_kernel {label}
  .amdhsa_next_free_vgpr {vgpr}
  .amdhsa_next_free_sgpr 102
  .amdhsa_accum_offset {vgpr}
  .amdhsa_group_segment_fixed_size 0
  .amdhsa_kernarg_size 120
  .amdhsa_user_sgpr_count 2
  .amdhsa_user_sgpr_kernarg_segment_ptr 1
  .amdhsa_system_sgpr_workgroup_id_x 1
.end_amdhsa_kernel
"""
```

```python
import sys, os
from parts import *
E = lambda k, d=0: int(os.environ.get(k, d))

class Fused(Gen):
    def cnt_add(self, addr, rtn=False):
        self.a(f"""
        v_mov_b32 v2, {addr}
        v_mov_b32 v3, 1
        s_mov_b64 exec, 1
        {'ds_add_rtn_u32 v4, v2, v3' if rtn else 'ds_add_u32 v2, v3'}
        s_mov_b64 exec, -1
        """)

    def cnt_wait(self, addr, n, name, sleep=0):
        lab = self.L(name)
        self.a(f"""
        v_mov_b32 v2, {addr}
        s_mov_b32 s61, 0
        {lab}:
        ds_read_b32 v3, v2
        s_add_u32 s61, s61, 1
        s_waitcnt lgkmcnt(0)
        v_readfirstlane_b32 s60, v3
        s_cmp_gt_u32 s61, 0x100000
        s_cbranch_scc1 {lab}_d
        s_cmp_ge_u32 s60, {n}
        s_cbranch_scc1 {lab}_d
        {'s_sleep %d' % sleep if sleep else ''}
        s_branch {lab}
        {lab}_d:
        """)

    def build_fused(self):
        a = self.a
        L = self.L
        st = 2 if self.stamps else 0
        N0 = E('N0', 8)
        slp = ('s_sleep %d' % PSLEEP) if PSLEEP else ''
        GE = E('GE', 1); NA = E('NA', 0); GL = E('GL', 0); GS = 40 - 4 * GE - 3 * NA - 3 * GL
        def aux_dma(p):
            if NA == 0: return
            self.w1_addr(12)
            a(f"s_add_u32 s68, s70, {GS}\n{L('adl' + p)}:")
            self.w1_group(12)
            a(f"s_add_u32 s68, s68, 3\ns_cmp_lt_u32 s68, {GS + 3 * NA}\ns_cbranch_scc1 {L('adl' + p)}")
        a(f"{L('start')}:")
        self.prologue()
        self.stamp(0)
        if 0 in self.sel:
            a(f"v_mov_b32 v1, s94\ns_mov_b64 exec, 1\nbuffer_store_dword v1, off, s[{R_WS}:{R_WS+3}], s100 offset:124\ns_mov_b64 exec, -1")
        a(f"s_cmp_ge_u32 s{S_WAVE}, 4\ns_cbranch_scc1 {L('aux0')}")
        a(f"s_setprio {E('GP', 2)}")
        self.ln_loads()
        a(f"s_branch {L('gemm')}\n{L('aux0')}:")
        a.clear_hist()
        a(f"s_sub_u32 s60, s{S_WAVE}, 4\ns_cmp_ge_u32 s60, s{S_NCH}\ns_cbranch_scc1 {L('aux1')}")
        a("s_setprio 3")
        self.kg_loads()
        a(f"s_branch {L('kg')}\n{L('aux1')}:")
        a(f"s_cmp_lg_u32 s{S_WAVE}, 7\ns_cbranch_scc1 {L('noch')}")
        a(f"s_setprio {E('SP', 1)}")
        self.w1_addr(12)
        a(f"""
        s_cmp_lt_u32 s{S_NCH}, 3
        s_cselect_b32 s66, {GS - E('H6', 0)}, {GS}
        s_mul_i32 s68, s{S_RB}, s66
        s_lshr_b32 s68, s68, 4
        s_mov_b32 s67, s66
        s_sub_u32 s65, s66, 1
        {L('sdl')}:
        """)
        self.w1_group(12)
        a(f"""
        s_add_u32 s68, s68, 1
        s_cmp_eq_u32 s68, s66
        s_cselect_b32 s68, 0, s68
        s_cmp_lg_u32 s67, s65
        s_cbranch_scc1 {L('sdw')}
        """)
        self.srd(R_OUT, P_OUT, 2621440)
        a(f"""
        v_lshlrev_b32 v3, 20, v0
        s_mov_b32 exec_hi, 0
        buffer_load_dword v131, v3, s[{R_WS}:{R_WS+3}], 0 offen
        buffer_load_dword v132, v3, s[{R_OUT}:{R_OUT+3}], 0 offen
        s_mov_b64 exec, -1
        {L('sdw')}:
        s_sub_u32 s67, s67, 1
        s_cmp_lg_u32 s67, 0
        s_waitcnt vmcnt({E('DEPTH', 45)})
        s_cbranch_scc1 {L('sdl')}
        s_branch {L('svc')}
        {L('gemm')}:
        """)
        a.clear_hist()
        self.w1_addr(92)
        self.g1_b1_loads()
        a(f"s_add_u32 s68, s{S_WAVE}, {GS + 3 * NA}")
        for i in range(GE):
            self.w1_group(92)
            if i + 1 < GE: a("s_add_u32 s68, s68, 4")
        self.ln_pub_addr()
        a(f"s_waitcnt vmcnt({6 + 3 * GE})")
        self.stamp(1)
        self.ln_math()
        a("s_waitcnt lgkmcnt(0)")
        self.lds_set(M_LNW, S_WAVE, tmp=(2, 3))
        self.lds_wait_all(M_LNW, 4, "lnw4", tmp=2, sleep=0)
        a(f"v_mov_b32 v97, 0\nv_mov_b32 v96, 0\ns_cmp_lg_u32 s{S_WAVE}, 0\ns_cbranch_scc1 {L('g_n0')}")
        a(f"global_load_dword v96, v97, s[{P_DBG}:{P_DBG+1}] sc1\n{L('g_n0')}:")
        self.ln_publish()
        XS = E('XS', 1)
        if not XS: self.ln_publish_xt()
        self.stamp(13)
        if not XS: self.cnt_add(M_LNCNT + 8)
        if E('RG'): self.cnt_add(M_PD + 4)
        a(f"s_waitcnt vmcnt({(3 if XS else 6) + (1 if 13 in self.sel else 0)})")
        self.cnt_add(M_LNCNT + 12)
        self.g1_prep()
        self.g2_addr()
        a("s_waitcnt vmcnt(0)")
        self.stamp(2)
        a(f"s_cmp_eq_u32 s{S_WAVE}, 0\ns_cbranch_scc1 {L('g_w0')}")
        self.cnt_add(M_LNCNT)
        if GL:
            a(f"s_add_u32 s68, s{S_WAVE}, {40 - 3 * GL - 1}")
            for i in range(GL):
                self.w1_group(92)
                if i + 1 < GL: a("s_add_u32 s68, s68, 3")
            a("s_waitcnt vmcnt(0)")
            self.cnt_add(M_LNCNT + 12)
        a(f"s_branch {L('g_j')}\n{L('g_w0')}:")
        a(f"""
        s_mov_b32 s64, 0
        {L('np')}:
        v_readfirstlane_b32 s{S_NONCE}, v96
        s_cmp_gt_u32 s64, 0x8000
        s_cbranch_scc1 {L('npd')}
        s_cmp_lg_u32 s{S_NONCE}, 0
        s_cbranch_scc1 {L('npd')}
        global_load_dword v96, v97, s[{P_DBG}:{P_DBG+1}] sc1
        s_add_u32 s64, s64, 1
        s_waitcnt vmcnt(0)
        s_nop 1
        s_branch {L('np')}
        {L('npd')}:
        v_mov_b32 v2, s{S_NONCE}
        v_mov_b32 v3, {M_NONCE}
        ds_write_b32 v3, v2
        v_mov_b32 v3, {M_LNCNT}
        s_mov_b32 s64, 0
        {L('lc')}:
        ds_read_b32 v2, v3
        s_add_u32 s64, s64, 1
        s_waitcnt lgkmcnt(0)
        v_readfirstlane_b32 s60, v2
        s_cmp_gt_u32 s64, 0x100000
        s_cbranch_scc1 {L('lcd')}
        s_cmp_lt_u32 s60, 3
        s_cbranch_scc1 {L('lc')}
        {L('lcd')}:
        s_mul_i32 s66, s{S_LID}, {FSTR}
        s_add_u32 s66, s66, {FLN}
        """)
        self.store_flag(66)
        self.stamp(10)
        a(f"{L('g_j')}:")
        if XS:
            self.ln_publish_xt()
            self.cnt_add(M_LNCNT + 8)
        self.get_nonce("gn", tmp=2)
        a(f"s_lshl_b32 s66, s{S_RB}, 2\ns_add_u32 s66, s66, s{S_WAVE}\ns_mul_i32 s66, s66, {4*FSTR}\ns_add_u32 s66, s66, {FLN}")
        def flt(p, wait):
            a(f"s_cmp_lg_u32 s71, 0\ns_cbranch_scc1 {L('flt' + p)}\ns_mov_b32 s71, 1")
            wait()
            self.cnt_add(M_HC + 4, rtn=True)
            a(f"""
            s_mul_i32 s65, s{S_LID}, {FSTR}
            s_add_u32 s65, s65, {FLT}
            s_waitcnt lgkmcnt(0)
            s_nop 1
            v_readfirstlane_b32 s60, v4
            s_cmp_lg_u32 s60, 3
            s_cbranch_scc1 {L('flt' + p)}
            v_mov_b32 v2, s{S_NONCE}
            s_mov_b64 exec, 1
            buffer_store_dword v2, off, s[{R_WS}:{R_WS+3}], s65 sc1
            s_mov_b64 exec, -1
            {L('flt' + p)}:
            """)
        a("s_mov_b32 s71, 0")
        self.spoll("pln", 66, FSTR, E('SS', 1), n=4, miss=(lambda: flt("a", lambda: a("s_waitcnt vmcnt(0)"))) if XS else None)
        self.stamp(3)
        self.vq = ["XT"]; self.seen.add("XT")
        for ks in range(2):
            for it in self.g1_aload(ks): self.emit(it)
        if XS: flt("b", lambda: a("s_waitcnt vmcnt(4)"))
        for ks in range(2, N0):
            for it in self.g1_aload(ks): self.emit(it)
        self.cnt_add(M_LN)
        if E('H6', 0):
            a(f"s_cmp_lt_u32 s{S_NCH}, 3\ns_cselect_b32 s65, 6, 5")
            self.cnt_wait(M_LNCNT + 12, "s65", "w1w")
        else: self.cnt_wait(M_LNCNT + 12, 5 + (3 if NA else 0) + (3 if GL else 0), "w1w")
        self.stamp(4, q=True)
        self.pubn = ''
        def publish(p):
            self.vwait("S")
            self.cnt_add(M_HC + 4 * p, rtn=True)
            a(f"""
            s_mul_i32 s66, s{S_LID}, {FHS}
            s_add_u32 s66, s66, {FH + 256 * FHS * p}
            s_waitcnt lgkmcnt(0)
            s_nop 1
            v_readfirstlane_b32 s60, v4
            s_cmp_lg_u32 s60, 3
            s_cbranch_scc1 {L('nofh%d%s' % (p, self.pubn))}
            """)
            self.store_flag(66)
            if p == 0: self.lds_set(M_HP, None, tmp=(2, 3))
            a(f"{L('nofh%d%s' % (p, self.pubn))}:")
            self.stamp(28 + p, q=True)
            self.vq.append("f")
            self.vq.pop()
        def cnt_wait(addr, n, name):
            lab = L(name)
            a(f"""
            v_mov_b32 v2, {addr}
            s_mov_b32 s61, 0
            {lab}:
            ds_read_b32 v3, v2
            s_add_u32 s61, s61, 1
            s_waitcnt lgkmcnt(0)
            v_readfirstlane_b32 s60, v3
            s_cmp_gt_u32 s61, 0x100000
            s_cbranch_scc1 {lab}_d
            s_cmp_lt_u32 s60, {n}
            s_cbranch_scc1 {lab}
            {lab}_d:
            """)
        def ev_rb():
            self.lds_wait_all(M_FW, 1, "fww", tmp=2)
            return sum((self.g2_bload_items(j) for j in range(6, 9)), [])
        ev = {10: lambda: self.stamp(14, q=True)}
        RB1 = E('RB1', 11)
        if RB1 < 20: ev[RB1] = ev_rb
        self.g2_setup_s()
        fa, fv = self.g1_loop(N0, ev, TL=E('TL', 5))
        self.cnt_add(M_PD)
        self.stamp(5, q=True)
        for it in fa + self.epi_ops(2) + fv: self.emit(it)
        self.stamp(15, q=True)
        self.g2_setup_v()
        ND = 0
        publish(0)
        rest = ev_rb() if RB1 >= 20 else []
        cnt_wait(M_PD, 4, "pdw")
        if E('PF'): a("s_setprio 0")
        for j in range(ND, 6):
            for it in self.g2_dma_items(j): self.emit(it)
        for it in rest: self.emit(it)
        self.stamp(6, q=True)
        a(f"s_lshr_b32 s66, s{S_RB2}, 1\ns_lshl_b32 s66, s66, 2\ns_add_u32 s66, s66, s{S_WAVE}\ns_mul_i32 s66, s66, {4*FHS}\ns_add_u32 s66, s66, {FH}")
        self.spoll("pfh", 66, FHS, E('SS', 1), n=4)
        NF2 = E('NF2', 2)
        for j in range(NF2):
            for it in self.g2_aload_items(j): self.emit(it)
        self.stamp(7, q=True)
        self.g2_loop(hook=lambda: self.lds_set(M_J6, None, tmp=(2, 3)), hook_at=E('J6', 6), fill0=sum((self.g2_aload_items(j) for j in range(NF2, 5)), []))
        self.stamp(8)
        if E('PF'): a("s_setprio 2")
        self.g2_final()
        if 9 in self.sel: a("s_waitcnt vmcnt(0)")
        self.stamp(9)
        if E('KX'):
            a(f"""
            s_waitcnt vmcnt(0)
            s_memrealtime s[62:63]
            s_waitcnt lgkmcnt(0)
            s_sub_u32 s60, s62, s{S_NONCE}
            s_min_u32 s60, s60, 10000
            s_mul_i32 s60, s60, {E('KX')}
            {L('kx')}:
            s_memrealtime s[62:63]
            s_waitcnt lgkmcnt(0)
            s_sub_u32 s61, s62, s{S_NONCE}
            s_cmp_lt_u32 s61, s60
            s_cbranch_scc1 {L('kx')}
            """)
        self.dg_end(0)
        self.role = 'c'
        a(f"s_endpgm\n{L('kg')}:")
        a.clear_hist()
        self.kg_setup()
        a("s_waitcnt vmcnt(4)\ns_setprio 0")
        self.stamp(1)
        if E('X1'):
            self.get_nonce("x1n", tmp=2)
            self.lds_set(M_CD, 70, tmp=(2, 3))
            a(f"s_mul_i32 s66, s71, {FSTR}\ns_add_u32 s66, s66, {FS}")
            self.store_flag(66)
            a("s_endpgm")
        def khook():
            a(f"s_cmp_lg_u32 s73, 2\ns_cbranch_scc1 {L('kh')}\ns_waitcnt vmcnt(0)")
            self.cnt_add(M_LNCNT + 12)
            a(f"{L('kh')}:")
        self.kgen()
        self.stamp(3)
        self.expand()
        self.stamp(2)
        self.get_nonce("cn", tmp=2)
        self.lds_wait_all(M_U, 1, "uw", tmp=2)
        self.stamp(4)
        if E('CW'):
            lab = L("cw")
            a(f"""
            v_mov_b32 v2, {M_PD + 4 * (E('CW') - 1)}
            s_mov_b32 s61, 0
            {lab}:
            ds_read_b32 v3, v2
            s_add_u32 s61, s61, 1
            s_waitcnt lgkmcnt(0)
            v_readfirstlane_b32 s60, v3
            s_cmp_gt_u32 s61, 0x100000
            s_cbranch_scc1 {lab}_d
            s_cmp_ge_u32 s60, 4
            s_cbranch_scc1 {lab}_d
            s_sleep 2
            s_branch {lab}
            {lab}_d:
            """)
        if E('PF'): a("s_setprio 1")
        self.conv()
        self.lds_set(M_CD, 70, tmp=(2, 3))
        self.stamp(5)
        a(f"s_mul_i32 s66, s71, {FSTR}\ns_add_u32 s66, s66, {FS}\ns_waitcnt vmcnt(0)")
        self.store_flag(66)
        self.stamp(6)
        a(f"s_endpgm\n{L('noch')}:")
        a.clear_hist()
        a(f"s_sub_u32 s70, s{S_WAVE}, 4")
        aux_dma("b")
        a(f"s_cmp_eq_u32 s{S_WAVE}, 6\ns_cbranch_scc1 {L('rt')}\ns_waitcnt vmcnt(0)")
        if NA: self.cnt_add(M_LNCNT + 12)
        a(f"s_cmp_lg_u32 s{S_WAVE}, 4\ns_cbranch_scc1 {L('end')}")
        self.cnt_wait(M_LNCNT + 8, 4, "agw", sleep=2)
        self.get_nonce("an", tmp=2)
        a(f"s_lshl_b32 s67, s{S_XCD}, 1\ns_add_u32 s67, s67, s{S_IDX}\ns_sub_u32 s67, s67, 30\ns_mul_i32 s66, s67, {16*FSTR}\ns_add_u32 s66, s66, {FLT if E('XS', 1) else FLN}")
        self.spoll("plt", 66, FSTR, 2)
        a(f"""
        s_mul_i32 s66, s67, {FSTR}
        s_add_u32 s66, s66, {FL2}
        v_mul_u32_u24 v2, {16*FSTR}, v0
        v_mov_b32 v3, s{S_NONCE}
        s_mov_b64 exec, 0xffff
        buffer_store_dword v3, v2, s[{R_WS}:{R_WS+3}], s66 offen sc1
        s_mov_b64 exec, -1
        """)
        self.stamp(8)
        a(f"s_endpgm\n{L('rt')}:")
        H6 = E('H6', 0)
        self.w2_loads()
        if H6:
            self.w1_addr(12)
            a(f"s_mov_b32 s68, {GS - H6}\n{L('h6l')}:")
            self.w1_group(12)
            a(f"s_add_u32 s68, s68, 1\ns_cmp_lt_u32 s68, {GS}\ns_cbranch_scc1 {L('h6l')}")
        a(f"s_waitcnt vmcnt({3 * H6})")
        self.cnt_wait(M_PD + 4 if E('RG') else M_LNCNT + 8, 4, "rtw", sleep=2)
        a(f"s_setprio {E('RP', 3)}")
        self.w2_retile(mid=(lambda: (a("s_waitcnt vmcnt(10)"), self.cnt_add(M_LNCNT + 12))) if H6 else None)
        a(f"""
        v_mov_b32 v3, 0
        s_mov_b32 s64, 0
        {L('wn')}:
        global_load_dword v2, v3, s[{P_DBG}:{P_DBG+1}] sc1
        s_add_u32 s64, s64, 1
        s_waitcnt vmcnt(0)
        s_nop 1
        v_readfirstlane_b32 s{S_NONCE}, v2
        s_cmp_gt_u32 s64, 0x8000
        s_cbranch_scc1 {L('wnd')}
        s_cmp_eq_u32 s{S_NONCE}, 0
        s_cbranch_scc1 {L('wn')}
        {L('wnd')}:
        """)
        a(f"""
        s_mul_i32 s66, s43, {FSTR}
        s_add_u32 s66, s66, {FWR}
        v_mul_u32_u24 v2, {96*FSTR}, v0
        v_mov_b32 v3, s{S_NONCE}
        s_mov_b64 exec, 0xff
        s_waitcnt vmcnt(0)
        buffer_store_dword v3, v2, s[{R_WS}:{R_WS+3}], s66 offen sc1
        s_mov_b64 exec, -1
        """)
        self.stamp(7)
        a(f"s_endpgm\n{L('svc')}:")
        a.clear_hist()
        self.role = 's'
        a("s_waitcnt vmcnt(0)")
        self.cnt_add(M_LNCNT + 12)
        a("s_setprio 3")
        self.stamp(2)
        self.get_nonce("sn", tmp=2)
        def fwp():
            a(f"s_lshr_b32 s66, s{S_CB2}, 2\ns_mul_i32 s66, s66, {FSTR}\ns_add_u32 s66, s66, {FW}")
            if E('L2P', 0):
                a(f"s_mov_b32 s66, {FW}")
                self.poll_flags("pfw", 66, 48, nloads=2, istride=48*FSTR)
            else:
                self.poll_flags("pfw", 66, 48, lstride=2*FSTR)
            self.lds_set(M_FW, None, tmp=(2, 3))
            if E('L2P', 0):
                a(f"s_mul_i32 s60, s{S_IDX}, {480*128}\ns_add_u32 s60, s60, {W2F}\nv_lshlrev_b32 v2, 7, v0")
                for i in range(8):
                    if i == 7: a("s_mov_b32 exec_hi, 0")
                    a(f"buffer_load_dword v{200+i}, v2, s[{R_WS}:{R_WS+3}], s60 offen sc1\ns_add_u32 s60, s60, 8192")
                a("s_mov_b64 exec, -1")
            self.stamp(5)
        a(f"s_mul_i32 s66, s{S_XCD}, {96*FSTR}\ns_lshr_b32 s60, s{S_CB2}, 2\ns_mul_i32 s60, s60, {FSTR}\ns_add_u32 s66, s66, s60\ns_add_u32 s66, s66, {FWR}")
        a("s_mov_b32 s67, s66")
        if E('XE'): self.svc_x_loads()
        self.cnt_wait(M_LN, 4, "slw", sleep=1)
        if E('W4D'): a(f"s_sleep {E('W4D')}")
        CP = E('CP')
        if not CP or E('FE'):
            self.poll_flags("pfw", 67, 48, lstride=2*FSTR)
            self.lds_set(M_FW, None, tmp=(2, 3))
            self.stamp(5)
        def cpoll(name, first):
            a(f"""
            v_mul_u32_u24 v2, {FSTR}, v0
            s_sub_u32 s60, s67, {32*FSTR}
            v_lshlrev_b32 v4, 1, v2
            v_add_u32 v4, s60, v4
            s_and_b32 s60, s2, 15
            s_mul_i32 s60, s60, {16*FSTR}
            s_add_u32 s60, s60, {FL2}
            v_add_u32 v2, s60, v2
            v_cmp_gt_u32 vcc, 16, v0
            v_cndmask_b32 v2, v4, v2, vcc
            v_mov_b32 v4, {M_FW}
            {'' if first else 's_lshl_b64 exec, -1, 16'}
            s_mov_b32 s64, 0
            {L(name)}:
            buffer_load_dword v3, v2, s[{R_WS}:{R_WS+3}], 0 offen sc1
            s_add_u32 s64, s64, 1
            s_waitcnt vmcnt(0)
            v_cmp_ne_u32 vcc, s{S_NONCE}, v3
            s_cmp_gt_u32 s64, 0x8000
            s_cselect_b64 s[60:61], 0, vcc
            s_lshr_b64 s[62:63], s[60:61], 16
            s_cmp_eq_u64 s[62:63], 0
            s_cselect_b32 s65, 1, 0
            v_mov_b32 v3, s65
            ds_write_b32 v4, v3
            {'s_and_b32 s60, s60, 0xffff' if first else 's_xor_b32 s60, s65, 1'}
            s_cmp_eq_u32 s60, 0
            s_cbranch_scc1 {L(name)}_d
            s_sleep {E('CSL', 3)}
            s_branch {L(name)}
            {L(name)}_d:
            s_mov_b64 exec, -1
            """)
        a("s_mov_b32 s65, 0")
        if E('W3D'): a(f"s_sleep {E('W3D')}")
        a(f"s_cmp_eq_u32 s{S_NCH}, 0\ns_cbranch_scc1 {L('nou')}")
        a(f"s_and_b32 s66, s2, 15\ns_mul_i32 s66, s66, {16*FSTR}\ns_add_u32 s66, s66, {FL2}")
        if CP and not E('FE'): cpoll("pla", True)
        elif E('L2V'): self.poll_flags("pla", 66, 16)
        else: self.spoll("pla", 66, FSTR, E('CSL', 3))
        self.stamp(3)
        self.u_gather()
        self.lds_set(M_U, None, tmp=(2, 3))
        a(f"{L('nou')}:")
        self.stamp(4)
        if CP and not E('FE'):
            a(f"s_cmp_lg_u32 s65, 0\ns_cbranch_scc1 {L('fwok')}")
            cpoll("plb", False)
            a(f"{L('fwok')}:")
        if not E('XE'): self.svc_x_loads()
        self.stamp(6)
        self.lds_wait_all(M_J6, 1, "j6w", tmp=2)
        a(f"s_mul_i32 s66, s{S_CB2}, {80*FSTR}\ns_add_u32 s66, s66, {FS}")
        self.poll_flags("pfs", 66, 40, nloads=2, istride=40*FSTR)
        a(f"s_cmp_eq_u32 s{S_NCH}, 0\ns_cbranch_scc1 {L('nocd')}")
        self.lds_wait_all(M_CD, 2, "cdw", tmp=2)
        a(f"{L('nocd')}:")
        self.stamp(7)
        self.s_tile_dma()
        self.stamp(8)
        a("s_barrier")
        self.dg_end(7)
        a(f"{L('end')}:\ns_endpgm")

if __name__ == "__main__":
    path = sys.argv[1]
    opts = sys.argv[2:]
    g = Fused("fused", "stamps" in opts)
    g.sel = set(range(32)) if "stamps" in opts else ({0, 9} | {int(x) for x in os.environ.get("SEL", "").split(",") if x} if "mins" in opts else set())
    g.build_fused()
    lab = NAME + "_kernel"
    txt = HEADER + f"; @launch grid=(256,1,1) block=(512,1,1) lds={LDS_TOTAL}\n" + '.amdgcn_target "amdgcn-amd-amdhsa--gfx950"\n' + kernel_text(lab, g.a.text()) + desc(lab)
    if E('X4'):
        import re
        txt = re.sub(r"(buffer_load_dwordx4 .*?) sc1", r"\1", txt)
    if E('X2'):
        txt = "\n".join(("    s_nop 0" if ("s81 offen" in l) else l) for l in txt.split("\n"))
    open(path, "w").write(txt)
```

```python
import sys
from asmlib import Asm, vr, sr

NAME = "recurrent_scan__ssm_conv_s4d__dense_activation_squared_relu__prompt"
XF = 0x0; XT = 0x280000; HF = 0x500000; W2F = 0xB00000; ST = 0xD00000
FLG = 0xF80000; STAMP = 0x1000000; WS_SIZE = 0x1100000
import os
FSTR = int(os.environ.get('FSTR','128'))
PSLEEP = int(os.environ.get('PSLEEP','0'))
LSLEEP = int(os.environ.get('LSLEEP','0'))
FHS = int(os.environ.get('FHS','128'))
FLN = FLG; FH = FLG + 0x8000; FW = FLG + 0x20000; FS = FLG + 0x24000; FL2 = FLG + 0x50000; FLT = FLG + 0x48000; FWR = FLG + 0x60000
AUX = 122880; RSZ = 12896; K1O = 4160; UO = 8320; UPAD = 480
MISC = AUX + 3 * RSZ
LDS_TOTAL = 163840
M_LNCNT = MISC; M_W1 = MISC + 16; M_G1D = MISC + 32; M_U = MISC + 48; M_NONCE = MISC + 112
M_LNR = MISC + 80; M_LN = MISC + 192; M_LNW = MISC + 240; M_J6 = MISC + 208; M_HP = MISC + 224; M_FW = MISC + 64; M_HCNT = MISC + 68; M_FH = MISC + 256; M_PD = MISC + 128; M_HC = MISC + 144; M_CD = MISC + 96
LNRS = 1296
LNIMG = 122880 - 10752
IMG = [0, 40960, 81920]
XRS = 176; XI = AUX + RSZ; M_B2 = MISC + 512
P_X, P_LA, P_AI, P_CR, P_CI, P_DT, P_DS = 4, 6, 8, 10, 12, 14, 16
P_W1, P_B1, P_W2, P_B2, P_OUT, P_DBG, P_WS = 20, 22, 24, 26, 28, 30, 32
S_WAVE, S_XCD, S_IDX, S_RB, S_CB, S_RB2, S_CB2, S_NCH, S_CH0 = 34, 35, 36, 37, 38, 39, 40, 41, 42
R_WS, R_X, R_W, R_OUT = 44, 48, 52, 56
S_NONCE = 96
S_LID = 93
LOG2E = 0x3fb8aa3b
INV2PI = 0x3e22f983

class Gen:
    def __init__(self, mode, stamps=False):
        self.a = Asm()
        self.mode = mode
        self.fused = mode == "fused"
        self.stamps = stamps
        self.sel = set()
        self.role = 'g'
        self.seen = set()
        self.pfx = mode

    def L(self, n):
        return f"{self.pfx}_{n}"

    def stamp(self, slot, q=False):
        if os.environ.get('DGP') and (self.role, slot) == (os.environ['DGP'][0], int(os.environ['DGP'][1:])):
            self.a('s_memrealtime s[72:73]\ns_waitcnt lgkmcnt(0)')
        if slot not in self.sel: return
        if q: self.vq += ['st']
        a = self.a
        a(f"""
        s_memrealtime s[98:99]
        s_lshl_b32 s100, s2, 3
        s_add_u32 s100, s100, s{S_WAVE}
        s_lshl_b32 s100, s100, 7
        s_add_u32 s100, s100, {STAMP + slot*4}
        s_waitcnt lgkmcnt(0)
        v_mov_b32 v1, s98
        s_mov_b64 s[98:99], exec
        s_mov_b64 exec, 1
        buffer_store_dword v1, off, s[{R_WS}:{R_WS+3}], s100
        s_mov_b64 exec, s[98:99]
        """)

    def dg_end(self, wave):
        if not os.environ.get('DGP') or os.environ['DGP'][0] != self.role: return
        lab = self.L('dg' + self.role)
        self.a(f"""
        s_cmp_lg_u32 s2, 0
        s_cbranch_scc1 {lab}_d
        s_cmp_lg_u32 s{S_WAVE}, {wave}
        s_cbranch_scc1 {lab}_d
        s_sub_u32 s60, s72, s94
        s_min_u32 s60, s60, 3000
        s_mul_i32 s60, s60, 5
        s_memrealtime s[62:63]
        s_waitcnt lgkmcnt(0)
        s_mov_b32 s64, s62
        {lab}:
        s_memrealtime s[62:63]
        s_waitcnt lgkmcnt(0)
        s_sub_u32 s61, s62, s64
        s_cmp_lt_u32 s61, s60
        s_cbranch_scc1 {lab}
        {lab}_d:
        """)

    def srd(self, r, p, size):
        self.a(f"""
        s_mov_b32 s{r}, s{p}
        s_and_b32 s{r+1}, s{p+1}, 0xffff
        s_mov_b32 s{r+2}, {size}
        s_mov_b32 s{r+3}, 0x00020000
        """)

    def mapfix(self):
        r = []
        if os.environ.get('M2') == '84':
            r += [f"s_lshr_b32 s60, s{S_XCD}, 1", "s_lshl_b32 s60, s60, 3", f"s_and_b32 s61, s{S_IDX}, 7", f"s_add_u32 s{S_RB2}, s60, s61",
                  f"s_and_b32 s60, s{S_XCD}, 1", "s_lshl_b32 s60, s60, 2", f"s_lshr_b32 s61, s{S_IDX}, 3", f"s_add_u32 s{S_CB2}, s60, s61"]
        if os.environ.get('M1') == '84':
            r += [f"s_and_b32 s60, s{S_XCD}, 1", "s_lshl_b32 s60, s60, 3", f"s_and_b32 s61, s{S_IDX}, 7", f"s_add_u32 s{S_RB}, s60, s61",
                  f"s_lshr_b32 s60, s{S_XCD}, 1", "s_lshl_b32 s60, s60, 2", f"s_lshr_b32 s61, s{S_IDX}, 3", f"s_add_u32 s{S_CB}, s60, s61"]
        if os.environ.get('M1') == '216':
            r += [f"s_lshl_b32 s60, s{S_XCD}, 1", f"s_and_b32 s61, s{S_IDX}, 1", f"s_add_u32 s{S_RB}, s60, s61", f"s_lshr_b32 s{S_CB}, s{S_IDX}, 1"]
        return "\n".join(r)

    def prologue(self):
        a = self.a
        a(f"""
        s_load_dwordx16 s[4:19], s[0:1], 0
        s_load_dwordx8 s[20:27], s[0:1], 64
        s_load_dwordx4 s[28:31], s[0:1], 96
        s_load_dwordx2 s[32:33], s[0:1], 112
        s_memrealtime s[94:95]
        s_cmp_ge_u32 s2, 256
        s_cbranch_scc1 {self.L('end')}
        v_lshrrev_b32 v1, 6, v0
        v_and_b32 v0, 63, v0
        s_and_b32 s{S_XCD}, s2, 7
        v_readfirstlane_b32 s{S_WAVE}, v1
        s_lshr_b32 s{S_IDX}, s2, 3
        s_getpc_b64 s[62:63]
        {self.L('pc')}:
        s_cmp_lg_u32 s{S_WAVE}, 7
        s_cbranch_scc1 {self.L('nopf')}
        s_and_b32 s60, s{S_IDX}, 7
        s_mul_i32 s60, s60, 4352
        v_lshlrev_b32 v2, 7, v0
        v_add_u32 v2, s60, v2
        v_min_u32 v2, {self.L('end')}-{self.L('pc')}, v2
        s_mov_b32 exec_hi, 3
        global_load_dword v130, v2, s[62:63]
        s_mov_b32 exec_hi, -1
        {self.L('nopf')}:
        s_and_b32 s60, s{S_XCD}, 3
        s_lshl_b32 s60, s60, 2
        s_and_b32 s61, s{S_IDX}, 3
        s_add_u32 s{S_RB}, s60, s61
        s_lshr_b32 s60, s{S_XCD}, 2
        s_lshl_b32 s60, s60, 3
        s_lshr_b32 s{S_CB2}, s{S_IDX}, 2
        s_add_u32 s{S_CB}, s60, s{S_CB2}
        s_lshl_b32 s60, s{S_XCD}, 2
        s_add_u32 s{S_RB2}, s60, s61
        {self.mapfix()}
        ; conv channels: g = idx/3, pos = idx%3
        s_mul_i32 s60, s{S_IDX}, 43
        s_lshr_b32 s60, s60, 7
        s_mul_i32 s61, s60, 3
        s_sub_u32 s61, s{S_IDX}, s61
        s_mul_i32 s62, s{S_XCD}, 80
        s_lshl_b32 s63, s60, 3
        s_add_u32 s62, s62, s63
        s_mul_i32 s63, s61, 3
        s_add_u32 s{S_CH0}, s62, s63
        s_cmp_eq_u32 s61, 2
        s_cselect_b32 s{S_NCH}, 2, 3
        s_cmp_ge_u32 s{S_IDX}, 30
        s_cselect_b32 s{S_NCH}, 0, s{S_NCH}
        s_sub_u32 s61, s{S_IDX}, 20
        s_cselect_b32 s60, s61, s60
        """)
        a.lines.pop(); a.lines.pop()
        a(f"""
        s_sub_u32 s61, s{S_IDX}, 20
        s_cmp_ge_u32 s{S_IDX}, 30
        s_cselect_b32 s60, s61, s60
        s_mul_i32 s61, s{S_XCD}, 12
        s_add_u32 s43, s61, s60
        s_lshl_b32 s{S_LID}, s{S_RB}, 4
        s_add_u32 s{S_LID}, s{S_LID}, s{S_CB}
        v_lshlrev_b32 v2, 3, v0
        v_add_u32 v2, {MISC}, v2
        v_mov_b32 v4, 0
        v_mov_b32 v5, 0
        ds_write_b64 v2, v[4:5]
        s_cmp_eq_u32 s{S_WAVE}, 7
        s_cselect_b32 s60, s2, 1
        s_cmp_lg_u32 s60, 0
        s_waitcnt lgkmcnt(0)
        s_cbranch_scc1 {self.L('nonce0')}
        s_or_b32 s61, s94, 1
        v_mov_b32 v2, s61
        s_mov_b64 exec, 1
        global_store_dword v4, v2, s[{P_DBG}:{P_DBG+1}] sc1
        s_mov_b64 exec, -1
        {self.L('nonce0')}:
        s_barrier
        """)
        if os.environ.get('WSOFF'):
            a(f"s_add_u32 s{P_WS}, s{P_WS}, {int(os.environ['WSOFF'],0)}\ns_addc_u32 s{P_WS+1}, s{P_WS+1}, 0")
        self.srd(R_WS, P_WS, WS_SIZE)
        self.srd(R_X, P_X, 2621440)

    def rowaddr(self, dst, row, t):
        self.a(f"""
        v_mul_u32_u24 v{t}, 11, v{row}
        v_lshrrev_b32 v{t}, 5, v{t}
        v_mul_u32_u24 v{dst}, {LNRS}, v{row}
        v_mad_u32_u24 v{dst}, v{t}, s97, v{dst}
        v_lshrrev_b32 v{t}, 1, v{t}
        v_mul_u32_u24 v{t}, 1440, v{t}
        v_add3_u32 v{dst}, v{dst}, v{t}, s61
        """)

    def ln_loads(self):
        a = self.a
        a(f"""
        s_lshl_b32 s60, s{S_LID}, 3
        s_lshl_b32 s61, s{S_WAVE}, 1
        s_add_u32 s60, s60, s61
        s_mul_i32 s60, s60, 1280
        v_lshrrev_b32 v2, 5, v0
        v_and_b32 v3, 31, v0
        v_mul_u32_u24 v1, 1280, v2
        v_lshl_add_u32 v1, v3, 3, v1
        """)
        for i in range(5):
            a(f"buffer_load_dwordx2 v[{100+2*i}:{101+2*i}], v1, s[{R_X}:{R_X+3}], s60 offen offset:{256*i}")

    def reduce32(self, v, t):
        a = self.a
        a(f"""
        v_add_f32_dpp v{v}, v{v}, v{v} quad_perm:[1,0,3,2] row_mask:0xf bank_mask:0xf
        v_add_f32_dpp v{v}, v{v}, v{v} quad_perm:[2,3,0,1] row_mask:0xf bank_mask:0xf
        v_add_f32_dpp v{v}, v{v}, v{v} row_half_mirror row_mask:0xf bank_mask:0xf
        v_add_f32_dpp v{v}, v{v}, v{v} row_mirror row_mask:0xf bank_mask:0xf
        v_mov_b32 v{t}, v{v}
        v_permlane16_swap_b32 v{v}, v{t}
        v_add_f32 v{v}, v{v}, v{t}
        """)

    def ln_math(self):
        a = self.a
        X = 110; Dd = 130; S = 150
        for i in range(10):
            a(f"v_lshlrev_b32 v{X+2*i}, 16, v{100+i}")
            a(f"v_and_b32 v{X+1+2*i}, 0xffff0000, v{100+i}")
        P = lambda r: f"v[{r}:{r+1}]"
        a(f"v_pk_add_f32 {P(S)}, {P(X)}, {P(X+2)}\nv_pk_add_f32 {P(S+2)}, {P(X+4)}, {P(X+6)}")
        for i in range(4, 10):
            a(f"v_pk_add_f32 {P(S+2*(i%2))}, {P(S+2*(i%2))}, {P(X+2*i)}")
        a(f"v_pk_add_f32 {P(S)}, {P(S)}, {P(S+2)}\nv_add_f32 v{S}, v{S}, v{S+1}")
        self.reduce32(S, S + 1)
        a(f"v_mul_f32 v{S+4}, 0x3acccccd, v{S}")
        for i in range(10):
            a(f"v_pk_add_f32 {P(Dd+2*i)}, {P(X+2*i)}, {P(S+4)} op_sel_hi:[1,0] neg_lo:[0,1] neg_hi:[0,1]")
        a(f"v_pk_mul_f32 {P(S)}, {P(Dd)}, {P(Dd)}\nv_pk_mul_f32 {P(S+2)}, {P(Dd+2)}, {P(Dd+2)}")
        for i in range(2, 10):
            a(f"v_pk_fma_f32 {P(S+2*(i%2))}, {P(Dd+2*i)}, {P(Dd+2*i)}, {P(S+2*(i%2))}")
        a(f"v_pk_add_f32 {P(S)}, {P(S)}, {P(S+2)}\nv_add_f32 v{S}, v{S}, v{S+1}")
        self.reduce32(S, S + 1)
        a(f"""
        v_mul_f32 v{S+5}, 0x3acccccd, v{S}
        v_cvt_pk_bf16_f32 v{S}, v{S+4}, v{S+5}
        v_lshlrev_b32 v{S+4}, 16, v{S}
        v_and_b32 v{S+2}, 0xffff0000, v{S}
        v_add_f32 v{S+2}, 0x3727c5ac, v{S+2}
        v_cvt_pk_bf16_f32 v{S+2}, v{S+2}, v{S+2}
        v_and_b32 v{S+2}, 0xffff0000, v{S+2}
        v_sqrt_f32 v{S+2}, v{S+2}
        """)
        for i in range(10):
            a(f"v_pk_add_f32 {P(Dd+2*i)}, {P(X+2*i)}, {P(S+4)} op_sel_hi:[1,0] neg_lo:[0,1] neg_hi:[0,1]")
            if i == 1:
                a(f"v_cvt_pk_bf16_f32 v{S+2}, v{S+2}, v{S+2}\nv_and_b32 v{S+2}, 0xffff0000, v{S+2}\nv_rcp_f32 v{S+2}, v{S+2}")
        for i in range(10):
            a(f"v_cvt_pk_bf16_f32 v{100+i}, v{Dd+2*i}, v{Dd+1+2*i}")
        for i in range(10):
            a(f"v_lshlrev_b32 v{X+2*i}, 16, v{100+i}")
            a(f"v_and_b32 v{X+1+2*i}, 0xffff0000, v{100+i}")
        for i in range(10):
            a(f"v_pk_mul_f32 {P(X+2*i)}, {P(X+2*i)}, {P(S+2)} op_sel_hi:[1,0]")
        for i in range(5):
            a(f"v_cvt_pk_bf16_f32 v{100+2*i}, v{X+4*i}, v{X+4*i+1}")
            a(f"v_cvt_pk_bf16_f32 v{101+2*i}, v{X+4*i+2}, v{X+4*i+3}")
            a(f"ds_write_b64 v98, v[{100+2*i}:{101+2*i}] offset:{256*i}")

    def ln_pub_addr(self):
        a = self.a
        a(f"""
        s_mov_b32 s84, s{S_WAVE}
        s_mov_b32 s97, {RSZ - 3*LNRS}
        s_mov_b32 s61, {AUX + UO + UPAD}
        s_lshl_b32 s60, s{S_WAVE}, 1
        v_lshrrev_b32 v2, 5, v0
        v_add_u32 v2, s60, v2
        """)
        self.rowaddr(98, 2, 5)
        a(f"""
        v_and_b32 v3, 31, v0
        v_lshl_add_u32 v98, v3, 3, v98
        s_lshl_b32 s60, s84, 7
        s_add_u32 s61, s61, s60
        v_and_b32 v1, 7, v0
        """)
        self.rowaddr(156, 1, 5)
        a(f"""
        v_lshrrev_b32 v2, 3, v0
        v_lshl_add_u32 v156, v2, 4, v156
        v_lshrrev_b32 v157, 2, v2
        v_and_b32 v5, 3, v2
        v_lshlrev_b32 v157, 10, v157
        v_lshl_add_u32 v157, v5, 8, v157
        v_lshl_add_u32 v157, v1, 4, v157
        v_and_b32 v1, 15, v0
        v_lshrrev_b32 v2, 2, v1
        v_sub_u32 v3, 7, v2
        v_sub_u32 v2, 3, v2
        """)
        self.rowaddr(158, 2, 5)
        self.rowaddr(99, 3, 5)
        a(f"""
        v_and_b32 v1, 3, v0
        v_lshrrev_b32 v2, 4, v0
        v_lshlrev_b32 v1, 3, v1
        v_lshl_add_u32 v1, v2, 5, v1
        v_add_u32 v158, v158, v1
        v_add_u32 v99, v99, v1
        v_lshlrev_b32 v159, 4, v0
        s_lshr_b32 s85, s{S_LID}, 1
        s_mul_i32 s85, s85, 20480
        s_and_b32 s62, s{S_LID}, 1
        s_lshl_b32 s62, s62, 7
        s_add_u32 s85, s85, s62
        s_lshl_b32 s62, s84, 11
        s_add_u32 s85, s85, s62
        s_add_u32 s86, s85, 8192
        s_add_u32 s87, s85, 16384
        s_mul_i32 s88, s{S_LID}, 10240
        s_lshl_b32 s62, s84, 10
        s_add_u32 s88, s88, s62
        s_add_u32 s88, s88, {XT}
        s_add_u32 s89, s88, 4096
        s_add_u32 s90, s88, 6144
        """)

    def ln_publish(self):
        a = self.a
        sc = "" if os.environ.get('V2') else "sc1"
        W = f"s[{R_WS}:{R_WS+3}]"
        l2 = self.L("lnp_xt3"); l3 = self.L("lnp_done")
        a(f"""
        ds_read_b128 v[160:163], v156
        ds_read_b128 v[164:167], v156 offset:512
        ds_read_b128 v[168:171], v156 offset:1024
        ds_read_b64_tr_b16 v[172:173], v99
        ds_read_b64_tr_b16 v[174:175], v158
        ds_read_b64_tr_b16 v[176:177], v99 offset:512
        ds_read_b64_tr_b16 v[178:179], v158 offset:512
        ds_read_b64_tr_b16 v[180:181], v99 offset:768
        ds_read_b64_tr_b16 v[182:183], v158 offset:768
        s_cmp_ge_u32 s84, 2
        s_waitcnt lgkmcnt(7)
        buffer_store_dwordx4 v[160:163], v157, {W}, s85 offen {sc}
        s_waitcnt lgkmcnt(6)
        buffer_store_dwordx4 v[164:167], v157, {W}, s86 offen {sc}
        s_cselect_b32 s87, {WS_SIZE}, s87
        s_waitcnt lgkmcnt(5)
        buffer_store_dwordx4 v[168:171], v157, {W}, s87 offen {sc}
        """)

    def ln_publish_xt(self):
        a = self.a
        W = f"s[{R_WS}:{R_WS+3}]"
        l3 = self.L("lnp_done")
        a(f"""
        s_cmp_lt_u32 s84, 2
        s_waitcnt lgkmcnt(0)
        buffer_store_dwordx4 v[172:175], v159, {W}, s88 offen sc1
        buffer_store_dwordx4 v[176:179], v159, {W}, s89 offen sc1
        s_cselect_b32 s90, {WS_SIZE}, s90
        buffer_store_dwordx4 v[180:183], v159, {W}, s90 offen sc1
        """)

    def w2_loads(self):
        a = self.a
        self.srd(R_OUT, P_W2, 1966080)
        a(f"""
        s_lshr_b32 s91, s43, 1
        s_and_b32 s92, s43, 1
        s_mul_i32 s62, s91, {32*1280}
        s_mul_i32 s63, s92, 640
        s_add_u32 s62, s62, s63
        s_add_u32 s63, s62, 320
        """)
        for i in range(10):
            a(f"""
            v_add_u32 v1, {64*i}, v0
            v_mul_u32_u24 v2, 52429, v1
            v_lshrrev_b32 v2, 20, v2
            v_mul_u32_u24 v3, 20, v2
            v_sub_u32 v3, v1, v3
            v_mul_u32_u24 v2, 1280, v2
            v_lshl_add_u32 v2, v3, 4, v2
            buffer_load_dwordx4 v[{64+4*i}:{67+4*i}], v2, s[{R_OUT}:{R_OUT+3}], s62 offen
            buffer_load_dwordx4 v[{104+4*i}:{107+4*i}], v2, s[{R_OUT}:{R_OUT+3}], s63 offen
            """)

    def w2_retile(self, mid=None):
        a = self.a
        sc = "sc1"
        base = AUX + 2 * RSZ
        a(f"""
        v_lshlrev_b32 v6, 4, v0
        v_add_u32 v1, {base}, v6
        v_lshrrev_b32 v2, 4, v0
        v_and_b32 v3, 15, v0
        v_lshrrev_b32 v3, 2, v3
        v_lshl_add_u32 v2, v2, 2, v3
        v_mul_u32_u24 v2, 320, v2
        v_and_b32 v3, 3, v0
        v_lshl_add_u32 v2, v3, 3, v2
        v_add_u32 v2, {base}, v2
        s_mul_i32 s62, s92, {4*245760}
        s_mul_i32 s63, s91, 5120
        s_add_u32 s62, s62, s63
        s_add_u32 s62, s62, {W2F}
        v_add_u32 v7, 4096, v6
        """)
        for half in range(2):
            src = 64 + 40 * half
            fr = 144 + 40 * half
            for i in range(10):
                a(f"ds_write_b128 v1, v[{src+4*i}:{src+3+4*i}] offset:{1024*i}")
            a("s_waitcnt lgkmcnt(4)")
            for nt in range(10):
                d = fr + 4 * nt
                a(f"ds_read_b64_tr_b16 v[{d}:{d+1}], v2 offset:{32*nt}")
                a(f"ds_read_b64_tr_b16 v[{d+2}:{d+3}], v2 offset:{32*nt+16*320}")
                if nt == 4: a("s_waitcnt lgkmcnt(4)")
            a("s_waitcnt lgkmcnt(0)")
            for nt in range(10):
                d = fr + 4 * nt
                cbl = half * 2 + nt // 5
                n5 = nt % 5
                if n5 == 0:
                    a(f"s_add_u32 s63, s62, {cbl*245760}")
                if n5 < 4:
                    a(f"buffer_store_dwordx4 v[{d}:{d+3}], v6, s[{R_WS}:{R_WS+3}], s63 offen offset:{1024*n5} {sc}")
                else:
                    a(f"buffer_store_dwordx4 v[{d}:{d+3}], v7, s[{R_WS}:{R_WS+3}], s63 offen {sc}")
            if half == 0 and mid:
                a("v_mov_b32 v8, v2"); mid(); a("v_mov_b32 v2, v8")

    def lds_set(self, addr_imm, sidx=None, val=1, tmp=(2, 3)):
        a = self.a
        if sidx is None:
            a(f"v_mov_b32 v{tmp[0]}, {addr_imm}")
        else:
            a(f"s_lshl_b32 s60, s{sidx}, 2\ns_add_u32 s60, s60, {addr_imm}\nv_mov_b32 v{tmp[0]}, s60")
        a(f"v_mov_b32 v{tmp[1]}, {val}\nds_write_b32 v{tmp[0]}, v{tmp[1]}")

    def lds_wait_all(self, addr_imm, n, name, tmp=2, sleep=None):
        if sleep is None: sleep = LSLEEP
        a = self.a
        lab = self.L(name); done = self.L(name + "_d")
        t = tmp
        a(f"""
        v_mov_b32 v{t}, {addr_imm}
        s_mov_b32 s61, 0
        {lab}:
        ds_read_b128 v[{t+2}:{t+5}], v{t}
        s_add_u32 s61, s61, 1
        s_waitcnt lgkmcnt(0)
        """)
        for k in range(1, n):
            a(f"v_min_u32 v{t+2}, v{t+2}, v{t+2+k}")
        a(f"""
        v_readfirstlane_b32 s60, v{t+2}
        s_cmp_gt_u32 s61, 0x100000
        s_cbranch_scc1 {done}
        s_cmp_lg_u32 s60, 0
        s_cbranch_scc1 {done}
        {'s_sleep %d' % sleep if sleep else ''}
        s_branch {lab}
        {done}:
        """)

    def get_nonce(self, name, tmp=2):
        self.lds_wait_all(M_NONCE, 1, name, tmp)
        self.a(f"s_mov_b32 s{S_NONCE}, s60")

    def poll_flags(self, name, soff, nlanes, nloads=1, lstride=FSTR, istride=64*FSTR, tmp=2, pre=None):
        a = self.a
        lab = self.L(name); done = self.L(name + "_d")
        t = tmp
        a(f"v_mul_u32_u24 v{t}, {lstride}, v0")
        a(f"s_mov_b64 s[62:63], exec")
        if nlanes < 64:
            a(f"s_lshr_b64 exec, -1, {64-nlanes}")
        a(f"s_mov_b32 s64, 0\n{lab}:")
        for i in range(nloads):
            if i * istride < 4096:
                a(f"buffer_load_dword v{t+1+i}, v{t}, s[{R_WS}:{R_WS+3}], s{soff} offen offset:{i*istride} sc1")
            else:
                a(f"s_add_u32 s65, s{soff}, {i*istride}\nbuffer_load_dword v{t+1+i}, v{t}, s[{R_WS}:{R_WS+3}], s65 offen sc1")
        a("s_add_u32 s64, s64, 1\ns_waitcnt vmcnt(0)")
        for i in range(nloads):
            a(f"v_xor_b32 v{t+1+i}, s{S_NONCE}, v{t+1+i}")
        for i in range(1, nloads):
            a(f"v_or_b32 v{t+1}, v{t+1}, v{t+1+i}")
        a(f"""
        v_cmp_ne_u32 vcc, 0, v{t+1}
        s_cmp_gt_u32 s64, 0x8000
        s_cbranch_scc1 {done}
        s_cbranch_vccz {done}
        {'s_sleep %d' % PSLEEP if PSLEEP else ''}
        s_branch {lab}
        {done}:
        s_mov_b64 exec, s[62:63]
        """)

    def poll_pipe(self, name, soff, nlanes, stride, depth, gap, on_result=None, vo=None):
        a = self.a
        lab = self.L(name)
        tb = self.ptmp
        if vo is None: a(f"v_mul_u32_u24 v2, {stride}, v0")
        a(f"s_mov_b64 s[62:63], exec\ns_lshr_b64 exec, -1, {64-nlanes}\ns_mov_b32 s64, 0")
        ld = lambda i: f"buffer_load_dword v{tb+i}, v2, s[{R_WS}:{R_WS+3}], s{soff} offen sc1"
        for i in range(depth - 1):
            a(ld(i))
            if gap: a(f"s_sleep {gap}")
        a(f"{lab}:")
        for i in range(depth):
            a(ld((i + depth - 1) % depth))
            a(f"s_waitcnt vmcnt({depth-1})\nv_cmp_eq_u32 vcc, s{S_NONCE}, v{tb+i}")
            if on_result: on_result()
            a(f"s_cmp_eq_u64 vcc, exec\ns_cbranch_scc1 {lab}_d")
            if gap: a(f"s_sleep {gap}")
        a(f"s_add_u32 s64, s64, 1\ns_cmp_lt_u32 s64, 0x4000\ns_cbranch_scc1 {lab}")
        if on_result:
            a("s_mov_b64 vcc, exec"); on_result()
        a(f"{lab}_d:\ns_mov_b64 exec, s[62:63]")

    def spoll(self, name, soff, stride, sleep, quarters=None, n=16, miss=None):
        a = self.a
        lab = self.L(name)
        a(f"s_add_u32 s62, s{P_WS}, s{soff}\ns_addc_u32 s63, s{P_WS+1}, 0\ns_mov_b32 s64, 0\n{lab}:")
        for i in range(n): a(f"s_load_dword s{4+i}, s[62:63], {i*stride} glc")
        a("s_add_u32 s64, s64, 1\ns_waitcnt lgkmcnt(0)")
        for i in range(n): a(f"s_xor_b32 s{4+i}, s{4+i}, s{S_NONCE}")
        for q in range(n // 4):
            a(f"s_or_b32 s{4+4*q}, s{4+4*q}, s{5+4*q}\ns_or_b32 s{6+4*q}, s{6+4*q}, s{7+4*q}\ns_or_b32 s{4+4*q}, s{4+4*q}, s{6+4*q}")
        if quarters:
            for q in range(4):
                a(f"s_cmp_eq_u32 s{4+4*q}, 0\ns_cselect_b32 s60, 1, 0\nv_mov_b32 v3, s60\nds_write_b32 v4, v3 offset:{16*q}")
        for q in range(1, n // 4): a(f"s_or_b32 s4, s4, s{4+4*q}")
        a(f"s_cmp_eq_u32 s4, 0\ns_cbranch_scc1 {lab}_d")
        if miss: miss()
        if sleep: a(f"s_sleep {sleep}")
        a(f"s_cmp_lt_u32 s64, 0x4000\ns_cbranch_scc1 {lab}")
        if quarters:
            a("v_mov_b32 v3, 1")
            for q in range(4): a(f"ds_write_b32 v4, v3 offset:{16*q}")
        a(f"{lab}_d:")

    def spoll48(self, name, soff, stride, sleep):
        a = self.a
        lab = self.L(name)
        regs = list(range(4, 26)) + list(range(67, 93))
        a(f"s_add_u32 s62, s{P_WS}, s{soff}\ns_addc_u32 s63, s{P_WS+1}, 0\ns_mov_b32 s64, 0\n{lab}:")
        for i, r in enumerate(regs): a(f"s_load_dword s{r}, s[62:63], {i*stride} glc")
        a(f"s_add_u32 s64, s64, 1\ns_mov_b32 s60, s{S_NONCE}\ns_mov_b32 s61, s{S_NONCE}\ns_waitcnt lgkmcnt(0)")
        for r in regs: a(f"s_and_b32 s60, s60, s{r}\ns_or_b32 s61, s61, s{r}")
        a(f"s_cmp_eq_u32 s60, s61\ns_cbranch_scc1 {lab}_d\ns_sleep {sleep}\ns_cmp_lt_u32 s64, 0x4000\ns_cbranch_scc1 {lab}\n{lab}_d:")

    def store_flag(self, soff, tmp=2):
        self.a(f"""
        v_mov_b32 v{tmp}, s{S_NONCE}
        s_mov_b64 s[62:63], exec
        s_mov_b64 exec, 1
        buffer_store_dword v{tmp}, off, s[{R_WS}:{R_WS+3}], s{soff} sc1
        s_mov_b64 exec, s[62:63]
        """)

    def w1_addr(self, vr_):
        self.srd(R_W, P_W1, 1966080)
        for ph in range(3):
            self.a(f"""
            v_add_u32 v5, {64*ph}, v0
            v_mul_u32_u24 v6, 43691, v5
            v_lshrrev_b32 v6, 19, v6
            v_mul_u32_u24 v7, 12, v6
            v_sub_u32 v7, v5, v7
            v_lshrrev_b32 v8, 2, v6
            v_and_b32 v8, 2, v8
            v_xor_b32 v7, v7, v8
            v_mul_u32_u24 v6, 3072, v6
            v_lshl_add_u32 v{vr_+ph}, v7, 4, v6
            """)
        self.a(f"s_mul_i32 s69, s{S_CB}, 192")

    def w1_group(self, vr_):
        a = self.a
        a(f"""
        s_mul_i32 s63, s68, {16*3072}
        s_add_u32 s63, s63, s69
        s_mul_i32 m0, s68, 3072
        s_nop 0
        buffer_load_dwordx4 v{vr_}, s[{R_W}:{R_W+3}], s63 offen lds
        s_add_u32 m0, m0, 1024
        s_nop 0
        buffer_load_dwordx4 v{vr_+1}, s[{R_W}:{R_W+3}], s63 offen lds
        s_add_u32 m0, m0, 1024
        s_nop 0
        buffer_load_dwordx4 v{vr_+2}, s[{R_W}:{R_W+3}], s63 offen lds
        """)

    G1_ACC = 16; G1_B = 64; G1_B1 = 64; G1_A = 96
    def g1_b1_loads(self):
        a = self.a
        a(f"""
        v_lshrrev_b32 v5, 4, v0
        v_lshlrev_b32 v5, 3, v5
        s_mul_i32 s60, s{S_CB}, 192
        v_add_u32 v5, s60, v5
        """)
        for t in range(6):
            a(f"global_load_dwordx2 v[{self.G1_B1+2*t}:{self.G1_B1+2*t+1}], v5, s[{P_B1}:{P_B1+1}] offset:{32*t}")

    def acc_init(self, p):
        r = []
        for k in range(2):
            for lt in range(2):
                d = self.G1_ACC + 16 * p + 8 * k + 4 * lt
                s_ = self.G1_B1 + 2 * (2 * p + k)
                r += [f"v_lshlrev_b32 v{d}, 16, v{s_}", f"v_and_b32 v{d+1}, 0xffff0000, v{s_}",
                      f"v_lshlrev_b32 v{d+2}, 16, v{s_+1}", f"v_and_b32 v{d+3}, 0xffff0000, v{s_+1}"]
        return r

    def g1_prep(self):
        a = self.a
        for x in self.acc_init(0) + self.acc_init(1) + self.acc_init(2): a(x)
        a(f"""
        v_lshrrev_b32 v5, 4, v0
        v_and_b32 v6, 15, v0
        v_lshrrev_b32 v6, 2, v6
        v_lshl_add_u32 v6, v5, 3, v6
        v_mul_u32_u24 v6, 192, v6
        v_and_b32 v7, 3, v0
        v_lshl_add_u32 v6, v7, 3, v6
        v_and_b32 v5, 1, v5
        v_lshlrev_b32 v5, 5, v5
        v_add_u32 v10, v6, v5
        v_sub_u32 v11, v6, v5
        v_add_u32 v12, 61440, v10
        v_add_u32 v13, 61440, v11
        s_lshl_b32 s86, s{S_RB}, 3
        s_lshl_b32 s87, s{S_WAVE}, 1
        s_add_u32 s86, s86, s87
        s_mul_i32 s82, s86, 20480
        s_add_u32 s83, s82, 20480
        s_mul_i32 s86, s86, 49152
        s_mul_i32 s87, s{S_CB}, 3072
        s_add_u32 s86, s86, s87
        s_add_u32 s86, s86, {HF}
        s_add_u32 s87, s86, 49152
        """)

    def g1_aload(self, ks):
        r = []
        for lt in range(2):
            d = self.G1_A + 8 * ks + 4 * lt
            ins = [f"buffer_load_dwordx4 v[{d}:{d+3}], v9, s[{R_WS}:{R_WS+3}], s{82+lt} offen offset:{1024*(ks%4)} sc1"]
            if ks % 4 == 3 and ks != 19: ins.append(f"s_add_u32 s{82+lt}, s{82+lt}, 4096")
            r.append((ins, f"A{ks}"))
        return r

    def epi_ops(self, p):
        r = []
        for lt in range(2):
            a0 = self.G1_ACC + 16 * p + 4 * lt; b0 = a0 + 8
            for x in (a0, b0):
                for i in range(4): r.append(([f"v_max_f32 v{x+i}, 0, v{x+i}"], None))
                for i in range(4): r.append(([f"v_mul_f32 v{x+i}, v{x+i}, v{x+i}"], None))
            r.append(([f"v_cvt_pk_bf16_f32 v{a0}, v{a0}, v{a0+1}"], None))
            r.append(([f"v_cvt_pk_bf16_f32 v{a0+1}, v{a0+2}, v{a0+3}"], None))
            r.append(([f"v_cvt_pk_bf16_f32 v{a0+2}, v{b0}, v{b0+1}"], None))
            r.append(([f"v_cvt_pk_bf16_f32 v{a0+3}, v{b0+2}, v{b0+3}"], None))
            r.append(([f"buffer_store_dwordx4 v[{a0}:{a0+3}], v9, s[{R_WS}:{R_WS+3}], s{86+lt} offen offset:{1024*p} sc1"], "S"))
        return r

    def vwait(self, tag):
        vq = self.vq
        assert tag in self.seen or os.environ.get('NOAL'), tag
        idx = [i for i, t in enumerate(vq) if t == tag]
        if not idx: return
        n = len(vq) - 1 - idx[-1]
        self.a(f"s_waitcnt vmcnt({min(n, 63)})"); del vq[:idx[-1] + 1]

    def emit(self, item):
        ins, tag = item
        for x in ins: self.a(x)
        if tag: self.vq.append(tag); self.seen.add(tag)

    def g1_loop(self, N0, events, TL=5):
        a = self.a
        NF = 8; AH = NF - 1
        seq = [(ks, t) for ks in range(20 - TL) for t in range(6)]
        for p in range(3):
            seq += [(ks, 2 * p + k) for ks in range(20 - TL, 20) for k in range(2)]
        def rd(f):
            ks, t = seq[f]
            base = (10 if t % 2 == 0 else 11) + (2 if ks >= 10 else 0)
            off = (ks % 10) * 6144 + 32 * t
            d = self.G1_B + 4 * (f % NF)
            return [f"ds_read_b64_tr_b16 v[{d}:{d+1}], v{base} offset:{off}", f"ds_read_b64_tr_b16 v[{d+2}:{d+3}], v{base} offset:{off+768}"]
        for f in range(AH):
            for x in rd(f): a(x)
        fv = []; fa = []; waited = set()
        f0 = 6 * (20 - TL)
        for f, (ks, t) in enumerate(seq):
            if f % 6 == 0:
                st = f // 6
                if st in events:
                    extra = events[st]()
                    if extra: fv += extra
                if st + N0 < 20: fv = self.g1_aload(st + N0) + fv
            if ks not in waited:
                self.vwait(f"A{ks}"); waited.add(ks)
            if f > f0 and (f - f0) % (2 * TL) == 1 and (f - f0) // (2 * TL) >= 1:
                fa += self.epi_ops((f - f0) // (2 * TL) - 1)
            nxt = rd(f + AH) if f + AH < 120 else []
            if f % 2 == 0:
                a(f"s_waitcnt lgkmcnt({max(0, 2 * (min(f + AH, 120) - f - 2))})")
            for lt in range(2):
                acc = self.G1_ACC + 8 * t + 4 * lt
                A = self.G1_A + 8 * ks + 4 * lt
                B = self.G1_B + 4 * (f % NF)
                a(f"v_mfma_f32_16x16x32_bf16 v[{acc}:{acc+3}], v[{B}:{B+3}], v[{A}:{A+3}], v[{acc}:{acc+3}]")
                if nxt: a(nxt.pop(0))
                if fa:
                    for _ in range(2 if nxt or f + AH < 120 else 3):
                        if fa: self.emit(fa.pop(0))
                elif fv and lt == 1 and f % 2 == 0 and not (fv[0][1] in ("B3", "B4") and self.NRB == 5 and f < 6 * 13): self.emit(fv.pop(0))
        return fa, fv

    KP = 44
    def kg_loads(self):
        a = self.a
        a(f"""
        s_sub_u32 s70, s{S_WAVE}, 4
        s_add_u32 s71, s{S_CH0}, s70
        s_mul_i32 s60, s71, 384
        v_lshlrev_b32 v2, 2, v0
        v_add_u32 v2, s60, v2
        v_lshlrev_b32 v3, 1, v0
        v_add_u32 v3, s60, v3
        """)
        for k, P in enumerate((P_LA, P_AI, P_CR, P_CI)):
            a(f"global_load_dword v{self.KP+k}, v2, s[{P}:{P+1}]")
        a(f"s_lshl_b32 s60, s71, 1\ns_and_b32 s60, s60, -4\ns_load_dword s74, s[{P_DT}:{P_DT+1}], s60\ns_load_dword s75, s[{P_DS}:{P_DS+1}], s60")
        for k, P in enumerate((P_LA, P_AI, P_CR, P_CI)):
            a(f"global_load_ushort v{self.KP+4+k}, v3, s[{P}:{P+1}] offset:256")

    def cmul(self, d, x, y, plain=False):
        if plain:
            return [f"v_mul_f32 v{d}, v{x}, v{y}", f"v_mul_f32 v{d+1}, v{x}, v{y+1}",
                    f"v_fma_f32 v{d}, -v{x+1}, v{y+1}, v{d}", f"v_fma_f32 v{d+1}, v{x+1}, v{y}, v{d+1}"]
        return [f"v_pk_mul_f32 v[{d}:{d+1}], v[{x}:{x+1}], v[{y}:{y+1}] op_sel:[0,0] op_sel_hi:[0,1]",
                f"v_pk_fma_f32 v[{d}:{d+1}], v[{x}:{x+1}], v[{y}:{y+1}], v[{d}:{d+1}] op_sel:[1,1,0] op_sel_hi:[1,0,1] neg_lo:[0,1,0]"]

    def kg_setup(self):
        a = self.a
        self.aux_addr()
        a(f"""
        v_lshrrev_b32 v2, 2, v0
        v_mul_u32_u24 v2, 272, v2
        v_and_b32 v3, 3, v0
        v_lshl_add_u32 v2, v3, 2, v2
        v_add_u32 v10, s72, v2
        v_add_u32 v9, 4352, v10
        v_lshrrev_b32 v2, 4, v0
        v_mul_u32_u24 v2, 272, v2
        v_and_b32 v3, 15, v0
        v_lshl_add_u32 v2, v3, 4, v2
        v_add_u32 v11, s72, v2
        s_bitcmp1_b32 s71, 0
        s_cselect_b32 s60, 0, 16
        s_waitcnt lgkmcnt(0)
        s_lshl_b32 s74, s74, s60
        s_lshl_b32 s75, s75, s60
        s_and_b32 s74, s74, 0xffff0000
        s_and_b32 s75, s75, 0xffff0000
        v_mov_b32 v56, {LOG2E}
        v_mul_f32 v56, s74, v56
        v_exp_f32 v56, v56
        v_mov_b32 v57, s75
        v_cvt_pk_bf16_f32 v56, v56, v56
        v_and_b32 v56, 0xffff0000, v56
        v_add_f32 v58, v56, v56
        v_mov_b32 v59, 0x3f80
        """)

    def kgen(self, hook=None):
        a = self.a
        KP = self.KP
        Z, Z8, W = 60, 62, 64
        F = 66; F2 = 82; G = 98; CV = 102; SV = 110
        GF, TA, TB, TC = 120, 136, 152, 184
        ACC = 168
        VW, VR, VW2 = 10, 11, 9
        TOFF = 4352
        NPL = int(os.environ.get('KPL', '1'))
        class Out:
            def __init__(o, base, neg, pool): o.base = base; o.neg = neg; o.pend = None; o.pool = pool; o.n = 0
            def put(o, src, row, reg=None):
                r = []
                if reg is None:
                    reg = CV + 4 * o.pool + o.n % 4; o.n += 1
                    r.append(f"v_cvt_pk_bf16_f32 v{reg}, v{src}, {'-' if o.neg else ''}v{src+1}")
                if o.pend is None: o.pend = (reg, row)
                else:
                    r.append(f"ds_write2_b32 v{o.base}, v{o.pend[0]}, v{reg} offset0:{4*o.pend[1]} offset1:{4*row}")
                    o.pend = None
                return r
        def merge(*streams):
            streams = [list(s) for s in streams]
            out = []
            while any(streams):
                for s in streams:
                    if s: out.append(s.pop(0))
            return out
        def mf(acc, T, first):
            return [f"v_mfma_f32_16x16x32_bf16 v[{acc}:{acc+3}], v[{T+4*ks}:{T+4*ks+3}], v[{GF+4*ks}:{GF+4*ks+3}], {'0' if first and ks == 0 else f'v[{acc}:{acc+3}]'}" for ks in range(4)]
        def up(k, p):
            r = KP + k + (4 if p == 2 else 0)
            return (lambda d: f"v_and_b32 v{d}, 0xffff0000, v{r}") if p == 1 else (lambda d: f"v_lshlrev_b32 v{d}, 16, v{r}")
        pend = []
        for p in range(3):
            pl = p >= 3 - NPL
            cm = lambda d, x, y: self.cmul(d, x, y, pl)
            if p: self.stamp(10 + p)
            if p == 2: a("s_waitcnt vmcnt(0)")
            prep = [up(0, p)(2), f"v_mul_f32 v2, {LOG2E}, v2", "v_exp_f32 v2, v2", up(1, p)(3), up(2, p)(F), "v_cvt_pk_bf16_f32 v2, v2, v2", up(3, p)(F + 1),
                    "v_and_b32 v2, 0xffff0000, v2", "v_mul_f32 v3, v3, v56", "v_mul_f32 v2, v2, v56", f"v_mul_f32 v{F}, v{F}, v58", f"v_mul_f32 v{F+1}, v{F+1}, v58",
                    f"v_mul_f32 v3, {INV2PI}, v3", "v_mul_f32 v2, 0xbfb8aa3b, v2",
                    "v_mul_f32 v4, 0x41000000, v2", "v_mul_f32 v5, 0x41000000, v3", "v_mul_f32 v6, 0x43000000, v2", "v_mul_f32 v7, 0x43000000, v3",
                    "v_fract_f32 v3, v3", "v_fract_f32 v5, v5", "v_fract_f32 v7, v7", "v_exp_f32 v2, v2", "v_exp_f32 v4, v4", "v_exp_f32 v6, v6",
                    f"v_cos_f32 v{Z}, v3", f"v_sin_f32 v{Z+1}, v3", f"v_cos_f32 v{Z8}, v5", f"v_sin_f32 v{Z8+1}, v5", f"v_cos_f32 v{W}, v7", f"v_sin_f32 v{W+1}, v7"]
            for q, e in ((Z, 2), (Z8, 4), (W, 6)):
                prep += [f"v_mul_f32 v{q}, v{q}, v{e}", f"v_mul_f32 v{q+1}, v{q+1}, v{e}"]
            k = 0
            for i, ins in enumerate(prep):
                a(ins)
                if pend and i >= 6 and i % 3 == 0: a(pend.pop(0))
            assert not pend
            og = Out(VW, False, 0); of = Out(VW2, True, 1); oc0 = Out(VW2, True, 0); oc1 = Out(VW2, True, 1); ot = Out(VW2, True, 0)
            gs = og.put(None, 0, 59) + og.put(Z8, 1)
            prev = Z8
            for j in range(2, 16):
                d = G + 2 * (j % 2)
                gs += cm(d, prev, Z8) + og.put(d, j)
                prev = d
            fs = of.put(F, 0)
            for r in range(1, 8):
                fs += cm(F + 2 * r, F + 2 * (r - 1), Z) + of.put(F + 2 * r, r)
            for r in range(8):
                fs += cm(F2 + 2 * r, F + 2 * r, W) + of.put(F2 + 2 * r, 8 + r)
            for ins in merge(gs, fs): a(ins)
            for ks in range(4):
                a(f"ds_read_b128 v[{GF+4*ks}:{GF+4*ks+3}], v{VR} offset:{1088*ks}")
                a(f"ds_read_b128 v[{TA+4*ks}:{TA+4*ks+3}], v{VR} offset:{TOFF+1088*ks}")
            s1 = []
            for i in range(4):
                s1.append(cm(F + 2 * i, F2 + 4 * i, W) + [f"v_cvt_pk_bf16_f32 v{SV+i}, v{F+2*i}, -v{F+2*i+1}"]
                          + cm(F + 8 + 2 * i, F + 2 * i, W) + [f"v_cvt_pk_bf16_f32 v{SV+4+i}, v{F+8+2*i}, -v{F+8+2*i+1}"])
            for ins in merge(*s1): a(ins)
            c0 = []; prev = F + 8
            for i in range(12):
                d = F2 + 2 * (i % 2)
                c0 += cm(d, prev, W) + oc0.put(d, i if i < 4 else i + 4)
                prev = d
            last = prev
            c1 = []; prev = F + 12
            for i in range(4):
                d = F2 + 4 + 2 * (i % 2)
                c1 += cm(d, prev, W) + oc1.put(d, 4 + i)
                prev = d
            for ins in merge(c0, c1): a(ins)
            for ks in range(4):
                a(f"ds_read_b128 v[{TB+4*ks}:{TB+4*ks+3}], v{VR} offset:{TOFF+1088*ks}")
            for ins in cm(F2 + 8, last, W): a(ins)
            a("s_waitcnt lgkmcnt(12)")
            t2 = []
            for i in range(8): t2 += ot.put(None, i, SV + i)
            t2 += [f"v_cvt_pk_bf16_f32 v{CV}, v{F2+8}, -v{F2+9}", f"ds_write_b32 v{VW2}, v{CV} offset:128"]
            t2 += [f"ds_read_b128 v[{TC+4*ks}:{TC+4*ks+3}], v{VR} offset:{TOFF+1088*ks}" for ks in range(4)]
            for ins in merge(mf(ACC, TA, p == 0), t2): a(ins)
            pend = ["s_waitcnt lgkmcnt(0)"] + mf(ACC + 4, TB, p == 0) + mf(ACC + 8, TC, p == 0)
        self.kpend = pend
        self.KACC = ACC

    def aux_addr(self):
        a = self.a
        a(f"s_mul_i32 s72, s70, {RSZ}\ns_add_u32 s72, s72, {AUX}")
        a(f"""
        v_and_b32 v2, 15, v0
        v_lshrrev_b32 v3, 4, v0
        v_lshlrev_b32 v4, 3, v2
        v_lshlrev_b32 v5, 2, v3
        v_add_u32 v5, 512, v5
        v_lshlrev_b32 v6, 9, v3
        v_cmp_gt_u32 vcc, 2, v3
        v_cndmask_b32 v5, v6, v5, vcc
        v_add_u32 v5, v5, v4
        v_cndmask_b32 v6, 4, 2, vcc
        v_and_b32 v7, 1, v2
        v_cndmask_b32 v7, v7, v3, vcc
        v_cndmask_b32 v8, 8, 0, vcc
        s_add_u32 s60, s72, 32
        v_sub_u32 v9, v5, v6
        v_lshl_add_u32 v12, v9, 1, s60
        v_add_u32 v13, v12, v8
        v_add_u32 v9, v5, v6
        v_sub_u32 v9, v9, v7
        v_lshl_add_u32 v14, v9, 1, s60
        v_sub_u32 v9, v5, v6
        v_add_u32 v9, v9, v7
        v_lshl_add_u32 v15, v9, 1, s60
        v_add_u32 v15, {K1O-2}, v15
        v_cmp_eq_u32 vcc, 32, v0
        v_add_u32 v9, 4, v15
        v_cndmask_b32 v16, v15, v9, vcc
        v_add_u32 v17, {K1O}, v12
        v_add_u32 v18, {K1O}, v13
        """)
        a(f"""
        v_lshlrev_b32 v5, 8, v3
        v_add3_u32 v5, v5, v4, v4
        v_add_u32 v5, s60, v5
        v_add_u32 v30, 512, v5
        v_add_u32 v31, {K1O-4}, v30
        v_add_u32 v32, -2, v30
        s_add_u32 s61, s60, {2*2044}
        v_mov_b32 v33, s61
        v_add_u32 v34, {K1O-2}, v33
        v_add_u32 v35, {K1O}, v33
        v_and_b32 v5, 1, v3
        v_lshlrev_b32 v5, 3, v5
        v_lshrrev_b32 v6, 1, v3
        v_lshl_add_u32 v5, v6, 8, v5
        v_add3_u32 v5, v5, v4, v4
        v_add_u32 v36, s60, v5
        v_add_u32 v37, {K1O-2}, v36
        v_lshlrev_b32 v7, 3, v0
        v_add_u32 v38, s72, v7
        v_mov_b32 v40, 0
        v_mov_b32 v41, 0
        v_lshlrev_b32 v4, 3, v3
        v_sub_u32 v4, v2, v4
        v_add_u32 v4, {233+16-224}, v4
        v_and_b32 v5, 1, v2
        v_and_b32 v4, -2, v4
        v_lshlrev_b32 v4, 1, v4
        v_cmp_eq_u32 vcc, 0, v5
        v_mov_b32 v6, {K1O}
        v_cndmask_b32 v5, 0, v6, vcc
        v_add3_u32 v220, v4, v5, s72
        v_add_u32 v221, 1024, v220
        v_add_u32 v222, 2048, v220
        v_add_u32 v223, 3072, v220
        v_lshlrev_b32 v4, 5, v2
        v_lshl_add_u32 v225, v3, 3, v4
        v_lshl_add_u32 v4, v3, 4, v4
        s_add_u32 s60, s72, {UO}
        v_add_u32 v224, s60, v4
        """)

    def expand(self):
        a = self.a
        ACC = self.KACC
        T0, T1, T2 = ACC, ACC + 4, ACC + 8
        a(f"""
        s_mov_b64 exec, 1
        v_add_f32 v{T0}, v{T0}, v57
        s_mov_b64 exec, -1
        """) if False else None
        for x in self.kpend: a(x)
        a(f"""
        s_mov_b64 exec, 1
        v_add_f32 v{T0}, v{T0}, v57
        s_mov_b64 exec, -1
        v_cvt_pk_bf16_f32 v42, v{T0}, v{T0+1}
        v_cvt_pk_bf16_f32 v43, v{T0+2}, v{T0+3}
        v_cvt_pk_bf16_f32 v29, v{T0+1}, v{T0+2}
        """)
        for i in range(4):
            a(f"v_cvt_pk_bf16_f32 v{20+i}, v{T1+i}, v{T1+i}")
        for i in range(4):
            a(f"ds_write2_b32 v12, v{20+i}, v{20+i} offset0:{64*i} offset1:{64*i+1}")
            a(f"ds_write2_b32 v13, v{20+i}, v{20+i} offset0:{64*i} offset1:{64*i+1}")
            a(f"ds_write2_b32 v17, v{20+i}, v{20+i} offset0:{64*i} offset1:{64*i+1}")
            a(f"ds_write2_b32 v18, v{20+i}, v{20+i} offset0:{64*i} offset1:{64*i+1}")
        a(f"""
        v_cvt_pk_bf16_f32 v24, v{T2}, v{T2}
        v_cvt_pk_bf16_f32 v25, v{T2}, v{T2+1}
        v_cvt_pk_bf16_f32 v26, v{T2+2}, v{T2+2}
        v_cvt_pk_bf16_f32 v27, v{T2+2}, v{T2+3}
        v_cvt_pk_bf16_f32 v28, v{T2+1}, v{T2+2}
        """)
        for i in range(4):
            a(f"ds_write_b16 v14, v{20+i} offset:{256*i}")
            a(f"ds_write_b16 v{16 if i == 0 else 15}, v{20+i} offset:{256*i}")
        a(f"""
        s_mov_b32 exec_hi, 0
        ds_write2_b32 v30, v24, v28 offset0:0 offset1:1
        ds_write_b32 v30, v26 offset:8
        ds_write_b16_d16_hi v30, v27 offset:12
        ds_write_b16 v32, v24
        ds_write2_b32 v31, v24, v25 offset0:0 offset1:1
        ds_write2_b32 v31, v26, v27 offset0:2 offset1:3
        s_mov_b32 exec_lo, 0
        s_mov_b32 exec_hi, 1
        ds_write2_b32 v33, v24, v24 offset0:0 offset1:1
        ds_write2_b32 v35, v24, v24 offset0:0 offset1:1
        ds_write_b16 v34, v24
        s_mov_b64 exec, 15
        ds_write_b64 v38, v[40:41]
        ds_write_b64 v38, v[40:41] offset:{K1O}
        s_lshr_b64 exec, -1, 4
        ds_write_b64 v38, v[40:41] offset:{UO}
        s_mov_b64 exec, -1
        ds_write_b64 v36, v[42:43]
        ds_write_b16 v37, v42
        ds_write_b32 v36, v29 offset:{K1O}
        ds_write_b16_d16_hi v37, v43 offset:6
        """)

    def u_gather(self):
        a = self.a
        sc = "sc1" if self.fused else ""
        a(f"""
        v_lshrrev_b32 v2, 2, v0
        v_and_b32 v3, 3, v0
        v_mul_u32_u24 v4, 10240, v2
        v_lshl_add_u32 v4, v3, 4, v4
        s_lshl_b32 s60, s{S_CH0}, 4
        s_add_u32 s60, s60, {XT}
        v_mul_u32_u24 v5, {RSZ}, v3
        v_lshl_add_u32 v5, v2, 4, v5
        v_add_u32 v5, {AUX+UO+UPAD}, v5
        v_cmp_gt_u32 vcc, s{S_NCH}, v3
        s_mov_b64 s[62:63], exec
        s_and_b64 exec, exec, vcc
        """)
        for i in range(16):
            a(f"buffer_load_dwordx4 v[{40+4*i}:{43+4*i}], v4, s[{R_WS}:{R_WS+3}], s60 offen {sc}")
            if i < 15: a(f"s_add_u32 s60, s60, {16*10240}")
        for i in range(16):
            a(f"s_waitcnt vmcnt({14-i})" if i < 15 else "s_nop 7")
            a(f"ds_write_b128 v5, v[{40+4*i}:{43+4*i}] offset:{256*i}")
        a("s_mov_b64 exec, s[62:63]\ns_waitcnt lgkmcnt(0)")

    def conv(self):
        a = self.a
        sc = "sc1" if self.fused else ""
        ACC = 60; OP = [92, 156]
        AB = 220
        first = set()
        def reads(tau):
            s = OP[tau % 2]
            r = []
            for d in range(8):
                r.append(f"ds_read_b128 v[{s+32+4*d}:{s+35+4*d}], v224 offset:{512*d+64*tau}")
                o = 512 * d - 64 * tau + 448
                b = AB + o // 1024; q = (o % 1024) // 4
                r.append(f"ds_read2_b32 v[{s+4*d}:{s+4*d+1}], v{b} offset0:{q} offset1:{q+1}")
                r.append(f"ds_read2_b32 v[{s+4*d+2}:{s+4*d+3}], v{b} offset0:{q+2} offset1:{q+3}")
            return r
        r0 = reads(0)
        for k, ins in enumerate(r0):
            a(ins)
            if k == 12: a("s_waitcnt lgkmcnt(3)")
        for tau in range(8):
            s = OP[tau % 2]
            nxt = reads(tau + 1) if tau < 7 else []
            pairs = sorted([(d, n) for d in range(8) for n in range(8 - d)], key=lambda p: (max(p), p))
            a("s_waitcnt lgkmcnt(0)")
            for k, (d, n) in enumerate(pairs):
                acc = ACC + 4 * (d + n)
                a(f"v_mfma_f32_16x16x32_bf16 v[{acc}:{acc+3}], v[{s+4*d}:{s+4*d+3}], v[{s+32+4*n}:{s+35+4*n}], {f'v[{acc}:{acc+3}]' if acc in first else '0'}")
                first.add(acc)
                if nxt and k < 30 and k % 5 != 4:
                    a(nxt.pop(0))
            assert not nxt
        a(f"""
        s_lshl_b32 s61, s71, 12
        s_add_u32 s61, s61, {ST}
        """)
        for n in range(8):
            acc = ACC + 4 * n; o = 128 + 2 * n
            a(f"""
            v_cvt_pk_bf16_f32 v{o}, v{acc}, v{acc+1}
            v_cvt_pk_bf16_f32 v{o+1}, v{acc+2}, v{acc+3}
            buffer_store_dwordx2 v[{o}:{o+1}], v225, s[{R_WS}:{R_WS+3}], s61 offen offset:{512*n} {sc}
            """)

    G2_ACC = 16; G2_RB = 96; G2_BT = 156; G2_A = 176
    def g2_addr(self):
        self.a(f"""
        v_lshlrev_b32 v9, 4, v0
        v_add_u32 v8, 4096, v9
        s_mul_i32 s74, s{S_CB2}, 245760
        s_mul_i32 s60, s{S_WAVE}, {12*5120}
        s_add_u32 s74, s74, s60
        s_add_u32 s74, s74, {W2F}
        s_mul_i32 s75, s{S_WAVE}, 30720
        """)
    @staticmethod
    def kloc(j):
        return j

    NRB = int(os.environ.get('NRB', '3'))
    def lslot(self, j):
        if self.NRB == 3:
            q = j if j < 6 else j - 9
        else:
            q = (j - 5) % 6
        return q * 5120
    def inreg(self, j):
        return 6 <= j < 9 if self.NRB == 3 else j < 5
    def rbreg(self, j):
        return self.G2_RB + 20 * (j % 3 if self.NRB == 3 else j)
    def a2reg(self, j):
        if self.NRB == 3: return self.G2_A + 16 * (j % 5)
        return [208, 224, 240, 208, 96, 224, 116, 240, 136, 208, 156, 96][j]

    def g2_dma_items(self, j):
        W = f"s[{R_WS}:{R_WS+3}]"
        l0 = self.lslot(j)
        r = []
        for nt in range(5):
            pre = [f"s_add_u32 s81, s74, {5120*self.kloc(j)}"] if nt == 0 else []
            if nt < 4: r.append((pre + [f"s_add_u32 m0, s75, {l0}", f"buffer_load_dwordx4 v9, {W}, s81 offen offset:{1024*nt} sc1 lds"], f"D{j}"))
            else: r.append(([f"s_add_u32 m0, s75, {l0+4096}", f"buffer_load_dwordx4 v8, {W}, s81 offen sc1 lds"], f"D{j}"))
        return r

    def g2_bload_items(self, j):
        W = f"s[{R_WS}:{R_WS+3}]"
        r = []
        for nt in range(5):
            d = self.rbreg(j) + 4 * nt
            pre = [f"s_add_u32 s81, s74, {5120*self.kloc(j)}"] if nt == 0 else []
            if nt < 4: r.append((pre + [f"buffer_load_dwordx4 v[{d}:{d+3}], v9, {W}, s81 offen offset:{1024*nt} sc1"], f"B{j}"))
            else: r.append(([f"buffer_load_dwordx4 v[{d}:{d+3}], v8, {W}, s81 offen sc1"], f"B{j}"))
        return r

    def g2_aload_items(self, j):
        W = f"s[{R_WS}:{R_WS+3}]"
        k = self.kloc(j)
        vo = (9, 8, 13)[k // 4]
        r = []
        for i in range(4):
            d = self.a2reg(j) + 4 * i
            r.append(([f"buffer_load_dwordx4 v[{d}:{d+3}], v{vo}, {W}, s{76+i} offen offset:{1024*(k%4)} sc1"], f"A{j}"))
        return r

    def g2_setup_s(self):
        a = self.a
        for i in range(4):
            a(f"""
            s_add_u32 s60, s{S_WAVE}, {i}
            s_and_b32 s60, s60, 3
            s_lshl_b32 s61, s{S_RB2}, 2
            s_add_u32 s60, s60, s61
            s_mul_i32 s60, s60, 49152
            s_mul_i32 s61, s{S_WAVE}, {12*1024}
            s_add_u32 s60, s60, s61
            s_add_u32 s{76+i}, s60, {HF}
            """)
    def g2_setup_v(self):
        a = self.a
        self.seen = {t for t in self.seen if not t.startswith("A")}
        a(f"v_add_u32 v10, s75, v9\nv_add_u32 v13, 8192, v9")

    def fh_wait(self, tp):
        self.a(f"s_lshl_b32 s66, s{S_WAVE}, 4\ns_add_u32 s66, s66, {M_FH + 64*tp}")
        self.lds_wait_all("s66", 1, f"fhw{tp}", tmp=2)

    def g2_loop(self, hook=None, hook_at=6, fill0=None):
        a = self.a
        big = self.NRB != 3
        seq = [(j, nt) for j in range(9) for nt in range(5)] + [(j, nt) for nt in range(5) for j in range(9, 12)]
        lds = [x for x in seq if not self.inreg(x[0])]
        pos = {x: i for i, x in enumerate(lds)}
        NB = 3 if big else 5
        BT = 196 if big else self.G2_BT
        issued = [0]; lq = []
        def bt_read():
            i = issued[0]
            if i >= len(lds): return
            j, nt = lds[i]
            if nt == 0 or j >= 9: self.vwait(f"D{j}")
            d = BT + 4 * (i % NB)
            a(f"ds_read_b128 v[{d}:{d+3}], v10 offset:{self.lslot(j) + 1024 * nt}")
            lq.append(i); issued[0] += 1
        fill = list(fill0 or [])
        if not big:
            for _ in range(4): bt_read()
        asched = {0: [3, 4], 1: [5, 6], 2: [7, 8], 3: [9, 10], 4: [11]} if big else {j: [j + 5] for j in range(7)}
        wslot = (lambda i: i) if big else (lambda i: i + 2)
        self.wslot = wslot
        wr = []; done = set()
        for (j, nt) in seq:
            if j not in done:
                done.add(j)
                if hook and j == hook_at: hook(); lq.append("x")
                self.stamp(16 + j, q=True)
                self.vwait(f"A{j}")
                if self.inreg(j): self.vwait(f"B{j}")
            if self.inreg(j):
                B = self.rbreg(j) + 4 * nt
            else:
                i = pos[(j, nt)]
                B = BT + 4 * (i % NB)
                k = lq.index(i)
                a(f"s_waitcnt lgkmcnt({len(lq) - 1 - k})"); del lq[:k + 1]
            for i in range(4):
                acc = self.G2_ACC + 16 * nt + 4 * i
                A = self.a2reg(j) + 4 * i
                a(f"v_mfma_f32_16x16x32_bf16 v[{acc}:{acc+3}], v[{B}:{B+3}], v[{A}:{A+3}], {'0' if j == 0 else f'v[{acc}:{acc+3}]'}")
                if fill and i in (0, 2): self.emit(fill.pop(0))
                if i == 1:
                    if big:
                        if j > 4 or nt >= 3 and j == 4: bt_read()
                    elif not self.inreg(j):
                        if not (j == 5 and nt >= 1): bt_read()
                    elif j == 8 and nt >= 1: bt_read()
                if i == 3 and wr:
                    a(wr.pop(0)); lq.append("w")
            if j == 11:
                wr += [f"ds_write_b128 v10, v[{self.G2_ACC+16*nt+4*i}:{self.G2_ACC+16*nt+4*i+3}] offset:{5120*wslot(i)+1024*nt}" for i in range(1, 4)]
            if nt == 4 and j < 9:
                fill = sum((self.g2_aload_items(jj) for jj in asched.get(j, [])), []) + fill
                if big:
                    if j == 5: fill += self.g2_dma_items(11)
                elif j < 3: fill += self.g2_dma_items(j + 9)
        assert not fill
        for x in wr: a(x)

    def svc_x_loads(self):
        a = self.a
        a(f"""
        s_mul_i32 s60, s{S_RB2}, {64*1280}
        s_mul_i32 s61, s{S_CB2}, 160
        s_add_u32 s60, s60, s61
        """)
        for i in range(10):
            a(f"""
            v_add_u32 v2, {64*i}, v0
            v_mul_u32_u24 v3, 52429, v2
            v_lshrrev_b32 v3, 19, v3
            v_mul_u32_u24 v4, 10, v3
            v_sub_u32 v4, v2, v4
            v_lshlrev_b32 v4, 4, v4
            v_mad_u32_u24 v{184+i}, v3, s97, v4
            v_mul_u32_u24 v3, 1280, v3
            v_add_u32 v3, v3, v4
            buffer_load_dwordx4 v[{140+4*i}:{143+4*i}], v3, s[{R_X}:{R_X+3}], s60 offen
            """.replace("s97", "s67") if False else f"""
            v_add_u32 v2, {64*i}, v0
            v_mul_u32_u24 v3, 52429, v2
            v_lshrrev_b32 v3, 19, v3
            v_mul_u32_u24 v4, 10, v3
            v_sub_u32 v4, v2, v4
            v_lshlrev_b32 v4, 4, v4
            v_mul_u32_u24 v5, {XRS}, v3
            v_add_u32 v{184+i}, v5, v4
            v_mul_u32_u24 v3, 1280, v3
            v_add_u32 v3, v3, v4
            buffer_load_dwordx4 v[{140+4*i}:{143+4*i}], v3, s[{R_X}:{R_X+3}], s60 offen
            """)
        a(f"""
        v_min_u32 v2, 39, v0
        v_lshlrev_b32 v2, 2, v2
        v_add_u32 v2, s61, v2
        global_load_dword v180, v2, s[{P_B2}:{P_B2+1}]
        """)

    def svc_x_write(self):
        a = self.a
        for i in range(10):
            a(f"v_add_u32 v{184+i}, {XI}, v{184+i}")
        for i in range(10):
            a(f"ds_write_b128 v{184+i}, v[{140+4*i}:{143+4*i}]")
        a(f"""
        v_lshlrev_b32 v182, 16, v180
        v_and_b32 v183, 0xffff0000, v180
        v_min_u32 v2, 39, v0
        v_lshlrev_b32 v2, 3, v2
        v_add_u32 v2, {M_B2}, v2
        ds_write_b64 v2, v[182:183]
        """)

    def s_tile_dma(self):
        a = self.a
        sc = "sc1" if self.fused else ""
        a(f"""
        v_lshrrev_b32 v2, 3, v0
        v_and_b32 v3, 7, v0
        v_lshlrev_b32 v2, 12, v2
        v_lshl_add_u32 v2, v3, 4, v2
        s_mul_i32 s60, s{S_CB2}, {80*4096}
        s_lshl_b32 s61, s{S_RB2}, 7
        s_add_u32 s60, s60, s61
        s_add_u32 s60, s60, {ST}
        """)
        for t in range(10):
            a(f"s_mov_b32 m0, {AUX+1024*t}")
            a(f"buffer_load_dwordx4 v2, s[{R_WS}:{R_WS+3}], s60 offen {sc} lds")
            if t < 9: a(f"s_add_u32 s60, s60, {8*4096}")
        self.svc_x_write()
        a("s_waitcnt vmcnt(0) lgkmcnt(0)")

    def g2_final(self):
        a = self.a
        ACC = self.G2_ACC
        self.srd(R_OUT, P_OUT, 2621440)
        for i in range(1, 4):
            a(f"""
            s_sub_u32 s60, s{S_WAVE}, {i}
            s_and_b32 s60, s60, 3
            s_mul_i32 s60, s60, 30720
            s_add_u32 s60, s60, {5120*self.wslot(i)}
            v_add_u32 v{4+i}, s60, v9
            """)
        a(f"""
        v_and_b32 v2, 15, v0
        v_lshrrev_b32 v3, 4, v0
        v_lshrrev_b32 v12, 2, v2
        v_lshl_add_u32 v12, v3, 2, v12
        v_lshlrev_b32 v12, 7, v12
        v_and_b32 v15, 3, v0
        v_lshl_add_u32 v12, v15, 3, v12
        s_lshl_b32 s60, s{S_WAVE}, 5
        s_add_u32 s60, s60, {AUX}
        v_add_u32 v12, s60, v12
        s_mul_i32 s60, s{S_WAVE}, {16*XRS}
        s_add_u32 s60, s60, {XI}
        v_mul_u32_u24 v11, {XRS}, v2
        v_lshl_add_u32 v11, v3, 3, v11
        v_add_u32 v11, s60, v11
        v_lshlrev_b32 v13, 4, v3
        v_add_u32 v13, {M_B2}, v13
        v_mov_b32 v250, 1.0
        v_mov_b32 v251, 1.0
        v_mov_b32 v252, 0xbfb8aa3b
        s_lshl_b32 s80, s{S_RB2}, 2
        s_add_u32 s80, s80, s{S_WAVE}
        s_mul_i32 s80, s80, {16*1280}
        s_mul_i32 s61, s{S_CB2}, 160
        s_add_u32 s80, s80, s61
        """)
        for i in range(3):
            a(f"""
            v_add_u32 v2, {64*i}, v0
            v_mul_u32_u24 v3, 52429, v2
            v_lshrrev_b32 v3, 19, v3
            v_mul_u32_u24 v4, 10, v3
            v_sub_u32 v4, v2, v4
            v_lshlrev_b32 v4, 4, v4
            v_mul_u32_u24 v2, {XRS}, v3
            v_add3_u32 v{240+i}, v2, v4, s60
            v_mul_u32_u24 v3, 1280, v3
            v_add_u32 v{243+i}, v3, v4
            """)
        a("s_waitcnt lgkmcnt(0)\ns_barrier")
        P = 96
        def reads(nt):
            p = P + 20 * nt
            for i in range(1, 4):
                a(f"ds_read_b128 v[{p+4*(i-1)}:{p+4*(i-1)+3}], v{4+i} offset:{1024*nt}")
            a(f"ds_read_b128 v[{p+12}:{p+15}], v13 offset:{64*nt}")
            a(f"ds_read_b64_tr_b16 v[{p+16}:{p+17}], v12 offset:{2048*nt}")
            a(f"ds_read_b64 v[{p+18}:{p+19}], v11 offset:{32*nt}")
        reads(0); reads(1)
        Pp = lambda r: f"v[{r}:{r+1}]"
        for nt in range(5):
            acc = ACC + 16 * nt; p = P + 20 * nt; t = 200 + 12 * (nt % 2)
            a(f"s_waitcnt lgkmcnt({6 if nt < 4 else 1})" if nt != 0 else "s_waitcnt lgkmcnt(6)")
            a(f"""
            v_pk_add_f32 {Pp(acc)}, {Pp(acc)}, {Pp(p)}
            v_pk_add_f32 {Pp(acc+2)}, {Pp(acc+2)}, {Pp(p+2)}
            v_pk_add_f32 {Pp(p+4)}, {Pp(p+4)}, {Pp(p+8)}
            v_pk_add_f32 {Pp(p+6)}, {Pp(p+6)}, {Pp(p+10)}
            v_pk_add_f32 {Pp(acc)}, {Pp(acc)}, {Pp(p+12)}
            v_pk_add_f32 {Pp(acc+2)}, {Pp(acc+2)}, {Pp(p+14)}
            v_pk_add_f32 {Pp(acc)}, {Pp(acc)}, {Pp(p+4)}
            v_pk_add_f32 {Pp(acc+2)}, {Pp(acc+2)}, {Pp(p+6)}
            v_pk_mul_f32 {Pp(t)}, {Pp(acc)}, v[252:253] op_sel_hi:[1,0]
            v_pk_mul_f32 {Pp(t+2)}, {Pp(acc+2)}, v[252:253] op_sel_hi:[1,0]
            """)
            for i in range(4): a(f"v_exp_f32 v{t+i}, v{t+i}")
            if nt + 2 < 5: reads(nt + 2)
            a(f"""
            v_lshlrev_b32 v{t+4}, 16, v{p+16}
            v_and_b32 v{t+5}, 0xffff0000, v{p+16}
            v_lshlrev_b32 v{t+6}, 16, v{p+17}
            v_and_b32 v{t+7}, 0xffff0000, v{p+17}
            v_pk_add_f32 {Pp(t)}, {Pp(t)}, v[250:251]
            v_pk_add_f32 {Pp(t+2)}, {Pp(t+2)}, v[250:251]
            """)
            for i in range(4): a(f"v_rcp_f32 v{t+i}, v{t+i}")
            a(f"""
            v_pk_mul_f32 {Pp(t+4)}, {Pp(t+4)}, {Pp(acc)}
            v_pk_mul_f32 {Pp(t+6)}, {Pp(t+6)}, {Pp(acc+2)}
            v_lshlrev_b32 v{t+8}, 16, v{p+18}
            v_and_b32 v{t+9}, 0xffff0000, v{p+18}
            v_lshlrev_b32 v{t+10}, 16, v{p+19}
            v_and_b32 v{t+11}, 0xffff0000, v{p+19}
            v_pk_fma_f32 {Pp(t+8)}, {Pp(t+4)}, {Pp(t)}, {Pp(t+8)}
            v_pk_fma_f32 {Pp(t+10)}, {Pp(t+6)}, {Pp(t+2)}, {Pp(t+10)}
            v_cvt_pk_bf16_f32 v{p+18}, v{t+8}, v{t+9}
            v_cvt_pk_bf16_f32 v{p+19}, v{t+10}, v{t+11}
            ds_write_b64 v11, v[{p+18}:{p+19}] offset:{32*nt}
            """)
        osc = os.environ.get('OSC', '')
        a(f"""
        ds_read_b128 v[224:227], v240
        ds_read_b128 v[228:231], v241
        s_mov_b32 exec_hi, 0
        ds_read_b128 v[232:235], v242
        s_mov_b64 exec, -1
        s_waitcnt lgkmcnt(1)
        buffer_store_dwordx4 v[224:227], v243, s[{R_OUT}:{R_OUT+3}], s80 offen {osc}
        s_waitcnt lgkmcnt(0)
        buffer_store_dwordx4 v[228:231], v244, s[{R_OUT}:{R_OUT+3}], s80 offen {osc}
        s_mov_b32 exec_hi, 0
        buffer_store_dwordx4 v[232:235], v245, s[{R_OUT}:{R_OUT+3}], s80 offen {osc}
        s_mov_b64 exec, -1
        """)

    def misc_init(self):
        self.a(f"""
        v_lshlrev_b32 v2, 2, v0
        v_add_u32 v2, {MISC}, v2
        v_mov_b32 v3, 0
        ds_write_b32 v2, v3
        """)


HEADER = open("cdna_kernels/" + NAME + ".s.ref").read().split("; Override launch")[0]

def kernel_text(label, body):
    return f""".text
.globl {label}
.p2align 8
.type {label},@function
{label}:
{body}
"""
def desc(label, vgpr=256):
    return f""".section .rodata,"a"
.p2align 6
.amdhsa_kernel {label}
  .amdhsa_next_free_vgpr {vgpr}
  .amdhsa_next_free_sgpr 102
  .amdhsa_accum_offset {vgpr}
  .amdhsa_group_segment_fixed_size 0
  .amdhsa_kernarg_size 120
  .amdhsa_user_sgpr_count 2
  .amdhsa_user_sgpr_kernarg_segment_ptr 1
  .amdhsa_system_sgpr_workgroup_id_x 1
.end_amdhsa_kernel
"""
```

```python
import sys, os
from parts import *
E = lambda k, d=0: int(os.environ.get(k, d))

class Fused(Gen):
    def cnt_add(self, addr, rtn=False):
        self.a(f"""
        v_mov_b32 v2, {addr}
        v_mov_b32 v3, 1
        s_mov_b64 exec, 1
        {'ds_add_rtn_u32 v4, v2, v3' if rtn else 'ds_add_u32 v2, v3'}
        s_mov_b64 exec, -1
        """)

    def cnt_wait(self, addr, n, name, sleep=0):
        lab = self.L(name)
        self.a(f"""
        v_mov_b32 v2, {addr}
        s_mov_b32 s61, 0
        {lab}:
        ds_read_b32 v3, v2
        s_add_u32 s61, s61, 1
        s_waitcnt lgkmcnt(0)
        v_readfirstlane_b32 s60, v3
        s_cmp_gt_u32 s61, 0x100000
        s_cbranch_scc1 {lab}_d
        s_cmp_ge_u32 s60, {n}
        s_cbranch_scc1 {lab}_d
        {'s_sleep %d' % sleep if sleep else ''}
        s_branch {lab}
        {lab}_d:
        """)

    def build_fused(self):
        a = self.a
        L = self.L
        st = 2 if self.stamps else 0
        N0 = E('N0', 8)
        slp = ('s_sleep %d' % PSLEEP) if PSLEEP else ''
        GE = E('GE', 1); NA = E('NA', 0); GL = E('GL', 0); GS = 40 - 4 * GE - 3 * NA - 3 * GL
        def aux_dma(p):
            if NA == 0: return
            self.w1_addr(12)
            a(f"s_add_u32 s68, s70, {GS}\n{L('adl' + p)}:")
            self.w1_group(12)
            a(f"s_add_u32 s68, s68, 3\ns_cmp_lt_u32 s68, {GS + 3 * NA}\ns_cbranch_scc1 {L('adl' + p)}")
        a(f"{L('start')}:")
        self.prologue()
        self.stamp(0)
        if 0 in self.sel:
            a(f"v_mov_b32 v1, s94\ns_mov_b64 exec, 1\nbuffer_store_dword v1, off, s[{R_WS}:{R_WS+3}], s100 offset:124\ns_mov_b64 exec, -1")
        a(f"s_cmp_ge_u32 s{S_WAVE}, 4\ns_cbranch_scc1 {L('aux0')}")
        a(f"s_setprio {E('GP', 2)}")
        self.ln_loads()
        a(f"s_branch {L('gemm')}\n{L('aux0')}:")
        a.clear_hist()
        a(f"s_sub_u32 s60, s{S_WAVE}, 4\ns_cmp_ge_u32 s60, s{S_NCH}\ns_cbranch_scc1 {L('aux1')}")
        a("s_setprio 3")
        self.kg_loads()
        a(f"s_branch {L('kg')}\n{L('aux1')}:")
        a(f"s_cmp_lg_u32 s{S_WAVE}, 7\ns_cbranch_scc1 {L('noch')}")
        a(f"s_setprio {E('SP', 1)}")
        self.w1_addr(12)
        a(f"""
        s_cmp_lt_u32 s{S_NCH}, 3
        s_cselect_b32 s66, {GS - E('H6', 0)}, {GS}
        s_mul_i32 s68, s{S_RB}, s66
        s_lshr_b32 s68, s68, 4
        s_mov_b32 s67, s66
        s_sub_u32 s65, s66, 1
        {L('sdl')}:
        """)
        self.w1_group(12)
        a(f"""
        s_add_u32 s68, s68, 1
        s_cmp_eq_u32 s68, s66
        s_cselect_b32 s68, 0, s68
        s_cmp_lg_u32 s67, s65
        s_cbranch_scc1 {L('sdw')}
        """)
        self.srd(R_OUT, P_OUT, 2621440)
        a(f"""
        v_lshlrev_b32 v3, 20, v0
        s_mov_b32 exec_hi, 0
        buffer_load_dword v131, v3, s[{R_WS}:{R_WS+3}], 0 offen
        buffer_load_dword v132, v3, s[{R_OUT}:{R_OUT+3}], 0 offen
        s_mov_b64 exec, -1
        {L('sdw')}:
        s_sub_u32 s67, s67, 1
        s_cmp_lg_u32 s67, 0
        s_waitcnt vmcnt({E('DEPTH', 45)})
        s_cbranch_scc1 {L('sdl')}
        s_branch {L('svc')}
        {L('gemm')}:
        """)
        a.clear_hist()
        self.w1_addr(92)
        self.g1_b1_loads()
        a(f"s_add_u32 s68, s{S_WAVE}, {GS + 3 * NA}")
        for i in range(GE):
            self.w1_group(92)
            if i + 1 < GE: a("s_add_u32 s68, s68, 4")
        self.ln_pub_addr()
        a(f"s_waitcnt vmcnt({6 + 3 * GE})")
        self.stamp(1)
        self.ln_math()
        a("s_waitcnt lgkmcnt(0)")
        self.lds_set(M_LNW, S_WAVE, tmp=(2, 3))
        self.lds_wait_all(M_LNW, 4, "lnw4", tmp=2, sleep=0)
        a(f"v_mov_b32 v97, 0\nv_mov_b32 v96, 0\ns_cmp_lg_u32 s{S_WAVE}, 0\ns_cbranch_scc1 {L('g_n0')}")
        a(f"global_load_dword v96, v97, s[{P_DBG}:{P_DBG+1}] sc1\n{L('g_n0')}:")
        self.ln_publish()
        XS = E('XS', 1)
        if not XS: self.ln_publish_xt()
        self.stamp(13)
        if not XS: self.cnt_add(M_LNCNT + 8)
        if E('RG'): self.cnt_add(M_PD + 4)
        a(f"s_waitcnt vmcnt({(3 if XS else 6) + (1 if 13 in self.sel else 0)})")
        self.cnt_add(M_LNCNT + 12)
        self.g1_prep()
        self.g2_addr()
        a("s_waitcnt vmcnt(0)")
        self.stamp(2)
        a(f"s_cmp_eq_u32 s{S_WAVE}, 0\ns_cbranch_scc1 {L('g_w0')}")
        self.cnt_add(M_LNCNT)
        if GL:
            a(f"s_add_u32 s68, s{S_WAVE}, {40 - 3 * GL - 1}")
            for i in range(GL):
                self.w1_group(92)
                if i + 1 < GL: a("s_add_u32 s68, s68, 3")
            a("s_waitcnt vmcnt(0)")
            self.cnt_add(M_LNCNT + 12)
        a(f"s_branch {L('g_j')}\n{L('g_w0')}:")
        a(f"""
        s_mov_b32 s64, 0
        {L('np')}:
        v_readfirstlane_b32 s{S_NONCE}, v96
        s_cmp_gt_u32 s64, 0x8000
        s_cbranch_scc1 {L('npd')}
        s_cmp_lg_u32 s{S_NONCE}, 0
        s_cbranch_scc1 {L('npd')}
        global_load_dword v96, v97, s[{P_DBG}:{P_DBG+1}] sc1
        s_add_u32 s64, s64, 1
        s_waitcnt vmcnt(0)
        s_nop 1
        s_branch {L('np')}
        {L('npd')}:
        v_mov_b32 v2, s{S_NONCE}
        v_mov_b32 v3, {M_NONCE}
        ds_write_b32 v3, v2
        v_mov_b32 v3, {M_LNCNT}
        s_mov_b32 s64, 0
        {L('lc')}:
        ds_read_b32 v2, v3
        s_add_u32 s64, s64, 1
        s_waitcnt lgkmcnt(0)
        v_readfirstlane_b32 s60, v2
        s_cmp_gt_u32 s64, 0x100000
        s_cbranch_scc1 {L('lcd')}
        s_cmp_lt_u32 s60, 3
        s_cbranch_scc1 {L('lc')}
        {L('lcd')}:
        s_mul_i32 s66, s{S_LID}, {FSTR}
        s_add_u32 s66, s66, {FLN}
        """)
        self.store_flag(66)
        self.stamp(10)
        a(f"{L('g_j')}:")
        if XS:
            self.ln_publish_xt()
            self.cnt_add(M_LNCNT + 8)
        self.get_nonce("gn", tmp=2)
        a(f"s_lshl_b32 s66, s{S_RB}, 2\ns_add_u32 s66, s66, s{S_WAVE}\ns_mul_i32 s66, s66, {4*FSTR}\ns_add_u32 s66, s66, {FLN}")
        def flt(p, wait):
            a(f"s_cmp_lg_u32 s71, 0\ns_cbranch_scc1 {L('flt' + p)}\ns_mov_b32 s71, 1")
            wait()
            self.cnt_add(M_HC + 4, rtn=True)
            a(f"""
            s_mul_i32 s65, s{S_LID}, {FSTR}
            s_add_u32 s65, s65, {FLT}
            s_waitcnt lgkmcnt(0)
            s_nop 1
            v_readfirstlane_b32 s60, v4
            s_cmp_lg_u32 s60, 3
            s_cbranch_scc1 {L('flt' + p)}
            v_mov_b32 v2, s{S_NONCE}
            s_mov_b64 exec, 1
            buffer_store_dword v2, off, s[{R_WS}:{R_WS+3}], s65 sc1
            s_mov_b64 exec, -1
            {L('flt' + p)}:
            """)
        a("s_mov_b32 s71, 0")
        self.spoll("pln", 66, FSTR, E('SS', 1), n=4, miss=(lambda: flt("a", lambda: a("s_waitcnt vmcnt(0)"))) if XS else None)
        self.stamp(3)
        self.vq = ["XT"]; self.seen.add("XT")
        for ks in range(2):
            for it in self.g1_aload(ks): self.emit(it)
        if XS: flt("b", lambda: a("s_waitcnt vmcnt(4)"))
        for ks in range(2, N0):
            for it in self.g1_aload(ks): self.emit(it)
        self.cnt_add(M_LN)
        if E('H6', 0):
            a(f"s_cmp_lt_u32 s{S_NCH}, 3\ns_cselect_b32 s65, 6, 5")
            self.cnt_wait(M_LNCNT + 12, "s65", "w1w")
        else: self.cnt_wait(M_LNCNT + 12, 5 + (3 if NA else 0) + (3 if GL else 0), "w1w")
        self.stamp(4, q=True)
        self.pubn = ''
        def publish(p):
            self.vwait("S")
            self.cnt_add(M_HC + 4 * p, rtn=True)
            a(f"""
            s_mul_i32 s66, s{S_LID}, {FHS}
            s_add_u32 s66, s66, {FH + 256 * FHS * p}
            s_waitcnt lgkmcnt(0)
            s_nop 1
            v_readfirstlane_b32 s60, v4
            s_cmp_lg_u32 s60, 3
            s_cbranch_scc1 {L('nofh%d%s' % (p, self.pubn))}
            """)
            self.store_flag(66)
            if p == 0: self.lds_set(M_HP, None, tmp=(2, 3))
            a(f"{L('nofh%d%s' % (p, self.pubn))}:")
            self.stamp(28 + p, q=True)
            self.vq.append("f")
            self.vq.pop()
        def cnt_wait(addr, n, name):
            lab = L(name)
            a(f"""
            v_mov_b32 v2, {addr}
            s_mov_b32 s61, 0
            {lab}:
            ds_read_b32 v3, v2
            s_add_u32 s61, s61, 1
            s_waitcnt lgkmcnt(0)
            v_readfirstlane_b32 s60, v3
            s_cmp_gt_u32 s61, 0x100000
            s_cbranch_scc1 {lab}_d
            s_cmp_lt_u32 s60, {n}
            s_cbranch_scc1 {lab}
            {lab}_d:
            """)
        def ev_rb():
            self.lds_wait_all(M_FW, 1, "fww", tmp=2)
            return sum((self.g2_bload_items(j) for j in range(12) if self.inreg(j)), [])
        ev = {10: lambda: self.stamp(14, q=True)}
        RB1 = E('RB1', 11)
        if RB1 < 20: ev[RB1] = ev_rb
        self.g2_setup_s()
        fa, fv = self.g1_loop(N0, ev, TL=E('TL', 5))
        self.cnt_add(M_PD)
        self.stamp(5, q=True)
        for it in fa + self.epi_ops(2) + fv[:E('FV', 4)]: self.emit(it)
        fv = fv[E('FV', 4):]
        self.stamp(15, q=True)
        self.g2_setup_v()
        ND = 0
        publish(0)
        rest = ev_rb() if RB1 >= 20 else []
        for it in fv: self.emit(it)
        cnt_wait(M_PD, 4, "pdw")
        if E('PF'): a("s_setprio 0")
        for j in (range(6) if self.NRB == 3 else range(5, 11)):
            for it in self.g2_dma_items(j): self.emit(it)
        for it in rest: self.emit(it)
        self.stamp(6, q=True)
        a(f"s_lshr_b32 s66, s{S_RB2}, 1\ns_lshl_b32 s66, s66, 2\ns_add_u32 s66, s66, s{S_WAVE}\ns_mul_i32 s66, s66, {4*FHS}\ns_add_u32 s66, s66, {FH}")
        self.spoll("pfh", 66, FHS, E('SS', 1), n=4)
        NF2 = E('NF2', 2)
        for j in range(NF2):
            for it in self.g2_aload_items(j): self.emit(it)
        self.stamp(7, q=True)
        self.g2_loop(hook=lambda: self.lds_set(M_J6, None, tmp=(2, 3)), hook_at=E('J6', 6), fill0=sum((self.g2_aload_items(j) for j in range(NF2, 5 if self.NRB == 3 else 3)), []))
        self.stamp(8)
        if E('PF'): a("s_setprio 2")
        self.g2_final()
        if 9 in self.sel: a("s_waitcnt vmcnt(0)")
        self.stamp(9)
        if E('KX'):
            a(f"""
            s_waitcnt vmcnt(0)
            s_memrealtime s[62:63]
            s_waitcnt lgkmcnt(0)
            s_sub_u32 s60, s62, s{S_NONCE}
            s_min_u32 s60, s60, 10000
            s_mul_i32 s60, s60, {E('KX')}
            {L('kx')}:
            s_memrealtime s[62:63]
            s_waitcnt lgkmcnt(0)
            s_sub_u32 s61, s62, s{S_NONCE}
            s_cmp_lt_u32 s61, s60
            s_cbranch_scc1 {L('kx')}
            """)
        self.dg_end(0)
        self.role = 'c'
        a(f"s_endpgm\n{L('kg')}:")
        a.clear_hist()
        self.kg_setup()
        a("s_waitcnt vmcnt(4)\ns_setprio 0")
        self.stamp(1)
        if E('X1'):
            self.get_nonce("x1n", tmp=2)
            self.lds_set(M_CD, 70, tmp=(2, 3))
            a(f"s_mul_i32 s66, s71, {FSTR}\ns_add_u32 s66, s66, {FS}")
            self.store_flag(66)
            a("s_endpgm")
        def khook():
            a(f"s_cmp_lg_u32 s73, 2\ns_cbranch_scc1 {L('kh')}\ns_waitcnt vmcnt(0)")
            self.cnt_add(M_LNCNT + 12)
            a(f"{L('kh')}:")
        self.kgen()
        self.stamp(3)
        self.expand()
        self.stamp(2)
        self.get_nonce("cn", tmp=2)
        self.lds_wait_all(M_U, 1, "uw", tmp=2)
        self.stamp(4)
        if E('CW'):
            lab = L("cw")
            a(f"""
            v_mov_b32 v2, {M_PD + 4 * (E('CW') - 1)}
            s_mov_b32 s61, 0
            {lab}:
            ds_read_b32 v3, v2
            s_add_u32 s61, s61, 1
            s_waitcnt lgkmcnt(0)
            v_readfirstlane_b32 s60, v3
            s_cmp_gt_u32 s61, 0x100000
            s_cbranch_scc1 {lab}_d
            s_cmp_ge_u32 s60, 4
            s_cbranch_scc1 {lab}_d
            s_sleep 2
            s_branch {lab}
            {lab}_d:
            """)
        if E('PF'): a("s_setprio 1")
        self.conv()
        self.lds_set(M_CD, 70, tmp=(2, 3))
        self.stamp(5)
        a(f"s_mul_i32 s66, s71, {FSTR}\ns_add_u32 s66, s66, {FS}\ns_waitcnt vmcnt(0)")
        self.store_flag(66)
        self.stamp(6)
        a(f"s_endpgm\n{L('noch')}:")
        a.clear_hist()
        a(f"s_sub_u32 s70, s{S_WAVE}, 4")
        aux_dma("b")
        a(f"s_cmp_eq_u32 s{S_WAVE}, 6\ns_cbranch_scc1 {L('rt')}\ns_waitcnt vmcnt(0)")
        if NA: self.cnt_add(M_LNCNT + 12)
        a(f"s_cmp_lg_u32 s{S_WAVE}, 4\ns_cbranch_scc1 {L('end')}")
        self.cnt_wait(M_LNCNT + 8, 4, "agw", sleep=2)
        self.get_nonce("an", tmp=2)
        a(f"s_lshl_b32 s67, s{S_XCD}, 1\ns_add_u32 s67, s67, s{S_IDX}\ns_sub_u32 s67, s67, 30\ns_mul_i32 s66, s67, {16*FSTR}\ns_add_u32 s66, s66, {FLT if E('XS', 1) else FLN}")
        self.spoll("plt", 66, FSTR, 2)
        a(f"""
        s_mul_i32 s66, s67, {FSTR}
        s_add_u32 s66, s66, {FL2}
        v_mul_u32_u24 v2, {16*FSTR}, v0
        v_mov_b32 v3, s{S_NONCE}
        s_mov_b64 exec, 0xffff
        buffer_store_dword v3, v2, s[{R_WS}:{R_WS+3}], s66 offen sc1
        s_mov_b64 exec, -1
        """)
        self.stamp(8)
        a(f"s_endpgm\n{L('rt')}:")
        H6 = E('H6', 0)
        self.w2_loads()
        if H6:
            self.w1_addr(12)
            a(f"s_mov_b32 s68, {GS - H6}\n{L('h6l')}:")
            self.w1_group(12)
            a(f"s_add_u32 s68, s68, 1\ns_cmp_lt_u32 s68, {GS}\ns_cbranch_scc1 {L('h6l')}")
        a(f"s_waitcnt vmcnt({3 * H6})")
        self.cnt_wait(M_PD + 4 if E('RG') else M_LNCNT + 8, 4, "rtw", sleep=2)
        a("s_setprio 3")
        self.w2_retile(mid=(lambda: (a("s_waitcnt vmcnt(10)"), self.cnt_add(M_LNCNT + 12))) if H6 else None)
        a(f"""
        v_mov_b32 v3, 0
        s_mov_b32 s64, 0
        {L('wn')}:
        global_load_dword v2, v3, s[{P_DBG}:{P_DBG+1}] sc1
        s_add_u32 s64, s64, 1
        s_waitcnt vmcnt(0)
        s_nop 1
        v_readfirstlane_b32 s{S_NONCE}, v2
        s_cmp_gt_u32 s64, 0x8000
        s_cbranch_scc1 {L('wnd')}
        s_cmp_eq_u32 s{S_NONCE}, 0
        s_cbranch_scc1 {L('wn')}
        {L('wnd')}:
        """)
        a(f"""
        s_mul_i32 s66, s43, {FSTR}
        s_add_u32 s66, s66, {FWR}
        v_mul_u32_u24 v2, {96*FSTR}, v0
        v_mov_b32 v3, s{S_NONCE}
        s_mov_b64 exec, 0xff
        s_waitcnt vmcnt(0)
        buffer_store_dword v3, v2, s[{R_WS}:{R_WS+3}], s66 offen sc1
        s_mov_b64 exec, -1
        """)
        self.stamp(7)
        a(f"s_endpgm\n{L('svc')}:")
        a.clear_hist()
        self.role = 's'
        a("s_waitcnt vmcnt(0)")
        self.cnt_add(M_LNCNT + 12)
        a("s_setprio 3")
        self.stamp(2)
        self.get_nonce("sn", tmp=2)
        def fwp():
            a(f"s_lshr_b32 s66, s{S_CB2}, 2\ns_mul_i32 s66, s66, {FSTR}\ns_add_u32 s66, s66, {FW}")
            if E('L2P', 0):
                a(f"s_mov_b32 s66, {FW}")
                self.poll_flags("pfw", 66, 48, nloads=2, istride=48*FSTR)
            else:
                self.poll_flags("pfw", 66, 48, lstride=2*FSTR)
            self.lds_set(M_FW, None, tmp=(2, 3))
            if E('L2P', 0):
                a(f"s_mul_i32 s60, s{S_IDX}, {480*128}\ns_add_u32 s60, s60, {W2F}\nv_lshlrev_b32 v2, 7, v0")
                for i in range(8):
                    if i == 7: a("s_mov_b32 exec_hi, 0")
                    a(f"buffer_load_dword v{200+i}, v2, s[{R_WS}:{R_WS+3}], s60 offen sc1\ns_add_u32 s60, s60, 8192")
                a("s_mov_b64 exec, -1")
            self.stamp(5)
        a(f"s_mul_i32 s66, s{S_XCD}, {96*FSTR}\ns_lshr_b32 s60, s{S_CB2}, 2\ns_mul_i32 s60, s60, {FSTR}\ns_add_u32 s66, s66, s60\ns_add_u32 s66, s66, {FWR}")
        a("s_mov_b32 s67, s66")
        self.cnt_wait(M_LN, 4, "slw", sleep=1)
        if E('W4D'): a(f"s_sleep {E('W4D')}")
        CP = E('CP')
        if not CP or E('FE'):
            self.poll_flags("pfw", 67, 48, lstride=2*FSTR)
            self.lds_set(M_FW, None, tmp=(2, 3))
            self.stamp(5)
        def cpoll(name, first):
            a(f"""
            v_mul_u32_u24 v2, {FSTR}, v0
            s_sub_u32 s60, s67, {32*FSTR}
            v_lshlrev_b32 v4, 1, v2
            v_add_u32 v4, s60, v4
            s_and_b32 s60, s2, 15
            s_mul_i32 s60, s60, {16*FSTR}
            s_add_u32 s60, s60, {FL2}
            v_add_u32 v2, s60, v2
            v_cmp_gt_u32 vcc, 16, v0
            v_cndmask_b32 v2, v4, v2, vcc
            v_mov_b32 v4, {M_FW}
            {'' if first else 's_lshl_b64 exec, -1, 16'}
            s_mov_b32 s64, 0
            {L(name)}:
            buffer_load_dword v3, v2, s[{R_WS}:{R_WS+3}], 0 offen sc1
            s_add_u32 s64, s64, 1
            s_waitcnt vmcnt(0)
            v_cmp_ne_u32 vcc, s{S_NONCE}, v3
            s_cmp_gt_u32 s64, 0x8000
            s_cselect_b64 s[60:61], 0, vcc
            s_lshr_b64 s[62:63], s[60:61], 16
            s_cmp_eq_u64 s[62:63], 0
            s_cselect_b32 s65, 1, 0
            v_mov_b32 v3, s65
            ds_write_b32 v4, v3
            {'s_and_b32 s60, s60, 0xffff' if first else 's_xor_b32 s60, s65, 1'}
            s_cmp_eq_u32 s60, 0
            s_cbranch_scc1 {L(name)}_d
            s_sleep {E('CSL', 3)}
            s_branch {L(name)}
            {L(name)}_d:
            s_mov_b64 exec, -1
            """)
        a("s_mov_b32 s65, 0")
        if E('W3D'): a(f"s_sleep {E('W3D')}")
        a(f"s_cmp_eq_u32 s{S_NCH}, 0\ns_cbranch_scc1 {L('nou')}")
        a(f"s_and_b32 s66, s2, 15\ns_mul_i32 s66, s66, {16*FSTR}\ns_add_u32 s66, s66, {FL2}")
        if CP and not E('FE'): cpoll("pla", True)
        elif E('L2V'): self.poll_flags("pla", 66, 16)
        else: self.spoll("pla", 66, FSTR, E('CSL', 3))
        self.stamp(3)
        self.u_gather()
        self.lds_set(M_U, None, tmp=(2, 3))
        a(f"{L('nou')}:")
        self.stamp(4)
        if CP and not E('FE'):
            a(f"s_cmp_lg_u32 s65, 0\ns_cbranch_scc1 {L('fwok')}")
            cpoll("plb", False)
            a(f"{L('fwok')}:")
        self.svc_x_loads()
        self.stamp(6)
        self.lds_wait_all(M_J6, 1, "j6w", tmp=2)
        a(f"s_mul_i32 s66, s{S_CB2}, {80*FSTR}\ns_add_u32 s66, s66, {FS}")
        self.poll_flags("pfs", 66, 40, nloads=2, istride=40*FSTR)
        a(f"s_cmp_eq_u32 s{S_NCH}, 0\ns_cbranch_scc1 {L('nocd')}")
        self.lds_wait_all(M_CD, 2, "cdw", tmp=2)
        a(f"{L('nocd')}:")
        self.stamp(7)
        self.s_tile_dma()
        self.stamp(8)
        a("s_barrier")
        self.dg_end(7)
        a(f"{L('end')}:\ns_endpgm")

if __name__ == "__main__":
    path = sys.argv[1]
    opts = sys.argv[2:]
    g = Fused("fused", "stamps" in opts)
    g.sel = set(range(32)) if "stamps" in opts else ({0, 9} | {int(x) for x in os.environ.get("SEL", "").split(",") if x} if "mins" in opts else set())
    g.build_fused()
    lab = NAME + "_kernel"
    txt = HEADER + f"; @launch grid=(256,1,1) block=(512,1,1) lds={LDS_TOTAL}\n" + '.amdgcn_target "amdgcn-amd-amdhsa--gfx950"\n' + kernel_text(lab, g.a.text()) + desc(lab)
    if E('X4'):
        import re
        txt = re.sub(r"(buffer_load_dwordx4 .*?) sc1", r"\1", txt)
    if E('X2'):
        txt = "\n".join(("    s_nop 0" if ("s81 offen" in l) else l) for l in txt.split("\n"))
    open(path, "w").write(txt)
```

```python
import sys
from asmlib import Asm, vr, sr

NAME = "recurrent_scan__ssm_conv_s4d__dense_activation_squared_relu__prompt"
XF = 0x0; XT = 0x280000; HF = 0x500000; W2F = 0xB00000; ST = 0xD00000
FLG = 0xF80000; STAMP = 0x1000000; WS_SIZE = 0x1100000
import os
FSTR = int(os.environ.get('FSTR','128'))
PSLEEP = int(os.environ.get('PSLEEP','0'))
LSLEEP = int(os.environ.get('LSLEEP','0'))
FHS = int(os.environ.get('FHS','128'))
FLN = FLG; FH = FLG + 0x8000; FW = FLG + 0x20000; FS = FLG + 0x24000; FL2 = FLG + 0x50000; FLT = FLG + 0x48000; FWR = FLG + 0x60000
AUX = 122880; RSZ = 12896; K1O = 4160; UO = 8320; UPAD = 480
MISC = AUX + 3 * RSZ
LDS_TOTAL = 163840
M_LNCNT = MISC; M_W1 = MISC + 16; M_G1D = MISC + 32; M_U = MISC + 48; M_NONCE = MISC + 112
M_LNR = MISC + 80; M_LN = MISC + 192; M_LNW = MISC + 240; M_J6 = MISC + 208; M_HP = MISC + 224; M_FW = MISC + 64; M_HCNT = MISC + 68; M_FH = MISC + 256; M_PD = MISC + 128; M_HC = MISC + 144; M_CD = MISC + 96
LNRS = 1296
LNIMG = 122880 - 10752
IMG = [0, 40960, 81920]
XRS = 176; XI = AUX + RSZ; M_B2 = MISC + 512
P_X, P_LA, P_AI, P_CR, P_CI, P_DT, P_DS = 4, 6, 8, 10, 12, 14, 16
P_W1, P_B1, P_W2, P_B2, P_OUT, P_DBG, P_WS = 20, 22, 24, 26, 28, 30, 32
S_WAVE, S_XCD, S_IDX, S_RB, S_CB, S_RB2, S_CB2, S_NCH, S_CH0 = 34, 35, 36, 37, 38, 39, 40, 41, 42
R_WS, R_X, R_W, R_OUT = 44, 48, 52, 56
S_NONCE = 96
S_LID = 93
LOG2E = 0x3fb8aa3b
INV2PI = 0x3e22f983

class Gen:
    def __init__(self, mode, stamps=False):
        self.a = Asm()
        self.mode = mode
        self.fused = mode == "fused"
        self.stamps = stamps
        self.sel = set()
        self.role = 'g'
        self.seen = set()
        self.pfx = mode

    def L(self, n):
        return f"{self.pfx}_{n}"

    def stamp(self, slot, q=False):
        if os.environ.get('DGP') and (self.role, slot) == (os.environ['DGP'][0], int(os.environ['DGP'][1:])):
            self.a('s_memrealtime s[72:73]\ns_waitcnt lgkmcnt(0)')
        if slot not in self.sel: return
        if q: self.vq += ['st']
        a = self.a
        a(f"""
        s_memrealtime s[98:99]
        s_lshl_b32 s100, s2, 3
        s_add_u32 s100, s100, s{S_WAVE}
        s_lshl_b32 s100, s100, 7
        s_add_u32 s100, s100, {STAMP + slot*4}
        s_waitcnt lgkmcnt(0)
        v_mov_b32 v1, s98
        s_mov_b64 s[98:99], exec
        s_mov_b64 exec, 1
        buffer_store_dword v1, off, s[{R_WS}:{R_WS+3}], s100
        s_mov_b64 exec, s[98:99]
        """)

    def dg_end(self, wave):
        if not os.environ.get('DGP') or os.environ['DGP'][0] != self.role: return
        lab = self.L('dg' + self.role)
        self.a(f"""
        s_cmp_lg_u32 s2, 0
        s_cbranch_scc1 {lab}_d
        s_cmp_lg_u32 s{S_WAVE}, {wave}
        s_cbranch_scc1 {lab}_d
        s_sub_u32 s60, s72, s94
        s_min_u32 s60, s60, 3000
        s_mul_i32 s60, s60, 5
        s_memrealtime s[62:63]
        s_waitcnt lgkmcnt(0)
        s_mov_b32 s64, s62
        {lab}:
        s_memrealtime s[62:63]
        s_waitcnt lgkmcnt(0)
        s_sub_u32 s61, s62, s64
        s_cmp_lt_u32 s61, s60
        s_cbranch_scc1 {lab}
        {lab}_d:
        """)

    def srd(self, r, p, size):
        self.a(f"""
        s_mov_b32 s{r}, s{p}
        s_and_b32 s{r+1}, s{p+1}, 0xffff
        s_mov_b32 s{r+2}, {size}
        s_mov_b32 s{r+3}, 0x00020000
        """)

    def mapfix(self):
        r = []
        if os.environ.get('M2') == '84':
            r += [f"s_lshr_b32 s60, s{S_XCD}, 1", "s_lshl_b32 s60, s60, 3", f"s_and_b32 s61, s{S_IDX}, 7", f"s_add_u32 s{S_RB2}, s60, s61",
                  f"s_and_b32 s60, s{S_XCD}, 1", "s_lshl_b32 s60, s60, 2", f"s_lshr_b32 s61, s{S_IDX}, 3", f"s_add_u32 s{S_CB2}, s60, s61"]
        if os.environ.get('M1') == '84':
            r += [f"s_and_b32 s60, s{S_XCD}, 1", "s_lshl_b32 s60, s60, 3", f"s_and_b32 s61, s{S_IDX}, 7", f"s_add_u32 s{S_RB}, s60, s61",
                  f"s_lshr_b32 s60, s{S_XCD}, 1", "s_lshl_b32 s60, s60, 2", f"s_lshr_b32 s61, s{S_IDX}, 3", f"s_add_u32 s{S_CB}, s60, s61"]
        if os.environ.get('M1') == '216':
            r += [f"s_lshl_b32 s60, s{S_XCD}, 1", f"s_and_b32 s61, s{S_IDX}, 1", f"s_add_u32 s{S_RB}, s60, s61", f"s_lshr_b32 s{S_CB}, s{S_IDX}, 1"]
        return "\n".join(r)

    def prologue(self):
        a = self.a
        a(f"""
        s_load_dwordx16 s[4:19], s[0:1], 0
        s_load_dwordx8 s[20:27], s[0:1], 64
        s_load_dwordx4 s[28:31], s[0:1], 96
        s_load_dwordx2 s[32:33], s[0:1], 112
        s_memrealtime s[94:95]
        s_cmp_ge_u32 s2, 256
        s_cbranch_scc1 {self.L('end')}
        v_lshrrev_b32 v1, 6, v0
        v_and_b32 v0, 63, v0
        s_and_b32 s{S_XCD}, s2, 7
        v_readfirstlane_b32 s{S_WAVE}, v1
        s_lshr_b32 s{S_IDX}, s2, 3
        s_getpc_b64 s[62:63]
        {self.L('pc')}:
        s_cmp_lg_u32 s{S_WAVE}, 7
        s_cbranch_scc1 {self.L('nopf')}
        s_and_b32 s60, s{S_IDX}, 7
        s_mul_i32 s60, s60, 4352
        v_lshlrev_b32 v2, 7, v0
        v_add_u32 v2, s60, v2
        v_min_u32 v2, {self.L('end')}-{self.L('pc')}, v2
        s_mov_b32 exec_hi, 3
        global_load_dword v130, v2, s[62:63]
        s_mov_b32 exec_hi, -1
        {self.L('nopf')}:
        s_and_b32 s60, s{S_XCD}, 3
        s_lshl_b32 s60, s60, 2
        s_and_b32 s61, s{S_IDX}, 3
        s_add_u32 s{S_RB}, s60, s61
        s_lshr_b32 s60, s{S_XCD}, 2
        s_lshl_b32 s60, s60, 3
        s_lshr_b32 s{S_CB2}, s{S_IDX}, 2
        s_add_u32 s{S_CB}, s60, s{S_CB2}
        s_lshl_b32 s60, s{S_XCD}, 2
        s_add_u32 s{S_RB2}, s60, s61
        {self.mapfix()}
        ; conv channels: g = idx/3, pos = idx%3
        s_mul_i32 s60, s{S_IDX}, 43
        s_lshr_b32 s60, s60, 7
        s_mul_i32 s61, s60, 3
        s_sub_u32 s61, s{S_IDX}, s61
        s_mul_i32 s62, s{S_XCD}, 80
        s_lshl_b32 s63, s60, 3
        s_add_u32 s62, s62, s63
        s_mul_i32 s63, s61, 3
        s_add_u32 s{S_CH0}, s62, s63
        s_cmp_eq_u32 s61, 2
        s_cselect_b32 s{S_NCH}, 2, 3
        s_cmp_ge_u32 s{S_IDX}, 30
        s_cselect_b32 s{S_NCH}, 0, s{S_NCH}
        s_sub_u32 s61, s{S_IDX}, 20
        s_cselect_b32 s60, s61, s60
        """)
        a.lines.pop(); a.lines.pop()
        a(f"""
        s_sub_u32 s61, s{S_IDX}, 20
        s_cmp_ge_u32 s{S_IDX}, 30
        s_cselect_b32 s60, s61, s60
        s_mul_i32 s61, s{S_XCD}, 12
        s_add_u32 s43, s61, s60
        s_lshl_b32 s{S_LID}, s{S_RB}, 4
        s_add_u32 s{S_LID}, s{S_LID}, s{S_CB}
        v_lshlrev_b32 v2, 3, v0
        v_add_u32 v2, {MISC}, v2
        v_mov_b32 v4, 0
        v_mov_b32 v5, 0
        ds_write_b64 v2, v[4:5]
        s_cmp_eq_u32 s{S_WAVE}, 7
        s_cselect_b32 s60, s2, 1
        s_cmp_lg_u32 s60, 0
        s_waitcnt lgkmcnt(0)
        s_cbranch_scc1 {self.L('nonce0')}
        s_or_b32 s61, s94, 1
        v_mov_b32 v2, s61
        s_mov_b64 exec, 1
        global_store_dword v4, v2, s[{P_DBG}:{P_DBG+1}] sc1
        s_mov_b64 exec, -1
        {self.L('nonce0')}:
        s_barrier
        """)
        if os.environ.get('WSOFF'):
            a(f"s_add_u32 s{P_WS}, s{P_WS}, {int(os.environ['WSOFF'],0)}\ns_addc_u32 s{P_WS+1}, s{P_WS+1}, 0")
        self.srd(R_WS, P_WS, WS_SIZE)
        self.srd(R_X, P_X, 2621440)

    def rowaddr(self, dst, row, t):
        self.a(f"""
        v_mul_u32_u24 v{t}, 11, v{row}
        v_lshrrev_b32 v{t}, 5, v{t}
        v_mul_u32_u24 v{dst}, {LNRS}, v{row}
        v_mad_u32_u24 v{dst}, v{t}, s97, v{dst}
        v_lshrrev_b32 v{t}, 1, v{t}
        v_mul_u32_u24 v{t}, 1440, v{t}
        v_add3_u32 v{dst}, v{dst}, v{t}, s61
        """)

    def ln_loads(self):
        a = self.a
        a(f"""
        s_lshl_b32 s60, s{S_LID}, 3
        s_lshl_b32 s61, s{S_WAVE}, 1
        s_add_u32 s60, s60, s61
        s_mul_i32 s60, s60, 1280
        v_lshrrev_b32 v2, 5, v0
        v_and_b32 v3, 31, v0
        v_mul_u32_u24 v1, 1280, v2
        v_lshl_add_u32 v1, v3, 3, v1
        """)
        for i in range(5):
            a(f"buffer_load_dwordx2 v[{100+2*i}:{101+2*i}], v1, s[{R_X}:{R_X+3}], s60 offen offset:{256*i}")

    def reduce32(self, v, t):
        a = self.a
        a(f"""
        v_add_f32_dpp v{v}, v{v}, v{v} quad_perm:[1,0,3,2] row_mask:0xf bank_mask:0xf
        v_add_f32_dpp v{v}, v{v}, v{v} quad_perm:[2,3,0,1] row_mask:0xf bank_mask:0xf
        v_add_f32_dpp v{v}, v{v}, v{v} row_half_mirror row_mask:0xf bank_mask:0xf
        v_add_f32_dpp v{v}, v{v}, v{v} row_mirror row_mask:0xf bank_mask:0xf
        v_mov_b32 v{t}, v{v}
        v_permlane16_swap_b32 v{v}, v{t}
        v_add_f32 v{v}, v{v}, v{t}
        """)

    def ln_math(self):
        a = self.a
        X = 110; Dd = 130; S = 150
        for i in range(10):
            a(f"v_lshlrev_b32 v{X+2*i}, 16, v{100+i}")
            a(f"v_and_b32 v{X+1+2*i}, 0xffff0000, v{100+i}")
        P = lambda r: f"v[{r}:{r+1}]"
        a(f"v_pk_add_f32 {P(S)}, {P(X)}, {P(X+2)}\nv_pk_add_f32 {P(S+2)}, {P(X+4)}, {P(X+6)}")
        for i in range(4, 10):
            a(f"v_pk_add_f32 {P(S+2*(i%2))}, {P(S+2*(i%2))}, {P(X+2*i)}")
        a(f"v_pk_add_f32 {P(S)}, {P(S)}, {P(S+2)}\nv_add_f32 v{S}, v{S}, v{S+1}")
        self.reduce32(S, S + 1)
        a(f"v_mul_f32 v{S+4}, 0x3acccccd, v{S}")
        for i in range(10):
            a(f"v_pk_add_f32 {P(Dd+2*i)}, {P(X+2*i)}, {P(S+4)} op_sel_hi:[1,0] neg_lo:[0,1] neg_hi:[0,1]")
        a(f"v_pk_mul_f32 {P(S)}, {P(Dd)}, {P(Dd)}\nv_pk_mul_f32 {P(S+2)}, {P(Dd+2)}, {P(Dd+2)}")
        for i in range(2, 10):
            a(f"v_pk_fma_f32 {P(S+2*(i%2))}, {P(Dd+2*i)}, {P(Dd+2*i)}, {P(S+2*(i%2))}")
        a(f"v_pk_add_f32 {P(S)}, {P(S)}, {P(S+2)}\nv_add_f32 v{S}, v{S}, v{S+1}")
        self.reduce32(S, S + 1)
        a(f"""
        v_mul_f32 v{S+5}, 0x3acccccd, v{S}
        v_cvt_pk_bf16_f32 v{S}, v{S+4}, v{S+5}
        v_lshlrev_b32 v{S+4}, 16, v{S}
        v_and_b32 v{S+2}, 0xffff0000, v{S}
        v_add_f32 v{S+2}, 0x3727c5ac, v{S+2}
        v_cvt_pk_bf16_f32 v{S+2}, v{S+2}, v{S+2}
        v_and_b32 v{S+2}, 0xffff0000, v{S+2}
        v_sqrt_f32 v{S+2}, v{S+2}
        """)
        for i in range(10):
            a(f"v_pk_add_f32 {P(Dd+2*i)}, {P(X+2*i)}, {P(S+4)} op_sel_hi:[1,0] neg_lo:[0,1] neg_hi:[0,1]")
            if i == 1:
                a(f"v_cvt_pk_bf16_f32 v{S+2}, v{S+2}, v{S+2}\nv_and_b32 v{S+2}, 0xffff0000, v{S+2}\nv_rcp_f32 v{S+2}, v{S+2}")
        for i in range(10):
            a(f"v_cvt_pk_bf16_f32 v{100+i}, v{Dd+2*i}, v{Dd+1+2*i}")
        for i in range(10):
            a(f"v_lshlrev_b32 v{X+2*i}, 16, v{100+i}")
            a(f"v_and_b32 v{X+1+2*i}, 0xffff0000, v{100+i}")
        for i in range(10):
            a(f"v_pk_mul_f32 {P(X+2*i)}, {P(X+2*i)}, {P(S+2)} op_sel_hi:[1,0]")
        for i in range(5):
            a(f"v_cvt_pk_bf16_f32 v{100+2*i}, v{X+4*i}, v{X+4*i+1}")
            a(f"v_cvt_pk_bf16_f32 v{101+2*i}, v{X+4*i+2}, v{X+4*i+3}")
            a(f"ds_write_b64 v98, v[{100+2*i}:{101+2*i}] offset:{256*i}")

    def ln_pub_addr(self):
        a = self.a
        a(f"""
        s_mov_b32 s84, s{S_WAVE}
        s_mov_b32 s97, {RSZ - 3*LNRS}
        s_mov_b32 s61, {AUX + UO + UPAD}
        s_lshl_b32 s60, s{S_WAVE}, 1
        v_lshrrev_b32 v2, 5, v0
        v_add_u32 v2, s60, v2
        """)
        self.rowaddr(98, 2, 5)
        a(f"""
        v_and_b32 v3, 31, v0
        v_lshl_add_u32 v98, v3, 3, v98
        s_lshl_b32 s60, s84, 7
        s_add_u32 s61, s61, s60
        v_and_b32 v1, 7, v0
        """)
        self.rowaddr(156, 1, 5)
        a(f"""
        v_lshrrev_b32 v2, 3, v0
        v_lshl_add_u32 v156, v2, 4, v156
        v_lshrrev_b32 v157, 2, v2
        v_and_b32 v5, 3, v2
        v_lshlrev_b32 v157, 10, v157
        v_lshl_add_u32 v157, v5, 8, v157
        v_lshl_add_u32 v157, v1, 4, v157
        v_and_b32 v1, 15, v0
        v_lshrrev_b32 v2, 2, v1
        v_sub_u32 v3, 7, v2
        v_sub_u32 v2, 3, v2
        """)
        self.rowaddr(158, 2, 5)
        self.rowaddr(99, 3, 5)
        a(f"""
        v_and_b32 v1, 3, v0
        v_lshrrev_b32 v2, 4, v0
        v_lshlrev_b32 v1, 3, v1
        v_lshl_add_u32 v1, v2, 5, v1
        v_add_u32 v158, v158, v1
        v_add_u32 v99, v99, v1
        v_lshlrev_b32 v159, 4, v0
        s_lshr_b32 s85, s{S_LID}, 1
        s_mul_i32 s85, s85, 20480
        s_and_b32 s62, s{S_LID}, 1
        s_lshl_b32 s62, s62, 7
        s_add_u32 s85, s85, s62
        s_lshl_b32 s62, s84, 11
        s_add_u32 s85, s85, s62
        s_add_u32 s86, s85, 8192
        s_add_u32 s87, s85, 16384
        s_mul_i32 s88, s{S_LID}, 10240
        s_lshl_b32 s62, s84, 10
        s_add_u32 s88, s88, s62
        s_add_u32 s88, s88, {XT}
        s_add_u32 s89, s88, 4096
        s_add_u32 s90, s88, 6144
        """)

    def ln_publish(self):
        a = self.a
        sc = "" if os.environ.get('V2') else "sc1"
        W = f"s[{R_WS}:{R_WS+3}]"
        l2 = self.L("lnp_xt3"); l3 = self.L("lnp_done")
        a(f"""
        ds_read_b128 v[160:163], v156
        ds_read_b128 v[164:167], v156 offset:512
        ds_read_b128 v[168:171], v156 offset:1024
        ds_read_b64_tr_b16 v[172:173], v99
        ds_read_b64_tr_b16 v[174:175], v158
        ds_read_b64_tr_b16 v[176:177], v99 offset:512
        ds_read_b64_tr_b16 v[178:179], v158 offset:512
        ds_read_b64_tr_b16 v[180:181], v99 offset:768
        ds_read_b64_tr_b16 v[182:183], v158 offset:768
        s_cmp_ge_u32 s84, 2
        s_waitcnt lgkmcnt(7)
        buffer_store_dwordx4 v[160:163], v157, {W}, s85 offen {sc}
        s_waitcnt lgkmcnt(6)
        buffer_store_dwordx4 v[164:167], v157, {W}, s86 offen {sc}
        s_cselect_b32 s87, {WS_SIZE}, s87
        s_waitcnt lgkmcnt(5)
        buffer_store_dwordx4 v[168:171], v157, {W}, s87 offen {sc}
        """)

    def ln_publish_xt(self):
        a = self.a
        W = f"s[{R_WS}:{R_WS+3}]"
        l3 = self.L("lnp_done")
        a(f"""
        s_cmp_lt_u32 s84, 2
        s_waitcnt lgkmcnt(0)
        buffer_store_dwordx4 v[172:175], v159, {W}, s88 offen sc1
        buffer_store_dwordx4 v[176:179], v159, {W}, s89 offen sc1
        s_cselect_b32 s90, {WS_SIZE}, s90
        buffer_store_dwordx4 v[180:183], v159, {W}, s90 offen sc1
        """)

    def w2_loads(self):
        a = self.a
        self.srd(R_OUT, P_W2, 1966080)
        a(f"""
        s_lshr_b32 s91, s43, 1
        s_and_b32 s92, s43, 1
        s_mul_i32 s62, s91, {32*1280}
        s_mul_i32 s63, s92, 640
        s_add_u32 s62, s62, s63
        s_add_u32 s63, s62, 320
        """)
        for i in range(10):
            a(f"""
            v_add_u32 v1, {64*i}, v0
            v_mul_u32_u24 v2, 52429, v1
            v_lshrrev_b32 v2, 20, v2
            v_mul_u32_u24 v3, 20, v2
            v_sub_u32 v3, v1, v3
            v_mul_u32_u24 v2, 1280, v2
            v_lshl_add_u32 v2, v3, 4, v2
            buffer_load_dwordx4 v[{64+4*i}:{67+4*i}], v2, s[{R_OUT}:{R_OUT+3}], s62 offen
            buffer_load_dwordx4 v[{104+4*i}:{107+4*i}], v2, s[{R_OUT}:{R_OUT+3}], s63 offen
            """)

    def w2_retile(self, mid=None):
        a = self.a
        sc = "sc1"
        base = AUX + 2 * RSZ
        a(f"""
        v_lshlrev_b32 v6, 4, v0
        v_add_u32 v1, {base}, v6
        v_lshrrev_b32 v2, 4, v0
        v_and_b32 v3, 15, v0
        v_lshrrev_b32 v3, 2, v3
        v_lshl_add_u32 v2, v2, 2, v3
        v_mul_u32_u24 v2, 320, v2
        v_and_b32 v3, 3, v0
        v_lshl_add_u32 v2, v3, 3, v2
        v_add_u32 v2, {base}, v2
        s_mul_i32 s62, s92, {4*245760}
        s_mul_i32 s63, s91, 5120
        s_add_u32 s62, s62, s63
        s_add_u32 s62, s62, {W2F}
        v_add_u32 v7, 4096, v6
        """)
        for half in range(2):
            src = 64 + 40 * half
            fr = 144 + 40 * half
            for i in range(10):
                a(f"ds_write_b128 v1, v[{src+4*i}:{src+3+4*i}] offset:{1024*i}")
            a("s_waitcnt lgkmcnt(4)")
            for nt in range(10):
                d = fr + 4 * nt
                a(f"ds_read_b64_tr_b16 v[{d}:{d+1}], v2 offset:{32*nt}")
                a(f"ds_read_b64_tr_b16 v[{d+2}:{d+3}], v2 offset:{32*nt+16*320}")
                if nt == 4: a("s_waitcnt lgkmcnt(4)")
            a("s_waitcnt lgkmcnt(0)")
            for nt in range(10):
                d = fr + 4 * nt
                cbl = half * 2 + nt // 5
                n5 = nt % 5
                if n5 == 0:
                    a(f"s_add_u32 s63, s62, {cbl*245760}")
                if n5 < 4:
                    a(f"buffer_store_dwordx4 v[{d}:{d+3}], v6, s[{R_WS}:{R_WS+3}], s63 offen offset:{1024*n5} {sc}")
                else:
                    a(f"buffer_store_dwordx4 v[{d}:{d+3}], v7, s[{R_WS}:{R_WS+3}], s63 offen {sc}")
            if half == 0 and mid:
                a("v_mov_b32 v8, v2"); mid(); a("v_mov_b32 v2, v8")

    def lds_set(self, addr_imm, sidx=None, val=1, tmp=(2, 3)):
        a = self.a
        if sidx is None:
            a(f"v_mov_b32 v{tmp[0]}, {addr_imm}")
        else:
            a(f"s_lshl_b32 s60, s{sidx}, 2\ns_add_u32 s60, s60, {addr_imm}\nv_mov_b32 v{tmp[0]}, s60")
        a(f"v_mov_b32 v{tmp[1]}, {val}\nds_write_b32 v{tmp[0]}, v{tmp[1]}")

    def lds_wait_all(self, addr_imm, n, name, tmp=2, sleep=None):
        if sleep is None: sleep = LSLEEP
        a = self.a
        lab = self.L(name); done = self.L(name + "_d")
        t = tmp
        a(f"""
        v_mov_b32 v{t}, {addr_imm}
        s_mov_b32 s61, 0
        {lab}:
        ds_read_b128 v[{t+2}:{t+5}], v{t}
        s_add_u32 s61, s61, 1
        s_waitcnt lgkmcnt(0)
        """)
        for k in range(1, n):
            a(f"v_min_u32 v{t+2}, v{t+2}, v{t+2+k}")
        a(f"""
        v_readfirstlane_b32 s60, v{t+2}
        s_cmp_gt_u32 s61, 0x200000
        s_cbranch_scc1 {done}
        s_cmp_lg_u32 s60, 0
        s_cbranch_scc1 {done}
        {'s_sleep %d' % sleep if sleep else ''}
        s_branch {lab}
        {done}:
        """)

    def get_nonce(self, name, tmp=2):
        self.lds_wait_all(M_NONCE, 1, name, tmp)
        self.a(f"s_mov_b32 s{S_NONCE}, s60")

    def poll_flags(self, name, soff, nlanes, nloads=1, lstride=FSTR, istride=64*FSTR, tmp=2, pre=None):
        a = self.a
        lab = self.L(name); done = self.L(name + "_d")
        t = tmp
        a(f"v_mul_u32_u24 v{t}, {lstride}, v0")
        a(f"s_mov_b64 s[62:63], exec")
        if nlanes < 64:
            a(f"s_lshr_b64 exec, -1, {64-nlanes}")
        a(f"s_mov_b32 s64, 0\n{lab}:")
        for i in range(nloads):
            if i * istride < 4096:
                a(f"buffer_load_dword v{t+1+i}, v{t}, s[{R_WS}:{R_WS+3}], s{soff} offen offset:{i*istride} sc1")
            else:
                a(f"s_add_u32 s65, s{soff}, {i*istride}\nbuffer_load_dword v{t+1+i}, v{t}, s[{R_WS}:{R_WS+3}], s65 offen sc1")
        a("s_add_u32 s64, s64, 1\ns_waitcnt vmcnt(0)")
        for i in range(nloads):
            a(f"v_xor_b32 v{t+1+i}, s{S_NONCE}, v{t+1+i}")
        for i in range(1, nloads):
            a(f"v_or_b32 v{t+1}, v{t+1}, v{t+1+i}")
        a(f"""
        v_cmp_ne_u32 vcc, 0, v{t+1}
        s_cmp_gt_u32 s64, 0x20000
        s_cbranch_scc1 {done}
        s_cbranch_vccz {done}
        {'s_sleep %d' % PSLEEP if PSLEEP else ''}
        s_branch {lab}
        {done}:
        s_mov_b64 exec, s[62:63]
        """)

    def poll_pipe(self, name, soff, nlanes, stride, depth, gap, on_result=None, vo=None):
        a = self.a
        lab = self.L(name)
        tb = self.ptmp
        if vo is None: a(f"v_mul_u32_u24 v2, {stride}, v0")
        a(f"s_mov_b64 s[62:63], exec\ns_lshr_b64 exec, -1, {64-nlanes}\ns_mov_b32 s64, 0")
        ld = lambda i: f"buffer_load_dword v{tb+i}, v2, s[{R_WS}:{R_WS+3}], s{soff} offen sc1"
        for i in range(depth - 1):
            a(ld(i))
            if gap: a(f"s_sleep {gap}")
        a(f"{lab}:")
        for i in range(depth):
            a(ld((i + depth - 1) % depth))
            a(f"s_waitcnt vmcnt({depth-1})\nv_cmp_eq_u32 vcc, s{S_NONCE}, v{tb+i}")
            if on_result: on_result()
            a(f"s_cmp_eq_u64 vcc, exec\ns_cbranch_scc1 {lab}_d")
            if gap: a(f"s_sleep {gap}")
        a(f"s_add_u32 s64, s64, 1\ns_cmp_lt_u32 s64, 0x20000\ns_cbranch_scc1 {lab}")
        if on_result:
            a("s_mov_b64 vcc, exec"); on_result()
        a(f"{lab}_d:\ns_mov_b64 exec, s[62:63]")

    def spoll(self, name, soff, stride, sleep, quarters=None, n=16, miss=None):
        a = self.a
        lab = self.L(name)
        a(f"s_add_u32 s62, s{P_WS}, s{soff}\ns_addc_u32 s63, s{P_WS+1}, 0\ns_mov_b32 s64, 0\n{lab}:")
        for i in range(n): a(f"s_load_dword s{4+i}, s[62:63], {i*stride} glc")
        a("s_add_u32 s64, s64, 1\ns_waitcnt lgkmcnt(0)")
        for i in range(n): a(f"s_xor_b32 s{4+i}, s{4+i}, s{S_NONCE}")
        for q in range(n // 4):
            a(f"s_or_b32 s{4+4*q}, s{4+4*q}, s{5+4*q}\ns_or_b32 s{6+4*q}, s{6+4*q}, s{7+4*q}\ns_or_b32 s{4+4*q}, s{4+4*q}, s{6+4*q}")
        if quarters:
            for q in range(4):
                a(f"s_cmp_eq_u32 s{4+4*q}, 0\ns_cselect_b32 s60, 1, 0\nv_mov_b32 v3, s60\nds_write_b32 v4, v3 offset:{16*q}")
        for q in range(1, n // 4): a(f"s_or_b32 s4, s4, s{4+4*q}")
        a(f"s_cmp_eq_u32 s4, 0\ns_cbranch_scc1 {lab}_d")
        if miss: miss()
        if sleep: a(f"s_sleep {sleep}")
        a(f"s_cmp_lt_u32 s64, 0x20000\ns_cbranch_scc1 {lab}")
        if quarters:
            a("v_mov_b32 v3, 1")
            for q in range(4): a(f"ds_write_b32 v4, v3 offset:{16*q}")
        a(f"{lab}_d:")

    def spoll48(self, name, soff, stride, sleep):
        a = self.a
        lab = self.L(name)
        regs = list(range(4, 26)) + list(range(67, 93))
        a(f"s_add_u32 s62, s{P_WS}, s{soff}\ns_addc_u32 s63, s{P_WS+1}, 0\ns_mov_b32 s64, 0\n{lab}:")
        for i, r in enumerate(regs): a(f"s_load_dword s{r}, s[62:63], {i*stride} glc")
        a(f"s_add_u32 s64, s64, 1\ns_mov_b32 s60, s{S_NONCE}\ns_mov_b32 s61, s{S_NONCE}\ns_waitcnt lgkmcnt(0)")
        for r in regs: a(f"s_and_b32 s60, s60, s{r}\ns_or_b32 s61, s61, s{r}")
        a(f"s_cmp_eq_u32 s60, s61\ns_cbranch_scc1 {lab}_d\ns_sleep {sleep}\ns_cmp_lt_u32 s64, 0x20000\ns_cbranch_scc1 {lab}\n{lab}_d:")

    def store_flag(self, soff, tmp=2):
        self.a(f"""
        v_mov_b32 v{tmp}, s{S_NONCE}
        s_mov_b64 s[62:63], exec
        s_mov_b64 exec, 1
        buffer_store_dword v{tmp}, off, s[{R_WS}:{R_WS+3}], s{soff} sc1
        s_mov_b64 exec, s[62:63]
        """)

    def w1_addr(self, vr_):
        self.srd(R_W, P_W1, 1966080)
        for ph in range(3):
            self.a(f"""
            v_add_u32 v5, {64*ph}, v0
            v_mul_u32_u24 v6, 43691, v5
            v_lshrrev_b32 v6, 19, v6
            v_mul_u32_u24 v7, 12, v6
            v_sub_u32 v7, v5, v7
            v_lshrrev_b32 v8, 2, v6
            v_and_b32 v8, 2, v8
            v_xor_b32 v7, v7, v8
            v_mul_u32_u24 v6, 3072, v6
            v_lshl_add_u32 v{vr_+ph}, v7, 4, v6
            """)
        self.a(f"s_mul_i32 s69, s{S_CB}, 192")

    def w1_group(self, vr_):
        a = self.a
        a(f"""
        s_mul_i32 s63, s68, {16*3072}
        s_add_u32 s63, s63, s69
        s_mul_i32 m0, s68, 3072
        s_nop 0
        buffer_load_dwordx4 v{vr_}, s[{R_W}:{R_W+3}], s63 offen lds
        s_add_u32 m0, m0, 1024
        s_nop 0
        buffer_load_dwordx4 v{vr_+1}, s[{R_W}:{R_W+3}], s63 offen lds
        s_add_u32 m0, m0, 1024
        s_nop 0
        buffer_load_dwordx4 v{vr_+2}, s[{R_W}:{R_W+3}], s63 offen lds
        """)

    G1_ACC = 16; G1_B = 64; G1_B1 = 64; G1_A = 96
    def g1_b1_loads(self):
        a = self.a
        a(f"""
        v_lshrrev_b32 v5, 4, v0
        v_lshlrev_b32 v5, 3, v5
        s_mul_i32 s60, s{S_CB}, 192
        v_add_u32 v5, s60, v5
        """)
        for t in range(6):
            a(f"global_load_dwordx2 v[{self.G1_B1+2*t}:{self.G1_B1+2*t+1}], v5, s[{P_B1}:{P_B1+1}] offset:{32*t}")

    def acc_init(self, p):
        r = []
        for k in range(2):
            for lt in range(2):
                d = self.G1_ACC + 16 * p + 8 * k + 4 * lt
                s_ = self.G1_B1 + 2 * (2 * p + k)
                r += [f"v_lshlrev_b32 v{d}, 16, v{s_}", f"v_and_b32 v{d+1}, 0xffff0000, v{s_}",
                      f"v_lshlrev_b32 v{d+2}, 16, v{s_+1}", f"v_and_b32 v{d+3}, 0xffff0000, v{s_+1}"]
        return r

    def g1_prep(self):
        a = self.a
        for x in self.acc_init(0) + self.acc_init(1) + self.acc_init(2): a(x)
        a(f"""
        v_lshrrev_b32 v5, 4, v0
        v_and_b32 v6, 15, v0
        v_lshrrev_b32 v6, 2, v6
        v_lshl_add_u32 v6, v5, 3, v6
        v_mul_u32_u24 v6, 192, v6
        v_and_b32 v7, 3, v0
        v_lshl_add_u32 v6, v7, 3, v6
        v_and_b32 v5, 1, v5
        v_lshlrev_b32 v5, 5, v5
        v_add_u32 v10, v6, v5
        v_sub_u32 v11, v6, v5
        v_add_u32 v12, 61440, v10
        v_add_u32 v13, 61440, v11
        s_lshl_b32 s86, s{S_RB}, 3
        s_lshl_b32 s87, s{S_WAVE}, 1
        s_add_u32 s86, s86, s87
        s_mul_i32 s82, s86, 20480
        s_add_u32 s83, s82, 20480
        s_mul_i32 s86, s86, 49152
        s_mul_i32 s87, s{S_CB}, 3072
        s_add_u32 s86, s86, s87
        s_add_u32 s86, s86, {HF}
        s_add_u32 s87, s86, 49152
        """)

    def g1_aload(self, ks):
        r = []
        for lt in range(2):
            d = self.G1_A + 8 * ks + 4 * lt
            ins = [f"buffer_load_dwordx4 v[{d}:{d+3}], v9, s[{R_WS}:{R_WS+3}], s{82+lt} offen offset:{1024*(ks%4)} sc1"]
            if ks % 4 == 3 and ks != 19: ins.append(f"s_add_u32 s{82+lt}, s{82+lt}, 4096")
            r.append((ins, f"A{ks}"))
        return r

    def epi_ops(self, p):
        r = []
        for lt in range(2):
            a0 = self.G1_ACC + 16 * p + 4 * lt; b0 = a0 + 8
            for x in (a0, b0):
                for i in range(4): r.append(([f"v_max_f32 v{x+i}, 0, v{x+i}"], None))
                for i in range(4): r.append(([f"v_mul_f32 v{x+i}, v{x+i}, v{x+i}"], None))
            r.append(([f"v_cvt_pk_bf16_f32 v{a0}, v{a0}, v{a0+1}"], None))
            r.append(([f"v_cvt_pk_bf16_f32 v{a0+1}, v{a0+2}, v{a0+3}"], None))
            r.append(([f"v_cvt_pk_bf16_f32 v{a0+2}, v{b0}, v{b0+1}"], None))
            r.append(([f"v_cvt_pk_bf16_f32 v{a0+3}, v{b0+2}, v{b0+3}"], None))
            r.append(([f"buffer_store_dwordx4 v[{a0}:{a0+3}], v9, s[{R_WS}:{R_WS+3}], s{86+lt} offen offset:{1024*p} sc1"], "S"))
        return r

    def vwait(self, tag):
        vq = self.vq
        assert tag in self.seen or os.environ.get('NOAL'), tag
        idx = [i for i, t in enumerate(vq) if t == tag]
        if not idx: return
        n = len(vq) - 1 - idx[-1]
        self.a(f"s_waitcnt vmcnt({min(n, 63)})"); del vq[:idx[-1] + 1]

    def emit(self, item):
        ins, tag = item
        for x in ins: self.a(x)
        if tag: self.vq.append(tag); self.seen.add(tag)

    def g1_loop(self, N0, events, TL=5):
        a = self.a
        NF = 8; AH = NF - 1
        seq = [(ks, t) for ks in range(20 - TL) for t in range(6)]
        for p in range(3):
            seq += [(ks, 2 * p + k) for ks in range(20 - TL, 20) for k in range(2)]
        def rd(f):
            ks, t = seq[f]
            base = (10 if t % 2 == 0 else 11) + (2 if ks >= 10 else 0)
            off = (ks % 10) * 6144 + 32 * t
            d = self.G1_B + 4 * (f % NF)
            return [f"ds_read_b64_tr_b16 v[{d}:{d+1}], v{base} offset:{off}", f"ds_read_b64_tr_b16 v[{d+2}:{d+3}], v{base} offset:{off+768}"]
        for f in range(AH):
            for x in rd(f): a(x)
        fv = []; fa = []; waited = set()
        f0 = 6 * (20 - TL)
        for f, (ks, t) in enumerate(seq):
            if f % 6 == 0:
                st = f // 6
                if st in events:
                    extra = events[st]()
                    if extra: fv += extra
                if st + N0 < 20: fv = self.g1_aload(st + N0) + fv
            if ks not in waited:
                self.vwait(f"A{ks}"); waited.add(ks)
            if f > f0 and (f - f0) % (2 * TL) == 1 and (f - f0) // (2 * TL) >= 1:
                fa += self.epi_ops((f - f0) // (2 * TL) - 1)
            nxt = rd(f + AH) if f + AH < 120 else []
            if f % 2 == 0:
                a(f"s_waitcnt lgkmcnt({max(0, 2 * (min(f + AH, 120) - f - 2))})")
            for lt in range(2):
                acc = self.G1_ACC + 8 * t + 4 * lt
                A = self.G1_A + 8 * ks + 4 * lt
                B = self.G1_B + 4 * (f % NF)
                a(f"v_mfma_f32_16x16x32_bf16 v[{acc}:{acc+3}], v[{B}:{B+3}], v[{A}:{A+3}], v[{acc}:{acc+3}]")
                if nxt: a(nxt.pop(0))
                if fa:
                    for _ in range(2 if nxt or f + AH < 120 else 3):
                        if fa: self.emit(fa.pop(0))
                elif fv and lt == 1 and f % 2 == 0 and not (fv[0][1] in ("B3", "B4") and self.NRB == 5 and f < 6 * 13): self.emit(fv.pop(0))
        return fa, fv

    KP = 44
    def kg_loads(self):
        a = self.a
        a(f"""
        s_sub_u32 s70, s{S_WAVE}, 4
        s_add_u32 s71, s{S_CH0}, s70
        s_mul_i32 s60, s71, 384
        v_lshlrev_b32 v2, 2, v0
        v_add_u32 v2, s60, v2
        v_lshlrev_b32 v3, 1, v0
        v_add_u32 v3, s60, v3
        """)
        for k, P in enumerate((P_LA, P_AI, P_CR, P_CI)):
            a(f"global_load_dword v{self.KP+k}, v2, s[{P}:{P+1}]")
        a(f"s_lshl_b32 s60, s71, 1\ns_and_b32 s60, s60, -4\ns_load_dword s74, s[{P_DT}:{P_DT+1}], s60\ns_load_dword s75, s[{P_DS}:{P_DS+1}], s60")
        for k, P in enumerate((P_LA, P_AI, P_CR, P_CI)):
            a(f"global_load_ushort v{self.KP+4+k}, v3, s[{P}:{P+1}] offset:256")

    def cmul(self, d, x, y, plain=False):
        if plain:
            return [f"v_mul_f32 v{d}, v{x}, v{y}", f"v_mul_f32 v{d+1}, v{x}, v{y+1}",
                    f"v_fma_f32 v{d}, -v{x+1}, v{y+1}, v{d}", f"v_fma_f32 v{d+1}, v{x+1}, v{y}, v{d+1}"]
        return [f"v_pk_mul_f32 v[{d}:{d+1}], v[{x}:{x+1}], v[{y}:{y+1}] op_sel:[0,0] op_sel_hi:[0,1]",
                f"v_pk_fma_f32 v[{d}:{d+1}], v[{x}:{x+1}], v[{y}:{y+1}], v[{d}:{d+1}] op_sel:[1,1,0] op_sel_hi:[1,0,1] neg_lo:[0,1,0]"]

    def kg_setup(self):
        a = self.a
        self.aux_addr()
        a(f"""
        v_lshrrev_b32 v2, 2, v0
        v_mul_u32_u24 v2, 272, v2
        v_and_b32 v3, 3, v0
        v_lshl_add_u32 v2, v3, 2, v2
        v_add_u32 v10, s72, v2
        v_add_u32 v9, 4352, v10
        v_lshrrev_b32 v2, 4, v0
        v_mul_u32_u24 v2, 272, v2
        v_and_b32 v3, 15, v0
        v_lshl_add_u32 v2, v3, 4, v2
        v_add_u32 v11, s72, v2
        s_bitcmp1_b32 s71, 0
        s_cselect_b32 s60, 0, 16
        s_waitcnt lgkmcnt(0)
        s_lshl_b32 s74, s74, s60
        s_lshl_b32 s75, s75, s60
        s_and_b32 s74, s74, 0xffff0000
        s_and_b32 s75, s75, 0xffff0000
        v_mov_b32 v56, {LOG2E}
        v_mul_f32 v56, s74, v56
        v_exp_f32 v56, v56
        v_mov_b32 v57, s75
        v_cvt_pk_bf16_f32 v56, v56, v56
        v_and_b32 v56, 0xffff0000, v56
        v_add_f32 v58, v56, v56
        v_mov_b32 v59, 0x3f80
        """)

    def kgen(self, hook=None):
        a = self.a
        KP = self.KP
        Z, Z8, W = 60, 62, 64
        F = 66; F2 = 82; G = 98; CV = 102; SV = 110
        GF, TA, TB, TC = 120, 136, 152, 184
        ACC = 168
        VW, VR, VW2 = 10, 11, 9
        TOFF = 4352
        NPL = int(os.environ.get('KPL', '1'))
        class Out:
            def __init__(o, base, neg, pool): o.base = base; o.neg = neg; o.pend = None; o.pool = pool; o.n = 0
            def put(o, src, row, reg=None):
                r = []
                if reg is None:
                    reg = CV + 4 * o.pool + o.n % 4; o.n += 1
                    r.append(f"v_cvt_pk_bf16_f32 v{reg}, v{src}, {'-' if o.neg else ''}v{src+1}")
                if o.pend is None: o.pend = (reg, row)
                else:
                    r.append(f"ds_write2_b32 v{o.base}, v{o.pend[0]}, v{reg} offset0:{4*o.pend[1]} offset1:{4*row}")
                    o.pend = None
                return r
        def merge(*streams):
            streams = [list(s) for s in streams]
            out = []
            while any(streams):
                for s in streams:
                    if s: out.append(s.pop(0))
            return out
        def mf(acc, T, first):
            return [f"v_mfma_f32_16x16x32_bf16 v[{acc}:{acc+3}], v[{T+4*ks}:{T+4*ks+3}], v[{GF+4*ks}:{GF+4*ks+3}], {'0' if first and ks == 0 else f'v[{acc}:{acc+3}]'}" for ks in range(4)]
        def up(k, p):
            r = KP + k + (4 if p == 2 else 0)
            return (lambda d: f"v_and_b32 v{d}, 0xffff0000, v{r}") if p == 1 else (lambda d: f"v_lshlrev_b32 v{d}, 16, v{r}")
        pend = []
        for p in range(3):
            pl = p >= 3 - NPL
            cm = lambda d, x, y: self.cmul(d, x, y, pl)
            if p: self.stamp(10 + p)
            if p == 2: a("s_waitcnt vmcnt(0)")
            prep = [up(0, p)(2), f"v_mul_f32 v2, {LOG2E}, v2", "v_exp_f32 v2, v2", up(1, p)(3), up(2, p)(F), "v_cvt_pk_bf16_f32 v2, v2, v2", up(3, p)(F + 1),
                    "v_and_b32 v2, 0xffff0000, v2", "v_mul_f32 v3, v3, v56", "v_mul_f32 v2, v2, v56", f"v_mul_f32 v{F}, v{F}, v58", f"v_mul_f32 v{F+1}, v{F+1}, v58",
                    f"v_mul_f32 v3, {INV2PI}, v3", "v_mul_f32 v2, 0xbfb8aa3b, v2",
                    "v_mul_f32 v4, 0x41000000, v2", "v_mul_f32 v5, 0x41000000, v3", "v_mul_f32 v6, 0x43000000, v2", "v_mul_f32 v7, 0x43000000, v3",
                    "v_fract_f32 v3, v3", "v_fract_f32 v5, v5", "v_fract_f32 v7, v7", "v_exp_f32 v2, v2", "v_exp_f32 v4, v4", "v_exp_f32 v6, v6",
                    f"v_cos_f32 v{Z}, v3", f"v_sin_f32 v{Z+1}, v3", f"v_cos_f32 v{Z8}, v5", f"v_sin_f32 v{Z8+1}, v5", f"v_cos_f32 v{W}, v7", f"v_sin_f32 v{W+1}, v7"]
            for q, e in ((Z, 2), (Z8, 4), (W, 6)):
                prep += [f"v_mul_f32 v{q}, v{q}, v{e}", f"v_mul_f32 v{q+1}, v{q+1}, v{e}"]
            k = 0
            for i, ins in enumerate(prep):
                a(ins)
                if pend and i >= 6 and i % 3 == 0: a(pend.pop(0))
            assert not pend
            og = Out(VW, False, 0); of = Out(VW2, True, 1); oc0 = Out(VW2, True, 0); oc1 = Out(VW2, True, 1); ot = Out(VW2, True, 0)
            gs = og.put(None, 0, 59) + og.put(Z8, 1)
            prev = Z8
            for j in range(2, 16):
                d = G + 2 * (j % 2)
                gs += cm(d, prev, Z8) + og.put(d, j)
                prev = d
            fs = of.put(F, 0)
            for r in range(1, 8):
                fs += cm(F + 2 * r, F + 2 * (r - 1), Z) + of.put(F + 2 * r, r)
            for r in range(8):
                fs += cm(F2 + 2 * r, F + 2 * r, W) + of.put(F2 + 2 * r, 8 + r)
            for ins in merge(gs, fs): a(ins)
            for ks in range(4):
                a(f"ds_read_b128 v[{GF+4*ks}:{GF+4*ks+3}], v{VR} offset:{1088*ks}")
                a(f"ds_read_b128 v[{TA+4*ks}:{TA+4*ks+3}], v{VR} offset:{TOFF+1088*ks}")
            s1 = []
            for i in range(4):
                s1.append(cm(F + 2 * i, F2 + 4 * i, W) + [f"v_cvt_pk_bf16_f32 v{SV+i}, v{F+2*i}, -v{F+2*i+1}"]
                          + cm(F + 8 + 2 * i, F + 2 * i, W) + [f"v_cvt_pk_bf16_f32 v{SV+4+i}, v{F+8+2*i}, -v{F+8+2*i+1}"])
            for ins in merge(*s1): a(ins)
            c0 = []; prev = F + 8
            for i in range(12):
                d = F2 + 2 * (i % 2)
                c0 += cm(d, prev, W) + oc0.put(d, i if i < 4 else i + 4)
                prev = d
            last = prev
            c1 = []; prev = F + 12
            for i in range(4):
                d = F2 + 4 + 2 * (i % 2)
                c1 += cm(d, prev, W) + oc1.put(d, 4 + i)
                prev = d
            for ins in merge(c0, c1): a(ins)
            for ks in range(4):
                a(f"ds_read_b128 v[{TB+4*ks}:{TB+4*ks+3}], v{VR} offset:{TOFF+1088*ks}")
            for ins in cm(F2 + 8, last, W): a(ins)
            a("s_waitcnt lgkmcnt(12)")
            t2 = []
            for i in range(8): t2 += ot.put(None, i, SV + i)
            t2 += [f"v_cvt_pk_bf16_f32 v{CV}, v{F2+8}, -v{F2+9}", f"ds_write_b32 v{VW2}, v{CV} offset:128"]
            t2 += [f"ds_read_b128 v[{TC+4*ks}:{TC+4*ks+3}], v{VR} offset:{TOFF+1088*ks}" for ks in range(4)]
            for ins in merge(mf(ACC, TA, p == 0), t2): a(ins)
            pend = ["s_waitcnt lgkmcnt(0)"] + mf(ACC + 4, TB, p == 0) + mf(ACC + 8, TC, p == 0)
        self.kpend = pend
        self.KACC = ACC

    def aux_addr(self):
        a = self.a
        a(f"s_mul_i32 s72, s70, {RSZ}\ns_add_u32 s72, s72, {AUX}")
        a(f"""
        v_and_b32 v2, 15, v0
        v_lshrrev_b32 v3, 4, v0
        v_lshlrev_b32 v4, 3, v2
        v_lshlrev_b32 v5, 2, v3
        v_add_u32 v5, 512, v5
        v_lshlrev_b32 v6, 9, v3
        v_cmp_gt_u32 vcc, 2, v3
        v_cndmask_b32 v5, v6, v5, vcc
        v_add_u32 v5, v5, v4
        v_cndmask_b32 v6, 4, 2, vcc
        v_and_b32 v7, 1, v2
        v_cndmask_b32 v7, v7, v3, vcc
        v_cndmask_b32 v8, 8, 0, vcc
        s_add_u32 s60, s72, 32
        v_sub_u32 v9, v5, v6
        v_lshl_add_u32 v12, v9, 1, s60
        v_add_u32 v13, v12, v8
        v_add_u32 v9, v5, v6
        v_sub_u32 v9, v9, v7
        v_lshl_add_u32 v14, v9, 1, s60
        v_sub_u32 v9, v5, v6
        v_add_u32 v9, v9, v7
        v_lshl_add_u32 v15, v9, 1, s60
        v_add_u32 v15, {K1O-2}, v15
        v_cmp_eq_u32 vcc, 32, v0
        v_add_u32 v9, 4, v15
        v_cndmask_b32 v16, v15, v9, vcc
        v_add_u32 v17, {K1O}, v12
        v_add_u32 v18, {K1O}, v13
        """)
        a(f"""
        v_lshlrev_b32 v5, 8, v3
        v_add3_u32 v5, v5, v4, v4
        v_add_u32 v5, s60, v5
        v_add_u32 v30, 512, v5
        v_add_u32 v31, {K1O-4}, v30
        v_add_u32 v32, -2, v30
        s_add_u32 s61, s60, {2*2044}
        v_mov_b32 v33, s61
        v_add_u32 v34, {K1O-2}, v33
        v_add_u32 v35, {K1O}, v33
        v_and_b32 v5, 1, v3
        v_lshlrev_b32 v5, 3, v5
        v_lshrrev_b32 v6, 1, v3
        v_lshl_add_u32 v5, v6, 8, v5
        v_add3_u32 v5, v5, v4, v4
        v_add_u32 v36, s60, v5
        v_add_u32 v37, {K1O-2}, v36
        v_lshlrev_b32 v7, 3, v0
        v_add_u32 v38, s72, v7
        v_mov_b32 v40, 0
        v_mov_b32 v41, 0
        v_lshlrev_b32 v4, 3, v3
        v_sub_u32 v4, v2, v4
        v_add_u32 v4, {233+16-224}, v4
        v_and_b32 v5, 1, v2
        v_and_b32 v4, -2, v4
        v_lshlrev_b32 v4, 1, v4
        v_cmp_eq_u32 vcc, 0, v5
        v_mov_b32 v6, {K1O}
        v_cndmask_b32 v5, 0, v6, vcc
        v_add3_u32 v220, v4, v5, s72
        v_add_u32 v221, 1024, v220
        v_add_u32 v222, 2048, v220
        v_add_u32 v223, 3072, v220
        v_lshlrev_b32 v4, 5, v2
        v_lshl_add_u32 v225, v3, 3, v4
        v_lshl_add_u32 v4, v3, 4, v4
        s_add_u32 s60, s72, {UO}
        v_add_u32 v224, s60, v4
        """)

    def expand(self):
        a = self.a
        ACC = self.KACC
        T0, T1, T2 = ACC, ACC + 4, ACC + 8
        a(f"""
        s_mov_b64 exec, 1
        v_add_f32 v{T0}, v{T0}, v57
        s_mov_b64 exec, -1
        """) if False else None
        for x in self.kpend: a(x)
        a(f"""
        s_mov_b64 exec, 1
        v_add_f32 v{T0}, v{T0}, v57
        s_mov_b64 exec, -1
        v_cvt_pk_bf16_f32 v42, v{T0}, v{T0+1}
        v_cvt_pk_bf16_f32 v43, v{T0+2}, v{T0+3}
        v_cvt_pk_bf16_f32 v29, v{T0+1}, v{T0+2}
        """)
        for i in range(4):
            a(f"v_cvt_pk_bf16_f32 v{20+i}, v{T1+i}, v{T1+i}")
        for i in range(4):
            a(f"ds_write2_b32 v12, v{20+i}, v{20+i} offset0:{64*i} offset1:{64*i+1}")
            a(f"ds_write2_b32 v13, v{20+i}, v{20+i} offset0:{64*i} offset1:{64*i+1}")
            a(f"ds_write2_b32 v17, v{20+i}, v{20+i} offset0:{64*i} offset1:{64*i+1}")
            a(f"ds_write2_b32 v18, v{20+i}, v{20+i} offset0:{64*i} offset1:{64*i+1}")
        a(f"""
        v_cvt_pk_bf16_f32 v24, v{T2}, v{T2}
        v_cvt_pk_bf16_f32 v25, v{T2}, v{T2+1}
        v_cvt_pk_bf16_f32 v26, v{T2+2}, v{T2+2}
        v_cvt_pk_bf16_f32 v27, v{T2+2}, v{T2+3}
        v_cvt_pk_bf16_f32 v28, v{T2+1}, v{T2+2}
        """)
        for i in range(4):
            a(f"ds_write_b16 v14, v{20+i} offset:{256*i}")
            a(f"ds_write_b16 v{16 if i == 0 else 15}, v{20+i} offset:{256*i}")
        a(f"""
        s_mov_b32 exec_hi, 0
        ds_write2_b32 v30, v24, v28 offset0:0 offset1:1
        ds_write_b32 v30, v26 offset:8
        ds_write_b16_d16_hi v30, v27 offset:12
        ds_write_b16 v32, v24
        ds_write2_b32 v31, v24, v25 offset0:0 offset1:1
        ds_write2_b32 v31, v26, v27 offset0:2 offset1:3
        s_mov_b32 exec_lo, 0
        s_mov_b32 exec_hi, 1
        ds_write2_b32 v33, v24, v24 offset0:0 offset1:1
        ds_write2_b32 v35, v24, v24 offset0:0 offset1:1
        ds_write_b16 v34, v24
        s_mov_b64 exec, 15
        ds_write_b64 v38, v[40:41]
        ds_write_b64 v38, v[40:41] offset:{K1O}
        s_lshr_b64 exec, -1, 4
        ds_write_b64 v38, v[40:41] offset:{UO}
        s_mov_b64 exec, -1
        ds_write_b64 v36, v[42:43]
        ds_write_b16 v37, v42
        ds_write_b32 v36, v29 offset:{K1O}
        ds_write_b16_d16_hi v37, v43 offset:6
        """)

    def u_gather(self):
        a = self.a
        sc = "sc1" if self.fused else ""
        a(f"""
        v_lshrrev_b32 v2, 2, v0
        v_and_b32 v3, 3, v0
        v_mul_u32_u24 v4, 10240, v2
        v_lshl_add_u32 v4, v3, 4, v4
        s_lshl_b32 s60, s{S_CH0}, 4
        s_add_u32 s60, s60, {XT}
        v_mul_u32_u24 v5, {RSZ}, v3
        v_lshl_add_u32 v5, v2, 4, v5
        v_add_u32 v5, {AUX+UO+UPAD}, v5
        v_cmp_gt_u32 vcc, s{S_NCH}, v3
        s_mov_b64 s[62:63], exec
        s_and_b64 exec, exec, vcc
        """)
        for i in range(16):
            a(f"buffer_load_dwordx4 v[{40+4*i}:{43+4*i}], v4, s[{R_WS}:{R_WS+3}], s60 offen {sc}")
            if i < 15: a(f"s_add_u32 s60, s60, {16*10240}")
        for i in range(16):
            a(f"s_waitcnt vmcnt({14-i})" if i < 15 else "s_nop 7")
            a(f"ds_write_b128 v5, v[{40+4*i}:{43+4*i}] offset:{256*i}")
        a("s_mov_b64 exec, s[62:63]\ns_waitcnt lgkmcnt(0)")

    def conv(self):
        a = self.a
        sc = "sc1" if self.fused else ""
        ACC = 60; OP = [92, 156]
        AB = 220
        first = set()
        def reads(tau):
            s = OP[tau % 2]
            r = []
            for d in range(8):
                r.append(f"ds_read_b128 v[{s+32+4*d}:{s+35+4*d}], v224 offset:{512*d+64*tau}")
                o = 512 * d - 64 * tau + 448
                b = AB + o // 1024; q = (o % 1024) // 4
                r.append(f"ds_read2_b32 v[{s+4*d}:{s+4*d+1}], v{b} offset0:{q} offset1:{q+1}")
                r.append(f"ds_read2_b32 v[{s+4*d+2}:{s+4*d+3}], v{b} offset0:{q+2} offset1:{q+3}")
            return r
        r0 = reads(0)
        for k, ins in enumerate(r0):
            a(ins)
            if k == 12: a("s_waitcnt lgkmcnt(3)")
        for tau in range(8):
            s = OP[tau % 2]
            nxt = reads(tau + 1) if tau < 7 else []
            pairs = sorted([(d, n) for d in range(8) for n in range(8 - d)], key=lambda p: (max(p), p))
            a("s_waitcnt lgkmcnt(0)")
            for k, (d, n) in enumerate(pairs):
                acc = ACC + 4 * (d + n)
                a(f"v_mfma_f32_16x16x32_bf16 v[{acc}:{acc+3}], v[{s+4*d}:{s+4*d+3}], v[{s+32+4*n}:{s+35+4*n}], {f'v[{acc}:{acc+3}]' if acc in first else '0'}")
                first.add(acc)
                if nxt and k < 30 and k % 5 != 4:
                    a(nxt.pop(0))
            assert not nxt
        a(f"""
        s_lshl_b32 s61, s71, 12
        s_add_u32 s61, s61, {ST}
        """)
        for n in range(8):
            acc = ACC + 4 * n; o = 128 + 2 * n
            a(f"""
            v_cvt_pk_bf16_f32 v{o}, v{acc}, v{acc+1}
            v_cvt_pk_bf16_f32 v{o+1}, v{acc+2}, v{acc+3}
            buffer_store_dwordx2 v[{o}:{o+1}], v225, s[{R_WS}:{R_WS+3}], s61 offen offset:{512*n} {sc}
            """)

    G2_ACC = 16; G2_RB = 96; G2_BT = 156; G2_A = 176
    def g2_addr(self):
        self.a(f"""
        v_lshlrev_b32 v9, 4, v0
        v_add_u32 v8, 4096, v9
        s_mul_i32 s74, s{S_CB2}, 245760
        s_mul_i32 s60, s{S_WAVE}, {12*5120}
        s_add_u32 s74, s74, s60
        s_add_u32 s74, s74, {W2F}
        s_mul_i32 s75, s{S_WAVE}, 30720
        """)
    @staticmethod
    def kloc(j):
        return j

    NRB = int(os.environ.get('NRB', '3'))
    def lslot(self, j):
        if self.NRB == 3:
            q = j if j < 6 else j - 9
        else:
            q = (j - 5) % 6
        return q * 5120
    def inreg(self, j):
        return 6 <= j < 9 if self.NRB == 3 else j < 5
    def rbreg(self, j):
        return self.G2_RB + 20 * (j % 3 if self.NRB == 3 else j)
    def a2reg(self, j):
        if self.NRB == 3: return self.G2_A + 16 * (j % 5)
        return [208, 224, 240, 208, 96, 224, 116, 240, 136, 208, 156, 96][j]

    def g2_dma_items(self, j):
        W = f"s[{R_WS}:{R_WS+3}]"
        l0 = self.lslot(j)
        r = []
        for nt in range(5):
            pre = [f"s_add_u32 s81, s74, {5120*self.kloc(j)}"] if nt == 0 else []
            if nt < 4: r.append((pre + [f"s_add_u32 m0, s75, {l0}", f"buffer_load_dwordx4 v9, {W}, s81 offen offset:{1024*nt} sc1 lds"], f"D{j}"))
            else: r.append(([f"s_add_u32 m0, s75, {l0+4096}", f"buffer_load_dwordx4 v8, {W}, s81 offen sc1 lds"], f"D{j}"))
        return r

    def g2_bload_items(self, j):
        W = f"s[{R_WS}:{R_WS+3}]"
        r = []
        for nt in range(5):
            d = self.rbreg(j) + 4 * nt
            pre = [f"s_add_u32 s81, s74, {5120*self.kloc(j)}"] if nt == 0 else []
            if nt < 4: r.append((pre + [f"buffer_load_dwordx4 v[{d}:{d+3}], v9, {W}, s81 offen offset:{1024*nt} sc1"], f"B{j}"))
            else: r.append(([f"buffer_load_dwordx4 v[{d}:{d+3}], v8, {W}, s81 offen sc1"], f"B{j}"))
        return r

    def g2_aload_items(self, j):
        W = f"s[{R_WS}:{R_WS+3}]"
        k = self.kloc(j)
        vo = (9, 8, 13)[k // 4]
        r = []
        for i in range(4):
            d = self.a2reg(j) + 4 * i
            r.append(([f"buffer_load_dwordx4 v[{d}:{d+3}], v{vo}, {W}, s{76+i} offen offset:{1024*(k%4)} sc1"], f"A{j}"))
        return r

    def g2_setup_s(self):
        a = self.a
        for i in range(4):
            a(f"""
            s_add_u32 s60, s{S_WAVE}, {i}
            s_and_b32 s60, s60, 3
            s_lshl_b32 s61, s{S_RB2}, 2
            s_add_u32 s60, s60, s61
            s_mul_i32 s60, s60, 49152
            s_mul_i32 s61, s{S_WAVE}, {12*1024}
            s_add_u32 s60, s60, s61
            s_add_u32 s{76+i}, s60, {HF}
            """)
    def g2_setup_v(self):
        a = self.a
        self.seen = {t for t in self.seen if not t.startswith("A")}
        a(f"v_add_u32 v10, s75, v9\nv_add_u32 v13, 8192, v9")

    def fh_wait(self, tp):
        self.a(f"s_lshl_b32 s66, s{S_WAVE}, 4\ns_add_u32 s66, s66, {M_FH + 64*tp}")
        self.lds_wait_all("s66", 1, f"fhw{tp}", tmp=2)

    def g2_loop(self, hook=None, hook_at=6, fill0=None):
        a = self.a
        big = self.NRB != 3
        seq = [(j, nt) for j in range(9) for nt in range(5)] + [(j, nt) for nt in range(5) for j in range(9, 12)]
        lds = [x for x in seq if not self.inreg(x[0])]
        pos = {x: i for i, x in enumerate(lds)}
        NB = 3 if big else 5
        BT = 196 if big else self.G2_BT
        issued = [0]; lq = []
        def bt_read():
            i = issued[0]
            if i >= len(lds): return
            j, nt = lds[i]
            if nt == 0 or j >= 9: self.vwait(f"D{j}")
            d = BT + 4 * (i % NB)
            a(f"ds_read_b128 v[{d}:{d+3}], v10 offset:{self.lslot(j) + 1024 * nt}")
            lq.append(i); issued[0] += 1
        fill = list(fill0 or [])
        if not big:
            for _ in range(4): bt_read()
        asched = {0: [3, 4], 1: [5, 6], 2: [7, 8], 3: [9, 10], 4: [11]} if big else {j: [j + 5] for j in range(7)}
        wslot = (lambda i: i) if big else (lambda i: i + 2)
        self.wslot = wslot
        wr = []; done = set()
        for (j, nt) in seq:
            if j not in done:
                done.add(j)
                if hook and j == hook_at: hook(); lq.append("x")
                self.stamp(16 + j, q=True)
                self.vwait(f"A{j}")
                if self.inreg(j): self.vwait(f"B{j}")
            if self.inreg(j):
                B = self.rbreg(j) + 4 * nt
            else:
                i = pos[(j, nt)]
                B = BT + 4 * (i % NB)
                k = lq.index(i)
                a(f"s_waitcnt lgkmcnt({len(lq) - 1 - k})"); del lq[:k + 1]
            for i in range(4):
                acc = self.G2_ACC + 16 * nt + 4 * i
                A = self.a2reg(j) + 4 * i
                a(f"v_mfma_f32_16x16x32_bf16 v[{acc}:{acc+3}], v[{B}:{B+3}], v[{A}:{A+3}], {'0' if j == 0 else f'v[{acc}:{acc+3}]'}")
                if fill and i in (0, 2): self.emit(fill.pop(0))
                if i == 1:
                    if big:
                        if j > 4 or nt >= 3 and j == 4: bt_read()
                    elif not self.inreg(j):
                        if not (j == 5 and nt >= 1): bt_read()
                    elif j == 8 and nt >= 1: bt_read()
                if i == 3 and wr:
                    a(wr.pop(0)); lq.append("w")
            if j == 11:
                wr += [f"ds_write_b128 v10, v[{self.G2_ACC+16*nt+4*i}:{self.G2_ACC+16*nt+4*i+3}] offset:{5120*wslot(i)+1024*nt}" for i in range(1, 4)]
            if nt == 4 and j < 9:
                fill = sum((self.g2_aload_items(jj) for jj in asched.get(j, [])), []) + fill
                if big:
                    if j == 5: fill += self.g2_dma_items(11)
                elif j < 3: fill += self.g2_dma_items(j + 9)
        assert not fill
        for x in wr: a(x)

    def svc_x_loads(self):
        a = self.a
        a(f"""
        s_mul_i32 s60, s{S_RB2}, {64*1280}
        s_mul_i32 s61, s{S_CB2}, 160
        s_add_u32 s60, s60, s61
        """)
        for i in range(10):
            a(f"""
            v_add_u32 v2, {64*i}, v0
            v_mul_u32_u24 v3, 52429, v2
            v_lshrrev_b32 v3, 19, v3
            v_mul_u32_u24 v4, 10, v3
            v_sub_u32 v4, v2, v4
            v_lshlrev_b32 v4, 4, v4
            v_mad_u32_u24 v{184+i}, v3, s97, v4
            v_mul_u32_u24 v3, 1280, v3
            v_add_u32 v3, v3, v4
            buffer_load_dwordx4 v[{140+4*i}:{143+4*i}], v3, s[{R_X}:{R_X+3}], s60 offen
            """.replace("s97", "s67") if False else f"""
            v_add_u32 v2, {64*i}, v0
            v_mul_u32_u24 v3, 52429, v2
            v_lshrrev_b32 v3, 19, v3
            v_mul_u32_u24 v4, 10, v3
            v_sub_u32 v4, v2, v4
            v_lshlrev_b32 v4, 4, v4
            v_mul_u32_u24 v5, {XRS}, v3
            v_add_u32 v{184+i}, v5, v4
            v_mul_u32_u24 v3, 1280, v3
            v_add_u32 v3, v3, v4
            buffer_load_dwordx4 v[{140+4*i}:{143+4*i}], v3, s[{R_X}:{R_X+3}], s60 offen
            """)
        a(f"""
        v_min_u32 v2, 39, v0
        v_lshlrev_b32 v2, 2, v2
        v_add_u32 v2, s61, v2
        global_load_dword v180, v2, s[{P_B2}:{P_B2+1}]
        """)

    def svc_x_write(self):
        a = self.a
        for i in range(10):
            a(f"v_add_u32 v{184+i}, {XI}, v{184+i}")
        for i in range(10):
            a(f"ds_write_b128 v{184+i}, v[{140+4*i}:{143+4*i}]")
        a(f"""
        v_lshlrev_b32 v182, 16, v180
        v_and_b32 v183, 0xffff0000, v180
        v_min_u32 v2, 39, v0
        v_lshlrev_b32 v2, 3, v2
        v_add_u32 v2, {M_B2}, v2
        ds_write_b64 v2, v[182:183]
        """)

    def s_tile_dma(self):
        a = self.a
        sc = "sc1" if self.fused else ""
        a(f"""
        v_lshrrev_b32 v2, 3, v0
        v_and_b32 v3, 7, v0
        v_lshlrev_b32 v2, 12, v2
        v_lshl_add_u32 v2, v3, 4, v2
        s_mul_i32 s60, s{S_CB2}, {80*4096}
        s_lshl_b32 s61, s{S_RB2}, 7
        s_add_u32 s60, s60, s61
        s_add_u32 s60, s60, {ST}
        """)
        for t in range(10):
            a(f"s_mov_b32 m0, {AUX+1024*t}")
            a(f"buffer_load_dwordx4 v2, s[{R_WS}:{R_WS+3}], s60 offen {sc} lds")
            if t < 9: a(f"s_add_u32 s60, s60, {8*4096}")
        self.svc_x_write()
        a("s_waitcnt vmcnt(0) lgkmcnt(0)")

    def g2_final(self):
        a = self.a
        ACC = self.G2_ACC
        self.srd(R_OUT, P_OUT, 2621440)
        for i in range(1, 4):
            a(f"""
            s_sub_u32 s60, s{S_WAVE}, {i}
            s_and_b32 s60, s60, 3
            s_mul_i32 s60, s60, 30720
            s_add_u32 s60, s60, {5120*self.wslot(i)}
            v_add_u32 v{4+i}, s60, v9
            """)
        a(f"""
        v_and_b32 v2, 15, v0
        v_lshrrev_b32 v3, 4, v0
        v_lshrrev_b32 v12, 2, v2
        v_lshl_add_u32 v12, v3, 2, v12
        v_lshlrev_b32 v12, 7, v12
        v_and_b32 v15, 3, v0
        v_lshl_add_u32 v12, v15, 3, v12
        s_lshl_b32 s60, s{S_WAVE}, 5
        s_add_u32 s60, s60, {AUX}
        v_add_u32 v12, s60, v12
        s_mul_i32 s60, s{S_WAVE}, {16*XRS}
        s_add_u32 s60, s60, {XI}
        v_mul_u32_u24 v11, {XRS}, v2
        v_lshl_add_u32 v11, v3, 3, v11
        v_add_u32 v11, s60, v11
        v_lshlrev_b32 v13, 4, v3
        v_add_u32 v13, {M_B2}, v13
        v_mov_b32 v250, 1.0
        v_mov_b32 v251, 1.0
        v_mov_b32 v252, 0xbfb8aa3b
        s_lshl_b32 s80, s{S_RB2}, 2
        s_add_u32 s80, s80, s{S_WAVE}
        s_mul_i32 s80, s80, {16*1280}
        s_mul_i32 s61, s{S_CB2}, 160
        s_add_u32 s80, s80, s61
        """)
        for i in range(3):
            a(f"""
            v_add_u32 v2, {64*i}, v0
            v_mul_u32_u24 v3, 52429, v2
            v_lshrrev_b32 v3, 19, v3
            v_mul_u32_u24 v4, 10, v3
            v_sub_u32 v4, v2, v4
            v_lshlrev_b32 v4, 4, v4
            v_mul_u32_u24 v2, {XRS}, v3
            v_add3_u32 v{240+i}, v2, v4, s60
            v_mul_u32_u24 v3, 1280, v3
            v_add_u32 v{243+i}, v3, v4
            """)
        a("s_waitcnt lgkmcnt(0)\ns_barrier")
        P = 96
        def reads(nt):
            p = P + 20 * nt
            for i in range(1, 4):
                a(f"ds_read_b128 v[{p+4*(i-1)}:{p+4*(i-1)+3}], v{4+i} offset:{1024*nt}")
            a(f"ds_read_b128 v[{p+12}:{p+15}], v13 offset:{64*nt}")
            a(f"ds_read_b64_tr_b16 v[{p+16}:{p+17}], v12 offset:{2048*nt}")
            a(f"ds_read_b64 v[{p+18}:{p+19}], v11 offset:{32*nt}")
        reads(0); reads(1)
        Pp = lambda r: f"v[{r}:{r+1}]"
        for nt in range(5):
            acc = ACC + 16 * nt; p = P + 20 * nt; t = 200 + 12 * (nt % 2)
            a(f"s_waitcnt lgkmcnt({6 if nt < 4 else 1})" if nt != 0 else "s_waitcnt lgkmcnt(6)")
            a(f"""
            v_pk_add_f32 {Pp(acc)}, {Pp(acc)}, {Pp(p)}
            v_pk_add_f32 {Pp(acc+2)}, {Pp(acc+2)}, {Pp(p+2)}
            v_pk_add_f32 {Pp(p+4)}, {Pp(p+4)}, {Pp(p+8)}
            v_pk_add_f32 {Pp(p+6)}, {Pp(p+6)}, {Pp(p+10)}
            v_pk_add_f32 {Pp(acc)}, {Pp(acc)}, {Pp(p+12)}
            v_pk_add_f32 {Pp(acc+2)}, {Pp(acc+2)}, {Pp(p+14)}
            v_pk_add_f32 {Pp(acc)}, {Pp(acc)}, {Pp(p+4)}
            v_pk_add_f32 {Pp(acc+2)}, {Pp(acc+2)}, {Pp(p+6)}
            v_pk_mul_f32 {Pp(t)}, {Pp(acc)}, v[252:253] op_sel_hi:[1,0]
            v_pk_mul_f32 {Pp(t+2)}, {Pp(acc+2)}, v[252:253] op_sel_hi:[1,0]
            """)
            for i in range(4): a(f"v_exp_f32 v{t+i}, v{t+i}")
            if nt + 2 < 5: reads(nt + 2)
            a(f"""
            v_lshlrev_b32 v{t+4}, 16, v{p+16}
            v_and_b32 v{t+5}, 0xffff0000, v{p+16}
            v_lshlrev_b32 v{t+6}, 16, v{p+17}
            v_and_b32 v{t+7}, 0xffff0000, v{p+17}
            v_pk_add_f32 {Pp(t)}, {Pp(t)}, v[250:251]
            v_pk_add_f32 {Pp(t+2)}, {Pp(t+2)}, v[250:251]
            """)
            for i in range(4): a(f"v_rcp_f32 v{t+i}, v{t+i}")
            a(f"""
            v_pk_mul_f32 {Pp(t+4)}, {Pp(t+4)}, {Pp(acc)}
            v_pk_mul_f32 {Pp(t+6)}, {Pp(t+6)}, {Pp(acc+2)}
            v_lshlrev_b32 v{t+8}, 16, v{p+18}
            v_and_b32 v{t+9}, 0xffff0000, v{p+18}
            v_lshlrev_b32 v{t+10}, 16, v{p+19}
            v_and_b32 v{t+11}, 0xffff0000, v{p+19}
            v_pk_fma_f32 {Pp(t+8)}, {Pp(t+4)}, {Pp(t)}, {Pp(t+8)}
            v_pk_fma_f32 {Pp(t+10)}, {Pp(t+6)}, {Pp(t+2)}, {Pp(t+10)}
            v_cvt_pk_bf16_f32 v{p+18}, v{t+8}, v{t+9}
            v_cvt_pk_bf16_f32 v{p+19}, v{t+10}, v{t+11}
            ds_write_b64 v11, v[{p+18}:{p+19}] offset:{32*nt}
            """)
        osc = os.environ.get('OSC', '')
        a(f"""
        ds_read_b128 v[224:227], v240
        ds_read_b128 v[228:231], v241
        s_mov_b32 exec_hi, 0
        ds_read_b128 v[232:235], v242
        s_mov_b64 exec, -1
        s_waitcnt lgkmcnt(1)
        buffer_store_dwordx4 v[224:227], v243, s[{R_OUT}:{R_OUT+3}], s80 offen {osc}
        s_waitcnt lgkmcnt(0)
        buffer_store_dwordx4 v[228:231], v244, s[{R_OUT}:{R_OUT+3}], s80 offen {osc}
        s_mov_b32 exec_hi, 0
        s_nop 2
        buffer_store_dwordx4 v[232:235], v245, s[{R_OUT}:{R_OUT+3}], s80 offen {osc}
        s_mov_b64 exec, -1
        """)

    def misc_init(self):
        self.a(f"""
        v_lshlrev_b32 v2, 2, v0
        v_add_u32 v2, {MISC}, v2
        v_mov_b32 v3, 0
        ds_write_b32 v2, v3
        """)


HEADER = open("cdna_kernels/" + NAME + ".s.ref").read().split("; Override launch")[0]

def kernel_text(label, body):
    return f""".text
.globl {label}
.p2align 8
.type {label},@function
{label}:
{body}
"""
def desc(label, vgpr=256):
    return f""".section .rodata,"a"
.p2align 6
.amdhsa_kernel {label}
  .amdhsa_next_free_vgpr {vgpr}
  .amdhsa_next_free_sgpr 102
  .amdhsa_accum_offset {vgpr}
  .amdhsa_group_segment_fixed_size 0
  .amdhsa_kernarg_size 120
  .amdhsa_user_sgpr_count 2
  .amdhsa_user_sgpr_kernarg_segment_ptr 1
  .amdhsa_system_sgpr_workgroup_id_x 1
.end_amdhsa_kernel
"""
```

```python
import sys, os
from parts import *
E = lambda k, d=0: int(os.environ.get(k, d))

class Fused(Gen):
    def cnt_add(self, addr, rtn=False):
        self.a(f"""
        v_mov_b32 v2, {addr}
        v_mov_b32 v3, 1
        s_mov_b64 exec, 1
        {'ds_add_rtn_u32 v4, v2, v3' if rtn else 'ds_add_u32 v2, v3'}
        s_mov_b64 exec, -1
        """)

    def cnt_wait(self, addr, n, name, sleep=0):
        lab = self.L(name)
        self.a(f"""
        v_mov_b32 v2, {addr}
        s_mov_b32 s61, 0
        {lab}:
        ds_read_b32 v3, v2
        s_add_u32 s61, s61, 1
        s_waitcnt lgkmcnt(0)
        v_readfirstlane_b32 s60, v3
        s_cmp_gt_u32 s61, 0x200000
        s_cbranch_scc1 {lab}_d
        s_cmp_ge_u32 s60, {n}
        s_cbranch_scc1 {lab}_d
        {'s_sleep %d' % sleep if sleep else ''}
        s_branch {lab}
        {lab}_d:
        """)

    def build_fused(self):
        a = self.a
        L = self.L
        st = 2 if self.stamps else 0
        N0 = E('N0', 8)
        slp = ('s_sleep %d' % PSLEEP) if PSLEEP else ''
        GE = E('GE', 1); NA = E('NA', 0); GL = E('GL', 0); GS = 40 - 4 * GE - 3 * NA - 3 * GL
        def aux_dma(p):
            if NA == 0: return
            self.w1_addr(12)
            a(f"s_add_u32 s68, s70, {GS}\n{L('adl' + p)}:")
            self.w1_group(12)
            a(f"s_add_u32 s68, s68, 3\ns_cmp_lt_u32 s68, {GS + 3 * NA}\ns_cbranch_scc1 {L('adl' + p)}")
        a(f"{L('start')}:")
        self.prologue()
        self.stamp(0)
        if 0 in self.sel:
            a(f"v_mov_b32 v1, s94\ns_mov_b64 exec, 1\nbuffer_store_dword v1, off, s[{R_WS}:{R_WS+3}], s100 offset:124\ns_mov_b64 exec, -1")
        a(f"s_cmp_ge_u32 s{S_WAVE}, 4\ns_cbranch_scc1 {L('aux0')}")
        a(f"s_setprio {E('GP', 2)}")
        self.ln_loads()
        a(f"s_branch {L('gemm')}\n{L('aux0')}:")
        a.clear_hist()
        a(f"s_sub_u32 s60, s{S_WAVE}, 4\ns_cmp_ge_u32 s60, s{S_NCH}\ns_cbranch_scc1 {L('aux1')}")
        a("s_setprio 3")
        self.kg_loads()
        a(f"s_branch {L('kg')}\n{L('aux1')}:")
        a(f"s_cmp_lg_u32 s{S_WAVE}, 7\ns_cbranch_scc1 {L('noch')}")
        a(f"s_setprio {E('SP', 1)}")
        self.w1_addr(12)
        a(f"""
        s_cmp_lt_u32 s{S_NCH}, 3
        s_cselect_b32 s66, {GS - E('H6', 0)}, {GS}
        s_mul_i32 s68, s{S_RB}, s66
        s_lshr_b32 s68, s68, 4
        s_mov_b32 s67, s66
        s_sub_u32 s65, s66, 1
        {L('sdl')}:
        """)
        self.w1_group(12)
        a(f"""
        s_add_u32 s68, s68, 1
        s_cmp_eq_u32 s68, s66
        s_cselect_b32 s68, 0, s68
        s_cmp_lg_u32 s67, s65
        s_cbranch_scc1 {L('sdw')}
        """)
        self.srd(R_OUT, P_OUT, 2621440)
        a(f"""
        v_lshlrev_b32 v3, 20, v0
        s_mov_b32 exec_hi, 0
        buffer_load_dword v131, v3, s[{R_WS}:{R_WS+3}], 0 offen
        buffer_load_dword v132, v3, s[{R_OUT}:{R_OUT+3}], 0 offen
        s_mov_b64 exec, -1
        {L('sdw')}:
        s_sub_u32 s67, s67, 1
        s_cmp_lg_u32 s67, 0
        s_waitcnt vmcnt({E('DEPTH', 45)})
        s_cbranch_scc1 {L('sdl')}
        s_branch {L('svc')}
        {L('gemm')}:
        """)
        a.clear_hist()
        self.w1_addr(92)
        self.g1_b1_loads()
        a(f"s_add_u32 s68, s{S_WAVE}, {GS + 3 * NA}")
        for i in range(GE):
            self.w1_group(92)
            if i + 1 < GE: a("s_add_u32 s68, s68, 4")
        self.ln_pub_addr()
        a(f"s_waitcnt vmcnt({6 + 3 * GE})")
        self.stamp(1)
        self.ln_math()
        a("s_waitcnt lgkmcnt(0)")
        self.lds_set(M_LNW, S_WAVE, tmp=(2, 3))
        self.lds_wait_all(M_LNW, 4, "lnw4", tmp=2, sleep=0)
        a(f"v_mov_b32 v97, 0\nv_mov_b32 v96, 0\ns_cmp_lg_u32 s{S_WAVE}, 0\ns_cbranch_scc1 {L('g_n0')}")
        a(f"global_load_dword v96, v97, s[{P_DBG}:{P_DBG+1}] sc1\n{L('g_n0')}:")
        self.ln_publish()
        XS = E('XS', 1)
        if not XS: self.ln_publish_xt()
        self.stamp(13)
        if not XS: self.cnt_add(M_LNCNT + 8)
        if E('RG'): self.cnt_add(M_PD + 4)
        a(f"s_waitcnt vmcnt({(3 if XS else 6) + (1 if 13 in self.sel else 0)})")
        self.cnt_add(M_LNCNT + 12)
        self.g1_prep()
        self.g2_addr()
        a("s_waitcnt vmcnt(0)")
        self.stamp(2)
        a(f"s_cmp_eq_u32 s{S_WAVE}, 0\ns_cbranch_scc1 {L('g_w0')}")
        self.cnt_add(M_LNCNT)
        if GL:
            a(f"s_add_u32 s68, s{S_WAVE}, {40 - 3 * GL - 1}")
            for i in range(GL):
                self.w1_group(92)
                if i + 1 < GL: a("s_add_u32 s68, s68, 3")
            a("s_waitcnt vmcnt(0)")
            self.cnt_add(M_LNCNT + 12)
        a(f"s_branch {L('g_j')}\n{L('g_w0')}:")
        a(f"""
        s_mov_b32 s64, 0
        {L('np')}:
        v_readfirstlane_b32 s{S_NONCE}, v96
        s_cmp_gt_u32 s64, 0x20000
        s_cbranch_scc1 {L('npd')}
        s_cmp_lg_u32 s{S_NONCE}, 0
        s_cbranch_scc1 {L('npd')}
        global_load_dword v96, v97, s[{P_DBG}:{P_DBG+1}] sc1
        s_add_u32 s64, s64, 1
        s_waitcnt vmcnt(0)
        s_nop 1
        s_branch {L('np')}
        {L('npd')}:
        v_mov_b32 v2, s{S_NONCE}
        v_mov_b32 v3, {M_NONCE}
        ds_write_b32 v3, v2
        v_mov_b32 v3, {M_LNCNT}
        s_mov_b32 s64, 0
        {L('lc')}:
        ds_read_b32 v2, v3
        s_add_u32 s64, s64, 1
        s_waitcnt lgkmcnt(0)
        v_readfirstlane_b32 s60, v2
        s_cmp_gt_u32 s64, 0x200000
        s_cbranch_scc1 {L('lcd')}
        s_cmp_lt_u32 s60, 3
        s_cbranch_scc1 {L('lc')}
        {L('lcd')}:
        s_mul_i32 s66, s{S_LID}, {FSTR}
        s_add_u32 s66, s66, {FLN}
        """)
        self.store_flag(66)
        self.stamp(10)
        a(f"{L('g_j')}:")
        if XS:
            self.ln_publish_xt()
            self.cnt_add(M_LNCNT + 8)
        self.get_nonce("gn", tmp=2)
        a(f"s_lshl_b32 s66, s{S_RB}, 2\ns_add_u32 s66, s66, s{S_WAVE}\ns_mul_i32 s66, s66, {4*FSTR}\ns_add_u32 s66, s66, {FLN}")
        def flt(p, wait):
            a(f"s_cmp_lg_u32 s71, 0\ns_cbranch_scc1 {L('flt' + p)}\ns_mov_b32 s71, 1")
            wait()
            self.cnt_add(M_HC + 4, rtn=True)
            a(f"""
            s_mul_i32 s65, s{S_LID}, {FSTR}
            s_add_u32 s65, s65, {FLT}
            s_waitcnt lgkmcnt(0)
            s_nop 1
            v_readfirstlane_b32 s60, v4
            s_cmp_lg_u32 s60, 3
            s_cbranch_scc1 {L('flt' + p)}
            v_mov_b32 v2, s{S_NONCE}
            s_mov_b64 exec, 1
            buffer_store_dword v2, off, s[{R_WS}:{R_WS+3}], s65 sc1
            s_mov_b64 exec, -1
            {L('flt' + p)}:
            """)
        a("s_mov_b32 s71, 0")
        self.spoll("pln", 66, FSTR, E('SS', 1), n=4, miss=(lambda: flt("a", lambda: a("s_waitcnt vmcnt(0)"))) if XS else None)
        self.stamp(3)
        self.vq = ["XT"]; self.seen.add("XT")
        for ks in range(2):
            for it in self.g1_aload(ks): self.emit(it)
        if XS: flt("b", lambda: a("s_waitcnt vmcnt(4)"))
        for ks in range(2, N0):
            for it in self.g1_aload(ks): self.emit(it)
        self.cnt_add(M_LN)
        if E('H6', 0):
            a(f"s_cmp_lt_u32 s{S_NCH}, 3\ns_cselect_b32 s65, 6, 5")
            self.cnt_wait(M_LNCNT + 12, "s65", "w1w")
        else: self.cnt_wait(M_LNCNT + 12, 5 + (3 if NA else 0) + (3 if GL else 0), "w1w")
        self.stamp(4, q=True)
        self.pubn = ''
        def publish(p):
            self.vwait("S")
            self.cnt_add(M_HC + 4 * p, rtn=True)
            a(f"""
            s_mul_i32 s66, s{S_LID}, {FHS}
            s_add_u32 s66, s66, {FH + 256 * FHS * p}
            s_waitcnt lgkmcnt(0)
            s_nop 1
            v_readfirstlane_b32 s60, v4
            s_cmp_lg_u32 s60, 3
            s_cbranch_scc1 {L('nofh%d%s' % (p, self.pubn))}
            """)
            self.store_flag(66)
            if p == 0: self.lds_set(M_HP, None, tmp=(2, 3))
            a(f"{L('nofh%d%s' % (p, self.pubn))}:")
            self.stamp(28 + p, q=True)
            self.vq.append("f")
            self.vq.pop()
        def cnt_wait(addr, n, name):
            lab = L(name)
            a(f"""
            v_mov_b32 v2, {addr}
            s_mov_b32 s61, 0
            {lab}:
            ds_read_b32 v3, v2
            s_add_u32 s61, s61, 1
            s_waitcnt lgkmcnt(0)
            v_readfirstlane_b32 s60, v3
            s_cmp_gt_u32 s61, 0x200000
            s_cbranch_scc1 {lab}_d
            s_cmp_lt_u32 s60, {n}
            s_cbranch_scc1 {lab}
            {lab}_d:
            """)
        def ev_rb():
            self.lds_wait_all(M_FW, 1, "fww", tmp=2)
            return sum((self.g2_bload_items(j) for j in range(12) if self.inreg(j)), [])
        ev = {10: lambda: self.stamp(14, q=True)}
        RB1 = E('RB1', 11)
        if RB1 < 20: ev[RB1] = ev_rb
        self.g2_setup_s()
        fa, fv = self.g1_loop(N0, ev, TL=E('TL', 5))
        self.cnt_add(M_PD)
        self.stamp(5, q=True)
        for it in fa + self.epi_ops(2) + fv[:E('FV', 4)]: self.emit(it)
        fv = fv[E('FV', 4):]
        self.stamp(15, q=True)
        self.g2_setup_v()
        ND = 0
        publish(0)
        rest = ev_rb() if RB1 >= 20 else []
        for it in fv: self.emit(it)
        cnt_wait(M_PD, 4, "pdw")
        if E('PF'): a("s_setprio 0")
        for j in (range(6) if self.NRB == 3 else range(5, 11)):
            for it in self.g2_dma_items(j): self.emit(it)
        for it in rest: self.emit(it)
        self.stamp(6, q=True)
        a(f"s_lshr_b32 s66, s{S_RB2}, 1\ns_lshl_b32 s66, s66, 2\ns_add_u32 s66, s66, s{S_WAVE}\ns_mul_i32 s66, s66, {4*FHS}\ns_add_u32 s66, s66, {FH}")
        self.spoll("pfh", 66, FHS, E('SS', 1), n=4)
        NF2 = E('NF2', 2)
        for j in range(NF2):
            for it in self.g2_aload_items(j): self.emit(it)
        self.stamp(7, q=True)
        self.g2_loop(hook=lambda: self.lds_set(M_J6, None, tmp=(2, 3)), hook_at=E('J6', 6), fill0=sum((self.g2_aload_items(j) for j in range(NF2, 5 if self.NRB == 3 else 3)), []))
        self.stamp(8)
        if E('PF'): a("s_setprio 2")
        self.g2_final()
        if 9 in self.sel: a("s_waitcnt vmcnt(0)")
        self.stamp(9)
        if E('KX'):
            a(f"""
            s_waitcnt vmcnt(0)
            s_memrealtime s[62:63]
            s_waitcnt lgkmcnt(0)
            s_sub_u32 s60, s62, s{S_NONCE}
            s_min_u32 s60, s60, 10000
            s_mul_i32 s60, s60, {E('KX')}
            {L('kx')}:
            s_memrealtime s[62:63]
            s_waitcnt lgkmcnt(0)
            s_sub_u32 s61, s62, s{S_NONCE}
            s_cmp_lt_u32 s61, s60
            s_cbranch_scc1 {L('kx')}
            """)
        self.dg_end(0)
        self.role = 'c'
        a(f"s_endpgm\n{L('kg')}:")
        a.clear_hist()
        self.kg_setup()
        a("s_waitcnt vmcnt(4)\ns_setprio 0")
        self.stamp(1)
        if E('X1'):
            self.get_nonce("x1n", tmp=2)
            self.lds_set(M_CD, 70, tmp=(2, 3))
            a(f"s_mul_i32 s66, s71, {FSTR}\ns_add_u32 s66, s66, {FS}")
            self.store_flag(66)
            a("s_endpgm")
        def khook():
            a(f"s_cmp_lg_u32 s73, 2\ns_cbranch_scc1 {L('kh')}\ns_waitcnt vmcnt(0)")
            self.cnt_add(M_LNCNT + 12)
            a(f"{L('kh')}:")
        self.kgen()
        self.stamp(3)
        self.expand()
        self.stamp(2)
        self.get_nonce("cn", tmp=2)
        self.lds_wait_all(M_U, 1, "uw", tmp=2)
        self.stamp(4)
        if E('CW'):
            lab = L("cw")
            a(f"""
            v_mov_b32 v2, {M_PD + 4 * (E('CW') - 1)}
            s_mov_b32 s61, 0
            {lab}:
            ds_read_b32 v3, v2
            s_add_u32 s61, s61, 1
            s_waitcnt lgkmcnt(0)
            v_readfirstlane_b32 s60, v3
            s_cmp_gt_u32 s61, 0x200000
            s_cbranch_scc1 {lab}_d
            s_cmp_ge_u32 s60, 4
            s_cbranch_scc1 {lab}_d
            s_sleep 2
            s_branch {lab}
            {lab}_d:
            """)
        if E('PF'): a("s_setprio 1")
        self.conv()
        self.lds_set(M_CD, 70, tmp=(2, 3))
        self.stamp(5)
        a(f"s_mul_i32 s66, s71, {FSTR}\ns_add_u32 s66, s66, {FS}\ns_waitcnt vmcnt(0)")
        self.store_flag(66)
        self.stamp(6)
        a(f"s_endpgm\n{L('noch')}:")
        a.clear_hist()
        a(f"s_sub_u32 s70, s{S_WAVE}, 4")
        aux_dma("b")
        a(f"s_cmp_eq_u32 s{S_WAVE}, 6\ns_cbranch_scc1 {L('rt')}\ns_waitcnt vmcnt(0)")
        if NA: self.cnt_add(M_LNCNT + 12)
        a(f"s_cmp_lg_u32 s{S_WAVE}, 4\ns_cbranch_scc1 {L('end')}")
        self.cnt_wait(M_LNCNT + 8, 4, "agw", sleep=2)
        self.get_nonce("an", tmp=2)
        a(f"s_lshl_b32 s67, s{S_XCD}, 1\ns_add_u32 s67, s67, s{S_IDX}\ns_sub_u32 s67, s67, 30\ns_mul_i32 s66, s67, {16*FSTR}\ns_add_u32 s66, s66, {FLT if E('XS', 1) else FLN}")
        self.spoll("plt", 66, FSTR, 2)
        a(f"""
        s_mul_i32 s66, s67, {FSTR}
        s_add_u32 s66, s66, {FL2}
        v_mul_u32_u24 v2, {16*FSTR}, v0
        v_mov_b32 v3, s{S_NONCE}
        s_mov_b64 exec, 0xffff
        buffer_store_dword v3, v2, s[{R_WS}:{R_WS+3}], s66 offen sc1
        s_mov_b64 exec, -1
        """)
        self.stamp(8)
        a(f"s_endpgm\n{L('rt')}:")
        H6 = E('H6', 0)
        self.w2_loads()
        if H6:
            self.w1_addr(12)
            a(f"s_mov_b32 s68, {GS - H6}\n{L('h6l')}:")
            self.w1_group(12)
            a(f"s_add_u32 s68, s68, 1\ns_cmp_lt_u32 s68, {GS}\ns_cbranch_scc1 {L('h6l')}")
        a(f"s_waitcnt vmcnt({3 * H6})")
        self.cnt_wait(M_PD + 4 if E('RG') else M_LNCNT + 8, 4, "rtw", sleep=2)
        a("s_setprio 3")
        self.w2_retile(mid=(lambda: (a("s_waitcnt vmcnt(10)"), self.cnt_add(M_LNCNT + 12))) if H6 else None)
        a(f"""
        v_mov_b32 v3, 0
        s_mov_b32 s64, 0
        {L('wn')}:
        global_load_dword v2, v3, s[{P_DBG}:{P_DBG+1}] sc1
        s_add_u32 s64, s64, 1
        s_waitcnt vmcnt(0)
        s_nop 1
        v_readfirstlane_b32 s{S_NONCE}, v2
        s_cmp_gt_u32 s64, 0x20000
        s_cbranch_scc1 {L('wnd')}
        s_cmp_eq_u32 s{S_NONCE}, 0
        s_cbranch_scc1 {L('wn')}
        {L('wnd')}:
        """)
        a(f"""
        s_mul_i32 s66, s43, {FSTR}
        s_add_u32 s66, s66, {FWR}
        v_mul_u32_u24 v2, {96*FSTR}, v0
        v_mov_b32 v3, s{S_NONCE}
        s_mov_b64 exec, 0xff
        s_waitcnt vmcnt(0)
        buffer_store_dword v3, v2, s[{R_WS}:{R_WS+3}], s66 offen sc1
        s_mov_b64 exec, -1
        """)
        self.stamp(7)
        a(f"s_endpgm\n{L('svc')}:")
        a.clear_hist()
        self.role = 's'
        a("s_waitcnt vmcnt(0)")
        self.cnt_add(M_LNCNT + 12)
        a("s_setprio 3")
        self.stamp(2)
        self.get_nonce("sn", tmp=2)
        def fwp():
            a(f"s_lshr_b32 s66, s{S_CB2}, 2\ns_mul_i32 s66, s66, {FSTR}\ns_add_u32 s66, s66, {FW}")
            if E('L2P', 0):
                a(f"s_mov_b32 s66, {FW}")
                self.poll_flags("pfw", 66, 48, nloads=2, istride=48*FSTR)
            else:
                self.poll_flags("pfw", 66, 48, lstride=2*FSTR)
            self.lds_set(M_FW, None, tmp=(2, 3))
            if E('L2P', 0):
                a(f"s_mul_i32 s60, s{S_IDX}, {480*128}\ns_add_u32 s60, s60, {W2F}\nv_lshlrev_b32 v2, 7, v0")
                for i in range(8):
                    if i == 7: a("s_mov_b32 exec_hi, 0")
                    a(f"buffer_load_dword v{200+i}, v2, s[{R_WS}:{R_WS+3}], s60 offen sc1\ns_add_u32 s60, s60, 8192")
                a("s_mov_b64 exec, -1")
            self.stamp(5)
        a(f"s_mul_i32 s66, s{S_XCD}, {96*FSTR}\ns_lshr_b32 s60, s{S_CB2}, 2\ns_mul_i32 s60, s60, {FSTR}\ns_add_u32 s66, s66, s60\ns_add_u32 s66, s66, {FWR}")
        a("s_mov_b32 s67, s66")
        self.cnt_wait(M_LN, 4, "slw", sleep=1)
        if E('W4D'): a(f"s_sleep {E('W4D')}")
        CP = E('CP')
        if not CP or E('FE'):
            self.poll_flags("pfw", 67, 48, lstride=2*FSTR)
            self.lds_set(M_FW, None, tmp=(2, 3))
            self.stamp(5)
        def cpoll(name, first):
            a(f"""
            v_mul_u32_u24 v2, {FSTR}, v0
            s_sub_u32 s60, s67, {32*FSTR}
            v_lshlrev_b32 v4, 1, v2
            v_add_u32 v4, s60, v4
            s_and_b32 s60, s2, 15
            s_mul_i32 s60, s60, {16*FSTR}
            s_add_u32 s60, s60, {FL2}
            v_add_u32 v2, s60, v2
            v_cmp_gt_u32 vcc, 16, v0
            v_cndmask_b32 v2, v4, v2, vcc
            v_mov_b32 v4, {M_FW}
            {'' if first else 's_lshl_b64 exec, -1, 16'}
            s_mov_b32 s64, 0
            {L(name)}:
            buffer_load_dword v3, v2, s[{R_WS}:{R_WS+3}], 0 offen sc1
            s_add_u32 s64, s64, 1
            s_waitcnt vmcnt(0)
            v_cmp_ne_u32 vcc, s{S_NONCE}, v3
            s_cmp_gt_u32 s64, 0x20000
            s_cselect_b64 s[60:61], 0, vcc
            s_lshr_b64 s[62:63], s[60:61], 16
            s_cmp_eq_u64 s[62:63], 0
            s_cselect_b32 s65, 1, 0
            v_mov_b32 v3, s65
            ds_write_b32 v4, v3
            {'s_and_b32 s60, s60, 0xffff' if first else 's_xor_b32 s60, s65, 1'}
            s_cmp_eq_u32 s60, 0
            s_cbranch_scc1 {L(name)}_d
            s_sleep {E('CSL', 3)}
            s_branch {L(name)}
            {L(name)}_d:
            s_mov_b64 exec, -1
            """)
        a("s_mov_b32 s65, 0")
        if E('W3D'): a(f"s_sleep {E('W3D')}")
        a(f"s_cmp_eq_u32 s{S_NCH}, 0\ns_cbranch_scc1 {L('nou')}")
        a(f"s_and_b32 s66, s2, 15\ns_mul_i32 s66, s66, {16*FSTR}\ns_add_u32 s66, s66, {FL2}")
        if CP and not E('FE'): cpoll("pla", True)
        elif E('L2V'): self.poll_flags("pla", 66, 16)
        else: self.spoll("pla", 66, FSTR, E('CSL', 3))
        self.stamp(3)
        self.u_gather()
        self.lds_set(M_U, None, tmp=(2, 3))
        a(f"{L('nou')}:")
        self.stamp(4)
        if CP and not E('FE'):
            a(f"s_cmp_lg_u32 s65, 0\ns_cbranch_scc1 {L('fwok')}")
            cpoll("plb", False)
            a(f"{L('fwok')}:")
        self.svc_x_loads()
        self.stamp(6)
        self.lds_wait_all(M_J6, 1, "j6w", tmp=2)
        a(f"s_mul_i32 s66, s{S_CB2}, {80*FSTR}\ns_add_u32 s66, s66, {FS}")
        self.poll_flags("pfs", 66, 40, nloads=2, istride=40*FSTR)
        a(f"s_cmp_eq_u32 s{S_NCH}, 0\ns_cbranch_scc1 {L('nocd')}")
        self.lds_wait_all(M_CD, 2, "cdw", tmp=2)
        a(f"{L('nocd')}:")
        self.stamp(7)
        self.s_tile_dma()
        self.stamp(8)
        a("s_barrier")
        self.dg_end(7)
        a(f"{L('end')}:\ns_endpgm")

if __name__ == "__main__":
    path = sys.argv[1]
    opts = sys.argv[2:]
    g = Fused("fused", "stamps" in opts)
    g.sel = set(range(32)) if "stamps" in opts else ({0, 9} | {int(x) for x in os.environ.get("SEL", "").split(",") if x} if "mins" in opts else set())
    g.build_fused()
    lab = NAME + "_kernel"
    txt = HEADER + f"; @launch grid=(256,1,1) block=(512,1,1) lds={LDS_TOTAL}\n" + '.amdgcn_target "amdgcn-amd-amdhsa--gfx950"\n' + kernel_text(lab, g.a.text()) + desc(lab)
    if E('X4'):
        import re
        txt = re.sub(r"(buffer_load_dwordx4 .*?) sc1", r"\1", txt)
    if E('X2'):
        txt = "\n".join(("    s_nop 0" if ("s81 offen" in l) else l) for l in txt.split("\n"))
    open(path, "w").write(txt)
```

```python
import sys
from asmlib import Asm, vr, sr

NAME = "recurrent_scan__ssm_conv_s4d__dense_activation_squared_relu__prompt"
XF = 0x0; XT = 0x280000; HF = 0x500000; W2F = 0xB00000; ST = 0xD00000
FLG = 0xF80000; STAMP = 0x1000000; WS_SIZE = 0x1100000
import os
FSTR = int(os.environ.get('FSTR','128'))
PSLEEP = int(os.environ.get('PSLEEP','0'))
LSLEEP = int(os.environ.get('LSLEEP','0'))
FHS = int(os.environ.get('FHS','128'))
FLN = FLG; FH = FLG + 0x8000; FW = FLG + 0x20000; FS = FLG + 0x24000; FL2 = FLG + 0x50000; FLT = FLG + 0x48000; FWR = FLG + 0x60000
AUX = 122880; RSZ = 12896; K1O = 4160; UO = 8320; UPAD = 480
MISC = AUX + 3 * RSZ
LDS_TOTAL = 163840
M_LNCNT = MISC; M_W1 = MISC + 16; M_G1D = MISC + 32; M_U = MISC + 48; M_NONCE = MISC + 112
M_LNR = MISC + 80; M_LN = MISC + 192; M_LNW = MISC + 240; M_J6 = MISC + 208; M_HP = MISC + 224; M_FW = MISC + 64; M_HCNT = MISC + 68; M_FH = MISC + 256; M_PD = MISC + 128; M_HC = MISC + 144; M_CD = MISC + 96
LNRS = 1296
LNIMG = 122880 - 10752
IMG = [0, 40960, 81920]
XRS = 176; XI = AUX + RSZ; M_B2 = MISC + 512
P_X, P_LA, P_AI, P_CR, P_CI, P_DT, P_DS = 4, 6, 8, 10, 12, 14, 16
P_W1, P_B1, P_W2, P_B2, P_OUT, P_DBG, P_WS = 20, 22, 24, 26, 28, 30, 32
S_WAVE, S_XCD, S_IDX, S_RB, S_CB, S_RB2, S_CB2, S_NCH, S_CH0 = 34, 35, 36, 37, 38, 39, 40, 41, 42
R_WS, R_X, R_W, R_OUT = 44, 48, 52, 56
S_NONCE = 96
S_LID = 93
LOG2E = 0x3fb8aa3b
INV2PI = 0x3e22f983

class Gen:
    def __init__(self, mode, stamps=False):
        self.a = Asm()
        self.mode = mode
        self.fused = mode == "fused"
        self.stamps = stamps
        self.sel = set()
        self.role = 'g'
        self.seen = set()
        self.pfx = mode

    def L(self, n):
        return f"{self.pfx}_{n}"

    def stamp(self, slot, q=False):
        if os.environ.get('DGP') and (self.role, slot) == (os.environ['DGP'][0], int(os.environ['DGP'][1:])):
            self.a('s_memrealtime s[72:73]\ns_waitcnt lgkmcnt(0)')
        if slot not in self.sel: return
        if q: self.vq += ['st']
        a = self.a
        a(f"""
        s_memrealtime s[98:99]
        s_lshl_b32 s100, s2, 3
        s_add_u32 s100, s100, s{S_WAVE}
        s_lshl_b32 s100, s100, 7
        s_add_u32 s100, s100, {STAMP + slot*4}
        s_waitcnt lgkmcnt(0)
        v_mov_b32 v1, s98
        s_mov_b64 s[98:99], exec
        s_mov_b64 exec, 1
        buffer_store_dword v1, off, s[{R_WS}:{R_WS+3}], s100
        s_mov_b64 exec, s[98:99]
        """)

    def dg_end(self, wave):
        if not os.environ.get('DGP') or os.environ['DGP'][0] != self.role: return
        lab = self.L('dg' + self.role)
        self.a(f"""
        s_cmp_lg_u32 s2, 0
        s_cbranch_scc1 {lab}_d
        s_cmp_lg_u32 s{S_WAVE}, {wave}
        s_cbranch_scc1 {lab}_d
        s_sub_u32 s60, s72, s94
        s_min_u32 s60, s60, 3000
        s_mul_i32 s60, s60, 5
        s_memrealtime s[62:63]
        s_waitcnt lgkmcnt(0)
        s_mov_b32 s64, s62
        {lab}:
        s_memrealtime s[62:63]
        s_waitcnt lgkmcnt(0)
        s_sub_u32 s61, s62, s64
        s_cmp_lt_u32 s61, s60
        s_cbranch_scc1 {lab}
        {lab}_d:
        """)

    def srd(self, r, p, size):
        self.a(f"""
        s_mov_b32 s{r}, s{p}
        s_and_b32 s{r+1}, s{p+1}, 0xffff
        s_mov_b32 s{r+2}, {size}
        s_mov_b32 s{r+3}, 0x00020000
        """)

    def mapfix(self):
        r = []
        if os.environ.get('M2') == '84':
            r += [f"s_lshr_b32 s60, s{S_XCD}, 1", "s_lshl_b32 s60, s60, 3", f"s_and_b32 s61, s{S_IDX}, 7", f"s_add_u32 s{S_RB2}, s60, s61",
                  f"s_and_b32 s60, s{S_XCD}, 1", "s_lshl_b32 s60, s60, 2", f"s_lshr_b32 s61, s{S_IDX}, 3", f"s_add_u32 s{S_CB2}, s60, s61"]
        if os.environ.get('M1') == '84':
            r += [f"s_and_b32 s60, s{S_XCD}, 1", "s_lshl_b32 s60, s60, 3", f"s_and_b32 s61, s{S_IDX}, 7", f"s_add_u32 s{S_RB}, s60, s61",
                  f"s_lshr_b32 s60, s{S_XCD}, 1", "s_lshl_b32 s60, s60, 2", f"s_lshr_b32 s61, s{S_IDX}, 3", f"s_add_u32 s{S_CB}, s60, s61"]
        if os.environ.get('M1') == '216':
            r += [f"s_lshl_b32 s60, s{S_XCD}, 1", f"s_and_b32 s61, s{S_IDX}, 1", f"s_add_u32 s{S_RB}, s60, s61", f"s_lshr_b32 s{S_CB}, s{S_IDX}, 1"]
        return "\n".join(r)

    def prologue(self):
        a = self.a
        a(f"""
        s_load_dwordx16 s[4:19], s[0:1], 0
        s_load_dwordx8 s[20:27], s[0:1], 64
        s_load_dwordx4 s[28:31], s[0:1], 96
        s_load_dwordx2 s[32:33], s[0:1], 112
        s_memrealtime s[94:95]
        s_cmp_ge_u32 s2, 256
        s_cbranch_scc1 {self.L('end')}
        v_lshrrev_b32 v1, 6, v0
        v_and_b32 v0, 63, v0
        s_and_b32 s{S_XCD}, s2, 7
        v_readfirstlane_b32 s{S_WAVE}, v1
        s_lshr_b32 s{S_IDX}, s2, 3
        s_getpc_b64 s[62:63]
        {self.L('pc')}:
        s_cmp_lg_u32 s{S_WAVE}, 7
        s_cbranch_scc1 {self.L('nopf')}
        s_and_b32 s60, s{S_IDX}, 7
        s_mul_i32 s60, s60, 4352
        v_lshlrev_b32 v2, 7, v0
        v_add_u32 v2, s60, v2
        v_min_u32 v2, {self.L('end')}-{self.L('pc')}, v2
        s_mov_b32 exec_hi, 3
        global_load_dword v130, v2, s[62:63]
        s_mov_b32 exec_hi, -1
        {self.L('nopf')}:
        s_and_b32 s60, s{S_XCD}, 3
        s_lshl_b32 s60, s60, 2
        s_and_b32 s61, s{S_IDX}, 3
        s_add_u32 s{S_RB}, s60, s61
        s_lshr_b32 s60, s{S_XCD}, 2
        s_lshl_b32 s60, s60, 3
        s_lshr_b32 s{S_CB2}, s{S_IDX}, 2
        s_add_u32 s{S_CB}, s60, s{S_CB2}
        s_lshl_b32 s60, s{S_XCD}, 2
        s_add_u32 s{S_RB2}, s60, s61
        {self.mapfix()}
        ; conv channels: g = idx/3, pos = idx%3
        s_mul_i32 s60, s{S_IDX}, 43
        s_lshr_b32 s60, s60, 7
        s_mul_i32 s61, s60, 3
        s_sub_u32 s61, s{S_IDX}, s61
        s_mul_i32 s62, s{S_XCD}, 80
        s_lshl_b32 s63, s60, 3
        s_add_u32 s62, s62, s63
        s_mul_i32 s63, s61, 3
        s_add_u32 s{S_CH0}, s62, s63
        s_cmp_eq_u32 s61, 2
        s_cselect_b32 s{S_NCH}, 2, 3
        s_cmp_ge_u32 s{S_IDX}, 30
        s_cselect_b32 s{S_NCH}, 0, s{S_NCH}
        s_sub_u32 s61, s{S_IDX}, 20
        s_cselect_b32 s60, s61, s60
        """)
        a.lines.pop(); a.lines.pop()
        a(f"""
        s_sub_u32 s61, s{S_IDX}, 20
        s_cmp_ge_u32 s{S_IDX}, 30
        s_cselect_b32 s60, s61, s60
        s_mul_i32 s61, s{S_XCD}, 12
        s_add_u32 s43, s61, s60
        s_lshl_b32 s{S_LID}, s{S_RB}, 4
        s_add_u32 s{S_LID}, s{S_LID}, s{S_CB}
        v_lshlrev_b32 v2, 3, v0
        v_add_u32 v2, {MISC}, v2
        v_mov_b32 v4, 0
        v_mov_b32 v5, 0
        ds_write_b64 v2, v[4:5]
        s_cmp_eq_u32 s{S_WAVE}, 7
        s_cselect_b32 s60, s2, 1
        s_cmp_lg_u32 s60, 0
        s_waitcnt lgkmcnt(0)
        s_cbranch_scc1 {self.L('nonce0')}
        s_or_b32 s61, s94, 1
        v_mov_b32 v2, s61
        s_mov_b64 exec, 1
        global_store_dword v4, v2, s[{P_DBG}:{P_DBG+1}] sc1
        s_mov_b64 exec, -1
        {self.L('nonce0')}:
        s_barrier
        """)
        if os.environ.get('WSOFF'):
            a(f"s_add_u32 s{P_WS}, s{P_WS}, {int(os.environ['WSOFF'],0)}\ns_addc_u32 s{P_WS+1}, s{P_WS+1}, 0")
        self.srd(R_WS, P_WS, WS_SIZE)
        self.srd(R_X, P_X, 2621440)

    def rowaddr(self, dst, row, t):
        self.a(f"""
        v_mul_u32_u24 v{t}, 11, v{row}
        v_lshrrev_b32 v{t}, 5, v{t}
        v_mul_u32_u24 v{dst}, {LNRS}, v{row}
        v_mad_u32_u24 v{dst}, v{t}, s97, v{dst}
        v_lshrrev_b32 v{t}, 1, v{t}
        v_mul_u32_u24 v{t}, 1440, v{t}
        v_add3_u32 v{dst}, v{dst}, v{t}, s61
        """)

    def ln_loads(self):
        a = self.a
        a(f"""
        s_lshl_b32 s60, s{S_LID}, 3
        s_lshl_b32 s61, s{S_WAVE}, 1
        s_add_u32 s60, s60, s61
        s_mul_i32 s60, s60, 1280
        v_lshrrev_b32 v2, 5, v0
        v_and_b32 v3, 31, v0
        v_mul_u32_u24 v1, 1280, v2
        v_lshl_add_u32 v1, v3, 3, v1
        """)
        for i in range(5):
            a(f"buffer_load_dwordx2 v[{100+2*i}:{101+2*i}], v1, s[{R_X}:{R_X+3}], s60 offen offset:{256*i}")

    def reduce32(self, v, t):
        a = self.a
        a(f"""
        v_add_f32_dpp v{v}, v{v}, v{v} quad_perm:[1,0,3,2] row_mask:0xf bank_mask:0xf
        v_add_f32_dpp v{v}, v{v}, v{v} quad_perm:[2,3,0,1] row_mask:0xf bank_mask:0xf
        v_add_f32_dpp v{v}, v{v}, v{v} row_half_mirror row_mask:0xf bank_mask:0xf
        v_add_f32_dpp v{v}, v{v}, v{v} row_mirror row_mask:0xf bank_mask:0xf
        v_mov_b32 v{t}, v{v}
        v_permlane16_swap_b32 v{v}, v{t}
        v_add_f32 v{v}, v{v}, v{t}
        """)

    def ln_math(self):
        a = self.a
        X = 110; Dd = 130; S = 150
        for i in range(10):
            a(f"v_lshlrev_b32 v{X+2*i}, 16, v{100+i}")
            a(f"v_and_b32 v{X+1+2*i}, 0xffff0000, v{100+i}")
        P = lambda r: f"v[{r}:{r+1}]"
        a(f"v_pk_add_f32 {P(S)}, {P(X)}, {P(X+2)}\nv_pk_add_f32 {P(S+2)}, {P(X+4)}, {P(X+6)}")
        for i in range(4, 10):
            a(f"v_pk_add_f32 {P(S+2*(i%2))}, {P(S+2*(i%2))}, {P(X+2*i)}")
        a(f"v_pk_add_f32 {P(S)}, {P(S)}, {P(S+2)}\nv_add_f32 v{S}, v{S}, v{S+1}")
        self.reduce32(S, S + 1)
        a(f"v_mul_f32 v{S+4}, 0x3acccccd, v{S}")
        for i in range(10):
            a(f"v_pk_add_f32 {P(Dd+2*i)}, {P(X+2*i)}, {P(S+4)} op_sel_hi:[1,0] neg_lo:[0,1] neg_hi:[0,1]")
        a(f"v_pk_mul_f32 {P(S)}, {P(Dd)}, {P(Dd)}\nv_pk_mul_f32 {P(S+2)}, {P(Dd+2)}, {P(Dd+2)}")
        for i in range(2, 10):
            a(f"v_pk_fma_f32 {P(S+2*(i%2))}, {P(Dd+2*i)}, {P(Dd+2*i)}, {P(S+2*(i%2))}")
        a(f"v_pk_add_f32 {P(S)}, {P(S)}, {P(S+2)}\nv_add_f32 v{S}, v{S}, v{S+1}")
        self.reduce32(S, S + 1)
        a(f"""
        v_mul_f32 v{S+5}, 0x3acccccd, v{S}
        v_cvt_pk_bf16_f32 v{S}, v{S+4}, v{S+5}
        v_lshlrev_b32 v{S+4}, 16, v{S}
        v_and_b32 v{S+2}, 0xffff0000, v{S}
        v_add_f32 v{S+2}, 0x3727c5ac, v{S+2}
        v_cvt_pk_bf16_f32 v{S+2}, v{S+2}, v{S+2}
        v_and_b32 v{S+2}, 0xffff0000, v{S+2}
        v_sqrt_f32 v{S+2}, v{S+2}
        """)
        for i in range(10):
            a(f"v_pk_add_f32 {P(Dd+2*i)}, {P(X+2*i)}, {P(S+4)} op_sel_hi:[1,0] neg_lo:[0,1] neg_hi:[0,1]")
            if i == 1:
                a(f"v_cvt_pk_bf16_f32 v{S+2}, v{S+2}, v{S+2}\nv_and_b32 v{S+2}, 0xffff0000, v{S+2}\nv_rcp_f32 v{S+2}, v{S+2}")
        for i in range(10):
            a(f"v_cvt_pk_bf16_f32 v{100+i}, v{Dd+2*i}, v{Dd+1+2*i}")
        for i in range(10):
            a(f"v_lshlrev_b32 v{X+2*i}, 16, v{100+i}")
            a(f"v_and_b32 v{X+1+2*i}, 0xffff0000, v{100+i}")
        for i in range(10):
            a(f"v_pk_mul_f32 {P(X+2*i)}, {P(X+2*i)}, {P(S+2)} op_sel_hi:[1,0]")
        for i in range(5):
            a(f"v_cvt_pk_bf16_f32 v{100+2*i}, v{X+4*i}, v{X+4*i+1}")
            a(f"v_cvt_pk_bf16_f32 v{101+2*i}, v{X+4*i+2}, v{X+4*i+3}")
            a(f"ds_write_b64 v98, v[{100+2*i}:{101+2*i}] offset:{256*i}")

    def ln_pub_addr(self):
        a = self.a
        a(f"""
        s_mov_b32 s84, s{S_WAVE}
        s_mov_b32 s97, {RSZ - 3*LNRS}
        s_mov_b32 s61, {AUX + UO + UPAD}
        s_lshl_b32 s60, s{S_WAVE}, 1
        v_lshrrev_b32 v2, 5, v0
        v_add_u32 v2, s60, v2
        """)
        self.rowaddr(98, 2, 5)
        a(f"""
        v_and_b32 v3, 31, v0
        v_lshl_add_u32 v98, v3, 3, v98
        s_lshl_b32 s60, s84, 7
        s_add_u32 s61, s61, s60
        v_and_b32 v1, 7, v0
        """)
        self.rowaddr(156, 1, 5)
        a(f"""
        v_lshrrev_b32 v2, 3, v0
        v_lshl_add_u32 v156, v2, 4, v156
        v_lshrrev_b32 v157, 2, v2
        v_and_b32 v5, 3, v2
        v_lshlrev_b32 v157, 10, v157
        v_lshl_add_u32 v157, v5, 8, v157
        v_lshl_add_u32 v157, v1, 4, v157
        v_and_b32 v1, 15, v0
        v_lshrrev_b32 v2, 2, v1
        v_sub_u32 v3, 7, v2
        v_sub_u32 v2, 3, v2
        """)
        self.rowaddr(158, 2, 5)
        self.rowaddr(99, 3, 5)
        a(f"""
        v_and_b32 v1, 3, v0
        v_lshrrev_b32 v2, 4, v0
        v_lshlrev_b32 v1, 3, v1
        v_lshl_add_u32 v1, v2, 5, v1
        v_add_u32 v158, v158, v1
        v_add_u32 v99, v99, v1
        v_lshlrev_b32 v159, 4, v0
        s_lshr_b32 s85, s{S_LID}, 1
        s_mul_i32 s85, s85, 20480
        s_and_b32 s62, s{S_LID}, 1
        s_lshl_b32 s62, s62, 7
        s_add_u32 s85, s85, s62
        s_lshl_b32 s62, s84, 11
        s_add_u32 s85, s85, s62
        s_add_u32 s86, s85, 8192
        s_add_u32 s87, s85, 16384
        s_mul_i32 s88, s{S_LID}, 10240
        s_lshl_b32 s62, s84, 10
        s_add_u32 s88, s88, s62
        s_add_u32 s88, s88, {XT}
        s_add_u32 s89, s88, 4096
        s_add_u32 s90, s88, 6144
        """)

    def ln_publish(self):
        a = self.a
        sc = "" if os.environ.get('V2') else "sc1"
        W = f"s[{R_WS}:{R_WS+3}]"
        l2 = self.L("lnp_xt3"); l3 = self.L("lnp_done")
        a(f"""
        ds_read_b128 v[160:163], v156
        ds_read_b128 v[164:167], v156 offset:512
        ds_read_b128 v[168:171], v156 offset:1024
        ds_read_b64_tr_b16 v[172:173], v99
        ds_read_b64_tr_b16 v[174:175], v158
        ds_read_b64_tr_b16 v[176:177], v99 offset:512
        ds_read_b64_tr_b16 v[178:179], v158 offset:512
        ds_read_b64_tr_b16 v[180:181], v99 offset:768
        ds_read_b64_tr_b16 v[182:183], v158 offset:768
        s_cmp_ge_u32 s84, 2
        s_waitcnt lgkmcnt(7)
        buffer_store_dwordx4 v[160:163], v157, {W}, s85 offen {sc}
        s_waitcnt lgkmcnt(6)
        buffer_store_dwordx4 v[164:167], v157, {W}, s86 offen {sc}
        s_cselect_b32 s87, {WS_SIZE}, s87
        s_waitcnt lgkmcnt(5)
        buffer_store_dwordx4 v[168:171], v157, {W}, s87 offen {sc}
        """)

    def ln_publish_xt(self):
        a = self.a
        W = f"s[{R_WS}:{R_WS+3}]"
        l3 = self.L("lnp_done")
        a(f"""
        s_cmp_lt_u32 s84, 2
        s_waitcnt lgkmcnt(0)
        buffer_store_dwordx4 v[172:175], v159, {W}, s88 offen sc1
        buffer_store_dwordx4 v[176:179], v159, {W}, s89 offen sc1
        s_cselect_b32 s90, {WS_SIZE}, s90
        buffer_store_dwordx4 v[180:183], v159, {W}, s90 offen sc1
        """)

    def w2_loads(self):
        a = self.a
        self.srd(R_OUT, P_W2, 1966080)
        a(f"""
        s_lshr_b32 s91, s43, 1
        s_and_b32 s92, s43, 1
        s_mul_i32 s62, s91, {32*1280}
        s_mul_i32 s63, s92, 640
        s_add_u32 s62, s62, s63
        s_add_u32 s63, s62, 320
        """)
        for i in range(10):
            a(f"""
            v_add_u32 v1, {64*i}, v0
            v_mul_u32_u24 v2, 52429, v1
            v_lshrrev_b32 v2, 20, v2
            v_mul_u32_u24 v3, 20, v2
            v_sub_u32 v3, v1, v3
            v_mul_u32_u24 v2, 1280, v2
            v_lshl_add_u32 v2, v3, 4, v2
            buffer_load_dwordx4 v[{64+4*i}:{67+4*i}], v2, s[{R_OUT}:{R_OUT+3}], s62 offen
            buffer_load_dwordx4 v[{104+4*i}:{107+4*i}], v2, s[{R_OUT}:{R_OUT+3}], s63 offen
            """)

    def w2_retile(self, mid=None):
        a = self.a
        sc = "sc1"
        base = AUX + 2 * RSZ
        a(f"""
        v_lshlrev_b32 v6, 4, v0
        v_add_u32 v1, {base}, v6
        v_lshrrev_b32 v2, 4, v0
        v_and_b32 v3, 15, v0
        v_lshrrev_b32 v3, 2, v3
        v_lshl_add_u32 v2, v2, 2, v3
        v_mul_u32_u24 v2, 320, v2
        v_and_b32 v3, 3, v0
        v_lshl_add_u32 v2, v3, 3, v2
        v_add_u32 v2, {base}, v2
        s_mul_i32 s62, s92, {4*245760}
        s_mul_i32 s63, s91, 5120
        s_add_u32 s62, s62, s63
        s_add_u32 s62, s62, {W2F}
        v_add_u32 v7, 4096, v6
        """)
        for half in range(2):
            src = 64 + 40 * half
            fr = 144 + 40 * half
            for i in range(10):
                a(f"ds_write_b128 v1, v[{src+4*i}:{src+3+4*i}] offset:{1024*i}")
            a("s_waitcnt lgkmcnt(4)")
            for nt in range(10):
                d = fr + 4 * nt
                a(f"ds_read_b64_tr_b16 v[{d}:{d+1}], v2 offset:{32*nt}")
                a(f"ds_read_b64_tr_b16 v[{d+2}:{d+3}], v2 offset:{32*nt+16*320}")
                if nt == 4: a("s_waitcnt lgkmcnt(4)")
            a("s_waitcnt lgkmcnt(0)")
            for nt in range(10):
                d = fr + 4 * nt
                cbl = half * 2 + nt // 5
                n5 = nt % 5
                if n5 == 0:
                    a(f"s_add_u32 s63, s62, {cbl*245760}")
                if n5 < 4:
                    a(f"buffer_store_dwordx4 v[{d}:{d+3}], v6, s[{R_WS}:{R_WS+3}], s63 offen offset:{1024*n5} {sc}")
                else:
                    a(f"buffer_store_dwordx4 v[{d}:{d+3}], v7, s[{R_WS}:{R_WS+3}], s63 offen {sc}")
            if half == 0 and mid:
                a("v_mov_b32 v8, v2"); mid(); a("v_mov_b32 v2, v8")

    def lds_set(self, addr_imm, sidx=None, val=1, tmp=(2, 3)):
        a = self.a
        if sidx is None:
            a(f"v_mov_b32 v{tmp[0]}, {addr_imm}")
        else:
            a(f"s_lshl_b32 s60, s{sidx}, 2\ns_add_u32 s60, s60, {addr_imm}\nv_mov_b32 v{tmp[0]}, s60")
        a(f"v_mov_b32 v{tmp[1]}, {val}\nds_write_b32 v{tmp[0]}, v{tmp[1]}")

    def lds_wait_all(self, addr_imm, n, name, tmp=2, sleep=None):
        if sleep is None: sleep = LSLEEP
        a = self.a
        lab = self.L(name); done = self.L(name + "_d")
        t = tmp
        a(f"""
        v_mov_b32 v{t}, {addr_imm}
        s_mov_b32 s61, 0
        {lab}:
        ds_read_b128 v[{t+2}:{t+5}], v{t}
        s_add_u32 s61, s61, 1
        s_waitcnt lgkmcnt(0)
        """)
        for k in range(1, n):
            a(f"v_min_u32 v{t+2}, v{t+2}, v{t+2+k}")
        a(f"""
        v_readfirstlane_b32 s60, v{t+2}
        s_cmp_gt_u32 s61, 0x200000
        s_cbranch_scc1 {done}
        s_cmp_lg_u32 s60, 0
        s_cbranch_scc1 {done}
        {'s_sleep %d' % sleep if sleep else ''}
        s_branch {lab}
        {done}:
        """)

    def get_nonce(self, name, tmp=2):
        self.lds_wait_all(M_NONCE, 1, name, tmp)
        self.a(f"s_mov_b32 s{S_NONCE}, s60")

    def poll_flags(self, name, soff, nlanes, nloads=1, lstride=FSTR, istride=64*FSTR, tmp=2, pre=None):
        a = self.a
        lab = self.L(name); done = self.L(name + "_d")
        t = tmp
        a(f"v_mul_u32_u24 v{t}, {lstride}, v0")
        a(f"s_mov_b64 s[62:63], exec")
        if nlanes < 64:
            a(f"s_lshr_b64 exec, -1, {64-nlanes}")
        a(f"s_mov_b32 s64, 0\n{lab}:")
        for i in range(nloads):
            if i * istride < 4096:
                a(f"buffer_load_dword v{t+1+i}, v{t}, s[{R_WS}:{R_WS+3}], s{soff} offen offset:{i*istride} sc1")
            else:
                a(f"s_add_u32 s65, s{soff}, {i*istride}\nbuffer_load_dword v{t+1+i}, v{t}, s[{R_WS}:{R_WS+3}], s65 offen sc1")
        a("s_add_u32 s64, s64, 1\ns_waitcnt vmcnt(0)")
        for i in range(nloads):
            a(f"v_xor_b32 v{t+1+i}, s{S_NONCE}, v{t+1+i}")
        for i in range(1, nloads):
            a(f"v_or_b32 v{t+1}, v{t+1}, v{t+1+i}")
        a(f"""
        v_cmp_ne_u32 vcc, 0, v{t+1}
        s_cmp_gt_u32 s64, 0x20000
        s_cbranch_scc1 {done}
        s_cbranch_vccz {done}
        {'s_sleep %d' % PSLEEP if PSLEEP else ''}
        s_branch {lab}
        {done}:
        s_mov_b64 exec, s[62:63]
        """)

    def poll_pipe(self, name, soff, nlanes, stride, depth, gap, on_result=None, vo=None):
        a = self.a
        lab = self.L(name)
        tb = self.ptmp
        if vo is None: a(f"v_mul_u32_u24 v2, {stride}, v0")
        a(f"s_mov_b64 s[62:63], exec\ns_lshr_b64 exec, -1, {64-nlanes}\ns_mov_b32 s64, 0")
        ld = lambda i: f"buffer_load_dword v{tb+i}, v2, s[{R_WS}:{R_WS+3}], s{soff} offen sc1"
        for i in range(depth - 1):
            a(ld(i))
            if gap: a(f"s_sleep {gap}")
        a(f"{lab}:")
        for i in range(depth):
            a(ld((i + depth - 1) % depth))
            a(f"s_waitcnt vmcnt({depth-1})\nv_cmp_eq_u32 vcc, s{S_NONCE}, v{tb+i}")
            if on_result: on_result()
            a(f"s_cmp_eq_u64 vcc, exec\ns_cbranch_scc1 {lab}_d")
            if gap: a(f"s_sleep {gap}")
        a(f"s_add_u32 s64, s64, 1\ns_cmp_lt_u32 s64, 0x20000\ns_cbranch_scc1 {lab}")
        if on_result:
            a("s_mov_b64 vcc, exec"); on_result()
        a(f"{lab}_d:\ns_mov_b64 exec, s[62:63]")

    def spoll(self, name, soff, stride, sleep, quarters=None, n=16, miss=None):
        a = self.a
        lab = self.L(name)
        a(f"s_add_u32 s62, s{P_WS}, s{soff}\ns_addc_u32 s63, s{P_WS+1}, 0\ns_mov_b32 s64, 0\n{lab}:")
        for i in range(n): a(f"s_load_dword s{4+i}, s[62:63], {i*stride} glc")
        a("s_add_u32 s64, s64, 1\ns_waitcnt lgkmcnt(0)")
        for i in range(n): a(f"s_xor_b32 s{4+i}, s{4+i}, s{S_NONCE}")
        for q in range(n // 4):
            a(f"s_or_b32 s{4+4*q}, s{4+4*q}, s{5+4*q}\ns_or_b32 s{6+4*q}, s{6+4*q}, s{7+4*q}\ns_or_b32 s{4+4*q}, s{4+4*q}, s{6+4*q}")
        if quarters:
            for q in range(4):
                a(f"s_cmp_eq_u32 s{4+4*q}, 0\ns_cselect_b32 s60, 1, 0\nv_mov_b32 v3, s60\nds_write_b32 v4, v3 offset:{16*q}")
        for q in range(1, n // 4): a(f"s_or_b32 s4, s4, s{4+4*q}")
        a(f"s_cmp_eq_u32 s4, 0\ns_cbranch_scc1 {lab}_d")
        if miss: miss()
        if sleep: a(f"s_sleep {sleep}")
        a(f"s_cmp_lt_u32 s64, 0x20000\ns_cbranch_scc1 {lab}")
        if quarters:
            a("v_mov_b32 v3, 1")
            for q in range(4): a(f"ds_write_b32 v4, v3 offset:{16*q}")
        a(f"{lab}_d:")

    def spoll48(self, name, soff, stride, sleep):
        a = self.a
        lab = self.L(name)
        regs = list(range(4, 26)) + list(range(67, 93))
        a(f"s_add_u32 s62, s{P_WS}, s{soff}\ns_addc_u32 s63, s{P_WS+1}, 0\ns_mov_b32 s64, 0\n{lab}:")
        for i, r in enumerate(regs): a(f"s_load_dword s{r}, s[62:63], {i*stride} glc")
        a(f"s_add_u32 s64, s64, 1\ns_mov_b32 s60, s{S_NONCE}\ns_mov_b32 s61, s{S_NONCE}\ns_waitcnt lgkmcnt(0)")
        for r in regs: a(f"s_and_b32 s60, s60, s{r}\ns_or_b32 s61, s61, s{r}")
        a(f"s_cmp_eq_u32 s60, s61\ns_cbranch_scc1 {lab}_d\ns_sleep {sleep}\ns_cmp_lt_u32 s64, 0x20000\ns_cbranch_scc1 {lab}\n{lab}_d:")

    def store_flag(self, soff, tmp=2):
        self.a(f"""
        v_mov_b32 v{tmp}, s{S_NONCE}
        s_mov_b64 s[62:63], exec
        s_mov_b64 exec, 1
        buffer_store_dword v{tmp}, off, s[{R_WS}:{R_WS+3}], s{soff} sc1
        s_mov_b64 exec, s[62:63]
        """)

    def w1_addr(self, vr_):
        self.srd(R_W, P_W1, 1966080)
        for ph in range(3):
            self.a(f"""
            v_add_u32 v5, {64*ph}, v0
            v_mul_u32_u24 v6, 43691, v5
            v_lshrrev_b32 v6, 19, v6
            v_mul_u32_u24 v7, 12, v6
            v_sub_u32 v7, v5, v7
            v_lshrrev_b32 v8, 2, v6
            v_and_b32 v8, 2, v8
            v_xor_b32 v7, v7, v8
            v_mul_u32_u24 v6, 3072, v6
            v_lshl_add_u32 v{vr_+ph}, v7, 4, v6
            """)
        self.a(f"s_mul_i32 s69, s{S_CB}, 192")

    def w1_group(self, vr_):
        a = self.a
        a(f"""
        s_mul_i32 s63, s68, {16*3072}
        s_add_u32 s63, s63, s69
        s_mul_i32 m0, s68, 3072
        s_nop 0
        buffer_load_dwordx4 v{vr_}, s[{R_W}:{R_W+3}], s63 offen lds
        s_add_u32 m0, m0, 1024
        s_nop 0
        buffer_load_dwordx4 v{vr_+1}, s[{R_W}:{R_W+3}], s63 offen lds
        s_add_u32 m0, m0, 1024
        s_nop 0
        buffer_load_dwordx4 v{vr_+2}, s[{R_W}:{R_W+3}], s63 offen lds
        """)

    G1_ACC = 16; G1_B = 64; G1_B1 = 64; G1_A = 96
    def g1_b1_loads(self):
        a = self.a
        a(f"""
        v_lshrrev_b32 v5, 4, v0
        v_lshlrev_b32 v5, 3, v5
        s_mul_i32 s60, s{S_CB}, 192
        v_add_u32 v5, s60, v5
        """)
        for t in range(6):
            a(f"global_load_dwordx2 v[{self.G1_B1+2*t}:{self.G1_B1+2*t+1}], v5, s[{P_B1}:{P_B1+1}] offset:{32*t}")

    def acc_init(self, p):
        r = []
        for k in range(2):
            for lt in range(2):
                d = self.G1_ACC + 16 * p + 8 * k + 4 * lt
                s_ = self.G1_B1 + 2 * (2 * p + k)
                r += [f"v_lshlrev_b32 v{d}, 16, v{s_}", f"v_and_b32 v{d+1}, 0xffff0000, v{s_}",
                      f"v_lshlrev_b32 v{d+2}, 16, v{s_+1}", f"v_and_b32 v{d+3}, 0xffff0000, v{s_+1}"]
        return r

    def g1_prep(self):
        a = self.a
        for x in self.acc_init(0) + self.acc_init(1) + self.acc_init(2): a(x)
        a(f"""
        v_lshrrev_b32 v5, 4, v0
        v_and_b32 v6, 15, v0
        v_lshrrev_b32 v6, 2, v6
        v_lshl_add_u32 v6, v5, 3, v6
        v_mul_u32_u24 v6, 192, v6
        v_and_b32 v7, 3, v0
        v_lshl_add_u32 v6, v7, 3, v6
        v_and_b32 v5, 1, v5
        v_lshlrev_b32 v5, 5, v5
        v_add_u32 v10, v6, v5
        v_sub_u32 v11, v6, v5
        v_add_u32 v12, 61440, v10
        v_add_u32 v13, 61440, v11
        s_lshl_b32 s86, s{S_RB}, 3
        s_lshl_b32 s87, s{S_WAVE}, 1
        s_add_u32 s86, s86, s87
        s_mul_i32 s82, s86, 20480
        s_add_u32 s83, s82, 20480
        s_mul_i32 s86, s86, 49152
        s_mul_i32 s87, s{S_CB}, 3072
        s_add_u32 s86, s86, s87
        s_add_u32 s86, s86, {HF}
        s_add_u32 s87, s86, 49152
        """)

    def g1_aload(self, ks):
        r = []
        for lt in range(2):
            d = self.G1_A + 8 * ks + 4 * lt
            ins = [f"buffer_load_dwordx4 v[{d}:{d+3}], v9, s[{R_WS}:{R_WS+3}], s{82+lt} offen offset:{1024*(ks%4)} sc1"]
            if ks % 4 == 3 and ks != 19: ins.append(f"s_add_u32 s{82+lt}, s{82+lt}, 4096")
            r.append((ins, f"A{ks}"))
        return r

    def epi_ops(self, p):
        r = []
        for lt in range(2):
            a0 = self.G1_ACC + 16 * p + 4 * lt; b0 = a0 + 8
            for x in (a0, b0):
                for i in range(4): r.append(([f"v_max_f32 v{x+i}, 0, v{x+i}"], None))
                for i in range(4): r.append(([f"v_mul_f32 v{x+i}, v{x+i}, v{x+i}"], None))
            r.append(([f"v_cvt_pk_bf16_f32 v{a0}, v{a0}, v{a0+1}"], None))
            r.append(([f"v_cvt_pk_bf16_f32 v{a0+1}, v{a0+2}, v{a0+3}"], None))
            r.append(([f"v_cvt_pk_bf16_f32 v{a0+2}, v{b0}, v{b0+1}"], None))
            r.append(([f"v_cvt_pk_bf16_f32 v{a0+3}, v{b0+2}, v{b0+3}"], None))
            r.append(([f"buffer_store_dwordx4 v[{a0}:{a0+3}], v9, s[{R_WS}:{R_WS+3}], s{86+lt} offen offset:{1024*p} sc1"], "S"))
        return r

    def vwait(self, tag):
        vq = self.vq
        assert tag in self.seen or os.environ.get('NOAL'), tag
        idx = [i for i, t in enumerate(vq) if t == tag]
        if not idx: return
        n = len(vq) - 1 - idx[-1]
        self.a(f"s_waitcnt vmcnt({min(n, 63)})"); del vq[:idx[-1] + 1]

    def emit(self, item):
        ins, tag = item
        for x in ins: self.a(x)
        if tag: self.vq.append(tag); self.seen.add(tag)

    def g1_loop(self, N0, events, TL=5):
        a = self.a
        NF = 8; AH = NF - 1
        seq = [(ks, t) for ks in range(20 - TL) for t in range(6)]
        for p in range(3):
            seq += [(ks, 2 * p + k) for ks in range(20 - TL, 20) for k in range(2)]
        def rd(f):
            ks, t = seq[f]
            base = (10 if t % 2 == 0 else 11) + (2 if ks >= 10 else 0)
            off = (ks % 10) * 6144 + 32 * t
            d = self.G1_B + 4 * (f % NF)
            return [f"ds_read_b64_tr_b16 v[{d}:{d+1}], v{base} offset:{off}", f"ds_read_b64_tr_b16 v[{d+2}:{d+3}], v{base} offset:{off+768}"]
        for f in range(AH):
            for x in rd(f): a(x)
        fv = []; fa = []; waited = set()
        f0 = 6 * (20 - TL)
        for f, (ks, t) in enumerate(seq):
            if f % 6 == 0:
                st = f // 6
                if st in events:
                    extra = events[st]()
                    if extra: fv += extra
                if st + N0 < 20: fv = self.g1_aload(st + N0) + fv
            if ks not in waited:
                self.vwait(f"A{ks}"); waited.add(ks)
            if f > f0 and (f - f0) % (2 * TL) == 1 and (f - f0) // (2 * TL) >= 1:
                fa += self.epi_ops((f - f0) // (2 * TL) - 1)
            nxt = rd(f + AH) if f + AH < 120 else []
            if f % 2 == 0:
                a(f"s_waitcnt lgkmcnt({max(0, 2 * (min(f + AH, 120) - f - 2))})")
            for lt in range(2):
                acc = self.G1_ACC + 8 * t + 4 * lt
                A = self.G1_A + 8 * ks + 4 * lt
                B = self.G1_B + 4 * (f % NF)
                a(f"v_mfma_f32_16x16x32_bf16 v[{acc}:{acc+3}], v[{B}:{B+3}], v[{A}:{A+3}], v[{acc}:{acc+3}]")
                if nxt: a(nxt.pop(0))
                if fa:
                    for _ in range(2 if nxt or f + AH < 120 else 3):
                        if fa: self.emit(fa.pop(0))
                elif fv and lt == 1 and f % 2 == 0 and not (fv[0][1] in ("B3", "B4") and self.NRB == 5 and f < 6 * 13): self.emit(fv.pop(0))
        return fa, fv

    KP = 44
    def kg_loads(self):
        a = self.a
        a(f"""
        s_sub_u32 s70, s{S_WAVE}, 4
        s_add_u32 s71, s{S_CH0}, s70
        s_mul_i32 s60, s71, 384
        v_lshlrev_b32 v2, 2, v0
        v_add_u32 v2, s60, v2
        v_lshlrev_b32 v3, 1, v0
        v_add_u32 v3, s60, v3
        """)
        for k, P in enumerate((P_LA, P_AI, P_CR, P_CI)):
            a(f"global_load_dword v{self.KP+k}, v2, s[{P}:{P+1}]")
        a(f"s_lshl_b32 s60, s71, 1\ns_and_b32 s60, s60, -4\ns_load_dword s74, s[{P_DT}:{P_DT+1}], s60\ns_load_dword s75, s[{P_DS}:{P_DS+1}], s60")
        for k, P in enumerate((P_LA, P_AI, P_CR, P_CI)):
            a(f"global_load_ushort v{self.KP+4+k}, v3, s[{P}:{P+1}] offset:256")

    def cmul(self, d, x, y, plain=False):
        if plain:
            return [f"v_mul_f32 v{d}, v{x}, v{y}", f"v_mul_f32 v{d+1}, v{x}, v{y+1}",
                    f"v_fma_f32 v{d}, -v{x+1}, v{y+1}, v{d}", f"v_fma_f32 v{d+1}, v{x+1}, v{y}, v{d+1}"]
        return [f"v_pk_mul_f32 v[{d}:{d+1}], v[{x}:{x+1}], v[{y}:{y+1}] op_sel:[0,0] op_sel_hi:[0,1]",
                f"v_pk_fma_f32 v[{d}:{d+1}], v[{x}:{x+1}], v[{y}:{y+1}], v[{d}:{d+1}] op_sel:[1,1,0] op_sel_hi:[1,0,1] neg_lo:[0,1,0]"]

    def kg_setup(self):
        a = self.a
        self.aux_addr()
        a(f"""
        v_lshrrev_b32 v2, 2, v0
        v_mul_u32_u24 v2, 272, v2
        v_and_b32 v3, 3, v0
        v_lshl_add_u32 v2, v3, 2, v2
        v_add_u32 v10, s72, v2
        v_add_u32 v9, 4352, v10
        v_lshrrev_b32 v2, 4, v0
        v_mul_u32_u24 v2, 272, v2
        v_and_b32 v3, 15, v0
        v_lshl_add_u32 v2, v3, 4, v2
        v_add_u32 v11, s72, v2
        s_bitcmp1_b32 s71, 0
        s_cselect_b32 s60, 0, 16
        s_waitcnt lgkmcnt(0)
        s_lshl_b32 s74, s74, s60
        s_lshl_b32 s75, s75, s60
        s_and_b32 s74, s74, 0xffff0000
        s_and_b32 s75, s75, 0xffff0000
        v_mov_b32 v56, {LOG2E}
        v_mul_f32 v56, s74, v56
        v_exp_f32 v56, v56
        v_mov_b32 v57, s75
        v_cvt_pk_bf16_f32 v56, v56, v56
        v_and_b32 v56, 0xffff0000, v56
        v_add_f32 v58, v56, v56
        v_mov_b32 v59, 0x3f80
        """)

    def kgen(self, hook=None):
        a = self.a
        KP = self.KP
        Z, Z8, W = 60, 62, 64
        F = 66; F2 = 82; G = 98; CV = 102; SV = 110
        GF, TA, TB, TC = 120, 136, 152, 184
        ACC = 168
        VW, VR, VW2 = 10, 11, 9
        TOFF = 4352
        NPL = int(os.environ.get('KPL', '1'))
        class Out:
            def __init__(o, base, neg, pool): o.base = base; o.neg = neg; o.pend = None; o.pool = pool; o.n = 0
            def put(o, src, row, reg=None):
                r = []
                if reg is None:
                    reg = CV + 4 * o.pool + o.n % 4; o.n += 1
                    r.append(f"v_cvt_pk_bf16_f32 v{reg}, v{src}, {'-' if o.neg else ''}v{src+1}")
                if o.pend is None: o.pend = (reg, row)
                else:
                    r.append(f"ds_write2_b32 v{o.base}, v{o.pend[0]}, v{reg} offset0:{4*o.pend[1]} offset1:{4*row}")
                    o.pend = None
                return r
        def merge(*streams):
            streams = [list(s) for s in streams]
            out = []
            while any(streams):
                for s in streams:
                    if s: out.append(s.pop(0))
            return out
        def mf(acc, T, first):
            return [f"v_mfma_f32_16x16x32_bf16 v[{acc}:{acc+3}], v[{T+4*ks}:{T+4*ks+3}], v[{GF+4*ks}:{GF+4*ks+3}], {'0' if first and ks == 0 else f'v[{acc}:{acc+3}]'}" for ks in range(4)]
        def up(k, p):
            r = KP + k + (4 if p == 2 else 0)
            return (lambda d: f"v_and_b32 v{d}, 0xffff0000, v{r}") if p == 1 else (lambda d: f"v_lshlrev_b32 v{d}, 16, v{r}")
        pend = []
        for p in range(3):
            pl = p >= 3 - NPL
            cm = lambda d, x, y: self.cmul(d, x, y, pl)
            if p: self.stamp(10 + p)
            if p == 2: a("s_waitcnt vmcnt(0)")
            prep = [up(0, p)(2), f"v_mul_f32 v2, {LOG2E}, v2", "v_exp_f32 v2, v2", up(1, p)(3), up(2, p)(F), "v_cvt_pk_bf16_f32 v2, v2, v2", up(3, p)(F + 1),
                    "v_and_b32 v2, 0xffff0000, v2", "v_mul_f32 v3, v3, v56", "v_mul_f32 v2, v2, v56", f"v_mul_f32 v{F}, v{F}, v58", f"v_mul_f32 v{F+1}, v{F+1}, v58",
                    f"v_mul_f32 v3, {INV2PI}, v3", "v_mul_f32 v2, 0xbfb8aa3b, v2",
                    "v_mul_f32 v4, 0x41000000, v2", "v_mul_f32 v5, 0x41000000, v3", "v_mul_f32 v6, 0x43000000, v2", "v_mul_f32 v7, 0x43000000, v3",
                    "v_fract_f32 v3, v3", "v_fract_f32 v5, v5", "v_fract_f32 v7, v7", "v_exp_f32 v2, v2", "v_exp_f32 v4, v4", "v_exp_f32 v6, v6",
                    f"v_cos_f32 v{Z}, v3", f"v_sin_f32 v{Z+1}, v3", f"v_cos_f32 v{Z8}, v5", f"v_sin_f32 v{Z8+1}, v5", f"v_cos_f32 v{W}, v7", f"v_sin_f32 v{W+1}, v7"]
            for q, e in ((Z, 2), (Z8, 4), (W, 6)):
                prep += [f"v_mul_f32 v{q}, v{q}, v{e}", f"v_mul_f32 v{q+1}, v{q+1}, v{e}"]
            k = 0
            for i, ins in enumerate(prep):
                a(ins)
                if pend and i >= 6 and i % 3 == 0: a(pend.pop(0))
            assert not pend
            og = Out(VW, False, 0); of = Out(VW2, True, 1); oc0 = Out(VW2, True, 0); oc1 = Out(VW2, True, 1); ot = Out(VW2, True, 0)
            gs = og.put(None, 0, 59) + og.put(Z8, 1)
            prev = Z8
            for j in range(2, 16):
                d = G + 2 * (j % 2)
                gs += cm(d, prev, Z8) + og.put(d, j)
                prev = d
            fs = of.put(F, 0)
            for r in range(1, 8):
                fs += cm(F + 2 * r, F + 2 * (r - 1), Z) + of.put(F + 2 * r, r)
            for r in range(8):
                fs += cm(F2 + 2 * r, F + 2 * r, W) + of.put(F2 + 2 * r, 8 + r)
            for ins in merge(gs, fs): a(ins)
            for ks in range(4):
                a(f"ds_read_b128 v[{GF+4*ks}:{GF+4*ks+3}], v{VR} offset:{1088*ks}")
                a(f"ds_read_b128 v[{TA+4*ks}:{TA+4*ks+3}], v{VR} offset:{TOFF+1088*ks}")
            s1 = []
            for i in range(4):
                s1.append(cm(F + 2 * i, F2 + 4 * i, W) + [f"v_cvt_pk_bf16_f32 v{SV+i}, v{F+2*i}, -v{F+2*i+1}"]
                          + cm(F + 8 + 2 * i, F + 2 * i, W) + [f"v_cvt_pk_bf16_f32 v{SV+4+i}, v{F+8+2*i}, -v{F+8+2*i+1}"])
            for ins in merge(*s1): a(ins)
            c0 = []; prev = F + 8
            for i in range(12):
                d = F2 + 2 * (i % 2)
                c0 += cm(d, prev, W) + oc0.put(d, i if i < 4 else i + 4)
                prev = d
            last = prev
            c1 = []; prev = F + 12
            for i in range(4):
                d = F2 + 4 + 2 * (i % 2)
                c1 += cm(d, prev, W) + oc1.put(d, 4 + i)
                prev = d
            for ins in merge(c0, c1): a(ins)
            for ks in range(4):
                a(f"ds_read_b128 v[{TB+4*ks}:{TB+4*ks+3}], v{VR} offset:{TOFF+1088*ks}")
            for ins in cm(F2 + 8, last, W): a(ins)
            a("s_waitcnt lgkmcnt(12)")
            t2 = []
            for i in range(8): t2 += ot.put(None, i, SV + i)
            t2 += [f"v_cvt_pk_bf16_f32 v{CV}, v{F2+8}, -v{F2+9}", f"ds_write_b32 v{VW2}, v{CV} offset:128"]
            t2 += [f"ds_read_b128 v[{TC+4*ks}:{TC+4*ks+3}], v{VR} offset:{TOFF+1088*ks}" for ks in range(4)]
            for ins in merge(mf(ACC, TA, p == 0), t2): a(ins)
            pend = ["s_waitcnt lgkmcnt(0)"] + mf(ACC + 4, TB, p == 0) + mf(ACC + 8, TC, p == 0)
        self.kpend = pend
        self.KACC = ACC

    def aux_addr(self):
        a = self.a
        a(f"s_mul_i32 s72, s70, {RSZ}\ns_add_u32 s72, s72, {AUX}")
        a(f"""
        v_and_b32 v2, 15, v0
        v_lshrrev_b32 v3, 4, v0
        v_lshlrev_b32 v4, 3, v2
        v_lshlrev_b32 v5, 2, v3
        v_add_u32 v5, 512, v5
        v_lshlrev_b32 v6, 9, v3
        v_cmp_gt_u32 vcc, 2, v3
        v_cndmask_b32 v5, v6, v5, vcc
        v_add_u32 v5, v5, v4
        v_cndmask_b32 v6, 4, 2, vcc
        v_and_b32 v7, 1, v2
        v_cndmask_b32 v7, v7, v3, vcc
        v_cndmask_b32 v8, 8, 0, vcc
        s_add_u32 s60, s72, 32
        v_sub_u32 v9, v5, v6
        v_lshl_add_u32 v12, v9, 1, s60
        v_add_u32 v13, v12, v8
        v_add_u32 v9, v5, v6
        v_sub_u32 v9, v9, v7
        v_lshl_add_u32 v14, v9, 1, s60
        v_sub_u32 v9, v5, v6
        v_add_u32 v9, v9, v7
        v_lshl_add_u32 v15, v9, 1, s60
        v_add_u32 v15, {K1O-2}, v15
        v_cmp_eq_u32 vcc, 32, v0
        v_add_u32 v9, 4, v15
        v_cndmask_b32 v16, v15, v9, vcc
        v_add_u32 v17, {K1O}, v12
        v_add_u32 v18, {K1O}, v13
        """)
        a(f"""
        v_lshlrev_b32 v5, 8, v3
        v_add3_u32 v5, v5, v4, v4
        v_add_u32 v5, s60, v5
        v_add_u32 v30, 512, v5
        v_add_u32 v31, {K1O-4}, v30
        v_add_u32 v32, -2, v30
        s_add_u32 s61, s60, {2*2044}
        v_mov_b32 v33, s61
        v_add_u32 v34, {K1O-2}, v33
        v_add_u32 v35, {K1O}, v33
        v_and_b32 v5, 1, v3
        v_lshlrev_b32 v5, 3, v5
        v_lshrrev_b32 v6, 1, v3
        v_lshl_add_u32 v5, v6, 8, v5
        v_add3_u32 v5, v5, v4, v4
        v_add_u32 v36, s60, v5
        v_add_u32 v37, {K1O-2}, v36
        v_lshlrev_b32 v7, 3, v0
        v_add_u32 v38, s72, v7
        v_mov_b32 v40, 0
        v_mov_b32 v41, 0
        v_lshlrev_b32 v4, 3, v3
        v_sub_u32 v4, v2, v4
        v_add_u32 v4, {233+16-224}, v4
        v_and_b32 v5, 1, v2
        v_and_b32 v4, -2, v4
        v_lshlrev_b32 v4, 1, v4
        v_cmp_eq_u32 vcc, 0, v5
        v_mov_b32 v6, {K1O}
        v_cndmask_b32 v5, 0, v6, vcc
        v_add3_u32 v220, v4, v5, s72
        v_add_u32 v221, 1024, v220
        v_add_u32 v222, 2048, v220
        v_add_u32 v223, 3072, v220
        v_lshlrev_b32 v4, 5, v2
        v_lshl_add_u32 v225, v3, 3, v4
        v_lshl_add_u32 v4, v3, 4, v4
        s_add_u32 s60, s72, {UO}
        v_add_u32 v224, s60, v4
        """)

    def expand(self):
        a = self.a
        ACC = self.KACC
        T0, T1, T2 = ACC, ACC + 4, ACC + 8
        a(f"""
        s_mov_b64 exec, 1
        v_add_f32 v{T0}, v{T0}, v57
        s_mov_b64 exec, -1
        """) if False else None
        for x in self.kpend: a(x)
        a(f"""
        s_mov_b64 exec, 1
        v_add_f32 v{T0}, v{T0}, v57
        s_mov_b64 exec, -1
        v_cvt_pk_bf16_f32 v42, v{T0}, v{T0+1}
        v_cvt_pk_bf16_f32 v43, v{T0+2}, v{T0+3}
        v_cvt_pk_bf16_f32 v29, v{T0+1}, v{T0+2}
        """)
        for i in range(4):
            a(f"v_cvt_pk_bf16_f32 v{20+i}, v{T1+i}, v{T1+i}")
        for i in range(4):
            a(f"ds_write2_b32 v12, v{20+i}, v{20+i} offset0:{64*i} offset1:{64*i+1}")
            a(f"ds_write2_b32 v13, v{20+i}, v{20+i} offset0:{64*i} offset1:{64*i+1}")
            a(f"ds_write2_b32 v17, v{20+i}, v{20+i} offset0:{64*i} offset1:{64*i+1}")
            a(f"ds_write2_b32 v18, v{20+i}, v{20+i} offset0:{64*i} offset1:{64*i+1}")
        a(f"""
        v_cvt_pk_bf16_f32 v24, v{T2}, v{T2}
        v_cvt_pk_bf16_f32 v25, v{T2}, v{T2+1}
        v_cvt_pk_bf16_f32 v26, v{T2+2}, v{T2+2}
        v_cvt_pk_bf16_f32 v27, v{T2+2}, v{T2+3}
        v_cvt_pk_bf16_f32 v28, v{T2+1}, v{T2+2}
        """)
        for i in range(4):
            a(f"ds_write_b16 v14, v{20+i} offset:{256*i}")
            a(f"ds_write_b16 v{16 if i == 0 else 15}, v{20+i} offset:{256*i}")
        a(f"""
        s_mov_b32 exec_hi, 0
        ds_write2_b32 v30, v24, v28 offset0:0 offset1:1
        ds_write_b32 v30, v26 offset:8
        ds_write_b16_d16_hi v30, v27 offset:12
        ds_write_b16 v32, v24
        ds_write2_b32 v31, v24, v25 offset0:0 offset1:1
        ds_write2_b32 v31, v26, v27 offset0:2 offset1:3
        s_mov_b32 exec_lo, 0
        s_mov_b32 exec_hi, 1
        ds_write2_b32 v33, v24, v24 offset0:0 offset1:1
        ds_write2_b32 v35, v24, v24 offset0:0 offset1:1
        ds_write_b16 v34, v24
        s_mov_b64 exec, 15
        ds_write_b64 v38, v[40:41]
        ds_write_b64 v38, v[40:41] offset:{K1O}
        s_lshr_b64 exec, -1, 4
        ds_write_b64 v38, v[40:41] offset:{UO}
        s_mov_b64 exec, -1
        ds_write_b64 v36, v[42:43]
        ds_write_b16 v37, v42
        ds_write_b32 v36, v29 offset:{K1O}
        ds_write_b16_d16_hi v37, v43 offset:6
        """)

    def u_gather(self):
        a = self.a
        sc = "sc1" if self.fused else ""
        a(f"""
        v_lshrrev_b32 v2, 2, v0
        v_and_b32 v3, 3, v0
        v_mul_u32_u24 v4, 10240, v2
        v_lshl_add_u32 v4, v3, 4, v4
        s_lshl_b32 s60, s{S_CH0}, 4
        s_add_u32 s60, s60, {XT}
        v_mul_u32_u24 v5, {RSZ}, v3
        v_lshl_add_u32 v5, v2, 4, v5
        v_add_u32 v5, {AUX+UO+UPAD}, v5
        v_cmp_gt_u32 vcc, s{S_NCH}, v3
        s_mov_b64 s[62:63], exec
        s_and_b64 exec, exec, vcc
        """)
        for i in range(16):
            a(f"buffer_load_dwordx4 v[{40+4*i}:{43+4*i}], v4, s[{R_WS}:{R_WS+3}], s60 offen {sc}")
            if i < 15: a(f"s_add_u32 s60, s60, {16*10240}")
        for i in range(16):
            a(f"s_waitcnt vmcnt({14-i})" if i < 15 else "s_nop 7")
            a(f"ds_write_b128 v5, v[{40+4*i}:{43+4*i}] offset:{256*i}")
        a("s_mov_b64 exec, s[62:63]\ns_waitcnt lgkmcnt(0)")

    def conv(self):
        a = self.a
        sc = "sc1" if self.fused else ""
        ACC = 60; OP = [92, 156]
        AB = 220
        first = set()
        def reads(tau):
            s = OP[tau % 2]
            r = []
            for d in range(8):
                r.append(f"ds_read_b128 v[{s+32+4*d}:{s+35+4*d}], v224 offset:{512*d+64*tau}")
                o = 512 * d - 64 * tau + 448
                b = AB + o // 1024; q = (o % 1024) // 4
                r.append(f"ds_read2_b32 v[{s+4*d}:{s+4*d+1}], v{b} offset0:{q} offset1:{q+1}")
                r.append(f"ds_read2_b32 v[{s+4*d+2}:{s+4*d+3}], v{b} offset0:{q+2} offset1:{q+3}")
            return r
        r0 = reads(0)
        for k, ins in enumerate(r0):
            a(ins)
            if k == 12: a("s_waitcnt lgkmcnt(3)")
        for tau in range(8):
            s = OP[tau % 2]
            nxt = reads(tau + 1) if tau < 7 else []
            pairs = sorted([(d, n) for d in range(8) for n in range(8 - d)], key=lambda p: (max(p), p))
            if os.environ.get('XD'):
                XD = int(os.environ['XD'])
                pairs = [p for p in pairs if p[0] < XD or tau == 0]
                if tau > 0:
                    nxt = [x for i, x in enumerate(nxt) if i % 3 == 0 or i // 3 < XD]
            a("s_waitcnt lgkmcnt(0)")
            for k, (d, n) in enumerate(pairs):
                acc = ACC + 4 * (d + n)
                a(f"v_mfma_f32_16x16x32_bf16 v[{acc}:{acc+3}], v[{s+4*d}:{s+4*d+3}], v[{s+32+4*n}:{s+35+4*n}], {f'v[{acc}:{acc+3}]' if acc in first else '0'}")
                first.add(acc)
                if nxt and k < 30 and k % 5 != 4:
                    a(nxt.pop(0))
            for x in nxt: a(x)
        a(f"""
        s_lshl_b32 s61, s71, 12
        s_add_u32 s61, s61, {ST}
        """)
        for n in range(8):
            acc = ACC + 4 * n; o = 128 + 2 * n
            a(f"""
            v_cvt_pk_bf16_f32 v{o}, v{acc}, v{acc+1}
            v_cvt_pk_bf16_f32 v{o+1}, v{acc+2}, v{acc+3}
            buffer_store_dwordx2 v[{o}:{o+1}], v225, s[{R_WS}:{R_WS+3}], s61 offen offset:{512*n} {sc}
            """)

    G2_ACC = 16; G2_RB = 96; G2_BT = 156; G2_A = 176
    def g2_addr(self):
        self.a(f"""
        v_lshlrev_b32 v9, 4, v0
        v_add_u32 v8, 4096, v9
        s_mul_i32 s74, s{S_CB2}, 245760
        s_mul_i32 s60, s{S_WAVE}, {12*5120}
        s_add_u32 s74, s74, s60
        s_add_u32 s74, s74, {W2F}
        s_mul_i32 s75, s{S_WAVE}, 30720
        """)
    @staticmethod
    def kloc(j):
        return j

    NRB = int(os.environ.get('NRB', '3'))
    def lslot(self, j):
        if self.NRB == 3:
            q = j if j < 6 else j - 9
        else:
            q = (j - 5) % 6
        return q * 5120
    def inreg(self, j):
        return 6 <= j < 9 if self.NRB == 3 else j < 5
    def rbreg(self, j):
        return self.G2_RB + 20 * (j % 3 if self.NRB == 3 else j)
    def a2reg(self, j):
        if self.NRB == 3: return self.G2_A + 16 * (j % 5)
        return [208, 224, 240, 208, 96, 224, 116, 240, 136, 208, 156, 96][j]

    def g2_dma_items(self, j):
        W = f"s[{R_WS}:{R_WS+3}]"
        l0 = self.lslot(j)
        r = []
        for nt in range(5):
            pre = [f"s_add_u32 s81, s74, {5120*self.kloc(j)}"] if nt == 0 else []
            if nt < 4: r.append((pre + [f"s_add_u32 m0, s75, {l0}", f"buffer_load_dwordx4 v9, {W}, s81 offen offset:{1024*nt} sc1 lds"], f"D{j}"))
            else: r.append(([f"s_add_u32 m0, s75, {l0+4096}", f"buffer_load_dwordx4 v8, {W}, s81 offen sc1 lds"], f"D{j}"))
        return r

    def g2_bload_items(self, j):
        W = f"s[{R_WS}:{R_WS+3}]"
        r = []
        for nt in range(5):
            d = self.rbreg(j) + 4 * nt
            pre = [f"s_add_u32 s81, s74, {5120*self.kloc(j)}"] if nt == 0 else []
            if nt < 4: r.append((pre + [f"buffer_load_dwordx4 v[{d}:{d+3}], v9, {W}, s81 offen offset:{1024*nt} sc1"], f"B{j}"))
            else: r.append(([f"buffer_load_dwordx4 v[{d}:{d+3}], v8, {W}, s81 offen sc1"], f"B{j}"))
        return r

    def g2_aload_items(self, j):
        W = f"s[{R_WS}:{R_WS+3}]"
        k = self.kloc(j)
        vo = (9, 8, 13)[k // 4]
        r = []
        for i in range(4):
            d = self.a2reg(j) + 4 * i
            r.append(([f"buffer_load_dwordx4 v[{d}:{d+3}], v{vo}, {W}, s{76+i} offen offset:{1024*(k%4)} sc1"], f"A{j}"))
        return r

    def g2_setup_s(self):
        a = self.a
        for i in range(4):
            a(f"""
            s_add_u32 s60, s{S_WAVE}, {i}
            s_and_b32 s60, s60, 3
            s_lshl_b32 s61, s{S_RB2}, 2
            s_add_u32 s60, s60, s61
            s_mul_i32 s60, s60, 49152
            s_mul_i32 s61, s{S_WAVE}, {12*1024}
            s_add_u32 s60, s60, s61
            s_add_u32 s{76+i}, s60, {HF}
            """)
    def g2_setup_v(self):
        a = self.a
        self.seen = {t for t in self.seen if not t.startswith("A")}
        a(f"v_add_u32 v10, s75, v9\nv_add_u32 v13, 8192, v9")

    def fh_wait(self, tp):
        self.a(f"s_lshl_b32 s66, s{S_WAVE}, 4\ns_add_u32 s66, s66, {M_FH + 64*tp}")
        self.lds_wait_all("s66", 1, f"fhw{tp}", tmp=2)

    def g2_loop(self, hook=None, hook_at=6, fill0=None):
        a = self.a
        big = self.NRB != 3
        seq = [(j, nt) for j in range(9) for nt in range(5)] + [(j, nt) for nt in range(5) for j in range(9, 12)]
        lds = [x for x in seq if not self.inreg(x[0])]
        pos = {x: i for i, x in enumerate(lds)}
        NB = 3 if big else 5
        BT = 196 if big else self.G2_BT
        issued = [0]; lq = []
        def bt_read():
            i = issued[0]
            if i >= len(lds): return
            j, nt = lds[i]
            if nt == 0 or j >= 9: self.vwait(f"D{j}")
            d = BT + 4 * (i % NB)
            a(f"ds_read_b128 v[{d}:{d+3}], v10 offset:{self.lslot(j) + 1024 * nt}")
            lq.append(i); issued[0] += 1
        fill = list(fill0 or [])
        if not big:
            for _ in range(4): bt_read()
        asched = {0: [3, 4], 1: [5, 6], 2: [7, 8], 3: [9, 10], 4: [11]} if big else {j: [j + 5] for j in range(7)}
        wslot = (lambda i: i) if big else (lambda i: i + 2)
        self.wslot = wslot
        wr = []; done = set()
        for (j, nt) in seq:
            if j not in done:
                done.add(j)
                if hook and j == hook_at: hook(); lq.append("x")
                self.stamp(16 + j, q=True)
                self.vwait(f"A{j}")
                if self.inreg(j): self.vwait(f"B{j}")
            if self.inreg(j):
                B = self.rbreg(j) + 4 * nt
            else:
                i = pos[(j, nt)]
                B = BT + 4 * (i % NB)
                k = lq.index(i)
                a(f"s_waitcnt lgkmcnt({len(lq) - 1 - k})"); del lq[:k + 1]
            for i in range(4):
                acc = self.G2_ACC + 16 * nt + 4 * i
                A = self.a2reg(j) + 4 * i
                a(f"v_mfma_f32_16x16x32_bf16 v[{acc}:{acc+3}], v[{B}:{B+3}], v[{A}:{A+3}], {'0' if j == 0 else f'v[{acc}:{acc+3}]'}")
                if fill and i in (0, 2): self.emit(fill.pop(0))
                if i == 1:
                    if big:
                        if j > 4 or nt >= 3 and j == 4: bt_read()
                    elif not self.inreg(j):
                        if not (j == 5 and nt >= 1): bt_read()
                    elif j == 8 and nt >= 1: bt_read()
                if i == 3 and wr:
                    a(wr.pop(0)); lq.append("w")
            if j == 11:
                wr += [f"ds_write_b128 v10, v[{self.G2_ACC+16*nt+4*i}:{self.G2_ACC+16*nt+4*i+3}] offset:{5120*wslot(i)+1024*nt}" for i in range(1, 4)]
            if nt == 4 and j < 9:
                fill = sum((self.g2_aload_items(jj) for jj in asched.get(j, [])), []) + fill
                if big:
                    if j == 5: fill += self.g2_dma_items(11)
                elif j < 3: fill += self.g2_dma_items(j + 9)
        assert not fill
        for x in wr: a(x)

    def svc_x_loads(self):
        a = self.a
        a(f"""
        s_mul_i32 s60, s{S_RB2}, {64*1280}
        s_mul_i32 s61, s{S_CB2}, 160
        s_add_u32 s60, s60, s61
        """)
        for i in range(10):
            a(f"""
            v_add_u32 v2, {64*i}, v0
            v_mul_u32_u24 v3, 52429, v2
            v_lshrrev_b32 v3, 19, v3
            v_mul_u32_u24 v4, 10, v3
            v_sub_u32 v4, v2, v4
            v_lshlrev_b32 v4, 4, v4
            v_mad_u32_u24 v{184+i}, v3, s97, v4
            v_mul_u32_u24 v3, 1280, v3
            v_add_u32 v3, v3, v4
            buffer_load_dwordx4 v[{140+4*i}:{143+4*i}], v3, s[{R_X}:{R_X+3}], s60 offen
            """.replace("s97", "s67") if False else f"""
            v_add_u32 v2, {64*i}, v0
            v_mul_u32_u24 v3, 52429, v2
            v_lshrrev_b32 v3, 19, v3
            v_mul_u32_u24 v4, 10, v3
            v_sub_u32 v4, v2, v4
            v_lshlrev_b32 v4, 4, v4
            v_mul_u32_u24 v5, {XRS}, v3
            v_add_u32 v{184+i}, v5, v4
            v_mul_u32_u24 v3, 1280, v3
            v_add_u32 v3, v3, v4
            buffer_load_dwordx4 v[{140+4*i}:{143+4*i}], v3, s[{R_X}:{R_X+3}], s60 offen
            """)
        a(f"""
        v_min_u32 v2, 39, v0
        v_lshlrev_b32 v2, 2, v2
        v_add_u32 v2, s61, v2
        global_load_dword v180, v2, s[{P_B2}:{P_B2+1}]
        """)

    def svc_x_write(self):
        a = self.a
        for i in range(10):
            a(f"v_add_u32 v{184+i}, {XI}, v{184+i}")
        for i in range(10):
            a(f"ds_write_b128 v{184+i}, v[{140+4*i}:{143+4*i}]")
        a(f"""
        v_lshlrev_b32 v182, 16, v180
        v_and_b32 v183, 0xffff0000, v180
        v_min_u32 v2, 39, v0
        v_lshlrev_b32 v2, 3, v2
        v_add_u32 v2, {M_B2}, v2
        ds_write_b64 v2, v[182:183]
        """)

    def s_tile_dma(self):
        a = self.a
        sc = "sc1" if self.fused else ""
        a(f"""
        v_lshrrev_b32 v2, 3, v0
        v_and_b32 v3, 7, v0
        v_lshlrev_b32 v2, 12, v2
        v_lshl_add_u32 v2, v3, 4, v2
        s_mul_i32 s60, s{S_CB2}, {80*4096}
        s_lshl_b32 s61, s{S_RB2}, 7
        s_add_u32 s60, s60, s61
        s_add_u32 s60, s60, {ST}
        """)
        for t in range(10):
            a(f"s_mov_b32 m0, {AUX+1024*t}")
            a(f"buffer_load_dwordx4 v2, s[{R_WS}:{R_WS+3}], s60 offen {sc} lds")
            if t < 9: a(f"s_add_u32 s60, s60, {8*4096}")
        self.svc_x_write()
        a("s_waitcnt vmcnt(0) lgkmcnt(0)")

    def g2_final(self):
        a = self.a
        ACC = self.G2_ACC
        self.srd(R_OUT, P_OUT, 2621440)
        for i in range(1, 4):
            a(f"""
            s_sub_u32 s60, s{S_WAVE}, {i}
            s_and_b32 s60, s60, 3
            s_mul_i32 s60, s60, 30720
            s_add_u32 s60, s60, {5120*self.wslot(i)}
            v_add_u32 v{4+i}, s60, v9
            """)
        a(f"""
        v_and_b32 v2, 15, v0
        v_lshrrev_b32 v3, 4, v0
        v_lshrrev_b32 v12, 2, v2
        v_lshl_add_u32 v12, v3, 2, v12
        v_lshlrev_b32 v12, 7, v12
        v_and_b32 v15, 3, v0
        v_lshl_add_u32 v12, v15, 3, v12
        s_lshl_b32 s60, s{S_WAVE}, 5
        s_add_u32 s60, s60, {AUX}
        v_add_u32 v12, s60, v12
        s_mul_i32 s60, s{S_WAVE}, {16*XRS}
        s_add_u32 s60, s60, {XI}
        v_mul_u32_u24 v11, {XRS}, v2
        v_lshl_add_u32 v11, v3, 3, v11
        v_add_u32 v11, s60, v11
        v_lshlrev_b32 v13, 4, v3
        v_add_u32 v13, {M_B2}, v13
        v_mov_b32 v250, 1.0
        v_mov_b32 v251, 1.0
        v_mov_b32 v252, 0xbfb8aa3b
        s_lshl_b32 s80, s{S_RB2}, 2
        s_add_u32 s80, s80, s{S_WAVE}
        s_mul_i32 s80, s80, {16*1280}
        s_mul_i32 s61, s{S_CB2}, 160
        s_add_u32 s80, s80, s61
        """)
        for i in range(3):
            a(f"""
            v_add_u32 v2, {64*i}, v0
            v_mul_u32_u24 v3, 52429, v2
            v_lshrrev_b32 v3, 19, v3
            v_mul_u32_u24 v4, 10, v3
            v_sub_u32 v4, v2, v4
            v_lshlrev_b32 v4, 4, v4
            v_mul_u32_u24 v2, {XRS}, v3
            v_add3_u32 v{240+i}, v2, v4, s60
            v_mul_u32_u24 v3, 1280, v3
            v_add_u32 v{243+i}, v3, v4
            """)
        a("s_waitcnt lgkmcnt(0)\ns_barrier")
        P = 96
        def reads(nt):
            p = P + 20 * nt
            for i in range(1, 4):
                a(f"ds_read_b128 v[{p+4*(i-1)}:{p+4*(i-1)+3}], v{4+i} offset:{1024*nt}")
            a(f"ds_read_b128 v[{p+12}:{p+15}], v13 offset:{64*nt}")
            a(f"ds_read_b64_tr_b16 v[{p+16}:{p+17}], v12 offset:{2048*nt}")
            a(f"ds_read_b64 v[{p+18}:{p+19}], v11 offset:{32*nt}")
        reads(0); reads(1)
        Pp = lambda r: f"v[{r}:{r+1}]"
        for nt in range(5):
            acc = ACC + 16 * nt; p = P + 20 * nt; t = 200 + 12 * (nt % 2)
            a(f"s_waitcnt lgkmcnt({6 if nt < 4 else 1})" if nt != 0 else "s_waitcnt lgkmcnt(6)")
            a(f"""
            v_pk_add_f32 {Pp(acc)}, {Pp(acc)}, {Pp(p)}
            v_pk_add_f32 {Pp(acc+2)}, {Pp(acc+2)}, {Pp(p+2)}
            v_pk_add_f32 {Pp(p+4)}, {Pp(p+4)}, {Pp(p+8)}
            v_pk_add_f32 {Pp(p+6)}, {Pp(p+6)}, {Pp(p+10)}
            v_pk_add_f32 {Pp(acc)}, {Pp(acc)}, {Pp(p+12)}
            v_pk_add_f32 {Pp(acc+2)}, {Pp(acc+2)}, {Pp(p+14)}
            v_pk_add_f32 {Pp(acc)}, {Pp(acc)}, {Pp(p+4)}
            v_pk_add_f32 {Pp(acc+2)}, {Pp(acc+2)}, {Pp(p+6)}
            v_pk_mul_f32 {Pp(t)}, {Pp(acc)}, v[252:253] op_sel_hi:[1,0]
            v_pk_mul_f32 {Pp(t+2)}, {Pp(acc+2)}, v[252:253] op_sel_hi:[1,0]
            """)
            for i in range(4): a(f"v_exp_f32 v{t+i}, v{t+i}")
            if nt + 2 < 5: reads(nt + 2)
            a(f"""
            v_lshlrev_b32 v{t+4}, 16, v{p+16}
            v_and_b32 v{t+5}, 0xffff0000, v{p+16}
            v_lshlrev_b32 v{t+6}, 16, v{p+17}
            v_and_b32 v{t+7}, 0xffff0000, v{p+17}
            v_pk_add_f32 {Pp(t)}, {Pp(t)}, v[250:251]
            v_pk_add_f32 {Pp(t+2)}, {Pp(t+2)}, v[250:251]
            """)
            for i in range(4): a(f"v_rcp_f32 v{t+i}, v{t+i}")
            a(f"""
            v_pk_mul_f32 {Pp(t+4)}, {Pp(t+4)}, {Pp(acc)}
            v_pk_mul_f32 {Pp(t+6)}, {Pp(t+6)}, {Pp(acc+2)}
            v_lshlrev_b32 v{t+8}, 16, v{p+18}
            v_and_b32 v{t+9}, 0xffff0000, v{p+18}
            v_lshlrev_b32 v{t+10}, 16, v{p+19}
            v_and_b32 v{t+11}, 0xffff0000, v{p+19}
            v_pk_fma_f32 {Pp(t+8)}, {Pp(t+4)}, {Pp(t)}, {Pp(t+8)}
            v_pk_fma_f32 {Pp(t+10)}, {Pp(t+6)}, {Pp(t+2)}, {Pp(t+10)}
            v_cvt_pk_bf16_f32 v{p+18}, v{t+8}, v{t+9}
            v_cvt_pk_bf16_f32 v{p+19}, v{t+10}, v{t+11}
            ds_write_b64 v11, v[{p+18}:{p+19}] offset:{32*nt}
            """)
        osc = os.environ.get('OSC', '')
        a(f"""
        ds_read_b128 v[224:227], v240
        ds_read_b128 v[228:231], v241
        s_mov_b32 exec_hi, 0
        ds_read_b128 v[232:235], v242
        s_mov_b64 exec, -1
        s_waitcnt lgkmcnt(1)
        buffer_store_dwordx4 v[224:227], v243, s[{R_OUT}:{R_OUT+3}], s80 offen {osc}
        s_waitcnt lgkmcnt(0)
        buffer_store_dwordx4 v[228:231], v244, s[{R_OUT}:{R_OUT+3}], s80 offen {osc}
        s_mov_b32 exec_hi, 0
        s_nop 2
        buffer_store_dwordx4 v[232:235], v245, s[{R_OUT}:{R_OUT+3}], s80 offen {osc}
        s_mov_b64 exec, -1
        """)

    def misc_init(self):
        self.a(f"""
        v_lshlrev_b32 v2, 2, v0
        v_add_u32 v2, {MISC}, v2
        v_mov_b32 v3, 0
        ds_write_b32 v2, v3
        """)


HEADER = open("cdna_kernels/" + NAME + ".s.ref").read().split("; Override launch")[0]

def kernel_text(label, body):
    return f""".text
.globl {label}
.p2align 8
.type {label},@function
{label}:
{body}
"""
def desc(label, vgpr=256):
    return f""".section .rodata,"a"
.p2align 6
.amdhsa_kernel {label}
  .amdhsa_next_free_vgpr {vgpr}
  .amdhsa_next_free_sgpr 102
  .amdhsa_accum_offset {vgpr}
  .amdhsa_group_segment_fixed_size 0
  .amdhsa_kernarg_size 120
  .amdhsa_user_sgpr_count 2
  .amdhsa_user_sgpr_kernarg_segment_ptr 1
  .amdhsa_system_sgpr_workgroup_id_x 1
.end_amdhsa_kernel
"""
```

```python
import sys, os
from parts import *
E = lambda k, d=0: int(os.environ.get(k, d))

class Fused(Gen):
    def cnt_add(self, addr, rtn=False):
        self.a(f"""
        v_mov_b32 v2, {addr}
        v_mov_b32 v3, 1
        s_mov_b64 exec, 1
        {'ds_add_rtn_u32 v4, v2, v3' if rtn else 'ds_add_u32 v2, v3'}
        s_mov_b64 exec, -1
        """)

    def cnt_wait(self, addr, n, name, sleep=0):
        lab = self.L(name)
        self.a(f"""
        v_mov_b32 v2, {addr}
        s_mov_b32 s61, 0
        {lab}:
        ds_read_b32 v3, v2
        s_add_u32 s61, s61, 1
        s_waitcnt lgkmcnt(0)
        v_readfirstlane_b32 s60, v3
        s_cmp_gt_u32 s61, 0x200000
        s_cbranch_scc1 {lab}_d
        s_cmp_ge_u32 s60, {n}
        s_cbranch_scc1 {lab}_d
        {'s_sleep %d' % sleep if sleep else ''}
        s_branch {lab}
        {lab}_d:
        """)

    def build_fused(self):
        a = self.a
        L = self.L
        st = 2 if self.stamps else 0
        N0 = E('N0', 8)
        slp = ('s_sleep %d' % PSLEEP) if PSLEEP else ''
        GE = E('GE', 1); NA = E('NA', 0); GL = E('GL', 0); GS = 40 - 4 * GE - 3 * NA - 3 * GL
        def aux_dma(p):
            if NA == 0: return
            self.w1_addr(12)
            a(f"s_add_u32 s68, s70, {GS}\n{L('adl' + p)}:")
            self.w1_group(12)
            a(f"s_add_u32 s68, s68, 3\ns_cmp_lt_u32 s68, {GS + 3 * NA}\ns_cbranch_scc1 {L('adl' + p)}")
        a(f"{L('start')}:")
        self.prologue()
        self.stamp(0)
        if 0 in self.sel:
            a(f"v_mov_b32 v1, s94\ns_mov_b64 exec, 1\nbuffer_store_dword v1, off, s[{R_WS}:{R_WS+3}], s100 offset:124\ns_mov_b64 exec, -1")
        a(f"s_cmp_ge_u32 s{S_WAVE}, 4\ns_cbranch_scc1 {L('aux0')}")
        a(f"s_setprio {E('GP', 2)}")
        self.ln_loads()
        a(f"s_branch {L('gemm')}\n{L('aux0')}:")
        a.clear_hist()
        a(f"s_sub_u32 s60, s{S_WAVE}, 4\ns_cmp_ge_u32 s60, s{S_NCH}\ns_cbranch_scc1 {L('aux1')}")
        a("s_setprio 3")
        self.kg_loads()
        a(f"s_branch {L('kg')}\n{L('aux1')}:")
        a(f"s_cmp_lg_u32 s{S_WAVE}, 7\ns_cbranch_scc1 {L('noch')}")
        a(f"s_setprio {E('SP', 1)}")
        self.w1_addr(12)
        a(f"""
        s_cmp_lt_u32 s{S_NCH}, 3
        s_cselect_b32 s66, {GS - E('H6', 0)}, {GS}
        s_mul_i32 s68, s{S_RB}, s66
        s_lshr_b32 s68, s68, 4
        s_mov_b32 s67, s66
        s_sub_u32 s65, s66, 1
        {L('sdl')}:
        """)
        self.w1_group(12)
        a(f"""
        s_add_u32 s68, s68, 1
        s_cmp_eq_u32 s68, s66
        s_cselect_b32 s68, 0, s68
        s_cmp_lg_u32 s67, s65
        s_cbranch_scc1 {L('sdw')}
        """)
        self.srd(R_OUT, P_OUT, 2621440)
        a(f"""
        v_lshlrev_b32 v3, 20, v0
        s_mov_b32 exec_hi, 0
        buffer_load_dword v131, v3, s[{R_WS}:{R_WS+3}], 0 offen
        buffer_load_dword v132, v3, s[{R_OUT}:{R_OUT+3}], 0 offen
        s_mov_b64 exec, -1
        {L('sdw')}:
        s_sub_u32 s67, s67, 1
        s_cmp_lg_u32 s67, 0
        s_waitcnt vmcnt({E('DEPTH', 45)})
        s_cbranch_scc1 {L('sdl')}
        s_branch {L('svc')}
        {L('gemm')}:
        """)
        a.clear_hist()
        self.w1_addr(92)
        self.g1_b1_loads()
        a(f"s_add_u32 s68, s{S_WAVE}, {GS + 3 * NA}")
        for i in range(GE):
            self.w1_group(92)
            if i + 1 < GE: a("s_add_u32 s68, s68, 4")
        self.ln_pub_addr()
        a(f"s_waitcnt vmcnt({6 + 3 * GE})")
        self.stamp(1)
        self.ln_math()
        a("s_waitcnt lgkmcnt(0)")
        self.lds_set(M_LNW, S_WAVE, tmp=(2, 3))
        self.lds_wait_all(M_LNW, 4, "lnw4", tmp=2, sleep=0)
        a(f"v_mov_b32 v97, 0\nv_mov_b32 v96, 0\ns_cmp_lg_u32 s{S_WAVE}, 0\ns_cbranch_scc1 {L('g_n0')}")
        a(f"global_load_dword v96, v97, s[{P_DBG}:{P_DBG+1}] sc1\n{L('g_n0')}:")
        self.ln_publish()
        XS = E('XS', 1)
        if not XS: self.ln_publish_xt()
        self.stamp(13)
        if not XS: self.cnt_add(M_LNCNT + 8)
        if E('RG'): self.cnt_add(M_PD + 4)
        a(f"s_waitcnt vmcnt({(3 if XS else 6) + (1 if 13 in self.sel else 0)})")
        self.cnt_add(M_LNCNT + 12)
        self.g1_prep()
        self.g2_addr()
        a("s_waitcnt vmcnt(0)")
        self.stamp(2)
        a(f"s_cmp_eq_u32 s{S_WAVE}, 0\ns_cbranch_scc1 {L('g_w0')}")
        self.cnt_add(M_LNCNT)
        if GL:
            a(f"s_add_u32 s68, s{S_WAVE}, {40 - 3 * GL - 1}")
            for i in range(GL):
                self.w1_group(92)
                if i + 1 < GL: a("s_add_u32 s68, s68, 3")
            a("s_waitcnt vmcnt(0)")
            self.cnt_add(M_LNCNT + 12)
        a(f"s_branch {L('g_j')}\n{L('g_w0')}:")
        a(f"""
        s_mov_b32 s64, 0
        {L('np')}:
        v_readfirstlane_b32 s{S_NONCE}, v96
        s_cmp_gt_u32 s64, 0x20000
        s_cbranch_scc1 {L('npd')}
        s_cmp_lg_u32 s{S_NONCE}, 0
        s_cbranch_scc1 {L('npd')}
        global_load_dword v96, v97, s[{P_DBG}:{P_DBG+1}] sc1
        s_add_u32 s64, s64, 1
        s_waitcnt vmcnt(0)
        s_nop 1
        s_branch {L('np')}
        {L('npd')}:
        v_mov_b32 v2, s{S_NONCE}
        v_mov_b32 v3, {M_NONCE}
        ds_write_b32 v3, v2
        v_mov_b32 v3, {M_LNCNT}
        s_mov_b32 s64, 0
        {L('lc')}:
        ds_read_b32 v2, v3
        s_add_u32 s64, s64, 1
        s_waitcnt lgkmcnt(0)
        v_readfirstlane_b32 s60, v2
        s_cmp_gt_u32 s64, 0x200000
        s_cbranch_scc1 {L('lcd')}
        s_cmp_lt_u32 s60, 3
        s_cbranch_scc1 {L('lc')}
        {L('lcd')}:
        s_mul_i32 s66, s{S_LID}, {FSTR}
        s_add_u32 s66, s66, {FLN}
        """)
        self.store_flag(66)
        self.stamp(10)
        a(f"{L('g_j')}:")
        if XS:
            self.ln_publish_xt()
            self.cnt_add(M_LNCNT + 8)
        self.get_nonce("gn", tmp=2)
        a(f"s_lshl_b32 s66, s{S_RB}, 2\ns_add_u32 s66, s66, s{S_WAVE}\ns_mul_i32 s66, s66, {4*FSTR}\ns_add_u32 s66, s66, {FLN}")
        def flt(p, wait):
            a(f"s_cmp_lg_u32 s71, 0\ns_cbranch_scc1 {L('flt' + p)}\ns_mov_b32 s71, 1")
            wait()
            self.cnt_add(M_HC + 4, rtn=True)
            a(f"""
            s_mul_i32 s65, s{S_LID}, {FSTR}
            s_add_u32 s65, s65, {FLT}
            s_waitcnt lgkmcnt(0)
            s_nop 1
            v_readfirstlane_b32 s60, v4
            s_cmp_lg_u32 s60, 3
            s_cbranch_scc1 {L('flt' + p)}
            v_mov_b32 v2, s{S_NONCE}
            s_mov_b64 exec, 1
            buffer_store_dword v2, off, s[{R_WS}:{R_WS+3}], s65 sc1
            s_mov_b64 exec, -1
            {L('flt' + p)}:
            """)
        a("s_mov_b32 s71, 0")
        self.spoll("pln", 66, FSTR, E('SS', 1), n=4, miss=(lambda: flt("a", lambda: a("s_waitcnt vmcnt(0)"))) if XS else None)
        self.stamp(3)
        self.vq = ["XT"]; self.seen.add("XT")
        for ks in range(2):
            for it in self.g1_aload(ks): self.emit(it)
        if XS: flt("b", lambda: a("s_waitcnt vmcnt(4)"))
        for ks in range(2, N0):
            for it in self.g1_aload(ks): self.emit(it)
        self.cnt_add(M_LN)
        if E('H6', 0):
            a(f"s_cmp_lt_u32 s{S_NCH}, 3\ns_cselect_b32 s65, 6, 5")
            self.cnt_wait(M_LNCNT + 12, "s65", "w1w")
        else: self.cnt_wait(M_LNCNT + 12, 5 + (3 if NA else 0) + (3 if GL else 0), "w1w")
        self.stamp(4, q=True)
        self.pubn = ''
        def publish(p):
            self.vwait("S")
            self.cnt_add(M_HC + 4 * p, rtn=True)
            a(f"""
            s_mul_i32 s66, s{S_LID}, {FHS}
            s_add_u32 s66, s66, {FH + 256 * FHS * p}
            s_waitcnt lgkmcnt(0)
            s_nop 1
            v_readfirstlane_b32 s60, v4
            s_cmp_lg_u32 s60, 3
            s_cbranch_scc1 {L('nofh%d%s' % (p, self.pubn))}
            """)
            self.store_flag(66)
            if p == 0: self.lds_set(M_HP, None, tmp=(2, 3))
            a(f"{L('nofh%d%s' % (p, self.pubn))}:")
            self.stamp(28 + p, q=True)
            self.vq.append("f")
            self.vq.pop()
        def cnt_wait(addr, n, name):
            lab = L(name)
            a(f"""
            v_mov_b32 v2, {addr}
            s_mov_b32 s61, 0
            {lab}:
            ds_read_b32 v3, v2
            s_add_u32 s61, s61, 1
            s_waitcnt lgkmcnt(0)
            v_readfirstlane_b32 s60, v3
            s_cmp_gt_u32 s61, 0x200000
            s_cbranch_scc1 {lab}_d
            s_cmp_lt_u32 s60, {n}
            s_cbranch_scc1 {lab}
            {lab}_d:
            """)
        def ev_rb():
            self.lds_wait_all(M_FW, 1, "fww", tmp=2)
            return sum((self.g2_bload_items(j) for j in range(12) if self.inreg(j)), [])
        ev = {10: lambda: self.stamp(14, q=True)}
        RB1 = E('RB1', 11)
        if RB1 < 20: ev[RB1] = ev_rb
        self.g2_setup_s()
        fa, fv = self.g1_loop(N0, ev, TL=E('TL', 5))
        self.cnt_add(M_PD)
        self.stamp(5, q=True)
        for it in fa + self.epi_ops(2) + fv[:E('FV', 4)]: self.emit(it)
        fv = fv[E('FV', 4):]
        self.stamp(15, q=True)
        self.g2_setup_v()
        ND = 0
        publish(0)
        rest = ev_rb() if RB1 >= 20 else []
        for it in fv: self.emit(it)
        cnt_wait(M_PD, 4, "pdw")
        if E('PF'): a("s_setprio 0")
        for j in (range(6) if self.NRB == 3 else range(5, 11)):
            for it in self.g2_dma_items(j): self.emit(it)
        for it in rest: self.emit(it)
        self.stamp(6, q=True)
        a(f"s_lshr_b32 s66, s{S_RB2}, 1\ns_lshl_b32 s66, s66, 2\ns_add_u32 s66, s66, s{S_WAVE}\ns_mul_i32 s66, s66, {4*FHS}\ns_add_u32 s66, s66, {FH}")
        self.spoll("pfh", 66, FHS, E('SS', 1), n=4)
        NF2 = E('NF2', 2)
        for j in range(NF2):
            for it in self.g2_aload_items(j): self.emit(it)
        self.stamp(7, q=True)
        self.g2_loop(hook=lambda: self.lds_set(M_J6, None, tmp=(2, 3)), hook_at=E('J6', 6), fill0=sum((self.g2_aload_items(j) for j in range(NF2, 5 if self.NRB == 3 else 3)), []))
        self.stamp(8)
        if E('PF'): a("s_setprio 2")
        self.g2_final()
        if 9 in self.sel: a("s_waitcnt vmcnt(0)")
        self.stamp(9)
        if E('KX'):
            a(f"""
            s_waitcnt vmcnt(0)
            s_memrealtime s[62:63]
            s_waitcnt lgkmcnt(0)
            s_sub_u32 s60, s62, s{S_NONCE}
            s_min_u32 s60, s60, 10000
            s_mul_i32 s60, s60, {E('KX')}
            {L('kx')}:
            s_memrealtime s[62:63]
            s_waitcnt lgkmcnt(0)
            s_sub_u32 s61, s62, s{S_NONCE}
            s_cmp_lt_u32 s61, s60
            s_cbranch_scc1 {L('kx')}
            """)
        self.dg_end(0)
        if E('SK'):
            a(f"""
            s_sub_u32 s60, {'s94, s%d' % S_NONCE if E('SK') == 1 else 's%d, s94' % S_NONCE}
            s_max_i32 s60, s60, 0
            s_min_u32 s60, s60, 2000
            s_mul_i32 s60, s60, 10
            s_memrealtime s[62:63]
            s_waitcnt lgkmcnt(0)
            s_mov_b32 s64, s62
            {L('sk')}:
            s_memrealtime s[62:63]
            s_waitcnt lgkmcnt(0)
            s_sub_u32 s61, s62, s64
            s_cmp_lt_u32 s61, s60
            s_cbranch_scc1 {L('sk')}
            """)
        self.role = 'c'
        a(f"s_endpgm\n{L('kg')}:")
        a.clear_hist()
        self.kg_setup()
        a("s_waitcnt vmcnt(4)\ns_setprio 0")
        self.stamp(1)
        if E('X1'):
            self.get_nonce("x1n", tmp=2)
            self.lds_set(M_CD, 70, tmp=(2, 3))
            a(f"s_mul_i32 s66, s71, {FSTR}\ns_add_u32 s66, s66, {FS}")
            self.store_flag(66)
            a("s_endpgm")
        def khook():
            a(f"s_cmp_lg_u32 s73, 2\ns_cbranch_scc1 {L('kh')}\ns_waitcnt vmcnt(0)")
            self.cnt_add(M_LNCNT + 12)
            a(f"{L('kh')}:")
        self.kgen()
        self.stamp(3)
        self.expand()
        self.stamp(2)
        self.get_nonce("cn", tmp=2)
        self.lds_wait_all(M_U, 1, "uw", tmp=2)
        self.stamp(4)
        if E('CW'):
            lab = L("cw")
            a(f"""
            v_mov_b32 v2, {M_PD + 4 * (E('CW') - 1)}
            s_mov_b32 s61, 0
            {lab}:
            ds_read_b32 v3, v2
            s_add_u32 s61, s61, 1
            s_waitcnt lgkmcnt(0)
            v_readfirstlane_b32 s60, v3
            s_cmp_gt_u32 s61, 0x200000
            s_cbranch_scc1 {lab}_d
            s_cmp_ge_u32 s60, 4
            s_cbranch_scc1 {lab}_d
            s_sleep 2
            s_branch {lab}
            {lab}_d:
            """)
        if E('PF'): a("s_setprio 1")
        self.conv()
        self.lds_set(M_CD, 70, tmp=(2, 3))
        self.stamp(5)
        a(f"s_mul_i32 s66, s71, {FSTR}\ns_add_u32 s66, s66, {FS}\ns_waitcnt vmcnt(0)")
        self.store_flag(66)
        self.stamp(6)
        self.dg_end(4)
        a(f"s_endpgm\n{L('noch')}:")
        a.clear_hist()
        a(f"s_sub_u32 s70, s{S_WAVE}, 4")
        aux_dma("b")
        a(f"s_cmp_eq_u32 s{S_WAVE}, 6\ns_cbranch_scc1 {L('rt')}\ns_waitcnt vmcnt(0)")
        if NA: self.cnt_add(M_LNCNT + 12)
        a(f"s_cmp_lg_u32 s{S_WAVE}, 4\ns_cbranch_scc1 {L('end')}")
        self.cnt_wait(M_LNCNT + 8, 4, "agw", sleep=2)
        self.get_nonce("an", tmp=2)
        a(f"s_lshl_b32 s67, s{S_XCD}, 1\ns_add_u32 s67, s67, s{S_IDX}\ns_sub_u32 s67, s67, 30\ns_mul_i32 s66, s67, {16*FSTR}\ns_add_u32 s66, s66, {FLT if E('XS', 1) else FLN}")
        self.spoll("plt", 66, FSTR, 2)
        a(f"""
        s_mul_i32 s66, s67, {FSTR}
        s_add_u32 s66, s66, {FL2}
        v_mul_u32_u24 v2, {16*FSTR}, v0
        v_mov_b32 v3, s{S_NONCE}
        s_mov_b64 exec, 0xffff
        buffer_store_dword v3, v2, s[{R_WS}:{R_WS+3}], s66 offen sc1
        s_mov_b64 exec, -1
        """)
        self.stamp(8)
        a(f"s_endpgm\n{L('rt')}:")
        H6 = E('H6', 0)
        self.w2_loads()
        if H6:
            self.w1_addr(12)
            a(f"s_mov_b32 s68, {GS - H6}\n{L('h6l')}:")
            self.w1_group(12)
            a(f"s_add_u32 s68, s68, 1\ns_cmp_lt_u32 s68, {GS}\ns_cbranch_scc1 {L('h6l')}")
        a(f"s_waitcnt vmcnt({3 * H6})")
        self.cnt_wait(M_PD + 4 if E('RG') else M_LNCNT + 8, 4, "rtw", sleep=2)
        a("s_setprio 3")
        self.w2_retile(mid=(lambda: (a("s_waitcnt vmcnt(10)"), self.cnt_add(M_LNCNT + 12))) if H6 else None)
        a(f"""
        v_mov_b32 v3, 0
        s_mov_b32 s64, 0
        {L('wn')}:
        global_load_dword v2, v3, s[{P_DBG}:{P_DBG+1}] sc1
        s_add_u32 s64, s64, 1
        s_waitcnt vmcnt(0)
        s_nop 1
        v_readfirstlane_b32 s{S_NONCE}, v2
        s_cmp_gt_u32 s64, 0x20000
        s_cbranch_scc1 {L('wnd')}
        s_cmp_eq_u32 s{S_NONCE}, 0
        s_cbranch_scc1 {L('wn')}
        {L('wnd')}:
        """)
        a(f"""
        s_mul_i32 s66, s43, {FSTR}
        s_add_u32 s66, s66, {FWR}
        v_mul_u32_u24 v2, {96*FSTR}, v0
        v_mov_b32 v3, s{S_NONCE}
        s_mov_b64 exec, 0xff
        s_waitcnt vmcnt(0)
        buffer_store_dword v3, v2, s[{R_WS}:{R_WS+3}], s66 offen sc1
        s_mov_b64 exec, -1
        """)
        self.stamp(7)
        a(f"s_endpgm\n{L('svc')}:")
        a.clear_hist()
        self.role = 's'
        a("s_waitcnt vmcnt(0)")
        self.cnt_add(M_LNCNT + 12)
        a("s_setprio 3")
        self.stamp(2)
        self.get_nonce("sn", tmp=2)
        def fwp():
            a(f"s_lshr_b32 s66, s{S_CB2}, 2\ns_mul_i32 s66, s66, {FSTR}\ns_add_u32 s66, s66, {FW}")
            if E('L2P', 0):
                a(f"s_mov_b32 s66, {FW}")
                self.poll_flags("pfw", 66, 48, nloads=2, istride=48*FSTR)
            else:
                self.poll_flags("pfw", 66, 48, lstride=2*FSTR)
            self.lds_set(M_FW, None, tmp=(2, 3))
            if E('L2P', 0):
                a(f"s_mul_i32 s60, s{S_IDX}, {480*128}\ns_add_u32 s60, s60, {W2F}\nv_lshlrev_b32 v2, 7, v0")
                for i in range(8):
                    if i == 7: a("s_mov_b32 exec_hi, 0")
                    a(f"buffer_load_dword v{200+i}, v2, s[{R_WS}:{R_WS+3}], s60 offen sc1\ns_add_u32 s60, s60, 8192")
                a("s_mov_b64 exec, -1")
            self.stamp(5)
        a(f"s_mul_i32 s66, s{S_XCD}, {96*FSTR}\ns_lshr_b32 s60, s{S_CB2}, 2\ns_mul_i32 s60, s60, {FSTR}\ns_add_u32 s66, s66, s60\ns_add_u32 s66, s66, {FWR}")
        a("s_mov_b32 s67, s66")
        self.cnt_wait(M_LN, 4, "slw", sleep=1)
        if E('W4D'): a(f"s_sleep {E('W4D')}")
        CP = E('CP')
        if not CP or E('FE'):
            self.poll_flags("pfw", 67, 48, lstride=2*FSTR)
            self.lds_set(M_FW, None, tmp=(2, 3))
            self.stamp(5)
        def cpoll(name, first):
            a(f"""
            v_mul_u32_u24 v2, {FSTR}, v0
            s_sub_u32 s60, s67, {32*FSTR}
            v_lshlrev_b32 v4, 1, v2
            v_add_u32 v4, s60, v4
            s_and_b32 s60, s2, 15
            s_mul_i32 s60, s60, {16*FSTR}
            s_add_u32 s60, s60, {FL2}
            v_add_u32 v2, s60, v2
            v_cmp_gt_u32 vcc, 16, v0
            v_cndmask_b32 v2, v4, v2, vcc
            v_mov_b32 v4, {M_FW}
            {'' if first else 's_lshl_b64 exec, -1, 16'}
            s_mov_b32 s64, 0
            {L(name)}:
            buffer_load_dword v3, v2, s[{R_WS}:{R_WS+3}], 0 offen sc1
            s_add_u32 s64, s64, 1
            s_waitcnt vmcnt(0)
            v_cmp_ne_u32 vcc, s{S_NONCE}, v3
            s_cmp_gt_u32 s64, 0x20000
            s_cselect_b64 s[60:61], 0, vcc
            s_lshr_b64 s[62:63], s[60:61], 16
            s_cmp_eq_u64 s[62:63], 0
            s_cselect_b32 s65, 1, 0
            v_mov_b32 v3, s65
            ds_write_b32 v4, v3
            {'s_and_b32 s60, s60, 0xffff' if first else 's_xor_b32 s60, s65, 1'}
            s_cmp_eq_u32 s60, 0
            s_cbranch_scc1 {L(name)}_d
            s_sleep {E('CSL', 3)}
            s_branch {L(name)}
            {L(name)}_d:
            s_mov_b64 exec, -1
            """)
        a("s_mov_b32 s65, 0")
        if E('W3D'): a(f"s_sleep {E('W3D')}")
        a(f"s_cmp_eq_u32 s{S_NCH}, 0\ns_cbranch_scc1 {L('nou')}")
        a(f"s_and_b32 s66, s2, 15\ns_mul_i32 s66, s66, {16*FSTR}\ns_add_u32 s66, s66, {FL2}")
        if CP and not E('FE'): cpoll("pla", True)
        elif E('L2V'): self.poll_flags("pla", 66, 16)
        else: self.spoll("pla", 66, FSTR, E('CSL', 3))
        self.stamp(3)
        self.u_gather()
        self.lds_set(M_U, None, tmp=(2, 3))
        a(f"{L('nou')}:")
        self.stamp(4)
        if CP and not E('FE'):
            a(f"s_cmp_lg_u32 s65, 0\ns_cbranch_scc1 {L('fwok')}")
            cpoll("plb", False)
            a(f"{L('fwok')}:")
        self.svc_x_loads()
        self.stamp(6)
        self.lds_wait_all(M_J6, 1, "j6w", tmp=2)
        a(f"s_mul_i32 s66, s{S_CB2}, {80*FSTR}\ns_add_u32 s66, s66, {FS}")
        self.poll_flags("pfs", 66, 40, nloads=2, istride=40*FSTR)
        a(f"s_cmp_eq_u32 s{S_NCH}, 0\ns_cbranch_scc1 {L('nocd')}")
        self.lds_wait_all(M_CD, 2, "cdw", tmp=2)
        a(f"{L('nocd')}:")
        self.stamp(7)
        self.s_tile_dma()
        self.stamp(8)
        a("s_barrier")
        self.dg_end(7)
        a(f"{L('end')}:\ns_endpgm")

if __name__ == "__main__":
    path = sys.argv[1]
    opts = sys.argv[2:]
    g = Fused("fused", "stamps" in opts)
    g.sel = set(range(32)) if "stamps" in opts else ({0, 9} | {int(x) for x in os.environ.get("SEL", "").split(",") if x} if "mins" in opts else set())
    g.build_fused()
    lab = NAME + "_kernel"
    txt = HEADER + f"; @launch grid=(256,1,1) block=(512,1,1) lds={LDS_TOTAL}\n" + '.amdgcn_target "amdgcn-amd-amdhsa--gfx950"\n' + kernel_text(lab, g.a.text()) + desc(lab)
    if E('X4'):
        import re
        txt = re.sub(r"(buffer_load_dwordx4 .*?) sc1", r"\1", txt)
    if E('X2'):
        txt = "\n".join(("    s_nop 0" if ("s81 offen" in l) else l) for l in txt.split("\n"))
    open(path, "w").write(txt)
```

```python
import sys
from asmlib import Asm, vr, sr

NAME = "recurrent_scan__ssm_conv_s4d__dense_activation_squared_relu__prompt"
XF = 0x0; XT = 0x280000; HF = 0x500000; W2F = 0xB00000; ST = 0xD00000
FLG = 0xF80000; STAMP = 0x1000000; WS_SIZE = 0x1100000
import os
FSTR = int(os.environ.get('FSTR','128'))
PSLEEP = int(os.environ.get('PSLEEP','0'))
LSLEEP = int(os.environ.get('LSLEEP','0'))
FHS = int(os.environ.get('FHS','128'))
FLN = FLG; FH = FLG + 0x8000; FW = FLG + 0x20000; FS = FLG + 0x24000; FL2 = FLG + 0x50000; FLT = FLG + 0x48000; FWR = FLG + 0x60000
AUX = 122880; RSZ = 12896; K1O = 4160; UO = 8320; UPAD = 480
MISC = AUX + 3 * RSZ
LDS_TOTAL = 163840
M_LNCNT = MISC; M_W1 = MISC + 16; M_G1D = MISC + 32; M_U = MISC + 48; M_NONCE = MISC + 112
M_LNR = MISC + 80; M_LN = MISC + 192; M_LNW = MISC + 240; M_J6 = MISC + 208; M_HP = MISC + 224; M_FW = MISC + 64; M_HCNT = MISC + 68; M_FH = MISC + 256; M_PD = MISC + 128; M_HC = MISC + 144; M_CD = MISC + 96
LNRS = 1296
LNIMG = 122880 - 10752
IMG = [0, 40960, 81920]
XRS = 176; XI = AUX + RSZ; M_B2 = MISC + 512
P_X, P_LA, P_AI, P_CR, P_CI, P_DT, P_DS = 4, 6, 8, 10, 12, 14, 16
P_W1, P_B1, P_W2, P_B2, P_OUT, P_DBG, P_WS = 20, 22, 24, 26, 28, 30, 32
S_WAVE, S_XCD, S_IDX, S_RB, S_CB, S_RB2, S_CB2, S_NCH, S_CH0 = 34, 35, 36, 37, 38, 39, 40, 41, 42
R_WS, R_X, R_W, R_OUT = 44, 48, 52, 56
S_NONCE = 96
S_LID = 93
LOG2E = 0x3fb8aa3b
INV2PI = 0x3e22f983

class Gen:
    def __init__(self, mode, stamps=False):
        self.a = Asm()
        self.mode = mode
        self.fused = mode == "fused"
        self.stamps = stamps
        self.sel = set()
        self.role = 'g'
        self.seen = set()
        self.pfx = mode

    def L(self, n):
        return f"{self.pfx}_{n}"

    def stamp(self, slot, q=False):
        if os.environ.get('DGP') and (self.role, slot) == (os.environ['DGP'][0], int(os.environ['DGP'][1:])):
            self.a('s_memrealtime s[98:99]\ns_waitcnt lgkmcnt(0)')
        if slot not in self.sel: return
        if q: self.vq += ['st']
        a = self.a
        a(f"""
        s_memrealtime s[98:99]
        s_lshl_b32 s100, s2, 3
        s_add_u32 s100, s100, s{S_WAVE}
        s_lshl_b32 s100, s100, 7
        s_add_u32 s100, s100, {STAMP + slot*4}
        s_waitcnt lgkmcnt(0)
        v_mov_b32 v1, s98
        s_mov_b64 s[98:99], exec
        s_mov_b64 exec, 1
        buffer_store_dword v1, off, s[{R_WS}:{R_WS+3}], s100
        s_mov_b64 exec, s[98:99]
        """)

    def dg_end(self, wave):
        if not os.environ.get('DGP') or os.environ['DGP'][0] != self.role: return
        lab = self.L('dg' + self.role)
        self.a(f"""
        s_cmp_lg_u32 s2, 0
        s_cbranch_scc1 {lab}_d
        s_cmp_lg_u32 s{S_WAVE}, {wave}
        s_cbranch_scc1 {lab}_d
        s_sub_u32 s60, s98, s94
        s_min_u32 s60, s60, 3000
        s_mul_i32 s60, s60, 5
        s_memrealtime s[62:63]
        s_waitcnt lgkmcnt(0)
        s_mov_b32 s64, s62
        {lab}:
        s_memrealtime s[62:63]
        s_waitcnt lgkmcnt(0)
        s_sub_u32 s61, s62, s64
        s_cmp_lt_u32 s61, s60
        s_cbranch_scc1 {lab}
        {lab}_d:
        """)

    def srd(self, r, p, size):
        self.a(f"""
        s_mov_b32 s{r}, s{p}
        s_and_b32 s{r+1}, s{p+1}, 0xffff
        s_mov_b32 s{r+2}, {size}
        s_mov_b32 s{r+3}, 0x00020000
        """)

    def mapfix(self):
        r = []
        if os.environ.get('M2') == '84':
            r += [f"s_lshr_b32 s60, s{S_XCD}, 1", "s_lshl_b32 s60, s60, 3", f"s_and_b32 s61, s{S_IDX}, 7", f"s_add_u32 s{S_RB2}, s60, s61",
                  f"s_and_b32 s60, s{S_XCD}, 1", "s_lshl_b32 s60, s60, 2", f"s_lshr_b32 s61, s{S_IDX}, 3", f"s_add_u32 s{S_CB2}, s60, s61"]
        if os.environ.get('M1') == '84':
            r += [f"s_and_b32 s60, s{S_XCD}, 1", "s_lshl_b32 s60, s60, 3", f"s_and_b32 s61, s{S_IDX}, 7", f"s_add_u32 s{S_RB}, s60, s61",
                  f"s_lshr_b32 s60, s{S_XCD}, 1", "s_lshl_b32 s60, s60, 2", f"s_lshr_b32 s61, s{S_IDX}, 3", f"s_add_u32 s{S_CB}, s60, s61"]
        if os.environ.get('M1') == '216':
            r += [f"s_lshl_b32 s60, s{S_XCD}, 1", f"s_and_b32 s61, s{S_IDX}, 1", f"s_add_u32 s{S_RB}, s60, s61", f"s_lshr_b32 s{S_CB}, s{S_IDX}, 1"]
        return "\n".join(r)

    def prologue(self):
        a = self.a
        a(f"""
        s_load_dwordx16 s[4:19], s[0:1], 0
        s_load_dwordx8 s[20:27], s[0:1], 64
        s_load_dwordx4 s[28:31], s[0:1], 96
        s_load_dwordx2 s[32:33], s[0:1], 112
        s_memrealtime s[94:95]
        s_cmp_ge_u32 s2, 256
        s_cbranch_scc1 {self.L('end')}
        v_lshrrev_b32 v1, 6, v0
        v_and_b32 v0, 63, v0
        s_and_b32 s{S_XCD}, s2, 7
        v_readfirstlane_b32 s{S_WAVE}, v1
        s_lshr_b32 s{S_IDX}, s2, 3
        s_getpc_b64 s[62:63]
        {self.L('pc')}:
        s_cmp_lg_u32 s{S_WAVE}, 7
        s_cbranch_scc1 {self.L('nopf')}
        s_and_b32 s60, s{S_IDX}, 7
        s_mul_i32 s60, s60, 4352
        v_lshlrev_b32 v2, 7, v0
        v_add_u32 v2, s60, v2
        v_min_u32 v2, {self.L('end')}-{self.L('pc')}, v2
        s_mov_b32 exec_hi, 3
        global_load_dword v130, v2, s[62:63]
        s_mov_b32 exec_hi, -1
        {self.L('nopf')}:
        s_and_b32 s60, s{S_XCD}, 3
        s_lshl_b32 s60, s60, 2
        s_and_b32 s61, s{S_IDX}, 3
        s_add_u32 s{S_RB}, s60, s61
        s_lshr_b32 s60, s{S_XCD}, 2
        s_lshl_b32 s60, s60, 3
        s_lshr_b32 s{S_CB2}, s{S_IDX}, 2
        s_add_u32 s{S_CB}, s60, s{S_CB2}
        s_lshl_b32 s60, s{S_XCD}, 2
        s_add_u32 s{S_RB2}, s60, s61
        {self.mapfix()}
        ; conv channels: g = idx/3, pos = idx%3
        s_mul_i32 s60, s{S_IDX}, 43
        s_lshr_b32 s60, s60, 7
        s_mul_i32 s61, s60, 3
        s_sub_u32 s61, s{S_IDX}, s61
        s_mul_i32 s62, s{S_XCD}, 80
        s_lshl_b32 s63, s60, 3
        s_add_u32 s62, s62, s63
        s_mul_i32 s63, s61, 3
        s_add_u32 s{S_CH0}, s62, s63
        s_cmp_eq_u32 s61, 2
        s_cselect_b32 s{S_NCH}, 2, 3
        s_cmp_ge_u32 s{S_IDX}, 30
        s_cselect_b32 s{S_NCH}, 0, s{S_NCH}
        s_sub_u32 s61, s{S_IDX}, 20
        s_cselect_b32 s60, s61, s60
        """)
        a.lines.pop(); a.lines.pop()
        a(f"""
        s_sub_u32 s61, s{S_IDX}, 20
        s_cmp_ge_u32 s{S_IDX}, 30
        s_cselect_b32 s60, s61, s60
        s_mul_i32 s61, s{S_XCD}, 12
        s_add_u32 s43, s61, s60
        s_lshl_b32 s{S_LID}, s{S_RB}, 4
        s_add_u32 s{S_LID}, s{S_LID}, s{S_CB}
        v_lshlrev_b32 v2, 3, v0
        v_add_u32 v2, {MISC}, v2
        v_mov_b32 v4, 0
        v_mov_b32 v5, 0
        ds_write_b64 v2, v[4:5]
        s_cmp_eq_u32 s{S_WAVE}, 7
        s_cselect_b32 s60, s2, 1
        s_cmp_lg_u32 s60, 0
        s_waitcnt lgkmcnt(0)
        s_cbranch_scc1 {self.L('nonce0')}
        s_or_b32 s61, s94, 1
        v_mov_b32 v2, s61
        s_mov_b64 exec, 1
        global_store_dword v4, v2, s[{P_DBG}:{P_DBG+1}] sc1
        s_mov_b64 exec, -1
        {self.L('nonce0')}:
        s_barrier
        """)
        if os.environ.get('WSOFF'):
            a(f"s_add_u32 s{P_WS}, s{P_WS}, {int(os.environ['WSOFF'],0)}\ns_addc_u32 s{P_WS+1}, s{P_WS+1}, 0")
        self.srd(R_WS, P_WS, WS_SIZE)
        self.srd(R_X, P_X, 2621440)

    def rowaddr(self, dst, row, t):
        self.a(f"""
        v_mul_u32_u24 v{t}, 11, v{row}
        v_lshrrev_b32 v{t}, 5, v{t}
        v_mul_u32_u24 v{dst}, {LNRS}, v{row}
        v_mad_u32_u24 v{dst}, v{t}, s97, v{dst}
        v_lshrrev_b32 v{t}, 1, v{t}
        v_mul_u32_u24 v{t}, 1440, v{t}
        v_add3_u32 v{dst}, v{dst}, v{t}, s61
        """)

    def ln_loads(self):
        a = self.a
        a(f"""
        s_lshl_b32 s60, s{S_LID}, 3
        s_lshl_b32 s61, s{S_WAVE}, 1
        s_add_u32 s60, s60, s61
        s_mul_i32 s60, s60, 1280
        v_lshrrev_b32 v2, 5, v0
        v_and_b32 v3, 31, v0
        v_mul_u32_u24 v1, 1280, v2
        v_lshl_add_u32 v1, v3, 3, v1
        """)
        for i in range(5):
            a(f"buffer_load_dwordx2 v[{100+2*i}:{101+2*i}], v1, s[{R_X}:{R_X+3}], s60 offen offset:{256*i}")

    def reduce32(self, v, t):
        a = self.a
        a(f"""
        v_add_f32_dpp v{v}, v{v}, v{v} quad_perm:[1,0,3,2] row_mask:0xf bank_mask:0xf
        v_add_f32_dpp v{v}, v{v}, v{v} quad_perm:[2,3,0,1] row_mask:0xf bank_mask:0xf
        v_add_f32_dpp v{v}, v{v}, v{v} row_half_mirror row_mask:0xf bank_mask:0xf
        v_add_f32_dpp v{v}, v{v}, v{v} row_mirror row_mask:0xf bank_mask:0xf
        v_mov_b32 v{t}, v{v}
        v_permlane16_swap_b32 v{v}, v{t}
        v_add_f32 v{v}, v{v}, v{t}
        """)

    def ln_math(self):
        a = self.a
        X = 110; Dd = 130; S = 150
        for i in range(10):
            a(f"v_lshlrev_b32 v{X+2*i}, 16, v{100+i}")
            a(f"v_and_b32 v{X+1+2*i}, 0xffff0000, v{100+i}")
        P = lambda r: f"v[{r}:{r+1}]"
        a(f"v_pk_add_f32 {P(S)}, {P(X)}, {P(X+2)}\nv_pk_add_f32 {P(S+2)}, {P(X+4)}, {P(X+6)}")
        for i in range(4, 10):
            a(f"v_pk_add_f32 {P(S+2*(i%2))}, {P(S+2*(i%2))}, {P(X+2*i)}")
        a(f"v_pk_add_f32 {P(S)}, {P(S)}, {P(S+2)}\nv_add_f32 v{S}, v{S}, v{S+1}")
        self.reduce32(S, S + 1)
        a(f"v_mul_f32 v{S+4}, 0x3acccccd, v{S}")
        for i in range(10):
            a(f"v_pk_add_f32 {P(Dd+2*i)}, {P(X+2*i)}, {P(S+4)} op_sel_hi:[1,0] neg_lo:[0,1] neg_hi:[0,1]")
        a(f"v_pk_mul_f32 {P(S)}, {P(Dd)}, {P(Dd)}\nv_pk_mul_f32 {P(S+2)}, {P(Dd+2)}, {P(Dd+2)}")
        for i in range(2, 10):
            a(f"v_pk_fma_f32 {P(S+2*(i%2))}, {P(Dd+2*i)}, {P(Dd+2*i)}, {P(S+2*(i%2))}")
        a(f"v_pk_add_f32 {P(S)}, {P(S)}, {P(S+2)}\nv_add_f32 v{S}, v{S}, v{S+1}")
        self.reduce32(S, S + 1)
        a(f"""
        v_mul_f32 v{S+5}, 0x3acccccd, v{S}
        v_cvt_pk_bf16_f32 v{S}, v{S+4}, v{S+5}
        v_lshlrev_b32 v{S+4}, 16, v{S}
        v_and_b32 v{S+2}, 0xffff0000, v{S}
        v_add_f32 v{S+2}, 0x3727c5ac, v{S+2}
        v_cvt_pk_bf16_f32 v{S+2}, v{S+2}, v{S+2}
        v_and_b32 v{S+2}, 0xffff0000, v{S+2}
        v_sqrt_f32 v{S+2}, v{S+2}
        """)
        for i in range(10):
            a(f"v_pk_add_f32 {P(Dd+2*i)}, {P(X+2*i)}, {P(S+4)} op_sel_hi:[1,0] neg_lo:[0,1] neg_hi:[0,1]")
            if i == 1:
                a(f"v_cvt_pk_bf16_f32 v{S+2}, v{S+2}, v{S+2}\nv_and_b32 v{S+2}, 0xffff0000, v{S+2}\nv_rcp_f32 v{S+2}, v{S+2}")
        for i in range(10):
            a(f"v_cvt_pk_bf16_f32 v{100+i}, v{Dd+2*i}, v{Dd+1+2*i}")
        for i in range(10):
            a(f"v_lshlrev_b32 v{X+2*i}, 16, v{100+i}")
            a(f"v_and_b32 v{X+1+2*i}, 0xffff0000, v{100+i}")
        for i in range(10):
            a(f"v_pk_mul_f32 {P(X+2*i)}, {P(X+2*i)}, {P(S+2)} op_sel_hi:[1,0]")
        for i in range(5):
            a(f"v_cvt_pk_bf16_f32 v{100+2*i}, v{X+4*i}, v{X+4*i+1}")
            a(f"v_cvt_pk_bf16_f32 v{101+2*i}, v{X+4*i+2}, v{X+4*i+3}")
            a(f"ds_write_b64 v98, v[{100+2*i}:{101+2*i}] offset:{256*i}")

    def ln_pub_addr(self):
        a = self.a
        a(f"""
        s_mov_b32 s84, s{S_WAVE}
        s_mov_b32 s97, {RSZ - 3*LNRS}
        s_mov_b32 s61, {AUX + UO + UPAD}
        s_lshl_b32 s60, s{S_WAVE}, 1
        v_lshrrev_b32 v2, 5, v0
        v_add_u32 v2, s60, v2
        """)
        self.rowaddr(98, 2, 5)
        a(f"""
        v_and_b32 v3, 31, v0
        v_lshl_add_u32 v98, v3, 3, v98
        s_lshl_b32 s60, s84, 7
        s_add_u32 s61, s61, s60
        v_and_b32 v1, 7, v0
        """)
        self.rowaddr(156, 1, 5)
        a(f"""
        v_lshrrev_b32 v2, 3, v0
        v_lshl_add_u32 v156, v2, 4, v156
        v_lshrrev_b32 v157, 2, v2
        v_and_b32 v5, 3, v2
        v_lshlrev_b32 v157, 10, v157
        v_lshl_add_u32 v157, v5, 8, v157
        v_lshl_add_u32 v157, v1, 4, v157
        v_and_b32 v1, 15, v0
        v_lshrrev_b32 v2, 2, v1
        v_sub_u32 v3, 7, v2
        v_sub_u32 v2, 3, v2
        """)
        self.rowaddr(158, 2, 5)
        self.rowaddr(99, 3, 5)
        a(f"""
        v_and_b32 v1, 3, v0
        v_lshrrev_b32 v2, 4, v0
        v_lshlrev_b32 v1, 3, v1
        v_lshl_add_u32 v1, v2, 5, v1
        v_add_u32 v158, v158, v1
        v_add_u32 v99, v99, v1
        v_lshlrev_b32 v159, 4, v0
        s_lshr_b32 s85, s{S_LID}, 1
        s_mul_i32 s85, s85, 20480
        s_and_b32 s62, s{S_LID}, 1
        s_lshl_b32 s62, s62, 7
        s_add_u32 s85, s85, s62
        s_lshl_b32 s62, s84, 11
        s_add_u32 s85, s85, s62
        s_add_u32 s86, s85, 8192
        s_add_u32 s87, s85, 16384
        s_mul_i32 s88, s{S_LID}, 10240
        s_lshl_b32 s62, s84, 10
        s_add_u32 s88, s88, s62
        s_add_u32 s88, s88, {XT}
        s_add_u32 s89, s88, 4096
        s_add_u32 s90, s88, 6144
        """)

    def ln_publish(self):
        a = self.a
        sc = "" if os.environ.get('V2') else "sc1"
        W = f"s[{R_WS}:{R_WS+3}]"
        l2 = self.L("lnp_xt3"); l3 = self.L("lnp_done")
        a(f"""
        ds_read_b128 v[160:163], v156
        ds_read_b128 v[164:167], v156 offset:512
        ds_read_b128 v[168:171], v156 offset:1024
        ds_read_b64_tr_b16 v[172:173], v99
        ds_read_b64_tr_b16 v[174:175], v158
        ds_read_b64_tr_b16 v[176:177], v99 offset:512
        ds_read_b64_tr_b16 v[178:179], v158 offset:512
        ds_read_b64_tr_b16 v[180:181], v99 offset:768
        ds_read_b64_tr_b16 v[182:183], v158 offset:768
        s_cmp_ge_u32 s84, 2
        s_waitcnt lgkmcnt(7)
        buffer_store_dwordx4 v[160:163], v157, {W}, s85 offen {sc}
        s_waitcnt lgkmcnt(6)
        buffer_store_dwordx4 v[164:167], v157, {W}, s86 offen {sc}
        s_cselect_b32 s87, {WS_SIZE}, s87
        s_waitcnt lgkmcnt(5)
        buffer_store_dwordx4 v[168:171], v157, {W}, s87 offen {sc}
        """)

    def ln_publish_xt(self):
        a = self.a
        W = f"s[{R_WS}:{R_WS+3}]"
        l3 = self.L("lnp_done")
        a(f"""
        s_cmp_lt_u32 s84, 2
        s_waitcnt lgkmcnt(0)
        buffer_store_dwordx4 v[172:175], v159, {W}, s88 offen sc1
        buffer_store_dwordx4 v[176:179], v159, {W}, s89 offen sc1
        s_cselect_b32 s90, {WS_SIZE}, s90
        buffer_store_dwordx4 v[180:183], v159, {W}, s90 offen sc1
        """)

    def w2_loads(self):
        a = self.a
        self.srd(R_OUT, P_W2, 1966080)
        a(f"""
        s_lshr_b32 s91, s43, 1
        s_and_b32 s92, s43, 1
        s_mul_i32 s62, s91, {32*1280}
        s_mul_i32 s63, s92, 640
        s_add_u32 s62, s62, s63
        s_add_u32 s63, s62, 320
        """)
        for i in range(10):
            a(f"""
            v_add_u32 v1, {64*i}, v0
            v_mul_u32_u24 v2, 52429, v1
            v_lshrrev_b32 v2, 20, v2
            v_mul_u32_u24 v3, 20, v2
            v_sub_u32 v3, v1, v3
            v_mul_u32_u24 v2, 1280, v2
            v_lshl_add_u32 v2, v3, 4, v2
            buffer_load_dwordx4 v[{64+4*i}:{67+4*i}], v2, s[{R_OUT}:{R_OUT+3}], s62 offen
            buffer_load_dwordx4 v[{104+4*i}:{107+4*i}], v2, s[{R_OUT}:{R_OUT+3}], s63 offen
            """)

    def w2_retile(self, mid=None):
        a = self.a
        sc = "sc1"
        base = AUX + 2 * RSZ
        a(f"""
        v_lshlrev_b32 v6, 4, v0
        v_add_u32 v1, {base}, v6
        v_lshrrev_b32 v2, 4, v0
        v_and_b32 v3, 15, v0
        v_lshrrev_b32 v3, 2, v3
        v_lshl_add_u32 v2, v2, 2, v3
        v_mul_u32_u24 v2, 320, v2
        v_and_b32 v3, 3, v0
        v_lshl_add_u32 v2, v3, 3, v2
        v_add_u32 v2, {base}, v2
        s_mul_i32 s62, s92, {4*245760}
        s_mul_i32 s63, s91, 5120
        s_add_u32 s62, s62, s63
        s_add_u32 s62, s62, {W2F}
        v_add_u32 v7, 4096, v6
        """)
        for half in range(2):
            src = 64 + 40 * half
            fr = 144 + 40 * half
            for i in range(10):
                a(f"ds_write_b128 v1, v[{src+4*i}:{src+3+4*i}] offset:{1024*i}")
            a("s_waitcnt lgkmcnt(4)")
            for nt in range(10):
                d = fr + 4 * nt
                a(f"ds_read_b64_tr_b16 v[{d}:{d+1}], v2 offset:{32*nt}")
                a(f"ds_read_b64_tr_b16 v[{d+2}:{d+3}], v2 offset:{32*nt+16*320}")
                if nt == 4: a("s_waitcnt lgkmcnt(4)")
            a("s_waitcnt lgkmcnt(0)")
            for nt in range(10):
                d = fr + 4 * nt
                cbl = half * 2 + nt // 5
                n5 = nt % 5
                if n5 == 0:
                    a(f"s_add_u32 s63, s62, {cbl*245760}")
                if n5 < 4:
                    a(f"buffer_store_dwordx4 v[{d}:{d+3}], v6, s[{R_WS}:{R_WS+3}], s63 offen offset:{1024*n5} {sc}")
                else:
                    a(f"buffer_store_dwordx4 v[{d}:{d+3}], v7, s[{R_WS}:{R_WS+3}], s63 offen {sc}")
            if half == 0 and mid:
                a("v_mov_b32 v8, v2"); mid(); a("v_mov_b32 v2, v8")

    def lds_set(self, addr_imm, sidx=None, val=1, tmp=(2, 3)):
        a = self.a
        if sidx is None:
            a(f"v_mov_b32 v{tmp[0]}, {addr_imm}")
        else:
            a(f"s_lshl_b32 s60, s{sidx}, 2\ns_add_u32 s60, s60, {addr_imm}\nv_mov_b32 v{tmp[0]}, s60")
        a(f"v_mov_b32 v{tmp[1]}, {val}\nds_write_b32 v{tmp[0]}, v{tmp[1]}")

    def lds_wait_all(self, addr_imm, n, name, tmp=2, sleep=None):
        if sleep is None: sleep = LSLEEP
        a = self.a
        lab = self.L(name); done = self.L(name + "_d")
        t = tmp
        a(f"""
        v_mov_b32 v{t}, {addr_imm}
        s_mov_b32 s61, 0
        {lab}:
        ds_read_b128 v[{t+2}:{t+5}], v{t}
        s_add_u32 s61, s61, 1
        s_waitcnt lgkmcnt(0)
        """)
        for k in range(1, n):
            a(f"v_min_u32 v{t+2}, v{t+2}, v{t+2+k}")
        a(f"""
        v_readfirstlane_b32 s60, v{t+2}
        s_cmp_gt_u32 s61, 0x200000
        s_cbranch_scc1 {done}
        s_cmp_lg_u32 s60, 0
        s_cbranch_scc1 {done}
        {'s_sleep %d' % sleep if sleep else ''}
        s_branch {lab}
        {done}:
        """)

    def get_nonce(self, name, tmp=2):
        self.lds_wait_all(M_NONCE, 1, name, tmp)
        self.a(f"s_mov_b32 s{S_NONCE}, s60")

    def poll_flags(self, name, soff, nlanes, nloads=1, lstride=FSTR, istride=64*FSTR, tmp=2, pre=None):
        a = self.a
        lab = self.L(name); done = self.L(name + "_d")
        t = tmp
        a(f"v_mul_u32_u24 v{t}, {lstride}, v0")
        a(f"s_mov_b64 s[62:63], exec")
        if nlanes < 64:
            a(f"s_lshr_b64 exec, -1, {64-nlanes}")
        a(f"s_mov_b32 s64, 0\n{lab}:")
        for i in range(nloads):
            if i * istride < 4096:
                a(f"buffer_load_dword v{t+1+i}, v{t}, s[{R_WS}:{R_WS+3}], s{soff} offen offset:{i*istride} sc1")
            else:
                a(f"s_add_u32 s65, s{soff}, {i*istride}\nbuffer_load_dword v{t+1+i}, v{t}, s[{R_WS}:{R_WS+3}], s65 offen sc1")
        a("s_add_u32 s64, s64, 1\ns_waitcnt vmcnt(0)")
        for i in range(nloads):
            a(f"v_xor_b32 v{t+1+i}, s{S_NONCE}, v{t+1+i}")
        for i in range(1, nloads):
            a(f"v_or_b32 v{t+1}, v{t+1}, v{t+1+i}")
        a(f"""
        v_cmp_ne_u32 vcc, 0, v{t+1}
        s_cmp_gt_u32 s64, 0x20000
        s_cbranch_scc1 {done}
        s_cbranch_vccz {done}
        {'s_sleep %d' % PSLEEP if PSLEEP else ''}
        s_branch {lab}
        {done}:
        s_mov_b64 exec, s[62:63]
        """)

    def poll_pipe(self, name, soff, nlanes, stride, depth, gap, on_result=None, vo=None):
        a = self.a
        lab = self.L(name)
        tb = self.ptmp
        if vo is None: a(f"v_mul_u32_u24 v2, {stride}, v0")
        a(f"s_mov_b64 s[62:63], exec\ns_lshr_b64 exec, -1, {64-nlanes}\ns_mov_b32 s64, 0")
        ld = lambda i: f"buffer_load_dword v{tb+i}, v2, s[{R_WS}:{R_WS+3}], s{soff} offen sc1"
        for i in range(depth - 1):
            a(ld(i))
            if gap: a(f"s_sleep {gap}")
        a(f"{lab}:")
        for i in range(depth):
            a(ld((i + depth - 1) % depth))
            a(f"s_waitcnt vmcnt({depth-1})\nv_cmp_eq_u32 vcc, s{S_NONCE}, v{tb+i}")
            if on_result: on_result()
            a(f"s_cmp_eq_u64 vcc, exec\ns_cbranch_scc1 {lab}_d")
            if gap: a(f"s_sleep {gap}")
        a(f"s_add_u32 s64, s64, 1\ns_cmp_lt_u32 s64, 0x20000\ns_cbranch_scc1 {lab}")
        if on_result:
            a("s_mov_b64 vcc, exec"); on_result()
        a(f"{lab}_d:\ns_mov_b64 exec, s[62:63]")

    def spoll(self, name, soff, stride, sleep, quarters=None, n=16, miss=None):
        a = self.a
        lab = self.L(name)
        a(f"s_add_u32 s62, s{P_WS}, s{soff}\ns_addc_u32 s63, s{P_WS+1}, 0\ns_mov_b32 s64, 0\n{lab}:")
        for i in range(n): a(f"s_load_dword s{4+i}, s[62:63], {i*stride} glc")
        a("s_add_u32 s64, s64, 1\ns_waitcnt lgkmcnt(0)")
        for i in range(n): a(f"s_xor_b32 s{4+i}, s{4+i}, s{S_NONCE}")
        for q in range(n // 4):
            a(f"s_or_b32 s{4+4*q}, s{4+4*q}, s{5+4*q}\ns_or_b32 s{6+4*q}, s{6+4*q}, s{7+4*q}\ns_or_b32 s{4+4*q}, s{4+4*q}, s{6+4*q}")
        if quarters:
            for q in range(4):
                a(f"s_cmp_eq_u32 s{4+4*q}, 0\ns_cselect_b32 s60, 1, 0\nv_mov_b32 v3, s60\nds_write_b32 v4, v3 offset:{16*q}")
        for q in range(1, n // 4): a(f"s_or_b32 s4, s4, s{4+4*q}")
        a(f"s_cmp_eq_u32 s4, 0\ns_cbranch_scc1 {lab}_d")
        if miss: miss()
        if sleep: a(f"s_sleep {sleep}")
        a(f"s_cmp_lt_u32 s64, 0x20000\ns_cbranch_scc1 {lab}")
        if quarters:
            a("v_mov_b32 v3, 1")
            for q in range(4): a(f"ds_write_b32 v4, v3 offset:{16*q}")
        a(f"{lab}_d:")

    def spoll48(self, name, soff, stride, sleep):
        a = self.a
        lab = self.L(name)
        regs = list(range(4, 26)) + list(range(67, 93))
        a(f"s_add_u32 s62, s{P_WS}, s{soff}\ns_addc_u32 s63, s{P_WS+1}, 0\ns_mov_b32 s64, 0\n{lab}:")
        for i, r in enumerate(regs): a(f"s_load_dword s{r}, s[62:63], {i*stride} glc")
        a(f"s_add_u32 s64, s64, 1\ns_mov_b32 s60, s{S_NONCE}\ns_mov_b32 s61, s{S_NONCE}\ns_waitcnt lgkmcnt(0)")
        for r in regs: a(f"s_and_b32 s60, s60, s{r}\ns_or_b32 s61, s61, s{r}")
        a(f"s_cmp_eq_u32 s60, s61\ns_cbranch_scc1 {lab}_d\ns_sleep {sleep}\ns_cmp_lt_u32 s64, 0x20000\ns_cbranch_scc1 {lab}\n{lab}_d:")

    def store_flag(self, soff, tmp=2):
        self.a(f"""
        v_mov_b32 v{tmp}, s{S_NONCE}
        s_mov_b64 s[62:63], exec
        s_mov_b64 exec, 1
        buffer_store_dword v{tmp}, off, s[{R_WS}:{R_WS+3}], s{soff} sc1
        s_mov_b64 exec, s[62:63]
        """)

    def w1_addr(self, vr_):
        self.srd(R_W, P_W1, 1966080)
        for ph in range(3):
            self.a(f"""
            v_add_u32 v5, {64*ph}, v0
            v_mul_u32_u24 v6, 43691, v5
            v_lshrrev_b32 v6, 19, v6
            v_mul_u32_u24 v7, 12, v6
            v_sub_u32 v7, v5, v7
            v_lshrrev_b32 v8, 2, v6
            v_and_b32 v8, 2, v8
            v_xor_b32 v7, v7, v8
            v_mul_u32_u24 v6, 3072, v6
            v_lshl_add_u32 v{vr_+ph}, v7, 4, v6
            """)
        self.a(f"s_mul_i32 s69, s{S_CB}, 192")

    def w1_group(self, vr_):
        a = self.a
        a(f"""
        s_mul_i32 s63, s68, {16*3072}
        s_add_u32 s63, s63, s69
        s_mul_i32 m0, s68, 3072
        s_nop 0
        buffer_load_dwordx4 v{vr_}, s[{R_W}:{R_W+3}], s63 offen lds
        s_add_u32 m0, m0, 1024
        s_nop 0
        buffer_load_dwordx4 v{vr_+1}, s[{R_W}:{R_W+3}], s63 offen lds
        s_add_u32 m0, m0, 1024
        s_nop 0
        buffer_load_dwordx4 v{vr_+2}, s[{R_W}:{R_W+3}], s63 offen lds
        """)

    G1_ACC = 16; G1_B = 64; G1_B1 = 64; G1_A = 96
    def g1_b1_loads(self):
        a = self.a
        a(f"""
        v_lshrrev_b32 v5, 4, v0
        v_lshlrev_b32 v5, 3, v5
        s_mul_i32 s60, s{S_CB}, 192
        v_add_u32 v5, s60, v5
        """)
        for t in range(6):
            a(f"global_load_dwordx2 v[{self.G1_B1+2*t}:{self.G1_B1+2*t+1}], v5, s[{P_B1}:{P_B1+1}] offset:{32*t}")

    def acc_init(self, p):
        r = []
        for k in range(2):
            for lt in range(2):
                d = self.G1_ACC + 16 * p + 8 * k + 4 * lt
                s_ = self.G1_B1 + 2 * (2 * p + k)
                r += [f"v_lshlrev_b32 v{d}, 16, v{s_}", f"v_and_b32 v{d+1}, 0xffff0000, v{s_}",
                      f"v_lshlrev_b32 v{d+2}, 16, v{s_+1}", f"v_and_b32 v{d+3}, 0xffff0000, v{s_+1}"]
        return r

    def g1_prep(self):
        a = self.a
        for x in self.acc_init(0) + self.acc_init(1) + self.acc_init(2): a(x)
        a(f"""
        v_lshrrev_b32 v5, 4, v0
        v_and_b32 v6, 15, v0
        v_lshrrev_b32 v6, 2, v6
        v_lshl_add_u32 v6, v5, 3, v6
        v_mul_u32_u24 v6, 192, v6
        v_and_b32 v7, 3, v0
        v_lshl_add_u32 v6, v7, 3, v6
        v_and_b32 v5, 1, v5
        v_lshlrev_b32 v5, 5, v5
        v_add_u32 v10, v6, v5
        v_sub_u32 v11, v6, v5
        v_add_u32 v12, 61440, v10
        v_add_u32 v13, 61440, v11
        s_lshl_b32 s86, s{S_RB}, 3
        s_lshl_b32 s87, s{S_WAVE}, 1
        s_add_u32 s86, s86, s87
        s_mul_i32 s82, s86, 20480
        s_add_u32 s83, s82, 20480
        s_mul_i32 s86, s86, 49152
        s_mul_i32 s87, s{S_CB}, 3072
        s_add_u32 s86, s86, s87
        s_add_u32 s86, s86, {HF}
        s_add_u32 s87, s86, 49152
        """)

    def g1_aload(self, ks):
        r = []
        for lt in range(2):
            d = self.G1_A + 8 * ks + 4 * lt
            ins = [f"buffer_load_dwordx4 v[{d}:{d+3}], v9, s[{R_WS}:{R_WS+3}], s{82+lt} offen offset:{1024*(ks%4)} sc1"]
            if ks % 4 == 3 and ks != 19: ins.append(f"s_add_u32 s{82+lt}, s{82+lt}, 4096")
            r.append((ins, f"A{ks}"))
        return r

    def epi_ops(self, p):
        r = []
        for lt in range(2):
            a0 = self.G1_ACC + 16 * p + 4 * lt; b0 = a0 + 8
            for x in (a0, b0):
                for i in range(4): r.append(([f"v_max_f32 v{x+i}, 0, v{x+i}"], None))
                for i in range(4): r.append(([f"v_mul_f32 v{x+i}, v{x+i}, v{x+i}"], None))
            r.append(([f"v_cvt_pk_bf16_f32 v{a0}, v{a0}, v{a0+1}"], None))
            r.append(([f"v_cvt_pk_bf16_f32 v{a0+1}, v{a0+2}, v{a0+3}"], None))
            r.append(([f"v_cvt_pk_bf16_f32 v{a0+2}, v{b0}, v{b0+1}"], None))
            r.append(([f"v_cvt_pk_bf16_f32 v{a0+3}, v{b0+2}, v{b0+3}"], None))
            r.append(([f"buffer_store_dwordx4 v[{a0}:{a0+3}], v9, s[{R_WS}:{R_WS+3}], s{86+lt} offen offset:{1024*p} sc1"], "S"))
        return r

    def vwait(self, tag):
        vq = self.vq
        assert tag in self.seen or os.environ.get('NOAL'), tag
        idx = [i for i, t in enumerate(vq) if t == tag]
        if not idx: return
        n = len(vq) - 1 - idx[-1]
        self.a(f"s_waitcnt vmcnt({min(n, 63)})"); del vq[:idx[-1] + 1]

    def emit(self, item):
        ins, tag = item
        for x in ins: self.a(x)
        if tag: self.vq.append(tag); self.seen.add(tag)

    def g1_loop(self, N0, events, TL=5):
        a = self.a
        NF = 8; AH = NF - 1
        seq = [(ks, t) for ks in range(20 - TL) for t in range(6)]
        for p in range(3):
            seq += [(ks, 2 * p + k) for ks in range(20 - TL, 20) for k in range(2)]
        def rd(f):
            ks, t = seq[f]
            base = (10 if t % 2 == 0 else 11) + (2 if ks >= 10 else 0)
            off = (ks % 10) * 6144 + 32 * t
            d = self.G1_B + 4 * (f % NF)
            return [f"ds_read_b64_tr_b16 v[{d}:{d+1}], v{base} offset:{off}", f"ds_read_b64_tr_b16 v[{d+2}:{d+3}], v{base} offset:{off+768}"]
        for f in range(AH):
            for x in rd(f): a(x)
        fv = []; fa = []; waited = set()
        f0 = 6 * (20 - TL)
        for f, (ks, t) in enumerate(seq):
            if f % 6 == 0:
                st = f // 6
                if st in events:
                    extra = events[st]()
                    if extra: fv += extra
                if st + N0 < 20: fv = self.g1_aload(st + N0) + fv
            if ks not in waited:
                self.vwait(f"A{ks}"); waited.add(ks)
            if f > f0 and (f - f0) % (2 * TL) == 1 and (f - f0) // (2 * TL) >= 1:
                fa += self.epi_ops((f - f0) // (2 * TL) - 1)
            nxt = rd(f + AH) if f + AH < 120 else []
            if f % 2 == 0:
                a(f"s_waitcnt lgkmcnt({max(0, 2 * (min(f + AH, 120) - f - 2))})")
            for lt in range(2):
                acc = self.G1_ACC + 8 * t + 4 * lt
                A = self.G1_A + 8 * ks + 4 * lt
                B = self.G1_B + 4 * (f % NF)
                a(f"v_mfma_f32_16x16x32_bf16 v[{acc}:{acc+3}], v[{B}:{B+3}], v[{A}:{A+3}], v[{acc}:{acc+3}]")
                if nxt: a(nxt.pop(0))
                if fa:
                    for _ in range(2 if nxt or f + AH < 120 else 3):
                        if fa: self.emit(fa.pop(0))
                elif fv and lt == 1 and f % 2 == 0 and not (fv[0][1] in ("B3", "B4") and self.NRB == 5 and f < 6 * 13): self.emit(fv.pop(0))
        return fa, fv

    KP = 44
    def kg_loads(self):
        a = self.a
        a(f"""
        s_sub_u32 s70, s{S_WAVE}, 4
        s_add_u32 s71, s{S_CH0}, s70
        s_mul_i32 s60, s71, 384
        v_lshlrev_b32 v2, 2, v0
        v_add_u32 v2, s60, v2
        v_lshlrev_b32 v3, 1, v0
        v_add_u32 v3, s60, v3
        """)
        for k, P in enumerate((P_LA, P_AI, P_CR, P_CI)):
            a(f"global_load_dword v{self.KP+k}, v2, s[{P}:{P+1}]")
        a(f"s_lshl_b32 s60, s71, 1\ns_and_b32 s60, s60, -4\ns_load_dword s74, s[{P_DT}:{P_DT+1}], s60\ns_load_dword s75, s[{P_DS}:{P_DS+1}], s60")
        for k, P in enumerate((P_LA, P_AI, P_CR, P_CI)):
            a(f"global_load_ushort v{self.KP+4+k}, v3, s[{P}:{P+1}] offset:256")

    def cmul(self, d, x, y, plain=False):
        if plain:
            return [f"v_mul_f32 v{d}, v{x}, v{y}", f"v_mul_f32 v{d+1}, v{x}, v{y+1}",
                    f"v_fma_f32 v{d}, -v{x+1}, v{y+1}, v{d}", f"v_fma_f32 v{d+1}, v{x+1}, v{y}, v{d+1}"]
        return [f"v_pk_mul_f32 v[{d}:{d+1}], v[{x}:{x+1}], v[{y}:{y+1}] op_sel:[0,0] op_sel_hi:[0,1]",
                f"v_pk_fma_f32 v[{d}:{d+1}], v[{x}:{x+1}], v[{y}:{y+1}], v[{d}:{d+1}] op_sel:[1,1,0] op_sel_hi:[1,0,1] neg_lo:[0,1,0]"]

    def kg_setup(self):
        a = self.a
        self.aux_addr()
        a(f"""
        v_lshrrev_b32 v2, 2, v0
        v_mul_u32_u24 v2, 272, v2
        v_and_b32 v3, 3, v0
        v_lshl_add_u32 v2, v3, 2, v2
        v_add_u32 v10, s72, v2
        v_add_u32 v9, 4352, v10
        v_lshrrev_b32 v2, 4, v0
        v_mul_u32_u24 v2, 272, v2
        v_and_b32 v3, 15, v0
        v_lshl_add_u32 v2, v3, 4, v2
        v_add_u32 v11, s72, v2
        s_bitcmp1_b32 s71, 0
        s_cselect_b32 s60, 0, 16
        s_waitcnt lgkmcnt(0)
        s_lshl_b32 s74, s74, s60
        s_lshl_b32 s75, s75, s60
        s_and_b32 s74, s74, 0xffff0000
        s_and_b32 s75, s75, 0xffff0000
        v_mov_b32 v56, {LOG2E}
        v_mul_f32 v56, s74, v56
        v_exp_f32 v56, v56
        v_mov_b32 v57, s75
        v_cvt_pk_bf16_f32 v56, v56, v56
        v_and_b32 v56, 0xffff0000, v56
        v_add_f32 v58, v56, v56
        v_mov_b32 v59, 0x3f80
        """)
        if os.environ.get('KL', '0') != '0':
            for r in list(range(120, 136)) + list(range(152, 180)) + list(range(184, 200)): a(f"v_mov_b32 v{r}, 0")

    def kgen(self, hook=None):
        a = self.a
        KP = self.KP
        Z, Z8, W = 60, 62, 64
        F = 66; F2 = 82; G = 98; CV = 102; SV = 110
        GF, TA, TB, TC = 120, 136, 152, 184
        ACC = 168
        VW, VR, VW2 = 10, 11, 9
        TOFF = 4352
        NPL = int(os.environ.get('KPL', '1'))
        class Out:
            def __init__(o, base, neg, pool): o.base = base; o.neg = neg; o.pend = None; o.pool = pool; o.n = 0
            def put(o, src, row, reg=None):
                r = []
                if reg is None:
                    reg = CV + 4 * o.pool + o.n % 4; o.n += 1
                    r.append(f"v_cvt_pk_bf16_f32 v{reg}, v{src}, {'-' if o.neg else ''}v{src+1}")
                if o.pend is None: o.pend = (reg, row)
                else:
                    r.append(f"ds_write2_b32 v{o.base}, v{o.pend[0]}, v{reg} offset0:{4*o.pend[1]} offset1:{4*row}")
                    o.pend = None
                return r
        def merge(*streams):
            streams = [list(s) for s in streams]
            out = []
            while any(streams):
                for s in streams:
                    if s: out.append(s.pop(0))
            return out
        def mf(acc, T, first):
            return [f"v_mfma_f32_16x16x32_bf16 v[{acc}:{acc+3}], v[{T+4*ks}:{T+4*ks+3}], v[{GF+4*ks}:{GF+4*ks+3}], {'0' if first and ks == 0 else f'v[{acc}:{acc+3}]'}" for ks in range(4)]
        def up(k, p):
            r = KP + k + (4 if p == 2 else 0)
            return (lambda d: f"v_and_b32 v{d}, 0xffff0000, v{r}") if p == 1 else (lambda d: f"v_lshlrev_b32 v{d}, 16, v{r}")
        KL = int(os.environ.get('KL', '0'))
        pend = []
        if KL:
            a("s_waitcnt vmcnt(0)")
            for k in range(4):
                a(f"v_lshlrev_b32 v{200+k}, 16, v{KP+k}\nv_and_b32 v{204+k}, 0xffff0000, v{KP+k}\nv_lshlrev_b32 v{208+k}, 16, v{KP+4+k}")
            a(f"s_mov_b32 s73, {KL}\n{self.L('kgl')}:")
            pend = ["s_waitcnt lgkmcnt(0)"] + mf(ACC + 4, TB, False) + mf(ACC + 8, TC, False)
            up = lambda k, p: (lambda d: f"v_mov_b32 v{d}, v{200+k}")
        for p in ([0] + list(range(KL, 3)) if KL else range(3)):
            pl = p >= 3 - NPL
            cm = lambda d, x, y: self.cmul(d, x, y, pl)
            if p: self.stamp(10 + p)
            if p == 2 and not KL: a("s_waitcnt vmcnt(0)")
            prep = [up(0, p)(2), f"v_mul_f32 v2, {LOG2E}, v2", "v_exp_f32 v2, v2", up(1, p)(3), up(2, p)(F), "v_cvt_pk_bf16_f32 v2, v2, v2", up(3, p)(F + 1),
                    "v_and_b32 v2, 0xffff0000, v2", "v_mul_f32 v3, v3, v56", "v_mul_f32 v2, v2, v56", f"v_mul_f32 v{F}, v{F}, v58", f"v_mul_f32 v{F+1}, v{F+1}, v58",
                    f"v_mul_f32 v3, {INV2PI}, v3", "v_mul_f32 v2, 0xbfb8aa3b, v2",
                    "v_mul_f32 v4, 0x41000000, v2", "v_mul_f32 v5, 0x41000000, v3", "v_mul_f32 v6, 0x43000000, v2", "v_mul_f32 v7, 0x43000000, v3",
                    "v_fract_f32 v3, v3", "v_fract_f32 v5, v5", "v_fract_f32 v7, v7", "v_exp_f32 v2, v2", "v_exp_f32 v4, v4", "v_exp_f32 v6, v6",
                    f"v_cos_f32 v{Z}, v3", f"v_sin_f32 v{Z+1}, v3", f"v_cos_f32 v{Z8}, v5", f"v_sin_f32 v{Z8+1}, v5", f"v_cos_f32 v{W}, v7", f"v_sin_f32 v{W+1}, v7"]
            for q, e in ((Z, 2), (Z8, 4), (W, 6)):
                prep += [f"v_mul_f32 v{q}, v{q}, v{e}", f"v_mul_f32 v{q+1}, v{q+1}, v{e}"]
            if KL and (p == 0): prep[7:7] = [f"v_mov_b32 v{200+k}, v{204+k}" for k in range(8)]
            for i, ins in enumerate(prep):
                a(ins)
                if pend and i >= 6 and i % 3 == 0: a(pend.pop(0))
            assert not pend
            og = Out(VW, False, 0); of = Out(VW2, True, 1); oc0 = Out(VW2, True, 0); oc1 = Out(VW2, True, 1); ot = Out(VW2, True, 0)
            gs = og.put(None, 0, 59) + og.put(Z8, 1)
            prev = Z8
            for j in range(2, 16):
                d = G + 2 * (j % 2)
                gs += cm(d, prev, Z8) + og.put(d, j)
                prev = d
            fs = of.put(F, 0)
            for r in range(1, 8):
                fs += cm(F + 2 * r, F + 2 * (r - 1), Z) + of.put(F + 2 * r, r)
            for r in range(8):
                fs += cm(F2 + 2 * r, F + 2 * r, W) + of.put(F2 + 2 * r, 8 + r)
            for ins in merge(gs, fs): a(ins)
            for ks in range(4):
                a(f"ds_read_b128 v[{GF+4*ks}:{GF+4*ks+3}], v{VR} offset:{1088*ks}")
                a(f"ds_read_b128 v[{TA+4*ks}:{TA+4*ks+3}], v{VR} offset:{TOFF+1088*ks}")
            s1 = []
            for i in range(4):
                s1.append(cm(F + 2 * i, F2 + 4 * i, W) + [f"v_cvt_pk_bf16_f32 v{SV+i}, v{F+2*i}, -v{F+2*i+1}"]
                          + cm(F + 8 + 2 * i, F + 2 * i, W) + [f"v_cvt_pk_bf16_f32 v{SV+4+i}, v{F+8+2*i}, -v{F+8+2*i+1}"])
            for ins in merge(*s1): a(ins)
            c0 = []; prev = F + 8
            for i in range(12):
                d = F2 + 2 * (i % 2)
                c0 += cm(d, prev, W) + oc0.put(d, i if i < 4 else i + 4)
                prev = d
            last = prev
            c1 = []; prev = F + 12
            for i in range(4):
                d = F2 + 4 + 2 * (i % 2)
                c1 += cm(d, prev, W) + oc1.put(d, 4 + i)
                prev = d
            for ins in merge(c0, c1): a(ins)
            for ks in range(4):
                a(f"ds_read_b128 v[{TB+4*ks}:{TB+4*ks+3}], v{VR} offset:{TOFF+1088*ks}")
            for ins in cm(F2 + 8, last, W): a(ins)
            a("s_waitcnt lgkmcnt(12)")
            t2 = []
            for i in range(8): t2 += ot.put(None, i, SV + i)
            t2 += [f"v_cvt_pk_bf16_f32 v{CV}, v{F2+8}, -v{F2+9}", f"ds_write_b32 v{VW2}, v{CV} offset:128"]
            t2 += [f"ds_read_b128 v[{TC+4*ks}:{TC+4*ks+3}], v{VR} offset:{TOFF+1088*ks}" for ks in range(4)]
            f0 = p == 0 and not KL
            for ins in merge(mf(ACC, TA, f0), t2): a(ins)
            pend = ["s_waitcnt lgkmcnt(0)"] + mf(ACC + 4, TB, f0) + mf(ACC + 8, TC, f0)
            if KL and p == 0:
                a(f"s_sub_u32 s73, s73, 1\ns_cmp_lg_u32 s73, 0\ns_cbranch_scc1 {self.L('kgl')}")
        self.kpend = pend
        self.KACC = ACC

    def aux_addr(self):
        a = self.a
        a(f"s_mul_i32 s72, s70, {RSZ}\ns_add_u32 s72, s72, {AUX}")
        a(f"""
        v_and_b32 v2, 15, v0
        v_lshrrev_b32 v3, 4, v0
        v_lshlrev_b32 v4, 3, v2
        v_lshlrev_b32 v5, 2, v3
        v_add_u32 v5, 512, v5
        v_lshlrev_b32 v6, 9, v3
        v_cmp_gt_u32 vcc, 2, v3
        v_cndmask_b32 v5, v6, v5, vcc
        v_add_u32 v5, v5, v4
        v_cndmask_b32 v6, 4, 2, vcc
        v_and_b32 v7, 1, v2
        v_cndmask_b32 v7, v7, v3, vcc
        v_cndmask_b32 v8, 8, 0, vcc
        s_add_u32 s60, s72, 32
        v_sub_u32 v9, v5, v6
        v_lshl_add_u32 v12, v9, 1, s60
        v_add_u32 v13, v12, v8
        v_add_u32 v9, v5, v6
        v_sub_u32 v9, v9, v7
        v_lshl_add_u32 v14, v9, 1, s60
        v_sub_u32 v9, v5, v6
        v_add_u32 v9, v9, v7
        v_lshl_add_u32 v15, v9, 1, s60
        v_add_u32 v15, {K1O-2}, v15
        v_cmp_eq_u32 vcc, 32, v0
        v_add_u32 v9, 4, v15
        v_cndmask_b32 v16, v15, v9, vcc
        v_add_u32 v17, {K1O}, v12
        v_add_u32 v18, {K1O}, v13
        """)
        a(f"""
        v_lshlrev_b32 v5, 8, v3
        v_add3_u32 v5, v5, v4, v4
        v_add_u32 v5, s60, v5
        v_add_u32 v30, 512, v5
        v_add_u32 v31, {K1O-4}, v30
        v_add_u32 v32, -2, v30
        s_add_u32 s61, s60, {2*2044}
        v_mov_b32 v33, s61
        v_add_u32 v34, {K1O-2}, v33
        v_add_u32 v35, {K1O}, v33
        v_and_b32 v5, 1, v3
        v_lshlrev_b32 v5, 3, v5
        v_lshrrev_b32 v6, 1, v3
        v_lshl_add_u32 v5, v6, 8, v5
        v_add3_u32 v5, v5, v4, v4
        v_add_u32 v36, s60, v5
        v_add_u32 v37, {K1O-2}, v36
        v_lshlrev_b32 v7, 3, v0
        v_add_u32 v38, s72, v7
        v_mov_b32 v40, 0
        v_mov_b32 v41, 0
        v_lshlrev_b32 v4, 3, v3
        v_sub_u32 v4, v2, v4
        v_add_u32 v4, {233+16-224}, v4
        v_and_b32 v5, 1, v2
        v_and_b32 v4, -2, v4
        v_lshlrev_b32 v4, 1, v4
        v_cmp_eq_u32 vcc, 0, v5
        v_mov_b32 v6, {K1O}
        v_cndmask_b32 v5, 0, v6, vcc
        v_add3_u32 v220, v4, v5, s72
        v_add_u32 v221, 1024, v220
        v_add_u32 v222, 2048, v220
        v_add_u32 v223, 3072, v220
        v_lshlrev_b32 v4, 5, v2
        v_lshl_add_u32 v225, v3, 3, v4
        v_lshl_add_u32 v4, v3, 4, v4
        s_add_u32 s60, s72, {UO}
        v_add_u32 v224, s60, v4
        """)

    def expand(self):
        a = self.a
        ACC = self.KACC
        T0, T1, T2 = ACC, ACC + 4, ACC + 8
        a(f"""
        s_mov_b64 exec, 1
        v_add_f32 v{T0}, v{T0}, v57
        s_mov_b64 exec, -1
        """) if False else None
        for x in self.kpend: a(x)
        a(f"""
        s_mov_b64 exec, 1
        v_add_f32 v{T0}, v{T0}, v57
        s_mov_b64 exec, -1
        v_cvt_pk_bf16_f32 v42, v{T0}, v{T0+1}
        v_cvt_pk_bf16_f32 v43, v{T0+2}, v{T0+3}
        v_cvt_pk_bf16_f32 v29, v{T0+1}, v{T0+2}
        """)
        for i in range(4):
            a(f"v_cvt_pk_bf16_f32 v{20+i}, v{T1+i}, v{T1+i}")
        for i in range(4):
            a(f"ds_write2_b32 v12, v{20+i}, v{20+i} offset0:{64*i} offset1:{64*i+1}")
            a(f"ds_write2_b32 v13, v{20+i}, v{20+i} offset0:{64*i} offset1:{64*i+1}")
            a(f"ds_write2_b32 v17, v{20+i}, v{20+i} offset0:{64*i} offset1:{64*i+1}")
            a(f"ds_write2_b32 v18, v{20+i}, v{20+i} offset0:{64*i} offset1:{64*i+1}")
        a(f"""
        v_cvt_pk_bf16_f32 v24, v{T2}, v{T2}
        v_cvt_pk_bf16_f32 v25, v{T2}, v{T2+1}
        v_cvt_pk_bf16_f32 v26, v{T2+2}, v{T2+2}
        v_cvt_pk_bf16_f32 v27, v{T2+2}, v{T2+3}
        v_cvt_pk_bf16_f32 v28, v{T2+1}, v{T2+2}
        """)
        for i in range(4):
            a(f"ds_write_b16 v14, v{20+i} offset:{256*i}")
            a(f"ds_write_b16 v{16 if i == 0 else 15}, v{20+i} offset:{256*i}")
        a(f"""
        s_mov_b32 exec_hi, 0
        ds_write2_b32 v30, v24, v28 offset0:0 offset1:1
        ds_write_b32 v30, v26 offset:8
        ds_write_b16_d16_hi v30, v27 offset:12
        ds_write_b16 v32, v24
        ds_write2_b32 v31, v24, v25 offset0:0 offset1:1
        ds_write2_b32 v31, v26, v27 offset0:2 offset1:3
        s_mov_b32 exec_lo, 0
        s_mov_b32 exec_hi, 1
        ds_write2_b32 v33, v24, v24 offset0:0 offset1:1
        ds_write2_b32 v35, v24, v24 offset0:0 offset1:1
        ds_write_b16 v34, v24
        s_mov_b64 exec, 15
        ds_write_b64 v38, v[40:41]
        ds_write_b64 v38, v[40:41] offset:{K1O}
        s_lshr_b64 exec, -1, 4
        ds_write_b64 v38, v[40:41] offset:{UO}
        s_mov_b64 exec, -1
        ds_write_b64 v36, v[42:43]
        ds_write_b16 v37, v42
        ds_write_b32 v36, v29 offset:{K1O}
        ds_write_b16_d16_hi v37, v43 offset:6
        """)

    def u_gather(self):
        a = self.a
        sc = "sc1" if self.fused else ""
        a(f"""
        v_lshrrev_b32 v2, 2, v0
        v_and_b32 v3, 3, v0
        v_mul_u32_u24 v4, 10240, v2
        v_lshl_add_u32 v4, v3, 4, v4
        s_lshl_b32 s60, s{S_CH0}, 4
        s_add_u32 s60, s60, {XT}
        v_mul_u32_u24 v5, {RSZ}, v3
        v_lshl_add_u32 v5, v2, 4, v5
        v_add_u32 v5, {AUX+UO+UPAD}, v5
        v_cmp_gt_u32 vcc, s{S_NCH}, v3
        s_mov_b64 s[62:63], exec
        s_and_b64 exec, exec, vcc
        """)
        for i in range(16):
            a(f"buffer_load_dwordx4 v[{40+4*i}:{43+4*i}], v4, s[{R_WS}:{R_WS+3}], s60 offen {sc}")
            if i < 15: a(f"s_add_u32 s60, s60, {16*10240}")
        for i in range(16):
            a(f"s_waitcnt vmcnt({14-i})" if i < 15 else "s_nop 7")
            a(f"ds_write_b128 v5, v[{40+4*i}:{43+4*i}] offset:{256*i}")
        a("s_mov_b64 exec, s[62:63]\ns_waitcnt lgkmcnt(0)")

    def conv(self):
        a = self.a
        sc = "sc1" if self.fused else ""
        ACC = 60; OP = [92, 156]
        AB = 220
        first = set()
        def reads(tau):
            s = OP[tau % 2]
            r = []
            for d in range(8):
                r.append(f"ds_read_b128 v[{s+32+4*d}:{s+35+4*d}], v224 offset:{512*d+64*tau}")
                o = 512 * d - 64 * tau + 448
                b = AB + o // 1024; q = (o % 1024) // 4
                r.append(f"ds_read2_b32 v[{s+4*d}:{s+4*d+1}], v{b} offset0:{q} offset1:{q+1}")
                r.append(f"ds_read2_b32 v[{s+4*d+2}:{s+4*d+3}], v{b} offset0:{q+2} offset1:{q+3}")
            return r
        r0 = reads(0)
        for k, ins in enumerate(r0):
            a(ins)
            if k == 12: a("s_waitcnt lgkmcnt(3)")
        for tau in range(8):
            s = OP[tau % 2]
            nxt = reads(tau + 1) if tau < 7 else []
            pairs = sorted([(d, n) for d in range(8) for n in range(8 - d)], key=lambda p: (max(p), p))
            if os.environ.get('XD'):
                XD = int(os.environ['XD'])
                pairs = [p for p in pairs if p[0] < XD or tau == 0]
                if tau > 0:
                    nxt = [x for i, x in enumerate(nxt) if i % 3 == 0 or i // 3 < XD]
            a("s_waitcnt lgkmcnt(0)")
            for k, (d, n) in enumerate(pairs):
                acc = ACC + 4 * (d + n)
                a(f"v_mfma_f32_16x16x32_bf16 v[{acc}:{acc+3}], v[{s+4*d}:{s+4*d+3}], v[{s+32+4*n}:{s+35+4*n}], {f'v[{acc}:{acc+3}]' if acc in first else '0'}")
                first.add(acc)
                if nxt and k < 30 and k % 5 != 4:
                    a(nxt.pop(0))
            for x in nxt: a(x)
        a(f"""
        s_lshl_b32 s61, s71, 12
        s_add_u32 s61, s61, {ST}
        """)
        for n in range(8):
            acc = ACC + 4 * n; o = 128 + 2 * n
            a(f"""
            v_cvt_pk_bf16_f32 v{o}, v{acc}, v{acc+1}
            v_cvt_pk_bf16_f32 v{o+1}, v{acc+2}, v{acc+3}
            buffer_store_dwordx2 v[{o}:{o+1}], v225, s[{R_WS}:{R_WS+3}], s61 offen offset:{512*n} {sc}
            """)

    G2_ACC = 16; G2_RB = 96; G2_BT = 156; G2_A = 176
    def g2_addr(self):
        self.a(f"""
        v_lshlrev_b32 v9, 4, v0
        v_add_u32 v8, 4096, v9
        s_mul_i32 s74, s{S_CB2}, 245760
        s_mul_i32 s60, s{S_WAVE}, {12*5120}
        s_add_u32 s74, s74, s60
        s_add_u32 s74, s74, {W2F}
        s_mul_i32 s75, s{S_WAVE}, 30720
        """)
    @staticmethod
    def kloc(j):
        return j

    NRB = int(os.environ.get('NRB', '3'))
    def lslot(self, j):
        if self.NRB == 3:
            q = j if j < 6 else j - 9
        else:
            q = (j - 5) % 6
        return q * 5120
    def inreg(self, j):
        return 6 <= j < 9 if self.NRB == 3 else j < 5
    def rbreg(self, j):
        return self.G2_RB + 20 * (j % 3 if self.NRB == 3 else j)
    def a2reg(self, j):
        if self.NRB == 3: return self.G2_A + 16 * (j % 5)
        return [208, 224, 240, 208, 96, 224, 116, 240, 136, 208, 156, 96][j]

    def g2_dma_items(self, j):
        W = f"s[{R_WS}:{R_WS+3}]"
        l0 = self.lslot(j)
        r = []
        for nt in range(5):
            pre = [f"s_add_u32 s81, s74, {5120*self.kloc(j)}"] if nt == 0 else []
            if nt < 4: r.append((pre + [f"s_add_u32 m0, s75, {l0}", f"buffer_load_dwordx4 v9, {W}, s81 offen offset:{1024*nt} sc1 lds"], f"D{j}"))
            else: r.append(([f"s_add_u32 m0, s75, {l0+4096}", f"buffer_load_dwordx4 v8, {W}, s81 offen sc1 lds"], f"D{j}"))
        return r

    def g2_bload_items(self, j):
        W = f"s[{R_WS}:{R_WS+3}]"
        r = []
        for nt in range(5):
            d = self.rbreg(j) + 4 * nt
            pre = [f"s_add_u32 s81, s74, {5120*self.kloc(j)}"] if nt == 0 else []
            if nt < 4: r.append((pre + [f"buffer_load_dwordx4 v[{d}:{d+3}], v9, {W}, s81 offen offset:{1024*nt} sc1"], f"B{j}"))
            else: r.append(([f"buffer_load_dwordx4 v[{d}:{d+3}], v8, {W}, s81 offen sc1"], f"B{j}"))
        return r

    def g2_aload_items(self, j):
        W = f"s[{R_WS}:{R_WS+3}]"
        k = self.kloc(j)
        vo = (9, 8, 13)[k // 4]
        r = []
        for i in range(4):
            d = self.a2reg(j) + 4 * i
            r.append(([f"buffer_load_dwordx4 v[{d}:{d+3}], v{vo}, {W}, s{76+i} offen offset:{1024*(k%4)} sc1"], f"A{j}"))
        return r

    def g2_setup_s(self):
        a = self.a
        for i in range(4):
            a(f"""
            s_add_u32 s60, s{S_WAVE}, {i}
            s_and_b32 s60, s60, 3
            s_lshl_b32 s61, s{S_RB2}, 2
            s_add_u32 s60, s60, s61
            s_mul_i32 s60, s60, 49152
            s_mul_i32 s61, s{S_WAVE}, {12*1024}
            s_add_u32 s60, s60, s61
            s_add_u32 s{76+i}, s60, {HF}
            """)
    def g2_setup_v(self):
        a = self.a
        self.seen = {t for t in self.seen if not t.startswith("A")}
        a(f"v_add_u32 v10, s75, v9\nv_add_u32 v13, 8192, v9")

    def fh_wait(self, tp):
        self.a(f"s_lshl_b32 s66, s{S_WAVE}, 4\ns_add_u32 s66, s66, {M_FH + 64*tp}")
        self.lds_wait_all("s66", 1, f"fhw{tp}", tmp=2)

    def g2_loop(self, hook=None, hook_at=6, fill0=None):
        a = self.a
        big = self.NRB != 3
        seq = [(j, nt) for j in range(9) for nt in range(5)] + [(j, nt) for nt in range(5) for j in range(9, 12)]
        lds = [x for x in seq if not self.inreg(x[0])]
        pos = {x: i for i, x in enumerate(lds)}
        NB = 3 if big else 5
        BT = 196 if big else self.G2_BT
        issued = [0]; lq = []
        def bt_read():
            i = issued[0]
            if i >= len(lds): return
            j, nt = lds[i]
            if nt == 0 or j >= 9: self.vwait(f"D{j}")
            d = BT + 4 * (i % NB)
            a(f"ds_read_b128 v[{d}:{d+3}], v10 offset:{self.lslot(j) + 1024 * nt}")
            lq.append(i); issued[0] += 1
        fill = list(fill0 or [])
        if not big:
            for _ in range(4): bt_read()
        asched = {0: [3, 4], 1: [5, 6], 2: [7, 8], 3: [9, 10], 4: [11]} if big else {j: [j + 5] for j in range(7)}
        wslot = (lambda i: i) if big else (lambda i: i + 2)
        self.wslot = wslot
        wr = []; done = set()
        for (j, nt) in seq:
            if j not in done:
                done.add(j)
                if hook and j == hook_at: hook(); lq.append("x")
                self.stamp(16 + j, q=True)
                if os.environ.get('PF2') and j == int(os.environ['PF2']): a("s_setprio 0")
                if os.environ.get('PF3') and j == int(os.environ['PF3']): a("s_setprio 2")
                self.vwait(f"A{j}")
                if self.inreg(j): self.vwait(f"B{j}")
            if self.inreg(j):
                B = self.rbreg(j) + 4 * nt
            else:
                i = pos[(j, nt)]
                B = BT + 4 * (i % NB)
                k = lq.index(i)
                a(f"s_waitcnt lgkmcnt({len(lq) - 1 - k})"); del lq[:k + 1]
            for i in range(4):
                acc = self.G2_ACC + 16 * nt + 4 * i
                A = self.a2reg(j) + 4 * i
                a(f"v_mfma_f32_16x16x32_bf16 v[{acc}:{acc+3}], v[{B}:{B+3}], v[{A}:{A+3}], {'0' if j == 0 else f'v[{acc}:{acc+3}]'}")
                if fill and i in (0, 2): self.emit(fill.pop(0))
                if i == 1:
                    if big:
                        if j > 4 or nt >= 3 and j == 4: bt_read()
                    elif not self.inreg(j):
                        if not (j == 5 and nt >= 1): bt_read()
                    elif j == 8 and nt >= 1: bt_read()
                if i == 3 and wr:
                    a(wr.pop(0)); lq.append("w")
            if j == 11:
                wr += [f"ds_write_b128 v10, v[{self.G2_ACC+16*nt+4*i}:{self.G2_ACC+16*nt+4*i+3}] offset:{5120*wslot(i)+1024*nt}" for i in range(1, 4)]
            if nt == 4 and j < 9:
                fill = sum((self.g2_aload_items(jj) for jj in asched.get(j, [])), []) + fill
                if big:
                    if j == 5: fill += self.g2_dma_items(11)
                elif j < 3: fill += self.g2_dma_items(j + 9)
        assert not fill
        for x in wr: a(x)

    def svc_x_loads(self):
        a = self.a
        a(f"""
        s_mul_i32 s60, s{S_RB2}, {64*1280}
        s_mul_i32 s61, s{S_CB2}, 160
        s_add_u32 s60, s60, s61
        """)
        for i in range(10):
            a(f"""
            v_add_u32 v2, {64*i}, v0
            v_mul_u32_u24 v3, 52429, v2
            v_lshrrev_b32 v3, 19, v3
            v_mul_u32_u24 v4, 10, v3
            v_sub_u32 v4, v2, v4
            v_lshlrev_b32 v4, 4, v4
            v_mad_u32_u24 v{184+i}, v3, s97, v4
            v_mul_u32_u24 v3, 1280, v3
            v_add_u32 v3, v3, v4
            buffer_load_dwordx4 v[{140+4*i}:{143+4*i}], v3, s[{R_X}:{R_X+3}], s60 offen
            """.replace("s97", "s67") if False else f"""
            v_add_u32 v2, {64*i}, v0
            v_mul_u32_u24 v3, 52429, v2
            v_lshrrev_b32 v3, 19, v3
            v_mul_u32_u24 v4, 10, v3
            v_sub_u32 v4, v2, v4
            v_lshlrev_b32 v4, 4, v4
            v_mul_u32_u24 v5, {XRS}, v3
            v_add_u32 v{184+i}, v5, v4
            v_mul_u32_u24 v3, 1280, v3
            v_add_u32 v3, v3, v4
            buffer_load_dwordx4 v[{140+4*i}:{143+4*i}], v3, s[{R_X}:{R_X+3}], s60 offen
            """)
        a(f"""
        v_min_u32 v2, 39, v0
        v_lshlrev_b32 v2, 2, v2
        v_add_u32 v2, s61, v2
        global_load_dword v180, v2, s[{P_B2}:{P_B2+1}]
        """)

    def svc_x_write(self):
        a = self.a
        for i in range(10):
            a(f"v_add_u32 v{184+i}, {XI}, v{184+i}")
        for i in range(10):
            a(f"ds_write_b128 v{184+i}, v[{140+4*i}:{143+4*i}]")
        a(f"""
        v_lshlrev_b32 v182, 16, v180
        v_and_b32 v183, 0xffff0000, v180
        v_min_u32 v2, 39, v0
        v_lshlrev_b32 v2, 3, v2
        v_add_u32 v2, {M_B2}, v2
        ds_write_b64 v2, v[182:183]
        """)

    def s_tile_dma(self):
        a = self.a
        sc = "sc1" if self.fused else ""
        a(f"""
        v_lshrrev_b32 v2, 3, v0
        v_and_b32 v3, 7, v0
        v_lshlrev_b32 v2, 12, v2
        v_lshl_add_u32 v2, v3, 4, v2
        s_mul_i32 s60, s{S_CB2}, {80*4096}
        s_lshl_b32 s61, s{S_RB2}, 7
        s_add_u32 s60, s60, s61
        s_add_u32 s60, s60, {ST}
        """)
        for t in range(10):
            a(f"s_mov_b32 m0, {AUX+1024*t}")
            a(f"buffer_load_dwordx4 v2, s[{R_WS}:{R_WS+3}], s60 offen {sc} lds")
            if t < 9: a(f"s_add_u32 s60, s60, {8*4096}")
        self.svc_x_write()
        a("s_waitcnt vmcnt(0) lgkmcnt(0)")

    def g2_final(self):
        a = self.a
        ACC = self.G2_ACC
        self.srd(R_OUT, P_OUT, 2621440)
        for i in range(1, 4):
            a(f"""
            s_sub_u32 s60, s{S_WAVE}, {i}
            s_and_b32 s60, s60, 3
            s_mul_i32 s60, s60, 30720
            s_add_u32 s60, s60, {5120*self.wslot(i)}
            v_add_u32 v{4+i}, s60, v9
            """)
        a(f"""
        v_and_b32 v2, 15, v0
        v_lshrrev_b32 v3, 4, v0
        v_lshrrev_b32 v12, 2, v2
        v_lshl_add_u32 v12, v3, 2, v12
        v_lshlrev_b32 v12, 7, v12
        v_and_b32 v15, 3, v0
        v_lshl_add_u32 v12, v15, 3, v12
        s_lshl_b32 s60, s{S_WAVE}, 5
        s_add_u32 s60, s60, {AUX}
        v_add_u32 v12, s60, v12
        s_mul_i32 s60, s{S_WAVE}, {16*XRS}
        s_add_u32 s60, s60, {XI}
        v_mul_u32_u24 v11, {XRS}, v2
        v_lshl_add_u32 v11, v3, 3, v11
        v_add_u32 v11, s60, v11
        v_lshlrev_b32 v13, 4, v3
        v_add_u32 v13, {M_B2}, v13
        v_mov_b32 v250, 1.0
        v_mov_b32 v251, 1.0
        v_mov_b32 v252, 0xbfb8aa3b
        s_lshl_b32 s80, s{S_RB2}, 2
        s_add_u32 s80, s80, s{S_WAVE}
        s_mul_i32 s80, s80, {16*1280}
        s_mul_i32 s61, s{S_CB2}, 160
        s_add_u32 s80, s80, s61
        """)
        for i in range(3):
            a(f"""
            v_add_u32 v2, {64*i}, v0
            v_mul_u32_u24 v3, 52429, v2
            v_lshrrev_b32 v3, 19, v3
            v_mul_u32_u24 v4, 10, v3
            v_sub_u32 v4, v2, v4
            v_lshlrev_b32 v4, 4, v4
            v_mul_u32_u24 v2, {XRS}, v3
            v_add3_u32 v{240+i}, v2, v4, s60
            v_mul_u32_u24 v3, 1280, v3
            v_add_u32 v{243+i}, v3, v4
            """)
        a("s_waitcnt lgkmcnt(0)\ns_barrier")
        P = 96
        def reads(nt):
            p = P + 20 * nt
            for i in range(1, 4):
                a(f"ds_read_b128 v[{p+4*(i-1)}:{p+4*(i-1)+3}], v{4+i} offset:{1024*nt}")
            a(f"ds_read_b128 v[{p+12}:{p+15}], v13 offset:{64*nt}")
            a(f"ds_read_b64_tr_b16 v[{p+16}:{p+17}], v12 offset:{2048*nt}")
            a(f"ds_read_b64 v[{p+18}:{p+19}], v11 offset:{32*nt}")
        reads(0); reads(1)
        Pp = lambda r: f"v[{r}:{r+1}]"
        for nt in range(5):
            acc = ACC + 16 * nt; p = P + 20 * nt; t = 200 + 12 * (nt % 2)
            a(f"s_waitcnt lgkmcnt({6 if nt < 4 else 1})" if nt != 0 else "s_waitcnt lgkmcnt(6)")
            a(f"""
            v_pk_add_f32 {Pp(acc)}, {Pp(acc)}, {Pp(p)}
            v_pk_add_f32 {Pp(acc+2)}, {Pp(acc+2)}, {Pp(p+2)}
            v_pk_add_f32 {Pp(p+4)}, {Pp(p+4)}, {Pp(p+8)}
            v_pk_add_f32 {Pp(p+6)}, {Pp(p+6)}, {Pp(p+10)}
            v_pk_add_f32 {Pp(acc)}, {Pp(acc)}, {Pp(p+12)}
            v_pk_add_f32 {Pp(acc+2)}, {Pp(acc+2)}, {Pp(p+14)}
            v_pk_add_f32 {Pp(acc)}, {Pp(acc)}, {Pp(p+4)}
            v_pk_add_f32 {Pp(acc+2)}, {Pp(acc+2)}, {Pp(p+6)}
            v_pk_mul_f32 {Pp(t)}, {Pp(acc)}, v[252:253] op_sel_hi:[1,0]
            v_pk_mul_f32 {Pp(t+2)}, {Pp(acc+2)}, v[252:253] op_sel_hi:[1,0]
            """)
            for i in range(4): a(f"v_exp_f32 v{t+i}, v{t+i}")
            if nt + 2 < 5: reads(nt + 2)
            a(f"""
            v_lshlrev_b32 v{t+4}, 16, v{p+16}
            v_and_b32 v{t+5}, 0xffff0000, v{p+16}
            v_lshlrev_b32 v{t+6}, 16, v{p+17}
            v_and_b32 v{t+7}, 0xffff0000, v{p+17}
            v_pk_add_f32 {Pp(t)}, {Pp(t)}, v[250:251]
            v_pk_add_f32 {Pp(t+2)}, {Pp(t+2)}, v[250:251]
            """)
            for i in range(4): a(f"v_rcp_f32 v{t+i}, v{t+i}")
            a(f"""
            v_pk_mul_f32 {Pp(t+4)}, {Pp(t+4)}, {Pp(acc)}
            v_pk_mul_f32 {Pp(t+6)}, {Pp(t+6)}, {Pp(acc+2)}
            v_lshlrev_b32 v{t+8}, 16, v{p+18}
            v_and_b32 v{t+9}, 0xffff0000, v{p+18}
            v_lshlrev_b32 v{t+10}, 16, v{p+19}
            v_and_b32 v{t+11}, 0xffff0000, v{p+19}
            v_pk_fma_f32 {Pp(t+8)}, {Pp(t+4)}, {Pp(t)}, {Pp(t+8)}
            v_pk_fma_f32 {Pp(t+10)}, {Pp(t+6)}, {Pp(t+2)}, {Pp(t+10)}
            v_cvt_pk_bf16_f32 v{p+18}, v{t+8}, v{t+9}
            v_cvt_pk_bf16_f32 v{p+19}, v{t+10}, v{t+11}
            ds_write_b64 v11, v[{p+18}:{p+19}] offset:{32*nt}
            """)
        osc = os.environ.get('OSC', '')
        a(f"""
        ds_read_b128 v[224:227], v240
        ds_read_b128 v[228:231], v241
        s_mov_b32 exec_hi, 0
        ds_read_b128 v[232:235], v242
        s_mov_b64 exec, -1
        s_waitcnt lgkmcnt(1)
        buffer_store_dwordx4 v[224:227], v243, s[{R_OUT}:{R_OUT+3}], s80 offen {osc}
        s_waitcnt lgkmcnt(0)
        buffer_store_dwordx4 v[228:231], v244, s[{R_OUT}:{R_OUT+3}], s80 offen {osc}
        s_mov_b32 exec_hi, 0
        s_nop 2
        buffer_store_dwordx4 v[232:235], v245, s[{R_OUT}:{R_OUT+3}], s80 offen {osc}
        s_mov_b64 exec, -1
        """)

    def misc_init(self):
        self.a(f"""
        v_lshlrev_b32 v2, 2, v0
        v_add_u32 v2, {MISC}, v2
        v_mov_b32 v3, 0
        ds_write_b32 v2, v3
        """)


HEADER = open("cdna_kernels/" + NAME + ".s.ref").read().split("; Override launch")[0]

def kernel_text(label, body):
    return f""".text
.globl {label}
.p2align 8
.type {label},@function
{label}:
{body}
"""
def desc(label, vgpr=256):
    return f""".section .rodata,"a"
.p2align 6
.amdhsa_kernel {label}
  .amdhsa_next_free_vgpr {vgpr}
  .amdhsa_next_free_sgpr 102
  .amdhsa_accum_offset {vgpr}
  .amdhsa_group_segment_fixed_size 0
  .amdhsa_kernarg_size 120
  .amdhsa_user_sgpr_count 2
  .amdhsa_user_sgpr_kernarg_segment_ptr 1
  .amdhsa_system_sgpr_workgroup_id_x 1
.end_amdhsa_kernel
"""
```

```python
import sys, os
from parts import *
E = lambda k, d=0: int(os.environ.get(k, d))

class Fused(Gen):
    def cnt_add(self, addr, rtn=False):
        self.a(f"""
        v_mov_b32 v2, {addr}
        v_mov_b32 v3, 1
        s_mov_b64 exec, 1
        {'ds_add_rtn_u32 v4, v2, v3' if rtn else 'ds_add_u32 v2, v3'}
        s_mov_b64 exec, -1
        """)

    def cnt_wait(self, addr, n, name, sleep=0):
        lab = self.L(name)
        self.a(f"""
        v_mov_b32 v2, {addr}
        s_mov_b32 s61, 0
        {lab}:
        ds_read_b32 v3, v2
        s_add_u32 s61, s61, 1
        s_waitcnt lgkmcnt(0)
        v_readfirstlane_b32 s60, v3
        s_cmp_gt_u32 s61, 0x200000
        s_cbranch_scc1 {lab}_d
        s_cmp_ge_u32 s60, {n}
        s_cbranch_scc1 {lab}_d
        {'s_sleep %d' % sleep if sleep else ''}
        s_branch {lab}
        {lab}_d:
        """)

    def build_fused(self):
        a = self.a
        L = self.L
        st = 2 if self.stamps else 0
        N0 = E('N0', 8)
        slp = ('s_sleep %d' % PSLEEP) if PSLEEP else ''
        GE = E('GE', 1); NA = E('NA', 0); GL = E('GL', 0); GS = 40 - 4 * GE - 3 * NA - 3 * GL
        def aux_dma(p):
            if NA == 0: return
            self.w1_addr(12)
            a(f"s_add_u32 s68, s70, {GS}\n{L('adl' + p)}:")
            self.w1_group(12)
            a(f"s_add_u32 s68, s68, 3\ns_cmp_lt_u32 s68, {GS + 3 * NA}\ns_cbranch_scc1 {L('adl' + p)}")
        a(f"{L('start')}:")
        self.prologue()
        self.stamp(0)
        if 0 in self.sel:
            a(f"v_mov_b32 v1, s94\ns_mov_b64 exec, 1\nbuffer_store_dword v1, off, s[{R_WS}:{R_WS+3}], s100 offset:124\ns_mov_b64 exec, -1")
        a(f"s_cmp_ge_u32 s{S_WAVE}, 4\ns_cbranch_scc1 {L('aux0')}")
        a(f"s_setprio {E('GP', 2)}")
        self.ln_loads()
        a(f"s_branch {L('gemm')}\n{L('aux0')}:")
        a.clear_hist()
        a(f"s_sub_u32 s60, s{S_WAVE}, 4\ns_cmp_ge_u32 s60, s{S_NCH}\ns_cbranch_scc1 {L('aux1')}")
        a("s_setprio 3")
        self.kg_loads()
        a(f"s_branch {L('kg')}\n{L('aux1')}:")
        a(f"s_cmp_lg_u32 s{S_WAVE}, 7\ns_cbranch_scc1 {L('noch')}")
        a(f"s_setprio {E('SP', 1)}")
        self.w1_addr(12)
        a(f"""
        s_cmp_lt_u32 s{S_NCH}, 3
        s_cselect_b32 s66, {GS - E('H6', 0)}, {GS}
        s_mul_i32 s68, s{S_RB}, s66
        s_lshr_b32 s68, s68, 4
        s_mov_b32 s67, s66
        s_sub_u32 s65, s66, 1
        {L('sdl')}:
        """)
        self.w1_group(12)
        a(f"""
        s_add_u32 s68, s68, 1
        s_cmp_eq_u32 s68, s66
        s_cselect_b32 s68, 0, s68
        s_cmp_lg_u32 s67, s65
        s_cbranch_scc1 {L('sdw')}
        """)
        self.srd(R_OUT, P_OUT, 2621440)
        a(f"""
        v_lshlrev_b32 v3, 20, v0
        s_mov_b32 exec_hi, 0
        buffer_load_dword v131, v3, s[{R_WS}:{R_WS+3}], 0 offen
        buffer_load_dword v132, v3, s[{R_OUT}:{R_OUT+3}], 0 offen
        s_mov_b64 exec, -1
        {L('sdw')}:
        s_sub_u32 s67, s67, 1
        s_cmp_lg_u32 s67, 0
        s_waitcnt vmcnt({E('DEPTH', 45)})
        s_cbranch_scc1 {L('sdl')}
        s_branch {L('svc')}
        {L('gemm')}:
        """)
        a.clear_hist()
        self.w1_addr(92)
        self.g1_b1_loads()
        a(f"s_add_u32 s68, s{S_WAVE}, {GS + 3 * NA}")
        for i in range(GE):
            self.w1_group(92)
            if i + 1 < GE: a("s_add_u32 s68, s68, 4")
        self.ln_pub_addr()
        a(f"s_waitcnt vmcnt({6 + 3 * GE})")
        self.stamp(1)
        self.ln_math()
        a("s_waitcnt lgkmcnt(0)")
        self.lds_set(M_LNW, S_WAVE, tmp=(2, 3))
        self.lds_wait_all(M_LNW, 4, "lnw4", tmp=2, sleep=0)
        a(f"v_mov_b32 v97, 0\nv_mov_b32 v96, 0\ns_cmp_lg_u32 s{S_WAVE}, 0\ns_cbranch_scc1 {L('g_n0')}")
        a(f"global_load_dword v96, v97, s[{P_DBG}:{P_DBG+1}] sc1\n{L('g_n0')}:")
        self.ln_publish()
        XS = E('XS', 1)
        if XS != 1: self.ln_publish_xt()
        self.stamp(13)
        if XS != 1: self.cnt_add(M_LNCNT + 8)
        if E('RG'): self.cnt_add(M_PD + 4)
        a(f"s_waitcnt vmcnt({(3 if XS == 1 else 6) + (1 if 13 in self.sel else 0)})")
        self.cnt_add(M_LNCNT + 12)
        self.g1_prep()
        self.g2_addr()
        a(f"s_waitcnt vmcnt({(3 + (1 if 13 in self.sel else 0)) if XS == 2 else 0})")
        self.stamp(2)
        a(f"s_cmp_eq_u32 s{S_WAVE}, 0\ns_cbranch_scc1 {L('g_w0')}")
        self.cnt_add(M_LNCNT)
        if GL:
            a(f"s_add_u32 s68, s{S_WAVE}, {40 - 3 * GL - 1}")
            for i in range(GL):
                self.w1_group(92)
                if i + 1 < GL: a("s_add_u32 s68, s68, 3")
            a("s_waitcnt vmcnt(0)")
            self.cnt_add(M_LNCNT + 12)
        a(f"s_branch {L('g_j')}\n{L('g_w0')}:")
        a(f"""
        s_mov_b32 s64, 0
        {L('np')}:
        v_readfirstlane_b32 s{S_NONCE}, v96
        s_cmp_gt_u32 s64, 0x20000
        s_cbranch_scc1 {L('npd')}
        s_cmp_lg_u32 s{S_NONCE}, 0
        s_cbranch_scc1 {L('npd')}
        global_load_dword v96, v97, s[{P_DBG}:{P_DBG+1}] sc1
        s_add_u32 s64, s64, 1
        s_waitcnt vmcnt(0)
        s_nop 1
        s_branch {L('np')}
        {L('npd')}:
        v_mov_b32 v2, s{S_NONCE}
        v_mov_b32 v3, {M_NONCE}
        ds_write_b32 v3, v2
        v_mov_b32 v3, {M_LNCNT}
        s_mov_b32 s64, 0
        {L('lc')}:
        ds_read_b32 v2, v3
        s_add_u32 s64, s64, 1
        s_waitcnt lgkmcnt(0)
        v_readfirstlane_b32 s60, v2
        s_cmp_gt_u32 s64, 0x200000
        s_cbranch_scc1 {L('lcd')}
        s_cmp_lt_u32 s60, 3
        s_cbranch_scc1 {L('lc')}
        {L('lcd')}:
        s_mul_i32 s66, s{S_LID}, {FSTR}
        s_add_u32 s66, s66, {FLN}
        """)
        self.store_flag(66)
        self.stamp(10)
        a(f"{L('g_j')}:")
        if XS == 1:
            self.ln_publish_xt()
            self.cnt_add(M_LNCNT + 8)
        self.get_nonce("gn", tmp=2)
        a(f"s_lshl_b32 s66, s{S_RB}, 2\ns_add_u32 s66, s66, s{S_WAVE}\ns_mul_i32 s66, s66, {4*FSTR}\ns_add_u32 s66, s66, {FLN}")
        def flt(p, wait):
            a(f"s_cmp_lg_u32 s71, 0\ns_cbranch_scc1 {L('flt' + p)}\ns_mov_b32 s71, 1")
            wait()
            self.cnt_add(M_HC + 4, rtn=True)
            a(f"""
            s_mul_i32 s65, s{S_LID}, {FSTR}
            s_add_u32 s65, s65, {FLT}
            s_waitcnt lgkmcnt(0)
            s_nop 1
            v_readfirstlane_b32 s60, v4
            s_cmp_lg_u32 s60, 3
            s_cbranch_scc1 {L('flt' + p)}
            v_mov_b32 v2, s{S_NONCE}
            s_mov_b64 exec, 1
            buffer_store_dword v2, off, s[{R_WS}:{R_WS+3}], s65 sc1
            s_mov_b64 exec, -1
            {L('flt' + p)}:
            """)
        a("s_mov_b32 s71, 0")
        if XS == 2: flt("c", lambda: a(f"s_waitcnt vmcnt(1)\ns_cmp_eq_u32 s{S_WAVE}, 0\ns_cbranch_scc1 {L('x2w')}\ns_waitcnt vmcnt(0)\n{L('x2w')}:"))
        self.spoll("pln", 66, FSTR, E('SS', 1), n=4, miss=(lambda: flt("a", lambda: a("s_waitcnt vmcnt(0)"))) if XS else None)
        self.stamp(3)
        self.vq = ["XT"]; self.seen.add("XT")
        for ks in range(2):
            for it in self.g1_aload(ks): self.emit(it)
        if XS: flt("b", lambda: a("s_waitcnt vmcnt(4)"))
        for ks in range(2, N0):
            for it in self.g1_aload(ks): self.emit(it)
        if not E('W4S'): self.cnt_add(M_LN)
        if E('H6', 0):
            a(f"s_cmp_lt_u32 s{S_NCH}, 3\ns_cselect_b32 s65, 6, 5")
            self.cnt_wait(M_LNCNT + 12, "s65", "w1w")
        else: self.cnt_wait(M_LNCNT + 12, 5 + (3 if NA else 0) + (3 if GL else 0), "w1w")
        self.stamp(4, q=True)
        self.pubn = ''
        def publish(p):
            self.vwait("S")
            self.cnt_add(M_HC + 4 * p, rtn=True)
            a(f"""
            s_mul_i32 s66, s{S_LID}, {FHS}
            s_add_u32 s66, s66, {FH + 256 * FHS * p}
            s_waitcnt lgkmcnt(0)
            s_nop 1
            v_readfirstlane_b32 s60, v4
            s_cmp_lg_u32 s60, 3
            s_cbranch_scc1 {L('nofh%d%s' % (p, self.pubn))}
            """)
            self.store_flag(66)
            a(f"{L('nofh%d%s' % (p, self.pubn))}:")
            self.stamp(28 + p, q=True)
            self.vq.append("f")
            self.vq.pop()
        def cnt_wait(addr, n, name):
            lab = L(name)
            a(f"""
            v_mov_b32 v2, {addr}
            s_mov_b32 s61, 0
            {lab}:
            ds_read_b32 v3, v2
            s_add_u32 s61, s61, 1
            s_waitcnt lgkmcnt(0)
            v_readfirstlane_b32 s60, v3
            s_cmp_gt_u32 s61, 0x200000
            s_cbranch_scc1 {lab}_d
            s_cmp_lt_u32 s60, {n}
            s_cbranch_scc1 {lab}
            {lab}_d:
            """)
        def ev_rb():
            self.lds_wait_all(M_FW, 1, "fww", tmp=2)
            return sum((self.g2_bload_items(j) for j in range(12) if self.inreg(j)), [])
        ev = {10: lambda: self.stamp(14, q=True)}
        RB1 = E('RB1', 11)
        if RB1 < 20: ev[RB1] = ev_rb
        if E('W4S'): ev[E('W4S')] = lambda: self.lds_set(M_HP, None, tmp=(2, 3))
        self.g2_setup_s()
        fa, fv = self.g1_loop(N0, ev, TL=E('TL', 5))
        self.cnt_add(M_PD)
        self.stamp(5, q=True)
        for it in fa + self.epi_ops(2) + fv[:E('FV', 4)]: self.emit(it)
        fv = fv[E('FV', 4):]
        self.stamp(15, q=True)
        self.g2_setup_v()
        ND = 0
        publish(0)
        rest = ev_rb() if RB1 >= 20 else []
        for it in fv: self.emit(it)
        cnt_wait(M_PD, 4, "pdw")
        if E('PF') and not E('PF2'): a("s_setprio 0")
        for j in (range(6) if self.NRB == 3 else range(5, 11)):
            for it in self.g2_dma_items(j): self.emit(it)
        for it in rest: self.emit(it)
        self.stamp(6, q=True)
        a(f"s_lshr_b32 s66, s{S_RB2}, 1\ns_lshl_b32 s66, s66, 2\ns_add_u32 s66, s66, s{S_WAVE}\ns_mul_i32 s66, s66, {4*FHS}\ns_add_u32 s66, s66, {FH}")
        self.spoll("pfh", 66, FHS, E('SS', 1), n=4)
        NF2 = E('NF2', 2)
        for j in range(NF2):
            for it in self.g2_aload_items(j): self.emit(it)
        self.stamp(7, q=True)
        self.g2_loop(hook=lambda: self.lds_set(M_J6, None, tmp=(2, 3)), hook_at=E('J6', 6), fill0=sum((self.g2_aload_items(j) for j in range(NF2, 5 if self.NRB == 3 else 3)), []))
        self.stamp(8)
        if E('PF'): a("s_setprio 2")
        self.g2_final()
        if 9 in self.sel: a("s_waitcnt vmcnt(0)")
        self.stamp(9)
        if E('KX'):
            a(f"""
            s_waitcnt vmcnt(0)
            s_memrealtime s[62:63]
            s_waitcnt lgkmcnt(0)
            s_sub_u32 s60, s62, s{S_NONCE}
            s_min_u32 s60, s60, 10000
            s_mul_i32 s60, s60, {E('KX')}
            {L('kx')}:
            s_memrealtime s[62:63]
            s_waitcnt lgkmcnt(0)
            s_sub_u32 s61, s62, s{S_NONCE}
            s_cmp_lt_u32 s61, s60
            s_cbranch_scc1 {L('kx')}
            """)
        self.dg_end(0)
        if E('SK'):
            a(f"""
            s_sub_u32 s60, {'s94, s%d' % S_NONCE if E('SK') == 1 else 's%d, s94' % S_NONCE}
            s_max_i32 s60, s60, 0
            s_min_u32 s60, s60, 2000
            s_mul_i32 s60, s60, 10
            s_memrealtime s[62:63]
            s_waitcnt lgkmcnt(0)
            s_mov_b32 s64, s62
            {L('sk')}:
            s_memrealtime s[62:63]
            s_waitcnt lgkmcnt(0)
            s_sub_u32 s61, s62, s64
            s_cmp_lt_u32 s61, s60
            s_cbranch_scc1 {L('sk')}
            """)
        self.role = 'c'
        a(f"s_endpgm\n{L('kg')}:")
        a.clear_hist()
        self.kg_setup()
        a("s_waitcnt vmcnt(4)\ns_setprio 0")
        self.stamp(1)
        if E('X1'):
            self.get_nonce("x1n", tmp=2)
            self.lds_set(M_CD, 70, tmp=(2, 3))
            a(f"s_mul_i32 s66, s71, {FSTR}\ns_add_u32 s66, s66, {FS}")
            self.store_flag(66)
            a("s_endpgm")
        def khook():
            a(f"s_cmp_lg_u32 s73, 2\ns_cbranch_scc1 {L('kh')}\ns_waitcnt vmcnt(0)")
            self.cnt_add(M_LNCNT + 12)
            a(f"{L('kh')}:")
        self.kgen()
        self.stamp(3)
        self.expand()
        self.stamp(2)
        self.get_nonce("cn", tmp=2)
        self.lds_wait_all(M_U, 1, "uw", tmp=2)
        self.stamp(4)
        if E('CW'):
            lab = L("cw")
            a(f"""
            v_mov_b32 v2, {M_PD + 4 * (E('CW') - 1)}
            s_mov_b32 s61, 0
            {lab}:
            ds_read_b32 v3, v2
            s_add_u32 s61, s61, 1
            s_waitcnt lgkmcnt(0)
            v_readfirstlane_b32 s60, v3
            s_cmp_gt_u32 s61, 0x200000
            s_cbranch_scc1 {lab}_d
            s_cmp_ge_u32 s60, 4
            s_cbranch_scc1 {lab}_d
            s_sleep 2
            s_branch {lab}
            {lab}_d:
            """)
        if E('PF'): a("s_setprio 1")
        self.conv()
        self.lds_set(M_CD, 70, tmp=(2, 3))
        self.stamp(5)
        a(f"s_mul_i32 s66, s71, {FSTR}\ns_add_u32 s66, s66, {FS}\ns_waitcnt vmcnt(0)")
        self.store_flag(66)
        self.stamp(6)
        self.dg_end(4)
        a(f"s_endpgm\n{L('noch')}:")
        a.clear_hist()
        a(f"s_sub_u32 s70, s{S_WAVE}, 4")
        aux_dma("b")
        a(f"s_cmp_eq_u32 s{S_WAVE}, 6\ns_cbranch_scc1 {L('rt')}\ns_waitcnt vmcnt(0)")
        if NA: self.cnt_add(M_LNCNT + 12)
        a(f"s_cmp_lg_u32 s{S_WAVE}, 4\ns_cbranch_scc1 {L('end')}")
        self.cnt_wait(M_LNCNT + 8, 4, "agw", sleep=2)
        self.get_nonce("an", tmp=2)
        a(f"s_lshl_b32 s67, s{S_XCD}, 1\ns_add_u32 s67, s67, s{S_IDX}\ns_sub_u32 s67, s67, 30\ns_mul_i32 s66, s67, {16*FSTR}\ns_add_u32 s66, s66, {FLT if E('XS', 1) else FLN}")
        self.spoll("plt", 66, FSTR, 2)
        a(f"""
        s_mul_i32 s66, s67, {FSTR}
        s_add_u32 s66, s66, {FL2}
        v_mul_u32_u24 v2, {16*FSTR}, v0
        v_mov_b32 v3, s{S_NONCE}
        s_mov_b64 exec, 0xffff
        buffer_store_dword v3, v2, s[{R_WS}:{R_WS+3}], s66 offen sc1
        s_mov_b64 exec, -1
        """)
        self.stamp(8)
        a(f"s_endpgm\n{L('rt')}:")
        H6 = E('H6', 0)
        self.w2_loads()
        if H6:
            self.w1_addr(12)
            a(f"s_mov_b32 s68, {GS - H6}\n{L('h6l')}:")
            self.w1_group(12)
            a(f"s_add_u32 s68, s68, 1\ns_cmp_lt_u32 s68, {GS}\ns_cbranch_scc1 {L('h6l')}")
        a(f"s_waitcnt vmcnt({3 * H6})")
        self.cnt_wait(M_PD + 4 if E('RG') else M_LNCNT + 8, 4, "rtw", sleep=2)
        a("s_setprio 3")
        self.w2_retile(mid=(lambda: (a("s_waitcnt vmcnt(10)"), self.cnt_add(M_LNCNT + 12))) if H6 else None)
        a(f"""
        v_mov_b32 v3, 0
        s_mov_b32 s64, 0
        {L('wn')}:
        global_load_dword v2, v3, s[{P_DBG}:{P_DBG+1}] sc1
        s_add_u32 s64, s64, 1
        s_waitcnt vmcnt(0)
        s_nop 1
        v_readfirstlane_b32 s{S_NONCE}, v2
        s_cmp_gt_u32 s64, 0x20000
        s_cbranch_scc1 {L('wnd')}
        s_cmp_eq_u32 s{S_NONCE}, 0
        s_cbranch_scc1 {L('wn')}
        {L('wnd')}:
        """)
        a(f"""
        s_mul_i32 s66, s43, {FSTR}
        s_add_u32 s66, s66, {FWR}
        v_mul_u32_u24 v2, {96*FSTR}, v0
        v_mov_b32 v3, s{S_NONCE}
        s_mov_b64 exec, 0xff
        s_waitcnt vmcnt(0)
        buffer_store_dword v3, v2, s[{R_WS}:{R_WS+3}], s66 offen sc1
        s_mov_b64 exec, -1
        """)
        self.stamp(7)
        a(f"s_endpgm\n{L('svc')}:")
        a.clear_hist()
        self.role = 's'
        a("s_waitcnt vmcnt(0)")
        self.cnt_add(M_LNCNT + 12)
        a("s_setprio 3")
        self.stamp(2)
        self.get_nonce("sn", tmp=2)
        def fwp():
            a(f"s_lshr_b32 s66, s{S_CB2}, 2\ns_mul_i32 s66, s66, {FSTR}\ns_add_u32 s66, s66, {FW}")
            if E('L2P', 0):
                a(f"s_mov_b32 s66, {FW}")
                self.poll_flags("pfw", 66, 48, nloads=2, istride=48*FSTR)
            else:
                self.poll_flags("pfw", 66, 48, lstride=2*FSTR)
            self.lds_set(M_FW, None, tmp=(2, 3))
            if E('L2P', 0):
                a(f"s_mul_i32 s60, s{S_IDX}, {480*128}\ns_add_u32 s60, s60, {W2F}\nv_lshlrev_b32 v2, 7, v0")
                for i in range(8):
                    if i == 7: a("s_mov_b32 exec_hi, 0")
                    a(f"buffer_load_dword v{200+i}, v2, s[{R_WS}:{R_WS+3}], s60 offen sc1\ns_add_u32 s60, s60, 8192")
                a("s_mov_b64 exec, -1")
            self.stamp(5)
        a(f"s_mul_i32 s66, s{S_XCD}, {96*FSTR}\ns_lshr_b32 s60, s{S_CB2}, 2\ns_mul_i32 s60, s60, {FSTR}\ns_add_u32 s66, s66, s60\ns_add_u32 s66, s66, {FWR}")
        a("s_mov_b32 s67, s66")
        if E('W4S'): self.lds_wait_all(M_HP, 1, "slw", tmp=2, sleep=2)
        else:
            self.cnt_wait(M_LN, 4, "slw", sleep=1)
            if E('W4D'): a(f"s_sleep {E('W4D')}")
        CP = E('CP')
        if not CP or E('FE'):
            self.poll_flags("pfw", 67, 48, lstride=2*FSTR)
            self.lds_set(M_FW, None, tmp=(2, 3))
            self.stamp(5)
        def cpoll(name, first):
            a(f"""
            v_mul_u32_u24 v2, {FSTR}, v0
            s_sub_u32 s60, s67, {32*FSTR}
            v_lshlrev_b32 v4, 1, v2
            v_add_u32 v4, s60, v4
            s_and_b32 s60, s2, 15
            s_mul_i32 s60, s60, {16*FSTR}
            s_add_u32 s60, s60, {FL2}
            v_add_u32 v2, s60, v2
            v_cmp_gt_u32 vcc, 16, v0
            v_cndmask_b32 v2, v4, v2, vcc
            v_mov_b32 v4, {M_FW}
            {'' if first else 's_lshl_b64 exec, -1, 16'}
            s_mov_b32 s64, 0
            {L(name)}:
            buffer_load_dword v3, v2, s[{R_WS}:{R_WS+3}], 0 offen sc1
            s_add_u32 s64, s64, 1
            s_waitcnt vmcnt(0)
            v_cmp_ne_u32 vcc, s{S_NONCE}, v3
            s_cmp_gt_u32 s64, 0x20000
            s_cselect_b64 s[60:61], 0, vcc
            s_lshr_b64 s[62:63], s[60:61], 16
            s_cmp_eq_u64 s[62:63], 0
            s_cselect_b32 s65, 1, 0
            v_mov_b32 v3, s65
            ds_write_b32 v4, v3
            {'s_and_b32 s60, s60, 0xffff' if first else 's_xor_b32 s60, s65, 1'}
            s_cmp_eq_u32 s60, 0
            s_cbranch_scc1 {L(name)}_d
            s_sleep {E('CSL', 3)}
            s_branch {L(name)}
            {L(name)}_d:
            s_mov_b64 exec, -1
            """)
        a("s_mov_b32 s65, 0")
        if E('W3D'): a(f"s_sleep {E('W3D')}")
        a(f"s_cmp_eq_u32 s{S_NCH}, 0\ns_cbranch_scc1 {L('nou')}")
        a(f"s_and_b32 s66, s2, 15\ns_mul_i32 s66, s66, {16*FSTR}\ns_add_u32 s66, s66, {FL2}")
        if CP and not E('FE'): cpoll("pla", True)
        elif E('L2V'): self.poll_flags("pla", 66, 16)
        else: self.spoll("pla", 66, FSTR, E('CSL', 3))
        self.stamp(3)
        self.u_gather()
        self.lds_set(M_U, None, tmp=(2, 3))
        a(f"{L('nou')}:")
        self.stamp(4)
        if CP and not E('FE'):
            a(f"s_cmp_lg_u32 s65, 0\ns_cbranch_scc1 {L('fwok')}")
            cpoll("plb", False)
            a(f"{L('fwok')}:")
        self.svc_x_loads()
        self.stamp(6)
        self.lds_wait_all(M_J6, 1, "j6w", tmp=2)
        a(f"s_mul_i32 s66, s{S_CB2}, {80*FSTR}\ns_add_u32 s66, s66, {FS}")
        self.poll_flags("pfs", 66, 40, nloads=2, istride=40*FSTR)
        a(f"s_cmp_eq_u32 s{S_NCH}, 0\ns_cbranch_scc1 {L('nocd')}")
        self.lds_wait_all(M_CD, 2, "cdw", tmp=2)
        a(f"{L('nocd')}:")
        self.stamp(7)
        self.s_tile_dma()
        self.stamp(8)
        a("s_barrier")
        self.dg_end(7)
        a(f"{L('end')}:\ns_endpgm")

if __name__ == "__main__":
    path = sys.argv[1]
    opts = sys.argv[2:]
    g = Fused("fused", "stamps" in opts)
    g.sel = set(range(32)) if "stamps" in opts else ({0, 9} | {int(x) for x in os.environ.get("SEL", "").split(",") if x} if "mins" in opts else set())
    g.build_fused()
    lab = NAME + "_kernel"
    txt = HEADER + f"; @launch grid=(256,1,1) block=(512,1,1) lds={LDS_TOTAL}\n" + '.amdgcn_target "amdgcn-amd-amdhsa--gfx950"\n' + kernel_text(lab, g.a.text()) + desc(lab)
    if E('X4'):
        import re
        txt = re.sub(r"(buffer_load_dwordx4 .*?) sc1", r"\1", txt)
    if E('X2'):
        txt = "\n".join(("    s_nop 0" if ("s81 offen" in l) else l) for l in txt.split("\n"))
    open(path, "w").write(txt)
```
